```python
import torch

def _softmax(x, axis=-1):
    return torch.softmax(x, dim=axis)
def _gelu(x):
    return torch.nn.functional.gelu(x, approximate="tanh")
def _silu(x):
    return torch.nn.functional.silu(x)
def _sigmoid(x):
    return torch.sigmoid(x)
def _layernorm(x, axis=-1, eps=1e-5):
    m = x.mean(dim=axis, keepdim=True)
    v = x.var(dim=axis, keepdim=True, unbiased=False)
    return (x - m) / torch.sqrt(v + eps)
def _scatter_add(tgt, idx, src, axis=0):
    return tgt.clone().index_add_(axis, idx, src)
def _segment_sum(src, seg, n):
    out = torch.zeros((n,) + src.shape[1:], dtype=src.dtype)
    return out.index_add_(0, seg, src)
def _pad(x, pw):
    flat = tuple(v for pair in reversed(pw) for v in pair)
    return torch.nn.functional.pad(x, flat)

kernel_name = 'concat_heads__linear_attn_block__linear_kernel_hedgehog__prompt'

def setup_inputs():

    _w = (lambda a: (lambda t: t.to(torch.bfloat16) if t.is_floating_point() else t)(torch.as_tensor(a)))
    def _A_setup():
        B, S, D = 1, 2048, 448
        return {
            "x": _w((lambda *s: torch.randn(*s, dtype=torch.bfloat16) * 0.05)(B, S, D)),
            "wqkv": _w((lambda *s: torch.randn(*s, dtype=torch.bfloat16) * 0.8)(D, 3 * D)),
            "wo": _w((lambda *s: torch.randn(*s, dtype=torch.bfloat16) * 0.4)(D, D)),
        }
    _A_in = _A_setup()

    def _B_setup():
        B, S, D, H = 1, 2048, 448, 16
        Dh = D // H
        return {
            "x": _w((lambda *s: torch.randn(*s, dtype=torch.bfloat16) * 0.4)(B, S, D)),
            "wqkv": _w((lambda *s: torch.randn(*s, dtype=torch.bfloat16) * 0.4)(D, 3 * D)),
            "w_phi": _w((lambda *s: torch.randn(*s, dtype=torch.bfloat16) * 0.4)(H, Dh, Dh) * (Dh ** -0.5)),
            "wo": _w((lambda *s: torch.randn(*s, dtype=torch.bfloat16) * 0.05)(D, D)),
        }
    _B_in = _B_setup()

    return {
        "A_x": _A_in["x"],
        "A_wqkv": _A_in["wqkv"],
        "A_wo": _A_in["wo"],
        "B_x": _B_in["x"],
        "B_wqkv": _B_in["wqkv"],
        "B_w_phi": _B_in["w_phi"],
        "B_wo": _B_in["wo"],
    }

def reference(A_x, A_wqkv, A_wo, B_x, B_wqkv, B_w_phi, B_wo):
    def _A_ref(x, wqkv, wo):
        B, S, D = x.shape
        H = 16; Dh = D // H
        qkv = (lambda x, *d: x.permute(*d))((x @ wqkv).reshape(B, S, 3, H, Dh), 2, 0, 3, 1, 4)
        q, k, v = qkv[0], qkv[1], qkv[2]
        phi = lambda t: torch.where(t > 0, t + 1, torch.exp(t)) + 1e-6
        pq, pk = phi(q), phi(k)
        kv = torch.einsum("bhsd,bhse->bhde", pk, v)
        z = torch.einsum("bhsd->bhd", pk)
        num = torch.einsum("bhqd,bhde->bhqe", pq, kv)
        den = torch.einsum("bhqd,bhd->bhq", pq, z)[..., None] + 1e-6
        o = num / den
        return (lambda x, *d: x.permute(*d))(o, 0, 2, 1, 3).reshape(B, S, D) @ wo

    def _B_ref(x, wqkv, w_phi, wo):
        B, S, D = x.shape
        H = 16; Dh = D // H
        qkv = (lambda x, *d: x.permute(*d))((x @ wqkv).reshape(B, S, 3, H, Dh), 2, 0, 3, 1, 4)
        q, k, v = qkv[0], qkv[1], qkv[2]
        pq = torch.einsum("bhsd,hdf->bhsf", q, w_phi)
        pk = torch.einsum("bhsd,hdf->bhsf", k, w_phi)
        phi_q = torch.concatenate([_softmax(pq, axis=-1), _softmax(-pq, axis=-1)], axis=-1)
        phi_k = torch.concatenate([_softmax(pk, axis=-1), _softmax(-pk, axis=-1)], axis=-1)
        kv = torch.einsum("bhsf,bhsd->bhfd", phi_k, v)
        z  = torch.einsum("bhsf->bhf", phi_k)
        num = torch.einsum("bhqf,bhfd->bhqd", phi_q, kv)
        den = torch.einsum("bhqf,bhf->bhq", phi_q, z)[..., None] + 1e-6
        o = num / den
        return (lambda x, *d: x.permute(*d))(o, 0, 2, 1, 3).reshape(B, S, D) @ wo

    a = _A_ref(A_x, A_wqkv, A_wo)
    b = _B_ref(B_x, B_wqkv, B_w_phi, B_wo)
    return torch.concatenate([a, b], axis=-1)
```

```python
import re

REG_RE = re.compile(r'(?<![\w.])(-?)(\|?)([vas])(?:\[(\d+):(\d+)\]|(\d+))(?![\w])')

def regs_of(tok):
    tok = tok.strip()
    out = set()
    m = re.fullmatch(r'-?\|?([vas])(?:\[(\d+):(\d+)\]|(\d+))\|?', tok)
    if m:
        k = m.group(1)
        if m.group(4) is not None: out.add((k, int(m.group(4))))
        else:
            for i in range(int(m.group(2)), int(m.group(3)) + 1): out.add((k, i))
    elif tok == 'vcc': out |= {('s', 'vcc')}
    elif tok in ('exec', 'exec_hi', 'exec_lo'): out |= {('s', 'exec')}
    elif tok == 'm0': out |= {('s', 'm0')}
    return out

TRANS = ('v_exp_f32', 'v_rcp_f32', 'v_log_f32', 'v_rsq_f32', 'v_sqrt_f32')

class Ins:
    __slots__ = ('text', 'op', 'w', 'r', 'kind', 'tag', 'srcc', 'sab', 'passes', 'dma', 'wide', 'data')
    def __init__(self, text, tag=None):
        self.text = text; self.tag = tag
        t = text.split(';')[0].strip()
        parts = t.split(None, 1)
        op = parts[0]; self.op = op
        rest = parts[1] if len(parts) > 1 else ''
        ops = []; depth = 0; cur = ''
        for ch in rest:
            if ch in '[(': depth += 1
            if ch in '])': depth -= 1
            if ch == ',' and depth == 0: ops.append(cur); cur = ''
            else: cur += ch
        if cur.strip(): ops.append(cur)
        ops = [o.strip() for o in ops]
        mods = ''
        if ops:
            sp = ops[-1].split(None, 1)
            ops[-1] = sp[0]; mods = sp[1] if len(sp) > 1 else ''
        R = [regs_of(o) for o in ops]
        w = set(); r = set(); self.srcc = set(); self.sab = set(); self.passes = 0; self.dma = False; self.wide = False; self.data = set()
        U = lambda l: set().union(*l) if l else set()
        if op.startswith('v_mfma'):
            kind = 'mfma'; w = R[0]; r = U(R[1:]); self.sab = R[1] | R[2]; self.srcc = R[3]
            self.passes = 8 if '32x32x16' in op else 4
        elif op.startswith('v_cmp'):
            kind = 'valu'; w = R[0]; r = U(R[1:])
        elif op.startswith('v_permlane32_swap') or op.startswith('v_permlane16_swap'):
            kind = 'valu'; w = R[0] | R[1]; r = R[0] | R[1]
        elif op.startswith('v_readfirstlane') or op.startswith('v_readlane'):
            kind = 'valu'; w = R[0]; r = U(R[1:])
        elif op.startswith('v_'):
            kind = 'valu'; w = R[0]; r = U(R[1:])
            if op.startswith(('v_fmac', 'v_dot2c', 'v_writelane')): r |= R[0]
            if op.startswith('v_cndmask') and len(ops) == 3: r.add(('s', 'vcc'))
            if '_dpp' in op: r |= R[0]
        elif op.startswith('ds_read'):
            kind = 'ds'; w = R[0]; r = U(R[1:])
        elif op.startswith('ds_write') or op.startswith('ds_add'):
            kind = 'ds'; r = U(R); self.data = U(R[1:])
        elif op.startswith('buffer_load') or op.startswith('global_load'):
            kind = 'vm'
            if ' lds' in (' ' + mods):
                self.dma = True; r = U(R) | {('s', 'm0')}
            else:
                w = R[0]; r = U(R[1:])
                if 'd16' in op: r |= R[0]
        elif op.startswith('buffer_store'):
            kind = 'vm'; r = U(R); self.data = R[0]; self.wide = op.endswith(('x3', 'x4'))
        elif op.startswith('global_store') or op.startswith('global_atomic'):
            kind = 'vm'; r = U(R); self.data = R[1]; self.wide = op.endswith(('x3', 'x4'))
        elif op.startswith('buffer_wbl2') or op.startswith('buffer_inv'):
            kind = 'vm'
        elif op.startswith(('s_load', 's_memtime', 's_memrealtime')):
            kind = 'smem'; w = R[0]; r = U(R[1:])
        elif op in ('s_waitcnt', 's_barrier', 's_nop', 's_endpgm', 's_setprio', 's_sleep') or op.startswith(('s_cbranch', 's_branch')):
            kind = 'ctl'
            if 'vcc' in op: r = {('s', 'vcc')}
        elif op.startswith(('s_cmp', 's_bitcmp')):
            kind = 'salu'; r = U(R)
        elif op.startswith('s_'):
            kind = 'salu'; w = R[0]; r = U(R[1:])
            if 'saveexec' in op: w = w | {('s', 'exec')}
        elif op.endswith(':') or op.startswith('.'):
            kind = 'label'
        elif op.startswith('@'):
            kind = 'pseudo'
        else:
            raise Exception('unknown op ' + text)
        self.kind = kind; self.w = w; self.r = r

def finalize(lines):
    ins = [Ins(*l) if isinstance(l, tuple) else Ins(l) for l in lines]
    out = []
    vmq = []
    lgq = []
    smem = set()
    smem_out = False
    hist = []
    def emit(i, states=1):
        out.append(i.text); hist.append((i, states))
        if len(hist) > 40: hist.pop(0)
    def wait(vm=None, lg=None):
        nonlocal vmq, lgq, smem, smem_out
        s = 's_waitcnt'
        if vm is not None:
            vm = min(vm, 63); s += ' vmcnt(%d)' % vm; vmq = vmq[len(vmq)-vm:] if vm else []
        if lg is not None:
            lg = min(lg, 15); s += ' lgkmcnt(%d)' % lg; lgq = lgq[len(lgq)-lg:] if lg else []
            if lg == 0: smem = set(); smem_out = False
        emit(Ins(s))
    for i in ins:
        if i.kind == 'pseudo':
            p = i.text.split()
            if p[0] == '@waitvm':
                idx = [k for k, o in enumerate(vmq) if o.tag in p[1:]]
                if idx: wait(vm=len(vmq) - 1 - idx[-1])
            elif p[0] == '@waitlgkm':
                idx = [k for k, o in enumerate(lgq) if o.tag in p[1:]]
                if idx: wait(lg=0 if smem_out else len(lgq) - 1 - idx[-1])
            elif p[0] == '@waitvm_all': wait(vm=0)
            elif p[0] == '@waitlgkm_all': wait(lg=0)
            elif p[0] == '@wait_all': wait(vm=0, lg=0)
            elif p[0] == '@assume_idle':
                vmq = []; lgq = []; smem = set(); smem_out = False
            else: raise Exception(i.text)
            continue
        if i.kind == 'label':
            out.append(i.text)
            if i.op.endswith(':'):
                hist.append((Ins('s_nop 0'), 0));
            continue
        touched = i.r | i.w
        need_vm = None; need_lg = None
        for k, o in enumerate(vmq):
            if o.w & (i.r if i.kind == 'vm' else touched): need_vm = len(vmq) - 1 - k
        for k, o in enumerate(lgq):
            if o.w & (i.r if i.kind == 'ds' else touched): need_lg = len(lgq) - 1 - k
        if smem & touched: need_lg = 0
        if need_lg is not None and smem_out: need_lg = 0
        if i.op == 's_waitcnt':
            raise Exception('use pseudo waits')
        if need_vm is not None or need_lg is not None: wait(need_vm, need_lg)
        need = 0; dist = 0
        for (p, st) in reversed(hist):
            req = hazard(p, i)
            if req > dist: need = max(need, req - dist)
            dist += st
            if dist >= 20: break
        while need > 0:
            n = min(need, 16); emit(Ins('s_nop %d' % (n - 1)), n); need -= n
        st = 1
        if i.op == 's_nop': st = int(i.text.split()[1]) + 1
        emit(i, st)
        if i.kind == 'vm':
            if i.tag != 'untracked': vmq.append(i)
        elif i.kind == 'ds': lgq.append(i)
        elif i.kind == 'smem' and i.tag != 'nowait': smem |= i.w; smem_out = True
    return out

def vg(s): return {x for x in s if x[0] in 'va'}
def sg(s): return {x for x in s if x[0] == 's'}

def hazard(p, c):
    n = 0
    if p.kind == 'valu':
        pv = vg(p.w); ps = sg(p.w)
        if c.kind == 'mfma' and pv & c.r: n = max(n, 2)
        if c.kind == 'valu':
            if pv & c.r:
                if c.op.startswith('v_permlane') or '_dpp' in c.op: n = max(n, 2)
                if c.op.startswith(('v_readlane', 'v_readfirstlane')): n = max(n, 1)
                if p.op.startswith(TRANS) and not c.op.startswith(TRANS): n = max(n, 1)
                if p.op.startswith(TRANS): n = max(n, 1)
            if p.op.startswith('v_dot') and pv & (c.r | c.w):
                n = max(n, 3 if not (c.op == p.op and not (pv & (c.r - c.w))) else 0)
            if ps & c.r: n = max(n, 4 if c.op.startswith(('v_readlane', 'v_writelane')) else 2)
        if c.kind == 'vm' and ps & c.r: n = max(n, 5)
        if c.kind in ('salu', 'ctl', 'smem') and ps & c.r: n = max(n, 2)
        if p.op.startswith('v_dot') and c.kind != 'valu' and pv & (c.r | c.w): n = max(n, 3)
        if p.op.startswith(TRANS) and c.kind in ('vm', 'ds') and pv & c.r: n = max(n, 1)
    if p.kind == 'mfma':
        big = {8: 12, 4: 8}[p.passes]; ovl = {8: 10, 4: 6}[p.passes]; war = {8: 7, 4: 3}[p.passes]
        if c.kind == 'mfma':
            if p.w & c.sab: n = max(n, big)
            if p.w & c.srcc and not (p.w == c.srcc and p.passes == c.passes): n = max(n, ovl)
            if p.w & c.w and not (p.w == c.srcc): n = max(n, ovl if p.w != c.w else 0)
        elif c.kind in ('valu', 'vm', 'ds'):
            if p.w & (c.r | c.w): n = max(n, big)
            if c.kind == 'valu' and vg(p.srcc) & c.w: n = max(n, war)
    if p.kind == 'salu' and ('s', 'm0') in p.w and c.dma: n = max(n, 1)
    if p.kind == 'vm' and p.wide and p.data & c.w: n = max(n, 2)
    return n

def interleave(main, *others):
    items = [(k / max(len(main), 1), 0, k, x) for k, x in enumerate(main)]
    for s, o in enumerate(others, 1):
        items += [((k + 0.5) / max(len(o), 1), s, k, x) for k, x in enumerate(o)]
    items.sort(key=lambda t: (t[0], t[1], t[2]))
    return [t[3] for t in items]
```

```python
import sys
from emit import finalize, interleave

KNAME = 'concat_heads__linear_attn_block__linear_kernel_hedgehog__prompt_kernel'

class Cfg:
    stamps = False
    force_global = False
    wv_b1 = 3
    part_pos = 0.0
    rot = True
    pref_slots = 2

WS_XCC, WS_FLAG, WS_PART, WS_O, WS_STAMP = 4096, 8192, 65536, 2 << 20, 16 << 20
WS_BYTES = 32 << 20
L_WK, L_WV, L_MISC, L_WQ = 98304, 126976, 155648, 32768
L_WO_SHIFT = 36864
OOB = 0x40000000
sAX, sAW, sAWO, sBX, sBW, sPHI, sBWO, sOUT, sDBG, sWSP = 4, 6, 8, 10, 12, 14, 16, 18, 20, 22
SX, SW, SWO, SPHI, SWS, SOUT = 24, 28, 32, 36, 40, 44
sBR, sRB, sH, sW, sGID, sSLOT, sT0, sT1, sT2, sXCC = 48, 49, 50, 51, 52, 53, 54, 55, 56, 57
sN0, sN1 = 58, 59
sHI, sE28 = 60, 62
sXO, sWO_ = 64, 72
sM0X, sM0W = 80, 81
sSH, sCB, sRQ, sPB = 82, 83, 84, 85
sA, sB_, sC_, sD_ = 86, 87, 88, 89
sFAR, sSPIN = 72, 71
SPIN = ['s_add_u32 s71, s71, 1', 's_cmp_gt_u32 s71, 0x100000', 's_cbranch_scc1 L_end']
sST = 90
vL = 1
vXD, vWD, vWRq, vWRk, vZ = 2, 6, 7, 8, 9
vXR, vXR2 = 10, 14
vDUM, vT = 18, 19
vPH, vID, vC, vN = 20, 28, 36, 38
vK, vV, vP, vE, vKV, vT2 = 40, 72, 104, 136, 200, 232
vTAG, vL16 = 248, 249
vWO0, vOA = 250, 253
vSEL = 255
aX, aWR = 0, 224

def v(r, n=1): return 'v%d' % r if n == 1 else 'v[%d:%d]' % (r, r + n - 1)
def a(r, n=1): return 'a%d' % r if n == 1 else 'a[%d:%d]' % (r, r + n - 1)
def s(r, n=1): return 's%d' % r if n == 1 else 's[%d:%d]' % (r, r + n - 1)
MF = 'v_mfma_f32_32x32x16_bf16'
def mfma(d, x, y, c): return '%s %s, %s, %s, %s' % (MF, v(d, 16), x, y, v(c, 16) if c is not None else '0')

class G:
    def __init__(self, cfg):
        self.cfg = cfg; self.nst = 0
    def stamp(self, k):
        if not self.cfg.stamps: return []
        return ['@waitlgkm_all', 's_memtime s[%d:%d]' % (sT0, sT1), '@waitlgkm_all', 's_mov_b32 s%d, s%d' % (sST + k, sT0)]

    def prologue(self):
        c = self.cfg; L = []; A = L.append
        A('s_load_dwordx16 s[4:19], s[0:1], 0')
        A('s_load_dwordx4 s[20:23], s[0:1], 64')
        if c.stamps: A('s_memrealtime s[100:101]')
        A('s_cmp_ge_u32 s2, 256'); A('s_cbranch_scc1 L_end')
        A('s_lshr_b32 %s, s2, 3' % s(sSLOT))
        A('s_cmp_lt_u32 %s, %d' % (s(sSLOT), c.pref_slots)); A('s_cselect_b32 %s, CODE_SPAN, 0' % s(sT2))
        A('s_getpc_b64 s[%d:%d]' % (sT0, sT1))
        A('v_lshlrev_b32 %s, 7, v0' % v(vT))
        A('v_min_u32 %s, %s, %s' % (v(vT), s(sT2), v(vT)))
        L.append(('global_load_dword %s, %s, s[%d:%d]' % (v(vDUM), v(vT), sT0, sT1), 'pref'))
        A('s_getreg_b32 %s, hwreg(HW_REG_XCC_ID, 0, 4)' % s(sXCC))
        A('v_lshrrev_b32 %s, 6, v0' % v(vT)); A('v_and_b32 %s, 63, v0' % v(vL))
        A('v_readfirstlane_b32 %s, %s' % (s(sW), v(vT)))
        A('s_bfe_u32 %s, s2, 0x10002' % s(sBR))
        A('s_and_b32 %s, s2, 3' % s(sRB)); A('s_lshl_b32 %s, %s, 1' % (s(sRB), s(sRB)))
        A('s_lshr_b32 %s, %s, 4' % (s(sT2), s(sSLOT))); A('s_add_u32 %s, %s, %s' % (s(sRB), s(sRB), s(sT2)))
        A('s_and_b32 %s, %s, 15' % (s(sH), s(sSLOT)))
        A('s_mul_i32 %s, %s, 3' % (s(sT2), s(sT2))); A('s_add_u32 %s, %s, %s' % (s(sA), s(sH), s(sT2)))
        A('s_mul_i32 %s, %s, 37' % (s(sB_), s(sA))); A('s_lshr_b32 %s, %s, 8' % (s(sB_), s(sB_)))
        A('s_mul_i32 %s, %s, 7' % (s(sB_), s(sB_))); A('s_sub_u32 %s, %s, %s' % (s(sA), s(sA), s(sB_)))
        if not c.rot: A('s_mov_b32 %s, 0' % s(sA))
        A('s_lshl_b32 %s, %s, 2' % (s(sB_), s(sRB))); A('s_add_u32 %s, %s, %s' % (s(sB_), s(sB_), s(sW)))
        A('s_mul_i32 %s, %s, %d' % (s(sB_), s(sB_), 64 * 896))
        A('s_cmp_eq_u32 %s, 15' % s(sH)); A('s_cselect_b32 %s, 8, 0' % s(sSH))
        A('s_mul_i32 %s, %s, 56' % (s(sC_), s(sH))); A('s_sub_u32 %s, %s, %s' % (s(sC_), s(sC_), s(sSH)))
        A('s_mul_i32 %s, %s, %d' % (s(sD_), s(sW), 16 * 2688)); A('s_add_u32 %s, %s, %s' % (s(sC_), s(sC_), s(sD_)))
        for i in range(7):
            A('s_lshl_b32 %s, %s, 7' % (s(sD_), s(sA))); A('s_add_u32 %s, %s, %s' % (s(sXO + i), s(sB_), s(sD_)))
            A('s_mul_i32 %s, %s, %d' % (s(sD_), s(sA), 64 * 2688)); A('s_add_u32 %s, %s, %s' % (s(sWO_ + i), s(sC_), s(sD_)))
            if i < 6:
                A('s_add_u32 %s, %s, 1' % (s(sA), s(sA))); A('s_cmp_eq_u32 %s, 7' % s(sA)); A('s_cselect_b32 %s, 0, %s' % (s(sA), s(sA)))
        A('s_mov_b32 %s, 0' % s(sSPIN))
        A('s_lshl_b32 %s, %s, 13' % (s(sM0X), s(sW))); A('s_lshl_b32 %s, %s, 10' % (s(sM0W), s(sW)))
        t0, t1, t2 = vT2, vT2 + 1, vT2 + 2
        A('v_lshrrev_b32 %s, 3, %s' % (v(t0), v(vL))); A('v_mul_u32_u24 %s, 896, %s' % (v(t0), v(t0)))
        A('v_lshrrev_b32 %s, 4, %s' % (v(t1), v(vL))); A('v_and_b32 %s, 7, %s' % (v(t2), v(vL)))
        A('v_xor_b32 %s, %s, %s' % (v(t2), v(t1), v(t2)))
        A('v_lshl_add_u32 %s, %s, 4, %s' % (v(vXD), v(t2), v(t0)))
        A('v_xor_b32 %s, 4, %s' % (v(t2), v(t2))); A('v_lshl_add_u32 %s, %s, 4, %s' % (v(vXD + 1), v(t2), v(t0)))
        A('v_add_u32 %s, %d, %s' % (v(vXD + 2), 2 * 6144, v(vXD))); A('v_add_u32 %s, %d, %s' % (v(vXD + 3), 3 * 6144, v(vXD + 1)))
        A('v_add_u32 %s, %d, %s' % (v(vXD + 1), 6144, v(vXD + 1)))
        A('v_lshrrev_b32 %s, 2, %s' % (v(t0), v(vL))); A('v_mul_u32_u24 %s, 2688, %s' % (v(t0), v(t0)))
        A('v_and_b32 %s, 3, %s' % (v(t2), v(vL))); A('v_lshl_add_u32 %s, %s, 4, %s' % (v(vWD), v(t2), v(t0)))
        A('@waitlgkm_all')
        A('s_cmp_eq_u32 %s, 0' % s(sBR))
        for (srd, pa, pb, n) in ((SX, sAX, sBX, 1835008), (SW, sAW, sBW, 1204224), (SWO, sAWO, sBWO, 401408)):
            A('s_cselect_b32 %s, %s, %s' % (s(srd), s(pa), s(pb))); A('s_cselect_b32 %s, %s, %s' % (s(srd + 1), s(pa + 1), s(pb + 1)))
            A('s_mov_b32 %s, %d' % (s(srd + 2), n)); A('s_mov_b32 %s, 0x20000' % s(srd + 3))
        A('s_cselect_b32 %s, 0, 25088' % s(SPHI + 2))
        L += self.dma_x(0) + self.dma_w(0, 1, L_WK, 'wk0')
        A('s_mov_b32 %s, %s' % (s(SPHI), s(sPHI))); A('s_mov_b32 %s, %s' % (s(SPHI + 1), s(sPHI + 1))); A('s_mov_b32 %s, 0x20000' % s(SPHI + 3))
        for (srd, p, n) in ((SWS, sWSP, WS_BYTES), (SOUT, sOUT, 3670016)):
            A('s_mov_b32 %s, %s' % (s(srd), s(p))); A('s_mov_b32 %s, %s' % (s(srd + 1), s(p + 1)))
            A('s_mov_b32 %s, %d' % (s(srd + 2), n)); A('s_mov_b32 %s, 0x20000' % s(srd + 3))
        L += self.dma_x(1) + self.dma_w(1, 1, L_WK, 'wk1') + self.dma_x(2)
        for i in range(2, 7): L += self.dma_w(i, 1, L_WK, 'wk%d' % i)
        A('s_or_b32 %s, s2, %s' % (s(sT2), s(sW))); A('s_cmp_lg_u32 %s, 0' % s(sT2)); A('s_cbranch_scc1 L_nononce')
        A('s_load_dwordx2 s[%d:%d], s[%d:%d], 0' % (sT0, sT1, sWSP, sWSP + 1))
        A('v_mov_b32 %s, 0' % v(vZ))
        A('@waitlgkm_all')
        A('s_add_u32 %s, %s, 0x9e3679b8' % (s(sT0), s(sT0))); A('s_add_u32 %s, %s, 0x85eaca6a' % (s(sT1), s(sT1)))
        for r in (sT0, sT1):
            A('s_or_b32 %s, %s, 0x00010001' % (s(r), s(r))); A('s_and_b32 %s, %s, 0xbfffbfff' % (s(r), s(r)))
        A('v_mov_b32 %s, %s' % (v(vN), s(sT0))); A('v_mov_b32 %s, %s' % (v(vN + 1), s(sT1)))
        A('s_mov_b64 exec, 1')
        L.append(('global_store_dwordx2 %s, %s, s[%d:%d] sc1 ; untracked' % (v(vZ), v(vN, 2), sDBG, sDBG + 1), 'untracked'))
        L.append(('global_store_dwordx2 %s, %s, s[%d:%d] sc1 ; untracked' % (v(vZ), v(vN, 2), sWSP, sWSP + 1), 'untracked'))
        A('s_mov_b64 exec, -1')
        A('L_nononce:')
        A('v_mov_b32 %s, 0' % v(vZ))
        m, hi, t3, t4 = vT2 + 3, vT2 + 4, vT2 + 5, vT2 + 6
        A('v_and_b32 %s, 31, %s' % (v(m), v(vL))); A('v_lshrrev_b32 %s, 5, %s' % (v(hi), v(vL)))
        A('v_lshrrev_b32 %s, 3, %s' % (v(t0), v(m))); A('v_and_b32 %s, 3, %s' % (v(t1), v(m)))
        A('v_lshl_add_u32 %s, %s, 2, %s' % (v(t0), v(t0), v(t1)))
        A('v_lshrrev_b32 %s, 4, %s' % (v(t1), v(m))); A('v_sub_u32 %s, %s, %s' % (v(t0), v(t0), v(t1)))
        A('v_bfe_u32 %s, %s, 2, 1' % (v(t1), v(m))); A('v_mad_u32_u24 %s, %s, 14, %s' % (v(t0), v(t1), v(t0)))
        A('v_and_b32 %s, 11, %s' % (v(t1), v(m))); A('v_cmp_eq_u32 vcc, 11, %s' % v(t1))
        A('v_mov_b32 %s, 0x%x' % (v(t2), OOB))
        A('v_mul_u32_u24 %s, 224, %s' % (v(t3), v(hi))); A('v_lshl_add_u32 %s, %s, 1, %s' % (v(t3), v(t0), v(t3)))
        A('v_cndmask_b32_e64 %s, %s, %s, vcc' % (v(t3), v(t3), v(t2)))
        A('v_cndmask_b32_e64 %s, %s, 63, vcc' % (v(t0), v(t0)))
        A('v_cmp_lt_u32_e64 s[%d:%d], 31, %s' % (sHI, sHI + 1, v(vL)))
        A('v_cmp_eq_u32_e64 s[%d:%d], 28, %s' % (sE28, sE28 + 1, v(m)))
        A('v_cndmask_b32_e64 %s, %s, %s, s[%d:%d]' % (v(t4), v(t3), v(t2), sHI, sHI + 1))
        A('s_mul_i32 %s, %s, 1568' % (s(sT2), s(sH)))
        for t in range(2):
            for j in range(8):
                d = 16 * t + 8 * (j >> 2) + (j & 3)
                L.append(('buffer_load_ushort %s, %s, s[%d:%d], %s offen offset:%d' % (v(vP + 8 * t + j),
                          v(t4 if (t == 1 and j >= 4) else t3), SPHI, SPHI + 3, s(sT2), d * 56), 'phi'))
        def selector(dst, tgt):
            R = []
            x, y, z = vT2 + 8, vT2 + 9, vT2 + 10
            R.append('v_lshrrev_b32 %s, 3, %s' % (v(x), v(tgt))); R.append('v_bfe_u32 %s, %s, 1, 1' % (v(y), v(tgt)))
            R.append('v_lshl_add_u32 %s, %s, 1, %s' % (v(x), v(x), v(y)))
            R.append('v_and_b32 %s, 1, %s' % (v(y), v(tgt))); R.append('v_lshlrev_b32 %s, 4, %s' % (v(y), v(y)))
            R.append('v_mov_b32 %s, 0x3f80' % v(z)); R.append('v_lshlrev_b32 %s, %s, %s' % (v(z), v(y), v(z)))
            R.append('v_bfe_u32 %s, %s, 2, 1' % (v(y), v(tgt))); R.append('v_cmp_eq_u32 vcc, %s, %s' % (v(y), v(hi)))
            R.append('v_cndmask_b32_e64 %s, 15, %s, vcc' % (v(x), v(x)))
            for i in range(8):
                R.append('v_cmp_eq_u32 vcc, %d, %s' % (i, v(x))); R.append('v_cndmask_b32_e64 %s, 0, %s, vcc' % (v(dst + i), v(z)))
            return R
        L += selector(vID, m)
        L += selector(vE, t0)
        A('v_bfe_u32 %s, %s, 1, 3' % (v(t1), v(m))); A('v_xor_b32 %s, %s, %s' % (v(t1), v(t1), v(hi)))
        A('v_lshl_add_u32 %s, %s, 7, %s' % (v(t2), v(m), s(sM0X)))
        for ks in range(4):
            A('v_xor_b32 %s, %d, %s' % (v(t3), 2 * ks, v(t1))); A('v_lshl_add_u32 %s, %s, 4, %s' % (v(vXR + ks), v(t3), v(t2)))
            A('v_add_u32 %s, 0x10000, %s' % (v(vXR2 + ks), v(vXR + ks)))
        A('v_bfe_u32 %s, %s, 2, 2' % (v(t1), v(vL))); A('v_lshlrev_b32 %s, 6, %s' % (v(t2), v(t1)))
        A('v_lshl_add_u32 %s, %s, 9, %s' % (v(t2), v(hi), v(t2)))
        A('v_bfe_u32 %s, %s, 4, 1' % (v(t3), v(vL))); A('v_and_b32 %s, 3, %s' % (v(t4), v(vL)))
        A('v_lshlrev_b32 %s, 3, %s' % (v(t4), v(t4))); A('v_lshl_add_u32 %s, %s, 5, %s' % (v(t4), v(t3), v(t4)))
        A('v_add3_u32 %s, %s, %s, %s' % (v(t2), v(t2), v(t4), s(sSH)))
        A('v_add_u32 %s, %d, %s' % (v(vWRq), L_WQ, v(t2))); A('v_add_u32 %s, %d, %s' % (v(vWRk), L_WK, v(t2)))
        A('v_xor_b32 %s, %s, %s' % (v(t3), s(sW), v(t1))); A('v_lshl_add_u32 %s, %s, 6, %s' % (v(t4), v(t3), v(t4)))
        A('v_lshl_add_u32 %s, %s, 8, %s' % (v(t4), v(t1), v(t4))); A('v_lshl_add_u32 %s, %s, 10, %s' % (v(vWO0), v(hi), v(t4)))
        A('v_add_u32 %s, 0x10000, %s' % (v(vWO0 + 1), v(vWO0))); A('v_add_u32 %s, 0x20000, %s' % (v(vWO0 + 2), v(vWO0)))
        A('v_lshlrev_b32 %s, 4, %s' % (v(vL16), v(vL)))
        A('v_mov_b32 %s, 0x3fb8aa3b' % v(vC)); A('v_mov_b32 %s, 0x3fb8aa3b' % v(vC + 1))
        A('s_lshl_b32 %s, %s, 3' % (s(sGID), s(sBR))); A('s_add_u32 %s, %s, %s' % (s(sGID), s(sGID), s(sRB)))
        A('s_and_b32 %s, %s, 3' % (s(sCB), s(sH))); A('s_lshr_b32 %s, %s, 2' % (s(sRQ), s(sH)))
        A('v_and_b32 %s, 1, %s' % (v(t1), v(vL))); A('v_lshlrev_b32 %s, 3, %s' % (v(t2), v(t1))); A('v_add_u32 %s, %s, %s' % (v(t2), v(t2), v(hi)))
        A('v_mul_u32_u24 %s, %d, %s' % (v(t2), 4 * 1792, v(t2))); A('v_and_b32 %s, 30, %s' % (v(t3), v(vL)))
        A('v_lshl_add_u32 %s, %s, 1, %s' % (v(t2), v(t3), v(t2)))
        A('s_lshl_b32 %s, %s, 2' % (s(sT2), s(sCB))); A('s_add_u32 %s, %s, %s' % (s(sT2), s(sT2), s(sW)))
        A('s_cmp_ge_u32 %s, 14' % s(sT2)); A('s_cselect_b32 %s, 0x%x, 0' % (s(sT2), OOB))
        A('v_add_u32 %s, %s, %s' % (v(vOA), s(sT2), v(t2))); A('v_add_u32 %s, %d, %s' % (v(vOA + 1), 2 * 1792, v(vOA)))
        A('v_cmp_eq_u32 vcc, 1, %s' % v(t1)); A('v_mov_b32 %s, 0x05040100' % v(t2)); A('v_mov_b32 %s, 0x03020706' % v(t3))
        A('v_cndmask_b32_e64 %s, %s, %s, vcc' % (v(vSEL), v(t2), v(t3)))
        return L

    def dma_x(self, i):
        L = []
        for tile in range(2):
            L.append('s_add_u32 m0, %s, %d' % (s(sM0X), (i % 3) * 32768 + tile * 4096))
            if tile: L.append('s_add_u32 %s, %s, 28672' % (s(sXO + i), s(sXO + i)))
            for j in range(4):
                L.append(('buffer_load_dwordx4 %s, s[%d:%d], %s offen offset:%d lds' % (v(vXD + j), SX, SX + 3, s(sXO + i), 1024 * j), 'x%d' % i))
        return L
    def dma_w(self, i, part, base, tag):
        return ['s_add_u32 m0, %s, %d' % (s(sM0W), base + i * 4096),
                's_add_u32 %s, %s, %d' % (s(sT2), s(sWO_ + i), part * 896),
                ('buffer_load_dwordx4 %s, s[%d:%d], %s offen lds' % (v(vWD), SW, SW + 3, s(sT2)), tag)]
    def xfrag(self, i, ks, tile): return aX + ((i * 4 + ks) * 2 + tile) * 4
    def wread(self, slot, basev, off):
        r = aWR + 4 * (slot % 8)
        return ['ds_read_b64_tr_b16 %s, %s offset:%d' % (a(r + 2 * u, 2), v(basev), off + 256 * u) for u in range(2)]

    def stream(self):
        L = []; A = L.append
        for i in range(7):
            A('@waitvm x%d wk%d' % (i, i)); A('s_barrier')
            if i == 0: L += self.stamp(1)
            sl = i % 3
            for ks in range(4):
                for tile in range(2):
                    L.append(('ds_read_b128 %s, %s offset:%d' % (a(self.xfrag(i, ks, tile), 4), v((vXR2 if sl == 2 else vXR) + ks), (sl & 1) * 32768 + tile * 4096), 'xr'))
            for ks in range(4): L += self.wread(4 * i + ks, vWRk, i * 4096 + ks * 1024)
            A('@waitlgkm xr')
            D = []
            if i + 3 < 7: D = self.dma_x(i + 3)
            if i == 3:
                D += ['v_lshl_or_b32 %s, %s, 16, %s' % (v(vPH + u), v(vP + 2 * u + 1), v(vP + 2 * u)) for u in range(8)]
            if i == 4:
                D.append(('global_load_dwordx2 %s, %s, s[%d:%d] sc1' % (v(vN, 2), v(vZ), sDBG, sDBG + 1), 'nonce'))
                for k in range(7): D += self.dma_w(k, 2, L_WV, 'wv%d' % k)
            if i == 5:
                for k in range(7): D += self.dma_w(k, 0, L_WQ, 'wq')
            M = []
            for ks in range(4):
                for tile in range(2):
                    M.append(mfma(vK + 16 * tile, a(aWR + 4 * ((4 * i + ks) % 8), 4), a(self.xfrag(i, ks, tile), 4), None if (i == 0 and ks == 0) else vK + 16 * tile))
            L += interleave(D, M) if D else M
        return L

    def gemm(self, acc, basev, off, transposed, first_slot):
        R = []
        for k in range(28):
            w = a(aWR + 4 * ((first_slot + k) % 8), 4)
            ms = []
            for tile in range(2):
                x = a(self.xfrag(k // 4, k % 4, tile), 4)
                ms.append(mfma(acc + 16 * tile, w if transposed else x, x if transposed else w, None if k == 0 else acc + 16 * tile))
            R.append((self.wread(first_slot + k, basev, off + k * 1024), ms))
        return R
    def gemm_stream(self, groups, ahead=3, hooks=None):
        L = []
        hooks = hooks or {}
        n = len(groups)
        for k in range(n + ahead):
            if k in hooks: L += hooks[k]
            if k < n: L += groups[k][0]
            if k >= ahead: L += groups[k - ahead][1]
        return L

    def pack(self, r, n=8): return ['v_cvt_pk_bf16_f32 %s, %s, %s' % (v(r + u), v(r + 2 * u), v(r + 2 * u + 1)) for u in range(n)]
    def zero_hi_pads(self, r): return ['v_cndmask_b32_e64 %s, %s, 0, s[%d:%d]' % (v(r + u), v(r + u), sHI, sHI + 1) for u in (6, 7)]

    def softmax(self, p, ep, en, tmp):
        L = []; A = L.append
        Z, T, S1, S2 = tmp, tmp + 2, tmp + 4, tmp + 6
        for r in (ep + 7, ep + 15, en + 7, en + 15): A('v_mov_b32 %s, 0' % v(r))
        for (d, sg) in ((Z, ''), (T, '-')):
            A('v_max3_f32 %s, %s%s, %s%s, %s%s' % (v(d), sg, v(p), sg, v(p + 1), sg, v(p + 2)))
        for (x, y) in ((3, 4), (5, 6), (8, 9), (10, 11), (12, 13)):
            for (d, sg) in ((Z, ''), (T, '-')):
                A('v_max3_f32 %s, %s, %s%s, %s%s' % (v(d), v(d), sg, v(p + x), sg, v(p + y)))
        for (d, sg) in ((Z, ''), (T, '-')): A('v_max_f32_e64 %s, %s, %s%s' % (v(d), v(d), sg, v(p + 14)))
        A('v_permlane32_swap_b32 %s, %s' % (v(Z), v(T))); A('v_max_f32 %s, %s, %s' % (v(Z), v(Z), v(T)))
        A('v_mul_f32 %s, %s, %s' % (v(Z), v(vC), v(Z))); A('v_mov_b32 %s, %s' % (v(T), v(Z)))
        A('v_permlane32_swap_b32 %s, %s' % (v(Z), v(T)))
        for (e, z, ng) in ((ep, Z, 0), (en, T, 1)):
            for u in (0, 2, 4, 6, 8, 10, 12, 14):
                if u in (6, 14):
                    A('v_fma_f32 %s, %s%s, %s, -%s' % (v(e + u), '-' if ng else '', v(p + u), v(vC), v(z)))
                    A('v_exp_f32 %s, %s' % (v(e + u), v(e + u)))
                else:
                    A('v_pk_fma_f32 %s, %s, %s, %s op_sel_hi:[1,1,0] neg_lo:[%d,0,1] neg_hi:[%d,0,1]' % (v(e + u, 2), v(p + u, 2), v(vC, 2), v(z, 2), ng, ng))
                    A('v_exp_f32 %s, %s' % (v(e + u), v(e + u))); A('v_exp_f32 %s, %s' % (v(e + u + 1), v(e + u + 1)))
        for (e, S) in ((ep, S1), (en, S2)): A('v_pk_add_f32 %s, %s, %s' % (v(S, 2), v(e, 2), v(e + 2, 2)))
        for u in (4, 6, 8, 10, 12, 14):
            for (e, S) in ((ep, S1), (en, S2)): A('v_pk_add_f32 %s, %s, %s' % (v(S, 2), v(S, 2), v(e + u, 2)))
        A('v_add_f32 %s, %s, %s' % (v(Z), v(S1), v(S1 + 1))); A('v_add_f32 %s, %s, %s' % (v(T), v(S2), v(S2 + 1)))
        A('v_permlane32_swap_b32 %s, %s' % (v(Z), v(T))); A('v_add_f32 %s, %s, %s' % (v(Z), v(Z), v(T)))
        A('v_rcp_f32 %s, %s' % (v(Z), v(Z))); A('v_mov_b32 %s, %s' % (v(T), v(Z)))
        A('v_permlane32_swap_b32 %s, %s' % (v(Z), v(T)))
        for (e, z) in ((ep, Z), (en, T)):
            for u in range(8):
                A('v_pk_mul_f32 %s, %s, %s op_sel_hi:[1,0]' % (v(e + 2 * u, 2), v(e + 2 * u, 2), v(z, 2)))
                A('v_cvt_pk_bf16_f32 %s, %s, %s' % (v(e + u), v(e + 2 * u), v(e + 2 * u + 1)))
        return L

    def elu1(self, p, e, pads):
        L = []; A = L.append
        for u in range(0, 16, 2):
            single = pads and u in (6, 14)
            if single:
                A('v_mov_b32 %s, 0' % v(e + u + 1))
                A('v_mul_f32 %s, %s, %s' % (v(e + u), v(vC), v(p + u)))
            else: A('v_pk_mul_f32 %s, %s, %s' % (v(e + u, 2), v(p + u, 2), v(vC, 2)))
            for k in range(1 if single else 2):
                A('v_exp_f32_e64 %s, %s clamp' % (v(e + u + k), v(e + u + k)))
                A('v_max_f32 %s, 0x358637bd, %s' % (v(p + u + k), v(p + u + k)))
            if single: A('v_add_f32 %s, %s, %s' % (v(e + u), v(e + u), v(p + u)))
            else: A('v_pk_add_f32 %s, %s, %s' % (v(e + u, 2), v(e + u, 2), v(p + u, 2)))
            A('v_cvt_pk_bf16_f32 %s, %s, %s' % (v(e + u // 2), v(e + u), v(e + u + 1)))
        return L

    def get_nonce(self, br):
        L = []; A = L.append
        A('@waitvm nonce')
        A('L_nonce_chk%s:' % br)
        A('v_readfirstlane_b32 %s, %s' % (s(sN0), v(vN))); A('v_readfirstlane_b32 %s, %s' % (s(sN1), v(vN + 1)))
        A('s_min_u32 %s, %s, %s' % (s(sT2), s(sN0), s(sN1))); A('s_cmp_eq_u32 %s, 0' % s(sT2)); A('s_cbranch_scc1 L_nonce_retry%s' % br)
        t0, t1 = vT2 + 14, vT2 + 15
        A('v_and_b32 %s, 2, %s' % (v(t0), v(vL))); A('v_cmp_eq_u32 vcc, 0, %s' % v(t0))
        A('v_cndmask_b32_e64 %s, %s, %s, vcc' % (v(t0), v(vN + 1), v(vN)))
        A('v_and_b32 %s, 1, %s' % (v(t1), v(vL))); A('v_cmp_eq_u32 vcc, 0, %s' % v(t1))
        A('v_lshlrev_b32 %s, 16, %s' % (v(t1), v(t0))); A('v_and_b32 %s, 0xffff0000, %s' % (v(t0), v(t0)))
        A('v_cndmask_b32_e64 %s, %s, %s, vcc' % (v(vTAG), v(t0), v(t1)))
        A('s_and_b32 %s, %s, 0xfffffff0' % (s(sT2), s(sN1))); A('s_or_b32 %s, %s, %s' % (s(sXCC), s(sXCC), s(sT2)))
        A('v_mov_b32 %s, %s' % (v(vN + 1), s(sXCC)))
        A('s_lshl_b32 %s, %s, 4' % (s(sT2), s(sGID))); A('s_add_u32 %s, %s, %s' % (s(sPB), s(sT2), s(sH)))
        A('s_lshl_b32 %s, %s, 3' % (s(sT2), s(sPB))); A('s_add_u32 %s, %s, %d' % (s(sT2), s(sT2), WS_XCC))
        A('v_cmp_eq_u32 vcc, 0, v0'); A('v_mov_b32 %s, 0x%x' % (v(t0), OOB)); A('v_cndmask_b32_e64 %s, %s, 0, vcc' % (v(vT), v(t0)))
        L.append(('buffer_store_dwordx2 %s, %s, s[%d:%d], %s offen sc1' % (v(vN, 2), v(vT), SWS, SWS + 3, s(sT2)), 'xccst'))
        A('s_lshl_b32 %s, %s, 14' % (s(sT2), s(sPB))); A('s_lshl_b32 %s, %s, 12' % (s(sA), s(sW))); A('s_add_u32 %s, %s, %s' % (s(sA), s(sA), s(sT2)))
        A('s_add_u32 %s, %s, %d' % (s(sA), s(sA), WS_O))
        A('v_and_b32 %s, 31, %s' % (v(t0), v(vL))); A('v_lshlrev_b32 %s, 7, %s' % (v(t0), v(t0)))
        L.append(('buffer_load_dword %s, %s, s[%d:%d], %s offen sc1' % (v(vDUM), v(t0), SWS, SWS + 3, s(sA)), 'pre'))
        A('s_lshl_b32 %s, %s, 7' % (s(sB_), s(sGID))); A('s_add_u32 %s, %s, %d' % (s(sB_), s(sB_), WS_FLAG))
        L.append(('buffer_load_dword %s, %s, s[%d:%d], %s offen sc1' % (v(vDUM), v(vZ), SWS, SWS + 3, s(sB_)), 'pre'))
        return L
    def nonce_retry(self, br):
        return ['L_nonce_retry%s:' % br, '@assume_idle', 's_sleep 1'] + SPIN + [
                'global_load_dwordx2 %s, %s, s[%d:%d] sc1' % (v(vN, 2), v(vZ), sDBG, sDBG + 1), '@waitvm_all', 's_branch L_nonce_chk%s' % br]

    def middle(self, br):
        c = self.cfg; B = br == 'B'; NT = 2 if B else 1
        L = []; A = L.append
        L += self.stamp(2)
        if not B:
            for i in range(8): A('v_mov_b32 %s, %s' % (v(vPH + i), v(vE + i)))
        head = []
        for tile in range(2): head += self.pack(vK + 16 * tile) + self.zero_hi_pads(vK + 16 * tile)
        for t in range(2):
            for tile in range(2):
                k4 = v(vK + 16 * tile + 4 * t, 4); w4 = v(vPH + 4 * t, 4)
                head.append(mfma(vP + 16 * tile, w4 if B else k4, k4 if B else w4, None if t == 0 else vP + 16 * tile))
        L += head
        L += self.get_nonce(br)
        if B: body = interleave(self.softmax(vP, vE, vE + 16, vT2), self.softmax(vP + 16, vE + 32, vE + 48, vT2 + 8))
        else: body = interleave(self.elu1(vP, vE, False), self.elu1(vP + 16, vE + 32, False))
        b1 = c.wv_b1
        hooks = {0: ['@waitvm ' + ' '.join('wv%d' % k for k in range(b1)), 's_barrier'],
                 4 * b1: ['@waitvm ' + ' '.join('wv%d' % k for k in range(b1, 7)), 's_barrier']}
        g = self.gemm_stream(self.gemm(vV, vWRk, L_WV - L_WK, False, 0), 3, hooks)
        L += interleave(body, g) if B else (body + g)
        L += self.stamp(3)
        tn = lambda tile, sg: (vP if sg == 0 else vK) + 16 * tile
        if B:
            for t in range(2):
                for tile in range(2):
                    for sg in range(2):
                        A(mfma(tn(tile, sg), v(vE + 32 * tile + 16 * sg + 4 * t, 4), v(vID + 4 * t, 4), None if t == 0 else tn(tile, sg)))
        for tile in range(2): L += self.pack(vV + 16 * tile)
        A('v_mov_b32 %s, 0x3f803f80' % v(vT2))
        for tile in range(2):
            for u in range(8): A('v_cndmask_b32_e64 %s, %s, %s, s[%d:%d]' % (v(vV + 16 * tile + u), v(vV + 16 * tile + u), v(vT2), sE28, sE28 + 1))
        for tile in range(2):
            for sg in range(NT):
                src = tn(tile, sg) if B else vE + 32 * tile
                if B: L += self.pack(src)
                for t in range(2):
                    A(mfma(vKV + 16 * sg, v(src + 4 * t, 4), v(vV + 16 * tile + 4 * t, 4), None if (tile == 0 and t == 0) else vKV + 16 * sg))
        t0 = vT2 + 1
        A('v_add_u32 %s, %s, %s' % (v(t0), s(sM0X), v(vL16)))
        for q in range(4 * NT): A('ds_write_b128 %s, %s offset:%d' % (v(t0), v(vKV + 4 * q, 4), 1024 * q))
        A('s_and_b32 %s, %s, %d' % (s(sC_), s(sW), 3 if B else 1))
        A('s_lshl_b32 %s, %s, 11' % (s(sT2), s(sC_))); A('v_add_u32 %s, %s, %s' % (v(t0), s(sT2), v(vL16)))
        A('@waitlgkm_all'); A('s_barrier')
        for w in range(4):
            for hf in range(2): A('ds_read_b128 %s, %s offset:%d' % (v(vV + 8 * w + 4 * hf, 4), v(t0), 8192 * w + 1024 * hf))
        A('s_lshl_b32 %s, %s, 12' % (s(sT2), s(sPB))); A('s_lshl_b32 %s, %s, 10' % (s(sC_), s(sC_)))
        A('s_add_u32 %s, %s, %s' % (s(sT2), s(sT2), s(sC_))); A('s_add_u32 %s, %s, %d' % (s(sD_), s(sT2), WS_PART))
        if not B:
            A('s_cmp_ge_u32 %s, 2' % s(sW)); A('s_cselect_b32 %s, 0x%x, 0' % (s(sT2), OOB)); A('v_add_u32 %s, %s, %s' % (v(vT2 + 2), s(sT2), v(vL16)))
        for (x, y) in ((0, 8), (16, 24), (0, 16)):
            for u in range(0, 8, 2): A('v_pk_add_f32 %s, %s, %s' % (v(vV + x + u, 2), v(vV + x + u, 2), v(vV + y + u, 2)))
        A('v_mov_b32 %s, 0xffff' % v(vT2))
        L += self.pack(vV, 4)
        A('v_bfi_b32 %s, %s, %s, %s' % (v(vV + 3), v(vT2), v(vV + 3), v(vTAG)))
        L.append(('buffer_store_dwordx4 %s, %s, s[%d:%d], %s offen sc1' % (v(vV, 4), v(vL16 if B else vT2 + 2), SWS, SWS + 3, s(sD_)), 'pst'))
        L += self.stamp(4)
        A('@waitvm wq'); A('s_barrier')
        t0, t1, t2 = vT2, vT2 + 1, vT2 + 2
        A('v_lshrrev_b32 %s, 4, %s' % (v(t0), v(vL))); A('v_bfe_u32 %s, %s, 2, 2' % (v(t1), v(vL))); A('v_xor_b32 %s, %s, %s' % (v(t1), v(t1), v(t0)))
        A('v_mul_u32_u24 %s, 896, %s' % (v(t0), v(t0))); A('v_lshl_add_u32 %s, %s, 6, %s' % (v(t0), v(t1), v(t0)))
        A('v_and_b32 %s, 3, %s' % (v(t2), v(vL))); A('v_lshl_add_u32 %s, %s, 4, %s' % (v(t0), v(t2), v(t0)))
        A('s_cmp_eq_u32 %s, 3' % s(sCB)); A('s_cselect_b32 %s, 1, 3' % s(sT2))
        A('v_cmp_lt_u32 vcc, %s, %s' % (s(sT2), v(t1))); A('v_mov_b32 %s, 0x%x' % (v(t2), OOB))
        A('v_cndmask_b32_e64 %s, %s, %s, vcc' % (v(vWD), v(t0), v(t2)))
        A('s_mul_i32 %s, %s, 3584' % (s(sD_), s(sW))); A('s_lshl_b32 %s, %s, 8' % (s(sT2), s(sCB))); A('s_add_u32 %s, %s, %s' % (s(sD_), s(sD_), s(sT2)))
        D = []
        for m in range(29):
            D.append(['s_add_u32 m0, %s, %d' % (s(sM0W), 4096 * m + (L_WO_SHIFT if m >= 7 else 0)),
                      's_add_u32 %s, %s, %d' % (s(sT2), s(sD_), 14336 * m),
                      ('buffer_load_dwordx4 %s, s[%d:%d], %s offen lds' % (v(vWD if m < 28 else t2), SWO, SWO + 3, s(sT2) if m < 28 else '0'), 'wo')])
        D[28][0:2] = ['s_add_u32 %s, %s, %d' % (s(sT2), s(sM0W), 4096 * 28 + L_WO_SHIFT), 's_cmp_eq_u32 %s, 1' % s(sW), 's_cselect_b32 m0, 28672, %s' % s(sT2)]
        hooks = {k: D[k] for k in range(29)}
        L += self.gemm_stream(self.gemm(vK, vWRq, 0, True, 4), 3, hooks)
        L += self.stamp(5)
        head = []
        for tile in range(2): head += self.pack(vK + 16 * tile) + self.zero_hi_pads(vK + 16 * tile)
        for t in range(2):
            for tile in range(2):
                head.append(mfma(vP + 16 * tile, v(vPH + 4 * t, 4), v(vK + 16 * tile + 4 * t, 4), None if t == 0 else vP + 16 * tile))
        if B: body = interleave(self.softmax(vP, vE, vE + 16, vT2), self.softmax(vP + 16, vE + 32, vE + 48, vT2 + 8))
        else: body = interleave(self.elu1(vP, vE, True), self.elu1(vP + 16, vE + 32, True))
        pre = ['s_lshl_b32 %s, %s, 7' % (s(sT2), s(sBR)), 's_add_u32 %s, %s, %s' % (s(sT2), s(sT2), s(sH)), 's_lshl_b32 %s, %s, 12' % (s(sT2), s(sT2)),
               's_add_u32 %s, %s, %s' % (s(sD_), s(sT2), s(sC_)), 's_add_u32 %s, %s, %d' % (s(sD_), s(sD_), WS_PART),
               'v_and_b32 %s, 15, %s' % (v(vWD), v(vL)), 'v_lshlrev_b32 %s, 3, %s' % (v(vWD), v(vWD))]
        full = head + body
        pos = int(len(full) * c.part_pos)
        L += pre + full[:pos] + self.part_loads() + full[pos:]
        L += self.stamp(6)
        A('@waitvm part')
        A('L_part_chk%s:' % br)
        G0 = vKV
        for p in range(8): A(mfma(vV, v(vID, 4), v(G0 + 4 * p, 4), None if p == 0 else vV))
        x, y, z = vT2, vT2 + 1, vT2 + 2
        A('v_max3_u32 %s, %s, %s, %s' % (v(x), v(G0 + 3), v(G0 + 7), v(G0 + 11))); A('v_min3_u32 %s, %s, %s, %s' % (v(y), v(G0 + 3), v(G0 + 7), v(G0 + 11)))
        A('v_max3_u32 %s, %s, %s, %s' % (v(x), v(x), v(G0 + 15), v(G0 + 19))); A('v_min3_u32 %s, %s, %s, %s' % (v(y), v(y), v(G0 + 15), v(G0 + 19)))
        A('v_max3_u32 %s, %s, %s, %s' % (v(x), v(x), v(G0 + 23), v(G0 + 27))); A('v_min3_u32 %s, %s, %s, %s' % (v(y), v(y), v(G0 + 23), v(G0 + 27)))
        A('v_max_u32 %s, %s, %s' % (v(x), v(x), v(G0 + 31))); A('v_min_u32 %s, %s, %s' % (v(y), v(y), v(G0 + 31)))
        A('v_xor_b32 %s, %s, %s' % (v(x), v(x), v(vTAG))); A('v_xor_b32 %s, %s, %s' % (v(y), v(y), v(vTAG)))
        A('v_or_b32 %s, %s, %s' % (v(x), v(x), v(y))); A('v_lshrrev_b32 %s, 16, %s' % (v(x), v(x)))
        A('v_xor_b32 %s, %s, %s' % (v(y), s(sN0), v(vN))); A('v_xor_b32 %s, %s, %s' % (v(z), s(sXCC), v(vN + 1)))
        A('v_cmp_ne_u32_e64 s[%d:%d], 0, %s' % (sFAR, sFAR + 1, v(z)))
        A('v_lshrrev_b32 %s, 4, %s' % (v(z), v(z))); A('v_or3_b32 %s, %s, %s, %s' % (v(x), v(x), v(y), v(z)))
        A('v_cmp_ne_u32 vcc, 0, %s' % v(x)); A('s_cbranch_vccnz L_part_retry%s' % br)
        A('v_add_u32 %s, %s, %s' % (v(y), s(sC_), v(vL16))); A('v_add_u32 %s, %d, %s' % (v(y), L_MISC, v(y))); A('v_add_u32 %s, %d, %s' % (v(z), L_MISC, v(vL16)))
        L += self.pack(vV, 4)
        A('v_and_b32 %s, 0xffff, %s' % (v(vV + 3), v(vV + 3)))
        A('ds_write_b128 %s, %s' % (v(y), v(vV, 4)))
        A('@waitlgkm_all'); A('s_barrier')
        for q in range(2 * NT): A('ds_read_b128 %s, %s offset:%d' % (v(vV + 16 + 4 * q, 4), v(z), 1024 * q))
        for q in range(2 * NT):
            for tile in range(2):
                A(mfma(vP + 16 * tile, v(vV + 16 + 4 * q, 4), v(vE + 32 * tile + 16 * (q >> 1) + 4 * (q & 1), 4), None if q == 0 else vP + 16 * tile))
        rd = self.wo_reads()
        L += rd[:12]
        o = []
        for tile in range(2):
            P = vP + 16 * tile; d = vT2 + 4 * tile; S = []
            S.append('v_mov_b32 %s, %s' % (v(d), v(P + 12))); S.append('v_permlane32_swap_b32 %s, %s' % (v(P + 12), v(d)))
            S.append('v_add_f32 %s, 0x358637bd, %s' % (v(d), v(d))); S.append('v_rcp_f32 %s, %s' % (v(d), v(d)))
            for u in range(8):
                S.append('v_pk_mul_f32 %s, %s, %s op_sel_hi:[1,0]' % (v(P + 2 * u, 2), v(P + 2 * u, 2), v(d, 2)))
                S.append('v_cvt_pk_bf16_f32 %s, %s, %s' % (v(P + u), v(P + 2 * u), v(P + 2 * u + 1)))
            S += self.zero_hi_pads(P)
            o.append(S)
        L += interleave(o[0], o[1])
        L += self.stamp(7)
        A('v_mov_b32 %s, %s' % (v(vN), s(sN0))); A('v_mov_b32 %s, %s' % (v(vN + 1), s(sN1)))
        A('s_lshl_b32 %s, %s, 3' % (s(sT2), s(sH))); A('s_add_u32 %s, %s, %s' % (s(sC_), s(sB_), s(sT2)))
        if c.force_global: A('s_branch L_far%s' % br)
        A('s_cmp_lg_u64 s[%d:%d], 0' % (sFAR, sFAR + 1)); A('s_cbranch_scc1 L_far%s' % br)
        L += self.publish('', rd[12:])
        return L
    def publish(self, fl, rd):
        L = []
        for tile in range(2):
            for t in range(2):
                L.append(('buffer_store_dwordx4 %s, %s, s[%d:%d], %s offen offset:%d %s' % (v(vP + 16 * tile + 4 * t, 4), v(vL16), SWS, SWS + 3, s(sA), 2048 * tile + 1024 * t, fl), 'ost'))
        L += rd
        L += ['@wait_all', 's_barrier']
        L.append('buffer_store_dwordx2 %s, %s, s[%d:%d], %s offen %s' % (v(vN, 2), v(vT), SWS, SWS + 3, s(sC_), fl))
        return L
    def part_loads(self):
        L = []
        for p in range(8):
            L.append('s_add_u32 %s, %s, %d' % (s(sT2), s(sD_), 65536 * p))
            L.append(('buffer_load_dwordx4 %s, %s, s[%d:%d], %s offen sc1' % (v(vKV + 4 * p, 4), v(vL16), SWS, SWS + 3, s(sT2)), 'part'))
        L.append('s_add_u32 %s, %s, %d' % (s(sT2), s(sB_), WS_XCC - WS_FLAG))
        L.append(('buffer_load_dwordx2 %s, %s, s[%d:%d], %s offen sc1' % (v(vN, 2), v(vWD), SWS, SWS + 3, s(sT2)), 'part'))
        return L
    def part_retry(self, br):
        return ['L_part_retry%s:' % br, '@assume_idle', 's_nop 15'] + SPIN + self.part_loads() + ['@waitvm_all', 's_branch L_part_chk%s' % br]
    def far(self, br):
        return ['L_far%s:' % br, '@assume_idle', 's_nop 4'] + self.publish('sc1', self.wo_reads()[12:]) + ['s_branch L_join']
    def wo_reads(self):
        L = []
        for h in range(16):
            for t in range(2):
                for u in range(2):
                    off = (28 * h + 16 * t + 8 * u) * 256 + (L_WO_SHIFT if h >= 4 else 0)
                    L.append('ds_read_b64_tr_b16 %s, %s offset:%d' % (a(4 * (2 * h + t) + 2 * u, 2), v(vWO0 + (off >> 16)), off & 0xffff))
        return L

    def tail(self):
        L = []; A = L.append
        A('L_join:')
        L += self.stamp(8)
        A('s_lshl_b32 %s, %s, 4' % (s(sT2), s(sGID))); A('s_add_u32 %s, %s, %s' % (s(sT2), s(sT2), s(sW))); A('s_lshl_b32 %s, %s, 2' % (s(sT2), s(sT2)))
        A('s_add_u32 %s, %s, %s' % (s(sT2), s(sT2), s(sRQ))); A('s_lshl_b32 %s, %s, 12' % (s(sT2), s(sT2))); A('s_add_u32 %s, %s, %d' % (s(sD_), s(sT2), WS_O))
        A('s_lshl_b32 %s, %s, 12' % (s(sC_), s(sW)))
        A('L_poll:')
        L += SPIN
        A('buffer_load_dwordx2 %s, %s, s[%d:%d], %s offen sc1' % (v(vT2, 2), v(vWD), SWS, SWS + 3, s(sB_)))
        A('v_xor_b32 %s, %s, %s' % (v(vT2), s(sN0), v(vT2))); A('v_xor_b32 %s, %s, %s' % (v(vT2 + 1), s(sN1), v(vT2 + 1)))
        A('v_or_b32 %s, %s, %s' % (v(vT2), v(vT2), v(vT2 + 1))); A('v_cmp_ne_u32 vcc, 0, %s' % v(vT2)); A('s_cbranch_vccnz L_poll')
        L += self.stamp(9)
        for st in range(4):
            A('s_add_u32 m0, %s, %d' % (s(sC_), 16384 * st)); A('s_add_u32 %s, %s, %d' % (s(sT2), s(sD_), 65536 * st))
            for j in range(4):
                L.append(('buffer_load_dwordx4 %s, s[%d:%d], %s offen offset:%d sc1 lds' % (v(vL16), SWS, SWS + 3, s(sT2), 1024 * j), 'o%d' % st))
        A('s_lshl_b32 %s, %s, 2' % (s(sT2), s(sRB))); A('s_add_u32 %s, %s, %s' % (s(sT2), s(sT2), s(sRQ))); A('s_mul_i32 %s, %s, %d' % (s(sD_), s(sT2), 64 * 1792))
        A('s_mul_i32 %s, %s, 896' % (s(sT2), s(sBR))); A('s_add_u32 %s, %s, %s' % (s(sD_), s(sD_), s(sT2)))
        A('s_lshl_b32 %s, %s, 2' % (s(sT2), s(sCB))); A('s_add_u32 %s, %s, %s' % (s(sT2), s(sT2), s(sW))); A('s_lshl_b32 %s, %s, 6' % (s(sT2), s(sT2)))
        A('s_add_u32 %s, %s, %s' % (s(sXO), s(sD_), s(sT2)))
        for b in range(1, 4): A('s_add_u32 %s, %s, %d' % (s(sXO + b), s(sXO), b * 8 * 1792))
        groups = []
        for k in range(32):
            h, t = k >> 1, k & 1
            rs = []; ms = []
            for rt in range(2):
                r = vE + 4 * ((2 * k + rt) % 8)
                rs.append('ds_read_b128 %s, %s offset:%d' % (v(r, 4), v(vL16), h * 4096 + rt * 2048 + t * 1024))
                ms.append(mfma(vK + 16 * rt, v(r, 4), a(4 * k, 4), None if k == 0 else vK + 16 * rt))
            groups.append((rs, ms))
        hooks = {8 * st: ['@waitvm o%d' % st, 's_barrier'] for st in range(4)}
        L += self.gemm_stream(groups, 3, hooks)
        L += self.stamp(10)
        S = [[], []]
        for rho in range(16):
            p, q = vP + 2 * (rho % 8), vP + 2 * (rho % 8) + 1
            S[rho & 1] += ['v_cvt_pk_bf16_f32 %s, %s, %s' % (v(p), v(vK + rho), v(vK + 16 + rho)),
                  'v_mov_b32_dpp %s, %s quad_perm:[1,0,3,2] row_mask:0xf bank_mask:0xf' % (v(q), v(p)),
                  'v_perm_b32 %s, %s, %s, %s' % (v(p), v(q), v(p), v(vSEL)),
                  'buffer_store_dword %s, %s, s[%d:%d], %s offen offset:%d' % (v(p), v(vOA + ((rho >> 1) & 1)), SOUT, SOUT + 3, s(sXO + (rho >> 2)), 1792 * (rho & 1))]
        L += interleave(S[0], S[1])
        if self.cfg.stamps:
            L += self.stamp(11)
            A('s_memrealtime s[%d:%d]' % (sT0, sT1)); A('@waitlgkm_all')
            for k in range(1, 12): A('v_mov_b32 %s, %s' % (v(vE + k), s(sST + k) if k < 10 or k == 11 else s(sST + k)))
            A('v_mov_b32 %s, s3' % v(vE)); A('v_mov_b32 %s, %s' % (v(vE + 12), s(sT0))); A('v_mov_b32 %s, %s' % (v(vE + 13), s(sST)))
            A('s_lshl_b32 %s, s2, 2' % s(sT2)); A('s_add_u32 %s, %s, %s' % (s(sT2), s(sT2), s(sW))); A('s_lshl_b32 %s, %s, 6' % (s(sT2), s(sT2)))
            A('s_add_u32 %s, %s, %d' % (s(sT2), s(sT2), WS_STAMP))
            A('s_mov_b64 exec, 1')
            for k in range(4): A('buffer_store_dwordx4 %s, %s, s[%d:%d], %s offen offset:%d' % (v(vE + 4 * k, 4), v(vZ), SWS, SWS + 3, s(sT2), 16 * k))
        A('L_end:'); A('s_endpgm')
        return L

    def build(self):
        c = self.cfg
        pro = self.prologue()
        if c.stamps:
            i = pro.index('@waitlgkm_all')
            pro = pro[:i + 1] + ['s_mov_b32 s3, s100'] + self.stamp(0) + pro[i + 1:]
        shared = pro + self.stream() + ['s_cmp_eq_u32 %s, 0' % s(sBR), 's_cbranch_scc1 L_brA']
        MK = '.set MARK_A, 0'
        main = finalize(shared + self.middle('B') + self.tail())
        alt = finalize(shared + [MK, 'L_brA:'] + self.middle('A') + ['s_branch L_join'])
        alt = alt[alt.index(MK) + 1:]
        side = []
        for br in 'BA': side += finalize(self.nonce_retry(br) + self.part_retry(br) + self.far(br))
        return main, alt, side

HEADER = open(__file__.rsplit('/', 1)[0] + '/header.txt').read() if '/' in __file__ else open('header.txt').read()

def generate(cfg):
    g = G(cfg)
    main, alt, side = g.build()
    body = main + alt + side
    txt = HEADER
    txt += '; @launch grid=(256,1,1) block=(256,1,1) lds=163840\n'
    txt += '.amdgcn_target "amdgcn-amd-amdhsa--gfx950"\n.text\n.globl %s\n.p2align 8\n.type %s,@function\n%s:\n' % (KNAME, KNAME, KNAME)
    txt += '\n'.join(('' if l.endswith(':') else '    ') + l for l in body) + '\n'
    txt += '.section .rodata,"a"\n.p2align 6\n.amdhsa_kernel %s\n' % KNAME
    txt += '  .amdhsa_next_free_vgpr 512\n  .amdhsa_next_free_sgpr 102\n  .amdhsa_accum_offset 256\n  .amdhsa_group_segment_fixed_size 0\n'
    txt += '  .amdhsa_kernarg_size 80\n  .amdhsa_user_sgpr_count 2\n  .amdhsa_user_sgpr_kernarg_segment_ptr 1\n  .amdhsa_system_sgpr_workgroup_id_x 1\n.end_amdhsa_kernel\n'
    import subprocess, tempfile, os, re
    d = tempfile.mkdtemp()
    open(d + '/a.s', 'w').write(txt.replace('CODE_SPAN', '0x5000'))
    r = subprocess.run(['clang', '-x', 'assembler', '-target', 'amdgcn-amd-amdhsa', '-mcpu=gfx950', '-c', d + '/a.s', '-o', d + '/a.o'], capture_output=True, text=True)
    if r.returncode: raise Exception(r.stderr[:3000])
    r = subprocess.run(['llvm-readelf', '-S', d + '/a.o'], capture_output=True, text=True).stdout
    size = int(re.search(r'\.text\s+PROGBITS\s+\w+\s+\w+\s+(\w+)', r).group(1), 16)
    assert size < 32768 + 64
    sys.stderr.write('code bytes: %d\n' % size)
    return txt.replace('CODE_SPAN', hex(size - 64))

if __name__ == '__main__':
    cfg = Cfg()
    out = sys.argv[1]
    for kv in sys.argv[2:]:
        k, val = kv.split('='); setattr(cfg, k, eval(val))
    open(out, 'w').write(generate(cfg))
```

```python
import sys
from emit import finalize, interleave

KNAME = 'concat_heads__linear_attn_block__linear_kernel_hedgehog__prompt_kernel'

class Cfg:
    stamps = False
    force_global = False
    wv_b1 = 3
    part_pos = 0.0
    rot = True
    dbgstamps = False
    extra_empty = False
    pref_slots = 2

WS_XCC, WS_FLAG, WS_PART, WS_O, WS_STAMP = 4096, 8192, 65536, 2 << 20, 16 << 20
WS_BYTES = 32 << 20
L_WK, L_WV, L_MISC, L_WQ = 98304, 126976, 155648, 32768
L_WO_SHIFT = 36864
OOB = 0x40000000
sAX, sAW, sAWO, sBX, sBW, sPHI, sBWO, sOUT, sDBG, sWSP = 4, 6, 8, 10, 12, 14, 16, 18, 20, 22
SX, SW, SWO, SPHI, SWS, SOUT = 24, 28, 32, 36, 40, 44
sBR, sRB, sH, sW, sGID, sSLOT, sT0, sT1, sT2, sXCC = 48, 49, 50, 51, 52, 53, 54, 55, 56, 57
sN0, sN1 = 58, 59
sHI, sE28 = 60, 62
sXO, sWO_ = 64, 72
sM0X, sM0W = 80, 81
sSH, sCB, sRQ, sPB = 82, 83, 84, 85
sA, sB_, sC_, sD_ = 86, 87, 88, 89
sFAR, sSPIN = 72, 71
SPIN = ['s_add_u32 s71, s71, 1', 's_cmp_gt_u32 s71, 0x100000', 's_cbranch_scc1 L_end']
sST = 90
vL = 1
vXD, vWD, vWRq, vWRk, vZ = 2, 6, 7, 8, 9
vXR, vXR2 = 10, 14
vDUM, vT = 18, 19
vPH, vID, vC, vN = 20, 28, 36, 38
vK, vV, vP, vE, vKV, vT2 = 40, 72, 104, 136, 200, 232
vTAG, vL16 = 248, 249
vWO0, vOA = 250, 253
vSEL = 255
aX, aWR = 0, 224

def v(r, n=1): return 'v%d' % r if n == 1 else 'v[%d:%d]' % (r, r + n - 1)
def a(r, n=1): return 'a%d' % r if n == 1 else 'a[%d:%d]' % (r, r + n - 1)
def s(r, n=1): return 's%d' % r if n == 1 else 's[%d:%d]' % (r, r + n - 1)
MF = 'v_mfma_f32_32x32x16_bf16'
def mfma(d, x, y, c): return '%s %s, %s, %s, %s' % (MF, v(d, 16), x, y, v(c, 16) if c is not None else '0')

class G:
    def __init__(self, cfg):
        self.cfg = cfg; self.nst = 0
    def stamp(self, k):
        if not self.cfg.stamps: return []
        return ['@waitlgkm_all', 's_memtime s[%d:%d]' % (sT0, sT1), '@waitlgkm_all', 's_mov_b32 s%d, s%d' % (sST + k, sT0)]

    def prologue(self):
        c = self.cfg; L = []; A = L.append
        A('s_load_dwordx16 s[4:19], s[0:1], 0')
        A('s_load_dwordx4 s[20:23], s[0:1], 64')
        if c.stamps: A('s_memrealtime s[100:101]')
        A('s_cmp_ge_u32 s2, 256'); A('s_cbranch_scc1 L_end')
        A('s_lshr_b32 %s, s2, 3' % s(sSLOT))
        A('s_cmp_lt_u32 %s, %d' % (s(sSLOT), c.pref_slots)); A('s_cselect_b32 %s, CODE_SPAN, 0' % s(sT2))
        A('s_getpc_b64 s[%d:%d]' % (sT0, sT1))
        A('v_lshlrev_b32 %s, 7, v0' % v(vT))
        A('v_min_u32 %s, %s, %s' % (v(vT), s(sT2), v(vT)))
        L.append(('global_load_dword %s, %s, s[%d:%d]' % (v(vDUM), v(vT), sT0, sT1), 'pref'))
        A('s_getreg_b32 %s, hwreg(HW_REG_XCC_ID, 0, 4)' % s(sXCC))
        A('v_lshrrev_b32 %s, 6, v0' % v(vT)); A('v_and_b32 %s, 63, v0' % v(vL))
        A('v_readfirstlane_b32 %s, %s' % (s(sW), v(vT)))
        A('s_bfe_u32 %s, s2, 0x10002' % s(sBR))
        A('s_and_b32 %s, s2, 3' % s(sRB)); A('s_lshl_b32 %s, %s, 1' % (s(sRB), s(sRB)))
        A('s_lshr_b32 %s, %s, 4' % (s(sT2), s(sSLOT))); A('s_add_u32 %s, %s, %s' % (s(sRB), s(sRB), s(sT2)))
        A('s_and_b32 %s, %s, 15' % (s(sH), s(sSLOT)))
        A('s_mul_i32 %s, %s, 3' % (s(sT2), s(sT2))); A('s_add_u32 %s, %s, %s' % (s(sA), s(sH), s(sT2)))
        A('s_mul_i32 %s, %s, 37' % (s(sB_), s(sA))); A('s_lshr_b32 %s, %s, 8' % (s(sB_), s(sB_)))
        A('s_mul_i32 %s, %s, 7' % (s(sB_), s(sB_))); A('s_sub_u32 %s, %s, %s' % (s(sA), s(sA), s(sB_)))
        if not c.rot: A('s_mov_b32 %s, 0' % s(sA))
        A('s_lshl_b32 %s, %s, 2' % (s(sB_), s(sRB))); A('s_add_u32 %s, %s, %s' % (s(sB_), s(sB_), s(sW)))
        A('s_mul_i32 %s, %s, %d' % (s(sB_), s(sB_), 64 * 896))
        A('s_cmp_eq_u32 %s, 15' % s(sH)); A('s_cselect_b32 %s, 8, 0' % s(sSH))
        A('s_mul_i32 %s, %s, 56' % (s(sC_), s(sH))); A('s_sub_u32 %s, %s, %s' % (s(sC_), s(sC_), s(sSH)))
        A('s_mul_i32 %s, %s, %d' % (s(sD_), s(sW), 16 * 2688)); A('s_add_u32 %s, %s, %s' % (s(sC_), s(sC_), s(sD_)))
        for i in range(7):
            A('s_lshl_b32 %s, %s, 7' % (s(sD_), s(sA))); A('s_add_u32 %s, %s, %s' % (s(sXO + i), s(sB_), s(sD_)))
            A('s_mul_i32 %s, %s, %d' % (s(sD_), s(sA), 64 * 2688)); A('s_add_u32 %s, %s, %s' % (s(sWO_ + i), s(sC_), s(sD_)))
            if i < 6:
                A('s_add_u32 %s, %s, 1' % (s(sA), s(sA))); A('s_cmp_eq_u32 %s, 7' % s(sA)); A('s_cselect_b32 %s, 0, %s' % (s(sA), s(sA)))
        A('s_mov_b32 %s, 0' % s(sSPIN))
        A('s_lshl_b32 %s, %s, 13' % (s(sM0X), s(sW))); A('s_lshl_b32 %s, %s, 10' % (s(sM0W), s(sW)))
        t0, t1, t2 = vT2, vT2 + 1, vT2 + 2
        A('v_lshrrev_b32 %s, 3, %s' % (v(t0), v(vL))); A('v_mul_u32_u24 %s, 896, %s' % (v(t0), v(t0)))
        A('v_lshrrev_b32 %s, 4, %s' % (v(t1), v(vL))); A('v_and_b32 %s, 7, %s' % (v(t2), v(vL)))
        A('v_xor_b32 %s, %s, %s' % (v(t2), v(t1), v(t2)))
        A('v_lshl_add_u32 %s, %s, 4, %s' % (v(vXD), v(t2), v(t0)))
        A('v_xor_b32 %s, 4, %s' % (v(t2), v(t2))); A('v_lshl_add_u32 %s, %s, 4, %s' % (v(vXD + 1), v(t2), v(t0)))
        A('v_add_u32 %s, %d, %s' % (v(vXD + 2), 2 * 6144, v(vXD))); A('v_add_u32 %s, %d, %s' % (v(vXD + 3), 3 * 6144, v(vXD + 1)))
        A('v_add_u32 %s, %d, %s' % (v(vXD + 1), 6144, v(vXD + 1)))
        A('v_lshrrev_b32 %s, 2, %s' % (v(t0), v(vL))); A('v_mul_u32_u24 %s, 2688, %s' % (v(t0), v(t0)))
        A('v_and_b32 %s, 3, %s' % (v(t2), v(vL))); A('v_lshl_add_u32 %s, %s, 4, %s' % (v(vWD), v(t2), v(t0)))
        A('@waitlgkm_all')
        A('s_cmp_eq_u32 %s, 0' % s(sBR))
        for (srd, pa, pb, n) in ((SX, sAX, sBX, 1835008), (SW, sAW, sBW, 1204224), (SWO, sAWO, sBWO, 401408)):
            A('s_cselect_b32 %s, %s, %s' % (s(srd), s(pa), s(pb))); A('s_cselect_b32 %s, %s, %s' % (s(srd + 1), s(pa + 1), s(pb + 1)))
            A('s_mov_b32 %s, %d' % (s(srd + 2), n)); A('s_mov_b32 %s, 0x20000' % s(srd + 3))
        A('s_cselect_b32 %s, 0, 25088' % s(SPHI + 2))
        L += self.dma_x(0) + self.dma_w(0, 1, L_WK, 'wk0')
        A('s_mov_b32 %s, %s' % (s(SPHI), s(sPHI))); A('s_mov_b32 %s, %s' % (s(SPHI + 1), s(sPHI + 1))); A('s_mov_b32 %s, 0x20000' % s(SPHI + 3))
        for (srd, p, n) in ((SWS, sWSP, WS_BYTES), (SOUT, sOUT, 3670016)):
            A('s_mov_b32 %s, %s' % (s(srd), s(p))); A('s_mov_b32 %s, %s' % (s(srd + 1), s(p + 1)))
            A('s_mov_b32 %s, %d' % (s(srd + 2), n)); A('s_mov_b32 %s, 0x20000' % s(srd + 3))
        L += self.dma_x(1) + self.dma_w(1, 1, L_WK, 'wk1') + self.dma_x(2)
        for i in range(2, 7): L += self.dma_w(i, 1, L_WK, 'wk%d' % i)
        A('s_or_b32 %s, s2, %s' % (s(sT2), s(sW))); A('s_cmp_lg_u32 %s, 0' % s(sT2)); A('s_cbranch_scc1 L_nononce')
        A('s_load_dwordx2 s[%d:%d], s[%d:%d], 0' % (sT0, sT1, sWSP, sWSP + 1))
        A('v_mov_b32 %s, 0' % v(vZ))
        A('@waitlgkm_all')
        A('s_add_u32 %s, %s, 0x9e3679b8' % (s(sT0), s(sT0))); A('s_add_u32 %s, %s, 0x85eaca6a' % (s(sT1), s(sT1)))
        for r in (sT0, sT1):
            A('s_or_b32 %s, %s, 0x00010001' % (s(r), s(r))); A('s_and_b32 %s, %s, 0xbfffbfff' % (s(r), s(r)))
        A('v_mov_b32 %s, %s' % (v(vN), s(sT0))); A('v_mov_b32 %s, %s' % (v(vN + 1), s(sT1)))
        A('s_mov_b64 exec, 1')
        L.append(('global_store_dwordx2 %s, %s, s[%d:%d] sc1 ; untracked' % (v(vZ), v(vN, 2), sDBG, sDBG + 1), 'untracked'))
        L.append(('global_store_dwordx2 %s, %s, s[%d:%d] sc1 ; untracked' % (v(vZ), v(vN, 2), sWSP, sWSP + 1), 'untracked'))
        A('s_mov_b64 exec, -1')
        A('L_nononce:')
        A('v_mov_b32 %s, 0' % v(vZ))
        m, hi, t3, t4 = vT2 + 3, vT2 + 4, vT2 + 5, vT2 + 6
        A('v_and_b32 %s, 31, %s' % (v(m), v(vL))); A('v_lshrrev_b32 %s, 5, %s' % (v(hi), v(vL)))
        A('v_lshrrev_b32 %s, 3, %s' % (v(t0), v(m))); A('v_and_b32 %s, 3, %s' % (v(t1), v(m)))
        A('v_lshl_add_u32 %s, %s, 2, %s' % (v(t0), v(t0), v(t1)))
        A('v_lshrrev_b32 %s, 4, %s' % (v(t1), v(m))); A('v_sub_u32 %s, %s, %s' % (v(t0), v(t0), v(t1)))
        A('v_bfe_u32 %s, %s, 2, 1' % (v(t1), v(m))); A('v_mad_u32_u24 %s, %s, 14, %s' % (v(t0), v(t1), v(t0)))
        A('v_and_b32 %s, 11, %s' % (v(t1), v(m))); A('v_cmp_eq_u32 vcc, 11, %s' % v(t1))
        A('v_mov_b32 %s, 0x%x' % (v(t2), OOB))
        A('v_mul_u32_u24 %s, 224, %s' % (v(t3), v(hi))); A('v_lshl_add_u32 %s, %s, 1, %s' % (v(t3), v(t0), v(t3)))
        A('v_cndmask_b32_e64 %s, %s, %s, vcc' % (v(t3), v(t3), v(t2)))
        A('v_cndmask_b32_e64 %s, %s, 63, vcc' % (v(t0), v(t0)))
        A('v_cmp_lt_u32_e64 s[%d:%d], 31, %s' % (sHI, sHI + 1, v(vL)))
        A('v_cmp_eq_u32_e64 s[%d:%d], 28, %s' % (sE28, sE28 + 1, v(m)))
        A('v_cndmask_b32_e64 %s, %s, %s, s[%d:%d]' % (v(t4), v(t3), v(t2), sHI, sHI + 1))
        A('s_mul_i32 %s, %s, 1568' % (s(sT2), s(sH)))
        for t in range(2):
            for j in range(8):
                d = 16 * t + 8 * (j >> 2) + (j & 3)
                L.append(('buffer_load_ushort %s, %s, s[%d:%d], %s offen offset:%d' % (v(vP + 8 * t + j),
                          v(t4 if (t == 1 and j >= 4) else t3), SPHI, SPHI + 3, s(sT2), d * 56), 'phi'))
        def selector(dst, tgt):
            R = []
            x, y, z = vT2 + 8, vT2 + 9, vT2 + 10
            R.append('v_lshrrev_b32 %s, 3, %s' % (v(x), v(tgt))); R.append('v_bfe_u32 %s, %s, 1, 1' % (v(y), v(tgt)))
            R.append('v_lshl_add_u32 %s, %s, 1, %s' % (v(x), v(x), v(y)))
            R.append('v_and_b32 %s, 1, %s' % (v(y), v(tgt))); R.append('v_lshlrev_b32 %s, 4, %s' % (v(y), v(y)))
            R.append('v_mov_b32 %s, 0x3f80' % v(z)); R.append('v_lshlrev_b32 %s, %s, %s' % (v(z), v(y), v(z)))
            R.append('v_bfe_u32 %s, %s, 2, 1' % (v(y), v(tgt))); R.append('v_cmp_eq_u32 vcc, %s, %s' % (v(y), v(hi)))
            R.append('v_cndmask_b32_e64 %s, 15, %s, vcc' % (v(x), v(x)))
            for i in range(8):
                R.append('v_cmp_eq_u32 vcc, %d, %s' % (i, v(x))); R.append('v_cndmask_b32_e64 %s, 0, %s, vcc' % (v(dst + i), v(z)))
            return R
        L += selector(vID, m)
        L += selector(vE, t0)
        A('v_bfe_u32 %s, %s, 1, 3' % (v(t1), v(m))); A('v_xor_b32 %s, %s, %s' % (v(t1), v(t1), v(hi)))
        A('v_lshl_add_u32 %s, %s, 7, %s' % (v(t2), v(m), s(sM0X)))
        for ks in range(4):
            A('v_xor_b32 %s, %d, %s' % (v(t3), 2 * ks, v(t1))); A('v_lshl_add_u32 %s, %s, 4, %s' % (v(vXR + ks), v(t3), v(t2)))
            A('v_add_u32 %s, 0x10000, %s' % (v(vXR2 + ks), v(vXR + ks)))
        A('v_bfe_u32 %s, %s, 2, 2' % (v(t1), v(vL))); A('v_lshlrev_b32 %s, 6, %s' % (v(t2), v(t1)))
        A('v_lshl_add_u32 %s, %s, 9, %s' % (v(t2), v(hi), v(t2)))
        A('v_bfe_u32 %s, %s, 4, 1' % (v(t3), v(vL))); A('v_and_b32 %s, 3, %s' % (v(t4), v(vL)))
        A('v_lshlrev_b32 %s, 3, %s' % (v(t4), v(t4))); A('v_lshl_add_u32 %s, %s, 5, %s' % (v(t4), v(t3), v(t4)))
        A('v_add3_u32 %s, %s, %s, %s' % (v(t2), v(t2), v(t4), s(sSH)))
        A('v_add_u32 %s, %d, %s' % (v(vWRq), L_WQ, v(t2))); A('v_add_u32 %s, %d, %s' % (v(vWRk), L_WK, v(t2)))
        A('v_xor_b32 %s, %s, %s' % (v(t3), s(sW), v(t1))); A('v_lshl_add_u32 %s, %s, 6, %s' % (v(t4), v(t3), v(t4)))
        A('v_lshl_add_u32 %s, %s, 8, %s' % (v(t4), v(t1), v(t4))); A('v_lshl_add_u32 %s, %s, 10, %s' % (v(vWO0), v(hi), v(t4)))
        A('v_add_u32 %s, 0x10000, %s' % (v(vWO0 + 1), v(vWO0))); A('v_add_u32 %s, 0x20000, %s' % (v(vWO0 + 2), v(vWO0)))
        A('v_lshlrev_b32 %s, 4, %s' % (v(vL16), v(vL)))
        A('v_mov_b32 %s, 0x3fb8aa3b' % v(vC)); A('v_mov_b32 %s, 0x3fb8aa3b' % v(vC + 1))
        A('s_lshl_b32 %s, %s, 3' % (s(sGID), s(sBR))); A('s_add_u32 %s, %s, %s' % (s(sGID), s(sGID), s(sRB)))
        A('s_and_b32 %s, %s, 3' % (s(sCB), s(sH))); A('s_lshr_b32 %s, %s, 2' % (s(sRQ), s(sH)))
        A('v_and_b32 %s, 1, %s' % (v(t1), v(vL))); A('v_lshlrev_b32 %s, 3, %s' % (v(t2), v(t1))); A('v_add_u32 %s, %s, %s' % (v(t2), v(t2), v(hi)))
        A('v_mul_u32_u24 %s, %d, %s' % (v(t2), 4 * 1792, v(t2))); A('v_and_b32 %s, 30, %s' % (v(t3), v(vL)))
        A('v_lshl_add_u32 %s, %s, 1, %s' % (v(t2), v(t3), v(t2)))
        A('s_lshl_b32 %s, %s, 2' % (s(sT2), s(sCB))); A('s_add_u32 %s, %s, %s' % (s(sT2), s(sT2), s(sW)))
        A('s_cmp_ge_u32 %s, 14' % s(sT2)); A('s_cselect_b32 %s, 0x%x, 0' % (s(sT2), OOB))
        A('v_add_u32 %s, %s, %s' % (v(vOA), s(sT2), v(t2))); A('v_add_u32 %s, %d, %s' % (v(vOA + 1), 2 * 1792, v(vOA)))
        A('v_cmp_eq_u32 vcc, 1, %s' % v(t1)); A('v_mov_b32 %s, 0x05040100' % v(t2)); A('v_mov_b32 %s, 0x03020706' % v(t3))
        A('v_cndmask_b32_e64 %s, %s, %s, vcc' % (v(vSEL), v(t2), v(t3)))
        return L

    def dma_x(self, i):
        L = []
        for tile in range(2):
            L.append('s_add_u32 m0, %s, %d' % (s(sM0X), (i % 3) * 32768 + tile * 4096))
            if tile: L.append('s_add_u32 %s, %s, 28672' % (s(sXO + i), s(sXO + i)))
            for j in range(4):
                L.append(('buffer_load_dwordx4 %s, s[%d:%d], %s offen offset:%d lds' % (v(vXD + j), SX, SX + 3, s(sXO + i), 1024 * j), 'x%d' % i))
        return L
    def dma_w(self, i, part, base, tag):
        return ['s_add_u32 m0, %s, %d' % (s(sM0W), base + i * 4096),
                's_add_u32 %s, %s, %d' % (s(sT2), s(sWO_ + i), part * 896),
                ('buffer_load_dwordx4 %s, s[%d:%d], %s offen lds' % (v(vWD), SW, SW + 3, s(sT2)), tag)]
    def xfrag(self, i, ks, tile): return aX + ((i * 4 + ks) * 2 + tile) * 4
    def wread(self, slot, basev, off):
        r = aWR + 4 * (slot % 8)
        return ['ds_read_b64_tr_b16 %s, %s offset:%d' % (a(r + 2 * u, 2), v(basev), off + 256 * u) for u in range(2)]

    def stream(self):
        L = []; A = L.append
        for i in range(7):
            A('@waitvm x%d wk%d' % (i, i)); A('s_barrier')
            if i == 0: L += self.stamp(1)
            sl = i % 3
            for ks in range(4):
                for tile in range(2):
                    L.append(('ds_read_b128 %s, %s offset:%d' % (a(self.xfrag(i, ks, tile), 4), v((vXR2 if sl == 2 else vXR) + ks), (sl & 1) * 32768 + tile * 4096), 'xr'))
            for ks in range(4): L += self.wread(4 * i + ks, vWRk, i * 4096 + ks * 1024)
            A('@waitlgkm xr')
            D = []
            if i + 3 < 7: D = self.dma_x(i + 3)
            if i == 3:
                D += ['v_lshl_or_b32 %s, %s, 16, %s' % (v(vPH + u), v(vP + 2 * u + 1), v(vP + 2 * u)) for u in range(8)]
            if i == 4:
                D.append(('global_load_dwordx2 %s, %s, s[%d:%d] sc1' % (v(vN, 2), v(vZ), sDBG, sDBG + 1), 'nonce'))
                for k in range(7): D += self.dma_w(k, 2, L_WV, 'wv%d' % k)
            if i == 5:
                for k in range(7): D += self.dma_w(k, 0, L_WQ, 'wq')
            M = []
            for ks in range(4):
                for tile in range(2):
                    M.append(mfma(vK + 16 * tile, a(aWR + 4 * ((4 * i + ks) % 8), 4), a(self.xfrag(i, ks, tile), 4), None if (i == 0 and ks == 0) else vK + 16 * tile))
            L += interleave(D, M) if D else M
        return L

    def gemm(self, acc, basev, off, transposed, first_slot):
        R = []
        for k in range(28):
            w = a(aWR + 4 * ((first_slot + k) % 8), 4)
            ms = []
            for tile in range(2):
                x = a(self.xfrag(k // 4, k % 4, tile), 4)
                ms.append(mfma(acc + 16 * tile, w if transposed else x, x if transposed else w, None if k == 0 else acc + 16 * tile))
            R.append((self.wread(first_slot + k, basev, off + k * 1024), ms))
        return R
    def gemm_stream(self, groups, ahead=3, hooks=None):
        L = []
        hooks = hooks or {}
        n = len(groups)
        for k in range(n + ahead):
            if k in hooks: L += hooks[k]
            if k < n: L += groups[k][0]
            if k >= ahead: L += groups[k - ahead][1]
        return L

    def pack(self, r, n=8): return ['v_cvt_pk_bf16_f32 %s, %s, %s' % (v(r + u), v(r + 2 * u), v(r + 2 * u + 1)) for u in range(n)]
    def zero_hi_pads(self, r): return ['v_cndmask_b32_e64 %s, %s, 0, s[%d:%d]' % (v(r + u), v(r + u), sHI, sHI + 1) for u in (6, 7)]

    def softmax(self, p, ep, en, tmp):
        L = []; A = L.append
        Z, T, S1, S2 = tmp, tmp + 2, tmp + 4, tmp + 6
        for r in (ep + 7, ep + 15, en + 7, en + 15): A('v_mov_b32 %s, 0' % v(r))
        for (d, sg) in ((Z, ''), (T, '-')):
            A('v_max3_f32 %s, %s%s, %s%s, %s%s' % (v(d), sg, v(p), sg, v(p + 1), sg, v(p + 2)))
        for (x, y) in ((3, 4), (5, 6), (8, 9), (10, 11), (12, 13)):
            for (d, sg) in ((Z, ''), (T, '-')):
                A('v_max3_f32 %s, %s, %s%s, %s%s' % (v(d), v(d), sg, v(p + x), sg, v(p + y)))
        for (d, sg) in ((Z, ''), (T, '-')): A('v_max_f32_e64 %s, %s, %s%s' % (v(d), v(d), sg, v(p + 14)))
        A('v_permlane32_swap_b32 %s, %s' % (v(Z), v(T))); A('v_max_f32 %s, %s, %s' % (v(Z), v(Z), v(T)))
        A('v_mul_f32 %s, %s, %s' % (v(Z), v(vC), v(Z))); A('v_mov_b32 %s, %s' % (v(T), v(Z)))
        A('v_permlane32_swap_b32 %s, %s' % (v(Z), v(T)))
        for (e, z, ng) in ((ep, Z, 0), (en, T, 1)):
            for u in (0, 2, 4, 6, 8, 10, 12, 14):
                if u in (6, 14):
                    A('v_fma_f32 %s, %s%s, %s, -%s' % (v(e + u), '-' if ng else '', v(p + u), v(vC), v(z)))
                    A('v_exp_f32 %s, %s' % (v(e + u), v(e + u)))
                else:
                    A('v_pk_fma_f32 %s, %s, %s, %s op_sel_hi:[1,1,0] neg_lo:[%d,0,1] neg_hi:[%d,0,1]' % (v(e + u, 2), v(p + u, 2), v(vC, 2), v(z, 2), ng, ng))
                    A('v_exp_f32 %s, %s' % (v(e + u), v(e + u))); A('v_exp_f32 %s, %s' % (v(e + u + 1), v(e + u + 1)))
        for (e, S) in ((ep, S1), (en, S2)): A('v_pk_add_f32 %s, %s, %s' % (v(S, 2), v(e, 2), v(e + 2, 2)))
        for u in (4, 6, 8, 10, 12, 14):
            for (e, S) in ((ep, S1), (en, S2)): A('v_pk_add_f32 %s, %s, %s' % (v(S, 2), v(S, 2), v(e + u, 2)))
        A('v_add_f32 %s, %s, %s' % (v(Z), v(S1), v(S1 + 1))); A('v_add_f32 %s, %s, %s' % (v(T), v(S2), v(S2 + 1)))
        A('v_permlane32_swap_b32 %s, %s' % (v(Z), v(T))); A('v_add_f32 %s, %s, %s' % (v(Z), v(Z), v(T)))
        A('v_rcp_f32 %s, %s' % (v(Z), v(Z))); A('v_mov_b32 %s, %s' % (v(T), v(Z)))
        A('v_permlane32_swap_b32 %s, %s' % (v(Z), v(T)))
        for (e, z) in ((ep, Z), (en, T)):
            for u in range(8):
                A('v_pk_mul_f32 %s, %s, %s op_sel_hi:[1,0]' % (v(e + 2 * u, 2), v(e + 2 * u, 2), v(z, 2)))
                A('v_cvt_pk_bf16_f32 %s, %s, %s' % (v(e + u), v(e + 2 * u), v(e + 2 * u + 1)))
        return L

    def elu1(self, p, e, pads):
        L = []; A = L.append
        for u in range(0, 16, 2):
            single = pads and u in (6, 14)
            if single:
                A('v_mov_b32 %s, 0' % v(e + u + 1))
                A('v_mul_f32 %s, %s, %s' % (v(e + u), v(vC), v(p + u)))
            else: A('v_pk_mul_f32 %s, %s, %s' % (v(e + u, 2), v(p + u, 2), v(vC, 2)))
            for k in range(1 if single else 2):
                A('v_exp_f32_e64 %s, %s clamp' % (v(e + u + k), v(e + u + k)))
                A('v_max_f32 %s, 0x358637bd, %s' % (v(p + u + k), v(p + u + k)))
            if single: A('v_add_f32 %s, %s, %s' % (v(e + u), v(e + u), v(p + u)))
            else: A('v_pk_add_f32 %s, %s, %s' % (v(e + u, 2), v(e + u, 2), v(p + u, 2)))
            A('v_cvt_pk_bf16_f32 %s, %s, %s' % (v(e + u // 2), v(e + u), v(e + u + 1)))
        return L

    def get_nonce(self, br):
        L = []; A = L.append
        A('@waitvm nonce')
        A('L_nonce_chk%s:' % br)
        A('v_readfirstlane_b32 %s, %s' % (s(sN0), v(vN))); A('v_readfirstlane_b32 %s, %s' % (s(sN1), v(vN + 1)))
        A('s_min_u32 %s, %s, %s' % (s(sT2), s(sN0), s(sN1))); A('s_cmp_eq_u32 %s, 0' % s(sT2)); A('s_cbranch_scc1 L_nonce_retry%s' % br)
        t0, t1 = vT2 + 14, vT2 + 15
        A('v_and_b32 %s, 2, %s' % (v(t0), v(vL))); A('v_cmp_eq_u32 vcc, 0, %s' % v(t0))
        A('v_cndmask_b32_e64 %s, %s, %s, vcc' % (v(t0), v(vN + 1), v(vN)))
        A('v_and_b32 %s, 1, %s' % (v(t1), v(vL))); A('v_cmp_eq_u32 vcc, 0, %s' % v(t1))
        A('v_lshlrev_b32 %s, 16, %s' % (v(t1), v(t0))); A('v_and_b32 %s, 0xffff0000, %s' % (v(t0), v(t0)))
        A('v_cndmask_b32_e64 %s, %s, %s, vcc' % (v(vTAG), v(t0), v(t1)))
        A('s_and_b32 %s, %s, 0xfffffff0' % (s(sT2), s(sN1))); A('s_or_b32 %s, %s, %s' % (s(sXCC), s(sXCC), s(sT2)))
        A('v_mov_b32 %s, %s' % (v(vN + 1), s(sXCC)))
        A('s_lshl_b32 %s, %s, 4' % (s(sT2), s(sGID))); A('s_add_u32 %s, %s, %s' % (s(sPB), s(sT2), s(sH)))
        A('s_lshl_b32 %s, %s, 3' % (s(sT2), s(sPB))); A('s_add_u32 %s, %s, %d' % (s(sT2), s(sT2), WS_XCC))
        A('v_cmp_eq_u32 vcc, 0, v0'); A('v_mov_b32 %s, 0x%x' % (v(t0), OOB)); A('v_cndmask_b32_e64 %s, %s, 0, vcc' % (v(vT), v(t0)))
        L.append(('buffer_store_dwordx2 %s, %s, s[%d:%d], %s offen sc1' % (v(vN, 2), v(vT), SWS, SWS + 3, s(sT2)), 'xccst'))
        A('s_lshl_b32 %s, %s, 14' % (s(sT2), s(sPB))); A('s_lshl_b32 %s, %s, 12' % (s(sA), s(sW))); A('s_add_u32 %s, %s, %s' % (s(sA), s(sA), s(sT2)))
        A('s_add_u32 %s, %s, %d' % (s(sA), s(sA), WS_O))
        A('v_and_b32 %s, 31, %s' % (v(t0), v(vL))); A('v_lshlrev_b32 %s, 7, %s' % (v(t0), v(t0)))
        L.append(('buffer_load_dword %s, %s, s[%d:%d], %s offen sc1' % (v(vDUM), v(t0), SWS, SWS + 3, s(sA)), 'pre'))
        A('s_lshl_b32 %s, %s, 7' % (s(sB_), s(sGID))); A('s_add_u32 %s, %s, %d' % (s(sB_), s(sB_), WS_FLAG))
        L.append(('buffer_load_dword %s, %s, s[%d:%d], %s offen sc1' % (v(vDUM), v(vZ), SWS, SWS + 3, s(sB_)), 'pre'))
        return L
    def nonce_retry(self, br):
        return ['L_nonce_retry%s:' % br, '@assume_idle', 's_sleep 1'] + SPIN + [
                'global_load_dwordx2 %s, %s, s[%d:%d] sc1' % (v(vN, 2), v(vZ), sDBG, sDBG + 1), '@waitvm_all', 's_branch L_nonce_chk%s' % br]

    def middle(self, br):
        c = self.cfg; B = br == 'B'; NT = 2 if B else 1
        L = []; A = L.append
        L += self.stamp(2)
        if not B:
            for i in range(8): A('v_mov_b32 %s, %s' % (v(vPH + i), v(vE + i)))
        head = []
        for tile in range(2): head += self.pack(vK + 16 * tile) + self.zero_hi_pads(vK + 16 * tile)
        for t in range(2):
            for tile in range(2):
                k4 = v(vK + 16 * tile + 4 * t, 4); w4 = v(vPH + 4 * t, 4)
                head.append(mfma(vP + 16 * tile, w4 if B else k4, k4 if B else w4, None if t == 0 else vP + 16 * tile))
        L += head
        L += self.get_nonce(br)
        if B: body = interleave(self.softmax(vP, vE, vE + 16, vT2), self.softmax(vP + 16, vE + 32, vE + 48, vT2 + 8))
        else: body = interleave(self.elu1(vP, vE, False), self.elu1(vP + 16, vE + 32, False))
        b1 = c.wv_b1
        hooks = {0: ['@waitvm ' + ' '.join('wv%d' % k for k in range(b1)), 's_barrier'],
                 4 * b1: ['@waitvm ' + ' '.join('wv%d' % k for k in range(b1, 7)), 's_barrier']}
        g = self.gemm_stream(self.gemm(vV, vWRk, L_WV - L_WK, False, 0), 3, hooks)
        L += interleave(body, g) if B else (body + g)
        L += self.stamp(3)
        tn = lambda tile, sg: (vP if sg == 0 else vK) + 16 * tile
        if B:
            for t in range(2):
                for tile in range(2):
                    for sg in range(2):
                        A(mfma(tn(tile, sg), v(vE + 32 * tile + 16 * sg + 4 * t, 4), v(vID + 4 * t, 4), None if t == 0 else tn(tile, sg)))
        for tile in range(2): L += self.pack(vV + 16 * tile)
        A('v_mov_b32 %s, 0x3f803f80' % v(vT2))
        for tile in range(2):
            for u in range(8): A('v_cndmask_b32_e64 %s, %s, %s, s[%d:%d]' % (v(vV + 16 * tile + u), v(vV + 16 * tile + u), v(vT2), sE28, sE28 + 1))
        for tile in range(2):
            for sg in range(NT):
                src = tn(tile, sg) if B else vE + 32 * tile
                if B: L += self.pack(src)
                for t in range(2):
                    A(mfma(vKV + 16 * sg, v(src + 4 * t, 4), v(vV + 16 * tile + 4 * t, 4), None if (tile == 0 and t == 0) else vKV + 16 * sg))
        t0 = vT2 + 1
        A('v_add_u32 %s, %s, %s' % (v(t0), s(sM0X), v(vL16)))
        for q in range(4 * NT): A('ds_write_b128 %s, %s offset:%d' % (v(t0), v(vKV + 4 * q, 4), 1024 * q))
        A('s_and_b32 %s, %s, %d' % (s(sC_), s(sW), 3 if B else 1))
        A('s_lshl_b32 %s, %s, 11' % (s(sT2), s(sC_))); A('v_add_u32 %s, %s, %s' % (v(t0), s(sT2), v(vL16)))
        A('@waitlgkm_all'); A('s_barrier')
        for w in range(4):
            for hf in range(2): A('ds_read_b128 %s, %s offset:%d' % (v(vV + 8 * w + 4 * hf, 4), v(t0), 8192 * w + 1024 * hf))
        A('s_lshl_b32 %s, %s, 12' % (s(sT2), s(sPB))); A('s_lshl_b32 %s, %s, 10' % (s(sC_), s(sC_)))
        A('s_add_u32 %s, %s, %s' % (s(sT2), s(sT2), s(sC_))); A('s_add_u32 %s, %s, %d' % (s(sD_), s(sT2), WS_PART))
        if not B:
            A('s_cmp_ge_u32 %s, 2' % s(sW)); A('s_cselect_b32 %s, 0x%x, 0' % (s(sT2), OOB)); A('v_add_u32 %s, %s, %s' % (v(vT2 + 2), s(sT2), v(vL16)))
        for (x, y) in ((0, 8), (16, 24), (0, 16)):
            for u in range(0, 8, 2): A('v_pk_add_f32 %s, %s, %s' % (v(vV + x + u, 2), v(vV + x + u, 2), v(vV + y + u, 2)))
        A('v_mov_b32 %s, 0xffff' % v(vT2))
        L += self.pack(vV, 4)
        A('v_bfi_b32 %s, %s, %s, %s' % (v(vV + 3), v(vT2), v(vV + 3), v(vTAG)))
        L.append(('buffer_store_dwordx4 %s, %s, s[%d:%d], %s offen sc1' % (v(vV, 4), v(vL16 if B else vT2 + 2), SWS, SWS + 3, s(sD_)), 'pst'))
        L += self.stamp(4)
        A('@waitvm wq'); A('s_barrier')
        t0, t1, t2 = vT2, vT2 + 1, vT2 + 2
        A('v_lshrrev_b32 %s, 4, %s' % (v(t0), v(vL))); A('v_bfe_u32 %s, %s, 2, 2' % (v(t1), v(vL))); A('v_xor_b32 %s, %s, %s' % (v(t1), v(t1), v(t0)))
        A('v_mul_u32_u24 %s, 896, %s' % (v(t0), v(t0))); A('v_lshl_add_u32 %s, %s, 6, %s' % (v(t0), v(t1), v(t0)))
        A('v_and_b32 %s, 3, %s' % (v(t2), v(vL))); A('v_lshl_add_u32 %s, %s, 4, %s' % (v(t0), v(t2), v(t0)))
        A('s_cmp_eq_u32 %s, 3' % s(sCB)); A('s_cselect_b32 %s, 1, 3' % s(sT2))
        A('v_cmp_lt_u32 vcc, %s, %s' % (s(sT2), v(t1))); A('v_mov_b32 %s, 0x%x' % (v(t2), OOB))
        A('v_cndmask_b32_e64 %s, %s, %s, vcc' % (v(vWD), v(t0), v(t2)))
        A('s_mul_i32 %s, %s, 3584' % (s(sD_), s(sW))); A('s_lshl_b32 %s, %s, 8' % (s(sT2), s(sCB))); A('s_add_u32 %s, %s, %s' % (s(sD_), s(sD_), s(sT2)))
        D = []
        for m in range(29):
            D.append(['s_add_u32 m0, %s, %d' % (s(sM0W), 4096 * m + (L_WO_SHIFT if m >= 7 else 0)),
                      's_add_u32 %s, %s, %d' % (s(sT2), s(sD_), 14336 * m),
                      ('buffer_load_dwordx4 %s, s[%d:%d], %s offen lds' % (v(vWD if m < 28 else t2), SWO, SWO + 3, s(sT2) if m < 28 else '0'), 'wo')])
        D[28][0:2] = ['s_add_u32 %s, %s, %d' % (s(sT2), s(sM0W), 4096 * 28 + L_WO_SHIFT), 's_cmp_eq_u32 %s, 1' % s(sW), 's_cselect_b32 m0, 28672, %s' % s(sT2)]
        hooks = {k: D[k] for k in range(29)}
        L += self.gemm_stream(self.gemm(vK, vWRq, 0, True, 4), 3, hooks)
        L += self.stamp(5)
        head = []
        for tile in range(2): head += self.pack(vK + 16 * tile) + self.zero_hi_pads(vK + 16 * tile)
        for t in range(2):
            for tile in range(2):
                head.append(mfma(vP + 16 * tile, v(vPH + 4 * t, 4), v(vK + 16 * tile + 4 * t, 4), None if t == 0 else vP + 16 * tile))
        if B: body = interleave(self.softmax(vP, vE, vE + 16, vT2), self.softmax(vP + 16, vE + 32, vE + 48, vT2 + 8))
        else: body = interleave(self.elu1(vP, vE, True), self.elu1(vP + 16, vE + 32, True))
        pre = ['s_lshl_b32 %s, %s, 7' % (s(sT2), s(sBR)), 's_add_u32 %s, %s, %s' % (s(sT2), s(sT2), s(sH)), 's_lshl_b32 %s, %s, 12' % (s(sT2), s(sT2)),
               's_add_u32 %s, %s, %s' % (s(sD_), s(sT2), s(sC_)), 's_add_u32 %s, %s, %d' % (s(sD_), s(sD_), WS_PART),
               'v_and_b32 %s, 15, %s' % (v(vWD), v(vL)), 'v_lshlrev_b32 %s, 3, %s' % (v(vWD), v(vWD))]
        full = head + body
        pos = int(len(full) * c.part_pos)
        L += pre + full[:pos] + self.part_loads() + full[pos:]
        L += self.stamp(6)
        A('@waitvm part')
        A('L_part_chk%s:' % br)
        G0 = vKV
        for p in range(8): A(mfma(vV, v(vID, 4), v(G0 + 4 * p, 4), None if p == 0 else vV))
        x, y, z = vT2, vT2 + 1, vT2 + 2
        A('v_max3_u32 %s, %s, %s, %s' % (v(x), v(G0 + 3), v(G0 + 7), v(G0 + 11))); A('v_min3_u32 %s, %s, %s, %s' % (v(y), v(G0 + 3), v(G0 + 7), v(G0 + 11)))
        A('v_max3_u32 %s, %s, %s, %s' % (v(x), v(x), v(G0 + 15), v(G0 + 19))); A('v_min3_u32 %s, %s, %s, %s' % (v(y), v(y), v(G0 + 15), v(G0 + 19)))
        A('v_max3_u32 %s, %s, %s, %s' % (v(x), v(x), v(G0 + 23), v(G0 + 27))); A('v_min3_u32 %s, %s, %s, %s' % (v(y), v(y), v(G0 + 23), v(G0 + 27)))
        A('v_max_u32 %s, %s, %s' % (v(x), v(x), v(G0 + 31))); A('v_min_u32 %s, %s, %s' % (v(y), v(y), v(G0 + 31)))
        A('v_xor_b32 %s, %s, %s' % (v(x), v(x), v(vTAG))); A('v_xor_b32 %s, %s, %s' % (v(y), v(y), v(vTAG)))
        A('v_or_b32 %s, %s, %s' % (v(x), v(x), v(y))); A('v_lshrrev_b32 %s, 16, %s' % (v(x), v(x)))
        A('v_xor_b32 %s, %s, %s' % (v(y), s(sN0), v(vN))); A('v_xor_b32 %s, %s, %s' % (v(z), s(sXCC), v(vN + 1)))
        A('v_cmp_ne_u32_e64 s[%d:%d], 0, %s' % (sFAR, sFAR + 1, v(z)))
        A('v_lshrrev_b32 %s, 4, %s' % (v(z), v(z))); A('v_or3_b32 %s, %s, %s, %s' % (v(x), v(x), v(y), v(z)))
        A('v_cmp_ne_u32 vcc, 0, %s' % v(x)); A('s_cbranch_vccnz L_part_retry%s' % br)
        A('v_add_u32 %s, %s, %s' % (v(y), s(sC_), v(vL16))); A('v_add_u32 %s, %d, %s' % (v(y), L_MISC, v(y))); A('v_add_u32 %s, %d, %s' % (v(z), L_MISC, v(vL16)))
        L += self.pack(vV, 4)
        A('v_and_b32 %s, 0xffff, %s' % (v(vV + 3), v(vV + 3)))
        A('ds_write_b128 %s, %s' % (v(y), v(vV, 4)))
        A('@waitlgkm_all'); A('s_barrier')
        for q in range(2 * NT): A('ds_read_b128 %s, %s offset:%d' % (v(vV + 16 + 4 * q, 4), v(z), 1024 * q))
        for q in range(2 * NT):
            for tile in range(2):
                A(mfma(vP + 16 * tile, v(vV + 16 + 4 * q, 4), v(vE + 32 * tile + 16 * (q >> 1) + 4 * (q & 1), 4), None if q == 0 else vP + 16 * tile))
        rd = self.wo_reads()
        L += rd[:12]
        o = []
        for tile in range(2):
            P = vP + 16 * tile; d = vT2 + 4 * tile; S = []
            S.append('v_mov_b32 %s, %s' % (v(d), v(P + 12))); S.append('v_permlane32_swap_b32 %s, %s' % (v(P + 12), v(d)))
            S.append('v_add_f32 %s, 0x358637bd, %s' % (v(d), v(d))); S.append('v_rcp_f32 %s, %s' % (v(d), v(d)))
            for u in range(8):
                S.append('v_pk_mul_f32 %s, %s, %s op_sel_hi:[1,0]' % (v(P + 2 * u, 2), v(P + 2 * u, 2), v(d, 2)))
                S.append('v_cvt_pk_bf16_f32 %s, %s, %s' % (v(P + u), v(P + 2 * u), v(P + 2 * u + 1)))
            S += self.zero_hi_pads(P)
            o.append(S)
        L += interleave(o[0], o[1])
        L += self.stamp(7)
        A('v_mov_b32 %s, %s' % (v(vN), s(sN0))); A('v_mov_b32 %s, %s' % (v(vN + 1), s(sN1)))
        A('s_lshl_b32 %s, %s, 3' % (s(sT2), s(sH))); A('s_add_u32 %s, %s, %s' % (s(sC_), s(sB_), s(sT2)))
        if c.force_global: A('s_branch L_far%s' % br)
        A('s_cmp_lg_u64 s[%d:%d], 0' % (sFAR, sFAR + 1)); A('s_cbranch_scc1 L_far%s' % br)
        L += self.publish('', rd[12:])
        return L
    def publish(self, fl, rd):
        L = []
        for tile in range(2):
            for t in range(2):
                L.append(('buffer_store_dwordx4 %s, %s, s[%d:%d], %s offen offset:%d %s' % (v(vP + 16 * tile + 4 * t, 4), v(vL16), SWS, SWS + 3, s(sA), 2048 * tile + 1024 * t, fl), 'ost'))
        L += rd
        L += ['@wait_all', 's_barrier']
        L.append('buffer_store_dwordx2 %s, %s, s[%d:%d], %s offen %s' % (v(vN, 2), v(vT), SWS, SWS + 3, s(sC_), fl))
        return L
    def part_loads(self):
        L = []
        for p in range(8):
            L.append('s_add_u32 %s, %s, %d' % (s(sT2), s(sD_), 65536 * p))
            L.append(('buffer_load_dwordx4 %s, %s, s[%d:%d], %s offen sc1' % (v(vKV + 4 * p, 4), v(vL16), SWS, SWS + 3, s(sT2)), 'part'))
        L.append('s_add_u32 %s, %s, %d' % (s(sT2), s(sB_), WS_XCC - WS_FLAG))
        L.append(('buffer_load_dwordx2 %s, %s, s[%d:%d], %s offen sc1' % (v(vN, 2), v(vWD), SWS, SWS + 3, s(sT2)), 'part'))
        return L
    def part_retry(self, br):
        return ['L_part_retry%s:' % br, '@assume_idle', 's_nop 15'] + SPIN + self.part_loads() + ['@waitvm_all', 's_branch L_part_chk%s' % br]
    def far(self, br):
        return ['L_far%s:' % br, '@assume_idle', 's_nop 4'] + self.publish('sc1', self.wo_reads()[12:]) + ['s_branch L_join']
    def wo_reads(self):
        L = []
        for h in range(16):
            for t in range(2):
                for u in range(2):
                    off = (28 * h + 16 * t + 8 * u) * 256 + (L_WO_SHIFT if h >= 4 else 0)
                    L.append('ds_read_b64_tr_b16 %s, %s offset:%d' % (a(4 * (2 * h + t) + 2 * u, 2), v(vWO0 + (off >> 16)), off & 0xffff))
        return L

    def tail(self):
        L = []; A = L.append
        A('L_join:')
        L += self.stamp(8)
        A('s_lshl_b32 %s, %s, 4' % (s(sT2), s(sGID))); A('s_add_u32 %s, %s, %s' % (s(sT2), s(sT2), s(sW))); A('s_lshl_b32 %s, %s, 2' % (s(sT2), s(sT2)))
        A('s_add_u32 %s, %s, %s' % (s(sT2), s(sT2), s(sRQ))); A('s_lshl_b32 %s, %s, 12' % (s(sT2), s(sT2))); A('s_add_u32 %s, %s, %d' % (s(sD_), s(sT2), WS_O))
        A('s_lshl_b32 %s, %s, 12' % (s(sC_), s(sW)))
        A('L_poll:')
        L += SPIN
        A('buffer_load_dwordx2 %s, %s, s[%d:%d], %s offen sc1' % (v(vT2, 2), v(vWD), SWS, SWS + 3, s(sB_)))
        A('v_xor_b32 %s, %s, %s' % (v(vT2), s(sN0), v(vT2))); A('v_xor_b32 %s, %s, %s' % (v(vT2 + 1), s(sN1), v(vT2 + 1)))
        A('v_or_b32 %s, %s, %s' % (v(vT2), v(vT2), v(vT2 + 1))); A('v_cmp_ne_u32 vcc, 0, %s' % v(vT2)); A('s_cbranch_vccnz L_poll')
        L += self.stamp(9)
        for st in range(4):
            A('s_add_u32 m0, %s, %d' % (s(sC_), 16384 * st)); A('s_add_u32 %s, %s, %d' % (s(sT2), s(sD_), 65536 * st))
            for j in range(4):
                L.append(('buffer_load_dwordx4 %s, s[%d:%d], %s offen offset:%d sc1 lds' % (v(vL16), SWS, SWS + 3, s(sT2), 1024 * j), 'o%d' % st))
        A('s_lshl_b32 %s, %s, 2' % (s(sT2), s(sRB))); A('s_add_u32 %s, %s, %s' % (s(sT2), s(sT2), s(sRQ))); A('s_mul_i32 %s, %s, %d' % (s(sD_), s(sT2), 64 * 1792))
        A('s_mul_i32 %s, %s, 896' % (s(sT2), s(sBR))); A('s_add_u32 %s, %s, %s' % (s(sD_), s(sD_), s(sT2)))
        A('s_lshl_b32 %s, %s, 2' % (s(sT2), s(sCB))); A('s_add_u32 %s, %s, %s' % (s(sT2), s(sT2), s(sW))); A('s_lshl_b32 %s, %s, 6' % (s(sT2), s(sT2)))
        A('s_add_u32 %s, %s, %s' % (s(sXO), s(sD_), s(sT2)))
        for b in range(1, 4): A('s_add_u32 %s, %s, %d' % (s(sXO + b), s(sXO), b * 8 * 1792))
        groups = []
        for k in range(32):
            h, t = k >> 1, k & 1
            rs = []; ms = []
            for rt in range(2):
                r = vE + 4 * ((2 * k + rt) % 8)
                rs.append('ds_read_b128 %s, %s offset:%d' % (v(r, 4), v(vL16), h * 4096 + rt * 2048 + t * 1024))
                ms.append(mfma(vK + 16 * rt, v(r, 4), a(4 * k, 4), None if k == 0 else vK + 16 * rt))
            groups.append((rs, ms))
        hooks = {8 * st: ['@waitvm o%d' % st, 's_barrier'] for st in range(4)}
        L += self.gemm_stream(groups, 3, hooks)
        L += self.stamp(10)
        S = [[], []]
        for rho in range(16):
            p, q = vP + 2 * (rho % 8), vP + 2 * (rho % 8) + 1
            S[rho & 1] += ['v_cvt_pk_bf16_f32 %s, %s, %s' % (v(p), v(vK + rho), v(vK + 16 + rho)),
                  'v_mov_b32_dpp %s, %s quad_perm:[1,0,3,2] row_mask:0xf bank_mask:0xf' % (v(q), v(p)),
                  'v_perm_b32 %s, %s, %s, %s' % (v(p), v(q), v(p), v(vSEL)),
                  'buffer_store_dword %s, %s, s[%d:%d], %s offen offset:%d' % (v(p), v(vOA + ((rho >> 1) & 1)), SOUT, SOUT + 3, s(sXO + (rho >> 2)), 1792 * (rho & 1))]
        L += interleave(S[0], S[1])
        if self.cfg.stamps:
            L += self.stamp(11)
            A('s_memrealtime s[%d:%d]' % (sT0, sT1)); A('@waitlgkm_all')
            for k in range(1, 12): A('v_mov_b32 %s, %s' % (v(vE + k), s(sST + k) if k < 10 or k == 11 else s(sST + k)))
            A('v_mov_b32 %s, s3' % v(vE)); A('v_mov_b32 %s, %s' % (v(vE + 12), s(sT0))); A('v_mov_b32 %s, %s' % (v(vE + 13), s(sST)))
            A('s_lshl_b32 %s, s2, 2' % s(sT2)); A('s_add_u32 %s, %s, %s' % (s(sT2), s(sT2), s(sW))); A('s_lshl_b32 %s, %s, 6' % (s(sT2), s(sT2)))
            A('s_add_u32 %s, %s, %d' % (s(sT2), s(sT2), WS_STAMP))
            A('s_mov_b64 exec, 1')
            if self.cfg.dbgstamps:
                A('v_not_b32 %s, %s' % (v(vE), v(vE)))
                A('global_atomic_umax %s, %s, s[%d:%d] offset:8' % (v(vZ), v(vE), sDBG, sDBG + 1))
                A('global_atomic_umax %s, %s, s[%d:%d] offset:12' % (v(vZ), v(vE + 12), sDBG, sDBG + 1))
                A('v_not_b32 %s, %s' % (v(vE), v(vE)))
                A('global_atomic_umax %s, %s, s[%d:%d] offset:16' % (v(vZ), v(vE), sDBG, sDBG + 1))
                for k in range(1, 12):
                    A('v_sub_u32 %s, %s, %s' % (v(vE + k), v(vE + k), v(vE + 13)))
                    A('global_atomic_umax %s, %s, s[%d:%d] offset:%d' % (v(vZ), v(vE + k), sDBG, sDBG + 1, 16 + 4 * k))
            for k in range(4): A('buffer_store_dwordx4 %s, %s, s[%d:%d], %s offen offset:%d' % (v(vE + 4 * k, 4), v(vZ), SWS, SWS + 3, s(sT2), 16 * k))
        A('L_end:'); A('s_endpgm')
        return L

    def build(self):
        c = self.cfg
        pro = self.prologue()
        if c.stamps:
            i = pro.index('@waitlgkm_all')
            pro = pro[:i + 1] + ['s_mov_b32 s3, s100'] + self.stamp(0) + pro[i + 1:]
        shared = pro + self.stream() + ['s_cmp_eq_u32 %s, 0' % s(sBR), 's_cbranch_scc1 L_brA']
        MK = '.set MARK_A, 0'
        main = finalize(shared + self.middle('B') + self.tail())
        alt = finalize(shared + [MK, 'L_brA:'] + self.middle('A') + ['s_branch L_join'])
        alt = alt[alt.index(MK) + 1:]
        side = []
        for br in 'BA': side += finalize(self.nonce_retry(br) + self.part_retry(br) + self.far(br))
        return main, alt, side

HEADER = open(__file__.rsplit('/', 1)[0] + '/header.txt').read() if '/' in __file__ else open('header.txt').read()

def generate(cfg):
    g = G(cfg)
    main, alt, side = g.build()
    body = main + alt + side
    txt = HEADER
    if cfg.extra_empty:
        txt += '; @launch kernel=%s grid=(256,1,1) block=(256,1,1) lds=163840\n; @launch kernel=empty_kernel grid=(256,1,1) block=(256,1,1) lds=0\n' % KNAME
    else:
        txt += '; @launch grid=(256,1,1) block=(256,1,1) lds=163840\n'
    txt += '.amdgcn_target "amdgcn-amd-amdhsa--gfx950"\n.text\n.globl %s\n.p2align 8\n.type %s,@function\n%s:\n' % (KNAME, KNAME, KNAME)
    txt += '\n'.join(('' if l.endswith(':') else '    ') + l for l in body) + '\n'
    if cfg.extra_empty:
        txt += '.globl empty_kernel\n.p2align 8\n.type empty_kernel,@function\nempty_kernel:\n    s_endpgm\n'
        txt += '.section .rodata,"a"\n.p2align 6\n.amdhsa_kernel empty_kernel\n  .amdhsa_next_free_vgpr 8\n  .amdhsa_next_free_sgpr 16\n  .amdhsa_accum_offset 8\n  .amdhsa_group_segment_fixed_size 0\n  .amdhsa_kernarg_size 80\n  .amdhsa_user_sgpr_count 2\n  .amdhsa_user_sgpr_kernarg_segment_ptr 1\n  .amdhsa_system_sgpr_workgroup_id_x 1\n.end_amdhsa_kernel\n'
    txt += '.section .rodata,"a"\n.p2align 6\n.amdhsa_kernel %s\n' % KNAME
    txt += '  .amdhsa_next_free_vgpr 512\n  .amdhsa_next_free_sgpr 102\n  .amdhsa_accum_offset 256\n  .amdhsa_group_segment_fixed_size 0\n'
    txt += '  .amdhsa_kernarg_size 80\n  .amdhsa_user_sgpr_count 2\n  .amdhsa_user_sgpr_kernarg_segment_ptr 1\n  .amdhsa_system_sgpr_workgroup_id_x 1\n.end_amdhsa_kernel\n'
    import subprocess, tempfile, os, re
    d = tempfile.mkdtemp()
    open(d + '/a.s', 'w').write(txt.replace('CODE_SPAN', '0x5000'))
    r = subprocess.run(['clang', '-x', 'assembler', '-target', 'amdgcn-amd-amdhsa', '-mcpu=gfx950', '-c', d + '/a.s', '-o', d + '/a.o'], capture_output=True, text=True)
    if r.returncode: raise Exception(r.stderr[:3000])
    r = subprocess.run(['llvm-readelf', '-S', d + '/a.o'], capture_output=True, text=True).stdout
    size = int(re.search(r'\.text\s+PROGBITS\s+\w+\s+\w+\s+(\w+)', r).group(1), 16)
    assert size < 32768 + 64
    sys.stderr.write('code bytes: %d\n' % size)
    return txt.replace('CODE_SPAN', hex(size - 64))

if __name__ == '__main__':
    cfg = Cfg()
    out = sys.argv[1]
    for kv in sys.argv[2:]:
        k, val = kv.split('='); setattr(cfg, k, eval(val))
    open(out, 'w').write(generate(cfg))
```

```python
import sys
from emit import finalize, interleave

KNAME = 'concat_heads__linear_attn_block__linear_kernel_hedgehog__prompt_kernel'

class Cfg:
    stamps = False
    force_global = False
    wv_b1 = 3
    part_pos = 0.0
    rot = True
    tfix = 0
    dbgstamps = False
    extra_empty = False
    pref_slots = 2

WS_XCC, WS_FLAG, WS_PART, WS_O, WS_STAMP = 4096, 8192, 65536, 2 << 20, 16 << 20
WS_BYTES = 32 << 20
L_WK, L_WV, L_MISC, L_WQ = 98304, 126976, 155648, 32768
L_WO_SHIFT = 36864
OOB = 0x40000000
sAX, sAW, sAWO, sBX, sBW, sPHI, sBWO, sOUT, sDBG, sWSP = 4, 6, 8, 10, 12, 14, 16, 18, 20, 22
SX, SW, SWO, SPHI, SWS, SOUT = 24, 28, 32, 36, 40, 44
sBR, sRB, sH, sW, sGID, sSLOT, sT0, sT1, sT2, sXCC = 48, 49, 50, 51, 52, 53, 54, 55, 56, 57
sN0, sN1 = 58, 59
sHI, sE28 = 60, 62
sXO, sWO_ = 64, 72
sM0X, sM0W = 80, 81
sSH, sCB, sRQ, sPB = 82, 83, 84, 85
sA, sB_, sC_, sD_ = 86, 87, 88, 89
sFAR, sSPIN = 72, 71
SPIN = ['s_add_u32 s71, s71, 1', 's_cmp_gt_u32 s71, 0x100000', 's_cbranch_scc1 L_end']
sST = 90
vL = 1
vXD, vWD, vWRq, vWRk, vZ = 2, 6, 7, 8, 9
vXR, vXR2 = 10, 14
vDUM, vT = 18, 19
vPH, vID, vC, vN = 20, 28, 36, 38
vK, vV, vP, vE, vKV, vT2 = 40, 72, 104, 136, 200, 232
vTAG, vL16 = 248, 249
vWO0, vOA = 250, 253
vSEL = 255
aX, aWR = 0, 224

def v(r, n=1): return 'v%d' % r if n == 1 else 'v[%d:%d]' % (r, r + n - 1)
def a(r, n=1): return 'a%d' % r if n == 1 else 'a[%d:%d]' % (r, r + n - 1)
def s(r, n=1): return 's%d' % r if n == 1 else 's[%d:%d]' % (r, r + n - 1)
MF = 'v_mfma_f32_32x32x16_bf16'
def mfma(d, x, y, c): return '%s %s, %s, %s, %s' % (MF, v(d, 16), x, y, v(c, 16) if c is not None else '0')

class G:
    def __init__(self, cfg):
        self.cfg = cfg; self.nst = 0
    def stamp(self, k):
        if not self.cfg.stamps: return []
        return ['@waitlgkm_all', 's_memtime s[%d:%d]' % (sT0, sT1), '@waitlgkm_all', 's_mov_b32 s%d, s%d' % (sST + k, sT0)]

    def prologue(self):
        c = self.cfg; L = []; A = L.append
        A('s_load_dwordx16 s[4:19], s[0:1], 0')
        A('s_load_dwordx4 s[20:23], s[0:1], 64')
        if c.stamps or c.tfix: A('s_memrealtime s[100:101]')
        A('s_cmp_ge_u32 s2, 256'); A('s_cbranch_scc1 L_end')
        A('s_lshr_b32 %s, s2, 3' % s(sSLOT))
        A('s_cmp_lt_u32 %s, %d' % (s(sSLOT), c.pref_slots)); A('s_cselect_b32 %s, CODE_SPAN, 0' % s(sT2))
        A('s_getpc_b64 s[%d:%d]' % (sT0, sT1))
        A('v_lshlrev_b32 %s, 7, v0' % v(vT))
        A('v_min_u32 %s, %s, %s' % (v(vT), s(sT2), v(vT)))
        L.append(('global_load_dword %s, %s, s[%d:%d]' % (v(vDUM), v(vT), sT0, sT1), 'pref'))
        A('s_getreg_b32 %s, hwreg(HW_REG_XCC_ID, 0, 4)' % s(sXCC))
        A('v_lshrrev_b32 %s, 6, v0' % v(vT)); A('v_and_b32 %s, 63, v0' % v(vL))
        A('v_readfirstlane_b32 %s, %s' % (s(sW), v(vT)))
        A('s_bfe_u32 %s, s2, 0x10002' % s(sBR))
        A('s_and_b32 %s, s2, 3' % s(sRB)); A('s_lshl_b32 %s, %s, 1' % (s(sRB), s(sRB)))
        A('s_lshr_b32 %s, %s, 4' % (s(sT2), s(sSLOT))); A('s_add_u32 %s, %s, %s' % (s(sRB), s(sRB), s(sT2)))
        A('s_and_b32 %s, %s, 15' % (s(sH), s(sSLOT)))
        A('s_mul_i32 %s, %s, 3' % (s(sT2), s(sT2))); A('s_add_u32 %s, %s, %s' % (s(sA), s(sH), s(sT2)))
        A('s_mul_i32 %s, %s, 37' % (s(sB_), s(sA))); A('s_lshr_b32 %s, %s, 8' % (s(sB_), s(sB_)))
        A('s_mul_i32 %s, %s, 7' % (s(sB_), s(sB_))); A('s_sub_u32 %s, %s, %s' % (s(sA), s(sA), s(sB_)))
        if not c.rot: A('s_mov_b32 %s, 0' % s(sA))
        A('s_lshl_b32 %s, %s, 2' % (s(sB_), s(sRB))); A('s_add_u32 %s, %s, %s' % (s(sB_), s(sB_), s(sW)))
        A('s_mul_i32 %s, %s, %d' % (s(sB_), s(sB_), 64 * 896))
        A('s_cmp_eq_u32 %s, 15' % s(sH)); A('s_cselect_b32 %s, 8, 0' % s(sSH))
        A('s_mul_i32 %s, %s, 56' % (s(sC_), s(sH))); A('s_sub_u32 %s, %s, %s' % (s(sC_), s(sC_), s(sSH)))
        A('s_mul_i32 %s, %s, %d' % (s(sD_), s(sW), 16 * 2688)); A('s_add_u32 %s, %s, %s' % (s(sC_), s(sC_), s(sD_)))
        for i in range(7):
            A('s_lshl_b32 %s, %s, 7' % (s(sD_), s(sA))); A('s_add_u32 %s, %s, %s' % (s(sXO + i), s(sB_), s(sD_)))
            A('s_mul_i32 %s, %s, %d' % (s(sD_), s(sA), 64 * 2688)); A('s_add_u32 %s, %s, %s' % (s(sWO_ + i), s(sC_), s(sD_)))
            if i < 6:
                A('s_add_u32 %s, %s, 1' % (s(sA), s(sA))); A('s_cmp_eq_u32 %s, 7' % s(sA)); A('s_cselect_b32 %s, 0, %s' % (s(sA), s(sA)))
        A('s_mov_b32 %s, 0' % s(sSPIN))
        A('s_lshl_b32 %s, %s, 13' % (s(sM0X), s(sW))); A('s_lshl_b32 %s, %s, 10' % (s(sM0W), s(sW)))
        t0, t1, t2 = vT2, vT2 + 1, vT2 + 2
        A('v_lshrrev_b32 %s, 3, %s' % (v(t0), v(vL))); A('v_mul_u32_u24 %s, 896, %s' % (v(t0), v(t0)))
        A('v_lshrrev_b32 %s, 4, %s' % (v(t1), v(vL))); A('v_and_b32 %s, 7, %s' % (v(t2), v(vL)))
        A('v_xor_b32 %s, %s, %s' % (v(t2), v(t1), v(t2)))
        A('v_lshl_add_u32 %s, %s, 4, %s' % (v(vXD), v(t2), v(t0)))
        A('v_xor_b32 %s, 4, %s' % (v(t2), v(t2))); A('v_lshl_add_u32 %s, %s, 4, %s' % (v(vXD + 1), v(t2), v(t0)))
        A('v_add_u32 %s, %d, %s' % (v(vXD + 2), 2 * 6144, v(vXD))); A('v_add_u32 %s, %d, %s' % (v(vXD + 3), 3 * 6144, v(vXD + 1)))
        A('v_add_u32 %s, %d, %s' % (v(vXD + 1), 6144, v(vXD + 1)))
        A('v_lshrrev_b32 %s, 2, %s' % (v(t0), v(vL))); A('v_mul_u32_u24 %s, 2688, %s' % (v(t0), v(t0)))
        A('v_and_b32 %s, 3, %s' % (v(t2), v(vL))); A('v_lshl_add_u32 %s, %s, 4, %s' % (v(vWD), v(t2), v(t0)))
        A('@waitlgkm_all')
        A('s_cmp_eq_u32 %s, 0' % s(sBR))
        for (srd, pa, pb, n) in ((SX, sAX, sBX, 1835008), (SW, sAW, sBW, 1204224), (SWO, sAWO, sBWO, 401408)):
            A('s_cselect_b32 %s, %s, %s' % (s(srd), s(pa), s(pb))); A('s_cselect_b32 %s, %s, %s' % (s(srd + 1), s(pa + 1), s(pb + 1)))
            A('s_mov_b32 %s, %d' % (s(srd + 2), n)); A('s_mov_b32 %s, 0x20000' % s(srd + 3))
        A('s_cselect_b32 %s, 0, 25088' % s(SPHI + 2))
        L += self.dma_x(0) + self.dma_w(0, 1, L_WK, 'wk0')
        A('s_mov_b32 %s, %s' % (s(SPHI), s(sPHI))); A('s_mov_b32 %s, %s' % (s(SPHI + 1), s(sPHI + 1))); A('s_mov_b32 %s, 0x20000' % s(SPHI + 3))
        for (srd, p, n) in ((SWS, sWSP, WS_BYTES), (SOUT, sOUT, 3670016)):
            A('s_mov_b32 %s, %s' % (s(srd), s(p))); A('s_mov_b32 %s, %s' % (s(srd + 1), s(p + 1)))
            A('s_mov_b32 %s, %d' % (s(srd + 2), n)); A('s_mov_b32 %s, 0x20000' % s(srd + 3))
        L += self.dma_x(1) + self.dma_w(1, 1, L_WK, 'wk1') + self.dma_x(2)
        for i in range(2, 7): L += self.dma_w(i, 1, L_WK, 'wk%d' % i)
        A('s_or_b32 %s, s2, %s' % (s(sT2), s(sW))); A('s_cmp_lg_u32 %s, 0' % s(sT2)); A('s_cbranch_scc1 L_nononce')
        A('s_load_dwordx2 s[%d:%d], s[%d:%d], 0' % (sT0, sT1, sWSP, sWSP + 1))
        A('v_mov_b32 %s, 0' % v(vZ))
        A('@waitlgkm_all')
        A('s_add_u32 %s, %s, 0x9e3679b8' % (s(sT0), s(sT0))); A('s_add_u32 %s, %s, 0x85eaca6a' % (s(sT1), s(sT1)))
        for r in (sT0, sT1):
            A('s_or_b32 %s, %s, 0x00010001' % (s(r), s(r))); A('s_and_b32 %s, %s, 0xbfffbfff' % (s(r), s(r)))
        A('v_mov_b32 %s, %s' % (v(vN), s(sT0))); A('v_mov_b32 %s, %s' % (v(vN + 1), s(sT1)))
        A('s_mov_b64 exec, 1')
        L.append(('global_store_dwordx2 %s, %s, s[%d:%d] sc1 ; untracked' % (v(vZ), v(vN, 2), sDBG, sDBG + 1), 'untracked'))
        L.append(('global_store_dwordx2 %s, %s, s[%d:%d] sc1 ; untracked' % (v(vZ), v(vN, 2), sWSP, sWSP + 1), 'untracked'))
        A('s_mov_b64 exec, -1')
        A('L_nononce:')
        A('v_mov_b32 %s, 0' % v(vZ))
        m, hi, t3, t4 = vT2 + 3, vT2 + 4, vT2 + 5, vT2 + 6
        A('v_and_b32 %s, 31, %s' % (v(m), v(vL))); A('v_lshrrev_b32 %s, 5, %s' % (v(hi), v(vL)))
        A('v_lshrrev_b32 %s, 3, %s' % (v(t0), v(m))); A('v_and_b32 %s, 3, %s' % (v(t1), v(m)))
        A('v_lshl_add_u32 %s, %s, 2, %s' % (v(t0), v(t0), v(t1)))
        A('v_lshrrev_b32 %s, 4, %s' % (v(t1), v(m))); A('v_sub_u32 %s, %s, %s' % (v(t0), v(t0), v(t1)))
        A('v_bfe_u32 %s, %s, 2, 1' % (v(t1), v(m))); A('v_mad_u32_u24 %s, %s, 14, %s' % (v(t0), v(t1), v(t0)))
        A('v_and_b32 %s, 11, %s' % (v(t1), v(m))); A('v_cmp_eq_u32 vcc, 11, %s' % v(t1))
        A('v_mov_b32 %s, 0x%x' % (v(t2), OOB))
        A('v_mul_u32_u24 %s, 224, %s' % (v(t3), v(hi))); A('v_lshl_add_u32 %s, %s, 1, %s' % (v(t3), v(t0), v(t3)))
        A('v_cndmask_b32_e64 %s, %s, %s, vcc' % (v(t3), v(t3), v(t2)))
        A('v_cndmask_b32_e64 %s, %s, 63, vcc' % (v(t0), v(t0)))
        A('v_cmp_lt_u32_e64 s[%d:%d], 31, %s' % (sHI, sHI + 1, v(vL)))
        A('v_cmp_eq_u32_e64 s[%d:%d], 28, %s' % (sE28, sE28 + 1, v(m)))
        A('v_cndmask_b32_e64 %s, %s, %s, s[%d:%d]' % (v(t4), v(t3), v(t2), sHI, sHI + 1))
        A('s_mul_i32 %s, %s, 1568' % (s(sT2), s(sH)))
        for t in range(2):
            for j in range(8):
                d = 16 * t + 8 * (j >> 2) + (j & 3)
                L.append(('buffer_load_ushort %s, %s, s[%d:%d], %s offen offset:%d' % (v(vP + 8 * t + j),
                          v(t4 if (t == 1 and j >= 4) else t3), SPHI, SPHI + 3, s(sT2), d * 56), 'phi'))
        def selector(dst, tgt):
            R = []
            x, y, z = vT2 + 8, vT2 + 9, vT2 + 10
            R.append('v_lshrrev_b32 %s, 3, %s' % (v(x), v(tgt))); R.append('v_bfe_u32 %s, %s, 1, 1' % (v(y), v(tgt)))
            R.append('v_lshl_add_u32 %s, %s, 1, %s' % (v(x), v(x), v(y)))
            R.append('v_and_b32 %s, 1, %s' % (v(y), v(tgt))); R.append('v_lshlrev_b32 %s, 4, %s' % (v(y), v(y)))
            R.append('v_mov_b32 %s, 0x3f80' % v(z)); R.append('v_lshlrev_b32 %s, %s, %s' % (v(z), v(y), v(z)))
            R.append('v_bfe_u32 %s, %s, 2, 1' % (v(y), v(tgt))); R.append('v_cmp_eq_u32 vcc, %s, %s' % (v(y), v(hi)))
            R.append('v_cndmask_b32_e64 %s, 15, %s, vcc' % (v(x), v(x)))
            for i in range(8):
                R.append('v_cmp_eq_u32 vcc, %d, %s' % (i, v(x))); R.append('v_cndmask_b32_e64 %s, 0, %s, vcc' % (v(dst + i), v(z)))
            return R
        L += selector(vID, m)
        L += selector(vE, t0)
        A('v_bfe_u32 %s, %s, 1, 3' % (v(t1), v(m))); A('v_xor_b32 %s, %s, %s' % (v(t1), v(t1), v(hi)))
        A('v_lshl_add_u32 %s, %s, 7, %s' % (v(t2), v(m), s(sM0X)))
        for ks in range(4):
            A('v_xor_b32 %s, %d, %s' % (v(t3), 2 * ks, v(t1))); A('v_lshl_add_u32 %s, %s, 4, %s' % (v(vXR + ks), v(t3), v(t2)))
            A('v_add_u32 %s, 0x10000, %s' % (v(vXR2 + ks), v(vXR + ks)))
        A('v_bfe_u32 %s, %s, 2, 2' % (v(t1), v(vL))); A('v_lshlrev_b32 %s, 6, %s' % (v(t2), v(t1)))
        A('v_lshl_add_u32 %s, %s, 9, %s' % (v(t2), v(hi), v(t2)))
        A('v_bfe_u32 %s, %s, 4, 1' % (v(t3), v(vL))); A('v_and_b32 %s, 3, %s' % (v(t4), v(vL)))
        A('v_lshlrev_b32 %s, 3, %s' % (v(t4), v(t4))); A('v_lshl_add_u32 %s, %s, 5, %s' % (v(t4), v(t3), v(t4)))
        A('v_add3_u32 %s, %s, %s, %s' % (v(t2), v(t2), v(t4), s(sSH)))
        A('v_add_u32 %s, %d, %s' % (v(vWRq), L_WQ, v(t2))); A('v_add_u32 %s, %d, %s' % (v(vWRk), L_WK, v(t2)))
        A('v_xor_b32 %s, %s, %s' % (v(t3), s(sW), v(t1))); A('v_lshl_add_u32 %s, %s, 6, %s' % (v(t4), v(t3), v(t4)))
        A('v_lshl_add_u32 %s, %s, 8, %s' % (v(t4), v(t1), v(t4))); A('v_lshl_add_u32 %s, %s, 10, %s' % (v(vWO0), v(hi), v(t4)))
        A('v_add_u32 %s, 0x10000, %s' % (v(vWO0 + 1), v(vWO0))); A('v_add_u32 %s, 0x20000, %s' % (v(vWO0 + 2), v(vWO0)))
        A('v_lshlrev_b32 %s, 4, %s' % (v(vL16), v(vL)))
        A('v_mov_b32 %s, 0x3fb8aa3b' % v(vC)); A('v_mov_b32 %s, 0x3fb8aa3b' % v(vC + 1))
        A('s_lshl_b32 %s, %s, 3' % (s(sGID), s(sBR))); A('s_add_u32 %s, %s, %s' % (s(sGID), s(sGID), s(sRB)))
        A('s_and_b32 %s, %s, 3' % (s(sCB), s(sH))); A('s_lshr_b32 %s, %s, 2' % (s(sRQ), s(sH)))
        A('v_and_b32 %s, 1, %s' % (v(t1), v(vL))); A('v_lshlrev_b32 %s, 3, %s' % (v(t2), v(t1))); A('v_add_u32 %s, %s, %s' % (v(t2), v(t2), v(hi)))
        A('v_mul_u32_u24 %s, %d, %s' % (v(t2), 4 * 1792, v(t2))); A('v_and_b32 %s, 30, %s' % (v(t3), v(vL)))
        A('v_lshl_add_u32 %s, %s, 1, %s' % (v(t2), v(t3), v(t2)))
        A('s_lshl_b32 %s, %s, 2' % (s(sT2), s(sCB))); A('s_add_u32 %s, %s, %s' % (s(sT2), s(sT2), s(sW)))
        A('s_cmp_ge_u32 %s, 14' % s(sT2)); A('s_cselect_b32 %s, 0x%x, 0' % (s(sT2), OOB))
        A('v_add_u32 %s, %s, %s' % (v(vOA), s(sT2), v(t2))); A('v_add_u32 %s, %d, %s' % (v(vOA + 1), 2 * 1792, v(vOA)))
        A('v_cmp_eq_u32 vcc, 1, %s' % v(t1)); A('v_mov_b32 %s, 0x05040100' % v(t2)); A('v_mov_b32 %s, 0x03020706' % v(t3))
        A('v_cndmask_b32_e64 %s, %s, %s, vcc' % (v(vSEL), v(t2), v(t3)))
        return L

    def dma_x(self, i):
        L = []
        for tile in range(2):
            L.append('s_add_u32 m0, %s, %d' % (s(sM0X), (i % 3) * 32768 + tile * 4096))
            if tile: L.append('s_add_u32 %s, %s, 28672' % (s(sXO + i), s(sXO + i)))
            for j in range(4):
                L.append(('buffer_load_dwordx4 %s, s[%d:%d], %s offen offset:%d lds' % (v(vXD + j), SX, SX + 3, s(sXO + i), 1024 * j), 'x%d' % i))
        return L
    def dma_w(self, i, part, base, tag):
        return ['s_add_u32 m0, %s, %d' % (s(sM0W), base + i * 4096),
                's_add_u32 %s, %s, %d' % (s(sT2), s(sWO_ + i), part * 896),
                ('buffer_load_dwordx4 %s, s[%d:%d], %s offen lds' % (v(vWD), SW, SW + 3, s(sT2)), tag)]
    def xfrag(self, i, ks, tile): return aX + ((i * 4 + ks) * 2 + tile) * 4
    def wread(self, slot, basev, off):
        r = aWR + 4 * (slot % 8)
        return ['ds_read_b64_tr_b16 %s, %s offset:%d' % (a(r + 2 * u, 2), v(basev), off + 256 * u) for u in range(2)]

    def stream(self):
        L = []; A = L.append
        for i in range(7):
            A('@waitvm x%d wk%d' % (i, i)); A('s_barrier')
            if i == 0: L += self.stamp(1)
            sl = i % 3
            for ks in range(4):
                for tile in range(2):
                    L.append(('ds_read_b128 %s, %s offset:%d' % (a(self.xfrag(i, ks, tile), 4), v((vXR2 if sl == 2 else vXR) + ks), (sl & 1) * 32768 + tile * 4096), 'xr'))
            for ks in range(4): L += self.wread(4 * i + ks, vWRk, i * 4096 + ks * 1024)
            A('@waitlgkm xr')
            D = []
            if i + 3 < 7: D = self.dma_x(i + 3)
            if i == 3:
                D += ['v_lshl_or_b32 %s, %s, 16, %s' % (v(vPH + u), v(vP + 2 * u + 1), v(vP + 2 * u)) for u in range(8)]
            if i == 4:
                D.append(('global_load_dwordx2 %s, %s, s[%d:%d] sc1' % (v(vN, 2), v(vZ), sDBG, sDBG + 1), 'nonce'))
                for k in range(7): D += self.dma_w(k, 2, L_WV, 'wv%d' % k)
            if i == 5:
                for k in range(7): D += self.dma_w(k, 0, L_WQ, 'wq')
            M = []
            for ks in range(4):
                for tile in range(2):
                    M.append(mfma(vK + 16 * tile, a(aWR + 4 * ((4 * i + ks) % 8), 4), a(self.xfrag(i, ks, tile), 4), None if (i == 0 and ks == 0) else vK + 16 * tile))
            L += interleave(D, M) if D else M
        return L

    def gemm(self, acc, basev, off, transposed, first_slot):
        R = []
        for k in range(28):
            w = a(aWR + 4 * ((first_slot + k) % 8), 4)
            ms = []
            for tile in range(2):
                x = a(self.xfrag(k // 4, k % 4, tile), 4)
                ms.append(mfma(acc + 16 * tile, w if transposed else x, x if transposed else w, None if k == 0 else acc + 16 * tile))
            R.append((self.wread(first_slot + k, basev, off + k * 1024), ms))
        return R
    def gemm_stream(self, groups, ahead=3, hooks=None):
        L = []
        hooks = hooks or {}
        n = len(groups)
        for k in range(n + ahead):
            if k in hooks: L += hooks[k]
            if k < n: L += groups[k][0]
            if k >= ahead: L += groups[k - ahead][1]
        return L

    def pack(self, r, n=8): return ['v_cvt_pk_bf16_f32 %s, %s, %s' % (v(r + u), v(r + 2 * u), v(r + 2 * u + 1)) for u in range(n)]
    def zero_hi_pads(self, r): return ['v_cndmask_b32_e64 %s, %s, 0, s[%d:%d]' % (v(r + u), v(r + u), sHI, sHI + 1) for u in (6, 7)]

    def softmax(self, p, ep, en, tmp):
        L = []; A = L.append
        Z, T, S1, S2 = tmp, tmp + 2, tmp + 4, tmp + 6
        for r in (ep + 7, ep + 15, en + 7, en + 15): A('v_mov_b32 %s, 0' % v(r))
        for (d, sg) in ((Z, ''), (T, '-')):
            A('v_max3_f32 %s, %s%s, %s%s, %s%s' % (v(d), sg, v(p), sg, v(p + 1), sg, v(p + 2)))
        for (x, y) in ((3, 4), (5, 6), (8, 9), (10, 11), (12, 13)):
            for (d, sg) in ((Z, ''), (T, '-')):
                A('v_max3_f32 %s, %s, %s%s, %s%s' % (v(d), v(d), sg, v(p + x), sg, v(p + y)))
        for (d, sg) in ((Z, ''), (T, '-')): A('v_max_f32_e64 %s, %s, %s%s' % (v(d), v(d), sg, v(p + 14)))
        A('v_permlane32_swap_b32 %s, %s' % (v(Z), v(T))); A('v_max_f32 %s, %s, %s' % (v(Z), v(Z), v(T)))
        A('v_mul_f32 %s, %s, %s' % (v(Z), v(vC), v(Z))); A('v_mov_b32 %s, %s' % (v(T), v(Z)))
        A('v_permlane32_swap_b32 %s, %s' % (v(Z), v(T)))
        for (e, z, ng) in ((ep, Z, 0), (en, T, 1)):
            for u in (0, 2, 4, 6, 8, 10, 12, 14):
                if u in (6, 14):
                    A('v_fma_f32 %s, %s%s, %s, -%s' % (v(e + u), '-' if ng else '', v(p + u), v(vC), v(z)))
                    A('v_exp_f32 %s, %s' % (v(e + u), v(e + u)))
                else:
                    A('v_pk_fma_f32 %s, %s, %s, %s op_sel_hi:[1,1,0] neg_lo:[%d,0,1] neg_hi:[%d,0,1]' % (v(e + u, 2), v(p + u, 2), v(vC, 2), v(z, 2), ng, ng))
                    A('v_exp_f32 %s, %s' % (v(e + u), v(e + u))); A('v_exp_f32 %s, %s' % (v(e + u + 1), v(e + u + 1)))
        for (e, S) in ((ep, S1), (en, S2)): A('v_pk_add_f32 %s, %s, %s' % (v(S, 2), v(e, 2), v(e + 2, 2)))
        for u in (4, 6, 8, 10, 12, 14):
            for (e, S) in ((ep, S1), (en, S2)): A('v_pk_add_f32 %s, %s, %s' % (v(S, 2), v(S, 2), v(e + u, 2)))
        A('v_add_f32 %s, %s, %s' % (v(Z), v(S1), v(S1 + 1))); A('v_add_f32 %s, %s, %s' % (v(T), v(S2), v(S2 + 1)))
        A('v_permlane32_swap_b32 %s, %s' % (v(Z), v(T))); A('v_add_f32 %s, %s, %s' % (v(Z), v(Z), v(T)))
        A('v_rcp_f32 %s, %s' % (v(Z), v(Z))); A('v_mov_b32 %s, %s' % (v(T), v(Z)))
        A('v_permlane32_swap_b32 %s, %s' % (v(Z), v(T)))
        for (e, z) in ((ep, Z), (en, T)):
            for u in range(8):
                A('v_pk_mul_f32 %s, %s, %s op_sel_hi:[1,0]' % (v(e + 2 * u, 2), v(e + 2 * u, 2), v(z, 2)))
                A('v_cvt_pk_bf16_f32 %s, %s, %s' % (v(e + u), v(e + 2 * u), v(e + 2 * u + 1)))
        return L

    def elu1(self, p, e, pads):
        L = []; A = L.append
        for u in range(0, 16, 2):
            single = pads and u in (6, 14)
            if single:
                A('v_mov_b32 %s, 0' % v(e + u + 1))
                A('v_mul_f32 %s, %s, %s' % (v(e + u), v(vC), v(p + u)))
            else: A('v_pk_mul_f32 %s, %s, %s' % (v(e + u, 2), v(p + u, 2), v(vC, 2)))
            for k in range(1 if single else 2):
                A('v_exp_f32_e64 %s, %s clamp' % (v(e + u + k), v(e + u + k)))
                A('v_max_f32 %s, 0x358637bd, %s' % (v(p + u + k), v(p + u + k)))
            if single: A('v_add_f32 %s, %s, %s' % (v(e + u), v(e + u), v(p + u)))
            else: A('v_pk_add_f32 %s, %s, %s' % (v(e + u, 2), v(e + u, 2), v(p + u, 2)))
            A('v_cvt_pk_bf16_f32 %s, %s, %s' % (v(e + u // 2), v(e + u), v(e + u + 1)))
        return L

    def get_nonce(self, br):
        L = []; A = L.append
        A('@waitvm nonce')
        A('L_nonce_chk%s:' % br)
        A('v_readfirstlane_b32 %s, %s' % (s(sN0), v(vN))); A('v_readfirstlane_b32 %s, %s' % (s(sN1), v(vN + 1)))
        A('s_min_u32 %s, %s, %s' % (s(sT2), s(sN0), s(sN1))); A('s_cmp_eq_u32 %s, 0' % s(sT2)); A('s_cbranch_scc1 L_nonce_retry%s' % br)
        t0, t1 = vT2 + 14, vT2 + 15
        A('v_and_b32 %s, 2, %s' % (v(t0), v(vL))); A('v_cmp_eq_u32 vcc, 0, %s' % v(t0))
        A('v_cndmask_b32_e64 %s, %s, %s, vcc' % (v(t0), v(vN + 1), v(vN)))
        A('v_and_b32 %s, 1, %s' % (v(t1), v(vL))); A('v_cmp_eq_u32 vcc, 0, %s' % v(t1))
        A('v_lshlrev_b32 %s, 16, %s' % (v(t1), v(t0))); A('v_and_b32 %s, 0xffff0000, %s' % (v(t0), v(t0)))
        A('v_cndmask_b32_e64 %s, %s, %s, vcc' % (v(vTAG), v(t0), v(t1)))
        A('s_and_b32 %s, %s, 0xfffffff0' % (s(sT2), s(sN1))); A('s_or_b32 %s, %s, %s' % (s(sXCC), s(sXCC), s(sT2)))
        A('v_mov_b32 %s, %s' % (v(vN + 1), s(sXCC)))
        A('s_lshl_b32 %s, %s, 4' % (s(sT2), s(sGID))); A('s_add_u32 %s, %s, %s' % (s(sPB), s(sT2), s(sH)))
        A('s_lshl_b32 %s, %s, 3' % (s(sT2), s(sPB))); A('s_add_u32 %s, %s, %d' % (s(sT2), s(sT2), WS_XCC))
        A('v_cmp_eq_u32 vcc, 0, v0'); A('v_mov_b32 %s, 0x%x' % (v(t0), OOB)); A('v_cndmask_b32_e64 %s, %s, 0, vcc' % (v(vT), v(t0)))
        L.append(('buffer_store_dwordx2 %s, %s, s[%d:%d], %s offen sc1' % (v(vN, 2), v(vT), SWS, SWS + 3, s(sT2)), 'xccst'))
        A('s_lshl_b32 %s, %s, 14' % (s(sT2), s(sPB))); A('s_lshl_b32 %s, %s, 12' % (s(sA), s(sW))); A('s_add_u32 %s, %s, %s' % (s(sA), s(sA), s(sT2)))
        A('s_add_u32 %s, %s, %d' % (s(sA), s(sA), WS_O))
        A('v_and_b32 %s, 31, %s' % (v(t0), v(vL))); A('v_lshlrev_b32 %s, 7, %s' % (v(t0), v(t0)))
        L.append(('buffer_load_dword %s, %s, s[%d:%d], %s offen sc1' % (v(vDUM), v(t0), SWS, SWS + 3, s(sA)), 'pre'))
        A('s_lshl_b32 %s, %s, 7' % (s(sB_), s(sGID))); A('s_add_u32 %s, %s, %d' % (s(sB_), s(sB_), WS_FLAG))
        L.append(('buffer_load_dword %s, %s, s[%d:%d], %s offen sc1' % (v(vDUM), v(vZ), SWS, SWS + 3, s(sB_)), 'pre'))
        return L
    def nonce_retry(self, br):
        return ['L_nonce_retry%s:' % br, '@assume_idle', 's_sleep 1'] + SPIN + [
                'global_load_dwordx2 %s, %s, s[%d:%d] sc1' % (v(vN, 2), v(vZ), sDBG, sDBG + 1), '@waitvm_all', 's_branch L_nonce_chk%s' % br]

    def middle(self, br):
        c = self.cfg; B = br == 'B'; NT = 2 if B else 1
        L = []; A = L.append
        L += self.stamp(2)
        if not B:
            for i in range(8): A('v_mov_b32 %s, %s' % (v(vPH + i), v(vE + i)))
        head = []
        for tile in range(2): head += self.pack(vK + 16 * tile) + self.zero_hi_pads(vK + 16 * tile)
        for t in range(2):
            for tile in range(2):
                k4 = v(vK + 16 * tile + 4 * t, 4); w4 = v(vPH + 4 * t, 4)
                head.append(mfma(vP + 16 * tile, w4 if B else k4, k4 if B else w4, None if t == 0 else vP + 16 * tile))
        L += head
        L += self.get_nonce(br)
        if B: body = interleave(self.softmax(vP, vE, vE + 16, vT2), self.softmax(vP + 16, vE + 32, vE + 48, vT2 + 8))
        else: body = interleave(self.elu1(vP, vE, False), self.elu1(vP + 16, vE + 32, False))
        b1 = c.wv_b1
        hooks = {0: ['@waitvm ' + ' '.join('wv%d' % k for k in range(b1)), 's_barrier'],
                 4 * b1: ['@waitvm ' + ' '.join('wv%d' % k for k in range(b1, 7)), 's_barrier']}
        g = self.gemm_stream(self.gemm(vV, vWRk, L_WV - L_WK, False, 0), 3, hooks)
        L += interleave(body, g) if B else (body + g)
        L += self.stamp(3)
        tn = lambda tile, sg: (vP if sg == 0 else vK) + 16 * tile
        if B:
            for t in range(2):
                for tile in range(2):
                    for sg in range(2):
                        A(mfma(tn(tile, sg), v(vE + 32 * tile + 16 * sg + 4 * t, 4), v(vID + 4 * t, 4), None if t == 0 else tn(tile, sg)))
        for tile in range(2): L += self.pack(vV + 16 * tile)
        A('v_mov_b32 %s, 0x3f803f80' % v(vT2))
        for tile in range(2):
            for u in range(8): A('v_cndmask_b32_e64 %s, %s, %s, s[%d:%d]' % (v(vV + 16 * tile + u), v(vV + 16 * tile + u), v(vT2), sE28, sE28 + 1))
        for tile in range(2):
            for sg in range(NT):
                src = tn(tile, sg) if B else vE + 32 * tile
                if B: L += self.pack(src)
                for t in range(2):
                    A(mfma(vKV + 16 * sg, v(src + 4 * t, 4), v(vV + 16 * tile + 4 * t, 4), None if (tile == 0 and t == 0) else vKV + 16 * sg))
        t0 = vT2 + 1
        A('v_add_u32 %s, %s, %s' % (v(t0), s(sM0X), v(vL16)))
        for q in range(4 * NT): A('ds_write_b128 %s, %s offset:%d' % (v(t0), v(vKV + 4 * q, 4), 1024 * q))
        A('s_and_b32 %s, %s, %d' % (s(sC_), s(sW), 3 if B else 1))
        A('s_lshl_b32 %s, %s, 11' % (s(sT2), s(sC_))); A('v_add_u32 %s, %s, %s' % (v(t0), s(sT2), v(vL16)))
        A('@waitlgkm_all'); A('s_barrier')
        for w in range(4):
            for hf in range(2): A('ds_read_b128 %s, %s offset:%d' % (v(vV + 8 * w + 4 * hf, 4), v(t0), 8192 * w + 1024 * hf))
        A('s_lshl_b32 %s, %s, 12' % (s(sT2), s(sPB))); A('s_lshl_b32 %s, %s, 10' % (s(sC_), s(sC_)))
        A('s_add_u32 %s, %s, %s' % (s(sT2), s(sT2), s(sC_))); A('s_add_u32 %s, %s, %d' % (s(sD_), s(sT2), WS_PART))
        if not B:
            A('s_cmp_ge_u32 %s, 2' % s(sW)); A('s_cselect_b32 %s, 0x%x, 0' % (s(sT2), OOB)); A('v_add_u32 %s, %s, %s' % (v(vT2 + 2), s(sT2), v(vL16)))
        for (x, y) in ((0, 8), (16, 24), (0, 16)):
            for u in range(0, 8, 2): A('v_pk_add_f32 %s, %s, %s' % (v(vV + x + u, 2), v(vV + x + u, 2), v(vV + y + u, 2)))
        A('v_mov_b32 %s, 0xffff' % v(vT2))
        L += self.pack(vV, 4)
        A('v_bfi_b32 %s, %s, %s, %s' % (v(vV + 3), v(vT2), v(vV + 3), v(vTAG)))
        L.append(('buffer_store_dwordx4 %s, %s, s[%d:%d], %s offen sc1' % (v(vV, 4), v(vL16 if B else vT2 + 2), SWS, SWS + 3, s(sD_)), 'pst'))
        L += self.stamp(4)
        A('@waitvm wq'); A('s_barrier')
        t0, t1, t2 = vT2, vT2 + 1, vT2 + 2
        A('v_lshrrev_b32 %s, 4, %s' % (v(t0), v(vL))); A('v_bfe_u32 %s, %s, 2, 2' % (v(t1), v(vL))); A('v_xor_b32 %s, %s, %s' % (v(t1), v(t1), v(t0)))
        A('v_mul_u32_u24 %s, 896, %s' % (v(t0), v(t0))); A('v_lshl_add_u32 %s, %s, 6, %s' % (v(t0), v(t1), v(t0)))
        A('v_and_b32 %s, 3, %s' % (v(t2), v(vL))); A('v_lshl_add_u32 %s, %s, 4, %s' % (v(t0), v(t2), v(t0)))
        A('s_cmp_eq_u32 %s, 3' % s(sCB)); A('s_cselect_b32 %s, 1, 3' % s(sT2))
        A('v_cmp_lt_u32 vcc, %s, %s' % (s(sT2), v(t1))); A('v_mov_b32 %s, 0x%x' % (v(t2), OOB))
        A('v_cndmask_b32_e64 %s, %s, %s, vcc' % (v(vWD), v(t0), v(t2)))
        A('s_mul_i32 %s, %s, 3584' % (s(sD_), s(sW))); A('s_lshl_b32 %s, %s, 8' % (s(sT2), s(sCB))); A('s_add_u32 %s, %s, %s' % (s(sD_), s(sD_), s(sT2)))
        D = []
        for m in range(29):
            D.append(['s_add_u32 m0, %s, %d' % (s(sM0W), 4096 * m + (L_WO_SHIFT if m >= 7 else 0)),
                      's_add_u32 %s, %s, %d' % (s(sT2), s(sD_), 14336 * m),
                      ('buffer_load_dwordx4 %s, s[%d:%d], %s offen lds' % (v(vWD if m < 28 else t2), SWO, SWO + 3, s(sT2) if m < 28 else '0'), 'wo')])
        D[28][0:2] = ['s_add_u32 %s, %s, %d' % (s(sT2), s(sM0W), 4096 * 28 + L_WO_SHIFT), 's_cmp_eq_u32 %s, 1' % s(sW), 's_cselect_b32 m0, 28672, %s' % s(sT2)]
        hooks = {k: D[k] for k in range(29)}
        L += self.gemm_stream(self.gemm(vK, vWRq, 0, True, 4), 3, hooks)
        L += self.stamp(5)
        head = []
        for tile in range(2): head += self.pack(vK + 16 * tile) + self.zero_hi_pads(vK + 16 * tile)
        for t in range(2):
            for tile in range(2):
                head.append(mfma(vP + 16 * tile, v(vPH + 4 * t, 4), v(vK + 16 * tile + 4 * t, 4), None if t == 0 else vP + 16 * tile))
        if B: body = interleave(self.softmax(vP, vE, vE + 16, vT2), self.softmax(vP + 16, vE + 32, vE + 48, vT2 + 8))
        else: body = interleave(self.elu1(vP, vE, True), self.elu1(vP + 16, vE + 32, True))
        pre = ['s_lshl_b32 %s, %s, 7' % (s(sT2), s(sBR)), 's_add_u32 %s, %s, %s' % (s(sT2), s(sT2), s(sH)), 's_lshl_b32 %s, %s, 12' % (s(sT2), s(sT2)),
               's_add_u32 %s, %s, %s' % (s(sD_), s(sT2), s(sC_)), 's_add_u32 %s, %s, %d' % (s(sD_), s(sD_), WS_PART),
               'v_and_b32 %s, 15, %s' % (v(vWD), v(vL)), 'v_lshlrev_b32 %s, 3, %s' % (v(vWD), v(vWD))]
        full = head + body
        pos = int(len(full) * c.part_pos)
        L += pre + full[:pos] + self.part_loads() + full[pos:]
        L += self.stamp(6)
        A('@waitvm part')
        A('L_part_chk%s:' % br)
        G0 = vKV
        for p in range(8): A(mfma(vV, v(vID, 4), v(G0 + 4 * p, 4), None if p == 0 else vV))
        x, y, z = vT2, vT2 + 1, vT2 + 2
        A('v_max3_u32 %s, %s, %s, %s' % (v(x), v(G0 + 3), v(G0 + 7), v(G0 + 11))); A('v_min3_u32 %s, %s, %s, %s' % (v(y), v(G0 + 3), v(G0 + 7), v(G0 + 11)))
        A('v_max3_u32 %s, %s, %s, %s' % (v(x), v(x), v(G0 + 15), v(G0 + 19))); A('v_min3_u32 %s, %s, %s, %s' % (v(y), v(y), v(G0 + 15), v(G0 + 19)))
        A('v_max3_u32 %s, %s, %s, %s' % (v(x), v(x), v(G0 + 23), v(G0 + 27))); A('v_min3_u32 %s, %s, %s, %s' % (v(y), v(y), v(G0 + 23), v(G0 + 27)))
        A('v_max_u32 %s, %s, %s' % (v(x), v(x), v(G0 + 31))); A('v_min_u32 %s, %s, %s' % (v(y), v(y), v(G0 + 31)))
        A('v_xor_b32 %s, %s, %s' % (v(x), v(x), v(vTAG))); A('v_xor_b32 %s, %s, %s' % (v(y), v(y), v(vTAG)))
        A('v_or_b32 %s, %s, %s' % (v(x), v(x), v(y))); A('v_lshrrev_b32 %s, 16, %s' % (v(x), v(x)))
        A('v_xor_b32 %s, %s, %s' % (v(y), s(sN0), v(vN))); A('v_xor_b32 %s, %s, %s' % (v(z), s(sXCC), v(vN + 1)))
        A('v_cmp_ne_u32_e64 s[%d:%d], 0, %s' % (sFAR, sFAR + 1, v(z)))
        A('v_lshrrev_b32 %s, 4, %s' % (v(z), v(z))); A('v_or3_b32 %s, %s, %s, %s' % (v(x), v(x), v(y), v(z)))
        A('v_cmp_ne_u32 vcc, 0, %s' % v(x)); A('s_cbranch_vccnz L_part_retry%s' % br)
        A('v_add_u32 %s, %s, %s' % (v(y), s(sC_), v(vL16))); A('v_add_u32 %s, %d, %s' % (v(y), L_MISC, v(y))); A('v_add_u32 %s, %d, %s' % (v(z), L_MISC, v(vL16)))
        L += self.pack(vV, 4)
        A('v_and_b32 %s, 0xffff, %s' % (v(vV + 3), v(vV + 3)))
        A('ds_write_b128 %s, %s' % (v(y), v(vV, 4)))
        A('@waitlgkm_all'); A('s_barrier')
        for q in range(2 * NT): A('ds_read_b128 %s, %s offset:%d' % (v(vV + 16 + 4 * q, 4), v(z), 1024 * q))
        for q in range(2 * NT):
            for tile in range(2):
                A(mfma(vP + 16 * tile, v(vV + 16 + 4 * q, 4), v(vE + 32 * tile + 16 * (q >> 1) + 4 * (q & 1), 4), None if q == 0 else vP + 16 * tile))
        rd = self.wo_reads()
        L += rd[:12]
        o = []
        for tile in range(2):
            P = vP + 16 * tile; d = vT2 + 4 * tile; S = []
            S.append('v_mov_b32 %s, %s' % (v(d), v(P + 12))); S.append('v_permlane32_swap_b32 %s, %s' % (v(P + 12), v(d)))
            S.append('v_add_f32 %s, 0x358637bd, %s' % (v(d), v(d))); S.append('v_rcp_f32 %s, %s' % (v(d), v(d)))
            for u in range(8):
                S.append('v_pk_mul_f32 %s, %s, %s op_sel_hi:[1,0]' % (v(P + 2 * u, 2), v(P + 2 * u, 2), v(d, 2)))
                S.append('v_cvt_pk_bf16_f32 %s, %s, %s' % (v(P + u), v(P + 2 * u), v(P + 2 * u + 1)))
            S += self.zero_hi_pads(P)
            o.append(S)
        L += interleave(o[0], o[1])
        L += self.stamp(7)
        A('v_mov_b32 %s, %s' % (v(vN), s(sN0))); A('v_mov_b32 %s, %s' % (v(vN + 1), s(sN1)))
        A('s_lshl_b32 %s, %s, 3' % (s(sT2), s(sH))); A('s_add_u32 %s, %s, %s' % (s(sC_), s(sB_), s(sT2)))
        if c.force_global: A('s_branch L_far%s' % br)
        A('s_cmp_lg_u64 s[%d:%d], 0' % (sFAR, sFAR + 1)); A('s_cbranch_scc1 L_far%s' % br)
        L += self.publish('', rd[12:])
        return L
    def publish(self, fl, rd):
        L = []
        for tile in range(2):
            for t in range(2):
                L.append(('buffer_store_dwordx4 %s, %s, s[%d:%d], %s offen offset:%d %s' % (v(vP + 16 * tile + 4 * t, 4), v(vL16), SWS, SWS + 3, s(sA), 2048 * tile + 1024 * t, fl), 'ost'))
        L += rd
        L += ['@wait_all', 's_barrier']
        L.append('buffer_store_dwordx2 %s, %s, s[%d:%d], %s offen %s' % (v(vN, 2), v(vT), SWS, SWS + 3, s(sC_), fl))
        return L
    def part_loads(self):
        L = []
        for p in range(8):
            L.append('s_add_u32 %s, %s, %d' % (s(sT2), s(sD_), 65536 * p))
            L.append(('buffer_load_dwordx4 %s, %s, s[%d:%d], %s offen sc1' % (v(vKV + 4 * p, 4), v(vL16), SWS, SWS + 3, s(sT2)), 'part'))
        L.append('s_add_u32 %s, %s, %d' % (s(sT2), s(sB_), WS_XCC - WS_FLAG))
        L.append(('buffer_load_dwordx2 %s, %s, s[%d:%d], %s offen sc1' % (v(vN, 2), v(vWD), SWS, SWS + 3, s(sT2)), 'part'))
        return L
    def part_retry(self, br):
        return ['L_part_retry%s:' % br, '@assume_idle', 's_nop 15'] + SPIN + self.part_loads() + ['@waitvm_all', 's_branch L_part_chk%s' % br]
    def far(self, br):
        return ['L_far%s:' % br, '@assume_idle', 's_nop 4'] + self.publish('sc1', self.wo_reads()[12:]) + ['s_branch L_join']
    def wo_reads(self):
        L = []
        for h in range(16):
            for t in range(2):
                for u in range(2):
                    off = (28 * h + 16 * t + 8 * u) * 256 + (L_WO_SHIFT if h >= 4 else 0)
                    L.append('ds_read_b64_tr_b16 %s, %s offset:%d' % (a(4 * (2 * h + t) + 2 * u, 2), v(vWO0 + (off >> 16)), off & 0xffff))
        return L

    def tail(self):
        L = []; A = L.append
        A('L_join:')
        L += self.stamp(8)
        A('s_lshl_b32 %s, %s, 4' % (s(sT2), s(sGID))); A('s_add_u32 %s, %s, %s' % (s(sT2), s(sT2), s(sW))); A('s_lshl_b32 %s, %s, 2' % (s(sT2), s(sT2)))
        A('s_add_u32 %s, %s, %s' % (s(sT2), s(sT2), s(sRQ))); A('s_lshl_b32 %s, %s, 12' % (s(sT2), s(sT2))); A('s_add_u32 %s, %s, %d' % (s(sD_), s(sT2), WS_O))
        A('s_lshl_b32 %s, %s, 12' % (s(sC_), s(sW)))
        A('L_poll:')
        L += SPIN
        A('buffer_load_dwordx2 %s, %s, s[%d:%d], %s offen sc1' % (v(vT2, 2), v(vWD), SWS, SWS + 3, s(sB_)))
        A('v_xor_b32 %s, %s, %s' % (v(vT2), s(sN0), v(vT2))); A('v_xor_b32 %s, %s, %s' % (v(vT2 + 1), s(sN1), v(vT2 + 1)))
        A('v_or_b32 %s, %s, %s' % (v(vT2), v(vT2), v(vT2 + 1))); A('v_cmp_ne_u32 vcc, 0, %s' % v(vT2)); A('s_cbranch_vccnz L_poll')
        L += self.stamp(9)
        for st in range(4):
            A('s_add_u32 m0, %s, %d' % (s(sC_), 16384 * st)); A('s_add_u32 %s, %s, %d' % (s(sT2), s(sD_), 65536 * st))
            for j in range(4):
                L.append(('buffer_load_dwordx4 %s, s[%d:%d], %s offen offset:%d sc1 lds' % (v(vL16), SWS, SWS + 3, s(sT2), 1024 * j), 'o%d' % st))
        A('s_lshl_b32 %s, %s, 2' % (s(sT2), s(sRB))); A('s_add_u32 %s, %s, %s' % (s(sT2), s(sT2), s(sRQ))); A('s_mul_i32 %s, %s, %d' % (s(sD_), s(sT2), 64 * 1792))
        A('s_mul_i32 %s, %s, 896' % (s(sT2), s(sBR))); A('s_add_u32 %s, %s, %s' % (s(sD_), s(sD_), s(sT2)))
        A('s_lshl_b32 %s, %s, 2' % (s(sT2), s(sCB))); A('s_add_u32 %s, %s, %s' % (s(sT2), s(sT2), s(sW))); A('s_lshl_b32 %s, %s, 6' % (s(sT2), s(sT2)))
        A('s_add_u32 %s, %s, %s' % (s(sXO), s(sD_), s(sT2)))
        for b in range(1, 4): A('s_add_u32 %s, %s, %d' % (s(sXO + b), s(sXO), b * 8 * 1792))
        groups = []
        for k in range(32):
            h, t = k >> 1, k & 1
            rs = []; ms = []
            for rt in range(2):
                r = vE + 4 * ((2 * k + rt) % 8)
                rs.append('ds_read_b128 %s, %s offset:%d' % (v(r, 4), v(vL16), h * 4096 + rt * 2048 + t * 1024))
                ms.append(mfma(vK + 16 * rt, v(r, 4), a(4 * k, 4), None if k == 0 else vK + 16 * rt))
            groups.append((rs, ms))
        hooks = {8 * st: ['@waitvm o%d' % st, 's_barrier'] for st in range(4)}
        L += self.gemm_stream(groups, 3, hooks)
        L += self.stamp(10)
        S = [[], []]
        for rho in range(16):
            p, q = vP + 2 * (rho % 8), vP + 2 * (rho % 8) + 1
            S[rho & 1] += ['v_cvt_pk_bf16_f32 %s, %s, %s' % (v(p), v(vK + rho), v(vK + 16 + rho)),
                  'v_mov_b32_dpp %s, %s quad_perm:[1,0,3,2] row_mask:0xf bank_mask:0xf' % (v(q), v(p)),
                  'v_perm_b32 %s, %s, %s, %s' % (v(p), v(q), v(p), v(vSEL)),
                  'buffer_store_dword %s, %s, s[%d:%d], %s offen offset:%d' % (v(p), v(vOA + ((rho >> 1) & 1)), SOUT, SOUT + 3, s(sXO + (rho >> 2)), 1792 * (rho & 1))]
        L += interleave(S[0], S[1])
        if self.cfg.stamps:
            L += self.stamp(11)
            A('s_memrealtime s[%d:%d]' % (sT0, sT1)); A('@waitlgkm_all')
            for k in range(1, 12): A('v_mov_b32 %s, %s' % (v(vE + k), s(sST + k) if k < 10 or k == 11 else s(sST + k)))
            A('v_mov_b32 %s, s3' % v(vE)); A('v_mov_b32 %s, %s' % (v(vE + 12), s(sT0))); A('v_mov_b32 %s, %s' % (v(vE + 13), s(sST)))
            A('s_lshl_b32 %s, s2, 2' % s(sT2)); A('s_add_u32 %s, %s, %s' % (s(sT2), s(sT2), s(sW))); A('s_lshl_b32 %s, %s, 6' % (s(sT2), s(sT2)))
            A('s_add_u32 %s, %s, %d' % (s(sT2), s(sT2), WS_STAMP))
            A('s_mov_b64 exec, 1')
            if self.cfg.dbgstamps:
                A('v_not_b32 %s, %s' % (v(vE), v(vE)))
                A('global_atomic_umax %s, %s, s[%d:%d] offset:8' % (v(vZ), v(vE), sDBG, sDBG + 1))
                A('global_atomic_umax %s, %s, s[%d:%d] offset:12' % (v(vZ), v(vE + 12), sDBG, sDBG + 1))
                A('v_not_b32 %s, %s' % (v(vE), v(vE)))
                A('global_atomic_umax %s, %s, s[%d:%d] offset:16' % (v(vZ), v(vE), sDBG, sDBG + 1))
                for k in range(1, 12):
                    A('v_sub_u32 %s, %s, %s' % (v(vE + k), v(vE + k), v(vE + 13)))
                    A('global_atomic_umax %s, %s, s[%d:%d] offset:%d' % (v(vZ), v(vE + k), sDBG, sDBG + 1, 16 + 4 * k))
            for k in range(4): A('buffer_store_dwordx4 %s, %s, s[%d:%d], %s offen offset:%d' % (v(vE + 4 * k, 4), v(vZ), SWS, SWS + 3, s(sT2), 16 * k))
        if self.cfg.tfix:
            A('L_tfix:'); A('s_memrealtime s[%d:%d]' % (sT0, sT1)); A('@waitlgkm_all'); A('s_sub_u32 %s, %s, s100' % (s(sT0), s(sT0))); A('s_cmp_lt_u32 %s, %d' % (s(sT0), self.cfg.tfix)); A('s_cbranch_scc1 L_tfix')
        A('L_end:'); A('s_endpgm')
        return L

    def build(self):
        c = self.cfg
        pro = self.prologue()
        if c.stamps:
            i = pro.index('@waitlgkm_all')
            pro = pro[:i + 1] + ['s_mov_b32 s3, s100'] + self.stamp(0) + pro[i + 1:]
        shared = pro + self.stream() + ['s_cmp_eq_u32 %s, 0' % s(sBR), 's_cbranch_scc1 L_brA']
        MK = '.set MARK_A, 0'
        main = finalize(shared + self.middle('B') + self.tail())
        alt = finalize(shared + [MK, 'L_brA:'] + self.middle('A') + ['s_branch L_join'])
        alt = alt[alt.index(MK) + 1:]
        side = []
        for br in 'BA': side += finalize(self.nonce_retry(br) + self.part_retry(br) + self.far(br))
        return main, alt, side

HEADER = open(__file__.rsplit('/', 1)[0] + '/header.txt').read() if '/' in __file__ else open('header.txt').read()

def generate(cfg):
    g = G(cfg)
    main, alt, side = g.build()
    body = main + alt + side
    txt = HEADER
    if cfg.extra_empty:
        txt += '; @launch kernel=%s grid=(256,1,1) block=(256,1,1) lds=163840\n; @launch kernel=empty_kernel grid=(256,1,1) block=(256,1,1) lds=0\n' % KNAME
    else:
        txt += '; @launch grid=(256,1,1) block=(256,1,1) lds=163840\n'
    txt += '.amdgcn_target "amdgcn-amd-amdhsa--gfx950"\n.text\n.globl %s\n.p2align 8\n.type %s,@function\n%s:\n' % (KNAME, KNAME, KNAME)
    txt += '\n'.join(('' if l.endswith(':') else '    ') + l for l in body) + '\n'
    if cfg.extra_empty:
        txt += '.globl empty_kernel\n.p2align 8\n.type empty_kernel,@function\nempty_kernel:\n    s_endpgm\n'
        txt += '.section .rodata,"a"\n.p2align 6\n.amdhsa_kernel empty_kernel\n  .amdhsa_next_free_vgpr 8\n  .amdhsa_next_free_sgpr 16\n  .amdhsa_accum_offset 8\n  .amdhsa_group_segment_fixed_size 0\n  .amdhsa_kernarg_size 80\n  .amdhsa_user_sgpr_count 2\n  .amdhsa_user_sgpr_kernarg_segment_ptr 1\n  .amdhsa_system_sgpr_workgroup_id_x 1\n.end_amdhsa_kernel\n'
    txt += '.section .rodata,"a"\n.p2align 6\n.amdhsa_kernel %s\n' % KNAME
    txt += '  .amdhsa_next_free_vgpr 512\n  .amdhsa_next_free_sgpr 102\n  .amdhsa_accum_offset 256\n  .amdhsa_group_segment_fixed_size 0\n'
    txt += '  .amdhsa_kernarg_size 80\n  .amdhsa_user_sgpr_count 2\n  .amdhsa_user_sgpr_kernarg_segment_ptr 1\n  .amdhsa_system_sgpr_workgroup_id_x 1\n.end_amdhsa_kernel\n'
    import subprocess, tempfile, os, re
    d = tempfile.mkdtemp()
    open(d + '/a.s', 'w').write(txt.replace('CODE_SPAN', '0x5000'))
    r = subprocess.run(['clang', '-x', 'assembler', '-target', 'amdgcn-amd-amdhsa', '-mcpu=gfx950', '-c', d + '/a.s', '-o', d + '/a.o'], capture_output=True, text=True)
    if r.returncode: raise Exception(r.stderr[:3000])
    r = subprocess.run(['llvm-readelf', '-S', d + '/a.o'], capture_output=True, text=True).stdout
    size = int(re.search(r'\.text\s+PROGBITS\s+\w+\s+\w+\s+(\w+)', r).group(1), 16)
    assert size < 32768 + 64
    sys.stderr.write('code bytes: %d\n' % size)
    return txt.replace('CODE_SPAN', hex(size - 64))

if __name__ == '__main__':
    cfg = Cfg()
    out = sys.argv[1]
    for kv in sys.argv[2:]:
        k, val = kv.split('='); setattr(cfg, k, eval(val))
    open(out, 'w').write(generate(cfg))
```

```python
from emit import Ins, TRANS, vg

SCC_W = ('s_lshl1_', 's_lshl2_', 's_add_', 's_sub_', 's_cmp', 's_and_', 's_or_', 's_xor_', 's_lshl_', 's_lshr_', 's_bfe_', 's_min_', 's_max_', 's_bitcmp', 's_addc', 's_not', 's_andn2')
SCC_R = ('s_cselect', 's_cbranch_scc', 's_addc')

DSBUSY = {'ds_read_b128': 16, 'ds_read_b64_tr_b16': 8, 'ds_write_b128': 52, 'ds_write_b64': 24}

def cost(i):
    if i.kind == 'pseudo': return 4
    if i.kind == 'mfma': return 8
    if i.kind == 'valu' and (i.op.startswith(TRANS) or i.op.startswith('v_permlane')): return 8
    return 4

def lat(p, c, raw, dslat):
    base = cost(p)
    if p.kind == 'mfma':
        if c.kind == 'mfma' and p.w == c.srcc and not (p.w & c.sab): return 32
        if p.w & (c.r | c.w): return 56
        return base
    if not raw:
        if p.kind == 'vm' and p.wide: return 12
        return base
    if p.kind == 'ds': return dslat
    if p.kind == 'vm': return 600
    if p.kind == 'valu':
        if c.kind == 'mfma' or c.op.startswith('v_permlane') or '_dpp' in c.op: return base + 8
        if any(x[0] == 's' for x in p.w & c.r): return base + (20 if c.kind == 'vm' else 8)
        if p.op.startswith(TRANS) or c.op.startswith(('v_readfirstlane', 'v_readlane')): return base + 4
        if p.op.startswith('v_dot') and c.op != p.op: return base + 12
    if p.kind == 'salu' and c.dma: return base + 4
    return base

def schedule(lines, dslat=100, vmgap=None, release=None, verbose=False, mfma_busy=0, loose_vm=False, boost=None):
    boost = boost or {}
    ins = [Ins(*l) if isinstance(l, tuple) else Ins(l) for l in lines]
    n = len(ins); vmgap = vmgap or {}; release = release or {}
    R = []; W = []
    for i in ins:
        assert i.kind != 'label', i.text
        r = set(i.r); w = set(i.w)
        if i.op.startswith(SCC_W): w.add(('s', 'scc'))
        if i.op.startswith(SCC_R): r.add(('s', 'scc'))
        if i.kind in ('valu', 'mfma', 'vm', 'ds'): r.add(('s', 'exec'))
        R.append(r); W.append(w)
    preds = [dict() for _ in range(n)]
    lastw = {}; readers = {}
    last_vm = None; last_dsw = None; ds_since = []; fence = None; mem_since = []
    for k, i in enumerate(ins):
        def dep(p, l):
            if p is not None and p != k: preds[k][p] = max(preds[k].get(p, 0), l)
        for x in R[k]:
            if x in lastw: dep(lastw[x], lat(ins[lastw[x]], i, True, dslat))
        for x in W[k]:
            if x in lastw: dep(lastw[x], lat(ins[lastw[x]], i, False, dslat))
            for p in readers.get(x, []):
                l = cost(ins[p])
                if ins[p].kind == 'mfma' and x in ins[p].srcc and i.kind == 'valu': l = 36
                if ins[p].kind == 'vm' and ins[p].wide and x in ins[p].data: l = 12
                dep(p, l)
        isf = i.kind in ('pseudo', 'ctl', 'smem')
        if isf:
            keep = []
            for p in mem_since:
                if loose_vm and ins[p].kind == 'vm' and not (i.op == '@waitvm' and ins[p].tag in i.text.split()[1:]): keep.append(p)
                else: dep(p, cost(ins[p]))
            dep(fence, 4)
            if i.op.startswith(('s_cbranch', 's_branch')) or i.kind == 'smem':
                for p in range(k): dep(p, cost(ins[p]))
            fence = k; mem_since = keep
        elif i.kind in ('vm', 'ds'):
            dep(fence, 4); mem_since.append(k)
            if i.kind == 'vm':
                dep(last_vm, vmgap.get(ins[last_vm].tag, 4) if (last_vm is not None and i.tag in vmgap) else 4); last_vm = k
            else:
                if i.op.startswith('ds_read'): dep(last_dsw, 4); ds_since.append(k)
                else:
                    for p in ds_since: dep(p, 4)
                    dep(last_dsw, DSBUSY.get(i.op, 8)); last_dsw = k; ds_since = []
        for x in R[k]: readers.setdefault(x, []).append(k)
        for x in W[k]: lastw[x] = k; readers[x] = []
    hard = [k for k, i in enumerate(ins) if i.op.startswith(('s_cbranch', 's_branch')) or i.kind == 'smem']
    for h in hard:
        for k in range(h + 1, n): preds[k][h] = max(preds[k].get(h, 0), 4)
    succs = [[] for _ in range(n)]
    for k in range(n):
        for p, l in preds[k].items(): succs[p].append((k, l))
    prio = [0] * n
    for k in reversed(range(n)):
        prio[k] = cost(ins[k]) + max([l + prio[s] - cost(ins[k]) for s, l in succs[k]] + [0])
        if ins[k].kind == 'vm': prio[k] = max(prio[k], boost.get(ins[k].tag, 0))
    rel = [0] * n
    for key, t in release.items():
        if isinstance(key, int): rel[key] = t
        else:
            for k, i in enumerate(ins):
                if i.text.startswith(key): rel[k] = t
    t = 0; done = [None] * n; npred = [len(p) for p in preds]
    ready = [k for k in range(n) if npred[k] == 0]
    mf_free = mfma_busy; mf_done = mfma_busy; vm_free = 0; ds_free = 0
    order = []
    while ready:
        best = None
        for k in ready:
            i = ins[k]
            e = max([done[p] + l for p, l in preds[k].items()] + [rel[k], t])
            if i.kind == 'mfma': e = max(e, mf_free)
            if i.op.startswith('v_pk_'): e = max(e, mf_done)
            if i.kind == 'vm' and i.tag in vmgap: e = max(e, vm_free)
            if i.kind == 'ds': e = max(e, ds_free)
            key = (e > t and e - t, -prio[k] - (10000 if i.kind == 'mfma' else 0), k)
            if best is None or key < best[0]: best = (key, k, e)
        _, k, e = best
        i = ins[k]; done[k] = e; t = e + cost(i)
        if i.kind == 'mfma': mf_free = e + 32; mf_done = e + 48
        if i.op.startswith('v_pk_'): mf_free = max(mf_free, t)
        if i.kind == 'vm' and i.tag in vmgap: vm_free = e + vmgap[i.tag]
        if i.kind == 'ds': ds_free = e + DSBUSY.get(i.op, 8)
        order.append(k); ready.remove(k)
        for s, l in succs[k]:
            npred[s] -= 1
            if npred[s] == 0: ready.append(s)
    assert len(order) == n
    import os
    if verbose and os.environ.get('DUMP') == verbose:
        import sys
        pt = 0
        for k in order:
            sys.stderr.write('%5d %s %s\n' % (done[k], '<<stall %d' % (done[k] - pt) if done[k] > pt else '', ins[k].text)); pt = done[k] + cost(ins[k])
    if verbose:
        import sys
        sys.stderr.write('sched %s: %d instrs, est %d cycles, issue sum %d\n' % (verbose, n, t, sum(cost(i) for i in ins)))
    return [lines[k] for k in order]
```

```python
import sys, os
from emit import finalize, interleave
from sched import schedule

KNAME = 'concat_heads__linear_attn_block__linear_kernel_hedgehog__prompt_kernel'

class Cfg:
    stamps = False
    dbgstamps = False; tfix = 0; extra_empty = False; force_global = False; verbose = False
    rot = True; pref_slots = 2
    xfl = 'nt'; wfl = ''; wofl = ''; outfl = 'sc1'; prefl = 'sc1 nt'; tfl = ''
    rel_nonce = 1900
    touch_v = None
    touch_q = None; touch_o = 'p2'
    wv_it = 4; wv_b1 = 3
    rel_b1 = 200; rel_b2 = 900; rel_wq = 300; gap_wq = 120; gap_wo = 64; gap_wv = 60; rel_part = 1900; rel_wo = 0
    stages = (1, 1, 2, 4, 4, 4)
    wbl2 = False
    lite = False
    setup_first = True; rel_it = 300; gap_x = 24
    itst = False
    wv_split = (2, 2, 1)
    wo_before = 5
    fine = None
    o_first = 7; gap_o = 64

WS_XCC, WS_FLAG, WS_PART, WS_O, WS_STAMP = 4096, 8192, 65536, 2 << 20, 16 << 20
WS_BYTES = 32 << 20
L_WK, L_WV, L_MISC, L_WQ, L_WO, L_SCR, L_OT = 98304, 126976, 155648, 0, 32768, 32768, 65536
OOB = 0x40000000
sAX, sAW, sAWO, sBX, sBW, sPHI, sBWO, sOUT, sDBG, sWSP = 4, 6, 8, 10, 12, 14, 16, 18, 20, 22
SX, SW, SWO, SPHI, SWS, SOUT = 24, 28, 32, 36, 40, 44
sBR, sRB, sH, sW, sGID, sSLOT, sT0, sT1, sT2, sXCC = 48, 49, 50, 51, 52, 53, 54, 55, 56, 57
sN0, sN1 = 58, 59
sHI, sE28 = 60, 62
sXO, sWO_ = 64, 72
sSPIN, sFAR = 71, 72
sM0X, sM0W, sSH, sCB, sRQ, sPB = 80, 81, 82, 83, 84, 85
sA, sB_, sC_, sD_ = 86, 87, 88, 89
sM0A, sM0B, sDT, sROT, sXB, sWB, sOBX, sFLG, sT3, sREC, sRECA = 90, 91, 92, 93, 94, 95, 96, 97, 98, 99, 79
sM1, sM2 = SPHI, SPHI + 2
SPIN = ['s_add_u32 s71, s71, 1', 's_cmp_gt_u32 s71, 0x100000', 's_cbranch_scc1 L_end']
vL = 1
vXD, vWD, vWRq, vWRk, vZ = 2, 6, 7, 8, 9
vXR, vXR2 = 10, 14
vDUM, vT = 18, 19
vPH, vID, vC, vST, vN = 20, 28, 36, 37, 38
vK, vV, vP, vE, vKV, vT2 = 40, 72, 104, 136, 200, 232
vTAG, vL16 = 248, 249
vWO0, vWOD = 250, 252
vTCH, vTCO, vPRE = 253, 254, 255
aX, aWR = 0, 224

def v(r, n=1): return 'v%d' % r if n == 1 else 'v[%d:%d]' % (r, r + n - 1)
def a(r, n=1): return 'a%d' % r if n == 1 else 'a[%d:%d]' % (r, r + n - 1)
def s(r, n=1): return 's%d' % r if n == 1 else 's[%d:%d]' % (r, r + n - 1)
MF = 'v_mfma_f32_32x32x16_bf16'
def mfma(d, x, y, c): return '%s %s, %s, %s, %s' % (MF, v(d, 16), x, y, v(c, 16) if c is not None else '0')

class G:
    def __init__(self, cfg): self.cfg = cfg
    def stamp(self, k):
        if not self.cfg.stamps or (self.cfg.lite and k not in (11, 13)): return []
        return ['@waitlgkm_all', 's_memtime s[%d:%d]' % (sT0, sT1), 's_memrealtime s[100:101]', '@waitlgkm_all', 'v_writelane_b32 %s, %s, %d' % (v(vST), s(sT0), k),
                'v_writelane_b32 %s, s100, %d' % (v(vST), 16 + k)]
    def sched(self, L, name, **kw): return self.fine(schedule(L, verbose=name if self.cfg.verbose else False, **kw), name)
    def fine(self, L, name):
        if not self.cfg.fine or not name.startswith(self.cfg.fine): return L
        out = []; n = len(L); pos = {(k * n) // 7: k for k in range(7)}
        for i, x in enumerate(L):
            if i in pos: out.append(('s_memtime s[%d:%d]' % (4 + 2 * pos[i], 5 + 2 * pos[i]), 'nowait'))
            out.append(x)
        out.append(('s_memtime s[18:19]', 'nowait'))
        if self.cfg.verbose:
            for i, k in pos.items(): sys.stderr.write('  fine %s %d at %d: %s\n' % (name, k, i, L[i]))
        return out

    def offs(self, i):
        L = ['s_lshl_b32 %s, %s, 7' % (s(sD_), s(sROT)), 's_add_u32 %s, %s, %s' % (s(sXO + i), s(sXB), s(sD_)),
             's_mul_i32 %s, %s, %d' % (s(sD_), s(sROT), 64 * 2688), 's_add_u32 %s, %s, %s' % (s(sWO_ + i), s(sWB), s(sD_))]
        if i < 6: L += ['s_add_u32 %s, %s, 1' % (s(sROT), s(sROT)), 's_cmp_eq_u32 %s, 7' % s(sROT), 's_cselect_b32 %s, 0, %s' % (s(sROT), s(sROT))]
        return L
    def touch(self, what):
        c = self.cfg
        if what == 'o': return [('buffer_load_dword %s, %s, s[%d:%d], 0 offen %s' % (v(vDUM), v(vTCO), SWO, SWO + 3, c.tfl), 'touch')]
        return [('buffer_load_dword %s, %s, s[%d:%d], 0 offen offset:%d %s' % (v(vDUM), v(vTCH), SW, SW + 3, {'q': 0, 'v': 1792}[what], c.tfl), 'touch')]

    def prologue(self):
        c = self.cfg; L = []; A = L.append
        A('s_load_dwordx16 s[4:19], s[0:1], 0')
        A('s_load_dwordx4 s[20:23], s[0:1], 64')
        if c.stamps or c.tfix: A('s_memrealtime s[100:101]')
        A('s_cmp_ge_u32 s2, 256'); A('s_cbranch_scc1 L_end')
        A('s_lshr_b32 %s, s2, 3' % s(sSLOT))
        A('s_cmp_lt_u32 %s, %d' % (s(sSLOT), c.pref_slots)); A('s_cselect_b32 %s, CODE_SPAN, 0' % s(sT2))
        A('s_getpc_b64 s[%d:%d]' % (sT0, sT1))
        A('v_lshlrev_b32 %s, 7, v0' % v(vT))
        A('v_min_u32 %s, %s, %s' % (v(vT), s(sT2), v(vT)))
        L.append(('global_load_dword %s, %s, s[%d:%d]' % (v(vDUM), v(vT), sT0, sT1), 'pref'))
        A('v_lshrrev_b32 %s, 6, v0' % v(vT)); A('v_and_b32 %s, 63, v0' % v(vL))
        A('v_readfirstlane_b32 %s, %s' % (s(sW), v(vT)))
        A('s_bfe_u32 %s, s2, 0x10002' % s(sBR))
        A('s_and_b32 %s, s2, 3' % s(sRB)); A('s_lshl_b32 %s, %s, 1' % (s(sRB), s(sRB)))
        A('s_lshr_b32 %s, %s, 4' % (s(sT2), s(sSLOT))); A('s_add_u32 %s, %s, %s' % (s(sRB), s(sRB), s(sT2)))
        A('s_and_b32 %s, %s, 15' % (s(sH), s(sSLOT)))
        A('s_mul_i32 %s, %s, 3' % (s(sT2), s(sT2))); A('s_add_u32 %s, %s, %s' % (s(sROT), s(sH), s(sT2)))
        A('s_mul_i32 %s, %s, 37' % (s(sB_), s(sROT))); A('s_lshr_b32 %s, %s, 8' % (s(sB_), s(sB_)))
        A('s_mul_i32 %s, %s, 7' % (s(sB_), s(sB_))); A('s_sub_u32 %s, %s, %s' % (s(sROT), s(sROT), s(sB_)))
        if not c.rot: A('s_mov_b32 %s, 0' % s(sROT))
        A('s_and_b32 %s, %s, 1' % (s(sA), s(sH)))
        A('s_lshl_b32 %s, %s, 2' % (s(sB_), s(sRB))); A('s_add_u32 %s, %s, %s' % (s(sB_), s(sB_), s(sW)))
        A('s_lshl1_add_u32 %s, %s, %s' % (s(sB_), s(sB_), s(sA))); A('s_mul_i32 %s, %s, 28672' % (s(sXB), s(sB_)))
        A('s_lshl_b32 %s, %s, 13' % (s(sM0X), s(sW))); A('s_lshl_b32 %s, %s, 10' % (s(sM0W), s(sW)))
        A('s_mul_i32 %s, %s, -57344' % (s(sDT), s(sA))); A('s_add_u32 %s, %s, 28672' % (s(sDT), s(sDT)))
        A('s_lshl_b32 %s, %s, 12' % (s(sA), s(sA))); A('s_add_u32 %s, %s, %s' % (s(sM0A), s(sM0X), s(sA))); A('s_xor_b32 %s, %s, 4096' % (s(sM0B), s(sM0A)))
        A('s_cmp_eq_u32 %s, 15' % s(sH)); A('s_cselect_b32 %s, 8, 0' % s(sSH))
        A('s_mul_i32 %s, %s, 56' % (s(sC_), s(sH))); A('s_sub_u32 %s, %s, %s' % (s(sC_), s(sC_), s(sSH)))
        A('s_mul_i32 %s, %s, %d' % (s(sD_), s(sW), 16 * 2688)); A('s_add_u32 %s, %s, %s' % (s(sWB), s(sC_), s(sD_)))
        L += self.offs(0) + self.offs(1)
        t0, t1, t2 = vT2, vT2 + 1, vT2 + 2
        A('v_lshrrev_b32 %s, 3, %s' % (v(t0), v(vL))); A('v_mul_u32_u24 %s, 896, %s' % (v(t0), v(t0)))
        A('v_lshrrev_b32 %s, 4, %s' % (v(t1), v(vL))); A('v_and_b32 %s, 7, %s' % (v(t2), v(vL)))
        A('v_xor_b32 %s, %s, %s' % (v(t2), v(t1), v(t2)))
        A('v_lshl_add_u32 %s, %s, 4, %s' % (v(vXD), v(t2), v(t0)))
        A('v_xor_b32 %s, 4, %s' % (v(t2), v(t2))); A('v_lshl_add_u32 %s, %s, 4, %s' % (v(vXD + 1), v(t2), v(t0)))
        A('v_add_u32 %s, %d, %s' % (v(vXD + 2), 2 * 6144, v(vXD))); A('v_add_u32 %s, %d, %s' % (v(vXD + 3), 3 * 6144, v(vXD + 1)))
        A('v_add_u32 %s, %d, %s' % (v(vXD + 1), 6144, v(vXD + 1)))
        A('v_lshrrev_b32 %s, 2, %s' % (v(t0), v(vL))); A('v_mul_u32_u24 %s, 2688, %s' % (v(t0), v(t0)))
        A('v_and_b32 %s, 3, %s' % (v(t2), v(vL))); A('v_lshl_add_u32 %s, %s, 4, %s' % (v(vWD), v(t2), v(t0)))
        for srd, n in ((SX, 1835008), (SW, 1204224), (SWO, 401408), (SWS, WS_BYTES), (SOUT, 3670016)):
            A('s_mov_b32 %s, %d' % (s(srd + 2), n)); A('s_mov_b32 %s, 0x20000' % s(srd + 3))
        A('s_cmp_eq_u32 %s, 0' % s(sBR))
        A('@waitlgkm_all')
        if c.stamps: A('s_mov_b32 s3, s100'); L += self.stamp(13); A('s_cmp_eq_u32 %s, 0' % s(sBR))
        for (srd, pa, pb) in ((SX, sAX, sBX), (SW, sAW, sBW), (SWO, sAWO, sBWO)):
            A('s_cselect_b32 %s, %s, %s' % (s(srd), s(pa), s(pb))); A('s_cselect_b32 %s, %s, %s' % (s(srd + 1), s(pa + 1), s(pb + 1)))
        A('s_cselect_b32 %s, 0, 25088' % s(SPHI + 2))
        x0 = self.dma_x(0)
        L += x0[:5] + self.dma_w(0, 1, L_WK, 'wk0') + self.dma_w(1, 1, L_WK, 'wk1')
        A('s_mov_b32 %s, %s' % (s(SPHI), s(sPHI))); A('s_mov_b32 %s, %s' % (s(SPHI + 1), s(sPHI + 1))); A('s_mov_b32 %s, 0x20000' % s(SPHI + 3))
        A('v_lshlrev_b32 %s, 4, %s' % (v(vL16), v(vL)))
        A('s_cmp_ge_u32 %s, 2' % s(sW)); A('s_cselect_b32 %s, 0x%x, %s' % (s(sA), OOB, s(sM0W))); A('v_add_u32 %s, %s, %s' % (v(t0), s(sA), v(vL16)))
        A('s_mul_i32 %s, %s, 1568' % (s(sT2), s(sH))); A('s_add_u32 m0, %s, %d' % (s(sM0W), L_MISC))
        L.append(('buffer_load_dwordx4 %s, s[%d:%d], %s offen lds' % (v(t0), SPHI, SPHI + 3, s(sT2)), 'phi'))
        L += x0[5:]
        for (srd, p) in ((SWS, sWSP), (SOUT, sOUT)):
            A('s_mov_b32 %s, %s' % (s(srd), s(p))); A('s_mov_b32 %s, %s' % (s(srd + 1), s(p + 1)))
        A('v_mov_b32 %s, 0' % v(vZ))
        A('s_or_b32 %s, s2, %s' % (s(sT2), s(sW))); A('s_cmp_eq_u32 %s, 0' % s(sT2)); A('s_cbranch_scc1 L_mknonce')
        A('L_nononce:')
        for i in range(2, 7): L += self.offs(i)
        A('s_mov_b32 %s, 0' % s(sSPIN))
        A('s_getreg_b32 %s, hwreg(HW_REG_XCC_ID, 0, 4)' % s(sXCC))
        m, hi, t3, t4 = vT2 + 3, vT2 + 4, vT2 + 5, vT2 + 6
        A('s_mul_i32 %s, %s, 98' % (s(sA), s(sSLOT))); A('s_mul_i32 %s, %s, 25' % (s(sB_), s(sW))); A('s_add_u32 %s, %s, %s' % (s(sA), s(sA), s(sB_)))
        A('v_min_u32 %s, 24, %s' % (v(t0), v(vL))); A('v_add_u32 %s, %s, %s' % (v(t0), s(sA), v(t0))); A('v_min_u32 %s, 3135, %s' % (v(t0), v(t0)))
        A('v_lshlrev_b32 %s, 7, %s' % (v(vTCO), v(t0)))
        A('v_mul_u32_u24 %s, 9363, %s' % (v(t1), v(t0))); A('v_lshrrev_b32 %s, 16, %s' % (v(t1), v(t1)))
        A('v_mul_u32_u24 %s, 1792, %s' % (v(t1), v(t1))); A('v_add_u32 %s, %s, %s' % (v(vTCH), v(t1), v(vTCO)))
        if c.touch_v == -1: L += self.touch('v')
        A('v_and_b32 %s, 31, %s' % (v(m), v(vL))); A('v_lshrrev_b32 %s, 5, %s' % (v(hi), v(vL)))
        A('v_bfe_u32 %s, %s, 1, 3' % (v(t1), v(m))); A('v_xor_b32 %s, %s, %s' % (v(t1), v(t1), v(hi)))
        A('v_lshl_add_u32 %s, %s, 7, %s' % (v(t2), v(m), s(sM0X)))
        for ks in range(4):
            A('v_xor_b32 %s, %d, %s' % (v(t3), 2 * ks, v(t1))); A('v_lshl_add_u32 %s, %s, 4, %s' % (v(vXR + ks), v(t3), v(t2)))
            A('v_add_u32 %s, 0x10000, %s' % (v(vXR2 + ks), v(vXR + ks)))
        A('v_bfe_u32 %s, %s, 2, 2' % (v(t1), v(vL))); A('v_lshlrev_b32 %s, 6, %s' % (v(t2), v(t1)))
        A('v_lshl_add_u32 %s, %s, 9, %s' % (v(t2), v(hi), v(t2)))
        A('v_bfe_u32 %s, %s, 4, 1' % (v(t3), v(vL))); A('v_and_b32 %s, 3, %s' % (v(t4), v(vL)))
        A('v_lshlrev_b32 %s, 3, %s' % (v(t4), v(t4))); A('v_lshl_add_u32 %s, %s, 5, %s' % (v(t4), v(t3), v(t4)))
        A('v_add3_u32 %s, %s, %s, %s' % (v(vWRq), v(t2), v(t4), s(sSH)))
        A('v_add_u32 %s, %d, %s' % (v(vWRk), L_WK, v(vWRq)))
        A('v_xor_b32 %s, %s, %s' % (v(t3), s(sW), v(t1))); A('v_lshl_add_u32 %s, %s, 6, %s' % (v(t4), v(t3), v(t4)))
        A('v_lshl_add_u32 %s, %s, 8, %s' % (v(t4), v(t1), v(t4))); A('v_lshl_add_u32 %s, %s, 10, %s' % (v(t4), v(hi), v(t4)))
        A('v_add_u32 %s, %d, %s' % (v(vWO0), L_WO, v(t4))); A('v_add_u32 %s, %d, %s' % (v(vWO0 + 1), L_WO + 0x10000, v(t4)))
        A('v_lshrrev_b32 %s, 3, %s' % (v(t0), v(m))); A('v_and_b32 %s, 3, %s' % (v(t1), v(m)))
        A('v_lshl_add_u32 %s, %s, 2, %s' % (v(t0), v(t0), v(t1)))
        A('v_lshrrev_b32 %s, 4, %s' % (v(t1), v(m))); A('v_sub_u32 %s, %s, %s' % (v(t0), v(t0), v(t1)))
        A('v_bfe_u32 %s, %s, 2, 1' % (v(t1), v(m))); A('v_mad_u32_u24 %s, %s, 14, %s' % (v(t0), v(t1), v(t0)))
        A('v_and_b32 %s, 11, %s' % (v(t1), v(m))); A('v_cmp_eq_u32 vcc, 11, %s' % v(t1))
        A('v_mov_b32 %s, %d' % (v(t2), L_MISC + 2048))
        A('v_mul_u32_u24 %s, 224, %s' % (v(t3), v(hi))); A('v_lshl_add_u32 %s, %s, 1, %s' % (v(t3), v(t0), v(t3))); A('v_add_u32 %s, %d, %s' % (v(t3), L_MISC, v(t3)))
        A('v_cndmask_b32_e64 %s, %s, %s, vcc' % (v(vT2 + 12), v(t3), v(t2)))
        A('v_cndmask_b32_e64 %s, %s, 63, vcc' % (v(vT2 + 11), v(t0)))
        A('v_cmp_lt_u32_e64 s[%d:%d], 31, %s' % (sHI, sHI + 1, v(vL)))
        A('v_cmp_eq_u32_e64 s[%d:%d], 28, %s' % (sE28, sE28 + 1, v(m)))
        A('v_cndmask_b32_e64 %s, %s, %s, s[%d:%d]' % (v(vT2 + 13), v(vT2 + 12), v(t2), sHI, sHI + 1))
        P = self.setup2()
        rest = self.dma_x(1) + self.dma_w(2, 1, L_WK, 'wk2') + self.dma_w(3, 1, L_WK, 'wk3') + self.dma_x(2)
        for i in range(4, 7): rest += self.dma_w(i, 1, L_WK, 'wk%d' % i)
        if c.setup_first: L += P[1] + P[2] + rest
        else: L += rest[:11] + P[1] + P[2] + rest[11:]
        return L

    def mknonce(self):
        L = ['L_mknonce:', '@assume_idle']; A = L.append
        A('s_load_dwordx2 s[%d:%d], s[%d:%d], 0' % (sT0, sT1, sWSP, sWSP + 1))
        A('@waitlgkm_all')
        A('s_add_u32 %s, %s, 0x9e3679b8' % (s(sT0), s(sT0))); A('s_add_u32 %s, %s, 0x85eaca6a' % (s(sT1), s(sT1)))
        for r in (sT0, sT1):
            A('s_or_b32 %s, %s, 0x00010001' % (s(r), s(r))); A('s_and_b32 %s, %s, 0xbfffbfff' % (s(r), s(r)))
        A('v_mov_b32 %s, %s' % (v(vN), s(sT0))); A('v_mov_b32 %s, %s' % (v(vN + 1), s(sT1)))
        A('s_mov_b64 exec, 1')
        A('global_store_dwordx2 %s, %s, s[%d:%d] sc1' % (v(vZ), v(vN, 2), sDBG, sDBG + 1))
        A('global_store_dwordx2 %s, %s, s[%d:%d] sc1' % (v(vZ), v(vN, 2), sWSP, sWSP + 1))
        A('s_mov_b64 exec, -1'); A('s_branch L_nononce')
        return L

    def setup2(self):
        m, hi, fp, ofs, ofs2 = vT2 + 3, vT2 + 4, vT2 + 11, vT2 + 12, vT2 + 13
        P0 = []
        for t in range(2):
            for j in range(8):
                d = 16 * t + 8 * (j >> 2) + (j & 3)
                P0.append('ds_read_u16 %s, %s offset:%d' % (v(vP + 8 * t + j), v(ofs2 if (t == 1 and j >= 4) else ofs), d * 56))
        def selector(dst, tgt):
            R = []
            x, y, z = vT2 + 8, vT2 + 9, vT2 + 10
            R.append('v_lshrrev_b32 %s, 3, %s' % (v(x), v(tgt))); R.append('v_bfe_u32 %s, %s, 1, 1' % (v(y), v(tgt)))
            R.append('v_lshl_add_u32 %s, %s, 1, %s' % (v(x), v(x), v(y)))
            R.append('v_and_b32 %s, 1, %s' % (v(y), v(tgt))); R.append('v_lshlrev_b32 %s, 4, %s' % (v(y), v(y)))
            R.append('v_mov_b32 %s, 0x3f80' % v(z)); R.append('v_lshlrev_b32 %s, %s, %s' % (v(z), v(y), v(z)))
            R.append('v_bfe_u32 %s, %s, 2, 1' % (v(y), v(tgt))); R.append('v_cmp_eq_u32 vcc, %s, %s' % (v(y), v(hi)))
            R.append('v_cndmask_b32_e64 %s, 15, %s, vcc' % (v(x), v(x)))
            for i in range(8):
                R.append('v_cmp_eq_u32_e64 s[%d:%d], %d, %s' % (4 + 2 * i, 5 + 2 * i, i, v(x)))
            for i in range(8):
                R.append('v_cndmask_b32_e64 %s, 0, %s, s[%d:%d]' % (v(dst + i), v(z), 4 + 2 * i, 5 + 2 * i))
            return R
        P1 = selector(vID, m)
        P2 = selector(vE, fp)
        P2 += ['v_mov_b32 %s, 0x3fb8aa3b' % v(vC),
               'v_lshlrev_b32 %s, 7, %s' % (v(vPRE), v(m)),
               's_lshl_b32 %s, %s, 3' % (s(sGID), s(sBR)), 's_add_u32 %s, %s, %s' % (s(sGID), s(sGID), s(sRB)),
               's_and_b32 %s, %s, 3' % (s(sCB), s(sH)), 's_lshr_b32 %s, %s, 2' % (s(sRQ), s(sH)),
               's_lshl_b32 %s, %s, 4' % (s(sT3), s(sGID)), 's_add_u32 %s, %s, %s' % (s(sPB), s(sT3), s(sH)),
               's_lshl_b32 %s, %s, 14' % (s(sT3), s(sPB)), 's_lshl_b32 %s, %s, 12' % (s(sOBX), s(sW)), 's_add_u32 %s, %s, %s' % (s(sOBX), s(sOBX), s(sT3)),
               's_add_u32 %s, %s, %d' % (s(sOBX), s(sOBX), WS_O),
               's_lshl_b32 %s, %s, 7' % (s(sFLG), s(sGID)), 's_add_u32 %s, %s, %d' % (s(sFLG), s(sFLG), WS_FLAG)]
        A = P2.append; t0, t1, t2 = vT2 + 8, vT2 + 9, vT2 + 10
        A('v_lshrrev_b32 %s, 4, %s' % (v(t0), v(vL))); A('v_bfe_u32 %s, %s, 2, 2' % (v(t1), v(vL))); A('v_xor_b32 %s, %s, %s' % (v(t1), v(t1), v(t0)))
        A('v_mul_u32_u24 %s, 896, %s' % (v(t0), v(t0))); A('v_lshl_add_u32 %s, %s, 6, %s' % (v(t0), v(t1), v(t0)))
        A('v_and_b32 %s, 3, %s' % (v(t2), v(vL))); A('v_lshl_add_u32 %s, %s, 4, %s' % (v(t0), v(t2), v(t0)))
        A('s_cmp_eq_u32 %s, 3' % s(sCB)); A('s_cselect_b32 %s, 1, 3' % s(sT3))
        A('v_cmp_lt_u32 vcc, %s, %s' % (s(sT3), v(t1))); A('v_mov_b32 %s, 0x%x' % (v(t2), OOB))
        A('v_cndmask_b32_e64 %s, %s, %s, vcc' % (v(vWOD), v(t0), v(t2)))
        A('s_lshl_b32 %s, %s, 3' % (s(sRECA), s(sPB))); A('s_add_u32 %s, %s, %d' % (s(sRECA), s(sRECA), WS_XCC))
        A('v_cmp_eq_u32 vcc, 0, v0'); A('v_and_b32 %s, 1, %s' % (v(t0), v(vL))); A('v_and_b32 %s, 2, %s' % (v(t1), v(vL)))
        A('v_cndmask_b32_e64 %s, %s, 0, vcc' % (v(vT), v(t2)))
        A('v_cmp_ne_u32_e64 s[%d:%d], 0, %s' % (sM1, sM1 + 1, v(t0))); A('v_cmp_ne_u32_e64 s[%d:%d], 0, %s' % (sM2, sM2 + 1, v(t1)))
        return P0, P1, P2

    def dma_x(self, i):
        L = []
        for k in range(2):
            L.append('s_add_u32 m0, %s, %d' % (s(sM0B if k else sM0A), (i % 3) * 32768))
            if k: L.append('s_add_u32 %s, %s, %s' % (s(sXO + i), s(sXO + i), s(sDT)))
            for j in range(4):
                L.append(('buffer_load_dwordx4 %s, s[%d:%d], %s offen offset:%d %s lds' % (v(vXD + j), SX, SX + 3, s(sXO + i), 1024 * j, self.cfg.xfl), 'x%d' % i))
        return L
    def dma_w(self, i, part, base, tag):
        return ['s_add_u32 m0, %s, %d' % (s(sM0W), base + i * 4096),
                's_add_u32 %s, %s, %d' % (s(sT2), s(sWO_ + i), part * 896),
                ('buffer_load_dwordx4 %s, s[%d:%d], %s offen %s lds' % (v(vWD), SW, SW + 3, s(sT2), self.cfg.wfl), tag)]
    def xfrag(self, i, ks, tile): return aX + ((i * 4 + ks) * 2 + tile) * 4
    def wread(self, slot, basev, off):
        r = aWR + 4 * (slot % 8)
        return ['ds_read_b64_tr_b16 %s, %s offset:%d' % (a(r + 2 * u, 2), v(basev), off + 256 * u) for u in range(2)]

    def stream(self):
        c = self.cfg; L = []
        P = self.setup2()
        R = []; rel = {}
        for i in range(7):
            A = R.append
            if i == 6:
                L += self.sched(R, 'stream', release=rel, vmgap={'x%d' % k: c.gap_x for k in range(7)})
                R = []; A = R.append
            if c.itst: R += ['@waitlgkm_all', 's_memtime s[%d:%d]' % (sT0, sT1), '@waitlgkm_all', 'v_writelane_b32 %s, %s, %d' % (v(vST), s(sT0), 48 + i)]
            w = '@waitvm x%d wk%d' % (i, i) + (' phi' if i == 0 else '')
            A(w); A('s_barrier'); rel[w] = c.rel_it * i
            if i == 0: R += self.stamp(1)
            if c.itst: R += ['s_memtime s[%d:%d]' % (sT0, sT1), '@waitlgkm_all', 'v_writelane_b32 %s, %s, %d' % (v(vST), s(sT0), 40 + i)]
            sl = i % 3
            for ks in range(4):
                R += self.wread(4 * i + ks, vWRk, i * 4096 + ks * 1024)
                for tile in range(2):
                    R.append(('ds_read_b128 %s, %s offset:%d' % (a(self.xfrag(i, ks, tile), 4), v((vXR2 if sl == 2 else vXR) + ks), (sl & 1) * 32768 + tile * 4096), 'xr'))
            if i == 0: R += P[0]
            if i == 2: R += ['v_lshl_or_b32 %s, %s, 16, %s' % (v(vPH + u), v(vP + 2 * u + 1), v(vP + 2 * u)) for u in range(8)]
            if i + 3 < 7: A('@waitlgkm xr')
            if c.touch_v == i: R += self.touch('v')
            if c.touch_q == i: R += self.touch('q')
            if c.touch_o == i: R += self.touch('o')
            if i + 3 < 7: R += self.dma_x(i + 3)
            if i >= 4:
                k0 = sum(c.wv_split[:i - 4])
                for k in range(k0, k0 + c.wv_split[i - 4]): R += self.dma_w(k, 2, L_WV, 'wv%d' % k)
            for ks in range(4):
                for tile in range(2):
                    A(mfma(vK + 16 * tile, a(aWR + 4 * ((4 * i + ks) % 8), 4), a(self.xfrag(i, ks, tile), 4), None if (i == 0 and ks == 0) else vK + 16 * tile))
        L += self.sched(R, 'last')
        return L

    def gemm(self, acc, basev, off, transposed, first_slot, hooks=None):
        L = []; hooks = hooks or {}
        for k in range(28):
            L += hooks.get(k, [])
            w = a(aWR + 4 * ((first_slot + k) % 8), 4)
            L += self.wread(first_slot + k, basev, off + k * 1024)
            for tile in range(2):
                x = a(self.xfrag(k // 4, k % 4, tile), 4)
                L.append(mfma(acc + 16 * tile, w if transposed else x, x if transposed else w, None if k == 0 else acc + 16 * tile))
        return L

    def pack(self, r, n=8): return ['v_cvt_pk_bf16_f32 %s, %s, %s' % (v(r + u), v(r + 2 * u), v(r + 2 * u + 1)) for u in range(n)]
    def zero_hi_pads(self, r): return ['v_cndmask_b32_e64 %s, %s, 0, s[%d:%d]' % (v(r + u), v(r + u), sHI, sHI + 1) for u in (6, 7)]

    def softmax(self, p, ep, en, tmp, pk):
        L = []; A = L.append
        Z, T, S1, S2 = tmp, tmp + 2, tmp + 4, tmp + 6
        VAL = [0, 1, 2, 3, 4, 5, 6, 8, 9, 10, 11, 12, 13, 14]
        if pk:
            for r in (ep + 7, ep + 15, en + 7, en + 15): A('v_mov_b32 %s, 0' % v(r))
        for (d, sg) in ((Z, ''), (T, '-')):
            A('v_max3_f32 %s, %s%s, %s%s, %s%s' % (v(d), sg, v(p), sg, v(p + 1), sg, v(p + 2)))
            A('v_max3_f32 %s, %s%s, %s%s, %s%s' % (v(d + 1), sg, v(p + 8), sg, v(p + 9), sg, v(p + 10)))
            for (x, y) in ((3, 4), (5, 6)): A('v_max3_f32 %s, %s, %s%s, %s%s' % (v(d), v(d), sg, v(p + x), sg, v(p + y)))
            for (x, y) in ((11, 12), (13, 14)): A('v_max3_f32 %s, %s, %s%s, %s%s' % (v(d + 1), v(d + 1), sg, v(p + x), sg, v(p + y)))
            A('v_max_f32 %s, %s, %s' % (v(d), v(d), v(d + 1)))
        A('v_permlane32_swap_b32 %s, %s' % (v(Z), v(T))); A('v_max_f32 %s, %s, %s' % (v(Z), v(Z), v(T)))
        A('v_mul_f32 %s, %s, %s' % (v(Z), v(vC), v(Z))); A('v_mov_b32 %s, %s' % (v(T), v(Z)))
        A('v_permlane32_swap_b32 %s, %s' % (v(Z), v(T)))
        for (e, z, ng) in ((ep, Z, 0), (en, T, 1)):
            for u in VAL:
                if pk and u not in (6, 14):
                    if u & 1 == 0: A('v_pk_fma_f32 %s, %s, %s, %s op_sel_hi:[1,0,0] neg_lo:[%d,0,1] neg_hi:[%d,0,1]' % (v(e + u, 2), v(p + u, 2), v(vC, 2), v(z, 2), ng, ng))
                else: A('v_fma_f32 %s, %s%s, %s, -%s' % (v(e + u), '-' if ng else '', v(p + u), v(vC), v(z)))
                A('v_exp_f32 %s, %s' % (v(e + u), v(e + u)))
        for (e, S, z) in ((ep, S1, Z), (en, S2, T)):
            if pk:
                A('v_pk_add_f32 %s, %s, %s' % (v(S, 2), v(e, 2), v(e + 2, 2)))
                for u in (4, 6, 8, 10, 12, 14): A('v_pk_add_f32 %s, %s, %s' % (v(S, 2), v(S, 2), v(e + u, 2)))
            else:
                A('v_add_f32 %s, %s, %s' % (v(S), v(e), v(e + 1))); A('v_add_f32 %s, %s, %s' % (v(S + 1), v(e + 8), v(e + 9)))
                for u in range(2, 7):
                    A('v_add_f32 %s, %s, %s' % (v(S), v(S), v(e + u))); A('v_add_f32 %s, %s, %s' % (v(S + 1), v(S + 1), v(e + 8 + u)))
            A('v_add_f32 %s, %s, %s' % (v(S), v(S), v(S + 1)))
        A('v_permlane32_swap_b32 %s, %s' % (v(S1), v(S2))); A('v_add_f32 %s, %s, %s' % (v(S1), v(S1), v(S2)))
        A('v_rcp_f32 %s, %s' % (v(S1), v(S1))); A('v_mov_b32 %s, %s' % (v(S2), v(S1)))
        A('v_permlane32_swap_b32 %s, %s' % (v(S1), v(S2)))
        for (e, z) in ((ep, S1), (en, S2)):
            for u in range(8):
                if pk: A('v_pk_mul_f32 %s, %s, %s op_sel_hi:[1,0]' % (v(e + 2 * u, 2), v(e + 2 * u, 2), v(z, 2)))
                else:
                    for k in range(1 if u in (3, 7) else 2): A('v_mul_f32 %s, %s, %s' % (v(e + 2 * u + k), v(e + 2 * u + k), v(z)))
                A('v_cvt_pk_bf16_f32 %s, %s, %s' % (v(e + u), v(e + 2 * u), '0' if (u in (3, 7) and not pk) else v(e + 2 * u + 1)))
        return L

    def elu1(self, p, e, pads, pk):
        L = []; A = L.append
        for u in range(0, 16, 2):
            n = 1 if (pads and u in (6, 14)) else 2
            if pk and n == 2: A('v_pk_mul_f32 %s, %s, %s op_sel_hi:[1,0]' % (v(e + u, 2), v(p + u, 2), v(vC, 2)))
            for k in range(n):
                if not (pk and n == 2): A('v_mul_f32 %s, %s, %s' % (v(e + u + k), v(vC), v(p + u + k)))
                A('v_exp_f32_e64 %s, %s clamp' % (v(e + u + k), v(e + u + k)))
                A('v_max_f32 %s, 0x358637bd, %s' % (v(p + u + k), v(p + u + k)))
                if not (pk and n == 2): A('v_add_f32 %s, %s, %s' % (v(e + u + k), v(e + u + k), v(p + u + k)))
            if pk and n == 2: A('v_pk_add_f32 %s, %s, %s' % (v(e + u, 2), v(e + u, 2), v(p + u, 2)))
            A('v_cvt_pk_bf16_f32 %s, %s, %s' % (v(e + u // 2), v(e + u), v(e + u + 1) if n == 2 else '0'))
        return L

    def nonce_load(self): return [('global_load_dwordx2 %s, %s, s[%d:%d] sc1' % (v(vN, 2), v(vZ), sDBG, sDBG + 1), 'nonce')]
    def use_nonce(self):
        L = []; A = L.append
        t0, t1 = vXR2, vXR2 + 1
        A('v_readfirstlane_b32 %s, %s' % (s(sN0), v(vN))); A('v_readfirstlane_b32 %s, %s' % (s(sN1), v(vN + 1)))
        A('v_cndmask_b32_e64 %s, %s, %s, s[%d:%d]' % (v(t0), v(vN), v(vN + 1), sM2, sM2 + 1))
        A('v_lshlrev_b32 %s, 16, %s' % (v(t1), v(t0))); A('v_and_b32 %s, 0xffff0000, %s' % (v(t0), v(t0)))
        A('v_cndmask_b32_e64 %s, %s, %s, s[%d:%d]' % (v(vTAG), v(t1), v(t0), sM1, sM1 + 1))
        A('s_and_b32 %s, %s, 0xfffffff0' % (s(sROT), s(sN1))); A('s_or_b32 %s, %s, %s' % (s(sREC), s(sXCC), s(sROT)))
        A('v_mov_b32 %s, %s' % (v(vN + 1), s(sREC)))
        L.append(('buffer_store_dwordx2 %s, %s, s[%d:%d], %s offen sc1' % (v(vN, 2), v(vT), SWS, SWS + 3, s(sRECA)), 'side'))
        return L
    def nonce_chk(self, br):
        return ['L_nonce_chk%s:' % br, 's_min_u32 %s, %s, %s' % (s(sT2), s(sN0), s(sN1)), 's_cmp_eq_u32 %s, 0' % s(sT2), 's_cbranch_scc1 L_nonce_retry%s' % br]
    def nonce_retry(self, br):
        return ['L_nonce_retry%s:' % br, '@assume_idle', 's_sleep 1'] + SPIN + self.nonce_load() + self.use_nonce() + ['s_branch L_nonce_chk%s' % br]
    def side_loads(self):
        c = self.cfg
        L = []
        if c.touch_o == 'p2': L += self.touch('o')
        L += [('buffer_load_dword %s, %s, s[%d:%d], %s offen %s' % (v(vDUM), v(vPRE), SWS, SWS + 3, s(sOBX), c.prefl), 'side'),
              ('buffer_load_dword %s, %s, s[%d:%d], %s offen %s' % (v(vDUM), v(vZ), SWS, SWS + 3, s(sFLG), c.prefl), 'side')]
        return L

    def middle(self, br):
        c = self.cfg; B = br == 'B'; NT = 2 if B else 1
        L = []; A = L.append
        L += self.stamp(2)
        R = []; A = R.append
        for k in range(sum(c.wv_split), 7): R += self.dma_w(k, 2, L_WV, 'wv%d' % k)
        if not B:
            for i in range(8): A('v_mov_b32 %s, %s' % (v(vPH + i), v(vE + i)))
        for tile in range(2):
            R += self.pack(vK + 16 * tile) + self.zero_hi_pads(vK + 16 * tile)
            for t in range(2):
                k4 = v(vK + 16 * tile + 4 * t, 4); w4 = v(vPH + 4 * t, 4)
                A(mfma(vP + 16 * tile, w4 if B else k4, k4 if B else w4, None if t == 0 else vP + 16 * tile))
        for tile in range(2):
            R += self.softmax(vP + 16 * tile, vE + 32 * tile, vE + 32 * tile + 16, vT2 + 8 * tile, False) if B else self.elu1(vP + 16 * tile, vE + 32 * tile, False, False)
        b1 = c.wv_b1
        wq = self.nonce_load() + (self.touch('q') if c.touch_q == 'p2' else [])
        for k in range(7): wq += self.dma_w(k, 0, L_WQ, 'wq')
        wq += self.side_loads()
        inonce = len(R) + 2 + len(wq)
        wq += self.use_nonce()
        B1 = '@waitvm ' + ' '.join('wv%d' % k for k in range(b1)); B2 = '@waitvm ' + ' '.join('wv%d' % k for k in range(b1, 7))
        hooks = {0: [B1, 's_barrier'] + wq, 4 * b1: [B2, 's_barrier']}
        iwq = len(R) + 2 + [k for k, x in enumerate(wq) if isinstance(x, tuple)][0]
        R += self.gemm(vV, vWRk, L_WV - L_WK, False, 0, hooks)
        tn = lambda tile, sg: (vP if sg == 0 else vK) + 16 * tile
        if B:
            for tile in range(2):
                for sg in range(2):
                    for t in range(2):
                        A(mfma(tn(tile, sg), v(vE + 32 * tile + 16 * sg + 4 * t, 4), v(vID + 4 * t, 4), None if t == 0 else tn(tile, sg)))
                    R += self.pack(tn(tile, sg))
        A('v_mov_b32 %s, 0x3f803f80' % v(vXR2 + 3))
        for tile in range(2):
            R += self.pack(vV + 16 * tile)
            for u in range(8): A('v_cndmask_b32_e64 %s, %s, %s, s[%d:%d]' % (v(vV + 16 * tile + u), v(vV + 16 * tile + u), v(vXR2 + 3), sE28, sE28 + 1))
        for sg in range(NT):
            for tile in range(2):
                src = tn(tile, sg) if B else vE + 32 * tile
                for t in range(2):
                    A(mfma(vKV + 16 * sg, v(src + 4 * t, 4), v(vV + 16 * tile + 4 * t, 4), None if (tile == 0 and t == 0) else vKV + 16 * sg))
        t0, t1, t2 = vXR, vXR + 1, vXR + 2
        A('s_add_u32 %s, %s, %d' % (s(sT3), s(sM0X), L_SCR)); A('v_add_u32 %s, %s, %s' % (v(t0), s(sT3), v(vL16)))
        for q in range(4 * NT): A('ds_write_b128 %s, %s offset:%d' % (v(t0), v(vKV + 4 * q, 4), 1024 * q))
        A('s_and_b32 %s, %s, %d' % (s(sC_), s(sW), 3 if B else 1))
        A('s_lshl_b32 %s, %s, 11' % (s(sA), s(sC_))); A('v_add_u32 %s, %s, %s' % (v(t1), s(sA), v(vL16)))
        A('s_lshl_b32 %s, %s, 4' % (s(sA), s(sBR))); A('s_add_u32 %s, %s, %s' % (s(sA), s(sA), s(sH))); A('s_lshl2_add_u32 %s, %s, %s' % (s(sA), s(sA), s(sC_)))
        A('s_lshl_b32 %s, %s, 13' % (s(sA), s(sA))); A('s_add_u32 %s, %s, %d' % (s(sB_), s(sA), WS_PART)); A('s_add_u32 %s, %s, 4096' % (s(sXB), s(sB_)))
        A('s_lshl_b32 %s, %s, 10' % (s(sA), s(sRB))); A('s_add_u32 %s, %s, %s' % (s(sD_), s(sB_), s(sA))); A('s_lshl_b32 %s, %s, 10' % (s(sC_), s(sC_)))
        A('s_add_u32 %s, %s, %d' % (s(sWB), s(sFLG), WS_XCC - WS_FLAG))
        if not B:
            A('s_cmp_ge_u32 %s, 2' % s(sW)); A('s_cselect_b32 %s, 0x%x, 0' % (s(sA), OOB)); A('v_add_u32 %s, %s, %s' % (v(t2), s(sA), v(vL16)))
        A('v_mov_b32 %s, 0xffff' % v(vXR + 3))
        L += self.sched(R, 'phase2' + br, release={B1: c.rel_b1, B2: c.rel_b2, iwq: c.rel_wq, inonce: c.rel_nonce, inonce + 1: c.rel_nonce, inonce + 2: c.rel_nonce}, vmgap=dict([('wq', c.gap_wq)] + [('wv%d' % k, c.gap_wv) for k in range(7)]), mfma_busy=32, loose_vm=True, boost={'side': 5000})
        L += self.stamp(3)
        L += self.nonce_chk(br)
        A = L.append
        A('@waitlgkm_all'); A('s_barrier')
        for w in range(4):
            for hf in range(2): A('ds_read_b128 %s, %s offset:%d' % (v(vV + 8 * w + 4 * hf, 4), v(t1), L_SCR + 8192 * w + 1024 * hf))
        for (x, y) in ((0, 8), (0, 16), (0, 24)):
            for u in range(0, 8, 2): A('v_pk_add_f32 %s, %s, %s' % (v(vV + x + u, 2), v(vV + x + u, 2), v(vV + y + u, 2)))
        L += self.pack(vV, 4)
        A('v_bfi_b32 %s, %s, %s, %s' % (v(vV + 3), v(vXR + 3), v(vV + 3), v(vTAG)))
        L.append(('buffer_store_dwordx4 %s, %s, s[%d:%d], %s offen sc1' % (v(vV, 4), v(vL16 if B else t2), SWS, SWS + 3, s(sD_)), 'pst'))
        L += self.stamp(4)
        A('@waitvm wq'); A('s_barrier')
        R = []; A = R.append
        t0, t1, t2 = vXR, vXR + 1, vXR + 2
        A('v_mov_b32 %s, 0x%x' % (v(t2), OOB))
        for j in range(1, 4): A('v_add_u32 %s, %d, %s' % (v(vXD + j), j * 2560, v(vWOD)))
        A('s_mul_i32 %s, %s, 14336' % (s(sD_), s(sW))); A('s_lshl_b32 %s, %s, 8' % (s(sA), s(sCB))); A('s_add_u32 %s, %s, %s' % (s(sD_), s(sD_), s(sA)))
        A('s_lshl_b32 %s, %s, 12' % (s(sA), s(sW)))
        A('v_and_b32 %s, 15, %s' % (v(vXR + 3), v(vL))); A('v_lshlrev_b32 %s, 3, %s' % (v(vXR + 3), v(vXR + 3)))
        npart = None
        for m in range(7):
            if m == c.wo_before: npart = len(R); R += self.part_loads()
            A('s_add_u32 m0, %s, %d' % (s(sA), L_WO + 16384 * m))
            if m: A('s_add_u32 %s, %s, %d' % (s(sD_), s(sD_), 57344))
            for j in range(4): R.append(('buffer_load_dwordx4 %s, s[%d:%d], %s offen offset:%d %s lds' % (v(vXD + j if j else vWOD), SWO, SWO + 3, s(sD_), 1024 * j, c.wofl), 'wo'))
        A('s_add_u32 m0, %s, %d' % (s(sM0W), L_WO + 114688))
        R.append(('buffer_load_dwordx4 %s, s[%d:%d], 0 offen lds' % (v(t2), SWO, SWO + 3), 'wo'))
        if npart is None: npart = len(R); R += self.part_loads()
        R += self.gemm(vK, vWRq, L_WQ, True, 4)
        for tile in range(2):
            R += self.pack(vK + 16 * tile) + self.zero_hi_pads(vK + 16 * tile)
            for t in range(2):
                A(mfma(vP + 16 * tile, v(vPH + 4 * t, 4), v(vK + 16 * tile + 4 * t, 4), None if t == 0 else vP + 16 * tile))
        for tile in range(2):
            R += self.softmax(vP + 16 * tile, vE + 32 * tile, vE + 32 * tile + 16, vT2 + 8 * tile, True) if B else self.elu1(vP + 16 * tile, vE + 32 * tile, True, True)
        L += self.sched(R, 'q' + br, release={npart: c.rel_part}, vmgap={'wo': c.gap_wo}, boost={'wo': 5000, 'part': 5000})
        L += self.stamp(6)
        A = L.append
        A('@waitvm part')
        L += self.stamp(5)
        A('L_part_chk%s:' % br)
        R = []; A = R.append
        G0 = vKV
        for p in range(8): A(mfma(vV, v(vID, 4), v(G0 + 4 * p, 4), None if p == 0 else vV))
        x, y, z = vT2, vT2 + 1, vT2 + 2
        A('v_max3_u32 %s, %s, %s, %s' % (v(x), v(G0 + 3), v(G0 + 7), v(G0 + 11))); A('v_min3_u32 %s, %s, %s, %s' % (v(y), v(G0 + 3), v(G0 + 7), v(G0 + 11)))
        A('v_max3_u32 %s, %s, %s, %s' % (v(x), v(x), v(G0 + 15), v(G0 + 19))); A('v_min3_u32 %s, %s, %s, %s' % (v(y), v(y), v(G0 + 15), v(G0 + 19)))
        A('v_max3_u32 %s, %s, %s, %s' % (v(x), v(x), v(G0 + 23), v(G0 + 27))); A('v_min3_u32 %s, %s, %s, %s' % (v(y), v(y), v(G0 + 23), v(G0 + 27)))
        A('v_max_u32 %s, %s, %s' % (v(x), v(x), v(G0 + 31))); A('v_min_u32 %s, %s, %s' % (v(y), v(y), v(G0 + 31)))
        A('v_xor_b32 %s, %s, %s' % (v(x), v(x), v(vTAG))); A('v_xor_b32 %s, %s, %s' % (v(y), v(y), v(vTAG)))
        A('v_or_b32 %s, %s, %s' % (v(x), v(x), v(y))); A('v_lshrrev_b32 %s, 16, %s' % (v(x), v(x)))
        A('v_xor_b32 %s, %s, %s' % (v(y), s(sN0), v(vN))); A('v_xor_b32 %s, %s, %s' % (v(z), s(sREC), v(vN + 1)))
        A('v_cmp_ne_u32_e64 s[%d:%d], 0, %s' % (sFAR, sFAR + 1, v(z)))
        A('v_lshrrev_b32 %s, 4, %s' % (v(z), v(z))); A('v_or3_b32 %s, %s, %s, %s' % (v(x), v(x), v(y), v(z)))
        A('v_cmp_ne_u32 vcc, 0, %s' % v(x))
        A('v_add_u32 %s, %s, %s' % (v(y), s(sC_), v(vL16))); A('v_add_u32 %s, %d, %s' % (v(y), L_MISC, v(y))); A('v_add_u32 %s, %d, %s' % (v(z), L_MISC, v(vL16)))
        L += self.sched(R, 'sum' + br)
        A = L.append
        A('s_cbranch_vccnz L_part_retry%s' % br)
        L += self.pack(vV, 4)
        A('v_and_b32 %s, 0xffff, %s' % (v(vV + 3), v(vV + 3)))
        A('ds_write_b128 %s, %s' % (v(y), v(vV, 4)))
        A('@wait_all'); A('s_barrier')
        R = []; A = R.append
        for q in range(2 * NT): A('ds_read_b128 %s, %s offset:%d' % (v(vV + 16 + 4 * q, 4), v(z), 1024 * q))
        for tile in range(2):
            for q in range(2 * NT):
                A(mfma(vP + 16 * tile, v(vV + 16 + 4 * q, 4), v(vE + 32 * tile + 16 * (q >> 1) + 4 * (q & 1), 4), None if q == 0 else vP + 16 * tile))
        for tile in range(2):
            P = vP + 16 * tile; d = vT2 + 4 + 4 * tile
            A('v_mov_b32 %s, %s' % (v(d), v(P + 12))); A('v_permlane32_swap_b32 %s, %s' % (v(P + 12), v(d)))
            A('v_add_f32 %s, 0x358637bd, %s' % (v(d), v(d))); A('v_rcp_f32 %s, %s' % (v(d), v(d)))
            for u in range(8):
                if tile: A('v_pk_mul_f32 %s, %s, %s op_sel_hi:[1,0]' % (v(P + 2 * u, 2), v(P + 2 * u, 2), v(d, 2)))
                else:
                    for k in range(2): A('v_mul_f32 %s, %s, %s' % (v(P + 2 * u + k), v(P + 2 * u + k), v(d)))
                A('v_cvt_pk_bf16_f32 %s, %s, %s' % (v(P + u), v(P + 2 * u), v(P + 2 * u + 1)))
            R += self.zero_hi_pads(P)
        A('v_mov_b32 %s, %s' % (v(vN), s(sN0))); A('v_mov_b32 %s, %s' % (v(vN + 1), s(sN1)))
        A('s_lshl_b32 %s, %s, 3' % (s(sT2), s(sH))); A('s_add_u32 %s, %s, %s' % (s(sC_), s(sFLG), s(sT2)))
        L += self.sched(R, 'o' + br)
        L += self.stamp(7)
        A = L.append
        if c.force_global: A('s_branch L_far')
        A('s_cmp_lg_u64 s[%d:%d], 0' % (sFAR, sFAR + 1)); A('s_cbranch_scc1 L_far')
        return L
    def publish(self, fl):
        L = []
        for tile in range(2):
            for t in range(2):
                L.append(('buffer_store_dwordx4 %s, %s, s[%d:%d], %s offen offset:%d %s' % (v(vP + 16 * tile + 4 * t, 4), v(vL16), SWS, SWS + 3, s(sOBX), 2048 * tile + 1024 * t, fl), 'ost'))
        L += self.wo_reads()
        L += ['@wait_all', 's_barrier']
        L.append('buffer_store_dwordx2 %s, %s, s[%d:%d], %s offen %s' % (v(vN, 2), v(vT), SWS, SWS + 3, s(sC_), fl))
        return L
    def part_loads(self):
        L = []
        L.append(('buffer_load_dwordx2 %s, %s, s[%d:%d], %s offen sc1' % (v(vN, 2), v(vXR + 3), SWS, SWS + 3, s(sWB)), 'part'))
        for p in range(8):
            L.append(('buffer_load_dwordx4 %s, %s, s[%d:%d], %s offen offset:%d sc1' % (v(vKV + 4 * p, 4), v(vL16), SWS, SWS + 3, s(sXB if p >= 4 else sB_), 1024 * (p & 3)), 'part'))
        return L
    def part_retry(self, br):
        return ['L_part_retry%s:' % br, '@assume_idle', 's_nop 15'] + SPIN + self.part_loads() + ['@waitvm_all', 's_branch L_part_chk%s' % br]
    def far(self):
        return ['L_far:', '@assume_idle', 's_nop 4'] + self.publish('sc1') + ['s_branch L_join']
    def wo_reads(self):
        L = []
        for h in range(16):
            for t in range(2):
                for u in range(2):
                    off = (28 * h + 16 * t + 8 * u) * 256
                    L.append('ds_read_b64_tr_b16 %s, %s offset:%d' % (a(4 * (2 * h + t) + 2 * u, 2), v(vWO0 + (off >> 16)), off & 0xffff))
        return L

    def tail(self):
        c = self.cfg
        L = ['L_pub:'] + self.publish(''); A = L.append
        A('L_join:')
        L += self.stamp(8)
        A('s_lshl_b32 %s, %s, 6' % (s(sT2), s(sGID))); A('s_add_u32 %s, %s, %s' % (s(sT2), s(sT2), s(sRQ)))
        A('s_lshl_b32 %s, %s, 12' % (s(sT2), s(sT2))); A('s_add_u32 %s, %s, %s' % (s(sT2), s(sT2), s(sM0W))); A('s_add_u32 %s, %s, %d' % (s(sD_), s(sT2), WS_O))
        A('s_lshl_b32 %s, %s, 2' % (s(sT2), s(sRB))); A('s_add_u32 %s, %s, %s' % (s(sT2), s(sT2), s(sRQ))); A('s_mul_i32 %s, %s, %d' % (s(sC_), s(sT2), 64 * 1792))
        A('s_mul_i32 %s, %s, 896' % (s(sT2), s(sBR))); A('s_add_u32 %s, %s, %s' % (s(sC_), s(sC_), s(sT2)))
        A('s_lshl_b32 %s, %s, 2' % (s(sT2), s(sCB))); A('s_add_u32 %s, %s, %s' % (s(sT2), s(sT2), s(sW)))
        A('s_cmp_ge_u32 %s, 14' % s(sT2)); A('s_cselect_b32 %s, 0x%x, 0' % (s(sA), OOB))
        A('s_lshl_b32 %s, %s, 6' % (s(sT2), s(sT2))); A('s_add_u32 %s, %s, %s' % (s(sXO), s(sC_), s(sT2)))
        for b in range(1, 4): A('s_add_u32 %s, %s, %d' % (s(sXO + b), s(sXO), b * 16 * 1792))
        t0, t1, t2, vOW, vOR, vOG = vT2 + 10, vT2 + 11, vT2 + 12, vT2 + 4, vT2 + 8, vT2 + 9
        A('s_lshl_b32 %s, %s, 12' % (s(sB_), s(sW))); A('s_add_u32 %s, %s, %d' % (s(sB_), s(sB_), L_OT))
        A('v_and_b32 %s, 31, %s' % (v(t0), v(vL))); A('v_lshl_add_u32 %s, %s, 6, %s' % (v(t0), v(t0), s(sB_)))
        A('v_lshrrev_b32 %s, 5, %s' % (v(t1), v(vL))); A('v_lshl_add_u32 %s, %s, 3, %s' % (v(t0), v(t1), v(t0)))
        A('v_bfe_u32 %s, %s, 1, 2' % (v(t1), v(vL)))
        for b in range(4):
            A('v_xor_b32 %s, %d, %s' % (v(t2), b, v(t1))); A('v_lshl_add_u32 %s, %s, 4, %s' % (v(vOW + b), v(t2), v(t0)))
        A('v_bfe_u32 %s, %s, 3, 2' % (v(t1), v(vL))); A('v_xor_b32 %s, %s, %s' % (v(t1), v(t1), v(vL))); A('v_and_b32 %s, 3, %s' % (v(t1), v(t1)))
        A('v_lshrrev_b32 %s, 2, %s' % (v(t0), v(vL))); A('v_lshl_add_u32 %s, %s, 6, %s' % (v(t2), v(t0), s(sB_))); A('v_lshl_add_u32 %s, %s, 4, %s' % (v(vOR), v(t1), v(t2)))
        A('v_mul_u32_u24 %s, 1792, %s' % (v(t0), v(t0))); A('v_and_b32 %s, 3, %s' % (v(t1), v(vL))); A('v_lshl_add_u32 %s, %s, 4, %s' % (v(t0), v(t1), v(t0)))
        A('v_add_u32 %s, %s, %s' % (v(vOG), s(sA), v(t0)))
        A('s_mov_b32 m0, %s' % s(sM0W))
        A('L_poll:')
        L += SPIN
        A('buffer_load_dwordx2 %s, %s, s[%d:%d], %s offen sc1' % (v(vT2, 2), v(vXR + 3), SWS, SWS + 3, s(sFLG)))
        A('v_xor_b32 %s, %s, %s' % (v(vT2), s(sN0), v(vT2))); A('v_xor_b32 %s, %s, %s' % (v(vT2 + 1), s(sN1), v(vT2 + 1)))
        A('v_or_b32 %s, %s, %s' % (v(vT2), v(vT2), v(vT2 + 1))); A('v_cmp_ne_u32 vcc, 0, %s' % v(vT2)); A('s_cbranch_vccnz L_poll')
        L += self.stamp(9)
        st_of = []
        for st, n in enumerate(c.stages): st_of += [st] * n
        def odma(h):
            X = ['s_add_u32 m0, %s, %d' % (s(sM0W), 4096 * h), 's_add_u32 %s, %s, %d' % (s(sD_), s(sD_), 16384)] if h else []
            return X + [('buffer_load_dwordx4 %s, s[%d:%d], %s offen sc1 lds' % (v(vL16), SWS, SWS + 3, s(sD_)), 'o%d' % st_of[h])]
        for h in range(c.o_first): L += odma(h)
        if c.wbl2:
            A('s_or_b32 %s, %s, %s' % (s(sT2), s(sH), s(sW))); A('s_cmp_lg_u32 %s, 0' % s(sT2)); A('s_cbranch_scc1 L_nowb')
            L.append(('buffer_wbl2 sc1', 'untracked')); A('L_nowb:')
        R = []; A = R.append
        rel = {}
        for k in range(32):
            h, t = k >> 1, k & 1
            if t == 0 and (h == 0 or st_of[h] != st_of[h - 1]):
                A('@waitvm o%d' % st_of[h]); A('s_barrier')
                last = max(j for j in range(16) if st_of[j] == st_of[h])
                rel['@waitvm o%d' % st_of[h]] = 400 + 75 * last
                if h == 0:
                    for j in range(c.o_first, 16): R += odma(j)
            for rt in range(2):
                r = vE + 4 * ((2 * k + rt) % 12)
                A('ds_read_b128 %s, %s offset:%d' % (v(r, 4), v(vL16), h * 4096 + rt * 2048 + t * 1024))
                A(mfma(vK + 16 * rt, a(4 * k, 4), v(r, 4), None if k == 0 else vK + 16 * rt))
        L += self.sched(R, 'gemm3', release=rel, vmgap={'o%d' % k: c.gap_o for k in range(8)}, loose_vm=True, boost={'o%d' % k: 5000 for k in range(8)})
        L += self.stamp(10)
        R = []; A = R.append
        for rt in range(2):
            R += self.pack(vK + 16 * rt)
            for b in range(4): A('ds_write_b64 %s, %s offset:%d' % (v(vOW + b), v(vK + 16 * rt + 2 * b, 2), 2048 * rt))
            for j in range(2 * rt, 2 * rt + 2):
                A('ds_read_b128 %s, %s offset:%d' % (v(vP + 4 * j, 4), v(vOR), 1024 * j))
                A('buffer_store_dwordx4 %s, %s, s[%d:%d], %s offen %s' % (v(vP + 4 * j, 4), v(vOG), SOUT, SOUT + 3, s(sXO + j), c.outfl))
        L += self.sched(R, 'out')
        A = L.append
        if c.stamps:
            L += self.stamp(11)
            A('s_memrealtime s[%d:%d]' % (sT0, sT1)); A('@waitlgkm_all')
            A('v_writelane_b32 %s, %s, 12' % (v(vST), s(sT0))); A('v_writelane_b32 %s, s3, 0' % v(vST))
            A('s_lshl_b32 %s, s2, 2' % s(sT2)); A('s_add_u32 %s, %s, %s' % (s(sT2), s(sT2), s(sW))); A('s_lshl_b32 %s, %s, 8' % (s(sT2), s(sT2)))
            A('s_add_u32 %s, %s, %d' % (s(sT2), s(sT2), WS_STAMP))
            A('v_lshlrev_b32 %s, 2, %s' % (v(vT), v(vL)))
            for k in range(8): A('v_writelane_b32 %s, s%d, %d' % (v(vST), 4 + 2 * k, 32 + k))
            A('buffer_store_dword %s, %s, s[%d:%d], %s offen' % (v(vST), v(vT), SWS, SWS + 3, s(sT2)))
        if c.tfix:
            A('L_tfix:'); A('s_memrealtime s[%d:%d]' % (sT0, sT1)); A('@waitlgkm_all'); A('s_sub_u32 %s, %s, s100' % (s(sT0), s(sT0))); A('s_cmp_lt_u32 %s, %d' % (s(sT0), c.tfix)); A('s_cbranch_scc1 L_tfix')
        A('L_end:'); A('s_endpgm')
        return L

    def build(self):
        shared = self.prologue() + self.stream() + ['s_cmp_eq_u32 %s, 0' % s(sBR), 's_cbranch_scc1 L_brA']
        MK = '.set MARK_A, 0'
        main = finalize(shared + self.middle('B') + self.tail())
        alt = finalize(shared + [MK, 'L_brA:'] + self.middle('A') + ['@wait_all', 's_branch L_pub'])
        alt = alt[alt.index(MK) + 1:]
        side = finalize(self.far() + self.mknonce() + self.nonce_retry('B') + self.nonce_retry('A') + self.part_retry('B') + self.part_retry('A'))
        return main, alt, side

HEADER = open(os.path.join(os.path.dirname(os.path.abspath(__file__)), 'header.txt')).read()

def generate(cfg):
    g = G(cfg)
    main, alt, side = g.build()
    body = main + alt + side
    txt = HEADER
    if cfg.extra_empty:
        txt += '; @launch kernel=%s grid=(256,1,1) block=(256,1,1) lds=163840\n; @launch kernel=empty_kernel grid=(256,1,1) block=(256,1,1) lds=0\n' % KNAME
    else:
        txt += '; @launch grid=(256,1,1) block=(256,1,1) lds=163840\n'
    txt += '.amdgcn_target "amdgcn-amd-amdhsa--gfx950"\n.text\n.globl %s\n.p2align 8\n.type %s,@function\n%s:\n' % (KNAME, KNAME, KNAME)
    txt += '\n'.join(('' if l.endswith(':') else '    ') + l for l in body) + '\n'
    if cfg.extra_empty:
        txt += '.globl empty_kernel\n.p2align 8\n.type empty_kernel,@function\nempty_kernel:\n    s_endpgm\n'
        txt += '.section .rodata,"a"\n.p2align 6\n.amdhsa_kernel empty_kernel\n  .amdhsa_next_free_vgpr 8\n  .amdhsa_next_free_sgpr 16\n  .amdhsa_accum_offset 8\n  .amdhsa_group_segment_fixed_size 0\n  .amdhsa_kernarg_size 80\n  .amdhsa_user_sgpr_count 2\n  .amdhsa_user_sgpr_kernarg_segment_ptr 1\n  .amdhsa_system_sgpr_workgroup_id_x 1\n.end_amdhsa_kernel\n'
    txt += '.section .rodata,"a"\n.p2align 6\n.amdhsa_kernel %s\n' % KNAME
    txt += '  .amdhsa_next_free_vgpr 512\n  .amdhsa_next_free_sgpr 102\n  .amdhsa_accum_offset 256\n  .amdhsa_group_segment_fixed_size 0\n'
    txt += '  .amdhsa_kernarg_size 80\n  .amdhsa_user_sgpr_count 2\n  .amdhsa_user_sgpr_kernarg_segment_ptr 1\n  .amdhsa_system_sgpr_workgroup_id_x 1\n.end_amdhsa_kernel\n'
    import subprocess, tempfile, re
    d = tempfile.mkdtemp()
    open(d + '/a.s', 'w').write(txt.replace('CODE_SPAN', '0x5000'))
    r = subprocess.run(['clang', '-x', 'assembler', '-target', 'amdgcn-amd-amdhsa', '-mcpu=gfx950', '-c', d + '/a.s', '-o', d + '/a.o'], capture_output=True, text=True)
    if r.returncode: raise Exception(r.stderr[:3000])
    r = subprocess.run(['llvm-readelf', '-S', d + '/a.o'], capture_output=True, text=True).stdout
    size = int(re.search(r'\.text\s+PROGBITS\s+\w+\s+\w+\s+(\w+)', r).group(1), 16)
    assert size < 32768 + 64
    sys.stderr.write('code bytes: %d\n' % size)
    return txt.replace('CODE_SPAN', hex(size - 64))

if __name__ == '__main__':
    cfg = Cfg()
    out = sys.argv[1]
    for kv in sys.argv[2:]:
        k, val = kv.split('=', 1); assert hasattr(cfg, k), k; setattr(cfg, k, eval(val))
    open(out, 'w').write(generate(cfg))
```

```python
import sys, os
from emit import finalize, interleave
from sched import schedule

KNAME = 'concat_heads__linear_attn_block__linear_kernel_hedgehog__prompt_kernel'

class Cfg:
    stamps = False
    dbgstamps = False; tfix = 0; extra_empty = False; force_global = False; verbose = False
    rot = True; pref_slots = 2
    xfl = ''; wfl = ''; wofl = ''; outfl = ''; prefl = 'sc1'; tfl = ''
    rel_nonce = 1900
    touch_v = None
    touch_q = None; touch_o = 'p2'
    wv_it = 4; wv_b1 = 3
    rel_b1 = 200; rel_b2 = 900; rel_wq = 300; gap_wq = 120; gap_wo = 64; gap_wv = 60; rel_part = 1900; rel_wo = 0
    stages = (1, 1, 2, 4, 4, 4)
    wbl2 = False
    lite = False
    leak = None
    setup_first = True; rel_it = 300; gap_x = 24
    itst = False
    wv_split = (2, 2, 1)
    wo_before = 5
    fine = None
    o_first = 7; gap_o = 64

WS_XCC, WS_FLAG, WS_PART, WS_O, WS_STAMP = 4096, 8192, 65536, 2 << 20, 16 << 20
WS_BYTES = 32 << 20
L_WK, L_WV, L_MISC, L_WQ, L_WO, L_SCR, L_OT = 98304, 126976, 155648, 0, 32768, 32768, 65536
OOB = 0x40000000
sAX, sAW, sAWO, sBX, sBW, sPHI, sBWO, sOUT, sDBG, sWSP = 4, 6, 8, 10, 12, 14, 16, 18, 20, 22
SX, SW, SWO, SPHI, SWS, SOUT = 24, 28, 32, 36, 40, 44
sBR, sRB, sH, sW, sGID, sSLOT, sT0, sT1, sT2, sXCC = 48, 49, 50, 51, 52, 53, 54, 55, 56, 57
sN0, sN1 = 58, 59
sHI, sE28 = 60, 62
sXO, sWO_ = 64, 72
sSPIN, sFAR = 71, 72
sM0X, sM0W, sSH, sCB, sRQ, sPB = 80, 81, 82, 83, 84, 85
sA, sB_, sC_, sD_ = 86, 87, 88, 89
sM0A, sM0B, sDT, sROT, sXB, sWB, sOBX, sFLG, sT3, sREC, sRECA = 90, 91, 92, 93, 94, 95, 96, 97, 98, 99, 79
sM1, sM2 = SPHI, SPHI + 2
SPIN = ['s_add_u32 s71, s71, 1', 's_cmp_gt_u32 s71, 0x100000', 's_cbranch_scc1 L_end']
vL = 1
vXD, vWD, vWRq, vWRk, vZ = 2, 6, 7, 8, 9
vXR, vXR2 = 10, 14
vDUM, vT = 18, 19
vPH, vID, vC, vST, vN = 20, 28, 36, 37, 38
vK, vV, vP, vE, vKV, vT2 = 40, 72, 104, 136, 200, 232
vTAG, vL16 = 248, 249
vWO0, vWOD = 250, 252
vTCH, vTCO, vPRE = 253, 254, 255
aX, aWR = 0, 224

def v(r, n=1): return 'v%d' % r if n == 1 else 'v[%d:%d]' % (r, r + n - 1)
def a(r, n=1): return 'a%d' % r if n == 1 else 'a[%d:%d]' % (r, r + n - 1)
def s(r, n=1): return 's%d' % r if n == 1 else 's[%d:%d]' % (r, r + n - 1)
MF = 'v_mfma_f32_32x32x16_bf16'
def mfma(d, x, y, c): return '%s %s, %s, %s, %s' % (MF, v(d, 16), x, y, v(c, 16) if c is not None else '0')

class G:
    def __init__(self, cfg): self.cfg = cfg
    def stamp(self, k):
        if self.cfg.leak == k: return ['@waitlgkm_all', 's_memrealtime s[%d:%d]' % (sT0, sT1), '@waitlgkm_all', 's_sub_u32 s3, %s, s100' % s(sT0)]
        if not self.cfg.stamps or (self.cfg.lite and k not in (11, 13)): return []
        return ['@waitlgkm_all', 's_memtime s[%d:%d]' % (sT0, sT1), 's_memrealtime s[100:101]', '@waitlgkm_all', 'v_writelane_b32 %s, %s, %d' % (v(vST), s(sT0), k),
                'v_writelane_b32 %s, s100, %d' % (v(vST), 16 + k)]
    def sched(self, L, name, **kw): return self.fine(schedule(L, verbose=name if self.cfg.verbose else False, **kw), name)
    def fine(self, L, name):
        if not self.cfg.fine or not name.startswith(self.cfg.fine): return L
        out = []; n = len(L); pos = {(k * n) // 7: k for k in range(7)}
        for i, x in enumerate(L):
            if i in pos: out.append(('s_memtime s[%d:%d]' % (4 + 2 * pos[i], 5 + 2 * pos[i]), 'nowait'))
            out.append(x)
        out.append(('s_memtime s[18:19]', 'nowait'))
        if self.cfg.verbose:
            for i, k in pos.items(): sys.stderr.write('  fine %s %d at %d: %s\n' % (name, k, i, L[i]))
        return out

    def offs(self, i):
        L = ['s_lshl_b32 %s, %s, 7' % (s(sD_), s(sROT)), 's_add_u32 %s, %s, %s' % (s(sXO + i), s(sXB), s(sD_)),
             's_mul_i32 %s, %s, %d' % (s(sD_), s(sROT), 64 * 2688), 's_add_u32 %s, %s, %s' % (s(sWO_ + i), s(sWB), s(sD_))]
        if i < 6: L += ['s_add_u32 %s, %s, 1' % (s(sROT), s(sROT)), 's_cmp_eq_u32 %s, 7' % s(sROT), 's_cselect_b32 %s, 0, %s' % (s(sROT), s(sROT))]
        return L
    def touch(self, what):
        c = self.cfg
        if what == 'o': return [('buffer_load_dword %s, %s, s[%d:%d], 0 offen %s' % (v(vDUM), v(vTCO), SWO, SWO + 3, c.tfl), 'touch')]
        return [('buffer_load_dword %s, %s, s[%d:%d], 0 offen offset:%d %s' % (v(vDUM), v(vTCH), SW, SW + 3, {'q': 0, 'v': 1792}[what], c.tfl), 'touch')]

    def prologue(self):
        c = self.cfg; L = []; A = L.append
        A('s_load_dwordx16 s[4:19], s[0:1], 0')
        A('s_load_dwordx4 s[20:23], s[0:1], 64')
        if c.stamps or c.tfix or c.leak: A('s_memrealtime s[100:101]')
        A('s_cmp_ge_u32 s2, 256'); A('s_cbranch_scc1 L_end')
        A('s_lshr_b32 %s, s2, 3' % s(sSLOT))
        A('s_cmp_lt_u32 %s, %d' % (s(sSLOT), c.pref_slots)); A('s_cselect_b32 %s, CODE_SPAN, 0' % s(sT2))
        A('s_getpc_b64 s[%d:%d]' % (sT0, sT1))
        A('v_lshlrev_b32 %s, 7, v0' % v(vT))
        A('v_min_u32 %s, %s, %s' % (v(vT), s(sT2), v(vT)))
        L.append(('global_load_dword %s, %s, s[%d:%d]' % (v(vDUM), v(vT), sT0, sT1), 'pref'))
        A('v_lshrrev_b32 %s, 6, v0' % v(vT)); A('v_and_b32 %s, 63, v0' % v(vL))
        A('v_readfirstlane_b32 %s, %s' % (s(sW), v(vT)))
        A('s_bfe_u32 %s, s2, 0x10002' % s(sBR))
        A('s_and_b32 %s, s2, 3' % s(sRB)); A('s_lshl_b32 %s, %s, 1' % (s(sRB), s(sRB)))
        A('s_lshr_b32 %s, %s, 4' % (s(sT2), s(sSLOT))); A('s_add_u32 %s, %s, %s' % (s(sRB), s(sRB), s(sT2)))
        A('s_and_b32 %s, %s, 15' % (s(sH), s(sSLOT)))
        A('s_mul_i32 %s, %s, 3' % (s(sT2), s(sT2))); A('s_add_u32 %s, %s, %s' % (s(sROT), s(sH), s(sT2)))
        A('s_mul_i32 %s, %s, 37' % (s(sB_), s(sROT))); A('s_lshr_b32 %s, %s, 8' % (s(sB_), s(sB_)))
        A('s_mul_i32 %s, %s, 7' % (s(sB_), s(sB_))); A('s_sub_u32 %s, %s, %s' % (s(sROT), s(sROT), s(sB_)))
        if not c.rot: A('s_mov_b32 %s, 0' % s(sROT))
        A('s_and_b32 %s, %s, 1' % (s(sA), s(sH)))
        A('s_lshl_b32 %s, %s, 2' % (s(sB_), s(sRB))); A('s_add_u32 %s, %s, %s' % (s(sB_), s(sB_), s(sW)))
        A('s_lshl1_add_u32 %s, %s, %s' % (s(sB_), s(sB_), s(sA))); A('s_mul_i32 %s, %s, 28672' % (s(sXB), s(sB_)))
        A('s_lshl_b32 %s, %s, 13' % (s(sM0X), s(sW))); A('s_lshl_b32 %s, %s, 10' % (s(sM0W), s(sW)))
        A('s_mul_i32 %s, %s, -57344' % (s(sDT), s(sA))); A('s_add_u32 %s, %s, 28672' % (s(sDT), s(sDT)))
        A('s_lshl_b32 %s, %s, 12' % (s(sA), s(sA))); A('s_add_u32 %s, %s, %s' % (s(sM0A), s(sM0X), s(sA))); A('s_xor_b32 %s, %s, 4096' % (s(sM0B), s(sM0A)))
        A('s_cmp_eq_u32 %s, 15' % s(sH)); A('s_cselect_b32 %s, 8, 0' % s(sSH))
        A('s_mul_i32 %s, %s, 56' % (s(sC_), s(sH))); A('s_sub_u32 %s, %s, %s' % (s(sC_), s(sC_), s(sSH)))
        A('s_mul_i32 %s, %s, %d' % (s(sD_), s(sW), 16 * 2688)); A('s_add_u32 %s, %s, %s' % (s(sWB), s(sC_), s(sD_)))
        L += self.offs(0) + self.offs(1)
        t0, t1, t2 = vT2, vT2 + 1, vT2 + 2
        A('v_lshrrev_b32 %s, 3, %s' % (v(t0), v(vL))); A('v_mul_u32_u24 %s, 896, %s' % (v(t0), v(t0)))
        A('v_lshrrev_b32 %s, 4, %s' % (v(t1), v(vL))); A('v_and_b32 %s, 7, %s' % (v(t2), v(vL)))
        A('v_xor_b32 %s, %s, %s' % (v(t2), v(t1), v(t2)))
        A('v_lshl_add_u32 %s, %s, 4, %s' % (v(vXD), v(t2), v(t0)))
        A('v_xor_b32 %s, 4, %s' % (v(t2), v(t2))); A('v_lshl_add_u32 %s, %s, 4, %s' % (v(vXD + 1), v(t2), v(t0)))
        A('v_add_u32 %s, %d, %s' % (v(vXD + 2), 2 * 6144, v(vXD))); A('v_add_u32 %s, %d, %s' % (v(vXD + 3), 3 * 6144, v(vXD + 1)))
        A('v_add_u32 %s, %d, %s' % (v(vXD + 1), 6144, v(vXD + 1)))
        A('v_lshrrev_b32 %s, 2, %s' % (v(t0), v(vL))); A('v_mul_u32_u24 %s, 2688, %s' % (v(t0), v(t0)))
        A('v_and_b32 %s, 3, %s' % (v(t2), v(vL))); A('v_lshl_add_u32 %s, %s, 4, %s' % (v(vWD), v(t2), v(t0)))
        for srd, n in ((SX, 1835008), (SW, 1204224), (SWO, 401408), (SWS, WS_BYTES), (SOUT, 3670016)):
            A('s_mov_b32 %s, %d' % (s(srd + 2), n)); A('s_mov_b32 %s, 0x20000' % s(srd + 3))
        A('s_cmp_eq_u32 %s, 0' % s(sBR))
        A('@waitlgkm_all')
        if c.leak == 13: L += self.stamp(13); A('s_cmp_eq_u32 %s, 0' % s(sBR))
        if c.stamps: A('s_mov_b32 s3, s100'); L += self.stamp(13); A('s_cmp_eq_u32 %s, 0' % s(sBR))
        for (srd, pa, pb) in ((SX, sAX, sBX), (SW, sAW, sBW), (SWO, sAWO, sBWO)):
            A('s_cselect_b32 %s, %s, %s' % (s(srd), s(pa), s(pb))); A('s_cselect_b32 %s, %s, %s' % (s(srd + 1), s(pa + 1), s(pb + 1)))
        A('s_cselect_b32 %s, 0, 25088' % s(SPHI + 2))
        x0 = self.dma_x(0)
        L += x0[:5] + self.dma_w(0, 1, L_WK, 'wk0') + self.dma_w(1, 1, L_WK, 'wk1')
        A('s_mov_b32 %s, %s' % (s(SPHI), s(sPHI))); A('s_mov_b32 %s, %s' % (s(SPHI + 1), s(sPHI + 1))); A('s_mov_b32 %s, 0x20000' % s(SPHI + 3))
        A('v_lshlrev_b32 %s, 4, %s' % (v(vL16), v(vL)))
        A('s_cmp_ge_u32 %s, 2' % s(sW)); A('s_cselect_b32 %s, 0x%x, %s' % (s(sA), OOB, s(sM0W))); A('v_add_u32 %s, %s, %s' % (v(t0), s(sA), v(vL16)))
        A('s_mul_i32 %s, %s, 1568' % (s(sT2), s(sH))); A('s_add_u32 m0, %s, %d' % (s(sM0W), L_MISC))
        L.append(('buffer_load_dwordx4 %s, s[%d:%d], %s offen lds' % (v(t0), SPHI, SPHI + 3, s(sT2)), 'phi'))
        L += x0[5:]
        for (srd, p) in ((SWS, sWSP), (SOUT, sOUT)):
            A('s_mov_b32 %s, %s' % (s(srd), s(p))); A('s_mov_b32 %s, %s' % (s(srd + 1), s(p + 1)))
        A('v_mov_b32 %s, 0' % v(vZ))
        A('s_or_b32 %s, s2, %s' % (s(sT2), s(sW))); A('s_cmp_eq_u32 %s, 0' % s(sT2)); A('s_cbranch_scc1 L_mknonce')
        A('L_nononce:')
        for i in range(2, 7): L += self.offs(i)
        A('s_mov_b32 %s, 0' % s(sSPIN))
        A('s_getreg_b32 %s, hwreg(HW_REG_XCC_ID, 0, 4)' % s(sXCC))
        m, hi, t3, t4 = vT2 + 3, vT2 + 4, vT2 + 5, vT2 + 6
        A('s_mul_i32 %s, %s, 98' % (s(sA), s(sSLOT))); A('s_mul_i32 %s, %s, 25' % (s(sB_), s(sW))); A('s_add_u32 %s, %s, %s' % (s(sA), s(sA), s(sB_)))
        A('v_min_u32 %s, 24, %s' % (v(t0), v(vL))); A('v_add_u32 %s, %s, %s' % (v(t0), s(sA), v(t0))); A('v_min_u32 %s, 3135, %s' % (v(t0), v(t0)))
        A('v_lshlrev_b32 %s, 7, %s' % (v(vTCO), v(t0)))
        A('v_mul_u32_u24 %s, 9363, %s' % (v(t1), v(t0))); A('v_lshrrev_b32 %s, 16, %s' % (v(t1), v(t1)))
        A('v_mul_u32_u24 %s, 1792, %s' % (v(t1), v(t1))); A('v_add_u32 %s, %s, %s' % (v(vTCH), v(t1), v(vTCO)))
        if c.touch_v == -1: L += self.touch('v')
        A('v_and_b32 %s, 31, %s' % (v(m), v(vL))); A('v_lshrrev_b32 %s, 5, %s' % (v(hi), v(vL)))
        A('v_bfe_u32 %s, %s, 1, 3' % (v(t1), v(m))); A('v_xor_b32 %s, %s, %s' % (v(t1), v(t1), v(hi)))
        A('v_lshl_add_u32 %s, %s, 7, %s' % (v(t2), v(m), s(sM0X)))
        for ks in range(4):
            A('v_xor_b32 %s, %d, %s' % (v(t3), 2 * ks, v(t1))); A('v_lshl_add_u32 %s, %s, 4, %s' % (v(vXR + ks), v(t3), v(t2)))
            A('v_add_u32 %s, 0x10000, %s' % (v(vXR2 + ks), v(vXR + ks)))
        A('v_bfe_u32 %s, %s, 2, 2' % (v(t1), v(vL))); A('v_lshlrev_b32 %s, 6, %s' % (v(t2), v(t1)))
        A('v_lshl_add_u32 %s, %s, 9, %s' % (v(t2), v(hi), v(t2)))
        A('v_bfe_u32 %s, %s, 4, 1' % (v(t3), v(vL))); A('v_and_b32 %s, 3, %s' % (v(t4), v(vL)))
        A('v_lshlrev_b32 %s, 3, %s' % (v(t4), v(t4))); A('v_lshl_add_u32 %s, %s, 5, %s' % (v(t4), v(t3), v(t4)))
        A('v_add3_u32 %s, %s, %s, %s' % (v(vWRq), v(t2), v(t4), s(sSH)))
        A('v_add_u32 %s, %d, %s' % (v(vWRk), L_WK, v(vWRq)))
        A('v_xor_b32 %s, %s, %s' % (v(t3), s(sW), v(t1))); A('v_lshl_add_u32 %s, %s, 6, %s' % (v(t4), v(t3), v(t4)))
        A('v_lshl_add_u32 %s, %s, 8, %s' % (v(t4), v(t1), v(t4))); A('v_lshl_add_u32 %s, %s, 10, %s' % (v(t4), v(hi), v(t4)))
        A('v_add_u32 %s, %d, %s' % (v(vWO0), L_WO, v(t4))); A('v_add_u32 %s, %d, %s' % (v(vWO0 + 1), L_WO + 0x10000, v(t4)))
        A('v_lshrrev_b32 %s, 3, %s' % (v(t0), v(m))); A('v_and_b32 %s, 3, %s' % (v(t1), v(m)))
        A('v_lshl_add_u32 %s, %s, 2, %s' % (v(t0), v(t0), v(t1)))
        A('v_lshrrev_b32 %s, 4, %s' % (v(t1), v(m))); A('v_sub_u32 %s, %s, %s' % (v(t0), v(t0), v(t1)))
        A('v_bfe_u32 %s, %s, 2, 1' % (v(t1), v(m))); A('v_mad_u32_u24 %s, %s, 14, %s' % (v(t0), v(t1), v(t0)))
        A('v_and_b32 %s, 11, %s' % (v(t1), v(m))); A('v_cmp_eq_u32 vcc, 11, %s' % v(t1))
        A('v_mov_b32 %s, %d' % (v(t2), L_MISC + 2048))
        A('v_mul_u32_u24 %s, 224, %s' % (v(t3), v(hi))); A('v_lshl_add_u32 %s, %s, 1, %s' % (v(t3), v(t0), v(t3))); A('v_add_u32 %s, %d, %s' % (v(t3), L_MISC, v(t3)))
        A('v_cndmask_b32_e64 %s, %s, %s, vcc' % (v(vT2 + 12), v(t3), v(t2)))
        A('v_cndmask_b32_e64 %s, %s, 63, vcc' % (v(vT2 + 11), v(t0)))
        A('v_cmp_lt_u32_e64 s[%d:%d], 31, %s' % (sHI, sHI + 1, v(vL)))
        A('v_cmp_eq_u32_e64 s[%d:%d], 28, %s' % (sE28, sE28 + 1, v(m)))
        A('v_cndmask_b32_e64 %s, %s, %s, s[%d:%d]' % (v(vT2 + 13), v(vT2 + 12), v(t2), sHI, sHI + 1))
        P = self.setup2()
        rest = self.dma_x(1) + self.dma_w(2, 1, L_WK, 'wk2') + self.dma_w(3, 1, L_WK, 'wk3') + self.dma_x(2)
        for i in range(4, 7): rest += self.dma_w(i, 1, L_WK, 'wk%d' % i)
        if c.setup_first: L += P[1] + P[2] + rest
        else: L += rest[:11] + P[1] + P[2] + rest[11:]
        return L

    def mknonce(self):
        L = ['L_mknonce:', '@assume_idle']; A = L.append
        A('s_load_dwordx2 s[%d:%d], s[%d:%d], 0' % (sT0, sT1, sWSP, sWSP + 1))
        A('@waitlgkm_all')
        A('s_add_u32 %s, %s, 0x9e3679b8' % (s(sT0), s(sT0))); A('s_add_u32 %s, %s, 0x85eaca6a' % (s(sT1), s(sT1)))
        for r in (sT0, sT1):
            A('s_or_b32 %s, %s, 0x00010001' % (s(r), s(r))); A('s_and_b32 %s, %s, 0xbfffbfff' % (s(r), s(r)))
        A('v_mov_b32 %s, %s' % (v(vN), s(sT0))); A('v_mov_b32 %s, %s' % (v(vN + 1), s(sT1)))
        A('s_mov_b64 exec, 1')
        A('global_store_dwordx2 %s, %s, s[%d:%d] sc1' % (v(vZ), v(vN, 2), sDBG, sDBG + 1))
        A('global_store_dwordx2 %s, %s, s[%d:%d] sc1' % (v(vZ), v(vN, 2), sWSP, sWSP + 1))
        A('s_mov_b64 exec, -1'); A('s_branch L_nononce')
        return L

    def setup2(self):
        m, hi, fp, ofs, ofs2 = vT2 + 3, vT2 + 4, vT2 + 11, vT2 + 12, vT2 + 13
        P0 = []
        for t in range(2):
            for j in range(8):
                d = 16 * t + 8 * (j >> 2) + (j & 3)
                P0.append('ds_read_u16 %s, %s offset:%d' % (v(vP + 8 * t + j), v(ofs2 if (t == 1 and j >= 4) else ofs), d * 56))
        def selector(dst, tgt):
            R = []
            x, y, z = vT2 + 8, vT2 + 9, vT2 + 10
            R.append('v_lshrrev_b32 %s, 3, %s' % (v(x), v(tgt))); R.append('v_bfe_u32 %s, %s, 1, 1' % (v(y), v(tgt)))
            R.append('v_lshl_add_u32 %s, %s, 1, %s' % (v(x), v(x), v(y)))
            R.append('v_and_b32 %s, 1, %s' % (v(y), v(tgt))); R.append('v_lshlrev_b32 %s, 4, %s' % (v(y), v(y)))
            R.append('v_mov_b32 %s, 0x3f80' % v(z)); R.append('v_lshlrev_b32 %s, %s, %s' % (v(z), v(y), v(z)))
            R.append('v_bfe_u32 %s, %s, 2, 1' % (v(y), v(tgt))); R.append('v_cmp_eq_u32 vcc, %s, %s' % (v(y), v(hi)))
            R.append('v_cndmask_b32_e64 %s, 15, %s, vcc' % (v(x), v(x)))
            for i in range(8):
                R.append('v_cmp_eq_u32_e64 s[%d:%d], %d, %s' % (4 + 2 * i, 5 + 2 * i, i, v(x)))
            for i in range(8):
                R.append('v_cndmask_b32_e64 %s, 0, %s, s[%d:%d]' % (v(dst + i), v(z), 4 + 2 * i, 5 + 2 * i))
            return R
        P1 = selector(vID, m)
        P2 = selector(vE, fp)
        P2 += ['v_mov_b32 %s, 0x3fb8aa3b' % v(vC),
               'v_lshlrev_b32 %s, 7, %s' % (v(vPRE), v(m)),
               's_lshl_b32 %s, %s, 3' % (s(sGID), s(sBR)), 's_add_u32 %s, %s, %s' % (s(sGID), s(sGID), s(sRB)),
               's_and_b32 %s, %s, 3' % (s(sCB), s(sH)), 's_lshr_b32 %s, %s, 2' % (s(sRQ), s(sH)),
               's_lshl_b32 %s, %s, 4' % (s(sT3), s(sGID)), 's_add_u32 %s, %s, %s' % (s(sPB), s(sT3), s(sH)),
               's_lshl_b32 %s, %s, 14' % (s(sT3), s(sPB)), 's_lshl_b32 %s, %s, 12' % (s(sOBX), s(sW)), 's_add_u32 %s, %s, %s' % (s(sOBX), s(sOBX), s(sT3)),
               's_add_u32 %s, %s, %d' % (s(sOBX), s(sOBX), WS_O),
               's_lshl_b32 %s, %s, 7' % (s(sFLG), s(sGID)), 's_add_u32 %s, %s, %d' % (s(sFLG), s(sFLG), WS_FLAG)]
        A = P2.append; t0, t1, t2 = vT2 + 8, vT2 + 9, vT2 + 10
        A('v_lshrrev_b32 %s, 4, %s' % (v(t0), v(vL))); A('v_bfe_u32 %s, %s, 2, 2' % (v(t1), v(vL))); A('v_xor_b32 %s, %s, %s' % (v(t1), v(t1), v(t0)))
        A('v_mul_u32_u24 %s, 896, %s' % (v(t0), v(t0))); A('v_lshl_add_u32 %s, %s, 6, %s' % (v(t0), v(t1), v(t0)))
        A('v_and_b32 %s, 3, %s' % (v(t2), v(vL))); A('v_lshl_add_u32 %s, %s, 4, %s' % (v(t0), v(t2), v(t0)))
        A('s_cmp_eq_u32 %s, 3' % s(sCB)); A('s_cselect_b32 %s, 1, 3' % s(sT3))
        A('v_cmp_lt_u32 vcc, %s, %s' % (s(sT3), v(t1))); A('v_mov_b32 %s, 0x%x' % (v(t2), OOB))
        A('v_cndmask_b32_e64 %s, %s, %s, vcc' % (v(vWOD), v(t0), v(t2)))
        A('s_lshl_b32 %s, %s, 3' % (s(sRECA), s(sPB))); A('s_add_u32 %s, %s, %d' % (s(sRECA), s(sRECA), WS_XCC))
        A('v_cmp_eq_u32 vcc, 0, v0'); A('v_and_b32 %s, 1, %s' % (v(t0), v(vL))); A('v_and_b32 %s, 2, %s' % (v(t1), v(vL)))
        A('v_cndmask_b32_e64 %s, %s, 0, vcc' % (v(vT), v(t2)))
        A('v_cmp_ne_u32_e64 s[%d:%d], 0, %s' % (sM1, sM1 + 1, v(t0))); A('v_cmp_ne_u32_e64 s[%d:%d], 0, %s' % (sM2, sM2 + 1, v(t1)))
        return P0, P1, P2

    def dma_x(self, i):
        L = []
        for k in range(2):
            L.append('s_add_u32 m0, %s, %d' % (s(sM0B if k else sM0A), (i % 3) * 32768))
            if k: L.append('s_add_u32 %s, %s, %s' % (s(sXO + i), s(sXO + i), s(sDT)))
            for j in range(4):
                L.append(('buffer_load_dwordx4 %s, s[%d:%d], %s offen offset:%d %s lds' % (v(vXD + j), SX, SX + 3, s(sXO + i), 1024 * j, self.cfg.xfl), 'x%d' % i))
        return L
    def dma_w(self, i, part, base, tag):
        return ['s_add_u32 m0, %s, %d' % (s(sM0W), base + i * 4096),
                's_add_u32 %s, %s, %d' % (s(sT2), s(sWO_ + i), part * 896),
                ('buffer_load_dwordx4 %s, s[%d:%d], %s offen %s lds' % (v(vWD), SW, SW + 3, s(sT2), self.cfg.wfl), tag)]
    def xfrag(self, i, ks, tile): return aX + ((i * 4 + ks) * 2 + tile) * 4
    def wread(self, slot, basev, off):
        r = aWR + 4 * (slot % 8)
        return ['ds_read_b64_tr_b16 %s, %s offset:%d' % (a(r + 2 * u, 2), v(basev), off + 256 * u) for u in range(2)]

    def stream(self):
        c = self.cfg; L = []
        P = self.setup2()
        R = []; rel = {}
        for i in range(7):
            A = R.append
            if i == 6:
                L += self.sched(R, 'stream', release=rel, vmgap={'x%d' % k: c.gap_x for k in range(7)})
                R = []; A = R.append
            if c.itst: R += ['@waitlgkm_all', 's_memtime s[%d:%d]' % (sT0, sT1), '@waitlgkm_all', 'v_writelane_b32 %s, %s, %d' % (v(vST), s(sT0), 48 + i)]
            w = '@waitvm x%d wk%d' % (i, i) + (' phi' if i == 0 else '')
            A(w); A('s_barrier'); rel[w] = c.rel_it * i
            if i == 0: R += self.stamp(1)
            if c.itst: R += ['s_memtime s[%d:%d]' % (sT0, sT1), '@waitlgkm_all', 'v_writelane_b32 %s, %s, %d' % (v(vST), s(sT0), 40 + i)]
            sl = i % 3
            for ks in range(4):
                R += self.wread(4 * i + ks, vWRk, i * 4096 + ks * 1024)
                for tile in range(2):
                    R.append(('ds_read_b128 %s, %s offset:%d' % (a(self.xfrag(i, ks, tile), 4), v((vXR2 if sl == 2 else vXR) + ks), (sl & 1) * 32768 + tile * 4096), 'xr'))
            if i == 0: R += P[0]
            if i == 2: R += ['v_lshl_or_b32 %s, %s, 16, %s' % (v(vPH + u), v(vP + 2 * u + 1), v(vP + 2 * u)) for u in range(8)]
            if i + 3 < 7: A('@waitlgkm xr')
            if c.touch_v == i: R += self.touch('v')
            if c.touch_q == i: R += self.touch('q')
            if c.touch_o == i: R += self.touch('o')
            if i + 3 < 7: R += self.dma_x(i + 3)
            if i >= 4:
                k0 = sum(c.wv_split[:i - 4])
                for k in range(k0, k0 + c.wv_split[i - 4]): R += self.dma_w(k, 2, L_WV, 'wv%d' % k)
            for ks in range(4):
                for tile in range(2):
                    A(mfma(vK + 16 * tile, a(aWR + 4 * ((4 * i + ks) % 8), 4), a(self.xfrag(i, ks, tile), 4), None if (i == 0 and ks == 0) else vK + 16 * tile))
        L += self.sched(R, 'last')
        return L

    def gemm(self, acc, basev, off, transposed, first_slot, hooks=None):
        L = []; hooks = hooks or {}
        for k in range(28):
            L += hooks.get(k, [])
            w = a(aWR + 4 * ((first_slot + k) % 8), 4)
            L += self.wread(first_slot + k, basev, off + k * 1024)
            for tile in range(2):
                x = a(self.xfrag(k // 4, k % 4, tile), 4)
                L.append(mfma(acc + 16 * tile, w if transposed else x, x if transposed else w, None if k == 0 else acc + 16 * tile))
        return L

    def pack(self, r, n=8): return ['v_cvt_pk_bf16_f32 %s, %s, %s' % (v(r + u), v(r + 2 * u), v(r + 2 * u + 1)) for u in range(n)]
    def zero_hi_pads(self, r): return ['v_cndmask_b32_e64 %s, %s, 0, s[%d:%d]' % (v(r + u), v(r + u), sHI, sHI + 1) for u in (6, 7)]

    def softmax(self, p, ep, en, tmp, pk):
        L = []; A = L.append
        Z, T, S1, S2 = tmp, tmp + 2, tmp + 4, tmp + 6
        VAL = [0, 1, 2, 3, 4, 5, 6, 8, 9, 10, 11, 12, 13, 14]
        if pk:
            for r in (ep + 7, ep + 15, en + 7, en + 15): A('v_mov_b32 %s, 0' % v(r))
        for (d, sg) in ((Z, ''), (T, '-')):
            A('v_max3_f32 %s, %s%s, %s%s, %s%s' % (v(d), sg, v(p), sg, v(p + 1), sg, v(p + 2)))
            A('v_max3_f32 %s, %s%s, %s%s, %s%s' % (v(d + 1), sg, v(p + 8), sg, v(p + 9), sg, v(p + 10)))
            for (x, y) in ((3, 4), (5, 6)): A('v_max3_f32 %s, %s, %s%s, %s%s' % (v(d), v(d), sg, v(p + x), sg, v(p + y)))
            for (x, y) in ((11, 12), (13, 14)): A('v_max3_f32 %s, %s, %s%s, %s%s' % (v(d + 1), v(d + 1), sg, v(p + x), sg, v(p + y)))
            A('v_max_f32 %s, %s, %s' % (v(d), v(d), v(d + 1)))
        A('v_permlane32_swap_b32 %s, %s' % (v(Z), v(T))); A('v_max_f32 %s, %s, %s' % (v(Z), v(Z), v(T)))
        A('v_mul_f32 %s, %s, %s' % (v(Z), v(vC), v(Z))); A('v_mov_b32 %s, %s' % (v(T), v(Z)))
        A('v_permlane32_swap_b32 %s, %s' % (v(Z), v(T)))
        for (e, z, ng) in ((ep, Z, 0), (en, T, 1)):
            for u in VAL:
                if pk and u not in (6, 14):
                    if u & 1 == 0: A('v_pk_fma_f32 %s, %s, %s, %s op_sel_hi:[1,0,0] neg_lo:[%d,0,1] neg_hi:[%d,0,1]' % (v(e + u, 2), v(p + u, 2), v(vC, 2), v(z, 2), ng, ng))
                else: A('v_fma_f32 %s, %s%s, %s, -%s' % (v(e + u), '-' if ng else '', v(p + u), v(vC), v(z)))
                A('v_exp_f32 %s, %s' % (v(e + u), v(e + u)))
        for (e, S, z) in ((ep, S1, Z), (en, S2, T)):
            if pk:
                A('v_pk_add_f32 %s, %s, %s' % (v(S, 2), v(e, 2), v(e + 2, 2)))
                for u in (4, 6, 8, 10, 12, 14): A('v_pk_add_f32 %s, %s, %s' % (v(S, 2), v(S, 2), v(e + u, 2)))
            else:
                A('v_add_f32 %s, %s, %s' % (v(S), v(e), v(e + 1))); A('v_add_f32 %s, %s, %s' % (v(S + 1), v(e + 8), v(e + 9)))
                for u in range(2, 7):
                    A('v_add_f32 %s, %s, %s' % (v(S), v(S), v(e + u))); A('v_add_f32 %s, %s, %s' % (v(S + 1), v(S + 1), v(e + 8 + u)))
            A('v_add_f32 %s, %s, %s' % (v(S), v(S), v(S + 1)))
        A('v_permlane32_swap_b32 %s, %s' % (v(S1), v(S2))); A('v_add_f32 %s, %s, %s' % (v(S1), v(S1), v(S2)))
        A('v_rcp_f32 %s, %s' % (v(S1), v(S1))); A('v_mov_b32 %s, %s' % (v(S2), v(S1)))
        A('v_permlane32_swap_b32 %s, %s' % (v(S1), v(S2)))
        for (e, z) in ((ep, S1), (en, S2)):
            for u in range(8):
                if pk: A('v_pk_mul_f32 %s, %s, %s op_sel_hi:[1,0]' % (v(e + 2 * u, 2), v(e + 2 * u, 2), v(z, 2)))
                else:
                    for k in range(1 if u in (3, 7) else 2): A('v_mul_f32 %s, %s, %s' % (v(e + 2 * u + k), v(e + 2 * u + k), v(z)))
                A('v_cvt_pk_bf16_f32 %s, %s, %s' % (v(e + u), v(e + 2 * u), '0' if (u in (3, 7) and not pk) else v(e + 2 * u + 1)))
        return L

    def elu1(self, p, e, pads, pk):
        L = []; A = L.append
        for u in range(0, 16, 2):
            n = 1 if (pads and u in (6, 14)) else 2
            if pk and n == 2: A('v_pk_mul_f32 %s, %s, %s op_sel_hi:[1,0]' % (v(e + u, 2), v(p + u, 2), v(vC, 2)))
            for k in range(n):
                if not (pk and n == 2): A('v_mul_f32 %s, %s, %s' % (v(e + u + k), v(vC), v(p + u + k)))
                A('v_exp_f32_e64 %s, %s clamp' % (v(e + u + k), v(e + u + k)))
                A('v_max_f32 %s, 0x358637bd, %s' % (v(p + u + k), v(p + u + k)))
                if not (pk and n == 2): A('v_add_f32 %s, %s, %s' % (v(e + u + k), v(e + u + k), v(p + u + k)))
            if pk and n == 2: A('v_pk_add_f32 %s, %s, %s' % (v(e + u, 2), v(e + u, 2), v(p + u, 2)))
            A('v_cvt_pk_bf16_f32 %s, %s, %s' % (v(e + u // 2), v(e + u), v(e + u + 1) if n == 2 else '0'))
        return L

    def nonce_load(self): return [('global_load_dwordx2 %s, %s, s[%d:%d] sc1' % (v(vN, 2), v(vZ), sDBG, sDBG + 1), 'nonce')]
    def use_nonce(self):
        L = []; A = L.append
        t0, t1 = vXR2, vXR2 + 1
        A('v_readfirstlane_b32 %s, %s' % (s(sN0), v(vN))); A('v_readfirstlane_b32 %s, %s' % (s(sN1), v(vN + 1)))
        A('v_cndmask_b32_e64 %s, %s, %s, s[%d:%d]' % (v(t0), v(vN), v(vN + 1), sM2, sM2 + 1))
        A('v_lshlrev_b32 %s, 16, %s' % (v(t1), v(t0))); A('v_and_b32 %s, 0xffff0000, %s' % (v(t0), v(t0)))
        A('v_cndmask_b32_e64 %s, %s, %s, s[%d:%d]' % (v(vTAG), v(t1), v(t0), sM1, sM1 + 1))
        A('s_and_b32 %s, %s, 0xfffffff0' % (s(sROT), s(sN1))); A('s_or_b32 %s, %s, %s' % (s(sREC), s(sXCC), s(sROT)))
        A('v_mov_b32 %s, %s' % (v(vN + 1), s(sREC)))
        L.append(('buffer_store_dwordx2 %s, %s, s[%d:%d], %s offen sc1' % (v(vN, 2), v(vT), SWS, SWS + 3, s(sRECA)), 'side'))
        return L
    def nonce_chk(self, br):
        return ['L_nonce_chk%s:' % br, 's_min_u32 %s, %s, %s' % (s(sT2), s(sN0), s(sN1)), 's_cmp_eq_u32 %s, 0' % s(sT2), 's_cbranch_scc1 L_nonce_retry%s' % br]
    def nonce_retry(self, br):
        return ['L_nonce_retry%s:' % br, '@assume_idle', 's_sleep 1'] + SPIN + self.nonce_load() + self.use_nonce() + ['s_branch L_nonce_chk%s' % br]
    def side_loads(self):
        c = self.cfg
        L = []
        if c.touch_o == 'p2': L += self.touch('o')
        L += [('buffer_load_dword %s, %s, s[%d:%d], %s offen %s' % (v(vDUM), v(vPRE), SWS, SWS + 3, s(sOBX), c.prefl), 'side'),
              ('buffer_load_dword %s, %s, s[%d:%d], %s offen %s' % (v(vDUM), v(vZ), SWS, SWS + 3, s(sFLG), c.prefl), 'side')]
        return L

    def middle(self, br):
        c = self.cfg; B = br == 'B'; NT = 2 if B else 1
        L = []; A = L.append
        L += self.stamp(2)
        R = []; A = R.append
        for k in range(sum(c.wv_split), 7): R += self.dma_w(k, 2, L_WV, 'wv%d' % k)
        if not B:
            for i in range(8): A('v_mov_b32 %s, %s' % (v(vPH + i), v(vE + i)))
        for tile in range(2):
            R += self.pack(vK + 16 * tile) + self.zero_hi_pads(vK + 16 * tile)
            for t in range(2):
                k4 = v(vK + 16 * tile + 4 * t, 4); w4 = v(vPH + 4 * t, 4)
                A(mfma(vP + 16 * tile, w4 if B else k4, k4 if B else w4, None if t == 0 else vP + 16 * tile))
        for tile in range(2):
            R += self.softmax(vP + 16 * tile, vE + 32 * tile, vE + 32 * tile + 16, vT2 + 8 * tile, False) if B else self.elu1(vP + 16 * tile, vE + 32 * tile, False, False)
        b1 = c.wv_b1
        wq = self.nonce_load() + (self.touch('q') if c.touch_q == 'p2' else [])
        for k in range(7): wq += self.dma_w(k, 0, L_WQ, 'wq')
        wq += self.side_loads()
        inonce = len(R) + 2 + len(wq)
        wq += self.use_nonce()
        B1 = '@waitvm ' + ' '.join('wv%d' % k for k in range(b1)); B2 = '@waitvm ' + ' '.join('wv%d' % k for k in range(b1, 7))
        hooks = {0: [B1, 's_barrier'] + wq, 4 * b1: [B2, 's_barrier']}
        iwq = len(R) + 2 + [k for k, x in enumerate(wq) if isinstance(x, tuple)][0]
        R += self.gemm(vV, vWRk, L_WV - L_WK, False, 0, hooks)
        tn = lambda tile, sg: (vP if sg == 0 else vK) + 16 * tile
        if B:
            for tile in range(2):
                for sg in range(2):
                    for t in range(2):
                        A(mfma(tn(tile, sg), v(vE + 32 * tile + 16 * sg + 4 * t, 4), v(vID + 4 * t, 4), None if t == 0 else tn(tile, sg)))
                    R += self.pack(tn(tile, sg))
        A('v_mov_b32 %s, 0x3f803f80' % v(vXR2 + 3))
        for tile in range(2):
            R += self.pack(vV + 16 * tile)
            for u in range(8): A('v_cndmask_b32_e64 %s, %s, %s, s[%d:%d]' % (v(vV + 16 * tile + u), v(vV + 16 * tile + u), v(vXR2 + 3), sE28, sE28 + 1))
        for sg in range(NT):
            for tile in range(2):
                src = tn(tile, sg) if B else vE + 32 * tile
                for t in range(2):
                    A(mfma(vKV + 16 * sg, v(src + 4 * t, 4), v(vV + 16 * tile + 4 * t, 4), None if (tile == 0 and t == 0) else vKV + 16 * sg))
        t0, t1, t2 = vXR, vXR + 1, vXR + 2
        A('s_add_u32 %s, %s, %d' % (s(sT3), s(sM0X), L_SCR)); A('v_add_u32 %s, %s, %s' % (v(t0), s(sT3), v(vL16)))
        for q in range(4 * NT): A('ds_write_b128 %s, %s offset:%d' % (v(t0), v(vKV + 4 * q, 4), 1024 * q))
        A('s_and_b32 %s, %s, %d' % (s(sC_), s(sW), 3 if B else 1))
        A('s_lshl_b32 %s, %s, 11' % (s(sA), s(sC_))); A('v_add_u32 %s, %s, %s' % (v(t1), s(sA), v(vL16)))
        A('s_lshl_b32 %s, %s, 4' % (s(sA), s(sBR))); A('s_add_u32 %s, %s, %s' % (s(sA), s(sA), s(sH))); A('s_lshl2_add_u32 %s, %s, %s' % (s(sA), s(sA), s(sC_)))
        A('s_lshl_b32 %s, %s, 13' % (s(sA), s(sA))); A('s_add_u32 %s, %s, %d' % (s(sB_), s(sA), WS_PART)); A('s_add_u32 %s, %s, 4096' % (s(sXB), s(sB_)))
        A('s_lshl_b32 %s, %s, 10' % (s(sA), s(sRB))); A('s_add_u32 %s, %s, %s' % (s(sD_), s(sB_), s(sA))); A('s_lshl_b32 %s, %s, 10' % (s(sC_), s(sC_)))
        A('s_add_u32 %s, %s, %d' % (s(sWB), s(sFLG), WS_XCC - WS_FLAG))
        if not B:
            A('s_cmp_ge_u32 %s, 2' % s(sW)); A('s_cselect_b32 %s, 0x%x, 0' % (s(sA), OOB)); A('v_add_u32 %s, %s, %s' % (v(t2), s(sA), v(vL16)))
        A('v_mov_b32 %s, 0xffff' % v(vXR + 3))
        L += self.sched(R, 'phase2' + br, release={B1: c.rel_b1, B2: c.rel_b2, iwq: c.rel_wq, inonce: c.rel_nonce, inonce + 1: c.rel_nonce, inonce + 2: c.rel_nonce}, vmgap=dict([('wq', c.gap_wq)] + [('wv%d' % k, c.gap_wv) for k in range(7)]), mfma_busy=32, loose_vm=True, boost={'side': 5000})
        L += self.stamp(3)
        L += self.nonce_chk(br)
        A = L.append
        A('@waitlgkm_all'); A('s_barrier')
        for w in range(4):
            for hf in range(2): A('ds_read_b128 %s, %s offset:%d' % (v(vV + 8 * w + 4 * hf, 4), v(t1), L_SCR + 8192 * w + 1024 * hf))
        for (x, y) in ((0, 8), (0, 16), (0, 24)):
            for u in range(0, 8, 2): A('v_pk_add_f32 %s, %s, %s' % (v(vV + x + u, 2), v(vV + x + u, 2), v(vV + y + u, 2)))
        L += self.pack(vV, 4)
        A('v_bfi_b32 %s, %s, %s, %s' % (v(vV + 3), v(vXR + 3), v(vV + 3), v(vTAG)))
        L.append(('buffer_store_dwordx4 %s, %s, s[%d:%d], %s offen sc1' % (v(vV, 4), v(vL16 if B else t2), SWS, SWS + 3, s(sD_)), 'pst'))
        L += self.stamp(4)
        A('@waitvm wq'); A('s_barrier')
        R = []; A = R.append
        t0, t1, t2 = vXR, vXR + 1, vXR + 2
        A('v_mov_b32 %s, 0x%x' % (v(t2), OOB))
        for j in range(1, 4): A('v_add_u32 %s, %d, %s' % (v(vXD + j), j * 2560, v(vWOD)))
        A('s_mul_i32 %s, %s, 14336' % (s(sD_), s(sW))); A('s_lshl_b32 %s, %s, 8' % (s(sA), s(sCB))); A('s_add_u32 %s, %s, %s' % (s(sD_), s(sD_), s(sA)))
        A('s_lshl_b32 %s, %s, 12' % (s(sA), s(sW)))
        A('v_and_b32 %s, 15, %s' % (v(vXR + 3), v(vL))); A('v_lshlrev_b32 %s, 3, %s' % (v(vXR + 3), v(vXR + 3)))
        npart = None
        for m in range(7):
            if m == c.wo_before: npart = len(R); R += self.part_loads()
            A('s_add_u32 m0, %s, %d' % (s(sA), L_WO + 16384 * m))
            if m: A('s_add_u32 %s, %s, %d' % (s(sD_), s(sD_), 57344))
            for j in range(4): R.append(('buffer_load_dwordx4 %s, s[%d:%d], %s offen offset:%d %s lds' % (v(vXD + j if j else vWOD), SWO, SWO + 3, s(sD_), 1024 * j, c.wofl), 'wo'))
        A('s_add_u32 m0, %s, %d' % (s(sM0W), L_WO + 114688))
        R.append(('buffer_load_dwordx4 %s, s[%d:%d], 0 offen lds' % (v(t2), SWO, SWO + 3), 'wo'))
        if npart is None: npart = len(R); R += self.part_loads()
        R += self.gemm(vK, vWRq, L_WQ, True, 4)
        for tile in range(2):
            R += self.pack(vK + 16 * tile) + self.zero_hi_pads(vK + 16 * tile)
            for t in range(2):
                A(mfma(vP + 16 * tile, v(vPH + 4 * t, 4), v(vK + 16 * tile + 4 * t, 4), None if t == 0 else vP + 16 * tile))
        for tile in range(2):
            R += self.softmax(vP + 16 * tile, vE + 32 * tile, vE + 32 * tile + 16, vT2 + 8 * tile, True) if B else self.elu1(vP + 16 * tile, vE + 32 * tile, True, True)
        L += self.sched(R, 'q' + br, release={npart: c.rel_part}, vmgap={'wo': c.gap_wo}, boost={'wo': 5000, 'part': 5000})
        L += self.stamp(6)
        A = L.append
        A('@waitvm part')
        L += self.stamp(5)
        A('L_part_chk%s:' % br)
        R = []; A = R.append
        G0 = vKV
        for p in range(8): A(mfma(vV, v(vID, 4), v(G0 + 4 * p, 4), None if p == 0 else vV))
        x, y, z = vT2, vT2 + 1, vT2 + 2
        A('v_max3_u32 %s, %s, %s, %s' % (v(x), v(G0 + 3), v(G0 + 7), v(G0 + 11))); A('v_min3_u32 %s, %s, %s, %s' % (v(y), v(G0 + 3), v(G0 + 7), v(G0 + 11)))
        A('v_max3_u32 %s, %s, %s, %s' % (v(x), v(x), v(G0 + 15), v(G0 + 19))); A('v_min3_u32 %s, %s, %s, %s' % (v(y), v(y), v(G0 + 15), v(G0 + 19)))
        A('v_max3_u32 %s, %s, %s, %s' % (v(x), v(x), v(G0 + 23), v(G0 + 27))); A('v_min3_u32 %s, %s, %s, %s' % (v(y), v(y), v(G0 + 23), v(G0 + 27)))
        A('v_max_u32 %s, %s, %s' % (v(x), v(x), v(G0 + 31))); A('v_min_u32 %s, %s, %s' % (v(y), v(y), v(G0 + 31)))
        A('v_xor_b32 %s, %s, %s' % (v(x), v(x), v(vTAG))); A('v_xor_b32 %s, %s, %s' % (v(y), v(y), v(vTAG)))
        A('v_or_b32 %s, %s, %s' % (v(x), v(x), v(y))); A('v_lshrrev_b32 %s, 16, %s' % (v(x), v(x)))
        A('v_xor_b32 %s, %s, %s' % (v(y), s(sN0), v(vN))); A('v_xor_b32 %s, %s, %s' % (v(z), s(sREC), v(vN + 1)))
        A('v_cmp_ne_u32_e64 s[%d:%d], 0, %s' % (sFAR, sFAR + 1, v(z)))
        A('v_lshrrev_b32 %s, 4, %s' % (v(z), v(z))); A('v_or3_b32 %s, %s, %s, %s' % (v(x), v(x), v(y), v(z)))
        A('v_cmp_ne_u32 vcc, 0, %s' % v(x))
        A('v_add_u32 %s, %s, %s' % (v(y), s(sC_), v(vL16))); A('v_add_u32 %s, %d, %s' % (v(y), L_MISC, v(y))); A('v_add_u32 %s, %d, %s' % (v(z), L_MISC, v(vL16)))
        L += self.sched(R, 'sum' + br)
        A = L.append
        A('s_cbranch_vccnz L_part_retry%s' % br)
        L += self.pack(vV, 4)
        A('v_and_b32 %s, 0xffff, %s' % (v(vV + 3), v(vV + 3)))
        A('ds_write_b128 %s, %s' % (v(y), v(vV, 4)))
        A('@wait_all'); A('s_barrier')
        R = []; A = R.append
        for q in range(2 * NT): A('ds_read_b128 %s, %s offset:%d' % (v(vV + 16 + 4 * q, 4), v(z), 1024 * q))
        for tile in range(2):
            for q in range(2 * NT):
                A(mfma(vP + 16 * tile, v(vV + 16 + 4 * q, 4), v(vE + 32 * tile + 16 * (q >> 1) + 4 * (q & 1), 4), None if q == 0 else vP + 16 * tile))
        for tile in range(2):
            P = vP + 16 * tile; d = vT2 + 4 + 4 * tile
            A('v_mov_b32 %s, %s' % (v(d), v(P + 12))); A('v_permlane32_swap_b32 %s, %s' % (v(P + 12), v(d)))
            A('v_add_f32 %s, 0x358637bd, %s' % (v(d), v(d))); A('v_rcp_f32 %s, %s' % (v(d), v(d)))
            for u in range(8):
                if tile: A('v_pk_mul_f32 %s, %s, %s op_sel_hi:[1,0]' % (v(P + 2 * u, 2), v(P + 2 * u, 2), v(d, 2)))
                else:
                    for k in range(2): A('v_mul_f32 %s, %s, %s' % (v(P + 2 * u + k), v(P + 2 * u + k), v(d)))
                A('v_cvt_pk_bf16_f32 %s, %s, %s' % (v(P + u), v(P + 2 * u), v(P + 2 * u + 1)))
            R += self.zero_hi_pads(P)
        A('v_mov_b32 %s, %s' % (v(vN), s(sN0))); A('v_mov_b32 %s, %s' % (v(vN + 1), s(sN1)))
        A('s_lshl_b32 %s, %s, 3' % (s(sT2), s(sH))); A('s_add_u32 %s, %s, %s' % (s(sC_), s(sFLG), s(sT2)))
        L += self.sched(R, 'o' + br)
        L += self.stamp(7)
        A = L.append
        if c.force_global: A('s_branch L_far')
        A('s_cmp_lg_u64 s[%d:%d], 0' % (sFAR, sFAR + 1)); A('s_cbranch_scc1 L_far')
        return L
    def publish(self, fl):
        L = []
        for tile in range(2):
            for t in range(2):
                L.append(('buffer_store_dwordx4 %s, %s, s[%d:%d], %s offen offset:%d %s' % (v(vP + 16 * tile + 4 * t, 4), v(vL16), SWS, SWS + 3, s(sOBX), 2048 * tile + 1024 * t, fl), 'ost'))
        L += self.wo_reads()
        L += ['@wait_all', 's_barrier']
        L.append('buffer_store_dwordx2 %s, %s, s[%d:%d], %s offen %s' % (v(vN, 2), v(vT), SWS, SWS + 3, s(sC_), fl))
        return L
    def part_loads(self):
        L = []
        L.append(('buffer_load_dwordx2 %s, %s, s[%d:%d], %s offen sc1' % (v(vN, 2), v(vXR + 3), SWS, SWS + 3, s(sWB)), 'part'))
        for p in range(8):
            L.append(('buffer_load_dwordx4 %s, %s, s[%d:%d], %s offen offset:%d sc1' % (v(vKV + 4 * p, 4), v(vL16), SWS, SWS + 3, s(sXB if p >= 4 else sB_), 1024 * (p & 3)), 'part'))
        return L
    def part_retry(self, br):
        return ['L_part_retry%s:' % br, '@assume_idle', 's_nop 15'] + SPIN + self.part_loads() + ['@waitvm_all', 's_branch L_part_chk%s' % br]
    def far(self):
        return ['L_far:', '@assume_idle', 's_nop 4'] + self.publish('sc1') + ['s_branch L_join']
    def wo_reads(self):
        L = []
        for h in range(16):
            for t in range(2):
                for u in range(2):
                    off = (28 * h + 16 * t + 8 * u) * 256
                    L.append('ds_read_b64_tr_b16 %s, %s offset:%d' % (a(4 * (2 * h + t) + 2 * u, 2), v(vWO0 + (off >> 16)), off & 0xffff))
        return L

    def tail(self):
        c = self.cfg
        L = ['L_pub:'] + self.publish(''); A = L.append
        A('L_join:')
        L += self.stamp(8)
        A('s_lshl_b32 %s, %s, 6' % (s(sT2), s(sGID))); A('s_add_u32 %s, %s, %s' % (s(sT2), s(sT2), s(sRQ)))
        A('s_lshl_b32 %s, %s, 12' % (s(sT2), s(sT2))); A('s_add_u32 %s, %s, %s' % (s(sT2), s(sT2), s(sM0W))); A('s_add_u32 %s, %s, %d' % (s(sD_), s(sT2), WS_O))
        A('s_lshl_b32 %s, %s, 2' % (s(sT2), s(sRB))); A('s_add_u32 %s, %s, %s' % (s(sT2), s(sT2), s(sRQ))); A('s_mul_i32 %s, %s, %d' % (s(sC_), s(sT2), 64 * 1792))
        A('s_mul_i32 %s, %s, 896' % (s(sT2), s(sBR))); A('s_add_u32 %s, %s, %s' % (s(sC_), s(sC_), s(sT2)))
        A('s_lshl_b32 %s, %s, 2' % (s(sT2), s(sCB))); A('s_add_u32 %s, %s, %s' % (s(sT2), s(sT2), s(sW)))
        A('s_cmp_ge_u32 %s, 14' % s(sT2)); A('s_cselect_b32 %s, 0x%x, 0' % (s(sA), OOB))
        A('s_lshl_b32 %s, %s, 6' % (s(sT2), s(sT2))); A('s_add_u32 %s, %s, %s' % (s(sXO), s(sC_), s(sT2)))
        for b in range(1, 4): A('s_add_u32 %s, %s, %d' % (s(sXO + b), s(sXO), b * 16 * 1792))
        t0, t1, t2, vOW, vOR, vOG = vT2 + 10, vT2 + 11, vT2 + 12, vT2 + 4, vT2 + 8, vT2 + 9
        A('s_lshl_b32 %s, %s, 12' % (s(sB_), s(sW))); A('s_add_u32 %s, %s, %d' % (s(sB_), s(sB_), L_OT))
        A('v_and_b32 %s, 31, %s' % (v(t0), v(vL))); A('v_lshl_add_u32 %s, %s, 6, %s' % (v(t0), v(t0), s(sB_)))
        A('v_lshrrev_b32 %s, 5, %s' % (v(t1), v(vL))); A('v_lshl_add_u32 %s, %s, 3, %s' % (v(t0), v(t1), v(t0)))
        A('v_bfe_u32 %s, %s, 1, 2' % (v(t1), v(vL)))
        for b in range(4):
            A('v_xor_b32 %s, %d, %s' % (v(t2), b, v(t1))); A('v_lshl_add_u32 %s, %s, 4, %s' % (v(vOW + b), v(t2), v(t0)))
        A('v_bfe_u32 %s, %s, 3, 2' % (v(t1), v(vL))); A('v_xor_b32 %s, %s, %s' % (v(t1), v(t1), v(vL))); A('v_and_b32 %s, 3, %s' % (v(t1), v(t1)))
        A('v_lshrrev_b32 %s, 2, %s' % (v(t0), v(vL))); A('v_lshl_add_u32 %s, %s, 6, %s' % (v(t2), v(t0), s(sB_))); A('v_lshl_add_u32 %s, %s, 4, %s' % (v(vOR), v(t1), v(t2)))
        A('v_mul_u32_u24 %s, 1792, %s' % (v(t0), v(t0))); A('v_and_b32 %s, 3, %s' % (v(t1), v(vL))); A('v_lshl_add_u32 %s, %s, 4, %s' % (v(t0), v(t1), v(t0)))
        A('v_add_u32 %s, %s, %s' % (v(vOG), s(sA), v(t0)))
        A('s_mov_b32 m0, %s' % s(sM0W))
        A('L_poll:')
        L += SPIN
        A('buffer_load_dwordx2 %s, %s, s[%d:%d], %s offen sc1' % (v(vT2, 2), v(vXR + 3), SWS, SWS + 3, s(sFLG)))
        A('v_xor_b32 %s, %s, %s' % (v(vT2), s(sN0), v(vT2))); A('v_xor_b32 %s, %s, %s' % (v(vT2 + 1), s(sN1), v(vT2 + 1)))
        A('v_or_b32 %s, %s, %s' % (v(vT2), v(vT2), v(vT2 + 1))); A('v_cmp_ne_u32 vcc, 0, %s' % v(vT2)); A('s_cbranch_vccnz L_poll')
        L += self.stamp(9)
        st_of = []
        for st, n in enumerate(c.stages): st_of += [st] * n
        def odma(h):
            X = ['s_add_u32 m0, %s, %d' % (s(sM0W), 4096 * h), 's_add_u32 %s, %s, %d' % (s(sD_), s(sD_), 16384)] if h else []
            return X + [('buffer_load_dwordx4 %s, s[%d:%d], %s offen sc1 lds' % (v(vL16), SWS, SWS + 3, s(sD_)), 'o%d' % st_of[h])]
        for h in range(c.o_first): L += odma(h)
        if c.wbl2:
            A('s_or_b32 %s, %s, %s' % (s(sT2), s(sH), s(sW))); A('s_cmp_lg_u32 %s, 0' % s(sT2)); A('s_cbranch_scc1 L_nowb')
            L.append(('buffer_wbl2 sc1', 'untracked')); A('L_nowb:')
        R = []; A = R.append
        rel = {}
        for k in range(32):
            h, t = k >> 1, k & 1
            if t == 0 and (h == 0 or st_of[h] != st_of[h - 1]):
                A('@waitvm o%d' % st_of[h]); A('s_barrier')
                last = max(j for j in range(16) if st_of[j] == st_of[h])
                rel['@waitvm o%d' % st_of[h]] = 400 + 75 * last
                if h == 0:
                    for j in range(c.o_first, 16): R += odma(j)
            for rt in range(2):
                r = vE + 4 * ((2 * k + rt) % 12)
                A('ds_read_b128 %s, %s offset:%d' % (v(r, 4), v(vL16), h * 4096 + rt * 2048 + t * 1024))
                A(mfma(vK + 16 * rt, a(4 * k, 4), v(r, 4), None if k == 0 else vK + 16 * rt))
        L += self.sched(R, 'gemm3', release=rel, vmgap={'o%d' % k: c.gap_o for k in range(8)}, loose_vm=True, boost={'o%d' % k: 5000 for k in range(8)})
        L += self.stamp(10)
        R = []; A = R.append
        for rt in range(2):
            R += self.pack(vK + 16 * rt)
            for b in range(4): A('ds_write_b64 %s, %s offset:%d' % (v(vOW + b), v(vK + 16 * rt + 2 * b, 2), 2048 * rt))
            for j in range(2 * rt, 2 * rt + 2):
                A('ds_read_b128 %s, %s offset:%d' % (v(vP + 4 * j, 4), v(vOR), 1024 * j))
                A('buffer_store_dwordx4 %s, %s, s[%d:%d], %s offen %s' % (v(vP + 4 * j, 4), v(vOG), SOUT, SOUT + 3, s(sXO + j), c.outfl))
        L += self.sched(R, 'out')
        A = L.append
        if c.stamps:
            L += self.stamp(11)
            A('s_memrealtime s[%d:%d]' % (sT0, sT1)); A('@waitlgkm_all')
            A('v_writelane_b32 %s, %s, 12' % (v(vST), s(sT0))); A('v_writelane_b32 %s, s3, 0' % v(vST))
            A('s_lshl_b32 %s, s2, 2' % s(sT2)); A('s_add_u32 %s, %s, %s' % (s(sT2), s(sT2), s(sW))); A('s_lshl_b32 %s, %s, 8' % (s(sT2), s(sT2)))
            A('s_add_u32 %s, %s, %d' % (s(sT2), s(sT2), WS_STAMP))
            A('v_lshlrev_b32 %s, 2, %s' % (v(vT), v(vL)))
            for k in range(8): A('v_writelane_b32 %s, s%d, %d' % (v(vST), 4 + 2 * k, 32 + k))
            A('buffer_store_dword %s, %s, s[%d:%d], %s offen' % (v(vST), v(vT), SWS, SWS + 3, s(sT2)))
        if c.leak:
            if c.leak == 11: L += self.stamp(11)
            A('s_memrealtime s[100:101]'); A('s_lshl_b32 s3, s3, 2'); A('@waitlgkm_all')
            A('L_leak:'); A('s_memrealtime s[%d:%d]' % (sT0, sT1)); A('@waitlgkm_all'); A('s_sub_u32 %s, %s, s100' % (s(sT0), s(sT0))); A('s_cmp_lt_u32 %s, s3' % s(sT0)); A('s_cbranch_scc1 L_leak')
        if c.tfix:
            A('L_tfix:'); A('s_memrealtime s[%d:%d]' % (sT0, sT1)); A('@waitlgkm_all'); A('s_sub_u32 %s, %s, s100' % (s(sT0), s(sT0))); A('s_cmp_lt_u32 %s, %d' % (s(sT0), c.tfix)); A('s_cbranch_scc1 L_tfix')
        A('L_end:'); A('s_endpgm')
        return L

    def build(self):
        shared = self.prologue() + self.stream() + ['s_cmp_eq_u32 %s, 0' % s(sBR), 's_cbranch_scc1 L_brA']
        MK = '.set MARK_A, 0'
        main = finalize(shared + self.middle('B') + self.tail())
        alt = finalize(shared + [MK, 'L_brA:'] + self.middle('A') + ['@wait_all', 's_branch L_pub'])
        alt = alt[alt.index(MK) + 1:]
        side = finalize(self.far() + self.mknonce() + self.nonce_retry('B') + self.nonce_retry('A') + self.part_retry('B') + self.part_retry('A'))
        return main, alt, side

HEADER = open(os.path.join(os.path.dirname(os.path.abspath(__file__)), 'header.txt')).read()

def generate(cfg):
    g = G(cfg)
    main, alt, side = g.build()
    body = main + alt + side
    txt = HEADER
    if cfg.extra_empty:
        txt += '; @launch kernel=%s grid=(256,1,1) block=(256,1,1) lds=163840\n; @launch kernel=empty_kernel grid=(256,1,1) block=(256,1,1) lds=0\n' % KNAME
    else:
        txt += '; @launch grid=(256,1,1) block=(256,1,1) lds=163840\n'
    txt += '.amdgcn_target "amdgcn-amd-amdhsa--gfx950"\n.text\n.globl %s\n.p2align 8\n.type %s,@function\n%s:\n' % (KNAME, KNAME, KNAME)
    txt += '\n'.join(('' if l.endswith(':') else '    ') + l for l in body) + '\n'
    if cfg.extra_empty:
        txt += '.globl empty_kernel\n.p2align 8\n.type empty_kernel,@function\nempty_kernel:\n    s_endpgm\n'
        txt += '.section .rodata,"a"\n.p2align 6\n.amdhsa_kernel empty_kernel\n  .amdhsa_next_free_vgpr 8\n  .amdhsa_next_free_sgpr 16\n  .amdhsa_accum_offset 8\n  .amdhsa_group_segment_fixed_size 0\n  .amdhsa_kernarg_size 80\n  .amdhsa_user_sgpr_count 2\n  .amdhsa_user_sgpr_kernarg_segment_ptr 1\n  .amdhsa_system_sgpr_workgroup_id_x 1\n.end_amdhsa_kernel\n'
    txt += '.section .rodata,"a"\n.p2align 6\n.amdhsa_kernel %s\n' % KNAME
    txt += '  .amdhsa_next_free_vgpr 512\n  .amdhsa_next_free_sgpr 102\n  .amdhsa_accum_offset 256\n  .amdhsa_group_segment_fixed_size 0\n'
    txt += '  .amdhsa_kernarg_size 80\n  .amdhsa_user_sgpr_count 2\n  .amdhsa_user_sgpr_kernarg_segment_ptr 1\n  .amdhsa_system_sgpr_workgroup_id_x 1\n.end_amdhsa_kernel\n'
    import subprocess, tempfile, re
    d = tempfile.mkdtemp()
    open(d + '/a.s', 'w').write(txt.replace('CODE_SPAN', '0x5000'))
    r = subprocess.run(['clang', '-x', 'assembler', '-target', 'amdgcn-amd-amdhsa', '-mcpu=gfx950', '-c', d + '/a.s', '-o', d + '/a.o'], capture_output=True, text=True)
    if r.returncode: raise Exception(r.stderr[:3000])
    r = subprocess.run(['llvm-readelf', '-S', d + '/a.o'], capture_output=True, text=True).stdout
    size = int(re.search(r'\.text\s+PROGBITS\s+\w+\s+\w+\s+(\w+)', r).group(1), 16)
    assert size < 32768 + 64
    sys.stderr.write('code bytes: %d\n' % size)
    return txt.replace('CODE_SPAN', hex(size - 64))

if __name__ == '__main__':
    cfg = Cfg()
    out = sys.argv[1]
    for kv in sys.argv[2:]:
        k, val = kv.split('=', 1); assert hasattr(cfg, k), k; setattr(cfg, k, eval(val))
    open(out, 'w').write(generate(cfg))
```

```python
import re

REG_RE = re.compile(r'(?<![\w.])(-?)(\|?)([vas])(?:\[(\d+):(\d+)\]|(\d+))(?![\w])')

def regs_of(tok):
    tok = tok.strip()
    out = set()
    m = re.fullmatch(r'-?\|?([vas])(?:\[(\d+):(\d+)\]|(\d+))\|?', tok)
    if m:
        k = m.group(1)
        if m.group(4) is not None: out.add((k, int(m.group(4))))
        else:
            for i in range(int(m.group(2)), int(m.group(3)) + 1): out.add((k, i))
    elif tok == 'vcc': out |= {('s', 'vcc')}
    elif tok in ('exec', 'exec_hi', 'exec_lo'): out |= {('s', 'exec')}
    elif tok == 'm0': out |= {('s', 'm0')}
    return out

TRANS = ('v_exp_f32', 'v_rcp_f32', 'v_log_f32', 'v_rsq_f32', 'v_sqrt_f32')

class Ins:
    __slots__ = ('text', 'op', 'w', 'r', 'kind', 'tag', 'srcc', 'sab', 'passes', 'dma', 'wide', 'data')
    def __init__(self, text, tag=None):
        self.text = text; self.tag = tag
        t = text.split(';')[0].strip()
        parts = t.split(None, 1)
        op = parts[0]; self.op = op
        rest = parts[1] if len(parts) > 1 else ''
        ops = []; depth = 0; cur = ''
        for ch in rest:
            if ch in '[(': depth += 1
            if ch in '])': depth -= 1
            if ch == ',' and depth == 0: ops.append(cur); cur = ''
            else: cur += ch
        if cur.strip(): ops.append(cur)
        ops = [o.strip() for o in ops]
        mods = ''
        if ops:
            sp = ops[-1].split(None, 1)
            ops[-1] = sp[0]; mods = sp[1] if len(sp) > 1 else ''
        R = [regs_of(o) for o in ops]
        w = set(); r = set(); self.srcc = set(); self.sab = set(); self.passes = 0; self.dma = False; self.wide = False; self.data = set()
        U = lambda l: set().union(*l) if l else set()
        if op.startswith('v_mfma'):
            kind = 'mfma'; w = R[0]; r = U(R[1:]); self.sab = R[1] | R[2]; self.srcc = R[3]
            self.passes = 8 if '32x32x16' in op else 4
        elif op.startswith('v_cmp'):
            kind = 'valu'; w = R[0]; r = U(R[1:])
        elif op.startswith('v_permlane32_swap') or op.startswith('v_permlane16_swap'):
            kind = 'valu'; w = R[0] | R[1]; r = R[0] | R[1]
        elif op.startswith('v_readfirstlane') or op.startswith('v_readlane'):
            kind = 'valu'; w = R[0]; r = U(R[1:])
        elif op.startswith('v_'):
            kind = 'valu'; w = R[0]; r = U(R[1:])
            if op.startswith(('v_fmac', 'v_dot2c', 'v_writelane')): r |= R[0]
            if op.startswith('v_cndmask') and len(ops) == 3: r.add(('s', 'vcc'))
            if '_dpp' in op: r |= R[0]
        elif op.startswith('ds_read'):
            kind = 'ds'; w = R[0]; r = U(R[1:])
        elif op.startswith('ds_write') or op.startswith('ds_add'):
            kind = 'ds'; r = U(R); self.data = U(R[1:])
        elif op.startswith('buffer_load') or op.startswith('global_load'):
            kind = 'vm'
            if ' lds' in (' ' + mods):
                self.dma = True; r = U(R) | {('s', 'm0')}
            else:
                w = R[0]; r = U(R[1:])
                if 'd16' in op: r |= R[0]
        elif op.startswith('buffer_store'):
            kind = 'vm'; r = U(R); self.data = R[0]; self.wide = op.endswith(('x3', 'x4'))
        elif op.startswith('global_store') or op.startswith('global_atomic'):
            kind = 'vm'; r = U(R); self.data = R[1]; self.wide = op.endswith(('x3', 'x4'))
        elif op.startswith('buffer_wbl2') or op.startswith('buffer_inv'):
            kind = 'vm'
        elif op.startswith(('s_load', 's_memtime', 's_memrealtime')):
            kind = 'smem'; w = R[0]; r = U(R[1:])
        elif op in ('s_waitcnt', 's_barrier', 's_nop', 's_endpgm', 's_setprio', 's_sleep') or op.startswith(('s_cbranch', 's_branch')):
            kind = 'ctl'
            if 'vcc' in op: r = {('s', 'vcc')}
        elif op.startswith(('s_cmp', 's_bitcmp')):
            kind = 'salu'; r = U(R)
        elif op.startswith('s_'):
            kind = 'salu'; w = R[0]; r = U(R[1:])
            if 'saveexec' in op: w = w | {('s', 'exec')}
        elif op.endswith(':') or op.startswith('.'):
            kind = 'label'
        elif op.startswith('@'):
            kind = 'pseudo'
        else:
            raise Exception('unknown op ' + text)
        self.kind = kind; self.w = w; self.r = r

MERGE = 0
MERGE_VM = 0

def finalize(lines):
    ins = [Ins(*l) if isinstance(l, tuple) else Ins(l) for l in lines]
    out = []
    vmq = []
    lgq = []
    pos = {}; seen_tags = set()
    smem = set()
    smem_out = False
    hist = []
    def emit(i, states=1):
        out.append(i.text); hist.append((i, states))
        if len(hist) > 40: hist.pop(0)
    def wait(vm=None, lg=None):
        nonlocal vmq, lgq, smem, smem_out
        s = 's_waitcnt'
        if vm is not None:
            vm = min(vm, 63); s += ' vmcnt(%d)' % vm; vmq = vmq[len(vmq)-vm:] if vm else []
        if lg is not None:
            lg = min(lg, 15); s += ' lgkmcnt(%d)' % lg; lgq = lgq[len(lgq)-lg:] if lg else []
            if lg == 0: smem = set(); smem_out = False
        emit(Ins(s))
    for i in ins:
        if i.kind == 'pseudo':
            p = i.text.split()
            if p[0] == '@waitvm':
                for tg in p[1:]: assert tg in seen_tags, 'wait for a tag not issued yet: ' + i.text
                idx = [k for k, o in enumerate(vmq) if o.tag in p[1:]]
                if idx: wait(vm=len(vmq) - 1 - idx[-1])
            elif p[0] == '@waitlgkm':
                idx = [k for k, o in enumerate(lgq) if o.tag in p[1:]]
                if idx: wait(lg=0 if smem_out else len(lgq) - 1 - idx[-1])
            elif p[0] == '@waitvm_all': wait(vm=0)
            elif p[0] == '@waitlgkm_all': wait(lg=0)
            elif p[0] == '@wait_all': wait(vm=0, lg=0)
            elif p[0] == '@assume_idle':
                vmq = []; lgq = []; smem = set(); smem_out = False
            else: raise Exception(i.text)
            continue
        if i.kind == 'label':
            out.append(i.text)
            if i.op.endswith(':'):
                hist.append((Ins('s_nop 0'), 0));
            continue
        touched = i.r | i.w
        need_vm = None; need_lg = None
        for k, o in enumerate(vmq):
            if o.w & (i.r if i.kind == 'vm' else touched): need_vm = len(vmq) - 1 - k
        for k, o in enumerate(lgq):
            if o.w & (i.r if i.kind == 'ds' else touched): need_lg = len(lgq) - 1 - k
        if need_lg and MERGE:
            old = [k for k, o in enumerate(lgq) if len(out) - pos[id(o)] >= MERGE]
            if old: need_lg = min(need_lg, len(lgq) - 1 - old[-1])
        if smem & touched: need_lg = 0
        if need_lg is not None and smem_out: need_lg = 0
        if i.op == 's_waitcnt':
            raise Exception('use pseudo waits')
        if need_vm is not None or need_lg is not None: wait(need_vm, need_lg)
        need = 0; dist = 0
        for (p, st) in reversed(hist):
            req = hazard(p, i)
            if req > dist: need = max(need, req - dist)
            dist += st
            if dist >= 20: break
        while need > 0:
            n = min(need, 16); emit(Ins('s_nop %d' % (n - 1)), n); need -= n
        st = 1
        if i.op == 's_nop': st = int(i.text.split()[1]) + 1
        emit(i, st)
        if i.kind == 'vm':
            seen_tags.add(i.tag)
            if i.tag != 'untracked': vmq.append(i)
        elif i.kind == 'ds': lgq.append(i); pos[id(i)] = len(out)
        elif i.kind == 'smem' and i.tag != 'nowait': smem |= i.w; smem_out = True
    return out

def vg(s): return {x for x in s if x[0] in 'va'}
def sg(s): return {x for x in s if x[0] == 's'}

def hazard(p, c):
    n = 0
    if p.kind == 'valu':
        pv = vg(p.w); ps = sg(p.w)
        if c.kind == 'mfma' and pv & c.r: n = max(n, 2)
        if c.kind == 'valu':
            if pv & c.r:
                if c.op.startswith('v_permlane') or '_dpp' in c.op: n = max(n, 2)
                if c.op.startswith(('v_readlane', 'v_readfirstlane')): n = max(n, 1)
                if p.op.startswith(TRANS) and not c.op.startswith(TRANS): n = max(n, 1)
                if p.op.startswith(TRANS): n = max(n, 1)
            if p.op.startswith('v_dot') and pv & (c.r | c.w):
                n = max(n, 3 if not (c.op == p.op and not (pv & (c.r - c.w))) else 0)
            if ps & c.r: n = max(n, 4 if c.op.startswith(('v_readlane', 'v_writelane')) else 2)
        if c.kind == 'vm' and ps & c.r: n = max(n, 5)
        if c.kind in ('salu', 'ctl', 'smem') and ps & c.r: n = max(n, 2)
        if p.op.startswith('v_dot') and c.kind != 'valu' and pv & (c.r | c.w): n = max(n, 3)
        if p.op.startswith(TRANS) and c.kind in ('vm', 'ds') and pv & c.r: n = max(n, 1)
    if p.kind == 'mfma':
        big = {8: 12, 4: 8}[p.passes]; ovl = {8: 10, 4: 6}[p.passes]; war = {8: 7, 4: 3}[p.passes]
        if c.kind == 'mfma':
            if p.w & c.sab: n = max(n, big)
            if p.w & c.srcc and not (p.w == c.srcc and p.passes == c.passes): n = max(n, ovl)
            if p.w & c.w and not (p.w == c.srcc): n = max(n, ovl if p.w != c.w else 0)
        elif c.kind in ('valu', 'vm', 'ds'):
            if p.w & (c.r | c.w): n = max(n, big)
            if c.kind == 'valu' and vg(p.srcc) & c.w: n = max(n, war)
    if p.kind == 'salu' and ('s', 'm0') in p.w and c.dma: n = max(n, 1)
    if p.kind == 'vm' and p.wide and p.data & c.w: n = max(n, 2)
    return n

def interleave(main, *others):
    items = [(k / max(len(main), 1), 0, k, x) for k, x in enumerate(main)]
    for s, o in enumerate(others, 1):
        items += [((k + 0.5) / max(len(o), 1), s, k, x) for k, x in enumerate(o)]
    items.sort(key=lambda t: (t[0], t[1], t[2]))
    return [t[3] for t in items]
```

```python
import os, sys, copy
from emit import Ins, TRANS, vg

SCC_W = ('s_lshl1_', 's_lshl2_', 's_add_', 's_sub_', 's_cmp', 's_and_', 's_or_', 's_xor_', 's_lshl_', 's_lshr_', 's_bfe_', 's_min_', 's_max_', 's_bitcmp', 's_addc', 's_not', 's_andn2')
SCC_R = ('s_cselect', 's_cbranch_scc', 's_addc')
DSBUSY = {'ds_read_b128': 16, 'ds_read_b64_tr_b16': 8, 'ds_write_b128': 52, 'ds_write_b64': 24, 'ds_read_b64': 8}

BURST = 24
HOLD = 12

def cost(i):
    if i.kind == 'pseudo': return 4
    if i.kind == 'label': return 0
    if i.kind == 'mfma': return 8
    if i.kind == 'vm': return 8
    if i.op == 'ds_write_b128': return 20
    if i.op == 'ds_write_b64': return 12
    if i.kind == 'valu' and (i.op.startswith(TRANS) or i.op.startswith('v_permlane')): return 8
    return 4

def lat(p, c, raw, dslat):
    base = cost(p)
    if p.kind == 'mfma':
        if c.kind == 'mfma' and p.w == c.srcc and not (p.w & c.sab): return 4 * p.passes
        if p.w & (c.r | c.w): return 56 if p.passes == 8 else 40
        return base
    if not raw:
        if p.kind == 'vm' and p.wide: return 12
        return base
    if p.kind == 'ds': return dslat
    if p.kind == 'vm': return base
    if p.kind == 'valu':
        if c.kind == 'mfma' or c.op.startswith('v_permlane') or '_dpp' in c.op: return base + 8
        if any(x[0] == 's' for x in p.w & c.r): return base + (20 if c.kind == 'vm' else 8)
        if p.op.startswith(TRANS) or c.op.startswith(('v_readfirstlane', 'v_readlane')): return base + 4
        if p.op.startswith('v_dot') and c.op != p.op: return base + 12
    if p.kind == 'salu' and c.dma: return base + 4
    return base

class Machine:
    def __init__(self, rate=2.35, cap=256, lat=450, lines=None, miss=None, fifo=3):
        self.t = 0; self.valu_end = -100; self.mf_free = 0; self.mf_done = 0; self.ds_free = 0
        self.rate = rate; self.cap = cap; self.lat = lat
        self.win = []; self.enter = []; self.fifo = fifo
        self.busy = 0; self.last_land = 0; self.land = {}; self.regland = {}
        self.lines = lines or {}; self.miss = miss or {}
    def _look(self, d, tag, dflt):
        tag = tag or ''
        return d.get(tag, d.get(tag.rstrip('0123456789'), dflt))
    def accept_time(self, i):
        if len(self.enter) < self.fifo: return 0
        return self.enter[-self.fifo]
    def issue_vm(self, i, e):
        n = self._look(self.lines, i.tag, 32) / 4.0; m = self._look(self.miss, i.tag, 0)
        for w in range(4):
            t = max(e, self.busy)
            out = sum(l for (ld, l) in self.win); k = 0
            while out + n > self.cap and k < len(self.win):
                t = max(t, self.win[k][0]); out -= self.win[k][1]; k += 1
            self.win = self.win[k:]
            self.busy = t + n * self.rate
            self.last_land = max(self.last_land, self.busy + self.lat + m)
            self.win.append((self.last_land, n))
        self.enter.append(t); self.land[i.tag] = self.last_land
        for x in i.w: self.regland[x] = self.last_land
    def run(self, lines):
        for l in lines:
            i = Ins(*l) if isinstance(l, tuple) else Ins(l)
            e = self.t
            if i.kind == 'mfma': e = max(e, self.mf_free); self.mf_free = e + 4 * i.passes; self.mf_done = self.mf_free + 16
            if i.kind in ('vm', 'ds'): e = max(e, self.valu_end + 8)
            if i.kind == 'valu': self.valu_end = e + cost(i)
            if i.kind == 'vm': e = max(e, self.accept_time(i)); self.issue_vm(i, e)
            if i.op == '@waitvm': e = max([e] + [self.land.get(t, 0) for t in i.text.split()[1:]])
            if i.op in ('@waitvm_all', '@wait_all'): e = max(e, self.last_land)
            if i.op in ('@waitlgkm_all', '@wait_all'): e += 60
            self.t = int(e) + cost(i)
        return lines

def schedule(M, lines, dslat=100, release=None, verbose=False, boost=None, strict=()):
    boost = boost or {}; release = release or {}
    ins = [Ins(*l) if isinstance(l, tuple) else Ins(l) for l in lines]
    n = len(ins); t0 = M.t
    R = []; W = []
    for i in ins:
        assert i.kind != 'label', i.text
        r = set(i.r); w = set(i.w)
        if i.op.startswith(SCC_W): w.add(('s', 'scc'))
        if i.op.startswith(SCC_R): r.add(('s', 'scc'))
        if i.kind in ('valu', 'mfma', 'vm', 'ds'): r.add(('s', 'exec'))
        R.append(r); W.append(w)
    preds = [dict() for _ in range(n)]
    lastw = {}; readers = {}
    last_vm = None; last_dsw = None; ds_since = []; fence = None; mem_since = []
    for k, i in enumerate(ins):
        def dep(p, l):
            if p is not None and p != k: preds[k][p] = max(preds[k].get(p, 0), l)
        for x in R[k]:
            if x in lastw: dep(lastw[x], lat(ins[lastw[x]], i, True, dslat))
        for x in W[k]:
            if x in lastw: dep(lastw[x], lat(ins[lastw[x]], i, False, dslat))
            for p in readers.get(x, []):
                l = cost(ins[p])
                if ins[p].kind == 'mfma' and x in ins[p].srcc and i.kind == 'valu': l = 36
                if ins[p].kind == 'vm' and ins[p].wide and x in ins[p].data: l = 12
                dep(p, l)
        isf = i.kind in ('pseudo', 'ctl') or (i.kind == 'smem' and i.tag != 'nowait')
        if i.tag == 'nowait': dep(k - 1, 8)
        if isf:
            keep = []
            named = i.text.split()[1:]
            for p in mem_since:
                q = ins[p]
                if q.kind == 'vm' and not (i.op == '@waitvm' and q.tag in named) and (q.tag or '').rstrip('0123456789') not in strict and i.op not in ('@waitvm_all', '@wait_all'): keep.append(p)
                elif i.op == '@waitlgkm' and q.kind == 'ds': dep(p, dslat if q.tag in named else 4)
                else: dep(p, cost(q))
            dep(fence, 4)
            if i.op.startswith(('s_cbranch', 's_branch')) or i.kind == 'smem':
                for p in range(k): dep(p, cost(ins[p]))
            fence = k; mem_since = keep
        elif i.kind in ('vm', 'ds'):
            dep(fence, 4); mem_since.append(k)
            if i.kind == 'vm': dep(last_vm, 8); last_vm = k
            else:
                if i.op.startswith('ds_read'): dep(last_dsw, 4); ds_since.append(k)
                else:
                    for p in ds_since: dep(p, 4)
                    dep(last_dsw, DSBUSY.get(i.op, 8)); last_dsw = k; ds_since = []
        for x in R[k]: readers.setdefault(x, []).append(k)
        for x in W[k]: lastw[x] = k; readers[x] = []
    hard = [k for k, i in enumerate(ins) if i.op.startswith(('s_cbranch', 's_branch')) or (i.kind == 'smem' and i.tag != 'nowait')]
    for h in hard:
        for k in range(h + 1, n): preds[k][h] = max(preds[k].get(h, 0), 4)
    succs = [[] for _ in range(n)]
    for k in range(n):
        for p, l in preds[k].items(): succs[p].append((k, l))
    prio = [0] * n
    for k in reversed(range(n)):
        prio[k] = cost(ins[k]) + max([l + prio[s] - cost(ins[k]) for s, l in succs[k]] + [0])
        b = boost.get(ins[k].tag, 0)
        prio[k] = max(prio[k], b)
        if ins[k].tag == 'nowait': prio[k] = 1; NW = k
    feeds = [i.kind == 'vm' for i in ins]
    for k in reversed(range(n)):
        if ins[k].kind in ('salu', 'valu') and any(feeds[q] and (W[k] & R[q]) - {('s', 'scc')} for q, l in succs[k]) and not ins[k].op.startswith('v_cvt'): feeds[k] = True
    rel = [0] * n
    for key, t in release.items():
        if isinstance(key, int): rel[key] = t0 + t
        else:
            for k, i in enumerate(ins):
                if i.text.startswith(key): rel[k] = t0 + t
    t = t0; done = [None] * n; npred = [len(p) for p in preds]
    ready = [k for k in range(n) if npred[k] == 0]
    order = []; waited = set()
    while ready:
        best = None
        for k in ready:
            i = ins[k]
            e = max([done[p] + l for p, l in preds[k].items()] + [rel[k], t])
            if i.kind == 'mfma': e = max(e, M.mf_free)
            if i.op.startswith('v_pk_'): e = max(e, M.mf_done)
            if i.kind == 'vm': e = max(e, M.accept_time(i))
            if i.kind == 'ds': e = max(e, M.ds_free - BURST)
            if i.op == '@waitvm': e = max([e] + [M.land.get(x, 0) for x in i.text.split()[1:]])
            if i.op in ('@waitvm_all', '@wait_all'): e = max(e, M.last_land)
            for x in (i.r | (i.w if i.kind != 'vm' else set())):
                if x in M.regland: e = max(e, M.regland[x])
            e = int(e)
            st = e - t
            if i.kind in ('vm', 'ds') and e < M.valu_end + 8:
                soon = any(ins[q].kind == 'mfma' and max([done[p] + l for p, l in preds[q].items()] + [M.mf_free]) <= t + 40 for q in ready)
                e = M.valu_end + 8
                if soon: st = e - t
            elif i.kind == 'ds' and st <= HOLD: st = 0
            key = (st > 0 and st, -prio[k] - (100000 if i.kind == 'mfma' or i.tag == 'nowait' else 60000 if feeds[k] else 50000 if (i.kind in ('ds', 'pseudo', 'ctl')) else 0), k)
            if best is None or key < best[0]: best = (key, k, e)
        _, k, e = best
        i = ins[k]; done[k] = e; t = e + cost(i)
        if i.kind == 'mfma':
            M.mf_free = e + 4 * i.passes; M.mf_done = M.mf_free + 16
            if any(ins[p].kind == 'ds' and p not in waited for p in preds[k]): t += 4; waited.update(preds[k])
        if i.op.startswith('v_pk_'): M.mf_free = max(M.mf_free, t)
        if i.kind == 'valu': M.valu_end = t
        if i.kind == 'vm': M.issue_vm(i, e)
        if i.kind == 'ds': M.ds_free = max(M.ds_free, e) + DSBUSY.get(i.op, 8)
        order.append(k); ready.remove(k)
        for s, l in succs[k]:
            npred[s] -= 1
            if npred[s] == 0: ready.append(s)
    assert len(order) == n
    M.t = t
    if verbose and os.environ.get('DUMP') == verbose:
        pt = t0
        for k in order:
            sys.stderr.write('%5d %s %s\n' % (done[k], '<<stall %d' % (done[k] - pt) if done[k] > pt else '', ins[k].text)); pt = done[k] + cost(ins[k])
    if verbose:
        sys.stderr.write('sched %s: %d instrs, %d -> %d (%d cycles), issue sum %d\n' % (verbose, n, t0, t, t - t0, sum(cost(i) for i in ins)))
    return [lines[k] for k in order]
```

```python
import sys, os
from emit import finalize, interleave
from sched import schedule, Machine
import copy

KNAME = 'concat_heads__linear_attn_block__linear_kernel_hedgehog__prompt_kernel'

class Cfg:
    stamps = False; lite = False; fine = None; marks = None; leak = None; tfix = 0; extra_empty = False; force_global = False; verbose = False
    rot = True; pref_slots = 2
    xfl = ''; wfl = ''; wofl = ''; outfl = ''; prefl = 'sc1'; tfl = ''
    touch_o = False
    wv_bar = (1, 2, 4, 7); hi2 = 6000; q_tm = True
    rel_part = 1400; rel_nonce = 0
    wo_before = 2; wo_mid = 2; wo_imp = 4; wo_g3 = 1; tab_late = True; late0 = 6; pre_q = False; ws_base = 0
    stages = (2, 1, 2, 3, 4, 4); o_first = 7
    dslat = 130; merge = 24; burst = 24; hold = 12
    rate = 2.2; cap = 256; lat = 400; fifo = 4; wlines = 90; cold = 900; pmiss = 900; smiss = 1000

WS_XCC, WS_FLAG, WS_PART, WS_O, WS_STAMP = 4096, 8192, 65536, 2 << 20, 16 << 20
WS_BYTES = 32 << 20
L_WK, L_WV, L_MISC, L_WQ, L_WO, L_SCR, L_OT = 98304, 126976, 155648, 0, 32768, 32768, 65536
OOB = 0x40000000
sAX, sAW, sAWO, sBX, sBW, sPHI, sBWO, sOUT, sDBG, sWSP = 4, 6, 8, 10, 12, 14, 16, 18, 20, 22
SX, SW, SWO, SPHI, SWS, SOUT = 24, 28, 32, 36, 40, 44
sBR, sRB, sH, sW, sGID, sSLOT, sT0, sT1, sT2, sXCC = 48, 49, 50, 51, 52, 53, 54, 55, 56, 57
sN0, sN1 = 58, 59
sHI, sE28 = 60, 62
sXO, sWO_ = 64, 72
sSPIN, sFAR = 71, 72
sM0X, sM0W, sSH, sCB, sRQ, sPB = 80, 81, 82, 83, 84, 85
sA, sB_, sC_, sD_ = 86, 87, 88, 89
sOB1, sWOM, sDT, sROT, sXB, sWB, sOBX, sFLG, sT3, sREC, sRECA = 90, 91, 92, 93, 94, 95, 96, 97, 98, 99, 79
sWOS, sTAB = sXCC, SX
sFLW = sSLOT
sSGN = sSH
sM1, sM2 = SPHI, SPHI + 2
SPIN = ['s_add_u32 s71, s71, 1', 's_cmp_gt_u32 s71, 0x100000', 's_cbranch_scc1 L_end']
vL = 1
vXD, vWD, vWRq, vWRk, vZ = 2, 6, 7, 8, 9
vXR, vXR2 = 10, 14
vDUM, vT = 18, 19
vPH, vID, vC, vST, vN = 20, 28, 36, 37, 38
vK, vV, vP, vE, vKV, vT2 = 40, 72, 104, 136, 200, 232
vTAG, vL16 = 248, 249
vWO0, vWOD = 250, 252
vTCH, vTCO, vPRE = 253, 254, 255
vS16, vOW, vOR, vOG = vT2 + 3, vT2 + 4, vT2 + 8, vT2 + 9
vOF = list(range(20, 28)) + list(range(32, 36)) + [254, 255]
aX, aWR = 0, 224

def v(r, n=1): return 'v%d' % r if n == 1 else 'v[%d:%d]' % (r, r + n - 1)
def a(r, n=1): return 'a%d' % r if n == 1 else 'a[%d:%d]' % (r, r + n - 1)
def s(r, n=1): return 's%d' % r if n == 1 else 's[%d:%d]' % (r, r + n - 1)
MF = 'v_mfma_f32_32x32x16_bf16'
def mfma(d, x, y, c): return '%s %s, %s, %s, %s' % (MF, v(d, 16), x, y, v(c, 16) if c is not None else '0')

class G:
    def __init__(self, cfg):
        self.cfg = c = cfg; self.npc = 0
        self.M = Machine(c.rate, c.cap, c.lat, fifo=c.fifo, lines={'wk': c.wlines, 'wv': c.wlines, 'wq': c.wlines, 'phi': 13, 'touch': 100, 'pre': 128, 'nonce': 4, 'side': 4, 'pref': 4, 'tab': 4, 'rec': 8},
                         miss={'x0': c.cold, 'nonce': 500, 'part': c.pmiss, 'rec': c.pmiss, 'pre': 600, 'touch': 400, 'pst': c.smiss, 'side': 500, 'ost': 250})
    def stamp(self, k):
        if self.cfg.leak == k: return ['@waitlgkm_all', 's_memrealtime s[%d:%d]' % (sT0, sT1), '@waitlgkm_all', 's_sub_u32 s3, %s, s100' % s(sT0)]
        if not self.cfg.stamps or (self.cfg.lite and k not in (11, 13)): return []
        return ['@waitlgkm_all', 's_memtime s[%d:%d]' % (sT0, sT1), 's_memrealtime s[100:101]', '@waitlgkm_all', 'v_writelane_b32 %s, %s, %d' % (v(vST), s(sT0), k),
                'v_writelane_b32 %s, s100, %d' % (v(vST), 16 + k)]
    def sched(self, L, name, **kw): return self.fine(schedule(self.M, L, verbose=name if self.cfg.verbose else False, dslat=self.cfg.dslat, **kw), name)
    def glue(self, L): return self.M.run(L)
    def fine(self, L, name):
        if not self.cfg.fine or not name.startswith(self.cfg.fine): return L
        out = []; n = len(L); pos = {(k * n) // 7: k for k in range(7)}
        for i, x in enumerate(L):
            if i in pos: out.append(('s_memtime s[%d:%d]' % (4 + 2 * pos[i], 5 + 2 * pos[i]), 'nowait'))
            out.append(x)
        out.append(('s_memtime s[18:19]', 'nowait'))
        if self.cfg.verbose:
            for i, k in pos.items(): sys.stderr.write('  fine %s %d at %d: %s\n' % (name, k, i, L[i]))
        return out

    def offs(self, i):
        L = ['s_lshl_b32 %s, %s, 7' % (s(sD_), s(sROT)), 's_add_u32 %s, %s, %s' % (s(sXO + i), s(sXB), s(sD_)),
             's_mul_i32 %s, %s, %d' % (s(sD_), s(sROT), 64 * 2688), 's_add_u32 %s, %s, %s' % (s(sWO_ + i), s(sWB), s(sD_))]
        if i < 6: L += ['s_add_u32 %s, %s, 1' % (s(sROT), s(sROT)), 's_cmp_eq_u32 %s, 7' % s(sROT), 's_cselect_b32 %s, 0, %s' % (s(sROT), s(sROT))]
        return L
    def touch(self, what):
        c = self.cfg
        if what == 'o': return [('buffer_load_dword %s, %s, s[%d:%d], 0 offen %s' % (v(vDUM), v(vTCO), SWO, SWO + 3, c.tfl), 'touch')]
        return [('buffer_load_dword %s, %s, s[%d:%d], 0 offen offset:%d %s' % (v(vDUM), v(vTCH), SW, SW + 3, {'q': 0, 'v': 1792}[what], c.tfl), 'touch')]

    def prologue(self):
        c = self.cfg; L = []; A = L.append
        A('s_load_dwordx16 s[4:19], s[0:1], 0')
        A('s_load_dwordx4 s[20:23], s[0:1], 64')
        if c.stamps or c.tfix or c.leak: A('s_memrealtime s[100:101]')
        A('s_cmp_ge_u32 s2, 256'); A('s_cbranch_scc1 L_end')
        A('s_lshr_b32 %s, s2, 3' % s(sSLOT))
        A('s_cmp_lt_u32 %s, %d' % (s(sSLOT), c.pref_slots)); A('s_cselect_b32 %s, CODE_SPAN, 0' % s(sT2))
        A('s_getpc_b64 s[%d:%d]' % (sT0, sT1))
        A('v_lshlrev_b32 %s, 7, v0' % v(vT))
        A('v_min_u32 %s, %s, %s' % (v(vT), s(sT2), v(vT)))
        L.append(('global_load_dword %s, %s, s[%d:%d]' % (v(vDUM), v(vT), sT0, sT1), 'pref'))
        A('v_lshrrev_b32 %s, 6, v0' % v(vT)); A('v_and_b32 %s, 63, v0' % v(vL))
        A('v_readfirstlane_b32 %s, %s' % (s(sW), v(vT)))
        A('s_bfe_u32 %s, s2, 0x10002' % s(sBR))
        A('s_and_b32 %s, s2, 3' % s(sRB)); A('s_lshl_b32 %s, %s, 1' % (s(sRB), s(sRB)))
        A('s_lshr_b32 %s, %s, 4' % (s(sT2), s(sSLOT))); A('s_add_u32 %s, %s, %s' % (s(sRB), s(sRB), s(sT2)))
        A('s_and_b32 %s, %s, 15' % (s(sH), s(sSLOT)))
        A('s_mul_i32 %s, %s, 3' % (s(sT2), s(sT2))); A('s_add_u32 %s, %s, %s' % (s(sROT), s(sH), s(sT2)))
        A('s_mul_i32 %s, %s, 37' % (s(sB_), s(sROT))); A('s_lshr_b32 %s, %s, 8' % (s(sB_), s(sB_)))
        A('s_mul_i32 %s, %s, 7' % (s(sB_), s(sB_))); A('s_sub_u32 %s, %s, %s' % (s(sROT), s(sROT), s(sB_)))
        if not c.rot: A('s_mov_b32 %s, 0' % s(sROT))
        A('s_and_b32 %s, %s, 1' % (s(sA), s(sH)))
        A('s_lshl_b32 %s, %s, 2' % (s(sB_), s(sRB))); A('s_add_u32 %s, %s, %s' % (s(sB_), s(sB_), s(sW)))
        A('s_lshl1_add_u32 %s, %s, %s' % (s(sB_), s(sB_), s(sA))); A('s_mul_i32 %s, %s, 28672' % (s(sXB), s(sB_)))
        A('s_lshl_b32 %s, %s, 12' % (s(sM0X), s(sW))); A('s_lshl_b32 %s, %s, 10' % (s(sM0W), s(sW)))
        A('s_mul_i32 %s, %s, -57344' % (s(sDT), s(sA))); A('s_add_u32 %s, %s, 28672' % (s(sDT), s(sDT)))
        A('s_cmp_eq_u32 %s, 15' % s(sH)); A('s_cselect_b32 %s, 8, 0' % s(sSH))
        A('s_mul_i32 %s, %s, 56' % (s(sC_), s(sH))); A('s_sub_u32 %s, %s, %s' % (s(sC_), s(sC_), s(sSH)))
        A('s_mul_i32 %s, %s, %d' % (s(sD_), s(sW), 16 * 2688)); A('s_add_u32 %s, %s, %s' % (s(sWB), s(sC_), s(sD_)))
        L += self.offs(0) + self.offs(1)
        t0, t1, t2 = vT2, vT2 + 1, vT2 + 2
        A('v_lshrrev_b32 %s, 3, %s' % (v(t0), v(vL))); A('v_mul_u32_u24 %s, 896, %s' % (v(t0), v(t0)))
        A('v_lshrrev_b32 %s, 4, %s' % (v(t1), v(vL))); A('v_and_b32 %s, 7, %s' % (v(t2), v(vL)))
        A('v_xor_b32 %s, %s, %s' % (v(t2), v(t1), v(t2)))
        A('v_lshl_add_u32 %s, %s, 4, %s' % (v(vXD), v(t2), v(t0)))
        A('v_xor_b32 %s, 4, %s' % (v(t2), v(t2))); A('v_lshl_add_u32 %s, %s, 4, %s' % (v(vXD + 1), v(t2), v(t0)))
        A('v_add_u32 %s, %d, %s' % (v(vXD + 2), 2 * 6144, v(vXD))); A('v_add_u32 %s, %d, %s' % (v(vXD + 3), 3 * 6144, v(vXD + 1)))
        A('v_add_u32 %s, %d, %s' % (v(vXD + 1), 6144, v(vXD + 1)))
        A('v_lshrrev_b32 %s, 2, %s' % (v(t0), v(vL))); A('v_mul_u32_u24 %s, 2688, %s' % (v(t0), v(t0)))
        A('v_and_b32 %s, 3, %s' % (v(t2), v(vL))); A('v_lshl_add_u32 %s, %s, 4, %s' % (v(vWD), v(t2), v(t0)))
        for srd, n in ((SX, 1835008), (SW, 1204224), (SWO, 401408), (SWS, WS_BYTES), (SOUT, 3670016)):
            A('s_mov_b32 %s, %d' % (s(srd + 2), n)); A('s_mov_b32 %s, 0x20000' % s(srd + 3))
        A('s_cmp_eq_u32 %s, 0' % s(sBR))
        A('@waitlgkm_all')
        if c.leak == 13: L += self.stamp(13); A('s_cmp_eq_u32 %s, 0' % s(sBR))
        if c.stamps: A('s_mov_b32 s3, s100'); L += self.stamp(13); A('s_cmp_eq_u32 %s, 0' % s(sBR))
        for (srd, pa, pb) in ((SX, sAX, sBX), (SW, sAW, sBW), (SWO, sAWO, sBWO)):
            A('s_cselect_b32 %s, %s, %s' % (s(srd), s(pa), s(pb))); A('s_cselect_b32 %s, %s, %s' % (s(srd + 1), s(pa + 1), s(pb + 1)))
        A('s_cselect_b32 %s, 0, 25088' % s(SPHI + 2))
        L += self.dma_x(0) + self.dma_w(0, 1, L_WK, 'wk0') + self.dma_w(1, 1, L_WK, 'wk1')
        A('s_mov_b32 %s, %s' % (s(SPHI), s(sPHI))); A('s_mov_b32 %s, %s' % (s(SPHI + 1), s(sPHI + 1))); A('s_mov_b32 %s, 0x20000' % s(SPHI + 3))
        A('v_lshlrev_b32 %s, 4, %s' % (v(vL16), v(vL)))
        A('s_cmp_ge_u32 %s, 2' % s(sW)); A('s_cselect_b32 %s, 0x%x, %s' % (s(sA), OOB, s(sM0W))); A('v_add_u32 %s, %s, %s' % (v(t0), s(sA), v(vL16)))
        A('s_mul_i32 %s, %s, 1568' % (s(sT2), s(sH))); A('s_add_u32 m0, %s, %d' % (s(sM0W), L_MISC))
        L.append(('buffer_load_dwordx4 %s, s[%d:%d], %s offen lds' % (v(t0), SPHI, SPHI + 3, s(sT2)), 'phi'))
        L += self.dma_x(1)
        if c.ws_base: A('s_add_u32 %s, %s, %d' % (s(sWSP), s(sWSP), c.ws_base)); A('s_addc_u32 %s, %s, 0' % (s(sWSP + 1), s(sWSP + 1)))
        for (srd, p) in ((SWS, sWSP), (SOUT, sOUT)):
            A('s_mov_b32 %s, %s' % (s(srd), s(p))); A('s_mov_b32 %s, %s' % (s(srd + 1), s(p + 1)))
        A('v_mov_b32 %s, 0' % v(vZ))
        A('s_or_b32 %s, s2, %s' % (s(sT2), s(sW))); A('s_cmp_eq_u32 %s, 0' % s(sT2)); A('s_cbranch_scc1 L_mknonce')
        A('L_nononce:')
        self.glue(L)
        return L

    def setup(self):
        c = self.cfg; L = []; A = L.append
        t0, t1, t2 = vT2, vT2 + 1, vT2 + 2
        A('s_mov_b32 %s, 0' % s(sSPIN))
        A('s_getreg_b32 %s, hwreg(HW_REG_XCC_ID, 0, 4)' % s(sXCC))
        m, hi, t3, t4 = vT2 + 3, vT2 + 4, vT2 + 5, vT2 + 6
        A('s_mul_i32 %s, %s, 98' % (s(sA), s(sSLOT))); A('s_mul_i32 %s, %s, 25' % (s(sB_), s(sW))); A('s_add_u32 %s, %s, %s' % (s(sA), s(sA), s(sB_)))
        A('v_min_u32 %s, 24, %s' % (v(t0), v(vL))); A('v_add_u32 %s, %s, %s' % (v(t0), s(sA), v(t0))); A('v_min_u32 %s, 3135, %s' % (v(t0), v(t0)))
        A('v_lshlrev_b32 %s, 7, %s' % (v(vTCO), v(t0)))
        A('v_and_b32 %s, 31, %s' % (v(m), v(vL))); A('v_lshrrev_b32 %s, 5, %s' % (v(hi), v(vL)))
        A('v_bfe_u32 %s, %s, 1, 3' % (v(t1), v(m))); A('v_xor_b32 %s, %s, %s' % (v(t1), v(t1), v(hi)))
        A('v_lshl_add_u32 %s, %s, 7, %s' % (v(t2), v(m), s(sM0X)))
        for ks in range(4):
            A('v_xor_b32 %s, %d, %s' % (v(t3), 2 * ks, v(t1))); A('v_lshl_add_u32 %s, %s, 4, %s' % (v(vXR + ks), v(t3), v(t2)))
            A('v_add_u32 %s, 0x10000, %s' % (v(vXR2 + ks), v(vXR + ks)))
        A('v_bfe_u32 %s, %s, 2, 2' % (v(t1), v(vL))); A('v_lshlrev_b32 %s, 6, %s' % (v(t2), v(t1)))
        A('v_lshl_add_u32 %s, %s, 9, %s' % (v(t2), v(hi), v(t2)))
        A('v_bfe_u32 %s, %s, 4, 1' % (v(t3), v(vL))); A('v_and_b32 %s, 3, %s' % (v(t4), v(vL)))
        A('v_lshlrev_b32 %s, 3, %s' % (v(t4), v(t4))); A('v_lshl_add_u32 %s, %s, 5, %s' % (v(t4), v(t3), v(t4)))
        A('v_add3_u32 %s, %s, %s, %s' % (v(vWRq), v(t2), v(t4), s(sSH)))
        A('v_add_u32 %s, %d, %s' % (v(vWRk), L_WK, v(vWRq)))
        A('v_xor_b32 %s, %s, %s' % (v(t3), s(sW), v(t1))); A('v_lshl_add_u32 %s, %s, 6, %s' % (v(t4), v(t3), v(t4)))
        A('v_lshl_add_u32 %s, %s, 8, %s' % (v(t4), v(t1), v(t4))); A('v_lshrrev_b32 %s, 4, %s' % (v(t3), v(vL))); A('v_lshl_add_u32 %s, %s, 11, %s' % (v(t4), v(t3), v(t4)))
        A('v_add_u32 %s, %d, %s' % (v(vWO0), L_WO, v(t4)))
        A('s_and_b32 %s, %s, 1' % (s(sA), s(sW))); A('s_lshl_b32 %s, %s, 4' % (s(sA), s(sA))); A('v_xor_b32 %s, %s, %s' % (v(t4), s(sA), v(m)))
        A('s_bitcmp1_b32 %s, 1' % s(sW)); A('s_cselect_b32 %s, 0x80008000, 0' % s(sSGN))
        A('v_lshrrev_b32 %s, 3, %s' % (v(t0), v(t4))); A('v_and_b32 %s, 3, %s' % (v(t1), v(t4)))
        A('v_lshl_add_u32 %s, %s, 2, %s' % (v(t0), v(t0), v(t1)))
        A('v_lshrrev_b32 %s, 4, %s' % (v(t1), v(t4))); A('v_sub_u32 %s, %s, %s' % (v(t0), v(t0), v(t1)))
        A('v_bfe_u32 %s, %s, 2, 1' % (v(t1), v(m))); A('v_mad_u32_u24 %s, %s, 14, %s' % (v(t0), v(t1), v(t0)))
        A('v_and_b32 %s, 11, %s' % (v(t1), v(m))); A('v_cmp_eq_u32 vcc, 11, %s' % v(t1))
        A('v_mov_b32 %s, %d' % (v(t2), L_MISC + 2048))
        A('v_mul_u32_u24 %s, 224, %s' % (v(t3), v(hi))); A('v_lshl_add_u32 %s, %s, 1, %s' % (v(t3), v(t0), v(t3))); A('v_add_u32 %s, %d, %s' % (v(t3), L_MISC, v(t3)))
        A('v_cndmask_b32_e64 %s, %s, %s, vcc' % (v(vT2 + 12), v(t3), v(t2)))
        A('v_cndmask_b32_e64 %s, %s, 63, vcc' % (v(vT2 + 11), v(t0)))
        A('v_cmp_lt_u32_e64 s[%d:%d], 31, %s' % (sHI, sHI + 1, v(vL)))
        A('v_cmp_eq_u32_e64 s[%d:%d], 28, %s' % (sE28, sE28 + 1, v(m)))
        A('v_cndmask_b32_e64 %s, %s, %s, s[%d:%d]' % (v(vT2 + 13), v(vT2 + 12), v(t2), sHI, sHI + 1))
        return L

    def mknonce(self):
        L = ['L_mknonce:', '@assume_idle']; A = L.append
        A('s_load_dwordx2 s[%d:%d], s[%d:%d], 0' % (sT0, sT1, sWSP, sWSP + 1))
        A('@waitlgkm_all')
        A('s_add_u32 %s, %s, 0x9e3679b8' % (s(sT0), s(sT0))); A('s_add_u32 %s, %s, 0x85eaca6a' % (s(sT1), s(sT1)))
        for r in (sT0, sT1):
            A('s_or_b32 %s, %s, 0x00010001' % (s(r), s(r))); A('s_and_b32 %s, %s, 0xbfffbfff' % (s(r), s(r)))
        A('v_mov_b32 %s, %s' % (v(vN), s(sT0))); A('v_mov_b32 %s, %s' % (v(vN + 1), s(sT1)))
        A('s_mov_b64 exec, 1')
        A('global_store_dwordx2 %s, %s, s[%d:%d] sc1' % (v(vZ), v(vN, 2), sDBG, sDBG + 1))
        A('global_store_dwordx2 %s, %s, s[%d:%d] sc1' % (v(vZ), v(vN, 2), sWSP, sWSP + 1))
        A('s_mov_b64 exec, -1'); A('s_branch L_nononce')
        return L

    def setup2(self):
        m, hi, fp, ofs, ofs2 = vT2 + 3, vT2 + 4, vT2 + 11, vT2 + 12, vT2 + 13
        P0 = []
        for t in range(2):
            for j in range(8):
                d = 16 * t + 8 * (j >> 2) + (j & 3)
                P0.append('ds_read_u16 %s, %s offset:%d' % (v(vP + 8 * t + j), v(ofs2 if (t == 1 and j >= 4) else ofs), d * 56))
        def selector(dst, tgt):
            R = []
            x, y, z = vT2 + 8, vT2 + 9, vT2 + 10
            R.append('v_lshrrev_b32 %s, 3, %s' % (v(x), v(tgt))); R.append('v_bfe_u32 %s, %s, 1, 1' % (v(y), v(tgt)))
            R.append('v_lshl_add_u32 %s, %s, 1, %s' % (v(x), v(x), v(y)))
            R.append('v_and_b32 %s, 1, %s' % (v(y), v(tgt))); R.append('v_lshlrev_b32 %s, 4, %s' % (v(y), v(y)))
            R.append('v_mov_b32 %s, 0x3f80' % v(z)); R.append('v_lshlrev_b32 %s, %s, %s' % (v(z), v(y), v(z)))
            R.append('v_bfe_u32 %s, %s, 2, 1' % (v(y), v(tgt))); R.append('v_cmp_eq_u32 vcc, %s, %s' % (v(y), v(hi)))
            R.append('v_cndmask_b32_e64 %s, 15, %s, vcc' % (v(x), v(x)))
            mk = [sN0, sHI + 0, sPB - 1, sN0]
            for i in range(8):
                r = (sN0, sT0)[i & 1]
                R.append('v_cmp_eq_u32_e64 s[%d:%d], %d, %s' % (r, r + 1, i, v(x)))
                R.append('v_cndmask_b32_e64 %s, 0, %s, s[%d:%d]' % (v(dst + i), v(z), r, r + 1))
            return R
        P1 = selector(vID, m)
        P2 = selector(vE, fp)
        P2 += ['v_mov_b32 %s, 0x3fb8aa3b' % v(vC),
               'v_lshlrev_b32 %s, 7, %s' % (v(vPRE), v(m)),
               's_lshl_b32 %s, %s, 3' % (s(sGID), s(sBR)), 's_add_u32 %s, %s, %s' % (s(sGID), s(sGID), s(sRB)),
               's_and_b32 %s, %s, 3' % (s(sCB), s(sH)), 's_lshr_b32 %s, %s, 2' % (s(sRQ), s(sH)),
               's_lshl_b32 %s, %s, 4' % (s(sT3), s(sGID)), 's_add_u32 %s, %s, %s' % (s(sPB), s(sT3), s(sH)),
               's_lshl_b32 %s, %s, 14' % (s(sT3), s(sPB)), 's_lshl_b32 %s, %s, 12' % (s(sOBX), s(sW)), 's_add_u32 %s, %s, %s' % (s(sOBX), s(sOBX), s(sT3)),
               's_add_u32 %s, %s, %d' % (s(sOBX), s(sOBX), WS_O),
               's_and_b32 %s, %s, 1' % (s(sOB1), s(sH)), 's_lshl_b32 %s, %s, 11' % (s(sOB1), s(sOB1)), 's_add_u32 %s, %s, %s' % (s(sOB1), s(sOB1), s(sOBX)),
               's_lshl_b32 %s, %s, 9' % (s(sT3), s(sGID)), 's_add_u32 %s, %s, %d' % (s(sT3), s(sT3), WS_FLAG),
               's_lshl_b32 %s, %s, 7' % (s(sFLW), s(sW)), 's_add_u32 %s, %s, %s' % (s(sFLW), s(sFLW), s(sT3)),
               's_lshl_b32 %s, %s, 7' % (s(sFLG), s(sRQ)), 's_add_u32 %s, %s, %s' % (s(sFLG), s(sFLG), s(sT3))]
        A = P2.append; t0, t1, t2 = vT2 + 8, vT2 + 9, vT2 + 10
        A('v_lshrrev_b32 %s, 4, %s' % (v(t0), v(vL))); A('v_bfe_u32 %s, %s, 2, 2' % (v(t1), v(vL))); A('v_xor_b32 %s, %s, %s' % (v(t1), v(t1), v(t0)))
        A('v_mul_u32_u24 %s, 896, %s' % (v(t0), v(t0))); A('v_lshl_add_u32 %s, %s, 6, %s' % (v(t0), v(t1), v(t0)))
        A('v_and_b32 %s, 3, %s' % (v(t2), v(vL))); A('v_lshl_add_u32 %s, %s, 4, %s' % (v(t0), v(t2), v(t0)))
        A('s_cmp_eq_u32 %s, 3' % s(sCB)); A('s_cselect_b32 %s, 1, 3' % s(sT3))
        A('v_cmp_lt_u32 vcc, %s, %s' % (s(sT3), v(t1))); A('v_mov_b32 %s, 0x%x' % (v(t2), OOB))
        A('v_cndmask_b32_e64 %s, %s, %s, vcc' % (v(vWOD), v(t0), v(t2)))
        A('s_lshl_b32 %s, %s, 3' % (s(sRECA), s(sPB))); A('s_add_u32 %s, %s, %d' % (s(sRECA), s(sRECA), WS_XCC))
        A('v_cmp_eq_u32 vcc, 0, %s' % v(vL)); A('v_and_b32 %s, 1, %s' % (v(t0), v(vL))); A('v_and_b32 %s, 2, %s' % (v(t1), v(vL)))
        A('v_cndmask_b32_e64 %s, %s, 0, vcc' % (v(vT), v(t2)))
        A('v_cmp_ne_u32_e64 s[%d:%d], 0, %s' % (sM1, sM1 + 1, v(t0))); A('v_cmp_ne_u32_e64 s[%d:%d], 0, %s' % (sM2, sM2 + 1, v(t1)))
        return P0, P1, P2

    def dma_x(self, i):
        L = ['s_add_u32 m0, %s, %d' % (s(sM0X), (i % 6) * 16384)]
        if i >= 7: L.append('s_add_u32 %s, %s, %s' % (s(sXO + i - 7), s(sXO + i - 7), s(sDT)))
        for j in range(4):
            L.append(('buffer_load_dwordx4 %s, s[%d:%d], %s offen offset:%d %s lds' % (v(vXD + j), SX, SX + 3, s(sXO + i % 7), 1024 * j, self.cfg.xfl), 'x%d' % i))
        return L
    def dma_w(self, i, part, base, tag):
        return ['s_add_u32 m0, %s, %d' % (s(sM0W), base + i * 4096),
                's_add_u32 %s, %s, %d' % (s(sT2), s(sWO_ + i), part * 896),
                ('buffer_load_dwordx4 %s, s[%d:%d], %s offen %s lds' % (v(vWD), SW, SW + 3, s(sT2), self.cfg.wfl), tag)]
    def xfrag(self, i, ks, tile): return aX + ((i * 4 + ks) * 2 + tile) * 4
    def wread(self, slot, basev, off):
        r = aWR + 4 * (slot % 8)
        return ['ds_read_b64_tr_b16 %s, %s offset:%d' % (a(r + 2 * u, 2), v(basev), off + 256 * u) for u in range(2)]

    def xiter(self, i, extra=()):
        R = []; A = R.append
        ch, tile, sl = i % 7, i // 7, i % 6
        wk = {0: ' wk0 wk1 phi', 2: ' wk2 wk3', 4: ' wk4 wk5 wk6'}.get(i, '')
        A('@waitvm x%d' % i + wk)
        if wk: A('s_barrier')
        if i == 0: R += self.stamp(1)
        for ks in range(4):
            R += self.wread(4 * i + ks, vWRk, ch * 4096 + ks * 1024)
            R.append(('ds_read_b128 %s, %s offset:%d' % (a(self.xfrag(ch, ks, tile), 4), v((vXR2 if sl >= 4 else vXR) + ks), (sl & 3) * 16384), 'xr%d' % i))
        if i + 6 < 14: A('@waitlgkm xr%d' % i); R += self.dma_x(i + 6)
        R += extra
        for ks in range(4):
            R.append((mfma(vK + 16 * tile, a(aWR + 4 * ((4 * i + ks) % 8), 4), a(self.xfrag(ch, ks, tile), 4), None if (ch == 0 and ks == 0) else vK + 16 * tile), 'kk'))
        return R
    def part1(self):
        P = self.setup2()
        R = []
        for i in range(2, 7): R += self.offs(i)
        W = lambda i: self.dma_w(i, 1, L_WK, 'wk%d' % i)
        R += W(2) + W(3) + self.dma_x(2) + W(4) + self.dma_x(3) + W(5) + W(6) + self.dma_x(4) + self.dma_x(5)
        R += self.setup() + P[1] + P[2]
        pk = []
        for u in range(8): pk += ['v_lshl_or_b32 %s, %s, 16, %s' % (v(vPH + u), v(vP + 2 * u + 1), v(vP + 2 * u)), 'v_xor_b32 %s, %s, %s' % (v(vPH + u), s(sSGN), v(vPH + u))]
        for i in range(7): R += self.xiter(i, P[0] + pk if i == 1 else ())
        return self.sched(R, 'part1')

    def gemm(self, acc, basev, off, transposed, first_slot, hooks=None, tiles=(0, 1), lead=False):
        L = []; hooks = hooks or {}
        for k in range(28):
            L += hooks.get(k, [])
            w = a(aWR + 4 * ((first_slot + k) % 8), 4)
            L += self.wread(first_slot + k, basev, off + k * 1024)
            for tile in tiles:
                x = a(self.xfrag(k // 4, k % 4, tile), 4)
                L.append((mfma(acc + 16 * tile, w if transposed else x, x if transposed else w, None if k == 0 else acc + 16 * tile), 'lead' if (lead and tile == 0) else None))
        return L

    def pack(self, r, n=8): return ['v_cvt_pk_bf16_f32 %s, %s, %s' % (v(r + u), v(r + 2 * u), v(r + 2 * u + 1)) for u in range(n)]
    def zero_hi_pads(self, r): return ['v_cndmask_b32_e64 %s, %s, 0, s[%d:%d]' % (v(r + u), v(r + u), sHI, sHI + 1) for u in (6, 7)]

    def softmax(self, p, ep, en, tmp, pk):
        L = []; A = L.append
        Z, T, S1, S2 = tmp, tmp + 2, tmp + 4, tmp + 6
        VAL = [0, 1, 2, 3, 4, 5, 6, 8, 9, 10, 11, 12, 13, 14]
        if pk:
            for r in (ep + 7, ep + 15, en + 7, en + 15): A('v_mov_b32 %s, 0' % v(r))
        for (d, sg) in ((Z, ''), (T, '-')):
            A('v_max3_f32 %s, %s%s, %s%s, %s%s' % (v(d), sg, v(p), sg, v(p + 1), sg, v(p + 2)))
            A('v_max3_f32 %s, %s%s, %s%s, %s%s' % (v(d + 1), sg, v(p + 8), sg, v(p + 9), sg, v(p + 10)))
            for (x, y) in ((3, 4), (5, 6)): A('v_max3_f32 %s, %s, %s%s, %s%s' % (v(d), v(d), sg, v(p + x), sg, v(p + y)))
            for (x, y) in ((11, 12), (13, 14)): A('v_max3_f32 %s, %s, %s%s, %s%s' % (v(d + 1), v(d + 1), sg, v(p + x), sg, v(p + y)))
            A('v_max_f32 %s, %s, %s' % (v(d), v(d), v(d + 1)))
        A('v_permlane32_swap_b32 %s, %s' % (v(Z), v(T))); A('v_max_f32 %s, %s, %s' % (v(Z), v(Z), v(T)))
        A('v_mul_f32 %s, %s, %s' % (v(Z), v(vC), v(Z))); A('v_mov_b32 %s, %s' % (v(T), v(Z)))
        A('v_permlane32_swap_b32 %s, %s' % (v(Z), v(T)))
        for (e, z, ng) in ((ep, Z, 0), (en, T, 1)):
            for u in VAL:
                if pk and u not in (6, 14):
                    if u & 1 == 0: A('v_pk_fma_f32 %s, %s, %s, %s op_sel_hi:[1,0,0] neg_lo:[%d,0,1] neg_hi:[%d,0,1]' % (v(e + u, 2), v(p + u, 2), v(vC, 2), v(z, 2), ng, ng))
                else: A('v_fma_f32 %s, %s%s, %s, -%s' % (v(e + u), '-' if ng else '', v(p + u), v(vC), v(z)))
                A('v_exp_f32 %s, %s' % (v(e + u), v(e + u)))
        for (e, S, z) in ((ep, S1, Z), (en, S2, T)):
            if pk:
                A('v_pk_add_f32 %s, %s, %s' % (v(S, 2), v(e, 2), v(e + 2, 2)))
                for u in (4, 6, 8, 10, 12, 14): A('v_pk_add_f32 %s, %s, %s' % (v(S, 2), v(S, 2), v(e + u, 2)))
            else:
                A('v_add_f32 %s, %s, %s' % (v(S), v(e), v(e + 1))); A('v_add_f32 %s, %s, %s' % (v(S + 1), v(e + 8), v(e + 9)))
                for u in range(2, 7):
                    A('v_add_f32 %s, %s, %s' % (v(S), v(S), v(e + u))); A('v_add_f32 %s, %s, %s' % (v(S + 1), v(S + 1), v(e + 8 + u)))
            A('v_add_f32 %s, %s, %s' % (v(S), v(S), v(S + 1)))
        A('v_permlane32_swap_b32 %s, %s' % (v(S1), v(S2))); A('v_add_f32 %s, %s, %s' % (v(S1), v(S1), v(S2)))
        A('v_rcp_f32 %s, %s' % (v(S1), v(S1))); A('v_mov_b32 %s, %s' % (v(S2), v(S1)))
        A('v_permlane32_swap_b32 %s, %s' % (v(S1), v(S2)))
        for (e, z) in ((ep, S1), (en, S2)):
            for u in range(8):
                if pk: A('v_pk_mul_f32 %s, %s, %s op_sel_hi:[1,0]' % (v(e + 2 * u, 2), v(e + 2 * u, 2), v(z, 2)))
                else:
                    for k in range(1 if u in (3, 7) else 2): A('v_mul_f32 %s, %s, %s' % (v(e + 2 * u + k), v(e + 2 * u + k), v(z)))
                A('v_cvt_pk_bf16_f32 %s, %s, %s' % (v(e + u), v(e + 2 * u), '0' if (u in (3, 7) and not pk) else v(e + 2 * u + 1)))
        return L

    def elu1(self, p, e, pads, pk):
        L = []; A = L.append
        for u in range(0, 16, 2):
            n = 1 if (pads and u in (6, 14)) else 2
            if pk and n == 2: A('v_pk_mul_f32 %s, %s, %s op_sel_hi:[1,0]' % (v(e + u, 2), v(p + u, 2), v(vC, 2)))
            for k in range(n):
                if not (pk and n == 2): A('v_mul_f32 %s, %s, %s' % (v(e + u + k), v(vC), v(p + u + k)))
                A('v_exp_f32_e64 %s, %s clamp' % (v(e + u + k), v(e + u + k)))
                A('v_max_f32 %s, 0x358637bd, %s' % (v(p + u + k), v(p + u + k)))
                if not (pk and n == 2): A('v_add_f32 %s, %s, %s' % (v(e + u + k), v(e + u + k), v(p + u + k)))
            if pk and n == 2: A('v_pk_add_f32 %s, %s, %s' % (v(e + u, 2), v(e + u, 2), v(p + u, 2)))
            A('v_cvt_pk_bf16_f32 %s, %s, %s' % (v(e + u // 2), v(e + u), v(e + u + 1) if n == 2 else '0'))
        return L

    def nonce_load(self): return [('global_load_dwordx2 %s, %s, s[%d:%d] sc1' % (v(vN, 2), v(vZ), sDBG, sDBG + 1), 'nonce')]
    def use_nonce(self):
        L = []; A = L.append
        t0, t1 = vXR2, vXR2 + 1
        A('v_readfirstlane_b32 %s, %s' % (s(sN0), v(vN))); A('v_readfirstlane_b32 %s, %s' % (s(sN1), v(vN + 1)))
        A('v_cndmask_b32_e64 %s, %s, %s, s[%d:%d]' % (v(t0), v(vN), v(vN + 1), sM2, sM2 + 1))
        A('v_lshlrev_b32 %s, 16, %s' % (v(t1), v(t0))); A('v_and_b32 %s, 0xffff0000, %s' % (v(t0), v(t0)))
        A('v_cndmask_b32_e64 %s, %s, %s, s[%d:%d]' % (v(vTAG), v(t1), v(t0), sM1, sM1 + 1))
        A('s_and_b32 %s, %s, 0xfffffff0' % (s(sROT), s(sN1))); A('s_or_b32 %s, %s, %s' % (s(sREC), s(sXCC), s(sROT)))
        A('v_mov_b32 %s, %s' % (v(vN + 1), s(sREC)))
        L.append(('buffer_store_dwordx2 %s, %s, s[%d:%d], %s offen sc1' % (v(vN, 2), v(vT), SWS, SWS + 3, s(sRECA)), 'side'))
        return L
    def nonce_chk(self, br):
        return ['L_nonce_chk%s:' % br, 's_min_u32 %s, %s, %s' % (s(sT2), s(sN0), s(sN1)), 's_cmp_eq_u32 %s, 0' % s(sT2), 's_cbranch_scc1 L_nonce_retry%s' % br]
    def nonce_retry(self, br):
        return ['L_nonce_retry%s:' % br, '@assume_idle', 's_sleep 1'] + SPIN + self.nonce_load() + self.use_nonce() + ['s_branch L_nonce_chk%s' % br]
    def side_loads(self):
        c = self.cfg
        L = []
        if c.touch_o: L += self.touch('o')
        L += [('buffer_load_dword %s, %s, s[%d:%d], %s offen %s' % (v(vDUM), v(vPRE), SWS, SWS + 3, s(sOBX), c.prefl), 'pre'),
              ('buffer_load_dword %s, %s, s[%d:%d], %s offen %s' % (v(vDUM), v(vZ), SWS, SWS + 3, s(sFLW), c.prefl), 'side')]
        return L

    def middle(self, br):
        c = self.cfg; B = br == 'B'; NT = 2 if B else 1
        L = []; A = L.append
        R = []; A = R.append
        if not B:
            for i in range(8): A('v_mov_b32 %s, %s' % (v(vPH + i), v(vE + i)))
        tn = lambda tile, sg: (vP if sg == 0 else vK) + 16 * tile
        def featk(tile):
            X = self.pack(vK + 16 * tile) + self.zero_hi_pads(vK + 16 * tile)
            for t in range(2):
                k4 = v(vK + 16 * tile + 4 * t, 4); w4 = v(vPH + 4 * t, 4)
                X.append((mfma(vP + 16 * tile, w4 if B else k4, k4 if B else w4, None if t == 0 else vP + 16 * tile), 'hi'))
            X += self.softmax(vP + 16 * tile, vE + 32 * tile, vE + 32 * tile + 16, vT2 + 8 * tile, False) if B else self.elu1(vP + 16 * tile, vE + 32 * tile, False, False)
            if B:
                for sg in range(2):
                    for t in range(2):
                        X.append((mfma(tn(tile, sg), v(vE + 32 * tile + 16 * sg + 4 * t, 4), v(vID + 4 * t, 4), None if t == 0 else tn(tile, sg)), 'hi2'))
                    X += self.pack(tn(tile, sg))
            return X
        wv = []
        for k in range(7): wv += self.dma_w(k, 2, L_WV, 'wv%d' % k)
        R += featk(0)
        for i in range(7, 14): R += self.xiter(i, wv if i == 7 else ())
        if c.stamps and not c.lite: R.append(('s_memtime s[%d:%d]' % (SX + 2, SX + 3), 'nowait'))
        R += featk(1)
        wq = self.nonce_load()
        for k in range(7): wq += self.dma_w(k, 0, L_WQ, 'wq')
        wq += ([] if c.pre_q else self.side_loads()) + self.use_nonce()
        hooks = {}; k0 = 0
        for k1 in c.wv_bar:
            hooks[4 * k0] = ['@waitvm wv%d' % (k1 - 1), 's_barrier'] + (wq if k0 == 0 else []); k0 = k1
        R += self.gemm(vV, vWRk, L_WV - L_WK, False, 0, hooks, lead=True)
        A('v_mov_b32 %s, 0x3f803f80' % v(vXR2 + 3))
        for tile in range(2):
            R += self.pack(vV + 16 * tile)
            for u in range(8): A('v_cndmask_b32_e64 %s, %s, %s, s[%d:%d]' % (v(vV + 16 * tile + u), v(vV + 16 * tile + u), v(vXR2 + 3), sE28, sE28 + 1))
        for tile in range(2):
            for sg in reversed(range(NT)):
                src = tn(tile, sg) if B else vE + 32 * tile
                for t in range(2):
                    A(mfma(vKV + 16 * sg, v(src + 4 * t, 4), v(vV + 16 * tile + 4 * t, 4), None if (tile == 0 and t == 0) else vKV + 16 * sg))
        t0, t1, t2 = vXR, vXR + 1, vXR2 + 2
        A('s_add_u32 %s, %s, %d' % (s(sT3), s(sM0X), L_SCR)); A('v_add_u32 %s, %s, %s' % (v(t0), s(sT3), v(vL16)))
        for q in ((4, 5, 6, 7, 2, 3) if B else range(4)): A('ds_write_b128 %s, %s offset:%d' % (v(t0), v(vKV + 4 * q, 4), 16384 * (q >> 2) + 1024 * (q & 3)))
        for d in range(1, 4): A('v_xor_b32 %s, %d, %s' % (v(t0 + d), 4096 * d, v(t0)))
        A('s_and_b32 %s, %s, %d' % (s(sC_), s(sW), 3 if B else 1))
        A('s_lshl_b32 %s, %s, 4' % (s(sA), s(sBR))); A('s_add_u32 %s, %s, %s' % (s(sA), s(sA), s(sH))); A('s_lshl2_add_u32 %s, %s, %s' % (s(sA), s(sA), s(sC_)))
        A('s_lshl_b32 %s, %s, 13' % (s(sA), s(sA))); A('s_add_u32 %s, %s, %d' % (s(sB_), s(sA), WS_PART)); A('s_add_u32 %s, %s, 4096' % (s(sXB), s(sB_)))
        A('s_lshl_b32 %s, %s, 10' % (s(sA), s(sRB))); A('s_add_u32 %s, %s, %s' % (s(sD_), s(sB_), s(sA))); A('s_lshl_b32 %s, %s, 10' % (s(sC_), s(sC_)))
        A('s_and_b32 %s, %s, 0xffffff80' % (s(sWB), s(sRECA)))
        if not B:
            A('s_cmp_ge_u32 %s, 2' % s(sW)); A('s_cselect_b32 %s, 0x%x, 0' % (s(sA), OOB)); A('v_add_u32 %s, %s, %s' % (v(t2), s(sA), v(vL16)))
        A('v_mov_b32 %s, 0xffff' % v(vXD))
        L += self.sched(R, 'phase2' + br, boost={'hi': 9000, 'kk': 12000, 'lead': 5000, 'hi2': c.hi2})
        if c.stamps and not c.lite: L += ['@waitlgkm_all', 'v_writelane_b32 %s, %s, 2' % (v(vST), s(SX + 2))]
        L += self.stamp(3)
        g0 = len(L)
        L += self.nonce_chk(br)
        A = L.append
        A('@waitlgkm_all'); A('s_barrier')
        for d in range(1, 4):
            for hf in range(2): A('ds_read_b128 %s, %s offset:%d' % (v(vV + 8 * d + 4 * hf, 4), v(t0 + d), (16384 * (d >> 1) if B else 0) + 2048 * (d & 1) + 1024 * hf))
        for d in range(1, 4):
            for u in range(0, 8, 2): A('v_pk_add_f32 %s, %s, %s' % (v(vKV + u, 2), v(vKV + u, 2), v(vV + 8 * d + u, 2)))
        L += self.pack(vKV, 4)
        A('v_bfi_b32 %s, %s, %s, %s' % (v(vKV + 3), v(vXD), v(vKV + 3), v(vTAG)))
        L.append(('buffer_store_dwordx4 %s, %s, s[%d:%d], %s offen sc1' % (v(vKV, 4), v(vL16 if B else t2), SWS, SWS + 3, s(sD_)), 'pst'))
        L += self.stamp(4)
        L += ['s_getpc_b64 s[%d:%d]' % (sTAB, sTAB + 1), 'L_pc%s:' % br, 's_add_u32 %s, %s, L_tab - L_pc%s' % (s(sTAB), s(sTAB), br), 's_addc_u32 %s, %s, 0' % (s(sTAB + 1), s(sTAB + 1))]
        A('@waitvm wq'); A('s_barrier')
        self.glue(L[g0:])
        R = []; A = R.append
        t0, t1, t2 = vXR, vXR + 1, vXR + 2
        A('v_add_u32 %s, 2560, %s' % (v(vXD + 1), v(vWOD))); A('v_xor_b32 %s, 32, %s' % (v(vXD + 3), v(vWOD)))
        A('v_add_u32 %s, 5120, %s' % (v(vXD + 2), v(vXD + 3))); A('v_add_u32 %s, 7680, %s' % (v(vXD + 3), v(vXD + 3)))
        A('s_mul_i32 %s, %s, 14336' % (s(sWOS), s(sW))); A('s_lshl_b32 %s, %s, 8' % (s(sA), s(sCB))); A('s_add_u32 %s, %s, %s' % (s(sWOS), s(sWOS), s(sA)))
        A('v_and_b32 %s, 15, %s' % (v(vXR + 3), v(vL))); A('v_lshlrev_b32 %s, 3, %s' % (v(vXR + 3), v(vXR + 3)))
        wo_block = self.wo_block
        if c.pre_q: R += self.side_loads()
        for m in range(c.wo_before): R += wo_block(m)
        npart = len(R); R += self.part_loads()
        for m in range(c.wo_before, c.wo_mid): R += wo_block(m)
        tabs = self.table_loads()
        tm = c.q_tm and B
        if not tm: R += self.gemm(vK, vWRq, L_WQ, True, 4)
        for tile in range(2):
            if tm: R += self.gemm(vK, vWRq, L_WQ, True, 4 + 28 * tile, tiles=(tile,))
            R += self.pack(vK + 16 * tile) + self.zero_hi_pads(vK + 16 * tile)
            for t in range(2):
                R.append((mfma(vP + 16 * tile, v(vPH + 4 * t, 4), v(vK + 16 * tile + 4 * t, 4), None if t == 0 else vP + 16 * tile), 'hi' if tile == 0 else None))
        for tile in range(2):
            pk = not (tm and tile == 0)
            R += self.softmax(vP + 16 * tile, vE + 32 * tile, vE + 32 * tile + 16, vT2 + 8 * tile, pk) if B else self.elu1(vP + 16 * tile, vE + 32 * tile, True, True)
        if c.tab_late: late0 = tabs; tabs = []
        else: late0 = []
        L += self.sched(R + tabs, 'q' + br, release={npart: c.rel_part}, boost={'hi': 4000})
        L += self.stamp(6)
        A = L.append
        A('@waitvm part'); self.glue(L[-1:])
        L += self.stamp(5)
        A('L_part_chk%s:' % br)
        R = []; A = R.append
        G0 = vKV
        for p in range(8): A(mfma(vV, v(vID, 4), v(G0 + 4 * p, 4), None if p == 0 else vV))
        x, z, y = vT2, vT2 + 1, vT2 + 12
        A('v_max3_u32 %s, %s, %s, %s' % (v(x), v(G0 + 3), v(G0 + 7), v(G0 + 11))); A('v_min3_u32 %s, %s, %s, %s' % (v(y), v(G0 + 3), v(G0 + 7), v(G0 + 11)))
        A('v_max3_u32 %s, %s, %s, %s' % (v(x), v(x), v(G0 + 15), v(G0 + 19))); A('v_min3_u32 %s, %s, %s, %s' % (v(y), v(y), v(G0 + 15), v(G0 + 19)))
        A('v_max3_u32 %s, %s, %s, %s' % (v(x), v(x), v(G0 + 23), v(G0 + 27))); A('v_min3_u32 %s, %s, %s, %s' % (v(y), v(y), v(G0 + 23), v(G0 + 27)))
        A('v_max_u32 %s, %s, %s' % (v(x), v(x), v(G0 + 31))); A('v_min_u32 %s, %s, %s' % (v(y), v(y), v(G0 + 31)))
        A('v_xor_b32 %s, %s, %s' % (v(x), v(x), v(vTAG))); A('v_xor_b32 %s, %s, %s' % (v(y), v(y), v(vTAG)))
        A('v_or_b32 %s, %s, %s' % (v(x), v(x), v(y))); A('v_lshrrev_b32 %s, 16, %s' % (v(x), v(x)))
        A('v_xor_b32 %s, %s, %s' % (v(y), s(sN0), v(vN))); A('v_xor_b32 %s, %s, %s' % (v(z), s(sREC), v(vN + 1)))
        A('v_cmp_ne_u32_e64 s[%d:%d], 0, %s' % (sFAR, sFAR + 1, v(z)))
        A('v_lshrrev_b32 %s, 4, %s' % (v(z), v(z))); A('v_or3_b32 %s, %s, %s, %s' % (v(x), v(x), v(y), v(z)))
        A('v_cmp_ne_u32 vcc, 0, %s' % v(x))
        A('v_add_u32 %s, %s, %s' % (v(y), s(sC_), v(vL16))); A('v_add_u32 %s, %d, %s' % (v(y), L_MISC, v(y)))
        for q in range(1, 2 * NT): A('v_xor_b32 %s, %d, %s' % (v(y + q), 1024 * q, v(y)))
        L += self.sched(R, 'sum' + br)
        A = L.append
        A('s_cbranch_vccnz L_part_retry%s' % br)
        late = list(late0)
        for m in range(c.wo_mid, c.wo_imp): late += wo_block(m)
        nl = c.late0
        L += late[:nl]
        L += self.pack(vV, 4)
        A('v_and_b32 %s, 0xffff, %s' % (v(vV + 3), v(vV + 3)))
        A('ds_write_b128 %s, %s' % (v(y), v(vV, 4)))
        A('@waitlgkm_all'); A('s_barrier')
        self.glue(L[-nl - 9:])
        R = []; A = R.append
        R += late[nl:]
        for q in range(2 * NT): A('ds_read_b128 %s, %s' % (v(vV + 16 + 4 * q, 4), v(y + q)))
        for tile in range(2):
            for q in range(2 * NT):
                A(mfma(vP + 16 * tile, v(vV + 16 + 4 * q, 4), v(vE + 32 * tile + 16 * (q >> 1) + 4 * (q & 1), 4), None if q == 0 else vP + 16 * tile))
        for tile in range(2):
            P = vP + 16 * tile; d = vT2 + 4 + 4 * tile
            A('v_mov_b32 %s, %s' % (v(d), v(P + 12))); A('v_permlane32_swap_b32 %s, %s' % (v(P + 12), v(d)))
            A('v_add_f32 %s, 0x358637bd, %s' % (v(d), v(d))); A('v_rcp_f32 %s, %s' % (v(d), v(d)))
            for u in range(8):
                if tile: A('v_pk_mul_f32 %s, %s, %s op_sel_hi:[1,0]' % (v(P + 2 * u, 2), v(P + 2 * u, 2), v(d, 2)))
                else:
                    for k in range(2): A('v_mul_f32 %s, %s, %s' % (v(P + 2 * u + k), v(P + 2 * u + k), v(d)))
                A('v_cvt_pk_bf16_f32 %s, %s, %s' % (v(P + u), v(P + 2 * u), v(P + 2 * u + 1)))
            R += self.zero_hi_pads(P)
        A('v_mov_b32 %s, %s' % (v(vN), s(sN0))); A('v_mov_b32 %s, %s' % (v(vN + 1), s(sN1)))
        A('s_lshl_b32 %s, %s, 3' % (s(sT2), s(sH))); A('s_add_u32 %s, %s, %s' % (s(sC_), s(sFLW), s(sT2))); A('s_xor_b32 %s, %s, 2048' % (s(sOBX), s(sOB1)))
        L += self.sched(R, 'o' + br)
        L += self.stamp(7)
        A = L.append
        if c.force_global: A('s_branch L_far')
        A('s_cmp_lg_u64 s[%d:%d], 0' % (sFAR, sFAR + 1)); A('s_cbranch_scc1 L_far')
        return L
    def publish(self, fl):
        L = []
        for tile in range(2):
            for t in range(2):
                L.append(('buffer_store_dwordx4 %s, %s, s[%d:%d], %s offen offset:%d %s' % (v(vP + 16 * tile + 4 * t, 4), v(vL16), SWS, SWS + 3, s(sOBX if tile else sOB1), 1024 * t, fl), 'ost'))
        for m in range(self.cfg.wo_imp, 7 - self.cfg.wo_g3): L += self.wo_block(m)
        L += self.wo_reads()[:3 + 8 * self.cfg.wo_before] + self.p3_setup()
        L = self.sched(L, 'pub')
        L += ['@waitvm ost']
        L.append('buffer_store_dwordx2 %s, %s, s[%d:%d], %s offen %s' % (v(vN, 2), v(vT), SWS, SWS + 3, s(sC_), fl))
        return L
    def wo_block(self, m, tag='wo'):
        X = ['s_add_u32 m0, %s, %d' % (s(sM0X), L_WO + 16384 * m)]
        if m: X.append('s_add_u32 %s, %s, %d' % (s(sWOS), s(sWOS), 57344))
        return X + [('buffer_load_dwordx4 %s, s[%d:%d], %s offen offset:%d %s lds' % (v(vXD + j if j else vWOD), SWO, SWO + 3, s(sWOS), 1024 * j, self.cfg.wofl), tag) for j in range(4)]
    def part_loads(self):
        L = []
        L.append(('buffer_load_dwordx2 %s, %s, s[%d:%d], %s offen sc1' % (v(vN, 2), v(vXR + 3), SWS, SWS + 3, s(sWB)), 'rec'))
        for p in range(8):
            L.append(('buffer_load_dwordx4 %s, %s, s[%d:%d], %s offen offset:%d sc1' % (v(vKV + 4 * p, 4), v(vL16), SWS, SWS + 3, s(sXB if p >= 4 else sB_), 1024 * (p & 3)), 'part'))
        return L
    def part_retry(self, br):
        return ['L_part_retry%s:' % br, '@assume_idle', 's_nop 15'] + SPIN + self.part_loads() + ['@waitvm_all', 's_branch L_part_chk%s' % br]
    def far(self):
        return ['L_far:', '@assume_idle', '@waitvm_all', 's_nop 4'] + self.publish('sc1') + ['s_branch L_join']
    def wo_reads(self):
        b = [vWO0, vWO0 + 1, vXR2, vXR2 + 1]
        L = ['v_xor_b32 %s, 32, %s' % (v(b[1]), v(b[0])), 'v_add_u32 %s, 0x10000, %s' % (v(b[2]), v(b[0])), 'v_add_u32 %s, 0x10000, %s' % (v(b[3]), v(b[1]))]
        for k in range(14):
            for nt in range(2):
                for i in range(2):
                    off = (32 * k + 4 * i) * 256
                    L.append('ds_read_b64_tr_b16 %s, %s offset:%d' % (a(8 * k + 4 * nt + 2 * i, 2), v(b[nt + 2 * (off >> 16)]), off & 0xffff))
        return L

    def p3_setup(self):
        L = []; A = L.append
        A('s_lshl_b32 %s, %s, 2' % (s(sT2), s(sRB))); A('s_add_u32 %s, %s, %s' % (s(sT2), s(sT2), s(sRQ))); A('s_mul_i32 %s, %s, %d' % (s(sD_), s(sT2), 64 * 1792))
        A('s_mul_i32 %s, %s, 896' % (s(sT2), s(sBR))); A('s_add_u32 %s, %s, %s' % (s(sD_), s(sD_), s(sT2)))
        A('s_lshl_b32 %s, %s, 2' % (s(sT2), s(sCB))); A('s_add_u32 %s, %s, %s' % (s(sT2), s(sT2), s(sW)))
        A('s_cmp_ge_u32 %s, 14' % s(sT2)); A('s_cselect_b32 %s, 0x%x, 0' % (s(sA), OOB))
        A('s_lshl_b32 %s, %s, 6' % (s(sT2), s(sT2))); A('s_add_u32 %s, %s, %s' % (s(sXO), s(sD_), s(sT2)))
        for b in range(1, 4): A('s_add_u32 %s, %s, %d' % (s(sXO + b), s(sXO), b * 16 * 1792))
        t0, t1, t2 = vT2 + 10, vT2 + 11, vT2 + 12
        A('s_lshl_b32 %s, %s, 12' % (s(sB_), s(sW))); A('s_add_u32 %s, %s, %d' % (s(sB_), s(sB_), L_OT))
        A('v_and_b32 %s, 15, %s' % (v(t0), v(vL))); A('v_lshlrev_b32 %s, 4, %s' % (v(vS16), v(t0))); A('v_lshl_add_u32 %s, %s, 6, %s' % (v(t0), v(t0), s(sB_)))
        A('v_bfe_u32 %s, %s, 4, 1' % (v(t1), v(vL))); A('v_lshl_add_u32 %s, %s, 3, %s' % (v(t0), v(t1), v(t0)))
        A('v_bfe_u32 %s, %s, 1, 2' % (v(t1), v(vL))); A('v_lshrrev_b32 %s, 5, %s' % (v(t2), v(vL))); A('v_xor_b32 %s, %s, %s' % (v(t1), v(t1), v(t2)))
        A('v_lshl_add_u32 %s, %s, 4, %s' % (v(vOW), v(t1), v(t0))); A('v_xor_b32 %s, 32, %s' % (v(vOW + 1), v(vOW)))
        A('v_bfe_u32 %s, %s, 3, 2' % (v(t1), v(vL))); A('v_xor_b32 %s, %s, %s' % (v(t1), v(t1), v(vL))); A('v_and_b32 %s, 3, %s' % (v(t1), v(t1)))
        A('v_lshrrev_b32 %s, 2, %s' % (v(t0), v(vL))); A('v_lshl_add_u32 %s, %s, 6, %s' % (v(t2), v(t0), s(sB_))); A('v_lshl_add_u32 %s, %s, 4, %s' % (v(vOR), v(t1), v(t2)))
        A('v_mul_u32_u24 %s, 1792, %s' % (v(t0), v(t0))); A('v_and_b32 %s, 3, %s' % (v(t1), v(vL))); A('v_lshl_add_u32 %s, %s, 4, %s' % (v(t0), v(t1), v(t0)))
        A('v_add_u32 %s, %s, %s' % (v(vOG), s(sA), v(t0)))
        for r in vOF: A('v_add_u32 %s, %s, %s' % (v(r), v(r), v(vS16)))
        A('s_lshl_b32 %s, %s, 6' % (s(sT2), s(sGID))); A('s_add_u32 %s, %s, %s' % (s(sT2), s(sT2), s(sRQ)))
        A('s_lshl_b32 %s, %s, 12' % (s(sT2), s(sT2))); A('s_add_u32 %s, %s, %s' % (s(sT2), s(sT2), s(sM0W))); A('s_add_u32 %s, %s, %d' % (s(sD_), s(sT2), WS_O))
        A('s_mov_b32 m0, %s' % s(sM0W))
        return L
    def table_loads(self):
        L = ['v_and_b32 %s, 0x300, %s' % (v(vWRk), v(vL16)), 'v_lshrrev_b32 %s, 2, %s' % (v(vWRk), v(vWRk))]
        for q in range(4): L.append(('global_load_dwordx%d %s, %s, s[%d:%d] offset:%d' % (4 if q < 3 else 2, v(vOF[4 * q], 4 if q < 3 else 2), v(vWRk), sTAB, sTAB + 1, 16 * q), 'tab'))
        return L
    def table(self):
        T = []
        for g in range(4):
            for r in range(16):
                h, u = divmod(8 * (r >> 1) + 2 * g + (r & 1), 7)
                T.append(h * 4096 + (u >> 2) * 1024 + (u & 1) * 512 + ((u >> 1) & 1) * 8)
        return ['.p2align 6', '.type L_tab,@object', 'L_tab:'] + ['.long %d' % x for x in T] + ['.size L_tab, 256']

    def tail(self):
        c = self.cfg
        L = ['L_pub:'] + self.publish(''); A = L.append
        A('L_join:')
        L += self.stamp(8)
        g3 = 7 - c.wo_g3
        if c.wo_before < g3: A('@waitvm wo'); A('s_barrier'); L += self.wo_reads()[3 + 8 * c.wo_before:3 + 8 * g3]
        A('L_poll:')
        L += SPIN
        A('buffer_load_dwordx2 %s, %s, s[%d:%d], %s offen sc1' % (v(vT2, 2), v(vXR + 3), SWS, SWS + 3, s(sFLG)))
        A('v_xor_b32 %s, %s, %s' % (v(vT2), s(sN0), v(vT2))); A('v_xor_b32 %s, %s, %s' % (v(vT2 + 1), s(sN1), v(vT2 + 1)))
        A('v_or_b32 %s, %s, %s' % (v(vT2), v(vT2), v(vT2 + 1))); A('v_cmp_ne_u32 vcc, 0, %s' % v(vT2)); A('s_cbranch_vccnz L_poll')
        L += self.stamp(9)
        st_of = []
        for st, n in enumerate(c.stages): st_of += [st] * n
        def odma(h):
            X = ['s_add_u32 m0, %s, %d' % (s(sM0W), 4096 * h), 's_add_u32 %s, %s, %d' % (s(sD_), s(sD_), 16384)] if h else []
            return X + [('buffer_load_dwordx4 %s, s[%d:%d], %s offen sc1 lds' % (v(vL16), SWS, SWS + 3, s(sD_)), 'o%d' % st_of[h])]
        assert c.o_first <= 8
        for h in range(c.o_first): L += odma(h)
        A('@waitlgkm_all')
        self.glue(L[L.index('@waitvm ost'):])
        R = []; A = R.append
        have = -1
        M16 = 'v_mfma_f32_16x16x32_bf16'
        for k in range(14):
            need = st_of[(8 * k + 7) // 7]
            while have < need:
                have += 1
                A('@waitvm o%d' % have); A('s_barrier')
                if have == 0:
                    for j in range(c.o_first, 16):
                        for m in range(g3, 7):
                            if j == min(15, max(c.o_first, (16 * m - 8) // 7 + 1)): R += self.wo_block(m, 'wog%d' % m)
                        R += odma(j)
            if k % 2 == 0 and k // 2 >= g3:
                A('@waitvm wog%d' % (k // 2)); A('s_barrier'); R += self.wo_reads()[3 + 4 * k:3 + 4 * k + 8]
            for sg in range(4):
                r = vE + 4 * ((4 * k + sg) % 12)
                for i in range(2):
                    A('ds_read_b64 %s, %s offset:%d' % (v(r + 2 * i, 2), v(vOF[2 * (k % 7) + i]), (k // 7) * 32768 + (sg >> 1) * 2048 + (sg & 1) * 256))
                for nt in range(2):
                    d = v(vK + 8 * sg + 4 * nt, 4)
                    A('%s %s, %s, %s, %s' % (M16, d, a(8 * k + 4 * nt, 4), v(r, 4), d if k else '0'))
        L += self.sched(R, 'gemm3')
        L += self.stamp(10)
        R = []; A = R.append
        for sg in range(4):
            for nt in range(2):
                d = vK + 8 * sg + 4 * nt
                R += self.pack(d, 2)
                A('ds_write_b64 %s, %s offset:%d' % (v(vOW + nt), v(d, 2), 1024 * sg))
            A('ds_read_b128 %s, %s offset:%d' % (v(vP + 4 * sg, 4), v(vOR), 1024 * sg))
            A('buffer_store_dwordx4 %s, %s, s[%d:%d], %s offen %s' % (v(vP + 4 * sg, 4), v(vOG), SOUT, SOUT + 3, s(sXO + sg), c.outfl))
        L += self.sched(R, 'out')
        A = L.append
        if c.stamps:
            L += self.stamp(11)
            A('s_memrealtime s[%d:%d]' % (sT0, sT1)); A('@waitlgkm_all')
            A('v_writelane_b32 %s, %s, 12' % (v(vST), s(sT0))); A('v_writelane_b32 %s, s3, 0' % v(vST))
            A('s_lshl_b32 %s, s2, 2' % s(sT2)); A('s_add_u32 %s, %s, %s' % (s(sT2), s(sT2), s(sW))); A('s_lshl_b32 %s, %s, 8' % (s(sT2), s(sT2)))
            A('s_add_u32 %s, %s, %d' % (s(sT2), s(sT2), WS_STAMP))
            A('v_lshlrev_b32 %s, 2, %s' % (v(vT), v(vL)))
            for k in range(8): A('v_writelane_b32 %s, s%d, %d' % (v(vST), 4 + 2 * k, 32 + k))
            A('buffer_store_dword %s, %s, s[%d:%d], %s offen' % (v(vST), v(vT), SWS, SWS + 3, s(sT2)))
        if c.leak:
            if c.leak == 11: L += self.stamp(11)
            A('s_memrealtime s[100:101]'); A('s_lshl_b32 s3, s3, 2'); A('@waitlgkm_all')
            A('L_leak:'); A('s_memrealtime s[%d:%d]' % (sT0, sT1)); A('@waitlgkm_all'); A('s_sub_u32 %s, %s, s100' % (s(sT0), s(sT0))); A('s_cmp_lt_u32 %s, s3' % s(sT0)); A('s_cbranch_scc1 L_leak')
        if c.tfix:
            A('L_tfix:'); A('s_memrealtime s[%d:%d]' % (sT0, sT1)); A('@waitlgkm_all'); A('s_sub_u32 %s, %s, s100' % (s(sT0), s(sT0))); A('s_cmp_lt_u32 %s, %d' % (s(sT0), c.tfix)); A('s_cbranch_scc1 L_tfix')
        A('L_end:'); A('s_endpgm')
        return L

    def marks(self, L):
        if not self.cfg.marks: return L
        out = []; seen = set()
        for x in L:
            t = x[0] if isinstance(x, tuple) else x
            hit = [k for k, (p, af) in enumerate(self.cfg.marks) if (t == p or t.startswith(p + ' ')) and k not in seen]
            for k in hit:
                if not self.cfg.marks[k][1]: out.append(('s_memtime s[%d:%d]' % (4 + 2 * k, 5 + 2 * k), 'nowait'))
            out.append(x)
            for k in hit:
                if self.cfg.marks[k][1]: out.append(('s_memtime s[%d:%d]' % (4 + 2 * k, 5 + 2 * k), 'nowait'))
                seen.add(k)
        return out
    def build(self):
        shared = self.prologue() + self.part1() + self.stamp(14) + ['s_cmp_eq_u32 %s, 0' % s(sBR), 's_cbranch_scc1 L_brA']
        MK = '.set MARK_A, 0'
        M0 = copy.deepcopy(self.M)
        main = finalize(self.marks(shared + self.middle('B') + self.tail()))
        self.M = M0
        alt = finalize(self.marks(shared + [MK, 'L_brA:'] + self.middle('A') + ['@wait_all', 's_branch L_pub']))
        alt = alt[alt.index(MK) + 1:]
        side = finalize(self.far() + self.mknonce() + self.nonce_retry('B') + self.nonce_retry('A') + self.part_retry('B') + self.part_retry('A'))
        return main, alt, side + self.table()

HEADER = open(os.path.join(os.path.dirname(os.path.abspath(__file__)), 'header.txt')).read()

def generate(cfg):
    import emit
    emit.MERGE = cfg.merge
    import sched
    sched.BURST = cfg.burst; sched.HOLD = cfg.hold
    g = G(cfg)
    main, alt, side = g.build()
    body = main + alt + side
    txt = HEADER
    if cfg.extra_empty:
        txt += '; @launch kernel=%s grid=(256,1,1) block=(256,1,1) lds=163840\n; @launch kernel=empty_kernel grid=(256,1,1) block=(256,1,1) lds=0\n' % KNAME
    else:
        txt += '; @launch grid=(256,1,1) block=(256,1,1) lds=163840\n'
    txt += '.amdgcn_target "amdgcn-amd-amdhsa--gfx950"\n.text\n.globl %s\n.p2align 8\n.type %s,@function\n%s:\n' % (KNAME, KNAME, KNAME)
    txt += '\n'.join(('' if l.endswith(':') else '    ') + l for l in body) + '\n'
    if cfg.extra_empty:
        txt += '.globl empty_kernel\n.p2align 8\n.type empty_kernel,@function\nempty_kernel:\n    s_endpgm\n'
        txt += '.section .rodata,"a"\n.p2align 6\n.amdhsa_kernel empty_kernel\n  .amdhsa_next_free_vgpr 8\n  .amdhsa_next_free_sgpr 16\n  .amdhsa_accum_offset 8\n  .amdhsa_group_segment_fixed_size 0\n  .amdhsa_kernarg_size 80\n  .amdhsa_user_sgpr_count 2\n  .amdhsa_user_sgpr_kernarg_segment_ptr 1\n  .amdhsa_system_sgpr_workgroup_id_x 1\n.end_amdhsa_kernel\n'
    txt += '.section .rodata,"a"\n.p2align 6\n.amdhsa_kernel %s\n' % KNAME
    txt += '  .amdhsa_next_free_vgpr 512\n  .amdhsa_next_free_sgpr 102\n  .amdhsa_accum_offset 256\n  .amdhsa_group_segment_fixed_size 0\n'
    txt += '  .amdhsa_kernarg_size 80\n  .amdhsa_user_sgpr_count 2\n  .amdhsa_user_sgpr_kernarg_segment_ptr 1\n  .amdhsa_system_sgpr_workgroup_id_x 1\n.end_amdhsa_kernel\n'
    import subprocess, tempfile, re
    d = tempfile.mkdtemp()
    open(d + '/a.s', 'w').write(txt.replace('CODE_SPAN', '0x5000'))
    r = subprocess.run(['clang', '-x', 'assembler', '-target', 'amdgcn-amd-amdhsa', '-mcpu=gfx950', '-c', d + '/a.s', '-o', d + '/a.o'], capture_output=True, text=True)
    if r.returncode: raise Exception(r.stderr[:3000])
    r = subprocess.run(['llvm-readelf', '-S', d + '/a.o'], capture_output=True, text=True).stdout
    size = int(re.search(r'\.text\s+PROGBITS\s+\w+\s+\w+\s+(\w+)', r).group(1), 16)
    assert size < 32768 + 64
    sys.stderr.write('code bytes: %d\n' % size)
    return txt.replace('CODE_SPAN', hex(size - 64))

if __name__ == '__main__':
    cfg = Cfg()
    out = sys.argv[1]
    for kv in sys.argv[2:]:
        k, val = kv.split('=', 1); assert hasattr(cfg, k), k; setattr(cfg, k, eval(val))
    open(out, 'w').write(generate(cfg))
```

```python
import os, sys, copy
from emit import Ins, TRANS, vg

SCC_W = ('s_lshl1_', 's_lshl2_', 's_add_', 's_sub_', 's_cmp', 's_and_', 's_or_', 's_xor_', 's_lshl_', 's_lshr_', 's_bfe_', 's_min_', 's_max_', 's_bitcmp', 's_addc', 's_subb', 's_not', 's_andn2')
SCC_R = ('s_cselect', 's_cbranch_scc', 's_addc', 's_subb')
DSBUSY = {'ds_read_b128': 16, 'ds_read_b64_tr_b16': 8, 'ds_write_b128': 52, 'ds_write_b64': 24, 'ds_read_b64': 8}

BURST = 24
HOLD = 12

def cost(i):
    if i.kind == 'pseudo': return 4
    if i.kind == 'label': return 0
    if i.kind == 'mfma': return 8
    if i.kind == 'vm': return 8
    if i.op == 'ds_write_b128': return 20
    if i.op == 'ds_write_b64': return 12
    if i.kind == 'valu' and (i.op.startswith(TRANS) or i.op.startswith('v_permlane')): return 8
    return 4

def lat(p, c, raw, dslat):
    base = cost(p)
    if p.kind == 'mfma':
        if c.kind == 'mfma' and p.w == c.srcc and not (p.w & c.sab): return 4 * p.passes
        if p.w & (c.r | c.w): return 56 if p.passes == 8 else 40
        return base
    if not raw:
        if p.kind == 'vm' and p.wide: return 12
        return base
    if p.kind == 'ds': return dslat
    if p.kind == 'vm': return base
    if p.kind == 'valu':
        if c.kind == 'mfma' or c.op.startswith('v_permlane') or '_dpp' in c.op: return base + 8
        if any(x[0] == 's' for x in p.w & c.r): return base + (20 if c.kind == 'vm' else 8)
        if p.op.startswith(TRANS) or c.op.startswith(('v_readfirstlane', 'v_readlane')): return base + 4
        if p.op.startswith('v_dot') and c.op != p.op: return base + 12
    if p.kind == 'salu' and c.dma: return base + 4
    return base

class Machine:
    def __init__(self, rate=2.35, cap=256, lat=450, lines=None, miss=None, fifo=3):
        self.t = 0; self.valu_end = -100; self.mf_free = 0; self.mf_done = 0; self.ds_free = 0
        self.rate = rate; self.cap = cap; self.lat = lat
        self.win = []; self.enter = []; self.fifo = fifo
        self.busy = 0; self.last_land = 0; self.land = {}; self.regland = {}
        self.lines = lines or {}; self.miss = miss or {}
    def _look(self, d, tag, dflt):
        tag = tag or ''
        return d.get(tag, d.get(tag.rstrip('0123456789'), dflt))
    def accept_time(self, i):
        if len(self.enter) < self.fifo: return 0
        return self.enter[-self.fifo]
    def issue_vm(self, i, e):
        n = self._look(self.lines, i.tag, 32) / 4.0; m = self._look(self.miss, i.tag, 0)
        for w in range(4):
            t = max(e, self.busy)
            out = sum(l for (ld, l) in self.win); k = 0
            while out + n > self.cap and k < len(self.win):
                t = max(t, self.win[k][0]); out -= self.win[k][1]; k += 1
            self.win = self.win[k:]
            self.busy = t + n * self.rate
            self.last_land = max(self.last_land, self.busy + self.lat + m)
            self.win.append((self.last_land, n))
        self.enter.append(t); self.land[i.tag] = self.last_land
        for x in i.w: self.regland[x] = self.last_land
    def run(self, lines):
        for l in lines:
            i = Ins(*l) if isinstance(l, tuple) else Ins(l)
            e = self.t
            if i.kind == 'mfma': e = max(e, self.mf_free); self.mf_free = e + 4 * i.passes; self.mf_done = self.mf_free + 16
            if i.kind in ('vm', 'ds'): e = max(e, self.valu_end + 8)
            if i.kind == 'valu': self.valu_end = e + cost(i)
            if i.kind == 'vm': e = max(e, self.accept_time(i)); self.issue_vm(i, e)
            if i.op == '@waitvm': e = max([e] + [self.land.get(t, 0) for t in i.text.split()[1:]])
            if i.op in ('@waitvm_all', '@wait_all'): e = max(e, self.last_land)
            if i.op in ('@waitlgkm_all', '@wait_all'): e += 60
            self.t = int(e) + cost(i)
        return lines

def schedule(M, lines, dslat=100, release=None, verbose=False, boost=None, strict=(), lowds=(), tight=False, vmlow=False):
    boost = boost or {}; release = release or {}
    ins = [Ins(*l) if isinstance(l, tuple) else Ins(l) for l in lines]
    n = len(ins); t0 = M.t
    R = []; W = []
    for i in ins:
        assert i.kind != 'label', i.text
        r = set(i.r); w = set(i.w)
        if i.op.startswith(SCC_W): w.add(('s', 'scc'))
        if i.op.startswith(SCC_R): r.add(('s', 'scc'))
        if i.kind in ('valu', 'mfma', 'vm', 'ds'): r.add(('s', 'exec'))
        R.append(r); W.append(w)
    preds = [dict() for _ in range(n)]
    lastw = {}; readers = {}
    last_vm = None; last_dsw = None; ds_since = []; fence = None; mem_since = []
    for k, i in enumerate(ins):
        def dep(p, l):
            if p is not None and p != k: preds[k][p] = max(preds[k].get(p, 0), l)
        for x in R[k]:
            if x in lastw: dep(lastw[x], lat(ins[lastw[x]], i, True, dslat))
        for x in W[k]:
            if x in lastw: dep(lastw[x], lat(ins[lastw[x]], i, False, dslat))
            for p in readers.get(x, []):
                l = cost(ins[p])
                if ins[p].kind == 'mfma' and x in ins[p].srcc and i.kind == 'valu': l = 36
                if ins[p].kind == 'vm' and ins[p].wide and x in ins[p].data: l = 12
                dep(p, l)
        isf = i.kind in ('pseudo', 'ctl') or (i.kind == 'smem' and i.tag != 'nowait')
        if i.tag == 'nowait': dep(k - 1, 8)
        if isf:
            keep = []
            named = i.text.split()[1:]
            for p in mem_since:
                q = ins[p]
                if q.kind == 'vm' and not (i.op == '@waitvm' and q.tag in named) and (q.tag or '').rstrip('0123456789') not in strict and i.op not in ('@waitvm_all', '@wait_all'): keep.append(p)
                elif i.op == '@waitlgkm' and q.kind == 'ds': dep(p, dslat if q.tag in named else 4)
                else: dep(p, cost(q))
            dep(fence, 4)
            if i.op.startswith(('s_cbranch', 's_branch')) or i.kind == 'smem':
                for p in range(k): dep(p, cost(ins[p]))
            fence = k; mem_since = keep
        elif i.kind in ('vm', 'ds'):
            dep(fence, 4); mem_since.append(k)
            if i.kind == 'vm': dep(last_vm, 8); last_vm = k
            else:
                if i.op.startswith('ds_read'): dep(last_dsw, 4); ds_since.append(k)
                else:
                    for p in ds_since: dep(p, 4)
                    dep(last_dsw, DSBUSY.get(i.op, 8)); last_dsw = k; ds_since = []
        for x in R[k]: readers.setdefault(x, []).append(k)
        for x in W[k]: lastw[x] = k; readers[x] = []
    hard = [k for k, i in enumerate(ins) if i.op.startswith(('s_cbranch', 's_branch')) or (i.kind == 'smem' and i.tag != 'nowait')]
    for h in hard:
        for k in range(h + 1, n): preds[k][h] = max(preds[k].get(h, 0), 4)
    succs = [[] for _ in range(n)]
    for k in range(n):
        for p, l in preds[k].items(): succs[p].append((k, l))
    prio = [0] * n
    for k in reversed(range(n)):
        prio[k] = cost(ins[k]) + max([l + prio[s] - cost(ins[k]) for s, l in succs[k]] + [0])
        b = boost.get(ins[k].tag, 0)
        prio[k] = max(prio[k], b)
        if ins[k].tag == 'nowait': prio[k] = 1; NW = k
    feeds = [i.kind == 'vm' for i in ins]
    for k in reversed(range(n)):
        if ins[k].kind in ('salu', 'valu') and any(feeds[q] and (W[k] & R[q]) - {('s', 'scc')} for q, l in succs[k]) and not ins[k].op.startswith('v_cvt'): feeds[k] = True
    rel = [0] * n
    for key, t in release.items():
        if isinstance(key, int): rel[key] = t0 + t
        else:
            for k, i in enumerate(ins):
                if i.text.startswith(key): rel[k] = t0 + t
    t = t0; done = [None] * n; npred = [len(p) for p in preds]
    ready = [k for k in range(n) if npred[k] == 0]
    order = []; waited = set()
    while ready:
        best = None
        nm = [max([done[p] + l for p, l in preds[q].items()] + [M.mf_free]) - (4 if any(ins[p].kind == 'ds' and p not in waited for p in preds[q]) else 0) for q in ready if ins[q].kind == 'mfma']
        nm = min(nm) if nm else None
        for k in ready:
            i = ins[k]
            e = max([done[p] + l for p, l in preds[k].items()] + [rel[k], t])
            if i.kind == 'mfma': e = max(e, M.mf_free)
            if i.op.startswith('v_pk_'): e = max(e, M.mf_done)
            if i.kind == 'vm': e = max(e, M.accept_time(i))
            if i.kind == 'ds': e = max(e, M.ds_free - BURST)
            if i.op == '@waitvm': e = max([e] + [M.land.get(x, 0) for x in i.text.split()[1:]])
            if i.op in ('@waitvm_all', '@wait_all'): e = max(e, M.last_land)
            for x in (i.r | (i.w if i.kind != 'vm' else set())):
                if x in M.regland: e = max(e, M.regland[x])
            e = int(e)
            st = e - t
            if i.kind in ('vm', 'ds') and e < M.valu_end + 8:
                soon = any(ins[q].kind == 'mfma' and max([done[p] + l for p, l in preds[q].items()] + [M.mf_free]) <= t + 40 for q in ready)
                e = M.valu_end + 8
                if soon or id(lines[k]) in lowds: st = e - t
            elif i.kind == 'ds' and st <= HOLD and id(lines[k]) not in lowds: st = 0
            if tight and nm is not None and i.kind != 'mfma' and e + cost(i) > max(nm, t) and nm <= t + 8: st = 1000
            key = (st > 0 and st, -prio[k] - (200000 if prio[k] >= 30000 else 100000 if i.kind == 'mfma' or i.tag == 'nowait' else (40000 if vmlow else 60000) if feeds[k] else 50000 if (i.kind in ('ds', 'pseudo', 'ctl') and id(lines[k]) not in lowds) else 0), k)
            if best is None or key < best[0]: best = (key, k, e)
        _, k, e = best
        i = ins[k]; done[k] = e; t = e + cost(i)
        if i.kind == 'mfma':
            M.mf_free = e + 4 * i.passes; M.mf_done = M.mf_free + 16
            if any(ins[p].kind == 'ds' and p not in waited for p in preds[k]): t += 4; waited.update(preds[k])
        if i.op.startswith('v_pk_'): M.mf_free = max(M.mf_free, t)
        if i.kind == 'valu': M.valu_end = t
        if i.kind == 'vm': M.issue_vm(i, e)
        if i.kind == 'ds': M.ds_free = max(M.ds_free, e) + DSBUSY.get(i.op, 8)
        order.append(k); ready.remove(k)
        for s, l in succs[k]:
            npred[s] -= 1
            if npred[s] == 0: ready.append(s)
    assert len(order) == n
    M.t = t
    if verbose and os.environ.get('DUMP') == verbose:
        pt = t0
        for k in order:
            sys.stderr.write('%5d %s %s\n' % (done[k], '<<stall %d' % (done[k] - pt) if done[k] > pt else '', ins[k].text)); pt = done[k] + cost(ins[k])
    if verbose:
        sys.stderr.write('sched %s: %d instrs, %d -> %d (%d cycles), issue sum %d\n' % (verbose, n, t0, t, t - t0, sum(cost(i) for i in ins)))
    M.times = [done[k] for k in order] + [t]
    return [lines[k] for k in order]
```

```python
import sys, os
from emit import finalize, interleave
from sched import schedule, Machine
import copy

KNAME = 'concat_heads__linear_attn_block__linear_kernel_hedgehog__prompt_kernel'

class Cfg:
    stamps = False; lite = False; fine = None; marks = None; leak = None; tfix = 0; extra_empty = False; force_global = False; verbose = False
    rotmap = None; tswap = 1; pref_slots = 2
    xfl = ''; wfl = ''; wofl = ''; outfl = 'sc1'; prefl = 'sc1'; tfl = ''
    touch_o = False
    wv_bar = (1, 2, 4, 7); hi2 = 6000; q_tm = True
    rel_part = 1600; rel_nonce = 0
    wo_before = 2; wo_mid = 2; wo_imp = 4; wo_g3 = 1; tab_late = True; q_tight = False; p2_tight = False; wo_early = 2; late0 = 6; pre_q = False; ws_base = 0
    stages = (3, 5, 7, 11, 15); g3_every = 2; o_first = 8
    dslat = 130; merge = 24; burst = 24; hold = 12
    rate = 2.2; cap = 256; lat = 400; fifo = 4; wlines = 90; cold = 900; pmiss = 900; smiss = 1000

WS_XCC, WS_FLAG, WS_PART, WS_O, WS_STAMP = 4096, 8192, 65536, 2 << 20, 16 << 20
WS_BYTES = 32 << 20
L_WK, L_WV, L_MISC, L_WQ, L_WO, L_SCR, L_OT = 98304, 126976, 155648, 0, 32768, 32768, 65536
OOB = 0x40000000
sAX, sAW, sAWO, sBX, sBW, sPHI, sBWO, sOUT, sDBG, sWSP = 4, 6, 8, 10, 12, 14, 16, 18, 20, 22
SX, SW, SWO, SPHI, SWS, SOUT = 24, 28, 32, 36, 40, 44
sBR, sRB, sH, sW, sGID, sSLOT, sT0, sT1, sT2, sXCC = 48, 49, 50, 51, 52, 53, 54, 55, 56, 57
sN0, sN1 = 58, 59
sHI, sE28 = 60, 62
sXO, sWO_ = 64, 72
sSPIN, sFAR = 71, 72
sM0X, sM0W, sSH, sCB, sRQ, sPB = 80, 81, 82, 83, 84, 85
sA, sB_, sC_, sD_ = 86, 87, 88, 89
sOB1, sWOM, sDT, sROT, sXB, sWB, sOBX, sFLG, sT3, sREC, sRECA = 90, 91, 92, 93, 94, 95, 96, 97, 98, 99, 79
sWOS, sTAB = sXCC, SX
sFLW = sSLOT
sSGN = sSH
sM1, sM2 = SPHI, SPHI + 2
SPIN = ['s_add_u32 s71, s71, 1', 's_cmp_gt_u32 s71, 0x100000', 's_cbranch_scc1 L_end']
vL = 1
vXD, vWD, vWRq, vWRk, vZ = 2, 6, 7, 8, 9
vXR, vXR2 = 10, 14
vDUM, vT = 18, 19
vPH, vID, vC, vST, vN = 20, 28, 36, 37, 38
vK, vV, vP, vE, vKV, vT2 = 40, 72, 104, 136, 200, 232
vTAG, vL16 = 248, 249
vWO0, vWOD = 250, 252
vTCH, vTCO, vPRE = 253, 254, 255
vS16, vOW, vOR, vOG = vT2 + 3, vT2 + 4, vT2 + 8, vT2 + 9
vOF = list(range(20, 28)) + list(range(32, 36)) + [254, 255]
aX, aWR = 0, 224

def v(r, n=1): return 'v%d' % r if n == 1 else 'v[%d:%d]' % (r, r + n - 1)
def a(r, n=1): return 'a%d' % r if n == 1 else 'a[%d:%d]' % (r, r + n - 1)
def s(r, n=1): return 's%d' % r if n == 1 else 's[%d:%d]' % (r, r + n - 1)
MF = 'v_mfma_f32_32x32x16_bf16'
def mfma(d, x, y, c): return '%s %s, %s, %s, %s' % (MF, v(d, 16), x, y, v(c, 16) if c is not None else '0')

class G:
    def __init__(self, cfg):
        self.cfg = c = cfg; self.npc = 0
        self.M = Machine(c.rate, c.cap, c.lat, fifo=c.fifo, lines={'wk': c.wlines, 'wv': c.wlines, 'wq': c.wlines, 'phi': 13, 'touch': 100, 'pre': 128, 'nonce': 4, 'side': 4, 'pref': 4, 'tab': 4, 'rec': 8},
                         miss={'x0': c.cold, 'nonce': 500, 'part': c.pmiss, 'rec': c.pmiss, 'pre': 600, 'touch': 400, 'pst': c.smiss, 'side': 500, 'ost': 250})
    def stamp(self, k):
        if self.cfg.leak == k: return ['@waitlgkm_all', 's_memrealtime s[%d:%d]' % (sT0, sT1), '@waitlgkm_all', 's_sub_u32 s3, %s, s100' % s(sT0)]
        if not self.cfg.stamps or (self.cfg.lite and k not in (11, 13)): return []
        return ['@waitlgkm_all', 's_memtime s[%d:%d]' % (sT0, sT1), 's_memrealtime s[100:101]', '@waitlgkm_all', 'v_writelane_b32 %s, %s, %d' % (v(vST), s(sT0), k),
                'v_writelane_b32 %s, s100, %d' % (v(vST), 16 + k)]
    def sched(self, L, name, **kw): return self.fine(schedule(self.M, L, verbose=name if self.cfg.verbose else False, dslat=self.cfg.dslat, **kw), name)
    def glue(self, L): return self.M.run(L)
    def fine(self, L, name):
        if not self.cfg.fine or not name.startswith(self.cfg.fine): return L
        out = []; n = len(L); pos = {(k * n) // 7: k for k in range(7)}
        for i, x in enumerate(L):
            if i in pos: out.append(('s_memtime s[%d:%d]' % (4 + 2 * pos[i], 5 + 2 * pos[i]), 'nowait'))
            out.append(x)
        out.append(('s_memtime s[18:19]', 'nowait'))
        if self.cfg.verbose:
            for i, k in pos.items(): sys.stderr.write('  fine %s %d at %d: %s\n' % (name, k, i, L[i]))
        return out

    def offs(self, i):
        L = ['s_lshl_b32 %s, %s, 7' % (s(sD_), s(sROT)), 's_add_u32 %s, %s, %s' % (s(sXO + i), s(sXB), s(sD_)),
             's_mul_i32 %s, %s, %d' % (s(sD_), s(sROT), 64 * 2688), 's_add_u32 %s, %s, %s' % (s(sWO_ + i), s(sWB), s(sD_))]
        if i < 6: L += ['s_add_u32 %s, %s, 1' % (s(sROT), s(sROT)), 's_cmp_eq_u32 %s, 7' % s(sROT), 's_cselect_b32 %s, 0, %s' % (s(sROT), s(sROT))]
        return L
    def touch(self, what):
        c = self.cfg
        if what == 'o': return [('buffer_load_dword %s, %s, s[%d:%d], 0 offen %s' % (v(vDUM), v(vTCO), SWO, SWO + 3, c.tfl), 'touch')]
        return [('buffer_load_dword %s, %s, s[%d:%d], 0 offen offset:%d %s' % (v(vDUM), v(vTCH), SW, SW + 3, {'q': 0, 'v': 1792}[what], c.tfl), 'touch')]

    def prologue(self):
        c = self.cfg; L = []; A = L.append
        A('s_load_dwordx16 s[4:19], s[0:1], 0')
        A('s_load_dwordx4 s[20:23], s[0:1], 64')
        if c.stamps or c.tfix or c.leak: A('s_memrealtime s[100:101]')
        A('s_cmp_ge_u32 s2, 256'); A('s_cbranch_scc1 L_end')
        A('s_lshr_b32 %s, s2, 3' % s(sSLOT))
        A('s_cmp_lt_u32 %s, %d' % (s(sSLOT), c.pref_slots)); A('s_cselect_b32 %s, CODE_SPAN, 0' % s(sT2))
        A('s_getpc_b64 s[%d:%d]' % (sT0, sT1))
        A('v_lshlrev_b32 %s, 7, v0' % v(vT))
        A('v_min_u32 %s, %s, %s' % (v(vT), s(sT2), v(vT)))
        L.append(('global_load_dword %s, %s, s[%d:%d]' % (v(vDUM), v(vT), sT0, sT1), 'pref'))
        A('v_lshrrev_b32 %s, 6, v0' % v(vT)); A('v_and_b32 %s, 63, v0' % v(vL))
        A('v_readfirstlane_b32 %s, %s' % (s(sW), v(vT)))
        A('s_bfe_u32 %s, s2, 0x10002' % s(sBR))
        A('s_and_b32 %s, s2, 3' % s(sRB)); A('s_lshl_b32 %s, %s, 1' % (s(sRB), s(sRB)))
        A('s_lshr_b32 %s, %s, 4' % (s(sT2), s(sSLOT))); A('s_add_u32 %s, %s, %s' % (s(sRB), s(sRB), s(sT2)))
        A('s_and_b32 %s, %s, 15' % (s(sH), s(sSLOT)))
        A('s_mul_i32 %s, %s, 3' % (s(sT2), s(sT2))); A('s_add_u32 %s, %s, %s' % (s(sROT), s(sH), s(sT2)))
        A('s_mul_i32 %s, %s, 37' % (s(sB_), s(sROT))); A('s_lshr_b32 %s, %s, 8' % (s(sB_), s(sB_)))
        A('s_mul_i32 %s, %s, 7' % (s(sB_), s(sB_))); A('s_sub_u32 %s, %s, %s' % (s(sROT), s(sROT), s(sB_)))
        if c.rotmap:
            w = sum(x << (4 * i) for i, x in enumerate(c.rotmap))
            A('s_lshl_b32 %s, %s, 2' % (s(sROT), s(sROT))); A('s_lshr_b32 %s, 0x%x, %s' % (s(sROT), w, s(sROT))); A('s_and_b32 %s, %s, 7' % (s(sROT), s(sROT)))
        A('s_and_b32 %s, %s, %d' % (s(sA), s(sH), c.tswap))
        A('s_lshl_b32 %s, %s, 2' % (s(sB_), s(sRB))); A('s_add_u32 %s, %s, %s' % (s(sB_), s(sB_), s(sW)))
        A('s_lshl1_add_u32 %s, %s, %s' % (s(sB_), s(sB_), s(sA))); A('s_mul_i32 %s, %s, 28672' % (s(sXB), s(sB_)))
        A('s_lshl_b32 %s, %s, 12' % (s(sM0X), s(sW))); A('s_lshl_b32 %s, %s, 10' % (s(sM0W), s(sW)))
        A('s_mul_i32 %s, %s, -57344' % (s(sDT), s(sA))); A('s_add_u32 %s, %s, 28672' % (s(sDT), s(sDT)))
        A('s_cmp_eq_u32 %s, 15' % s(sH)); A('s_cselect_b32 %s, 8, 0' % s(sSH))
        A('s_mul_i32 %s, %s, 56' % (s(sC_), s(sH))); A('s_sub_u32 %s, %s, %s' % (s(sC_), s(sC_), s(sSH)))
        A('s_mul_i32 %s, %s, %d' % (s(sD_), s(sW), 16 * 2688)); A('s_add_u32 %s, %s, %s' % (s(sWB), s(sC_), s(sD_)))
        L += self.offs(0) + self.offs(1)
        t0, t1, t2 = vT2, vT2 + 1, vT2 + 2
        A('v_lshrrev_b32 %s, 3, %s' % (v(t0), v(vL))); A('v_mul_u32_u24 %s, 896, %s' % (v(t0), v(t0)))
        A('v_lshrrev_b32 %s, 4, %s' % (v(t1), v(vL))); A('v_and_b32 %s, 7, %s' % (v(t2), v(vL)))
        A('v_xor_b32 %s, %s, %s' % (v(t2), v(t1), v(t2)))
        A('v_lshl_add_u32 %s, %s, 4, %s' % (v(vXD), v(t2), v(t0)))
        A('v_xor_b32 %s, 4, %s' % (v(t2), v(t2))); A('v_lshl_add_u32 %s, %s, 4, %s' % (v(vXD + 1), v(t2), v(t0)))
        A('v_add_u32 %s, %d, %s' % (v(vXD + 2), 2 * 6144, v(vXD))); A('v_add_u32 %s, %d, %s' % (v(vXD + 3), 3 * 6144, v(vXD + 1)))
        A('v_add_u32 %s, %d, %s' % (v(vXD + 1), 6144, v(vXD + 1)))
        A('v_lshrrev_b32 %s, 2, %s' % (v(t0), v(vL))); A('v_mul_u32_u24 %s, 2688, %s' % (v(t0), v(t0)))
        A('v_and_b32 %s, 3, %s' % (v(t2), v(vL))); A('v_lshl_add_u32 %s, %s, 4, %s' % (v(vWD), v(t2), v(t0)))
        for srd, n in ((SX, 1835008), (SW, 1204224), (SWO, 401408), (SWS, WS_BYTES), (SOUT, 3670016)):
            A('s_mov_b32 %s, %d' % (s(srd + 2), n)); A('s_mov_b32 %s, 0x20000' % s(srd + 3))
        A('s_cmp_eq_u32 %s, 0' % s(sBR))
        A('@waitlgkm_all')
        if c.leak == 13: L += self.stamp(13); A('s_cmp_eq_u32 %s, 0' % s(sBR))
        if c.stamps: A('s_mov_b32 s3, s100'); L += self.stamp(13); A('s_cmp_eq_u32 %s, 0' % s(sBR))
        for (srd, pa, pb) in ((SX, sAX, sBX), (SW, sAW, sBW), (SWO, sAWO, sBWO)):
            A('s_cselect_b32 %s, %s, %s' % (s(srd), s(pa), s(pb))); A('s_cselect_b32 %s, %s, %s' % (s(srd + 1), s(pa + 1), s(pb + 1)))
        A('s_cselect_b32 %s, 0, 25088' % s(SPHI + 2))
        L += self.dma_x(0) + self.dma_w(0, 1, L_WK, 'wk0') + self.dma_w(1, 1, L_WK, 'wk1')
        A('s_mov_b32 %s, %s' % (s(SPHI), s(sPHI))); A('s_mov_b32 %s, %s' % (s(SPHI + 1), s(sPHI + 1))); A('s_mov_b32 %s, 0x20000' % s(SPHI + 3))
        A('v_lshlrev_b32 %s, 4, %s' % (v(vL16), v(vL)))
        A('s_cmp_ge_u32 %s, 2' % s(sW)); A('s_cselect_b32 %s, 0x%x, %s' % (s(sA), OOB, s(sM0W))); A('v_add_u32 %s, %s, %s' % (v(t0), s(sA), v(vL16)))
        A('s_mul_i32 %s, %s, 1568' % (s(sT2), s(sH))); A('s_add_u32 m0, %s, %d' % (s(sM0W), L_MISC))
        L.append(('buffer_load_dwordx4 %s, s[%d:%d], %s offen lds' % (v(t0), SPHI, SPHI + 3, s(sT2)), 'phi'))
        L += self.dma_x(1)
        if c.ws_base: A('s_add_u32 %s, %s, %d' % (s(sWSP), s(sWSP), c.ws_base)); A('s_addc_u32 %s, %s, 0' % (s(sWSP + 1), s(sWSP + 1)))
        for (srd, p) in ((SWS, sWSP), (SOUT, sOUT)):
            A('s_mov_b32 %s, %s' % (s(srd), s(p))); A('s_mov_b32 %s, %s' % (s(srd + 1), s(p + 1)))
        A('v_mov_b32 %s, 0' % v(vZ))
        A('s_or_b32 %s, s2, %s' % (s(sT2), s(sW))); A('s_cmp_eq_u32 %s, 0' % s(sT2)); A('s_cbranch_scc1 L_mknonce')
        A('L_nononce:')
        self.glue(L)
        return L

    def setup(self):
        c = self.cfg; L = []; A = L.append
        t0, t1, t2 = vT2, vT2 + 1, vT2 + 2
        A('s_mov_b32 %s, 0' % s(sSPIN))
        A('s_getreg_b32 %s, hwreg(HW_REG_XCC_ID, 0, 4)' % s(sXCC))
        m, hi, t3, t4 = vT2 + 3, vT2 + 4, vT2 + 5, vT2 + 6
        A('s_mul_i32 %s, %s, 98' % (s(sA), s(sSLOT))); A('s_mul_i32 %s, %s, 25' % (s(sB_), s(sW))); A('s_add_u32 %s, %s, %s' % (s(sA), s(sA), s(sB_)))
        A('v_min_u32 %s, 24, %s' % (v(t0), v(vL))); A('v_add_u32 %s, %s, %s' % (v(t0), s(sA), v(t0))); A('v_min_u32 %s, 3135, %s' % (v(t0), v(t0)))
        A('v_lshlrev_b32 %s, 7, %s' % (v(vTCO), v(t0)))
        A('v_and_b32 %s, 31, %s' % (v(m), v(vL))); A('v_lshrrev_b32 %s, 5, %s' % (v(hi), v(vL)))
        A('v_bfe_u32 %s, %s, 1, 3' % (v(t1), v(m))); A('v_xor_b32 %s, %s, %s' % (v(t1), v(t1), v(hi)))
        A('v_lshl_add_u32 %s, %s, 7, %s' % (v(t2), v(m), s(sM0X)))
        for ks in range(4):
            A('v_xor_b32 %s, %d, %s' % (v(t3), 2 * ks, v(t1))); A('v_lshl_add_u32 %s, %s, 4, %s' % (v(vXR + ks), v(t3), v(t2)))
            A('v_add_u32 %s, 0x10000, %s' % (v(vXR2 + ks), v(vXR + ks)))
        A('v_bfe_u32 %s, %s, 2, 2' % (v(t1), v(vL))); A('v_lshlrev_b32 %s, 6, %s' % (v(t2), v(t1)))
        A('v_lshl_add_u32 %s, %s, 9, %s' % (v(t2), v(hi), v(t2)))
        A('v_bfe_u32 %s, %s, 4, 1' % (v(t3), v(vL))); A('v_and_b32 %s, 3, %s' % (v(t4), v(vL)))
        A('v_lshlrev_b32 %s, 3, %s' % (v(t4), v(t4))); A('v_lshl_add_u32 %s, %s, 5, %s' % (v(t4), v(t3), v(t4)))
        A('v_add3_u32 %s, %s, %s, %s' % (v(vWRq), v(t2), v(t4), s(sSH)))
        A('v_add_u32 %s, %d, %s' % (v(vWRk), L_WK, v(vWRq)))
        A('v_xor_b32 %s, %s, %s' % (v(t3), s(sW), v(t1))); A('v_lshl_add_u32 %s, %s, 6, %s' % (v(t4), v(t3), v(t4)))
        A('v_lshl_add_u32 %s, %s, 8, %s' % (v(t4), v(t1), v(t4))); A('v_lshrrev_b32 %s, 4, %s' % (v(t3), v(vL))); A('v_lshl_add_u32 %s, %s, 11, %s' % (v(t4), v(t3), v(t4)))
        A('v_add_u32 %s, %d, %s' % (v(vWO0), L_WO, v(t4)))
        A('s_and_b32 %s, %s, 1' % (s(sA), s(sW))); A('s_lshl_b32 %s, %s, 4' % (s(sA), s(sA))); A('v_xor_b32 %s, %s, %s' % (v(t4), s(sA), v(m)))
        A('s_bitcmp1_b32 %s, 1' % s(sW)); A('s_cselect_b32 %s, 0x80008000, 0' % s(sSGN))
        A('v_lshrrev_b32 %s, 3, %s' % (v(t0), v(t4))); A('v_and_b32 %s, 3, %s' % (v(t1), v(t4)))
        A('v_lshl_add_u32 %s, %s, 2, %s' % (v(t0), v(t0), v(t1)))
        A('v_lshrrev_b32 %s, 4, %s' % (v(t1), v(t4))); A('v_sub_u32 %s, %s, %s' % (v(t0), v(t0), v(t1)))
        A('v_bfe_u32 %s, %s, 2, 1' % (v(t1), v(m))); A('v_mad_u32_u24 %s, %s, 14, %s' % (v(t0), v(t1), v(t0)))
        A('v_and_b32 %s, 11, %s' % (v(t1), v(m))); A('v_cmp_eq_u32 vcc, 11, %s' % v(t1))
        A('v_mov_b32 %s, %d' % (v(t2), L_MISC + 2048))
        A('v_mul_u32_u24 %s, 224, %s' % (v(t3), v(hi))); A('v_lshl_add_u32 %s, %s, 1, %s' % (v(t3), v(t0), v(t3))); A('v_add_u32 %s, %d, %s' % (v(t3), L_MISC, v(t3)))
        A('v_cndmask_b32_e64 %s, %s, %s, vcc' % (v(vT2 + 12), v(t3), v(t2)))
        A('v_cndmask_b32_e64 %s, %s, 63, vcc' % (v(vT2 + 11), v(t0)))
        A('v_cmp_lt_u32_e64 s[%d:%d], 31, %s' % (sHI, sHI + 1, v(vL)))
        A('v_cmp_eq_u32_e64 s[%d:%d], 28, %s' % (sE28, sE28 + 1, v(m)))
        A('v_cndmask_b32_e64 %s, %s, %s, s[%d:%d]' % (v(vT2 + 13), v(vT2 + 12), v(t2), sHI, sHI + 1))
        return L

    def mknonce(self):
        L = ['L_mknonce:', '@assume_idle']; A = L.append
        A('s_load_dwordx2 s[%d:%d], s[%d:%d], 0' % (sT0, sT1, sWSP, sWSP + 1))
        A('@waitlgkm_all')
        A('s_add_u32 %s, %s, 0x9e3679b8' % (s(sT0), s(sT0))); A('s_add_u32 %s, %s, 0x85eaca6a' % (s(sT1), s(sT1)))
        for r in (sT0, sT1):
            A('s_or_b32 %s, %s, 0x00010001' % (s(r), s(r))); A('s_and_b32 %s, %s, 0xbfffbfff' % (s(r), s(r)))
        A('v_mov_b32 %s, %s' % (v(vN), s(sT0))); A('v_mov_b32 %s, %s' % (v(vN + 1), s(sT1)))
        A('s_mov_b64 exec, 1')
        A('global_store_dwordx2 %s, %s, s[%d:%d] sc1' % (v(vZ), v(vN, 2), sDBG, sDBG + 1))
        A('global_store_dwordx2 %s, %s, s[%d:%d] sc1' % (v(vZ), v(vN, 2), sWSP, sWSP + 1))
        A('s_mov_b64 exec, -1'); A('s_branch L_nononce')
        return L

    def setup2(self):
        m, hi, fp, ofs, ofs2 = vT2 + 3, vT2 + 4, vT2 + 11, vT2 + 12, vT2 + 13
        P0 = []
        for t in range(2):
            for j in range(8):
                d = 16 * t + 8 * (j >> 2) + (j & 3)
                P0.append('ds_read_u16 %s, %s offset:%d' % (v(vP + 8 * t + j), v(ofs2 if (t == 1 and j >= 4) else ofs), d * 56))
        def selector(dst, tgt):
            R = []
            x, y, z = vT2 + 8, vT2 + 9, vT2 + 10
            R.append('v_lshrrev_b32 %s, 3, %s' % (v(x), v(tgt))); R.append('v_bfe_u32 %s, %s, 1, 1' % (v(y), v(tgt)))
            R.append('v_lshl_add_u32 %s, %s, 1, %s' % (v(x), v(x), v(y)))
            R.append('v_and_b32 %s, 1, %s' % (v(y), v(tgt))); R.append('v_lshlrev_b32 %s, 4, %s' % (v(y), v(y)))
            R.append('v_mov_b32 %s, 0x3f80' % v(z)); R.append('v_lshlrev_b32 %s, %s, %s' % (v(z), v(y), v(z)))
            R.append('v_bfe_u32 %s, %s, 2, 1' % (v(y), v(tgt))); R.append('v_cmp_eq_u32 vcc, %s, %s' % (v(y), v(hi)))
            R.append('v_cndmask_b32_e64 %s, 15, %s, vcc' % (v(x), v(x)))
            mk = [sN0, sHI + 0, sPB - 1, sN0]
            for i in range(8):
                r = (sN0, sT0)[i & 1]
                R.append('v_cmp_eq_u32_e64 s[%d:%d], %d, %s' % (r, r + 1, i, v(x)))
                R.append('v_cndmask_b32_e64 %s, 0, %s, s[%d:%d]' % (v(dst + i), v(z), r, r + 1))
            return R
        P1 = selector(vID, m)
        P2 = selector(vE, fp)
        P2 += ['v_mov_b32 %s, 0x3fb8aa3b' % v(vC),
               'v_bfe_u32 %s, %s, 3, 2' % (v(vT2 + 8), v(vL)), 'v_and_b32 %s, 7, %s' % (v(vPRE), v(vL)), 'v_lshlrev_b32 %s, 7, %s' % (v(vPRE), v(vPRE)), 'v_lshl_add_u32 %s, %s, 14, %s' % (v(vPRE), v(vT2 + 8), v(vPRE)),
               's_lshl_b32 %s, %s, 3' % (s(sGID), s(sBR)), 's_add_u32 %s, %s, %s' % (s(sGID), s(sGID), s(sRB)),
               's_and_b32 %s, %s, 3' % (s(sCB), s(sH)), 's_lshr_b32 %s, %s, 2' % (s(sRQ), s(sH)),
               's_lshl_b32 %s, %s, 4' % (s(sT3), s(sGID)), 's_add_u32 %s, %s, %s' % (s(sPB), s(sT3), s(sH)),
               's_lshl2_add_u32 %s, %s, %s' % (s(sT3), s(sGID), s(sW)), 's_lshl_b32 %s, %s, 6' % (s(sT3), s(sT3)), 's_add_u32 %s, %s, %s' % (s(sT3), s(sT3), s(sH)), 's_lshl_b32 %s, %s, 10' % (s(sOBX), s(sT3)),
               's_add_u32 %s, %s, %d' % (s(sOBX), s(sOBX), WS_O),
               's_and_b32 %s, %s, %d' % (s(sOB1), s(sH), self.cfg.tswap), 's_lshl_b32 %s, %s, 15' % (s(sOB1), s(sOB1)), 's_add_u32 %s, %s, %s' % (s(sOB1), s(sOB1), s(sOBX)),
               's_lshl_b32 %s, %s, 9' % (s(sT3), s(sGID)), 's_add_u32 %s, %s, %d' % (s(sT3), s(sT3), WS_FLAG),
               's_lshl_b32 %s, %s, 7' % (s(sFLW), s(sW)), 's_add_u32 %s, %s, %s' % (s(sFLW), s(sFLW), s(sT3)),
               's_lshl_b32 %s, %s, 7' % (s(sFLG), s(sRQ)), 's_add_u32 %s, %s, %s' % (s(sFLG), s(sFLG), s(sT3))]
        A = P2.append; t0, t1, t2 = vT2 + 8, vT2 + 9, vT2 + 10
        A('v_lshrrev_b32 %s, 4, %s' % (v(t0), v(vL))); A('v_bfe_u32 %s, %s, 2, 2' % (v(t1), v(vL))); A('v_xor_b32 %s, %s, %s' % (v(t1), v(t1), v(t0)))
        A('v_mul_u32_u24 %s, 896, %s' % (v(t0), v(t0))); A('v_lshl_add_u32 %s, %s, 6, %s' % (v(t0), v(t1), v(t0)))
        A('v_and_b32 %s, 3, %s' % (v(t2), v(vL))); A('v_lshl_add_u32 %s, %s, 4, %s' % (v(t0), v(t2), v(t0)))
        A('s_cmp_eq_u32 %s, 3' % s(sCB)); A('s_cselect_b32 %s, 1, 3' % s(sT3))
        A('v_cmp_lt_u32 vcc, %s, %s' % (s(sT3), v(t1))); A('v_mov_b32 %s, 0x%x' % (v(t2), OOB))
        A('v_cndmask_b32_e64 %s, %s, %s, vcc' % (v(vWOD), v(t0), v(t2)))
        A('s_lshl_b32 %s, %s, 3' % (s(sRECA), s(sPB))); A('s_add_u32 %s, %s, %d' % (s(sRECA), s(sRECA), WS_XCC))
        A('v_cmp_eq_u32 vcc, 0, %s' % v(vL)); A('v_and_b32 %s, 1, %s' % (v(t0), v(vL))); A('v_and_b32 %s, 2, %s' % (v(t1), v(vL)))
        A('v_cndmask_b32_e64 %s, %s, 0, vcc' % (v(vT), v(t2)))
        A('v_cmp_ne_u32_e64 s[%d:%d], 0, %s' % (sM1, sM1 + 1, v(t0))); A('v_cmp_ne_u32_e64 s[%d:%d], 0, %s' % (sM2, sM2 + 1, v(t1)))
        return P0, P1, P2

    def dma_x(self, i):
        L = ['s_add_u32 m0, %s, %d' % (s(sM0X), (i % 6) * 16384)]
        if i >= 7: L.append('s_add_u32 %s, %s, %s' % (s(sXO + i - 7), s(sXO + i - 7), s(sDT)))
        for j in range(4):
            L.append(('buffer_load_dwordx4 %s, s[%d:%d], %s offen offset:%d %s lds' % (v(vXD + j), SX, SX + 3, s(sXO + i % 7), 1024 * j, self.cfg.xfl), 'x%d' % i))
        return L
    def dma_w(self, i, part, base, tag):
        return ['s_add_u32 m0, %s, %d' % (s(sM0W), base + i * 4096),
                's_add_u32 %s, %s, %d' % (s(sT2), s(sWO_ + i), part * 896),
                ('buffer_load_dwordx4 %s, s[%d:%d], %s offen %s lds' % (v(vWD), SW, SW + 3, s(sT2), self.cfg.wfl), tag)]
    def xfrag(self, i, ks, tile): return aX + ((i * 4 + ks) * 2 + tile) * 4
    def wread(self, slot, basev, off):
        r = aWR + 4 * (slot % 8)
        return ['ds_read_b64_tr_b16 %s, %s offset:%d' % (a(r + 2 * u, 2), v(basev), off + 256 * u) for u in range(2)]

    def xiter(self, i, extra=()):
        R = []; A = R.append
        ch, tile, sl = i % 7, i // 7, i % 6
        wk = {0: ' wk0 wk1 phi', 2: ' wk2 wk3', 4: ' wk4 wk5 wk6'}.get(i, '')
        A('@waitvm x%d' % i + wk)
        if wk: A('s_barrier')
        if i == 0: R += self.stamp(1)
        for ks in range(4):
            R += self.wread(4 * i + ks, vWRk, ch * 4096 + ks * 1024)
            R.append(('ds_read_b128 %s, %s offset:%d' % (a(self.xfrag(ch, ks, tile), 4), v((vXR2 if sl >= 4 else vXR) + ks), (sl & 3) * 16384), 'xr%d' % i))
        if i + 6 < 14: A('@waitlgkm xr%d' % i); R += self.dma_x(i + 6)
        R += extra
        for ks in range(4):
            R.append((mfma(vK + 16 * tile, a(aWR + 4 * ((4 * i + ks) % 8), 4), a(self.xfrag(ch, ks, tile), 4), None if (ch == 0 and ks == 0) else vK + 16 * tile), 'kk'))
        return R
    def part1(self):
        P = self.setup2()
        R = []
        for i in range(2, 7): R += self.offs(i)
        W = lambda i: self.dma_w(i, 1, L_WK, 'wk%d' % i)
        R += W(2) + W(3) + self.dma_x(2) + W(4) + self.dma_x(3) + W(5) + W(6) + self.dma_x(4) + self.dma_x(5)
        R += self.setup() + P[1] + P[2]
        pk = []
        for u in range(8): pk += ['v_lshl_or_b32 %s, %s, 16, %s' % (v(vPH + u), v(vP + 2 * u + 1), v(vP + 2 * u)), 'v_xor_b32 %s, %s, %s' % (v(vPH + u), s(sSGN), v(vPH + u))]
        for i in range(7): R += self.xiter(i, P[0] + pk if i == 1 else ())
        return self.sched(R, 'part1')

    def gemm(self, acc, basev, off, transposed, first_slot, hooks=None, tiles=(0, 1), lead=False):
        L = []; hooks = hooks or {}
        for k in range(28):
            L += hooks.get(k, [])
            w = a(aWR + 4 * ((first_slot + k) % 8), 4)
            L += self.wread(first_slot + k, basev, off + k * 1024)
            for tile in tiles:
                x = a(self.xfrag(k // 4, k % 4, tile), 4)
                L.append((mfma(acc + 16 * tile, w if transposed else x, x if transposed else w, None if k == 0 else acc + 16 * tile), 'lead' if (lead and tile == 0) else None))
        return L

    def pack(self, r, n=8): return ['v_cvt_pk_bf16_f32 %s, %s, %s' % (v(r + u), v(r + 2 * u), v(r + 2 * u + 1)) for u in range(n)]
    def zero_hi_pads(self, r): return ['v_cndmask_b32_e64 %s, %s, 0, s[%d:%d]' % (v(r + u), v(r + u), sHI, sHI + 1) for u in (6, 7)]

    def softmax(self, p, ep, en, tmp, pk):
        L = []; A = L.append
        Z, T, S1, S2 = tmp, tmp + 2, tmp + 4, tmp + 6
        VAL = [0, 1, 2, 3, 4, 5, 6, 8, 9, 10, 11, 12, 13, 14]
        if pk:
            for r in (ep + 7, ep + 15, en + 7, en + 15): A('v_mov_b32 %s, 0' % v(r))
        for (d, sg) in ((Z, ''), (T, '-')):
            A('v_max3_f32 %s, %s%s, %s%s, %s%s' % (v(d), sg, v(p), sg, v(p + 1), sg, v(p + 2)))
            A('v_max3_f32 %s, %s%s, %s%s, %s%s' % (v(d + 1), sg, v(p + 8), sg, v(p + 9), sg, v(p + 10)))
            for (x, y) in ((3, 4), (5, 6)): A('v_max3_f32 %s, %s, %s%s, %s%s' % (v(d), v(d), sg, v(p + x), sg, v(p + y)))
            for (x, y) in ((11, 12), (13, 14)): A('v_max3_f32 %s, %s, %s%s, %s%s' % (v(d + 1), v(d + 1), sg, v(p + x), sg, v(p + y)))
            A('v_max_f32 %s, %s, %s' % (v(d), v(d), v(d + 1)))
        A('v_permlane32_swap_b32 %s, %s' % (v(Z), v(T))); A('v_max_f32 %s, %s, %s' % (v(Z), v(Z), v(T)))
        A('v_mul_f32 %s, %s, %s' % (v(Z), v(vC), v(Z))); A('v_mov_b32 %s, %s' % (v(T), v(Z)))
        A('v_permlane32_swap_b32 %s, %s' % (v(Z), v(T)))
        for (e, z, ng) in ((ep, Z, 0), (en, T, 1)):
            for u in VAL:
                if pk and u not in (6, 14):
                    if u & 1 == 0: A('v_pk_fma_f32 %s, %s, %s, %s op_sel_hi:[1,0,0] neg_lo:[%d,0,1] neg_hi:[%d,0,1]' % (v(e + u, 2), v(p + u, 2), v(vC, 2), v(z, 2), ng, ng))
                else: A('v_fma_f32 %s, %s%s, %s, -%s' % (v(e + u), '-' if ng else '', v(p + u), v(vC), v(z)))
                A('v_exp_f32 %s, %s' % (v(e + u), v(e + u)))
        for (e, S, z) in ((ep, S1, Z), (en, S2, T)):
            if pk:
                A('v_pk_add_f32 %s, %s, %s' % (v(S, 2), v(e, 2), v(e + 2, 2)))
                for u in (4, 6, 8, 10, 12, 14): A('v_pk_add_f32 %s, %s, %s' % (v(S, 2), v(S, 2), v(e + u, 2)))
            else:
                A('v_add_f32 %s, %s, %s' % (v(S), v(e), v(e + 1))); A('v_add_f32 %s, %s, %s' % (v(S + 1), v(e + 8), v(e + 9)))
                for u in range(2, 7):
                    A('v_add_f32 %s, %s, %s' % (v(S), v(S), v(e + u))); A('v_add_f32 %s, %s, %s' % (v(S + 1), v(S + 1), v(e + 8 + u)))
            A('v_add_f32 %s, %s, %s' % (v(S), v(S), v(S + 1)))
        A('v_permlane32_swap_b32 %s, %s' % (v(S1), v(S2))); A('v_add_f32 %s, %s, %s' % (v(S1), v(S1), v(S2)))
        A('v_rcp_f32 %s, %s' % (v(S1), v(S1))); A('v_mov_b32 %s, %s' % (v(S2), v(S1)))
        A('v_permlane32_swap_b32 %s, %s' % (v(S1), v(S2)))
        for (e, z) in ((ep, S1), (en, S2)):
            for u in range(8):
                if pk: A('v_pk_mul_f32 %s, %s, %s op_sel_hi:[1,0]' % (v(e + 2 * u, 2), v(e + 2 * u, 2), v(z, 2)))
                else:
                    for k in range(1 if u in (3, 7) else 2): A('v_mul_f32 %s, %s, %s' % (v(e + 2 * u + k), v(e + 2 * u + k), v(z)))
                A('v_cvt_pk_bf16_f32 %s, %s, %s' % (v(e + u), v(e + 2 * u), '0' if (u in (3, 7) and not pk) else v(e + 2 * u + 1)))
        return L

    def elu1(self, p, e, pads, pk):
        L = []; A = L.append
        for u in range(0, 16, 2):
            n = 1 if (pads and u in (6, 14)) else 2
            if pk and n == 2: A('v_pk_mul_f32 %s, %s, %s op_sel_hi:[1,0]' % (v(e + u, 2), v(p + u, 2), v(vC, 2)))
            for k in range(n):
                if not (pk and n == 2): A('v_mul_f32 %s, %s, %s' % (v(e + u + k), v(vC), v(p + u + k)))
                A('v_exp_f32_e64 %s, %s clamp' % (v(e + u + k), v(e + u + k)))
                A('v_max_f32 %s, 0x358637bd, %s' % (v(p + u + k), v(p + u + k)))
                if not (pk and n == 2): A('v_add_f32 %s, %s, %s' % (v(e + u + k), v(e + u + k), v(p + u + k)))
            if pk and n == 2: A('v_pk_add_f32 %s, %s, %s' % (v(e + u, 2), v(e + u, 2), v(p + u, 2)))
            A('v_cvt_pk_bf16_f32 %s, %s, %s' % (v(e + u // 2), v(e + u), v(e + u + 1) if n == 2 else '0'))
        return L

    def nonce_load(self): return [('global_load_dwordx2 %s, %s, s[%d:%d] sc1' % (v(vN, 2), v(vZ), sDBG, sDBG + 1), 'nonce')]
    def use_nonce(self):
        L = []; A = L.append
        t0, t1 = vXR2, vXR2 + 1
        A('v_readfirstlane_b32 %s, %s' % (s(sN0), v(vN))); A('v_readfirstlane_b32 %s, %s' % (s(sN1), v(vN + 1)))
        A('v_cndmask_b32_e64 %s, %s, %s, s[%d:%d]' % (v(t0), v(vN), v(vN + 1), sM2, sM2 + 1))
        A('v_lshlrev_b32 %s, 16, %s' % (v(t1), v(t0))); A('v_and_b32 %s, 0xffff0000, %s' % (v(t0), v(t0)))
        A('v_cndmask_b32_e64 %s, %s, %s, s[%d:%d]' % (v(vTAG), v(t1), v(t0), sM1, sM1 + 1))
        A('s_and_b32 %s, %s, 0xfffffff0' % (s(sROT), s(sN1))); A('s_or_b32 %s, %s, %s' % (s(sREC), s(sXCC), s(sROT)))
        A('v_mov_b32 %s, %s' % (v(vN + 1), s(sREC)))
        L.append(('buffer_store_dwordx2 %s, %s, s[%d:%d], %s offen sc1' % (v(vN, 2), v(vT), SWS, SWS + 3, s(sRECA)), 'side'))
        return L
    def nonce_chk(self, br):
        return ['L_nonce_chk%s:' % br, 's_min_u32 %s, %s, %s' % (s(sT2), s(sN0), s(sN1)), 's_cmp_eq_u32 %s, 0' % s(sT2), 's_cbranch_scc1 L_nonce_retry%s' % br]
    def nonce_retry(self, br):
        return ['L_nonce_retry%s:' % br, '@assume_idle', 's_sleep 1'] + SPIN + self.nonce_load() + self.use_nonce() + ['s_branch L_nonce_chk%s' % br]
    def side_loads(self):
        c = self.cfg
        L = []
        if c.touch_o: L += self.touch('o')
        L += [('buffer_load_dword %s, %s, s[%d:%d], %s offen %s' % (v(vDUM), v(vPRE), SWS, SWS + 3, s(sOBX), c.prefl), 'pre'),
              ('buffer_load_dword %s, %s, s[%d:%d], %s offen %s' % (v(vDUM), v(vZ), SWS, SWS + 3, s(sFLW), c.prefl), 'side')]
        return L

    def middle(self, br):
        c = self.cfg; B = br == 'B'; NT = 2 if B else 1
        L = []; A = L.append
        R = []; A = R.append
        if not B:
            for i in range(8): A('v_mov_b32 %s, %s' % (v(vPH + i), v(vE + i)))
        tn = lambda tile, sg: (vP if sg == 0 else vK) + 16 * tile
        def featk(tile):
            X = self.pack(vK + 16 * tile) + self.zero_hi_pads(vK + 16 * tile)
            for t in range(2):
                k4 = v(vK + 16 * tile + 4 * t, 4); w4 = v(vPH + 4 * t, 4)
                X.append((mfma(vP + 16 * tile, w4 if B else k4, k4 if B else w4, None if t == 0 else vP + 16 * tile), 'hi'))
            X += self.softmax(vP + 16 * tile, vE + 32 * tile, vE + 32 * tile + 16, vT2 + 8 * tile, False) if B else self.elu1(vP + 16 * tile, vE + 32 * tile, False, False)
            if B:
                for sg in range(2):
                    for t in range(2):
                        X.append((mfma(tn(tile, sg), v(vE + 32 * tile + 16 * sg + 4 * t, 4), v(vID + 4 * t, 4), None if t == 0 else tn(tile, sg)), 'hi2'))
                    X += self.pack(tn(tile, sg))
            return X
        wv = []
        for k in range(7): wv += self.dma_w(k, 2, L_WV, 'wv%d' % k)
        R += featk(0)
        for i in range(7, 14): R += self.xiter(i, wv if i == 7 else ())
        if c.stamps and not c.lite: R.append(('s_memtime s[%d:%d]' % (SX + 2, SX + 3), 'nowait'))
        R += featk(1)
        wq = self.nonce_load()
        for k in range(7): wq += self.dma_w(k, 0, L_WQ, 'wq')
        wq += ([] if c.pre_q else self.side_loads()) + self.use_nonce()
        hooks = {}; k0 = 0
        for k1 in c.wv_bar:
            hooks[4 * k0] = ['@waitvm wv%d' % (k1 - 1), 's_barrier'] + (wq if k0 == 0 else []); k0 = k1
        R += self.gemm(vV, vWRk, L_WV - L_WK, False, 0, hooks, lead=True)
        A('v_mov_b32 %s, 0x3f803f80' % v(vXR2 + 3))
        for tile in range(2):
            R += self.pack(vV + 16 * tile)
            for u in range(8): A('v_cndmask_b32_e64 %s, %s, %s, s[%d:%d]' % (v(vV + 16 * tile + u), v(vV + 16 * tile + u), v(vXR2 + 3), sE28, sE28 + 1))
        for tile in range(2):
            for sg in reversed(range(NT)):
                src = tn(tile, sg) if B else vE + 32 * tile
                for t in range(2):
                    A(mfma(vKV + 16 * sg, v(src + 4 * t, 4), v(vV + 16 * tile + 4 * t, 4), None if (tile == 0 and t == 0) else vKV + 16 * sg))
        t0, t1, t2 = vXR, vXR + 1, vXR2 + 2
        A('s_add_u32 %s, %s, %d' % (s(sT3), s(sM0X), L_SCR)); A('v_add_u32 %s, %s, %s' % (v(t0), s(sT3), v(vL16)))
        for q in ((4, 5, 6, 7, 2, 3) if B else range(4)): A('ds_write_b128 %s, %s offset:%d' % (v(t0), v(vKV + 4 * q, 4), 16384 * (q >> 2) + 1024 * (q & 3)))
        for d in range(1, 4): A('v_xor_b32 %s, %d, %s' % (v(t0 + d), 4096 * d, v(t0)))
        A('s_and_b32 %s, %s, %d' % (s(sC_), s(sW), 3 if B else 1))
        A('s_lshl_b32 %s, %s, 4' % (s(sA), s(sBR))); A('s_add_u32 %s, %s, %s' % (s(sA), s(sA), s(sH))); A('s_lshl2_add_u32 %s, %s, %s' % (s(sA), s(sA), s(sC_)))
        A('s_lshl_b32 %s, %s, 13' % (s(sA), s(sA))); A('s_add_u32 %s, %s, %d' % (s(sB_), s(sA), WS_PART)); A('s_add_u32 %s, %s, 4096' % (s(sXB), s(sB_)))
        A('s_lshl_b32 %s, %s, 10' % (s(sA), s(sRB))); A('s_add_u32 %s, %s, %s' % (s(sD_), s(sB_), s(sA))); A('s_lshl_b32 %s, %s, 10' % (s(sC_), s(sC_)))
        A('s_and_b32 %s, %s, 0xffffff80' % (s(sWB), s(sRECA)))
        if not B:
            A('s_cmp_ge_u32 %s, 2' % s(sW)); A('s_cselect_b32 %s, 0x%x, 0' % (s(sA), OOB)); A('v_add_u32 %s, %s, %s' % (v(t2), s(sA), v(vL16)))
        A('v_mov_b32 %s, 0xffff' % v(vXD))
        L += self.sched(R, 'phase2' + br, boost={'hi': 9000, 'kk': 12000, 'lead': 5000, 'hi2': c.hi2}, tight=c.p2_tight)
        if c.stamps and not c.lite: L += ['@waitlgkm_all', 'v_writelane_b32 %s, %s, 2' % (v(vST), s(SX + 2))]
        L += self.stamp(3)
        g0 = len(L)
        L += self.nonce_chk(br)
        A = L.append
        A('@waitlgkm_all'); A('s_barrier')
        for d in range(1, 4):
            for hf in range(2): A('ds_read_b128 %s, %s offset:%d' % (v(vV + 8 * d + 4 * hf, 4), v(t0 + d), (16384 * (d >> 1) if B else 0) + 2048 * (d & 1) + 1024 * hf))
        for d in range(1, 4):
            for u in range(0, 8, 2): A('v_pk_add_f32 %s, %s, %s' % (v(vKV + u, 2), v(vKV + u, 2), v(vV + 8 * d + u, 2)))
        L += self.pack(vKV, 4)
        A('v_bfi_b32 %s, %s, %s, %s' % (v(vKV + 3), v(vXD), v(vKV + 3), v(vTAG)))
        L.append(('buffer_store_dwordx4 %s, %s, s[%d:%d], %s offen sc1' % (v(vKV, 4), v(vL16 if B else t2), SWS, SWS + 3, s(sD_)), 'pst'))
        L += self.stamp(4)
        L += ['s_getpc_b64 s[%d:%d]' % (sTAB, sTAB + 1), 'L_pc%s:' % br, 's_add_u32 %s, %s, L_tab - L_pc%s' % (s(sTAB), s(sTAB), br), 's_addc_u32 %s, %s, 0' % (s(sTAB + 1), s(sTAB + 1))]
        A('@waitvm wq'); A('s_barrier')
        self.glue(L[g0:])
        R = []; A = R.append
        t0, t1, t2 = vXR, vXR + 1, vXR + 2
        A('v_add_u32 %s, 2560, %s' % (v(vXD + 1), v(vWOD))); A('v_xor_b32 %s, 32, %s' % (v(vXD + 3), v(vWOD)))
        A('v_add_u32 %s, 5120, %s' % (v(vXD + 2), v(vXD + 3))); A('v_add_u32 %s, 7680, %s' % (v(vXD + 3), v(vXD + 3)))
        A('s_mul_i32 %s, %s, 14336' % (s(sWOS), s(sW))); A('s_lshl_b32 %s, %s, 8' % (s(sA), s(sCB))); A('s_add_u32 %s, %s, %s' % (s(sWOS), s(sWOS), s(sA)))
        A('v_and_b32 %s, 15, %s' % (v(vXR + 3), v(vL))); A('v_lshlrev_b32 %s, 3, %s' % (v(vXR + 3), v(vXR + 3)))
        wo_block = self.wo_block
        if c.pre_q: R += self.side_loads()
        for m in range(c.wo_before): R += wo_block(m)
        npart = len(R); R += self.part_loads()
        for m in range(c.wo_before, c.wo_mid): R += wo_block(m)
        tabs = self.table_loads()
        tm = c.q_tm and B
        if not tm: R += self.gemm(vK, vWRq, L_WQ, True, 4)
        for tile in range(2):
            if tm: R += self.gemm(vK, vWRq, L_WQ, True, 4 + 28 * tile, tiles=(tile,))
            R += self.pack(vK + 16 * tile) + self.zero_hi_pads(vK + 16 * tile)
            for t in range(2):
                R.append((mfma(vP + 16 * tile, v(vPH + 4 * t, 4), v(vK + 16 * tile + 4 * t, 4), None if t == 0 else vP + 16 * tile), 'hi' if tile == 0 else None))
        for tile in range(2):
            pk = not (tm and tile == 0)
            R += self.softmax(vP + 16 * tile, vE + 32 * tile, vE + 32 * tile + 16, vT2 + 8 * tile, pk) if B else self.elu1(vP + 16 * tile, vE + 32 * tile, True, True)
        if c.tab_late: late0 = tabs; tabs = []
        else: late0 = []
        L += self.sched(R + tabs, 'q' + br, release={npart: c.rel_part}, boost={'hi': 4000}, tight=c.q_tight)
        L += self.stamp(6)
        A = L.append
        A('@waitvm part'); self.glue(L[-1:])
        L += self.stamp(5)
        A('L_part_chk%s:' % br)
        R = []; A = R.append
        G0 = vKV
        for p in range(8): A(mfma(vV, v(vID, 4), v(G0 + 4 * p, 4), None if p == 0 else vV))
        x, z, y = vT2, vT2 + 1, vT2 + 12
        A('v_max3_u32 %s, %s, %s, %s' % (v(x), v(G0 + 3), v(G0 + 7), v(G0 + 11))); A('v_min3_u32 %s, %s, %s, %s' % (v(y), v(G0 + 3), v(G0 + 7), v(G0 + 11)))
        A('v_max3_u32 %s, %s, %s, %s' % (v(x), v(x), v(G0 + 15), v(G0 + 19))); A('v_min3_u32 %s, %s, %s, %s' % (v(y), v(y), v(G0 + 15), v(G0 + 19)))
        A('v_max3_u32 %s, %s, %s, %s' % (v(x), v(x), v(G0 + 23), v(G0 + 27))); A('v_min3_u32 %s, %s, %s, %s' % (v(y), v(y), v(G0 + 23), v(G0 + 27)))
        A('v_max_u32 %s, %s, %s' % (v(x), v(x), v(G0 + 31))); A('v_min_u32 %s, %s, %s' % (v(y), v(y), v(G0 + 31)))
        A('v_xor_b32 %s, %s, %s' % (v(x), v(x), v(vTAG))); A('v_xor_b32 %s, %s, %s' % (v(y), v(y), v(vTAG)))
        A('v_or_b32 %s, %s, %s' % (v(x), v(x), v(y))); A('v_lshrrev_b32 %s, 16, %s' % (v(x), v(x)))
        A('v_xor_b32 %s, %s, %s' % (v(y), s(sN0), v(vN))); A('v_xor_b32 %s, %s, %s' % (v(z), s(sREC), v(vN + 1)))
        A('v_cmp_ne_u32_e64 s[%d:%d], 0, %s' % (sFAR, sFAR + 1, v(z)))
        A('v_lshrrev_b32 %s, 4, %s' % (v(z), v(z))); A('v_or3_b32 %s, %s, %s, %s' % (v(x), v(x), v(y), v(z)))
        A('v_cmp_ne_u32 vcc, 0, %s' % v(x))
        A('v_add_u32 %s, %s, %s' % (v(y), s(sC_), v(vL16))); A('v_add_u32 %s, %d, %s' % (v(y), L_MISC, v(y)))
        for q in range(1, 2 * NT): A('v_xor_b32 %s, %d, %s' % (v(y + q), 1024 * q, v(y)))
        L += self.sched(R, 'sum' + br)
        A = L.append
        A('s_cbranch_vccnz L_part_retry%s' % br)
        late = list(late0)
        for m in range(c.wo_mid, c.wo_imp): late += wo_block(m)
        nl = c.late0
        L += late[:nl]
        L += self.pack(vV, 4)
        A('v_and_b32 %s, 0xffff, %s' % (v(vV + 3), v(vV + 3)))
        A('ds_write_b128 %s, %s' % (v(y), v(vV, 4)))
        A('@waitlgkm_all'); A('s_barrier')
        self.glue(L[-nl - 9:])
        R = []; A = R.append
        R += late[nl:]
        early = self.wo_reads()[:3 + 8 * c.wo_early]
        for q in range(2 * NT): A('ds_read_b128 %s, %s' % (v(vV + 16 + 4 * q, 4), v(y + q)))
        for tile in range(2):
            for q in range(2 * NT):
                A(mfma(vP + 16 * tile, v(vV + 16 + 4 * q, 4), v(vE + 32 * tile + 16 * (q >> 1) + 4 * (q & 1), 4), None if q == 0 else vP + 16 * tile))
        for tile in range(2):
            P = vP + 16 * tile; d = vT2 + 4 + 4 * tile
            A('v_mov_b32 %s, %s' % (v(d), v(P + 12))); A('v_permlane32_swap_b32 %s, %s' % (v(P + 12), v(d)))
            A('v_add_f32 %s, 0x358637bd, %s' % (v(d), v(d))); A('v_rcp_f32 %s, %s' % (v(d), v(d)))
            for u in range(8):
                if tile: A('v_pk_mul_f32 %s, %s, %s op_sel_hi:[1,0]' % (v(P + 2 * u, 2), v(P + 2 * u, 2), v(d, 2)))
                else:
                    for k in range(2): A('v_mul_f32 %s, %s, %s' % (v(P + 2 * u + k), v(P + 2 * u + k), v(d)))
                A('v_cvt_pk_bf16_f32 %s, %s, %s' % (v(P + u), v(P + 2 * u), v(P + 2 * u + 1)))
            R += self.zero_hi_pads(P)
        A('v_mov_b32 %s, %s' % (v(vN), s(sN0))); A('v_mov_b32 %s, %s' % (v(vN + 1), s(sN1)))
        A('s_lshl_b32 %s, %s, 3' % (s(sT2), s(sH))); A('s_add_u32 %s, %s, %s' % (s(sC_), s(sFLW), s(sT2))); A('s_xor_b32 %s, %s, 32768' % (s(sOBX), s(sOB1))); A('s_add_u32 %s, %s, 16384' % (s(sA), s(sOB1))); A('s_add_u32 %s, %s, 16384' % (s(sB_), s(sOBX)))
        L += self.sched(R + early, 'o' + br, lowds={id(x) for x in early})
        L += self.stamp(7)
        A = L.append
        if c.force_global: A('s_branch L_far')
        A('s_cmp_lg_u64 s[%d:%d], 0' % (sFAR, sFAR + 1)); A('s_cbranch_scc1 L_far')
        return L
    def publish(self, fl):
        c = self.cfg; L = []
        for tile in range(2):
            for t in range(2):
                L.append(('buffer_store_dwordx4 %s, %s, s[%d:%d], %s offen %s' % (v(vP + 16 * tile + 4 * t, 4), v(vL16), SWS, SWS + 3, s(((sOB1, sA), (sOBX, sB_))[tile][t]), fl), 'ost'))
        for m in range(c.wo_imp, 7 - c.wo_g3): L += self.wo_block(m)
        L += self.p3_setup()
        L = self.sched(L, 'pub')
        L += ['@waitvm ost']
        L.append('buffer_store_dwordx2 %s, %s, s[%d:%d], %s offen %s' % (v(vN, 2), v(vT), SWS, SWS + 3, s(sC_), fl))
        return L
    def wo_block(self, m, tag='wo'):
        X = ['s_add_u32 m0, %s, %d' % (s(sM0X), L_WO + 16384 * m)]
        if m: X.append('s_add_u32 %s, %s, %d' % (s(sWOS), s(sWOS), 57344))
        return X + [('buffer_load_dwordx4 %s, s[%d:%d], %s offen offset:%d %s lds' % (v(vXD + j if j else vWOD), SWO, SWO + 3, s(sWOS), 1024 * j, self.cfg.wofl), tag) for j in range(4)]
    def part_loads(self):
        L = []
        L.append(('buffer_load_dwordx2 %s, %s, s[%d:%d], %s offen sc1' % (v(vN, 2), v(vXR + 3), SWS, SWS + 3, s(sWB)), 'rec'))
        for p in range(8):
            L.append(('buffer_load_dwordx4 %s, %s, s[%d:%d], %s offen offset:%d sc1' % (v(vKV + 4 * p, 4), v(vL16), SWS, SWS + 3, s(sXB if p >= 4 else sB_), 1024 * (p & 3)), 'part'))
        return L
    def part_retry(self, br):
        return ['L_part_retry%s:' % br, '@assume_idle', 's_nop 15'] + SPIN + self.part_loads() + ['@waitvm_all', 's_branch L_part_chk%s' % br]
    def far(self):
        return ['L_far:', '@assume_idle', '@waitvm_all', 's_nop 4'] + self.publish('sc1') + ['s_branch L_join']
    def wo_reads(self):
        b = [vWO0, vWO0 + 1, vXR2, vXR2 + 1]
        L = ['v_xor_b32 %s, 32, %s' % (v(b[1]), v(b[0])), 'v_add_u32 %s, 0x10000, %s' % (v(b[2]), v(b[0])), 'v_add_u32 %s, 0x10000, %s' % (v(b[3]), v(b[1]))]
        for k in range(14):
            for nt in range(2):
                for i in range(2):
                    off = (32 * k + 4 * i) * 256
                    L.append('ds_read_b64_tr_b16 %s, %s offset:%d' % (a(8 * k + 4 * nt + 2 * i, 2), v(b[nt + 2 * (off >> 16)]), off & 0xffff))
        return L

    def p3_setup(self):
        L = []; A = L.append
        A('s_lshl_b32 %s, %s, 2' % (s(sT2), s(sRB))); A('s_add_u32 %s, %s, %s' % (s(sT2), s(sT2), s(sRQ))); A('s_mul_i32 %s, %s, %d' % (s(sD_), s(sT2), 64 * 1792))
        A('s_mul_i32 %s, %s, 896' % (s(sT2), s(sBR))); A('s_add_u32 %s, %s, %s' % (s(sD_), s(sD_), s(sT2)))
        A('s_lshl_b32 %s, %s, 2' % (s(sT2), s(sCB))); A('s_add_u32 %s, %s, %s' % (s(sT2), s(sT2), s(sW)))
        A('s_cmp_ge_u32 %s, 14' % s(sT2)); A('s_cselect_b32 %s, 0x%x, 0' % (s(sA), OOB))
        A('s_lshl_b32 %s, %s, 6' % (s(sT2), s(sT2))); A('s_add_u32 %s, %s, %s' % (s(sXO), s(sD_), s(sT2)))
        for b in range(1, 4): A('s_add_u32 %s, %s, %d' % (s(sXO + b), s(sXO), b * 16 * 1792))
        t0, t1, t2 = vT2 + 10, vT2 + 11, vT2 + 12
        A('s_lshl_b32 %s, %s, 12' % (s(sB_), s(sW))); A('s_add_u32 %s, %s, %d' % (s(sB_), s(sB_), L_OT))
        A('v_and_b32 %s, 15, %s' % (v(t0), v(vL))); A('v_lshlrev_b32 %s, 4, %s' % (v(vS16), v(t0))); A('v_lshl_add_u32 %s, %s, 6, %s' % (v(t0), v(t0), s(sB_)))
        A('v_bfe_u32 %s, %s, 4, 1' % (v(t1), v(vL))); A('v_lshl_add_u32 %s, %s, 3, %s' % (v(t0), v(t1), v(t0)))
        A('v_bfe_u32 %s, %s, 1, 2' % (v(t1), v(vL))); A('v_lshrrev_b32 %s, 5, %s' % (v(t2), v(vL))); A('v_xor_b32 %s, %s, %s' % (v(t1), v(t1), v(t2)))
        A('v_lshl_add_u32 %s, %s, 4, %s' % (v(vOW), v(t1), v(t0))); A('v_xor_b32 %s, 32, %s' % (v(vOW + 1), v(vOW)))
        A('v_bfe_u32 %s, %s, 3, 2' % (v(t1), v(vL))); A('v_xor_b32 %s, %s, %s' % (v(t1), v(t1), v(vL))); A('v_and_b32 %s, 3, %s' % (v(t1), v(t1)))
        A('v_lshrrev_b32 %s, 2, %s' % (v(t0), v(vL))); A('v_lshl_add_u32 %s, %s, 6, %s' % (v(t2), v(t0), s(sB_))); A('v_lshl_add_u32 %s, %s, 4, %s' % (v(vOR), v(t1), v(t2)))
        A('v_mul_u32_u24 %s, 1792, %s' % (v(t0), v(t0))); A('v_and_b32 %s, 3, %s' % (v(t1), v(vL))); A('v_lshl_add_u32 %s, %s, 4, %s' % (v(t0), v(t1), v(t0)))
        A('v_add_u32 %s, %s, %s' % (v(vOG), s(sA), v(t0)))
        for r in vOF: A('v_add_u32 %s, %s, %s' % (v(r), v(r), v(vS16)))
        A('s_lshl2_add_u32 %s, %s, %s' % (s(sT2), s(sGID), s(sRQ))); A('s_lshl2_add_u32 %s, %s, %s' % (s(sT2), s(sT2), s(sW)))
        A('s_lshl_b32 %s, %s, 14' % (s(sT2), s(sT2))); A('s_add_u32 %s, %s, %d' % (s(sD_), s(sT2), WS_O))
        A('s_lshl_b32 %s, %s, 14' % (s(sWOM), s(sW))); A('s_mov_b32 m0, %s' % s(sWOM))
        return L
    def table_loads(self):
        L = ['v_and_b32 %s, 0x300, %s' % (v(vWRk), v(vL16)), 'v_lshrrev_b32 %s, 2, %s' % (v(vWRk), v(vWRk))]
        for q in range(4): L.append(('global_load_dwordx%d %s, %s, s[%d:%d] offset:%d' % (4 if q < 3 else 2, v(vOF[4 * q], 4 if q < 3 else 2), v(vWRk), sTAB, sTAB + 1, 16 * q), 'tab'))
        return L
    def table(self):
        T = []
        for g in range(4):
            for r in range(16):
                h, u = divmod(8 * (r >> 1) + 2 * g + (r & 1), 7)
                T.append(h * 1024 + (u >> 2) * 16384 + (u & 1) * 512 + ((u >> 1) & 1) * 8)
        return ['.p2align 6', '.type L_tab,@object', 'L_tab:'] + ['.long %d' % x for x in T] + ['.size L_tab, 256']

    def tail(self):
        c = self.cfg
        L = ['L_pub:'] + self.publish(''); A = L.append
        A('L_join:')
        L += self.stamp(8)
        g3 = 7 - c.wo_g3
        poll = 'buffer_load_dwordx2 %s, %s, s[%d:%d], %s offen sc1' % (v(vT2, 2), v(vXR + 3), SWS, SWS + 3, s(sFLG))
        assert c.wo_early >= 2
        A('@waitvm wo'); A(poll); A('@waitlgkm_all'); A('s_barrier'); L += self.wo_reads()[3 + 8 * c.wo_early:3 + 8 * g3]
        A('L_poll:')
        A('v_xor_b32 %s, %s, %s' % (v(vT2), s(sN0), v(vT2))); A('v_xor_b32 %s, %s, %s' % (v(vT2 + 1), s(sN1), v(vT2 + 1)))
        A('v_or_b32 %s, %s, %s' % (v(vT2), v(vT2), v(vT2 + 1))); A('v_cmp_ne_u32 vcc, 0, %s' % v(vT2)); A('s_cbranch_vccnz L_repoll')
        self.repoll = ['L_repoll:', '@assume_idle'] + SPIN + [poll, '@waitvm_all', 's_branch L_poll']
        L += self.stamp(9)
        od = []
        for h in range(16):
            if h and h % 4 == 0: od += ['s_add_u32 m0, %s, %d' % (s(sWOM), 1024 * h), 's_add_u32 %s, %s, 4096' % (s(sD_), s(sD_))]
            od.append(('buffer_load_dwordx4 %s, s[%d:%d], %s offen offset:%d sc1 lds' % (v(vL16), SWS, SWS + 3, s(sD_), 1024 * (h & 3)), 'o%d' % h))
        assert c.o_first % 4 == 0
        nf = [i for i, x in enumerate(od) if isinstance(x, tuple)][c.o_first - 1] + 1
        L += od[:nf]
        M16 = 'v_mfma_f32_16x16x32_bf16'
        st = {'have': -1}
        def gate(k):
            X = []; h = (8 * k + 7) // 7
            need = min(x for x in c.stages if x >= h)
            wg = k % 2 == 0 and k // 2 >= g3
            if st['have'] < need or wg:
                X = ['@waitvm o%d' % need + (' wog%d' % (k // 2) if wg else ''), 's_barrier']; st['have'] = max(need, st['have'])
            return X
        def rd(k, sg, i): return 'ds_read_b64 %s, %s offset:%d' % (v(vE + 4 * ((4 * k + sg) % 12) + 2 * i, 2), v(vOF[2 * (k % 7) + i]), (k // 7) * 8192 + (sg >> 1) * 32768 + (sg & 1) * 256)
        rds = lambda k: [rd(k, sg, i) for sg in range(4) for i in range(2)]
        later = od[nf:]
        for m in range(g3, 7): later += self.wo_block(m, 'wog%d' % m)
        L += gate(0) + rds(0) + gate(1)
        for k in range(14):
            fill = []
            if k + 2 < 14:
                L += gate(k + 2); fill = (rds(1) if k == 0 else []) + rds(k + 2)
                if (k + 2) % 2 == 0 and (k + 2) // 2 >= g3: fill = interleave(fill, self.wo_reads()[3 + 4 * (k + 2):3 + 4 * (k + 2) + 8])
            per = -(-len(fill) // 8)
            for j in range(8):
                sg, nt = j >> 1, j & 1
                d = v(vK + 8 * sg + 4 * nt, 4)
                L.append('%s %s, %s, %s, %s' % (M16, d, a(8 * k + 4 * nt, 4), v(vE + 4 * ((4 * k + sg) % 12), 4), d if k else '0'))
                if later and k and j % c.g3_every == 0:
                    while not isinstance(later[0], tuple): L.append(later.pop(0))
                    L.append(later.pop(0))
                L += fill[per * j:per * (j + 1)]
        assert not later
        L += self.stamp(10)
        R = []; A = R.append
        for sg in range(4):
            for nt in range(2):
                d = vK + 8 * sg + 4 * nt
                R += self.pack(d, 2)
                A('ds_write_b64 %s, %s offset:%d' % (v(vOW + nt), v(d, 2), 1024 * sg))
            A('ds_read_b128 %s, %s offset:%d' % (v(vP + 4 * sg, 4), v(vOR), 1024 * sg))
            A('buffer_store_dwordx4 %s, %s, s[%d:%d], %s offen %s' % (v(vP + 4 * sg, 4), v(vOG), SOUT, SOUT + 3, s(sXO + sg), c.outfl))
        L += self.sched(R, 'out')
        A = L.append
        if c.stamps:
            L += self.stamp(11)
            A('s_memrealtime s[%d:%d]' % (sT0, sT1)); A('@waitlgkm_all')
            A('v_writelane_b32 %s, %s, 12' % (v(vST), s(sT0))); A('v_writelane_b32 %s, s3, 0' % v(vST))
            A('s_lshl_b32 %s, s2, 2' % s(sT2)); A('s_add_u32 %s, %s, %s' % (s(sT2), s(sT2), s(sW))); A('s_lshl_b32 %s, %s, 8' % (s(sT2), s(sT2)))
            A('s_add_u32 %s, %s, %d' % (s(sT2), s(sT2), WS_STAMP))
            A('v_lshlrev_b32 %s, 2, %s' % (v(vT), v(vL)))
            for k in range(8): A('v_writelane_b32 %s, s%d, %d' % (v(vST), 4 + 2 * k, 32 + k))
            A('buffer_store_dword %s, %s, s[%d:%d], %s offen' % (v(vST), v(vT), SWS, SWS + 3, s(sT2)))
        if c.leak:
            if c.leak == 11: L += self.stamp(11)
            A('s_memrealtime s[100:101]'); A('s_lshl_b32 s3, s3, 2'); A('@waitlgkm_all')
            A('L_leak:'); A('s_memrealtime s[%d:%d]' % (sT0, sT1)); A('@waitlgkm_all'); A('s_sub_u32 %s, %s, s100' % (s(sT0), s(sT0))); A('s_cmp_lt_u32 %s, s3' % s(sT0)); A('s_cbranch_scc1 L_leak')
        if c.tfix:
            A('L_tfix:'); A('s_memrealtime s[%d:%d]' % (sT0, sT1)); A('@waitlgkm_all'); A('s_sub_u32 %s, %s, s100' % (s(sT0), s(sT0))); A('s_cmp_lt_u32 %s, %d' % (s(sT0), c.tfix)); A('s_cbranch_scc1 L_tfix')
        A('L_end:'); A('s_endpgm')
        return L

    def marks(self, L):
        if not self.cfg.marks: return L
        out = []; seen = set()
        for x in L:
            t = x[0] if isinstance(x, tuple) else x
            hit = [k for k, (p, af) in enumerate(self.cfg.marks) if (t == p or t.startswith(p + ' ')) and k not in seen]
            for k in hit:
                if not self.cfg.marks[k][1]: out.append(('s_memtime s[%d:%d]' % (4 + 2 * k, 5 + 2 * k), 'nowait'))
            out.append(x)
            for k in hit:
                if self.cfg.marks[k][1]: out.append(('s_memtime s[%d:%d]' % (4 + 2 * k, 5 + 2 * k), 'nowait'))
                seen.add(k)
        return out
    def build(self):
        shared = self.prologue() + self.part1() + self.stamp(14) + ['s_cmp_eq_u32 %s, 0' % s(sBR), 's_cbranch_scc1 L_brA']
        MK = '.set MARK_A, 0'
        M0 = copy.deepcopy(self.M)
        main = finalize(self.marks(shared + self.middle('B') + self.tail()))
        self.M = M0
        alt = finalize(self.marks(shared + [MK, 'L_brA:'] + self.middle('A') + ['@wait_all', 's_branch L_pub']))
        alt = alt[alt.index(MK) + 1:]
        side = finalize(self.repoll + self.far() + self.mknonce() + self.nonce_retry('B') + self.nonce_retry('A') + self.part_retry('B') + self.part_retry('A'))
        return main, alt, side + self.table()

HEADER = open(os.path.join(os.path.dirname(os.path.abspath(__file__)), 'header.txt')).read()

def generate(cfg):
    import emit
    emit.MERGE = cfg.merge
    import sched
    sched.BURST = cfg.burst; sched.HOLD = cfg.hold
    g = G(cfg)
    main, alt, side = g.build()
    body = main + alt + side
    txt = HEADER
    if cfg.extra_empty:
        txt += '; @launch kernel=%s grid=(256,1,1) block=(256,1,1) lds=163840\n; @launch kernel=empty_kernel grid=(256,1,1) block=(256,1,1) lds=0\n' % KNAME
    else:
        txt += '; @launch grid=(256,1,1) block=(256,1,1) lds=163840\n'
    txt += '.amdgcn_target "amdgcn-amd-amdhsa--gfx950"\n.text\n.globl %s\n.p2align 8\n.type %s,@function\n%s:\n' % (KNAME, KNAME, KNAME)
    txt += '\n'.join(('' if l.endswith(':') else '    ') + l for l in body) + '\n'
    if cfg.extra_empty:
        txt += '.globl empty_kernel\n.p2align 8\n.type empty_kernel,@function\nempty_kernel:\n    s_endpgm\n'
        txt += '.section .rodata,"a"\n.p2align 6\n.amdhsa_kernel empty_kernel\n  .amdhsa_next_free_vgpr 8\n  .amdhsa_next_free_sgpr 16\n  .amdhsa_accum_offset 8\n  .amdhsa_group_segment_fixed_size 0\n  .amdhsa_kernarg_size 80\n  .amdhsa_user_sgpr_count 2\n  .amdhsa_user_sgpr_kernarg_segment_ptr 1\n  .amdhsa_system_sgpr_workgroup_id_x 1\n.end_amdhsa_kernel\n'
    txt += '.section .rodata,"a"\n.p2align 6\n.amdhsa_kernel %s\n' % KNAME
    txt += '  .amdhsa_next_free_vgpr 512\n  .amdhsa_next_free_sgpr 102\n  .amdhsa_accum_offset 256\n  .amdhsa_group_segment_fixed_size 0\n'
    txt += '  .amdhsa_kernarg_size 80\n  .amdhsa_user_sgpr_count 2\n  .amdhsa_user_sgpr_kernarg_segment_ptr 1\n  .amdhsa_system_sgpr_workgroup_id_x 1\n.end_amdhsa_kernel\n'
    import subprocess, tempfile, re
    d = tempfile.mkdtemp()
    open(d + '/a.s', 'w').write(txt.replace('CODE_SPAN', '0x5000'))
    r = subprocess.run(['clang', '-x', 'assembler', '-target', 'amdgcn-amd-amdhsa', '-mcpu=gfx950', '-c', d + '/a.s', '-o', d + '/a.o'], capture_output=True, text=True)
    if r.returncode: raise Exception(r.stderr[:3000])
    r = subprocess.run(['llvm-readelf', '-S', d + '/a.o'], capture_output=True, text=True).stdout
    size = int(re.search(r'\.text\s+PROGBITS\s+\w+\s+\w+\s+(\w+)', r).group(1), 16)
    assert size < 32768 + 64
    sys.stderr.write('code bytes: %d\n' % size)
    return txt.replace('CODE_SPAN', hex(size - 64))

if __name__ == '__main__':
    cfg = Cfg()
    out = sys.argv[1]
    for kv in sys.argv[2:]:
        k, val = kv.split('=', 1); assert hasattr(cfg, k), k; setattr(cfg, k, eval(val))
    open(out, 'w').write(generate(cfg))
```

```python
import sys, os
from emit import finalize, interleave
from sched import schedule, Machine
import copy

KNAME = 'concat_heads__linear_attn_block__linear_kernel_hedgehog__prompt_kernel'

class Cfg:
    stamps = False; lite = False; fine = None; frange = (0, 1); marks = None; leak = None; tfix = 0; extra_empty = False; force_global = False; verbose = False
    rotmap = None; tswap = 0; pref_slots = 2
    xfl = ''; wfl = ''; wofl = ''; outfl = 'sc1'; prefl = 'sc1'; tfl = ''
    touch = {"p2": "o"}
    wv_bar = (1, 2, 4, 7); hi2 = 6000; q_tm = True
    rel_part = 1800; rel_partA = 2400; rel_nonce = 0
    wo_before = 2; wo_mid = 2; wo_imp = 4; wo_g3 = 1; tab_late = True; q_tight = False; p2_tight = False; wo_early = 2; late0 = 6; pre_q = False; ws_base = 0
    stages = (3, 5, 7, 11, 15); g3_every = 2; o_first = 8
    dslat = 130; merge = 24; burst = 24; hold = 12
    miss = {}; lines = {}
    thr = 0; thr_tags = ['x11', 'x12', 'x13', 'wv0', 'wv1', 'wv2', 'wv3', 'wv4', 'wv5', 'wv6', 'wq']
    depth = 4; order0 = 'w2 w3 x2 w4 x3 w5 w6 x4 x5'; wkbar = {0: 'wk1 phi', 2: 'wk3', 4: 'wk6'}; t0boost = 2000
    rate = 2.2; cap = 256; lat = 400; fifo = 4; wlines = 90; cold = 900; pmiss = 900; smiss = 1000

WS_XCC, WS_FLAG, WS_PART, WS_O, WS_STAMP = 4096, 8192, 65536, 2 << 20, 16 << 20
WS_BYTES = 32 << 20
L_WK, L_WV, L_MISC, L_WQ, L_WO, L_SCR, L_OT = 98304, 126976, 155648, 0, 32768, 32768, 65536
OOB = 0x40000000
sAX, sAW, sAWO, sBX, sBW, sPHI, sBWO, sOUT, sDBG, sWSP = 4, 6, 8, 10, 12, 14, 16, 18, 20, 22
SX, SW, SWO, SPHI, SWS, SOUT = 24, 28, 32, 36, 40, 44
sBR, sRB, sH, sW, sGID, sSLOT, sT0, sT1, sT2, sXCC = 48, 49, 50, 51, 52, 53, 54, 55, 56, 57
sN0, sN1 = 58, 59
sHI, sE28 = 60, 62
sXO, sWO_ = 64, 72
sSPIN, sFAR = 71, 72
sM0X, sM0W, sSH, sCB, sRQ, sPB = 80, 81, 82, 83, 84, 85
sA, sB_, sC_, sD_ = 86, 87, 88, 89
sOB1, sWOM, sDT, sROT, sXB, sWB, sOBX, sFLG, sT3, sREC, sRECA = 90, 91, 92, 93, 94, 95, 96, 97, 98, 99, 79
sM0K = 3
sPX, sPL0, sPL1, sSET, sRECL, sSCR = 4, 5, 6, 7, 8, 9
sWOS, sTAB = sXCC, SX
sFLW = sSLOT
sSGN = sSH
sM1, sM2 = SPHI, SPHI + 2
SPIN = ['s_add_u32 s71, s71, 1', 's_cmp_gt_u32 s71, 0x100000', 's_cbranch_scc1 L_end']
vL = 1
vXD, vWD, vWRq, vWRk, vZ = 2, 6, 7, 8, 9
vXR, vXR2 = 10, 14
vDUM, vT = 18, 19
vPH, vID, vC, vST, vN = 20, 28, 36, 37, 38
vK, vV, vP, vE, vKV, vT2 = 40, 72, 104, 136, 200, 232
vTAG, vL16 = 248, 249
vWO0, vWOD = 250, 252
vWDq, vWDv = 253, 251
vTCH, vTCO, vPRE = None, 254, 255
vS16, vOW, vOR, vOG = vT2 + 3, vT2 + 4, vT2 + 8, vT2 + 9
vOF = list(range(20, 28)) + list(range(32, 36)) + [254, 255]
aX, aWR = 0, 224

def v(r, n=1): return 'v%d' % r if n == 1 else 'v[%d:%d]' % (r, r + n - 1)
def a(r, n=1): return 'a%d' % r if n == 1 else 'a[%d:%d]' % (r, r + n - 1)
def s(r, n=1): return 's%d' % r if n == 1 else 's[%d:%d]' % (r, r + n - 1)
MF = 'v_mfma_f32_32x32x16_bf16'
def mfma(d, x, y, c): return '%s %s, %s, %s, %s' % (MF, v(d, 16), x, y, v(c, 16) if c is not None else '0')

class G:
    def __init__(self, cfg):
        self.cfg = c = cfg; self.npc = 0; self.nthr = 0; self.thr_side = []
        self.M = Machine(c.rate, c.cap, c.lat, fifo=c.fifo, lines={'wk': c.wlines, 'wv': c.wlines, 'wq': c.wlines, 'phi': 13, 'touch': 100, 'pre': 128, 'nonce': 4, 'side': 4, 'pref': 4, 'tab': 4, 'rec': 8},
                         miss={'x0': c.cold, 'nonce': 500, 'part': c.pmiss, 'rec': c.pmiss, 'pre': 600, 'touch': 400, 'pst': c.smiss, 'side': 500, 'ost': 250})
        self.M.miss.update(c.miss); self.M.lines.update(c.lines)
    def stamp(self, k):
        if self.cfg.leak == k: return ['@waitlgkm_all', 's_memrealtime s[%d:%d]' % (sT0, sT1), '@waitlgkm_all', 's_sub_u32 s11, %s, s100' % s(sT0)]
        if not self.cfg.stamps or (self.cfg.lite and k not in (11, 13)): return []
        return ['@waitlgkm_all', 's_memtime s[%d:%d]' % (sT0, sT1), 's_memrealtime s[100:101]', '@waitlgkm_all', 'v_writelane_b32 %s, %s, %d' % (v(vST), s(sT0), k),
                'v_writelane_b32 %s, s100, %d' % (v(vST), 16 + k)]
    def sched(self, L, name, **kw): return self.fine(schedule(self.M, L, verbose=name if self.cfg.verbose else False, dslat=self.cfg.dslat, **kw), name)
    def glue(self, L): return self.M.run(L)
    def fine(self, L, name):
        if not self.cfg.fine or not name.startswith(self.cfg.fine): return L
        out = []; n = len(L); lo, hi = [int(f * n) for f in self.cfg.frange]; pos = {lo + (k * (hi - lo)) // 3: k for k in range(4)}
        for i, x in enumerate(L + [None]):
            if i in pos: out.append(('s_memtime s[%d:%d]' % (12 + 2 * pos[i], 13 + 2 * pos[i]), 'nowait'))
            if x is not None: out.append(x)
        T = [self.M.times[i] for i in sorted(pos)]
        sys.stderr.write('model %s: %s\n' % (name, [b - a for a, b in zip(T[:-1], T[1:])]))
        if self.cfg.verbose:
            for i, k in pos.items(): sys.stderr.write('  fine %s %d at %d: %s\n' % (name, k, i, L[i]))
        return out

    def offs(self, i):
        L = ['s_lshl_b32 %s, %s, 7' % (s(sD_), s(sROT)), 's_add_u32 %s, %s, %s' % (s(sXO + i), s(sXB), s(sD_)),
             's_mul_i32 %s, %s, %d' % (s(sD_), s(sROT), 64 * 2688), 's_add_u32 %s, %s, %s' % (s(sD_), s(sWB), s(sD_)), 's_add_u32 %s, %s, %d' % (s(sWO_ + i), s(sD_), 4096 - 1024 * (i & 3))]
        if i < 6: L += ['s_add_u32 %s, %s, 1' % (s(sROT), s(sROT)), 's_cmp_eq_u32 %s, 7' % s(sROT), 's_cselect_b32 %s, 0, %s' % (s(sROT), s(sROT))]
        return L
    def touches(self, pos):
        L = []
        for w in self.cfg.touch.get(pos, ''):
            if w == 'p': L.append(('buffer_load_dword %s, %s, s[%d:%d], %s offen %s' % (v(vDUM), v(vPRE), SWS, SWS + 3, s(sOBX), self.cfg.prefl), 'pre'))
            else: L += self.touch(w)
        return L
    def touch(self, what):
        c = self.cfg
        if what == 'o': return [('buffer_load_dword %s, %s, s[%d:%d], 0 offen %s' % (v(vDUM), v(vTCO), SWO, SWO + 3, c.tfl), 'touch')]
        return [('buffer_load_dword %s, %s, s[%d:%d], 0 offen offset:%d %s' % (v(vDUM), v(vTCH), SW, SW + 3, {'q': 0, 'v': 1792}[what], c.tfl), 'touch')]

    def prologue(self):
        c = self.cfg; L = []; A = L.append
        A('s_load_dwordx16 s[4:19], s[0:1], 0')
        A('s_load_dwordx4 s[20:23], s[0:1], 64')
        if c.stamps or c.tfix or c.leak: A('s_memrealtime s[100:101]')
        A('s_cmp_ge_u32 s2, 256'); A('s_cbranch_scc1 L_end')
        A('s_lshr_b32 %s, s2, 3' % s(sSLOT))
        A('s_cmp_lt_u32 %s, %d' % (s(sSLOT), c.pref_slots)); A('s_cselect_b32 %s, CODE_SPAN, 0' % s(sT2))
        A('s_getpc_b64 s[%d:%d]' % (sT0, sT1))
        A('v_lshlrev_b32 %s, 7, v0' % v(vT))
        A('v_min_u32 %s, %s, %s' % (v(vT), s(sT2), v(vT)))
        L.append(('global_load_dword %s, %s, s[%d:%d]' % (v(vDUM), v(vT), sT0, sT1), 'pref'))
        A('v_lshrrev_b32 %s, 6, v0' % v(vT)); A('v_and_b32 %s, 63, v0' % v(vL))
        A('v_readfirstlane_b32 %s, %s' % (s(sW), v(vT)))
        A('s_bfe_u32 %s, s2, 0x10002' % s(sBR))
        A('s_and_b32 %s, s2, 3' % s(sRB)); A('s_lshl_b32 %s, %s, 1' % (s(sRB), s(sRB)))
        A('s_lshr_b32 %s, %s, 4' % (s(sT2), s(sSLOT))); A('s_add_u32 %s, %s, %s' % (s(sRB), s(sRB), s(sT2)))
        A('s_and_b32 %s, %s, 15' % (s(sH), s(sSLOT)))
        A('s_mul_i32 %s, %s, 3' % (s(sT2), s(sT2))); A('s_add_u32 %s, %s, %s' % (s(sROT), s(sH), s(sT2)))
        A('s_mul_i32 %s, %s, 37' % (s(sB_), s(sROT))); A('s_lshr_b32 %s, %s, 8' % (s(sB_), s(sB_)))
        A('s_mul_i32 %s, %s, 7' % (s(sB_), s(sB_))); A('s_sub_u32 %s, %s, %s' % (s(sROT), s(sROT), s(sB_)))
        if c.rotmap:
            w = sum(x << (4 * i) for i, x in enumerate(c.rotmap))
            A('s_lshl_b32 %s, %s, 2' % (s(sROT), s(sROT))); A('s_lshr_b32 %s, 0x%x, %s' % (s(sROT), w, s(sROT))); A('s_and_b32 %s, %s, 7' % (s(sROT), s(sROT)))
        A('s_and_b32 %s, %s, %d' % (s(sA), s(sH), c.tswap))
        A('s_lshl_b32 %s, %s, 2' % (s(sB_), s(sRB))); A('s_add_u32 %s, %s, %s' % (s(sB_), s(sB_), s(sW)))
        A('s_lshl1_add_u32 %s, %s, %s' % (s(sB_), s(sB_), s(sA))); A('s_mul_i32 %s, %s, 28672' % (s(sXB), s(sB_)))
        A('s_lshl_b32 %s, %s, 12' % (s(sM0X), s(sW))); A('s_lshl_b32 %s, %s, 10' % (s(sM0W), s(sW)))
        A('s_mul_i32 %s, %s, -57344' % (s(sDT), s(sA))); A('s_add_u32 %s, %s, 28672' % (s(sDT), s(sDT)))
        A('s_cmp_eq_u32 %s, 15' % s(sH)); A('s_cselect_b32 %s, 8, 0' % s(sSH))
        A('s_mul_i32 %s, %s, 56' % (s(sC_), s(sH))); A('s_sub_u32 %s, %s, %s' % (s(sC_), s(sC_), s(sSH)))
        A('s_mul_i32 %s, %s, %d' % (s(sD_), s(sW), 16 * 2688)); A('s_add_u32 %s, %s, %s' % (s(sWB), s(sC_), s(sD_)))
        L += self.offs(0) + self.offs(1)
        t0, t1, t2 = vT2, vT2 + 1, vT2 + 2
        A('v_lshrrev_b32 %s, 3, %s' % (v(t0), v(vL))); A('v_mul_u32_u24 %s, 896, %s' % (v(t0), v(t0)))
        A('v_lshrrev_b32 %s, 4, %s' % (v(t1), v(vL))); A('v_and_b32 %s, 7, %s' % (v(t2), v(vL)))
        A('v_xor_b32 %s, %s, %s' % (v(t2), v(t1), v(t2)))
        A('v_lshl_add_u32 %s, %s, 4, %s' % (v(vXD), v(t2), v(t0)))
        A('v_xor_b32 %s, 4, %s' % (v(t2), v(t2))); A('v_lshl_add_u32 %s, %s, 4, %s' % (v(vXD + 1), v(t2), v(t0)))
        A('v_add_u32 %s, %d, %s' % (v(vXD + 2), 2 * 6144, v(vXD))); A('v_add_u32 %s, %d, %s' % (v(vXD + 3), 3 * 6144, v(vXD + 1)))
        A('v_add_u32 %s, %d, %s' % (v(vXD + 1), 6144, v(vXD + 1)))
        A('v_lshrrev_b32 %s, 2, %s' % (v(t0), v(vL))); A('v_mul_u32_u24 %s, 2688, %s' % (v(t0), v(t0)))
        A('v_and_b32 %s, 3, %s' % (v(t2), v(vL))); A('v_lshl_add_u32 %s, %s, 4, %s' % (v(vWDq), v(t2), v(t0))); A('v_add_u32 %s, 896, %s' % (v(vWD), v(vWDq)))
        A('s_mul_i32 %s, %s, 7168' % (s(sM0K), s(sW)))
        for srd, n in ((SX, 1835008), (SW, 1204224 + 4096), (SWO, 401408), (SWS, WS_BYTES), (SOUT, 3670016)):
            A('s_mov_b32 %s, %d' % (s(srd + 2), n)); A('s_mov_b32 %s, 0x20000' % s(srd + 3))
        A('s_cmp_eq_u32 %s, 0' % s(sBR))
        A('@waitlgkm_all')
        if c.leak == 13: L += self.stamp(13); A('s_cmp_eq_u32 %s, 0' % s(sBR))
        if c.stamps: A('v_writelane_b32 %s, s100, 0' % v(vST)); L += self.stamp(13); A('s_cmp_eq_u32 %s, 0' % s(sBR))
        for (srd, pa, pb) in ((SX, sAX, sBX), (SW, sAW, sBW), (SWO, sAWO, sBWO)):
            A('s_cselect_b32 %s, %s, %s' % (s(srd), s(pa), s(pb))); A('s_cselect_b32 %s, %s, %s' % (s(srd + 1), s(pa + 1), s(pb + 1)))
        A('s_cselect_b32 %s, 0, 25088' % s(SPHI + 2))
        L += self.dma_x(0)
        A('s_sub_u32 %s, %s, 4096' % (s(SW), s(SW))); A('s_subb_u32 %s, %s, 0' % (s(SW + 1), s(SW + 1)))
        L += self.dma_w(0, 1, L_WK, 'wk0') + self.dma_w(1, 1, L_WK, 'wk1', False)
        A('s_mov_b32 %s, %s' % (s(SPHI), s(sPHI))); A('s_mov_b32 %s, %s' % (s(SPHI + 1), s(sPHI + 1))); A('s_mov_b32 %s, 0x20000' % s(SPHI + 3))
        A('v_lshlrev_b32 %s, 4, %s' % (v(vL16), v(vL)))
        A('s_cmp_ge_u32 %s, 2' % s(sW)); A('s_cselect_b32 %s, 0x%x, %s' % (s(sA), OOB, s(sM0W))); A('v_add_u32 %s, %s, %s' % (v(t0), s(sA), v(vL16)))
        A('s_mul_i32 %s, %s, 1568' % (s(sT2), s(sH))); A('s_add_u32 m0, %s, %d' % (s(sM0W), L_MISC))
        L.append(('buffer_load_dwordx4 %s, s[%d:%d], %s offen lds' % (v(t0), SPHI, SPHI + 3, s(sT2)), 'phi'))
        L += self.dma_x(1)
        if c.ws_base: A('s_add_u32 %s, %s, %d' % (s(sWSP), s(sWSP), c.ws_base)); A('s_addc_u32 %s, %s, 0' % (s(sWSP + 1), s(sWSP + 1)))
        for (srd, p) in ((SWS, sWSP), (SOUT, sOUT)):
            A('s_mov_b32 %s, %s' % (s(srd), s(p))); A('s_mov_b32 %s, %s' % (s(srd + 1), s(p + 1)))
        A('v_mov_b32 %s, 0' % v(vZ))
        A('s_or_b32 %s, s2, %s' % (s(sT2), s(sW))); A('s_cmp_eq_u32 %s, 0' % s(sT2)); A('s_cbranch_scc1 L_mknonce')
        A('L_nononce:')
        self.glue(L)
        return L

    def setup(self):
        c = self.cfg; L = []; A = L.append
        t0, t1, t2 = vT2, vT2 + 1, vT2 + 2
        A('v_add_u32 %s, 1792, %s' % (v(vWDv), v(vWDq)))
        A('s_mov_b32 %s, 0' % s(sSPIN))
        A('s_getreg_b32 %s, hwreg(HW_REG_XCC_ID, 0, 4)' % s(sXCC))
        m, hi, t3, t4 = vT2 + 3, vT2 + 4, vT2 + 5, vT2 + 6
        A('s_mul_i32 %s, %s, 98' % (s(sA), s(sSLOT))); A('s_mul_i32 %s, %s, 25' % (s(sB_), s(sW))); A('s_add_u32 %s, %s, %s' % (s(sA), s(sA), s(sB_)))
        A('v_min_u32 %s, 24, %s' % (v(t0), v(vL))); A('v_add_u32 %s, %s, %s' % (v(t0), s(sA), v(t0))); A('v_min_u32 %s, 3135, %s' % (v(t0), v(t0)))
        A('v_lshlrev_b32 %s, 7, %s' % (v(vTCO), v(t0)))
        A('v_and_b32 %s, 31, %s' % (v(m), v(vL))); A('v_lshrrev_b32 %s, 5, %s' % (v(hi), v(vL)))
        A('v_bfe_u32 %s, %s, 1, 3' % (v(t1), v(m))); A('v_xor_b32 %s, %s, %s' % (v(t1), v(t1), v(hi)))
        A('v_lshl_add_u32 %s, %s, 7, %s' % (v(t2), v(m), s(sM0X)))
        for ks in range(4):
            A('v_xor_b32 %s, %d, %s' % (v(t3), 2 * ks, v(t1))); A('v_lshl_add_u32 %s, %s, 4, %s' % (v(vXR + ks), v(t3), v(t2)))
            A('v_add_u32 %s, 0x10000, %s' % (v(vXR2 + ks), v(vXR + ks)))
        A('v_bfe_u32 %s, %s, 2, 2' % (v(t1), v(vL))); A('v_lshlrev_b32 %s, 6, %s' % (v(t2), v(t1)))
        A('v_lshl_add_u32 %s, %s, 9, %s' % (v(t2), v(hi), v(t2)))
        A('v_bfe_u32 %s, %s, 4, 1' % (v(t3), v(vL))); A('v_and_b32 %s, 3, %s' % (v(t4), v(vL)))
        A('v_lshlrev_b32 %s, 3, %s' % (v(t4), v(t4))); A('v_lshl_add_u32 %s, %s, 5, %s' % (v(t4), v(t3), v(t4)))
        A('v_add3_u32 %s, %s, %s, %s' % (v(vWRq), v(t2), v(t4), s(sSH)))
        A('v_add_u32 %s, %d, %s' % (v(vWRk), L_WK, v(vWRq)))
        A('v_xor_b32 %s, %s, %s' % (v(t3), s(sW), v(t1))); A('v_lshl_add_u32 %s, %s, 6, %s' % (v(t4), v(t3), v(t4)))
        A('v_lshl_add_u32 %s, %s, 8, %s' % (v(t4), v(t1), v(t4))); A('v_lshrrev_b32 %s, 4, %s' % (v(t3), v(vL))); A('v_lshl_add_u32 %s, %s, 11, %s' % (v(t4), v(t3), v(t4)))
        A('v_add_u32 %s, %d, %s' % (v(vWO0), L_WO, v(t4)))
        A('s_and_b32 %s, %s, 1' % (s(sA), s(sW))); A('s_lshl_b32 %s, %s, 4' % (s(sA), s(sA))); A('v_xor_b32 %s, %s, %s' % (v(t4), s(sA), v(m)))
        A('s_bitcmp1_b32 %s, 1' % s(sW)); A('s_cselect_b32 %s, 0x80008000, 0' % s(sSGN))
        A('v_lshrrev_b32 %s, 3, %s' % (v(t0), v(t4))); A('v_and_b32 %s, 3, %s' % (v(t1), v(t4)))
        A('v_lshl_add_u32 %s, %s, 2, %s' % (v(t0), v(t0), v(t1)))
        A('v_lshrrev_b32 %s, 4, %s' % (v(t1), v(t4))); A('v_sub_u32 %s, %s, %s' % (v(t0), v(t0), v(t1)))
        A('v_bfe_u32 %s, %s, 2, 1' % (v(t1), v(m))); A('v_mad_u32_u24 %s, %s, 14, %s' % (v(t0), v(t1), v(t0)))
        A('v_and_b32 %s, 11, %s' % (v(t1), v(m))); A('v_cmp_eq_u32 vcc, 11, %s' % v(t1))
        A('v_mov_b32 %s, %d' % (v(t2), L_MISC + 2048))
        A('v_mul_u32_u24 %s, 224, %s' % (v(t3), v(hi))); A('v_lshl_add_u32 %s, %s, 1, %s' % (v(t3), v(t0), v(t3))); A('v_add_u32 %s, %d, %s' % (v(t3), L_MISC, v(t3)))
        A('v_cndmask_b32_e64 %s, %s, %s, vcc' % (v(vT2 + 12), v(t3), v(t2)))
        A('v_cndmask_b32_e64 %s, %s, 63, vcc' % (v(vT2 + 11), v(t0)))
        A('v_cmp_lt_u32_e64 s[%d:%d], 31, %s' % (sHI, sHI + 1, v(vL)))
        A('v_cmp_eq_u32_e64 s[%d:%d], 28, %s' % (sE28, sE28 + 1, v(m)))
        A('v_cndmask_b32_e64 %s, %s, %s, s[%d:%d]' % (v(vT2 + 13), v(vT2 + 12), v(t2), sHI, sHI + 1))
        return L

    def mknonce(self):
        L = ['L_mknonce:', '@assume_idle']; A = L.append
        A('s_load_dwordx2 s[%d:%d], s[%d:%d], 0' % (sT0, sT1, sWSP, sWSP + 1))
        A('@waitlgkm_all')
        A('s_add_u32 %s, %s, 0x9e3679b8' % (s(sT0), s(sT0))); A('s_add_u32 %s, %s, 0x85eaca6a' % (s(sT1), s(sT1)))
        for r in (sT0, sT1):
            A('s_or_b32 %s, %s, 0x00010001' % (s(r), s(r))); A('s_and_b32 %s, %s, 0xbfffbfff' % (s(r), s(r)))
        A('v_mov_b32 %s, %s' % (v(vN), s(sT0))); A('v_mov_b32 %s, %s' % (v(vN + 1), s(sT1)))
        A('s_mov_b64 exec, 1')
        A('global_store_dwordx2 %s, %s, s[%d:%d] sc1' % (v(vZ), v(vN, 2), sDBG, sDBG + 1))
        A('global_store_dwordx2 %s, %s, s[%d:%d] sc1' % (v(vZ), v(vN, 2), sWSP, sWSP + 1))
        A('s_mov_b64 exec, -1'); A('s_branch L_nononce')
        return L

    def setup2(self):
        m, hi, fp, ofs, ofs2 = vT2 + 3, vT2 + 4, vT2 + 11, vT2 + 12, vT2 + 13
        P0 = []
        for t in range(2):
            for j in range(8):
                d = 16 * t + 8 * (j >> 2) + (j & 3)
                P0.append('ds_read_u16 %s, %s offset:%d' % (v(vP + 8 * t + j), v(ofs2 if (t == 1 and j >= 4) else ofs), d * 56))
        def selector(dst, tgt):
            R = []
            x, y, z = vT2 + 8, vT2 + 9, vT2 + 10
            R.append('v_lshrrev_b32 %s, 3, %s' % (v(x), v(tgt))); R.append('v_bfe_u32 %s, %s, 1, 1' % (v(y), v(tgt)))
            R.append('v_lshl_add_u32 %s, %s, 1, %s' % (v(x), v(x), v(y)))
            R.append('v_and_b32 %s, 1, %s' % (v(y), v(tgt))); R.append('v_lshlrev_b32 %s, 4, %s' % (v(y), v(y)))
            R.append('v_mov_b32 %s, 0x3f80' % v(z)); R.append('v_lshlrev_b32 %s, %s, %s' % (v(z), v(y), v(z)))
            R.append('v_bfe_u32 %s, %s, 2, 1' % (v(y), v(tgt))); R.append('v_cmp_eq_u32 vcc, %s, %s' % (v(y), v(hi)))
            R.append('v_cndmask_b32_e64 %s, 15, %s, vcc' % (v(x), v(x)))
            mk = [sN0, sHI + 0, sPB - 1, sN0]
            for i in range(8):
                r = (sN0, sT0)[i & 1]
                R.append('v_cmp_eq_u32_e64 s[%d:%d], %d, %s' % (r, r + 1, i, v(x)))
                R.append('v_cndmask_b32_e64 %s, 0, %s, s[%d:%d]' % (v(dst + i), v(z), r, r + 1))
            return R
        P1 = selector(vID, m)
        P2 = selector(vE, fp)
        P2 += ['v_mov_b32 %s, 0x3fb8aa3b' % v(vC),
               'v_bfe_u32 %s, %s, 3, 2' % (v(vT2 + 8), v(vL)), 'v_and_b32 %s, 7, %s' % (v(vPRE), v(vL)), 'v_lshlrev_b32 %s, 7, %s' % (v(vPRE), v(vPRE)), 'v_lshl_add_u32 %s, %s, 14, %s' % (v(vPRE), v(vT2 + 8), v(vPRE)),
               's_lshl_b32 %s, %s, 3' % (s(sGID), s(sBR)), 's_add_u32 %s, %s, %s' % (s(sGID), s(sGID), s(sRB)),
               's_and_b32 %s, %s, 3' % (s(sCB), s(sH)), 's_lshr_b32 %s, %s, 2' % (s(sRQ), s(sH)),
               's_lshl_b32 %s, %s, 4' % (s(sT3), s(sGID)), 's_add_u32 %s, %s, %s' % (s(sPB), s(sT3), s(sH)),
               's_lshl2_add_u32 %s, %s, %s' % (s(sT3), s(sGID), s(sW)), 's_lshl_b32 %s, %s, 6' % (s(sT3), s(sT3)), 's_add_u32 %s, %s, %s' % (s(sT3), s(sT3), s(sH)), 's_lshl_b32 %s, %s, 10' % (s(sOBX), s(sT3)),
               's_add_u32 %s, %s, %d' % (s(sOBX), s(sOBX), WS_O),
               's_and_b32 %s, %s, %d' % (s(sOB1), s(sH), self.cfg.tswap), 's_lshl_b32 %s, %s, 15' % (s(sOB1), s(sOB1)), 's_add_u32 %s, %s, %s' % (s(sOB1), s(sOB1), s(sOBX)),
               's_lshl_b32 %s, %s, 9' % (s(sT3), s(sGID)), 's_add_u32 %s, %s, %d' % (s(sT3), s(sT3), WS_FLAG),
               's_lshl_b32 %s, %s, 7' % (s(sFLW), s(sW)), 's_add_u32 %s, %s, %s' % (s(sFLW), s(sFLW), s(sT3)),
               's_lshl_b32 %s, %s, 7' % (s(sFLG), s(sRQ)), 's_add_u32 %s, %s, %s' % (s(sFLG), s(sFLG), s(sT3))]
        A = P2.append; t0, t1, t2 = vT2 + 8, vT2 + 9, vT2 + 10
        A('v_lshrrev_b32 %s, 4, %s' % (v(t0), v(vL))); A('v_bfe_u32 %s, %s, 2, 2' % (v(t1), v(vL))); A('v_xor_b32 %s, %s, %s' % (v(t1), v(t1), v(t0)))
        A('v_mul_u32_u24 %s, 896, %s' % (v(t0), v(t0))); A('v_lshl_add_u32 %s, %s, 6, %s' % (v(t0), v(t1), v(t0)))
        A('v_and_b32 %s, 3, %s' % (v(t2), v(vL))); A('v_lshl_add_u32 %s, %s, 4, %s' % (v(t0), v(t2), v(t0)))
        A('s_cmp_eq_u32 %s, 3' % s(sCB)); A('s_cselect_b32 %s, 1, 3' % s(sT3))
        A('v_cmp_lt_u32 vcc, %s, %s' % (s(sT3), v(t1))); A('v_mov_b32 %s, 0x%x' % (v(t2), OOB))
        A('v_cndmask_b32_e64 %s, %s, %s, vcc' % (v(vWOD), v(t0), v(t2)))
        A('s_lshl_b32 %s, %s, 3' % (s(sRECA), s(sPB))); A('s_add_u32 %s, %s, %d' % (s(sRECA), s(sRECA), WS_XCC))
        A('v_cmp_eq_u32 vcc, 0, %s' % v(vL)); A('v_and_b32 %s, 1, %s' % (v(t0), v(vL))); A('v_and_b32 %s, 2, %s' % (v(t1), v(vL)))
        A('v_cndmask_b32_e64 %s, %s, 0, vcc' % (v(vT), v(t2)))
        A('v_cmp_ne_u32_e64 s[%d:%d], 0, %s' % (sM1, sM1 + 1, v(t0))); A('v_cmp_ne_u32_e64 s[%d:%d], 0, %s' % (sM2, sM2 + 1, v(t1)))
        A('s_lshl1_add_u32 %s, %s, 1' % (s(sSET), s(sBR))); A('s_and_b32 %s, %s, %s' % (s(sSET), s(sSET), s(sW)))
        A('s_lshl_b32 %s, %s, 4' % (s(sT3), s(sBR))); A('s_add_u32 %s, %s, %s' % (s(sT3), s(sT3), s(sH))); A('s_lshl2_add_u32 %s, %s, %s' % (s(sT3), s(sT3), s(sSET)))
        A('s_lshl_b32 %s, %s, 13' % (s(sT3), s(sT3))); A('s_add_u32 %s, %s, %d' % (s(sPL0), s(sT3), WS_PART)); A('s_add_u32 %s, %s, 4096' % (s(sPL1), s(sPL0)))
        A('s_lshl_b32 %s, %s, 10' % (s(sT3), s(sRB))); A('s_add_u32 %s, %s, %s' % (s(sPX), s(sPL0), s(sT3))); A('s_lshl_b32 %s, %s, 10' % (s(sSET), s(sSET)))
        A('s_and_b32 %s, %s, 0xffffff80' % (s(sRECL), s(sRECA))); A('s_add_u32 %s, %s, %d' % (s(sSCR), s(sM0X), L_SCR))
        return P0, P1, P2

    def dma_x(self, i):
        L = ['s_add_u32 m0, %s, %d' % (s(sM0X), (i % 6) * 16384)]
        if i >= 7: L.append('s_add_u32 %s, %s, %s' % (s(sXO + i - 7), s(sXO + i - 7), s(sDT)))
        for j in range(4):
            L.append(('buffer_load_dwordx4 %s, s[%d:%d], %s offen offset:%d %s lds' % (v(vXD + j), SX, SX + 3, s(sXO + i % 7), 1024 * j, self.cfg.xfl), 'x%d' % i))
        return L
    def dma_w(self, i, part, base, tag, m0=True):
        L = ['s_add_u32 m0, %s, %d' % (s(sM0K), base + (i & 4) * 1024)] if m0 else []
        return L + [('buffer_load_dwordx4 %s, s[%d:%d], %s offen offset:%d %s lds' % (v((vWDq, vWD, vWDv)[part]), SW, SW + 3, s(sWO_ + i), 1024 * (i & 3), self.cfg.wfl), tag)]
    def xfrag(self, i, ks, tile): return aX + ((i * 4 + ks) * 2 + tile) * 4
    def wread(self, slot, basev, off):
        r = aWR + 4 * (slot % 8)
        return ['ds_read_b64_tr_b16 %s, %s offset:%d' % (a(r + 2 * u, 2), v(basev), off + 256 * u) for u in range(2)]

    def xiter(self, i, extra=()):
        R = []; A = R.append
        ch, tile, sl = i % 7, i // 7, i % 6
        wk = ' ' + self.cfg.wkbar[i] if i in self.cfg.wkbar else ''
        A('@waitvm x%d' % i + wk)
        if wk: A('s_barrier')
        if i == 0: R += self.stamp(1)
        for ks in range(4):
            R += self.wread(4 * i + ks, vWRk, ch * 1024 + ks * 7168)
            R.append(('ds_read_b128 %s, %s offset:%d' % (a(self.xfrag(ch, ks, tile), 4), v((vXR2 if sl >= 4 else vXR) + ks), (sl & 3) * 16384), 'xr%d' % i))
        D = self.cfg.depth
        if i + D < 14:
            if i + D >= 6: A('@waitlgkm xr%d' % (i + D - 6))
            R += self.dma_x(i + D)
        R += self.touches(i)
        R += extra
        for ks in range(4):
            R.append((mfma(vK + 16 * tile, a(aWR + 4 * ((4 * i + ks) % 8), 4), a(self.xfrag(ch, ks, tile), 4), None if (ch == 0 and ks == 0) else vK + 16 * tile), 'kk'))
        return R
    def part1(self):
        P = self.setup2()
        R = []
        for i in range(2, 7): R += self.offs(i)
        W = lambda i: self.dma_w(i, 1, L_WK, 'wk%d' % i)
        su = self.setup() + P[2]
        R = su + self.touches('a') + R if 'a' in self.cfg.touch else R
        X = lambda i: self.dma_x(i) if i < self.cfg.depth else []
        late = {}
        for tok in self.cfg.order0.split():
            if '@' in tok:
                tok, at = tok.split('@'); late.setdefault(int(at), []).extend(W(int(tok[1])))
            else: R += W(int(tok[1])) if tok[0] == 'w' else X(int(tok[1]))
        R += ([] if 'a' in self.cfg.touch else su) + P[1]
        pk = []
        for u in range(8): pk += ['v_lshl_or_b32 %s, %s, 16, %s' % (v(vPH + u), v(vP + 2 * u + 1), v(vP + 2 * u)), 'v_xor_b32 %s, %s, %s' % (v(vPH + u), s(sSGN), v(vPH + u))]
        for i in range(7): R += self.xiter(i, late.get(i, []) + (P[0] + pk if i == 1 else []))
        return self.sched(R, 'part1')

    def gemm(self, acc, basev, off, transposed, first_slot, hooks=None, tiles=(0, 1), lead=False):
        L = []; hooks = hooks or {}
        for k in range(28):
            L += hooks.get(k, [])
            w = a(aWR + 4 * ((first_slot + k) % 8), 4)
            L += self.wread(first_slot + k, basev, off + (k >> 2) * 1024 + (k & 3) * 7168)
            for tile in tiles:
                x = a(self.xfrag(k // 4, k % 4, tile), 4)
                L.append((mfma(acc + 16 * tile, w if transposed else x, x if transposed else w, None if k == 0 else acc + 16 * tile), 'lead' if (lead and tile == 0) else None))
        return L

    def pack(self, r, n=8): return ['v_cvt_pk_bf16_f32 %s, %s, %s' % (v(r + u), v(r + 2 * u), v(r + 2 * u + 1)) for u in range(n)]
    def zero_hi_pads(self, r): return ['v_cndmask_b32_e64 %s, %s, 0, s[%d:%d]' % (v(r + u), v(r + u), sHI, sHI + 1) for u in (6, 7)]

    def softmax(self, p, ep, en, tmp, pk):
        L = []; A = L.append
        Z, T, S1, S2 = tmp, tmp + 2, tmp + 4, tmp + 6
        VAL = [0, 1, 2, 3, 4, 5, 6, 8, 9, 10, 11, 12, 13, 14]
        if pk:
            for r in (ep + 7, ep + 15, en + 7, en + 15): A('v_mov_b32 %s, 0' % v(r))
        for (d, sg) in ((Z, ''), (T, '-')):
            A('v_max3_f32 %s, %s%s, %s%s, %s%s' % (v(d), sg, v(p), sg, v(p + 1), sg, v(p + 2)))
            A('v_max3_f32 %s, %s%s, %s%s, %s%s' % (v(d + 1), sg, v(p + 8), sg, v(p + 9), sg, v(p + 10)))
            for (x, y) in ((3, 4), (5, 6)): A('v_max3_f32 %s, %s, %s%s, %s%s' % (v(d), v(d), sg, v(p + x), sg, v(p + y)))
            for (x, y) in ((11, 12), (13, 14)): A('v_max3_f32 %s, %s, %s%s, %s%s' % (v(d + 1), v(d + 1), sg, v(p + x), sg, v(p + y)))
            A('v_max_f32 %s, %s, %s' % (v(d), v(d), v(d + 1)))
        A('v_permlane32_swap_b32 %s, %s' % (v(Z), v(T))); A('v_max_f32 %s, %s, %s' % (v(Z), v(Z), v(T)))
        A('v_mul_f32 %s, %s, %s' % (v(Z), v(vC), v(Z))); A('v_mov_b32 %s, %s' % (v(T), v(Z)))
        A('v_permlane32_swap_b32 %s, %s' % (v(Z), v(T)))
        for (e, z, ng) in ((ep, Z, 0), (en, T, 1)):
            for u in VAL:
                if pk and u not in (6, 14):
                    if u & 1 == 0: A('v_pk_fma_f32 %s, %s, %s, %s op_sel_hi:[1,0,0] neg_lo:[%d,0,1] neg_hi:[%d,0,1]' % (v(e + u, 2), v(p + u, 2), v(vC, 2), v(z, 2), ng, ng))
                else: A('v_fma_f32 %s, %s%s, %s, -%s' % (v(e + u), '-' if ng else '', v(p + u), v(vC), v(z)))
                A('v_exp_f32 %s, %s' % (v(e + u), v(e + u)))
        for (e, S, z) in ((ep, S1, Z), (en, S2, T)):
            if pk:
                A('v_pk_add_f32 %s, %s, %s' % (v(S, 2), v(e, 2), v(e + 2, 2)))
                for u in (4, 6, 8, 10, 12, 14): A('v_pk_add_f32 %s, %s, %s' % (v(S, 2), v(S, 2), v(e + u, 2)))
            else:
                A('v_add_f32 %s, %s, %s' % (v(S), v(e), v(e + 1))); A('v_add_f32 %s, %s, %s' % (v(S + 1), v(e + 8), v(e + 9)))
                for u in range(2, 7):
                    A('v_add_f32 %s, %s, %s' % (v(S), v(S), v(e + u))); A('v_add_f32 %s, %s, %s' % (v(S + 1), v(S + 1), v(e + 8 + u)))
            A('v_add_f32 %s, %s, %s' % (v(S), v(S), v(S + 1)))
        A('v_permlane32_swap_b32 %s, %s' % (v(S1), v(S2))); A('v_add_f32 %s, %s, %s' % (v(S1), v(S1), v(S2)))
        A('v_rcp_f32 %s, %s' % (v(S1), v(S1))); A('v_mov_b32 %s, %s' % (v(S2), v(S1)))
        A('v_permlane32_swap_b32 %s, %s' % (v(S1), v(S2)))
        for (e, z) in ((ep, S1), (en, S2)):
            for u in range(8):
                if pk: A('v_pk_mul_f32 %s, %s, %s op_sel_hi:[1,0]' % (v(e + 2 * u, 2), v(e + 2 * u, 2), v(z, 2)))
                else:
                    for k in range(1 if u in (3, 7) else 2): A('v_mul_f32 %s, %s, %s' % (v(e + 2 * u + k), v(e + 2 * u + k), v(z)))
                A('v_cvt_pk_bf16_f32 %s, %s, %s' % (v(e + u), v(e + 2 * u), '0' if (u in (3, 7) and not pk) else v(e + 2 * u + 1)))
        return L

    def elu1(self, p, e, pads, pk):
        L = []; A = L.append
        for u in range(0, 16, 2):
            n = 1 if (pads and u in (6, 14)) else 2
            if pk and n == 2: A('v_pk_mul_f32 %s, %s, %s op_sel_hi:[1,0]' % (v(e + u, 2), v(p + u, 2), v(vC, 2)))
            for k in range(n):
                if not (pk and n == 2): A('v_mul_f32 %s, %s, %s' % (v(e + u + k), v(vC), v(p + u + k)))
                A('v_exp_f32_e64 %s, %s clamp' % (v(e + u + k), v(e + u + k)))
                A('v_max_f32 %s, 0x358637bd, %s' % (v(p + u + k), v(p + u + k)))
                if not (pk and n == 2): A('v_add_f32 %s, %s, %s' % (v(e + u + k), v(e + u + k), v(p + u + k)))
            if pk and n == 2: A('v_pk_add_f32 %s, %s, %s' % (v(e + u, 2), v(e + u, 2), v(p + u, 2)))
            A('v_cvt_pk_bf16_f32 %s, %s, %s' % (v(e + u // 2), v(e + u), v(e + u + 1) if n == 2 else '0'))
        return L

    def nonce_load(self): return [('global_load_dwordx2 %s, %s, s[%d:%d] sc1' % (v(vN, 2), v(vZ), sDBG, sDBG + 1), 'nonce')]
    def use_nonce(self, br):
        L = []; A = L.append
        t0, t1 = vXR2, vXR2 + 1
        A('v_readfirstlane_b32 %s, %s' % (s(sN0), v(vN))); A('v_readfirstlane_b32 %s, %s' % (s(sN1), v(vN + 1)))
        A('v_cndmask_b32_e64 %s, %s, %s, s[%d:%d]' % (v(t0), v(vN), v(vN + 1), sM2, sM2 + 1))
        A('v_lshlrev_b32 %s, 16, %s' % (v(t1), v(t0))); A('v_and_b32 %s, 0xffff0000, %s' % (v(t0), v(t0)))
        A('v_cndmask_b32_e64 %s, %s, %s, s[%d:%d]' % (v(vTAG), v(t1), v(t0), sM1, sM1 + 1))
        if br == 'A': A('v_and_b32 %s, %s, %s' % (v(vTAG), s(sXB), v(vTAG)))
        A('s_and_b32 %s, %s, 0xfffffff0' % (s(sROT), s(sN1))); A('s_or_b32 %s, %s, %s' % (s(sREC), s(sXCC), s(sROT)))
        A('v_mov_b32 %s, %s' % (v(vN + 1), s(sREC)))
        L.append(('buffer_store_dwordx2 %s, %s, s[%d:%d], %s offen sc1' % (v(vN, 2), v(vT), SWS, SWS + 3, s(sRECA)), 'side'))
        return L
    def nonce_chk(self, br):
        return ['L_nonce_chk%s:' % br, 's_min_u32 %s, %s, %s' % (s(sT2), s(sN0), s(sN1)), 's_cmp_eq_u32 %s, 0' % s(sT2), 's_cbranch_scc1 L_nonce_retry%s' % br]
    def nonce_retry(self, br):
        return ['L_nonce_retry%s:' % br, '@assume_idle', 's_sleep 1'] + SPIN + self.nonce_load() + self.use_nonce(br) + ['s_branch L_nonce_chk%s' % br]
    def side_loads(self):
        c = self.cfg
        L = []
        L += self.touches('p2')
        if not any('p' in x for x in c.touch.values()): L.append(('buffer_load_dword %s, %s, s[%d:%d], %s offen %s' % (v(vDUM), v(vPRE), SWS, SWS + 3, s(sOBX), c.prefl), 'pre'))
        L += [('buffer_load_dword %s, %s, s[%d:%d], %s offen %s' % (v(vDUM), v(vZ), SWS, SWS + 3, s(sFLW), c.prefl), 'side')]
        return L

    def middle(self, br):
        c = self.cfg; B = br == 'B'; NT = 2 if B else 1
        L = []; A = L.append
        R = []; A = R.append
        if not B:
            for i in range(8): A('v_mov_b32 %s, %s' % (v(vPH + i), v(vE + i)))
            A('s_cmp_ge_u32 %s, 2' % s(sW)); A('s_cselect_b32 %s, 0, -1' % s(sXB))
        tn = lambda tile, sg: (vP if sg == 0 else vK) + 16 * tile
        def featk(tile):
            X = self.pack(vK + 16 * tile) + self.zero_hi_pads(vK + 16 * tile)
            for t in range(2):
                k4 = v(vK + 16 * tile + 4 * t, 4); w4 = v(vPH + 4 * t, 4)
                X.append((mfma(vP + 16 * tile, w4 if B else k4, k4 if B else w4, None if t == 0 else vP + 16 * tile), 'hi'))
            X += self.softmax(vP + 16 * tile, vE + 32 * tile, vE + 32 * tile + 16, vT2 + 8 * tile, False) if B else self.elu1(vP + 16 * tile, vE + 32 * tile, False, False)
            if B:
                for sg in range(2):
                    for t in range(2):
                        X.append((mfma(tn(tile, sg), v(vE + 32 * tile + 16 * sg + 4 * t, 4), v(vID + 4 * t, 4), None if t == 0 else tn(tile, sg)), 'hi2' if tile else 'hi3'))
                    X += self.pack(tn(tile, sg))
            return X
        wv = []
        for k in range(7): wv += self.dma_w(k, 2, L_WV, 'wv%d' % k, k in (0, 4))
        R += featk(0)
        for i in range(7, 14): R += self.xiter(i, wv if i == max(7, 13 - c.depth) else ())
        if c.stamps and not c.lite: R.append(('s_memtime s[%d:%d]' % (SX + 2, SX + 3), 'nowait'))
        R += featk(1)
        wq = self.nonce_load()
        for k in range(7): wq += self.dma_w(k, 0, L_WQ, 'wq%d' % k, k in (0, 4))
        wq += ([] if c.pre_q else self.side_loads()) + self.use_nonce(br)
        hooks = {}; k0 = 0
        for k1 in c.wv_bar:
            hooks[4 * k0] = ['@waitvm wv%d' % (k1 - 1), 's_barrier'] + (wq if k0 == 0 else []); k0 = k1
        R += self.gemm(vV, vWRk, L_WV - L_WK, False, 0, hooks, lead=True)
        A('v_mov_b32 %s, 0x3f803f80' % v(vXR2 + 3))
        for tile in range(2):
            R += self.pack(vV + 16 * tile)
            for u in range(8): A('v_cndmask_b32_e64 %s, %s, %s, s[%d:%d]' % (v(vV + 16 * tile + u), v(vV + 16 * tile + u), v(vXR2 + 3), sE28, sE28 + 1))
        for tile in range(2):
            for sg in reversed(range(NT)):
                src = tn(tile, sg) if B else vE + 32 * tile
                for t in range(2):
                    A(mfma(vKV + 16 * sg, v(src + 4 * t, 4), v(vV + 16 * tile + 4 * t, 4), None if (tile == 0 and t == 0) else vKV + 16 * sg))
        t0, t1, t2 = vXR, vXR + 1, vXR2 + 2
        A('v_add_u32 %s, %s, %s' % (v(t0), s(sSCR), v(vL16)))
        for q in ((4, 5, 6, 7, 2, 3) if B else range(4)): A('ds_write_b128 %s, %s offset:%d' % (v(t0), v(vKV + 4 * q, 4), 16384 * (q >> 2) + 1024 * (q & 3)))
        for d in range(1, 4): A('v_xor_b32 %s, %d, %s' % (v(t0 + d), 4096 * d, v(t0)))
        if not B:
            A('s_cmp_ge_u32 %s, 2' % s(sW)); A('s_cselect_b32 %s, 0x%x, 0' % (s(sA), OOB)); A('v_add_u32 %s, %s, %s' % (v(t2), s(sA), v(vL16)))
        A('v_mov_b32 %s, 0xffff' % v(vXD))
        if c.thr: L += ['s_lshr_b32 %s, 0x2a54, %s' % (s(sT2), s(sH)), 's_bitcmp0_b32 %s, 0' % s(sT2), 's_cselect_b64 vcc, -1, 0']
        L += self.throttle(self.sched(R, 'phase2' + br, boost={'hi': 9000, 'kk': 12000, 'lead': 5000, 'hi2': c.hi2, 'hi3': c.hi2 + c.t0boost}, tight=c.p2_tight), br)
        if c.stamps and not c.lite: L += ['@waitlgkm_all', 'v_writelane_b32 %s, %s, 2' % (v(vST), s(SX + 2))]
        L += self.stamp(3)
        g0 = len(L)
        L += self.nonce_chk(br)
        A = L.append
        A('@waitlgkm_all'); A('s_barrier')
        for d in range(1, 4):
            for hf in range(2): A('ds_read_b128 %s, %s offset:%d' % (v(vV + 8 * d + 4 * hf, 4), v(t0 + d), (16384 * (d >> 1) if B else 0) + 2048 * (d & 1) + 1024 * hf))
        for d in range(1, 4):
            for u in range(0, 8, 2): A('v_pk_add_f32 %s, %s, %s' % (v(vKV + u, 2), v(vKV + u, 2), v(vV + 8 * d + u, 2)))
        L += self.pack(vKV, 4)
        A('v_bfi_b32 %s, %s, %s, %s' % (v(vKV + 3), v(vXD), v(vKV + 3), v(vTAG)))
        L.append(('buffer_store_dwordx4 %s, %s, s[%d:%d], %s offen sc1' % (v(vKV, 4), v(vL16 if B else t2), SWS, SWS + 3, s(sPX)), 'pst'))
        L += self.stamp(4)
        L += ['s_getpc_b64 s[%d:%d]' % (sTAB, sTAB + 1), 'L_pc%s:' % br, 's_add_u32 %s, %s, L_tab - L_pc%s' % (s(sTAB), s(sTAB), br), 's_addc_u32 %s, %s, 0' % (s(sTAB + 1), s(sTAB + 1))]
        A('@waitvm wq6'); A('s_barrier')
        self.glue(L[g0:])
        R = []; A = R.append
        t0, t1, t2 = vXR, vXR + 1, vXR + 2
        A('v_add_u32 %s, 2560, %s' % (v(vXD + 1), v(vWOD))); A('v_xor_b32 %s, 32, %s' % (v(vXD + 3), v(vWOD)))
        A('v_add_u32 %s, 5120, %s' % (v(vXD + 2), v(vXD + 3))); A('v_add_u32 %s, 7680, %s' % (v(vXD + 3), v(vXD + 3)))
        A('s_mul_i32 %s, %s, 14336' % (s(sWOS), s(sW))); A('s_lshl_b32 %s, %s, 8' % (s(sA), s(sCB))); A('s_add_u32 %s, %s, %s' % (s(sWOS), s(sWOS), s(sA)))
        A('v_and_b32 %s, 15, %s' % (v(vXR + 3), v(vL))); A('v_lshlrev_b32 %s, 3, %s' % (v(vXR + 3), v(vXR + 3)))
        wo_block = self.wo_block
        if c.pre_q: R += self.side_loads()
        for m in range(c.wo_before): R += wo_block(m)
        npart = len(R); R += self.part_loads(br)
        for m in range(c.wo_before, c.wo_mid): R += wo_block(m)
        tabs = self.table_loads()
        tm = c.q_tm and B
        if not tm: R += self.gemm(vK, vWRq, L_WQ, True, 4)
        for tile in range(2):
            if tm: R += self.gemm(vK, vWRq, L_WQ, True, 4 + 28 * tile, tiles=(tile,))
            R += self.pack(vK + 16 * tile) + self.zero_hi_pads(vK + 16 * tile)
            for t in range(2):
                R.append((mfma(vP + 16 * tile, v(vPH + 4 * t, 4), v(vK + 16 * tile + 4 * t, 4), None if t == 0 else vP + 16 * tile), 'hi' if tile == 0 else None))
        for tile in range(2):
            pk = not (tm and tile == 0)
            R += self.softmax(vP + 16 * tile, vE + 32 * tile, vE + 32 * tile + 16, vT2 + 8 * tile, pk) if B else self.elu1(vP + 16 * tile, vE + 32 * tile, True, True)
        if c.tab_late: late0 = tabs; tabs = []
        else: late0 = []
        L += self.sched(R + tabs, 'q' + br, release={npart: c.rel_part if B else c.rel_partA}, boost={'hi': 4000}, tight=c.q_tight)
        L += self.stamp(6)
        A = L.append
        A('@waitvm part'); self.glue(L[-1:])
        L += self.stamp(5)
        A('L_part_chk%s:' % br)
        R = []; A = R.append
        G0 = vKV
        for p in range(8): A(mfma(vV, v(vID, 4), v(G0 + 4 * p, 4), None if p == 0 else vV))
        x, z, y = vT2, vT2 + 1, vT2 + 12
        A('v_max3_u32 %s, %s, %s, %s' % (v(x), v(G0 + 3), v(G0 + 7), v(G0 + 11))); A('v_min3_u32 %s, %s, %s, %s' % (v(y), v(G0 + 3), v(G0 + 7), v(G0 + 11)))
        A('v_max3_u32 %s, %s, %s, %s' % (v(x), v(x), v(G0 + 15), v(G0 + 19))); A('v_min3_u32 %s, %s, %s, %s' % (v(y), v(y), v(G0 + 15), v(G0 + 19)))
        A('v_max3_u32 %s, %s, %s, %s' % (v(x), v(x), v(G0 + 23), v(G0 + 27))); A('v_min3_u32 %s, %s, %s, %s' % (v(y), v(y), v(G0 + 23), v(G0 + 27)))
        A('v_max_u32 %s, %s, %s' % (v(x), v(x), v(G0 + 31))); A('v_min_u32 %s, %s, %s' % (v(y), v(y), v(G0 + 31)))
        A('v_xor_b32 %s, %s, %s' % (v(x), v(x), v(vTAG))); A('v_xor_b32 %s, %s, %s' % (v(y), v(y), v(vTAG)))
        A('v_or_b32 %s, %s, %s' % (v(x), v(x), v(y))); A('v_lshrrev_b32 %s, 16, %s' % (v(x), v(x)))
        A('v_xor_b32 %s, %s, %s' % (v(y), s(sN0), v(vN))); A('v_xor_b32 %s, %s, %s' % (v(z), s(sREC), v(vN + 1)))
        A('v_cmp_ne_u32_e64 s[%d:%d], 0, %s' % (sFAR, sFAR + 1, v(z)))
        A('v_lshrrev_b32 %s, 4, %s' % (v(z), v(z))); A('v_or3_b32 %s, %s, %s, %s' % (v(x), v(x), v(y), v(z)))
        A('v_cmp_ne_u32 vcc, 0, %s' % v(x))
        A('v_add_u32 %s, %s, %s' % (v(y), s(sSET), v(vL16))); A('v_add_u32 %s, %d, %s' % (v(y), L_MISC, v(y)))
        for q in range(1, 2 * NT): A('v_xor_b32 %s, %d, %s' % (v(y + q), 1024 * q, v(y)))
        L += self.sched(R, 'sum' + br)
        A = L.append
        A('s_cbranch_vccnz L_part_retry%s' % br)
        late = list(late0)
        for m in range(c.wo_mid, c.wo_imp): late += wo_block(m)
        nl = c.late0
        L += late[:nl]
        L += self.pack(vV, 4)
        A('v_and_b32 %s, 0xffff, %s' % (v(vV + 3), v(vV + 3)))
        if not B: A('s_add_u32 %s, %s, %d' % (s(sT2), s(sM0W), L_MISC)); A('v_add_u32 %s, %s, %s' % (v(x), s(sT2), v(vL16)))
        A('ds_write_b128 %s, %s' % (v(y), v(vV, 4)) if B else 'ds_write_b128 %s, %s offset:%d' % (v(x), v(vV, 4), 0))
        A('@waitlgkm_all'); A('s_barrier')
        self.glue(L[-nl - 9:])
        R = []; A = R.append
        R += late[nl:]
        early = self.wo_reads()[:3 + 8 * c.wo_early]
        for q in range(2 * NT): A('ds_read_b128 %s, %s' % (v(vV + 16 + 4 * q, 4), v(y + q)))
        for tile in range(2):
            for q in range(2 * NT):
                A(mfma(vP + 16 * tile, v(vV + 16 + 4 * q, 4), v(vE + 32 * tile + 16 * (q >> 1) + 4 * (q & 1), 4), None if q == 0 else vP + 16 * tile))
        for tile in range(2):
            P = vP + 16 * tile; d = vT2 + 4 + 4 * tile
            A('v_mov_b32 %s, %s' % (v(d), v(P + 12))); A('v_permlane32_swap_b32 %s, %s' % (v(P + 12), v(d)))
            A('v_add_f32 %s, 0x358637bd, %s' % (v(d), v(d))); A('v_rcp_f32 %s, %s' % (v(d), v(d)))
            for u in range(8):
                if tile: A('v_pk_mul_f32 %s, %s, %s op_sel_hi:[1,0]' % (v(P + 2 * u, 2), v(P + 2 * u, 2), v(d, 2)))
                else:
                    for k in range(2): A('v_mul_f32 %s, %s, %s' % (v(P + 2 * u + k), v(P + 2 * u + k), v(d)))
                A('v_cvt_pk_bf16_f32 %s, %s, %s' % (v(P + u), v(P + 2 * u), v(P + 2 * u + 1)))
            R += self.zero_hi_pads(P)
        A('v_mov_b32 %s, %s' % (v(vN), s(sN0))); A('v_mov_b32 %s, %s' % (v(vN + 1), s(sN1)))
        A('s_lshl_b32 %s, %s, 3' % (s(sT2), s(sH))); A('s_add_u32 %s, %s, %s' % (s(sC_), s(sFLW), s(sT2))); A('s_xor_b32 %s, %s, 32768' % (s(sOBX), s(sOB1))); A('s_add_u32 %s, %s, 16384' % (s(sA), s(sOB1))); A('s_add_u32 %s, %s, 16384' % (s(sB_), s(sOBX)))
        L += self.sched(R + early, 'o' + br, lowds={id(x) for x in early})
        L += self.stamp(7)
        A = L.append
        if c.force_global: A('s_branch L_far')
        A('s_cmp_lg_u64 s[%d:%d], 0' % (sFAR, sFAR + 1)); A('s_cbranch_scc1 L_far')
        return L
    def publish(self, fl):
        c = self.cfg; L = []
        for tile in range(2):
            for t in range(2):
                L.append(('buffer_store_dwordx4 %s, %s, s[%d:%d], %s offen %s' % (v(vP + 16 * tile + 4 * t, 4), v(vL16), SWS, SWS + 3, s(((sOB1, sA), (sOBX, sB_))[tile][t]), fl), 'ost'))
        for m in range(c.wo_imp, 7 - c.wo_g3): L += self.wo_block(m)
        L += self.p3_setup()
        L = self.sched(L, 'pub')
        L += ['@waitvm ost']
        L.append('buffer_store_dwordx2 %s, %s, s[%d:%d], %s offen %s' % (v(vN, 2), v(vT), SWS, SWS + 3, s(sC_), fl))
        return L
    def wo_block(self, m, tag='wo'):
        X = ['s_add_u32 m0, %s, %d' % (s(sM0X), L_WO + 16384 * m)]
        if m: X.append('s_add_u32 %s, %s, %d' % (s(sWOS), s(sWOS), 57344))
        return X + [('buffer_load_dwordx4 %s, s[%d:%d], %s offen offset:%d %s lds' % (v(vXD + j if j else vWOD), SWO, SWO + 3, s(sWOS), 1024 * j, self.cfg.wofl), tag) for j in range(4)]
    def part_loads(self, br):
        L = [('buffer_load_dwordx2 %s, %s, s[%d:%d], %s offen sc1' % (v(vN, 2), v(vXR + 3), SWS, SWS + 3, s(sRECL)), 'rec')]
        for p in range(8):
            L.append(('buffer_load_dwordx4 %s, %s, s[%d:%d], %s offen offset:%d sc1' % (v(vKV + 4 * p, 4), v(vL16 if br == 'B' else vXR2 + 2), SWS, SWS + 3, s(sPL1 if p >= 4 else sPL0), 1024 * (p & 3)), 'part'))
        return L
    def part_retry(self, br):
        P = self.part_loads(br)
        L = ['L_part_retry%s:' % br, '@assume_idle', '@waitvm_all'] + SPIN + [P[0]]
        for p in range(8):
            L += ['v_xor_b32 %s, %s, %s' % (v(vT2), v(vKV + 4 * p + 3), v(vTAG)), 'v_cmp_lt_u32 vcc, 0xffff, %s' % v(vT2), 's_cbranch_vccz L_got%s%d' % (br, p), (P[1 + p][0], 'untracked'), 'L_got%s%d:' % (br, p)]
        return L + ['@waitvm_all', 's_branch L_part_chk%s' % br]
    def far(self):
        return ['L_far:', '@assume_idle', '@waitvm_all', 's_nop 4'] + self.publish('sc1') + ['s_branch L_join']
    def wo_reads(self):
        b = [vWO0, vWO0 + 1, vXR2, vXR2 + 1]
        L = ['v_xor_b32 %s, 32, %s' % (v(b[1]), v(b[0])), 'v_add_u32 %s, 0x10000, %s' % (v(b[2]), v(b[0])), 'v_add_u32 %s, 0x10000, %s' % (v(b[3]), v(b[1]))]
        for k in range(14):
            for nt in range(2):
                for i in range(2):
                    off = (32 * k + 4 * i) * 256
                    L.append('ds_read_b64_tr_b16 %s, %s offset:%d' % (a(8 * k + 4 * nt + 2 * i, 2), v(b[nt + 2 * (off >> 16)]), off & 0xffff))
        return L

    def p3_setup(self):
        L = []; A = L.append
        A('s_lshl_b32 %s, %s, 2' % (s(sT2), s(sRB))); A('s_add_u32 %s, %s, %s' % (s(sT2), s(sT2), s(sRQ))); A('s_mul_i32 %s, %s, %d' % (s(sD_), s(sT2), 64 * 1792))
        A('s_mul_i32 %s, %s, 896' % (s(sT2), s(sBR))); A('s_add_u32 %s, %s, %s' % (s(sD_), s(sD_), s(sT2)))
        A('s_lshl_b32 %s, %s, 2' % (s(sT2), s(sCB))); A('s_add_u32 %s, %s, %s' % (s(sT2), s(sT2), s(sW)))
        A('s_cmp_ge_u32 %s, 14' % s(sT2)); A('s_cselect_b32 %s, 0x%x, 0' % (s(sA), OOB))
        A('s_lshl_b32 %s, %s, 6' % (s(sT2), s(sT2))); A('s_add_u32 %s, %s, %s' % (s(sXO), s(sD_), s(sT2)))
        for b in range(1, 4): A('s_add_u32 %s, %s, %d' % (s(sXO + b), s(sXO), b * 16 * 1792))
        t0, t1, t2 = vT2 + 10, vT2 + 11, vT2 + 12
        A('s_lshl_b32 %s, %s, 12' % (s(sB_), s(sW))); A('s_add_u32 %s, %s, %d' % (s(sB_), s(sB_), L_OT))
        A('v_and_b32 %s, 15, %s' % (v(t0), v(vL))); A('v_lshlrev_b32 %s, 4, %s' % (v(vS16), v(t0))); A('v_lshl_add_u32 %s, %s, 6, %s' % (v(t0), v(t0), s(sB_)))
        A('v_bfe_u32 %s, %s, 4, 1' % (v(t1), v(vL))); A('v_lshl_add_u32 %s, %s, 3, %s' % (v(t0), v(t1), v(t0)))
        A('v_bfe_u32 %s, %s, 1, 2' % (v(t1), v(vL))); A('v_lshrrev_b32 %s, 5, %s' % (v(t2), v(vL))); A('v_xor_b32 %s, %s, %s' % (v(t1), v(t1), v(t2)))
        A('v_lshl_add_u32 %s, %s, 4, %s' % (v(vOW), v(t1), v(t0))); A('v_xor_b32 %s, 32, %s' % (v(vOW + 1), v(vOW)))
        A('v_bfe_u32 %s, %s, 3, 2' % (v(t1), v(vL))); A('v_xor_b32 %s, %s, %s' % (v(t1), v(t1), v(vL))); A('v_and_b32 %s, 3, %s' % (v(t1), v(t1)))
        A('v_lshrrev_b32 %s, 2, %s' % (v(t0), v(vL))); A('v_lshl_add_u32 %s, %s, 6, %s' % (v(t2), v(t0), s(sB_))); A('v_lshl_add_u32 %s, %s, 4, %s' % (v(vOR), v(t1), v(t2)))
        A('v_mul_u32_u24 %s, 1792, %s' % (v(t0), v(t0))); A('v_and_b32 %s, 3, %s' % (v(t1), v(vL))); A('v_lshl_add_u32 %s, %s, 4, %s' % (v(t0), v(t1), v(t0)))
        A('v_add_u32 %s, %s, %s' % (v(vOG), s(sA), v(t0)))
        for r in vOF: A('v_add_u32 %s, %s, %s' % (v(r), v(r), v(vS16)))
        A('s_lshl2_add_u32 %s, %s, %s' % (s(sT2), s(sGID), s(sRQ))); A('s_lshl2_add_u32 %s, %s, %s' % (s(sT2), s(sT2), s(sW)))
        A('s_lshl_b32 %s, %s, 14' % (s(sT2), s(sT2))); A('s_add_u32 %s, %s, %d' % (s(sD_), s(sT2), WS_O))
        A('s_lshl_b32 %s, %s, 14' % (s(sWOM), s(sW))); A('s_mov_b32 m0, %s' % s(sWOM))
        return L
    def table_loads(self):
        L = ['v_and_b32 %s, 0x300, %s' % (v(vWRk), v(vL16)), 'v_lshrrev_b32 %s, 2, %s' % (v(vWRk), v(vWRk))]
        for q in range(4): L.append(('global_load_dwordx%d %s, %s, s[%d:%d] offset:%d' % (4 if q < 3 else 2, v(vOF[4 * q], 4 if q < 3 else 2), v(vWRk), sTAB, sTAB + 1, 16 * q), 'tab'))
        return L
    def table(self):
        T = []
        for g in range(4):
            for r in range(16):
                h, u = divmod(8 * (r >> 1) + 2 * g + (r & 1), 7)
                T.append(h * 1024 + (u >> 2) * 16384 + (u & 1) * 512 + ((u >> 1) & 1) * 8)
        return ['.p2align 6', '.type L_tab,@object', 'L_tab:'] + ['.long %d' % x for x in T] + ['.size L_tab, 256']

    def tail(self):
        c = self.cfg
        L = ['L_pub:'] + self.publish(''); A = L.append
        A('L_join:')
        L += self.stamp(8)
        g3 = 7 - c.wo_g3
        poll = 'buffer_load_dwordx2 %s, %s, s[%d:%d], %s offen sc1' % (v(vT2, 2), v(vXR + 3), SWS, SWS + 3, s(sFLG))
        assert c.wo_early >= 2
        A('@waitvm wo'); A(poll); A('@waitlgkm_all'); A('s_barrier'); L += self.wo_reads()[3 + 8 * c.wo_early:3 + 8 * g3]
        A('L_poll:')
        A('v_xor_b32 %s, %s, %s' % (v(vT2), s(sN0), v(vT2))); A('v_xor_b32 %s, %s, %s' % (v(vT2 + 1), s(sN1), v(vT2 + 1)))
        A('v_or_b32 %s, %s, %s' % (v(vT2), v(vT2), v(vT2 + 1))); A('v_cmp_ne_u32 vcc, 0, %s' % v(vT2)); A('s_cbranch_vccnz L_repoll')
        self.repoll = ['L_repoll:', '@assume_idle'] + SPIN + [poll, '@waitvm_all', 's_branch L_poll']
        L += self.stamp(9)
        od = []
        for h in range(16):
            if h and h % 4 == 0: od += ['s_add_u32 m0, %s, %d' % (s(sWOM), 1024 * h), 's_add_u32 %s, %s, 4096' % (s(sD_), s(sD_))]
            od.append(('buffer_load_dwordx4 %s, s[%d:%d], %s offen offset:%d sc1 lds' % (v(vL16), SWS, SWS + 3, s(sD_), 1024 * (h & 3)), 'o%d' % h))
        assert c.o_first % 4 == 0
        nf = [i for i, x in enumerate(od) if isinstance(x, tuple)][c.o_first - 1] + 1
        L += od[:nf]
        M16 = 'v_mfma_f32_16x16x32_bf16'
        st = {'have': -1}
        def gate(k):
            X = []; h = (8 * k + 7) // 7
            need = min(x for x in c.stages if x >= h)
            wg = k % 2 == 0 and k // 2 >= g3
            if st['have'] < need or wg:
                X = ['@waitvm o%d' % need + (' wog%d' % (k // 2) if wg else ''), 's_barrier']; st['have'] = max(need, st['have'])
            return X
        def rd(k, sg, i): return 'ds_read_b64 %s, %s offset:%d' % (v(vE + 4 * ((4 * k + sg) % 12) + 2 * i, 2), v(vOF[2 * (k % 7) + i]), (k // 7) * 8192 + (sg >> 1) * 32768 + (sg & 1) * 256)
        rds = lambda k: [rd(k, sg, i) for sg in range(4) for i in range(2)]
        later = od[nf:]
        for m in range(g3, 7): later += self.wo_block(m, 'wog%d' % m)
        L += gate(0) + rds(0) + gate(1)
        for k in range(14):
            fill = []
            if k + 2 < 14:
                L += gate(k + 2); fill = (rds(1) if k == 0 else []) + rds(k + 2)
                if (k + 2) % 2 == 0 and (k + 2) // 2 >= g3: fill = interleave(fill, self.wo_reads()[3 + 4 * (k + 2):3 + 4 * (k + 2) + 8])
            per = -(-len(fill) // 8)
            if k == 13: lastk = len(L)
            for j in range(8):
                sg, nt = j >> 1, j & 1
                d = v(vK + 8 * sg + 4 * nt, 4)
                L.append('%s %s, %s, %s, %s' % (M16, d, a(8 * k + 4 * nt, 4), v(vE + 4 * ((4 * k + sg) % 12), 4), d if k else '0'))
                if later and k and j % c.g3_every == 0:
                    while not isinstance(later[0], tuple): L.append(later.pop(0))
                    L.append(later.pop(0))
                L += fill[per * j:per * (j + 1)]
        assert not later
        R = L[lastk:]; del L[lastk:]
        L += self.stamp(10)
        A = R.append
        for sg in range(4):
            for nt in range(2):
                d = vK + 8 * sg + 4 * nt
                R += self.pack(d, 2)
                A('ds_write_b64 %s, %s offset:%d' % (v(vOW + nt), v(d, 2), 1024 * sg))
            A('ds_read_b128 %s, %s offset:%d' % (v(vP + 4 * sg, 4), v(vOR), 1024 * sg))
            A('buffer_store_dwordx4 %s, %s, s[%d:%d], %s offen %s' % (v(vP + 4 * sg, 4), v(vOG), SOUT, SOUT + 3, s(sXO + sg), c.outfl))
        L += self.sched(R, 'out')
        A = L.append
        if c.stamps:
            L += self.stamp(11)
            A('s_memrealtime s[%d:%d]' % (sT0, sT1)); A('@waitlgkm_all')
            A('v_writelane_b32 %s, %s, 12' % (v(vST), s(sT0)))
            A('s_lshl_b32 %s, s2, 2' % s(sT2)); A('s_add_u32 %s, %s, %s' % (s(sT2), s(sT2), s(sW))); A('s_lshl_b32 %s, %s, 8' % (s(sT2), s(sT2)))
            A('s_add_u32 %s, %s, %d' % (s(sT2), s(sT2), WS_STAMP))
            A('v_lshlrev_b32 %s, 2, %s' % (v(vT), v(vL)))
            for k in range(4): A('v_writelane_b32 %s, s%d, %d' % (v(vST), 12 + 2 * k, 32 + k))
            A('buffer_store_dword %s, %s, s[%d:%d], %s offen' % (v(vST), v(vT), SWS, SWS + 3, s(sT2)))
        if c.leak:
            if c.leak == 11: L += self.stamp(11)
            A('s_memrealtime s[100:101]'); A('s_lshl_b32 s11, s11, 2'); A('@waitlgkm_all')
            A('L_leak:'); A('s_memrealtime s[%d:%d]' % (sT0, sT1)); A('@waitlgkm_all'); A('s_sub_u32 %s, %s, s100' % (s(sT0), s(sT0))); A('s_cmp_lt_u32 %s, s11' % s(sT0)); A('s_cbranch_scc1 L_leak')
        if c.tfix:
            A('L_tfix:'); A('s_memrealtime s[%d:%d]' % (sT0, sT1)); A('@waitlgkm_all'); A('s_sub_u32 %s, %s, s100' % (s(sT0), s(sT0))); A('s_cmp_lt_u32 %s, %d' % (s(sT0), c.tfix)); A('s_cbranch_scc1 L_tfix')
        A('L_end:'); A('s_endpgm')
        return L

    def throttle(self, L, br):
        c = self.cfg
        if not c.thr: return L
        out = []; seen = set()
        for x in L:
            if isinstance(x, tuple) and x[1] is not None and x[1] not in seen and x[1] in c.thr_tags:
                if x[1] != 'wq': seen.add(x[1])
                n = self.nthr; self.nthr += 1
                out += ['s_cbranch_vccnz L_thr%d' % n, 'L_thb%d:' % n]
                self.thr_side += ['L_thr%d:' % n, 's_waitcnt vmcnt(%d)' % c.thr, 's_branch L_thb%d' % n]
            out.append(x)
        return out
    def marks(self, L):
        if not self.cfg.marks: return L
        out = []; seen = set()
        for x in L:
            t = x[0] if isinstance(x, tuple) else x
            hit = [k for k, (p, af) in enumerate(self.cfg.marks) if (t == p or t.startswith(p + ' ')) and k not in seen]
            for k in hit:
                if not self.cfg.marks[k][1]: out.append(('s_memtime s[%d:%d]' % (12 + 2 * k, 13 + 2 * k), 'nowait'))
            out.append(x)
            for k in hit:
                if self.cfg.marks[k][1]: out.append(('s_memtime s[%d:%d]' % (12 + 2 * k, 13 + 2 * k), 'nowait'))
                seen.add(k)
        return out
    def build(self):
        shared = self.prologue() + self.part1() + self.stamp(14) + ['s_cmp_eq_u32 %s, 0' % s(sBR), 's_cbranch_scc1 L_brA']
        MK = '.set MARK_A, 0'
        M0 = copy.deepcopy(self.M)
        main = finalize(self.marks(shared + self.middle('B') + self.tail()))
        self.M = M0
        alt = finalize(self.marks(shared + [MK, 'L_brA:'] + self.middle('A') + self.publish('') + ['s_branch L_join']))
        alt = alt[alt.index(MK) + 1:]
        side = finalize(self.repoll + self.far() + self.mknonce() + self.nonce_retry('B') + self.nonce_retry('A') + self.part_retry('B') + self.part_retry('A'))
        return main, alt, side + self.thr_side + self.table()

HEADER = open(os.path.join(os.path.dirname(os.path.abspath(__file__)), 'header.txt')).read()

def generate(cfg):
    import emit
    emit.MERGE = cfg.merge
    import sched
    sched.BURST = cfg.burst; sched.HOLD = cfg.hold
    g = G(cfg)
    main, alt, side = g.build()
    body = main + alt + side
    txt = HEADER
    if cfg.extra_empty:
        txt += '; @launch kernel=%s grid=(256,1,1) block=(256,1,1) lds=163840\n; @launch kernel=empty_kernel grid=(256,1,1) block=(256,1,1) lds=0\n' % KNAME
    else:
        txt += '; @launch grid=(256,1,1) block=(256,1,1) lds=163840\n'
    txt += '.amdgcn_target "amdgcn-amd-amdhsa--gfx950"\n.text\n.globl %s\n.p2align 8\n.type %s,@function\n%s:\n' % (KNAME, KNAME, KNAME)
    txt += '\n'.join(('' if l.endswith(':') else '    ') + l for l in body) + '\n'
    if cfg.extra_empty:
        txt += '.globl empty_kernel\n.p2align 8\n.type empty_kernel,@function\nempty_kernel:\n    s_endpgm\n'
        txt += '.section .rodata,"a"\n.p2align 6\n.amdhsa_kernel empty_kernel\n  .amdhsa_next_free_vgpr 8\n  .amdhsa_next_free_sgpr 16\n  .amdhsa_accum_offset 8\n  .amdhsa_group_segment_fixed_size 0\n  .amdhsa_kernarg_size 80\n  .amdhsa_user_sgpr_count 2\n  .amdhsa_user_sgpr_kernarg_segment_ptr 1\n  .amdhsa_system_sgpr_workgroup_id_x 1\n.end_amdhsa_kernel\n'
    txt += '.section .rodata,"a"\n.p2align 6\n.amdhsa_kernel %s\n' % KNAME
    txt += '  .amdhsa_next_free_vgpr 512\n  .amdhsa_next_free_sgpr 102\n  .amdhsa_accum_offset 256\n  .amdhsa_group_segment_fixed_size 0\n'
    txt += '  .amdhsa_kernarg_size 80\n  .amdhsa_user_sgpr_count 2\n  .amdhsa_user_sgpr_kernarg_segment_ptr 1\n  .amdhsa_system_sgpr_workgroup_id_x 1\n.end_amdhsa_kernel\n'
    import subprocess, tempfile, re
    d = tempfile.mkdtemp()
    open(d + '/a.s', 'w').write(txt.replace('CODE_SPAN', '0x5000'))
    r = subprocess.run(['clang', '-x', 'assembler', '-target', 'amdgcn-amd-amdhsa', '-mcpu=gfx950', '-c', d + '/a.s', '-o', d + '/a.o'], capture_output=True, text=True)
    if r.returncode: raise Exception(r.stderr[:3000])
    r = subprocess.run(['llvm-readelf', '-S', d + '/a.o'], capture_output=True, text=True).stdout
    size = int(re.search(r'\.text\s+PROGBITS\s+\w+\s+\w+\s+(\w+)', r).group(1), 16)
    assert size < 32768 + 64
    sys.stderr.write('code bytes: %d\n' % size)
    return txt.replace('CODE_SPAN', hex(size - 64))

if __name__ == '__main__':
    cfg = Cfg()
    out = sys.argv[1]
    for kv in sys.argv[2:]:
        k, val = kv.split('=', 1); assert hasattr(cfg, k), k; setattr(cfg, k, eval(val))
    open(out, 'w').write(generate(cfg))
```

```python
import sys, os
from emit import finalize, interleave
from sched import schedule, Machine
import copy

KNAME = 'concat_heads__linear_attn_block__linear_kernel_hedgehog__prompt_kernel'

class Cfg:
    stamps = False; lite = False; fine = None; frange = (0, 1); marks = None; leak = None; tfix = 0; extra_empty = False; force_global = False; verbose = False
    rotmap = None; rottab = None; tswap = 0; pref_slots = 2
    xfl = ''; wfl = ''; wofl = ''; outfl = 'sc1'; prefl = 'sc1'; tfl = ''
    touch = {"p2": "o"}
    wv_bar = (1, 2, 4, 7); hi2 = 6000; q_tm = True
    rel_part = 1800; rel_partA = 2400; rel_nonce = 0
    wo_before = 2; wo_mid = 2; wo_imp = 4; wo_g3 = 1; tab_late = True; q_tight = False; p2_tight = False; wo_early = 2; late0 = 6; pre_q = False; ws_base = 0
    stages = (3, 5, 7, 11, 15); g3_every = 2; o_first = 8
    dslat = 130; merge = 24; burst = 24; hold = 12
    miss = {}; lines = {}
    wv_early = 0; wv_at = 7
    wq_pre = 7
    fake_n2 = False
    wq_at = 0
    align = 4
    thr = 0; thr_tags = ['x11', 'x12', 'x13', 'wv0', 'wv1', 'wv2', 'wv3', 'wv4', 'wv5', 'wv6', 'wq']
    depth = 4; order0 = 'w2 w3 x2 w4 x3 w5 w6 x4 x5'; wkbar = {0: 'wk1 phi', 2: 'wk3', 4: 'wk6'}; t0boost = 2000
    rate = 2.2; cap = 256; lat = 400; fifo = 4; wlines = 90; cold = 900; pmiss = 900; smiss = 1000

WS_XCC, WS_FLAG, WS_PART, WS_O, WS_STAMP = 4096, 8192, 65536, 2 << 20, 16 << 20
WS_BYTES = 32 << 20
L_WK, L_WV, L_MISC, L_WQ, L_WO, L_SCR, L_OT = 98304, 126976, 155648, 0, 32768, 32768, 65536
OOB = 0x40000000
sAX, sAW, sAWO, sBX, sBW, sPHI, sBWO, sOUT, sDBG, sWSP = 4, 6, 8, 10, 12, 14, 16, 18, 20, 22
SX, SW, SWO, SPHI, SWS, SOUT = 24, 28, 32, 36, 40, 44
sBR, sRB, sH, sW, sGID, sSLOT, sT0, sT1, sT2, sXCC = 48, 49, 50, 51, 52, 53, 54, 55, 56, 57
sN0, sN1 = 58, 59
sHI, sE28 = 60, 62
sXO, sWO_ = 64, 72
sSPIN, sFAR = 71, 72
sM0X, sM0W, sSH, sCB, sRQ, sPB = 80, 81, 82, 83, 84, 85
sA, sB_, sC_, sD_ = 86, 87, 88, 89
sOB1, sWOM, sDT, sROT, sXB, sWB, sOBX, sFLG, sT3, sREC, sRECA = 90, 91, 92, 93, 94, 95, 96, 97, 98, 99, 79
sM0K = 3
sPX, sPL0, sPL1, sSET, sRECL, sSCR = 4, 5, 6, 7, 8, 9
sWOS, sTAB = sXCC, SX
sFLW = sSLOT
sSGN = sSH
sM1, sM2 = SPHI, SPHI + 2
SPIN = ['s_add_u32 s71, s71, 1', 's_cmp_gt_u32 s71, 0x100000', 's_cbranch_scc1 L_end']
vL = 1
vXD, vWD, vWRq, vWRk, vZ = 2, 6, 7, 8, 9
vXR, vXR2 = 10, 14
vDUM, vT = 18, 19
vPH, vID, vC, vST, vN = 20, 28, 36, 37, 38
vK, vV, vP, vE, vKV, vT2 = 40, 72, 104, 136, 200, 232
vTAG, vL16 = 248, 249
vWO0, vWOD = 250, 252
vWDq, vWDv = 253, 251
vTCH, vTCO, vPRE = None, 254, 255
vS16, vOW, vOR, vOG = vT2 + 3, vT2 + 4, vT2 + 8, vT2 + 9
vOF = list(range(20, 28)) + list(range(32, 36)) + [254, 255]
aX, aWR = 0, 224

def v(r, n=1): return 'v%d' % r if n == 1 else 'v[%d:%d]' % (r, r + n - 1)
def a(r, n=1): return 'a%d' % r if n == 1 else 'a[%d:%d]' % (r, r + n - 1)
def s(r, n=1): return 's%d' % r if n == 1 else 's[%d:%d]' % (r, r + n - 1)
MF = 'v_mfma_f32_32x32x16_bf16'
def mfma(d, x, y, c): return '%s %s, %s, %s, %s' % (MF, v(d, 16), x, y, v(c, 16) if c is not None else '0')

class G:
    def __init__(self, cfg):
        self.cfg = c = cfg; self.npc = 0; self.nthr = 0; self.thr_side = []
        self.M = Machine(c.rate, c.cap, c.lat, fifo=c.fifo, lines={'wk': c.wlines, 'wv': c.wlines, 'wq': c.wlines, 'phi': 13, 'touch': 100, 'pre': 128, 'nonce': 4, 'side': 4, 'pref': 4, 'tab': 4, 'rec': 8},
                         miss={'x0': c.cold, 'nonce': 500, 'part': c.pmiss, 'rec': c.pmiss, 'pre': 600, 'touch': 400, 'pst': c.smiss, 'side': 500, 'ost': 250})
        self.M.miss.update(c.miss); self.M.lines.update(c.lines)
    def stamp(self, k):
        if self.cfg.leak == k: return ['@waitlgkm_all', 's_memrealtime s[%d:%d]' % (sT0, sT1), '@waitlgkm_all', 's_sub_u32 s11, %s, s100' % s(sT0)]
        if not self.cfg.stamps or (self.cfg.lite and k not in (11, 13)): return []
        return ['@waitlgkm_all', 's_memtime s[%d:%d]' % (sT0, sT1), 's_memrealtime s[100:101]', '@waitlgkm_all', 'v_writelane_b32 %s, %s, %d' % (v(vST), s(sT0), k),
                'v_writelane_b32 %s, s100, %d' % (v(vST), 16 + k)]
    def sched(self, L, name, **kw): return self.fine(schedule(self.M, L, verbose=name if self.cfg.verbose else False, dslat=self.cfg.dslat, **kw), name)
    def glue(self, L): return self.M.run(L)
    def fine(self, L, name):
        if not self.cfg.fine or not name.startswith(self.cfg.fine): return L
        out = []; n = len(L); lo, hi = [int(f * n) for f in self.cfg.frange]; pos = {lo + (k * (hi - lo)) // 3: k for k in range(4)}
        for i, x in enumerate(L + [None]):
            if i in pos: out.append(('s_memtime s[%d:%d]' % (12 + 2 * pos[i], 13 + 2 * pos[i]), 'nowait'))
            if x is not None: out.append(x)
        T = [self.M.times[i] for i in sorted(pos)]
        sys.stderr.write('model %s: %s\n' % (name, [b - a for a, b in zip(T[:-1], T[1:])]))
        if self.cfg.verbose:
            for i, k in pos.items(): sys.stderr.write('  fine %s %d at %d: %s\n' % (name, k, i, L[i]))
        return out

    def offs(self, i):
        L = ['s_lshl_b32 %s, %s, 7' % (s(sD_), s(sROT)), 's_add_u32 %s, %s, %s' % (s(sXO + i), s(sXB), s(sD_)),
             's_mul_i32 %s, %s, %d' % (s(sD_), s(sROT), 64 * 2688), 's_add_u32 %s, %s, %s' % (s(sD_), s(sWB), s(sD_)), 's_add_u32 %s, %s, %d' % (s(sWO_ + i), s(sD_), 4096 - 1024 * (i & 3))]
        if i < 6: L += ['s_add_u32 %s, %s, 1' % (s(sROT), s(sROT)), 's_cmp_eq_u32 %s, 7' % s(sROT), 's_cselect_b32 %s, 0, %s' % (s(sROT), s(sROT))]
        return L
    def touches(self, pos):
        L = []
        for w in self.cfg.touch.get(pos, ''):
            if w == 'p': L.append(('buffer_load_dword %s, %s, s[%d:%d], %s offen %s' % (v(vDUM), v(vPRE), SWS, SWS + 3, s(sOBX), self.cfg.prefl), 'pre'))
            else: L += self.touch(w)
        return L
    def touch(self, what):
        c = self.cfg
        if what == 'o': return [('buffer_load_dword %s, %s, s[%d:%d], 0 offen %s' % (v(vDUM), v(vTCO), SWO, SWO + 3, c.tfl), 'touch')]
        return [('buffer_load_dword %s, %s, s[%d:%d], 0 offen offset:%d %s' % (v(vDUM), v(vTCH), SW, SW + 3, {'q': 0, 'v': 1792}[what], c.tfl), 'touch')]

    def prologue(self):
        c = self.cfg; L = []; A = L.append
        A('s_load_dwordx16 s[4:19], s[0:1], 0')
        A('s_load_dwordx4 s[20:23], s[0:1], 64')
        if c.stamps or c.tfix or c.leak: A('s_memrealtime s[100:101]')
        A('s_cmp_ge_u32 s2, 256'); A('s_cbranch_scc1 L_end')
        A('s_lshr_b32 %s, s2, 3' % s(sSLOT))
        A('s_cmp_lt_u32 %s, %d' % (s(sSLOT), c.pref_slots)); A('s_cselect_b32 %s, CODE_SPAN, 0' % s(sT2))
        A('s_getpc_b64 s[%d:%d]' % (sT0, sT1))
        A('v_lshlrev_b32 %s, 7, v0' % v(vT))
        A('v_min_u32 %s, %s, %s' % (v(vT), s(sT2), v(vT)))
        L.append(('global_load_dword %s, %s, s[%d:%d]' % (v(vDUM), v(vT), sT0, sT1), 'pref'))
        A('v_lshrrev_b32 %s, 6, v0' % v(vT)); A('v_and_b32 %s, 63, v0' % v(vL))
        A('v_readfirstlane_b32 %s, %s' % (s(sW), v(vT)))
        A('s_bfe_u32 %s, s2, 0x10002' % s(sBR))
        A('s_and_b32 %s, s2, 3' % s(sRB)); A('s_lshl_b32 %s, %s, 1' % (s(sRB), s(sRB)))
        A('s_lshr_b32 %s, %s, 4' % (s(sT2), s(sSLOT))); A('s_add_u32 %s, %s, %s' % (s(sRB), s(sRB), s(sT2)))
        A('s_and_b32 %s, %s, 15' % (s(sH), s(sSLOT)))
        if c.rottab:
            w = sum(x << (4 * i) for i, x in enumerate(c.rottab))
            A('s_mov_b32 %s, 0x%x' % (s(sN0), w & 0xffffffff)); A('s_mov_b32 %s, 0x%x' % (s(sN1), w >> 32)); A('s_lshl_b32 %s, %s, 2' % (s(sROT), s(sH)))
            A('s_lshr_b64 s[%d:%d], s[%d:%d], %s' % (sN0, sN1, sN0, sN1, s(sROT))); A('s_and_b32 %s, %s, 7' % (s(sROT), s(sN0)))
            A('s_mul_i32 %s, %s, 3' % (s(sT2), s(sT2))); A('s_add_u32 %s, %s, %s' % (s(sROT), s(sROT), s(sT2)))
            A('s_sub_u32 %s, %s, 7' % (s(sB_), s(sROT))); A('s_cselect_b32 %s, %s, %s' % (s(sROT), s(sROT), s(sB_)))
        else:
            A('s_mul_i32 %s, %s, 3' % (s(sT2), s(sT2))); A('s_add_u32 %s, %s, %s' % (s(sROT), s(sH), s(sT2)))
            A('s_mul_i32 %s, %s, 37' % (s(sB_), s(sROT))); A('s_lshr_b32 %s, %s, 8' % (s(sB_), s(sB_)))
            A('s_mul_i32 %s, %s, 7' % (s(sB_), s(sB_))); A('s_sub_u32 %s, %s, %s' % (s(sROT), s(sROT), s(sB_)))
        if c.rotmap:
            w = sum(x << (4 * i) for i, x in enumerate(c.rotmap))
            A('s_lshl_b32 %s, %s, 2' % (s(sROT), s(sROT))); A('s_lshr_b32 %s, 0x%x, %s' % (s(sROT), w, s(sROT))); A('s_and_b32 %s, %s, 7' % (s(sROT), s(sROT)))
        A('s_and_b32 %s, %s, %d' % (s(sA), s(sH), c.tswap))
        A('s_lshl_b32 %s, %s, 2' % (s(sB_), s(sRB))); A('s_add_u32 %s, %s, %s' % (s(sB_), s(sB_), s(sW)))
        A('s_lshl1_add_u32 %s, %s, %s' % (s(sB_), s(sB_), s(sA))); A('s_mul_i32 %s, %s, 28672' % (s(sXB), s(sB_)))
        if c.fake_n2:
            A('s_lshr_b32 %s, %s, 3' % (s(sB_), s(sH))); A('s_mul_i32 %s, %s, 14336' % (s(sB_), s(sB_))); A('s_add_u32 %s, %s, %s' % (s(sXB), s(sXB), s(sB_)))
        A('s_lshl_b32 %s, %s, 12' % (s(sM0X), s(sW))); A('s_lshl_b32 %s, %s, 10' % (s(sM0W), s(sW)))
        A('s_mul_i32 %s, %s, -57344' % (s(sDT), s(sA))); A('s_add_u32 %s, %s, 28672' % (s(sDT), s(sDT)))
        A('s_cmp_eq_u32 %s, 15' % s(sH)); A('s_cselect_b32 %s, 8, 0' % s(sSH))
        A('s_mul_i32 %s, %s, 56' % (s(sC_), s(sH))); A('s_sub_u32 %s, %s, %s' % (s(sC_), s(sC_), s(sSH)))
        if c.fake_n2:
            A('s_and_b32 %s, %s, 7' % (s(sC_), s(sH))); A('s_mul_i32 %s, %s, 112' % (s(sC_), s(sC_))); A('s_min_u32 %s, %s, 768' % (s(sC_), s(sC_)))
        A('s_mul_i32 %s, %s, %d' % (s(sD_), s(sW), 16 * 2688)); A('s_add_u32 %s, %s, %s' % (s(sWB), s(sC_), s(sD_)))
        L += self.offs(0) + self.offs(1)
        t0, t1, t2 = vT2, vT2 + 1, vT2 + 2
        A('v_lshrrev_b32 %s, 3, %s' % (v(t0), v(vL))); A('v_mul_u32_u24 %s, 896, %s' % (v(t0), v(t0)))
        A('v_lshrrev_b32 %s, 4, %s' % (v(t1), v(vL))); A('v_and_b32 %s, 7, %s' % (v(t2), v(vL)))
        A('v_xor_b32 %s, %s, %s' % (v(t2), v(t1), v(t2)))
        A('v_lshl_add_u32 %s, %s, 4, %s' % (v(vXD), v(t2), v(t0)))
        A('v_xor_b32 %s, 4, %s' % (v(t2), v(t2))); A('v_lshl_add_u32 %s, %s, 4, %s' % (v(vXD + 1), v(t2), v(t0)))
        A('v_add_u32 %s, %d, %s' % (v(vXD + 2), 2 * 6144, v(vXD))); A('v_add_u32 %s, %d, %s' % (v(vXD + 3), 3 * 6144, v(vXD + 1)))
        A('v_add_u32 %s, %d, %s' % (v(vXD + 1), 6144, v(vXD + 1)))
        A('v_lshrrev_b32 %s, %d, %s' % (v(t0), 3 if c.fake_n2 else 2, v(vL))); A('v_mul_u32_u24 %s, 2688, %s' % (v(t0), v(t0)))
        A('v_and_b32 %s, %d, %s' % (v(t2), 7 if c.fake_n2 else 3, v(vL))); A('v_lshl_add_u32 %s, %s, 4, %s' % (v(vWDq), v(t2), v(t0))); A('v_add_u32 %s, 896, %s' % (v(vWD), v(vWDq)))
        A('s_mul_i32 %s, %s, 7168' % (s(sM0K), s(sW)))
        if c.fake_n2:
            for r, o in ((vV + 30, 896), (vKV + 31, 1792), (vKV + 30, 0)): A('v_add_u32 %s, %d, %s' % (v(r), 8 * 2688 + o, v(vWDq)))
        for srd, n in ((SX, 1835008), (SW, 1204224 + 4096), (SWO, 401408), (SWS, WS_BYTES), (SOUT, 3670016)):
            A('s_mov_b32 %s, %d' % (s(srd + 2), n)); A('s_mov_b32 %s, 0x20000' % s(srd + 3))
        A('s_cmp_eq_u32 %s, 0' % s(sBR))
        A('@waitlgkm_all')
        if c.leak == 13: L += self.stamp(13); A('s_cmp_eq_u32 %s, 0' % s(sBR))
        if c.stamps: A('v_writelane_b32 %s, s100, 0' % v(vST)); L += self.stamp(13); A('s_cmp_eq_u32 %s, 0' % s(sBR))
        for (srd, pa, pb) in ((SX, sAX, sBX), (SW, sAW, sBW), (SWO, sAWO, sBWO)):
            A('s_cselect_b32 %s, %s, %s' % (s(srd), s(pa), s(pb))); A('s_cselect_b32 %s, %s, %s' % (s(srd + 1), s(pa + 1), s(pb + 1)))
        A('s_cselect_b32 %s, 0, 25088' % s(SPHI + 2))
        L += self.dma_x(0)
        A('s_sub_u32 %s, %s, 4096' % (s(SW), s(SW))); A('s_subb_u32 %s, %s, 0' % (s(SW + 1), s(SW + 1)))
        L += self.dma_w(0, 1, L_WK, 'wk0') + self.dma_w(1, 1, L_WK, 'wk1', False)
        A('s_mov_b32 %s, %s' % (s(SPHI), s(sPHI))); A('s_mov_b32 %s, %s' % (s(SPHI + 1), s(sPHI + 1))); A('s_mov_b32 %s, 0x20000' % s(SPHI + 3))
        A('v_lshlrev_b32 %s, 4, %s' % (v(vL16), v(vL)))
        A('s_cmp_ge_u32 %s, 2' % s(sW)); A('s_cselect_b32 %s, 0x%x, %s' % (s(sA), OOB, s(sM0W))); A('v_add_u32 %s, %s, %s' % (v(t0), s(sA), v(vL16)))
        A('s_mul_i32 %s, %s, 1568' % (s(sT2), s(sH))); A('s_add_u32 m0, %s, %d' % (s(sM0W), L_MISC))
        L.append(('buffer_load_dwordx4 %s, s[%d:%d], %s offen lds' % (v(t0), SPHI, SPHI + 3, s(sT2)), 'phi'))
        L += self.dma_x(1)
        if c.ws_base: A('s_add_u32 %s, %s, %d' % (s(sWSP), s(sWSP), c.ws_base)); A('s_addc_u32 %s, %s, 0' % (s(sWSP + 1), s(sWSP + 1)))
        for (srd, p) in ((SWS, sWSP), (SOUT, sOUT)):
            A('s_mov_b32 %s, %s' % (s(srd), s(p))); A('s_mov_b32 %s, %s' % (s(srd + 1), s(p + 1)))
        A('v_mov_b32 %s, 0' % v(vZ))
        A('s_or_b32 %s, s2, %s' % (s(sT2), s(sW))); A('s_cmp_eq_u32 %s, 0' % s(sT2)); A('s_cbranch_scc1 L_mknonce')
        A('L_nononce:')
        self.glue(L)
        return L

    def setup(self):
        c = self.cfg; L = []; A = L.append
        t0, t1, t2 = vT2, vT2 + 1, vT2 + 2
        A('v_add_u32 %s, 1792, %s' % (v(vWDv), v(vWDq)))
        A('s_mov_b32 %s, 0' % s(sSPIN))
        A('s_getreg_b32 %s, hwreg(HW_REG_XCC_ID, 0, 4)' % s(sXCC))
        m, hi, t3, t4 = vT2 + 3, vT2 + 4, vT2 + 5, vT2 + 6
        A('s_mul_i32 %s, %s, 98' % (s(sA), s(sSLOT))); A('s_mul_i32 %s, %s, 25' % (s(sB_), s(sW))); A('s_add_u32 %s, %s, %s' % (s(sA), s(sA), s(sB_)))
        A('v_min_u32 %s, 24, %s' % (v(t0), v(vL))); A('v_add_u32 %s, %s, %s' % (v(t0), s(sA), v(t0))); A('v_min_u32 %s, 3135, %s' % (v(t0), v(t0)))
        A('v_lshlrev_b32 %s, 7, %s' % (v(vTCO), v(t0)))
        A('v_and_b32 %s, 31, %s' % (v(m), v(vL))); A('v_lshrrev_b32 %s, 5, %s' % (v(hi), v(vL)))
        A('v_bfe_u32 %s, %s, 1, 3' % (v(t1), v(m))); A('v_xor_b32 %s, %s, %s' % (v(t1), v(t1), v(hi)))
        A('v_lshl_add_u32 %s, %s, 7, %s' % (v(t2), v(m), s(sM0X)))
        for ks in range(4):
            A('v_xor_b32 %s, %d, %s' % (v(t3), 2 * ks, v(t1))); A('v_lshl_add_u32 %s, %s, 4, %s' % (v(vXR + ks), v(t3), v(t2)))
            A('v_add_u32 %s, 0x10000, %s' % (v(vXR2 + ks), v(vXR + ks)))
        A('v_bfe_u32 %s, %s, 2, 2' % (v(t1), v(vL))); A('v_lshlrev_b32 %s, 6, %s' % (v(t2), v(t1)))
        A('v_lshl_add_u32 %s, %s, 9, %s' % (v(t2), v(hi), v(t2)))
        A('v_bfe_u32 %s, %s, 4, 1' % (v(t3), v(vL))); A('v_and_b32 %s, 3, %s' % (v(t4), v(vL)))
        A('v_lshlrev_b32 %s, 3, %s' % (v(t4), v(t4))); A('v_lshl_add_u32 %s, %s, 5, %s' % (v(t4), v(t3), v(t4)))
        A('v_add3_u32 %s, %s, %s, %s' % (v(vWRq), v(t2), v(t4), s(sSH)))
        A('v_add_u32 %s, %d, %s' % (v(vWRk), L_WK, v(vWRq)))
        A('v_xor_b32 %s, %s, %s' % (v(t3), s(sW), v(t1))); A('v_lshl_add_u32 %s, %s, 6, %s' % (v(t4), v(t3), v(t4)))
        A('v_lshl_add_u32 %s, %s, 8, %s' % (v(t4), v(t1), v(t4))); A('v_lshrrev_b32 %s, 4, %s' % (v(t3), v(vL))); A('v_lshl_add_u32 %s, %s, 11, %s' % (v(t4), v(t3), v(t4)))
        A('v_add_u32 %s, %d, %s' % (v(vWO0), L_WO, v(t4)))
        A('s_and_b32 %s, %s, 1' % (s(sA), s(sW))); A('s_lshl_b32 %s, %s, 4' % (s(sA), s(sA))); A('v_xor_b32 %s, %s, %s' % (v(t4), s(sA), v(m)))
        A('s_bitcmp1_b32 %s, 1' % s(sW)); A('s_cselect_b32 %s, 0x80008000, 0' % s(sSGN))
        A('v_lshrrev_b32 %s, 3, %s' % (v(t0), v(t4))); A('v_and_b32 %s, 3, %s' % (v(t1), v(t4)))
        A('v_lshl_add_u32 %s, %s, 2, %s' % (v(t0), v(t0), v(t1)))
        A('v_lshrrev_b32 %s, 4, %s' % (v(t1), v(t4))); A('v_sub_u32 %s, %s, %s' % (v(t0), v(t0), v(t1)))
        A('v_bfe_u32 %s, %s, 2, 1' % (v(t1), v(m))); A('v_mad_u32_u24 %s, %s, 14, %s' % (v(t0), v(t1), v(t0)))
        A('v_and_b32 %s, 11, %s' % (v(t1), v(m))); A('v_cmp_eq_u32 vcc, 11, %s' % v(t1))
        A('v_mov_b32 %s, %d' % (v(t2), L_MISC + 2048))
        A('v_mul_u32_u24 %s, 224, %s' % (v(t3), v(hi))); A('v_lshl_add_u32 %s, %s, 1, %s' % (v(t3), v(t0), v(t3))); A('v_add_u32 %s, %d, %s' % (v(t3), L_MISC, v(t3)))
        A('v_cndmask_b32_e64 %s, %s, %s, vcc' % (v(vT2 + 12), v(t3), v(t2)))
        A('v_cndmask_b32_e64 %s, %s, 63, vcc' % (v(vT2 + 11), v(t0)))
        A('v_cmp_lt_u32_e64 s[%d:%d], 31, %s' % (sHI, sHI + 1, v(vL)))
        A('v_cmp_eq_u32_e64 s[%d:%d], 28, %s' % (sE28, sE28 + 1, v(m)))
        A('v_cndmask_b32_e64 %s, %s, %s, s[%d:%d]' % (v(vT2 + 13), v(vT2 + 12), v(t2), sHI, sHI + 1))
        return L

    def mknonce(self):
        L = ['L_mknonce:', '@assume_idle']; A = L.append
        A('s_load_dwordx2 s[%d:%d], s[%d:%d], 0' % (sT0, sT1, sWSP, sWSP + 1))
        A('@waitlgkm_all')
        A('s_add_u32 %s, %s, 0x9e3679b8' % (s(sT0), s(sT0))); A('s_add_u32 %s, %s, 0x85eaca6a' % (s(sT1), s(sT1)))
        for r in (sT0, sT1):
            A('s_or_b32 %s, %s, 0x00010001' % (s(r), s(r))); A('s_and_b32 %s, %s, 0xbfffbfff' % (s(r), s(r)))
        A('v_mov_b32 %s, %s' % (v(vN), s(sT0))); A('v_mov_b32 %s, %s' % (v(vN + 1), s(sT1)))
        A('s_mov_b64 exec, 1')
        A('global_store_dwordx2 %s, %s, s[%d:%d] sc1' % (v(vZ), v(vN, 2), sDBG, sDBG + 1))
        A('global_store_dwordx2 %s, %s, s[%d:%d] sc1' % (v(vZ), v(vN, 2), sWSP, sWSP + 1))
        A('s_mov_b64 exec, -1'); A('s_branch L_nononce')
        return L

    def setup2(self):
        m, hi, fp, ofs, ofs2 = vT2 + 3, vT2 + 4, vT2 + 11, vT2 + 12, vT2 + 13
        P0 = []
        for t in range(2):
            for j in range(8):
                d = 16 * t + 8 * (j >> 2) + (j & 3)
                P0.append('ds_read_u16 %s, %s offset:%d' % (v(vP + 8 * t + j), v(ofs2 if (t == 1 and j >= 4) else ofs), d * 56))
        def selector(dst, tgt):
            R = []
            x, y, z = vT2 + 8, vT2 + 9, vT2 + 10
            R.append('v_lshrrev_b32 %s, 3, %s' % (v(x), v(tgt))); R.append('v_bfe_u32 %s, %s, 1, 1' % (v(y), v(tgt)))
            R.append('v_lshl_add_u32 %s, %s, 1, %s' % (v(x), v(x), v(y)))
            R.append('v_and_b32 %s, 1, %s' % (v(y), v(tgt))); R.append('v_lshlrev_b32 %s, 4, %s' % (v(y), v(y)))
            R.append('v_mov_b32 %s, 0x3f80' % v(z)); R.append('v_lshlrev_b32 %s, %s, %s' % (v(z), v(y), v(z)))
            R.append('v_bfe_u32 %s, %s, 2, 1' % (v(y), v(tgt))); R.append('v_cmp_eq_u32 vcc, %s, %s' % (v(y), v(hi)))
            R.append('v_cndmask_b32_e64 %s, 15, %s, vcc' % (v(x), v(x)))
            mk = [sN0, sHI + 0, sPB - 1, sN0]
            for i in range(8):
                r = (sN0, sT0)[i & 1]
                R.append('v_cmp_eq_u32_e64 s[%d:%d], %d, %s' % (r, r + 1, i, v(x)))
                R.append('v_cndmask_b32_e64 %s, 0, %s, s[%d:%d]' % (v(dst + i), v(z), r, r + 1))
            return R
        P1 = selector(vID, m)
        P2 = selector(vE, fp)
        P2 += ['v_mov_b32 %s, 0x3fb8aa3b' % v(vC),
               'v_bfe_u32 %s, %s, 3, 2' % (v(vT2 + 8), v(vL)), 'v_and_b32 %s, 7, %s' % (v(vPRE), v(vL)), 'v_lshlrev_b32 %s, 7, %s' % (v(vPRE), v(vPRE)), 'v_lshl_add_u32 %s, %s, 14, %s' % (v(vPRE), v(vT2 + 8), v(vPRE)),
               's_lshl_b32 %s, %s, 3' % (s(sGID), s(sBR)), 's_add_u32 %s, %s, %s' % (s(sGID), s(sGID), s(sRB)),
               's_and_b32 %s, %s, 3' % (s(sCB), s(sH)), 's_lshr_b32 %s, %s, 2' % (s(sRQ), s(sH)),
               's_lshl_b32 %s, %s, 4' % (s(sT3), s(sGID)), 's_add_u32 %s, %s, %s' % (s(sPB), s(sT3), s(sH)),
               's_lshl2_add_u32 %s, %s, %s' % (s(sT3), s(sGID), s(sW)), 's_lshl_b32 %s, %s, 6' % (s(sT3), s(sT3)), 's_add_u32 %s, %s, %s' % (s(sT3), s(sT3), s(sH)), 's_lshl_b32 %s, %s, 10' % (s(sOBX), s(sT3)),
               's_add_u32 %s, %s, %d' % (s(sOBX), s(sOBX), WS_O),
               's_and_b32 %s, %s, %d' % (s(sOB1), s(sH), self.cfg.tswap), 's_lshl_b32 %s, %s, 15' % (s(sOB1), s(sOB1)), 's_add_u32 %s, %s, %s' % (s(sOB1), s(sOB1), s(sOBX)),
               's_lshl_b32 %s, %s, 9' % (s(sT3), s(sGID)), 's_add_u32 %s, %s, %d' % (s(sT3), s(sT3), WS_FLAG),
               's_lshl_b32 %s, %s, 7' % (s(sFLW), s(sW)), 's_add_u32 %s, %s, %s' % (s(sFLW), s(sFLW), s(sT3)),
               's_lshl_b32 %s, %s, 7' % (s(sFLG), s(sRQ)), 's_add_u32 %s, %s, %s' % (s(sFLG), s(sFLG), s(sT3))]
        A = P2.append; t0, t1, t2 = vT2 + 8, vT2 + 9, vT2 + 10
        A('v_lshrrev_b32 %s, 4, %s' % (v(t0), v(vL))); A('v_bfe_u32 %s, %s, 2, 2' % (v(t1), v(vL))); A('v_xor_b32 %s, %s, %s' % (v(t1), v(t1), v(t0)))
        A('v_mul_u32_u24 %s, 896, %s' % (v(t0), v(t0))); A('v_lshl_add_u32 %s, %s, 6, %s' % (v(t0), v(t1), v(t0)))
        A('v_and_b32 %s, 3, %s' % (v(t2), v(vL))); A('v_lshl_add_u32 %s, %s, 4, %s' % (v(t0), v(t2), v(t0)))
        A('s_cmp_eq_u32 %s, 3' % s(sCB)); A('s_cselect_b32 %s, 1, 3' % s(sT3))
        A('v_cmp_lt_u32 vcc, %s, %s' % (s(sT3), v(t1))); A('v_mov_b32 %s, 0x%x' % (v(t2), OOB))
        A('v_cndmask_b32_e64 %s, %s, %s, vcc' % (v(vWOD), v(t0), v(t2)))
        A('s_lshl_b32 %s, %s, 3' % (s(sRECA), s(sPB))); A('s_add_u32 %s, %s, %d' % (s(sRECA), s(sRECA), WS_XCC))
        A('v_cmp_eq_u32 vcc, 0, %s' % v(vL)); A('v_and_b32 %s, 1, %s' % (v(t0), v(vL))); A('v_and_b32 %s, 2, %s' % (v(t1), v(vL)))
        A('v_cndmask_b32_e64 %s, %s, 0, vcc' % (v(vT), v(t2)))
        A('v_cmp_ne_u32_e64 s[%d:%d], 0, %s' % (sM1, sM1 + 1, v(t0))); A('v_cmp_ne_u32_e64 s[%d:%d], 0, %s' % (sM2, sM2 + 1, v(t1)))
        A('s_lshl1_add_u32 %s, %s, 1' % (s(sSET), s(sBR))); A('s_and_b32 %s, %s, %s' % (s(sSET), s(sSET), s(sW)))
        A('s_lshl_b32 %s, %s, 4' % (s(sT3), s(sBR))); A('s_add_u32 %s, %s, %s' % (s(sT3), s(sT3), s(sH))); A('s_lshl2_add_u32 %s, %s, %s' % (s(sT3), s(sT3), s(sSET)))
        A('s_lshl_b32 %s, %s, 13' % (s(sT3), s(sT3))); A('s_add_u32 %s, %s, %d' % (s(sPL0), s(sT3), WS_PART)); A('s_add_u32 %s, %s, 4096' % (s(sPL1), s(sPL0)))
        A('s_lshl_b32 %s, %s, 10' % (s(sT3), s(sRB))); A('s_add_u32 %s, %s, %s' % (s(sPX), s(sPL0), s(sT3))); A('s_lshl_b32 %s, %s, 10' % (s(sSET), s(sSET)))
        A('s_and_b32 %s, %s, 0xffffff80' % (s(sRECL), s(sRECA))); A('s_add_u32 %s, %s, %d' % (s(sSCR), s(sM0X), L_SCR))
        return P0, P1, P2

    def dma_x(self, i):
        L = ['s_add_u32 m0, %s, %d' % (s(sM0X), (i % 6) * 16384)]
        if i >= 7: L.append('s_add_u32 %s, %s, %s' % (s(sXO + i - 7), s(sXO + i - 7), s(sDT)))
        for j in range(2 if self.cfg.fake_n2 else 4):
            L.append(('buffer_load_dwordx4 %s, s[%d:%d], %s offen offset:%d %s lds' % (v(vXD + j), SX, SX + 3, s(sXO + i % 7), 1024 * j, self.cfg.xfl), 'x%d' % i))
        return L
    def dma_w(self, i, part, base, tag, m0=True):
        L = ['s_add_u32 m0, %s, %d' % (s(sM0K), base + (i & 4) * 1024)] if m0 else []
        if self.cfg.fake_n2: L.append(('buffer_load_dwordx4 %s, s[%d:%d], %s offen offset:%d %s lds' % (v((vKV + 30, vV + 30, vKV + 31)[part]), SW, SW + 3, s(sWO_ + i), 1024 * (i & 3), self.cfg.wfl), tag))
        return L + [('buffer_load_dwordx4 %s, s[%d:%d], %s offen offset:%d %s lds' % (v((vWDq, vWD, vWDv)[part]), SW, SW + 3, s(sWO_ + i), 1024 * (i & 3), self.cfg.wfl), tag)]
    def xfrag(self, i, ks, tile): return aX + ((i * 4 + ks) * 2 + tile) * 4
    def wread(self, slot, basev, off):
        r = aWR + 4 * (slot % 8)
        return ['ds_read_b64_tr_b16 %s, %s offset:%d' % (a(r + 2 * u, 2), v(basev), off + 256 * u) for u in range(2)]

    def xiter(self, i, extra=()):
        R = []; A = R.append
        ch, tile, sl = i % 7, i // 7, i % 6
        wk = ' ' + self.cfg.wkbar[i] if i in self.cfg.wkbar else ''
        A('@waitvm x%d' % i + wk)
        if wk: A('s_barrier')
        if i == 0: R += self.stamp(1)
        for ks in range(4):
            R += self.wread(4 * i + ks, vWRk, ch * 1024 + ks * 7168)
            R.append(('ds_read_b128 %s, %s offset:%d' % (a(self.xfrag(ch, ks, tile), 4), v((vXR2 if sl >= 4 else vXR) + ks), (sl & 3) * 16384), 'xr%d' % i))
        D = self.cfg.depth
        if i + D < 14:
            if i + D >= 6: A('@waitlgkm xr%d' % (i + D - 6))
            R += self.dma_x(i + D)
        R += self.touches(i)
        R += extra
        for ks in range(4):
            R.append((mfma(vK + 16 * tile, a(aWR + 4 * ((4 * i + ks) % 8), 4), a(self.xfrag(ch, ks, tile), 4), None if (ch == 0 and ks == 0) else vK + 16 * tile), 'kk'))
        return R
    def part1(self):
        P = self.setup2()
        R = []
        for i in range(2, 7): R += self.offs(i)
        W = lambda i: self.dma_w(i, 1, L_WK, 'wk%d' % i)
        su = self.setup() + P[2]
        R = su + self.touches('a') + R if 'a' in self.cfg.touch else R
        X = lambda i: self.dma_x(i) if i < self.cfg.depth else []
        late = {}
        for tok in self.cfg.order0.split():
            if '@' in tok:
                tok, at = tok.split('@'); late.setdefault(int(at), []).extend(W(int(tok[1])))
            else: R += W(int(tok[1])) if tok[0] == 'w' else X(int(tok[1]))
        R += ([] if 'a' in self.cfg.touch else su) + P[1]
        pk = []
        for u in range(8): pk += ['v_lshl_or_b32 %s, %s, 16, %s' % (v(vPH + u), v(vP + 2 * u + 1), v(vP + 2 * u)), 'v_xor_b32 %s, %s, %s' % (v(vPH + u), s(sSGN), v(vPH + u))]
        c = self.cfg
        for part, n, at, base, tg in ((2, c.wv_early, c.wv_at, L_WV, 'wv'),):
            for k in range(n): late.setdefault(at - c.depth, []).extend(self.dma_w(k, part, base, '%s%d' % (tg, k), k in (0, 4)))
        for i in range(7): R += self.xiter(i, late.get(i, []) + (P[0] + pk if i == 1 else []))
        return self.sched(R, 'part1')

    def gemm(self, acc, basev, off, transposed, first_slot, hooks=None, tiles=(0, 1), lead=False, ks=range(28)):
        L = []; hooks = hooks or {}
        for k in ks:
            L += hooks.get(k, [])
            w = a(aWR + 4 * ((first_slot + k) % 8), 4)
            L += self.wread(first_slot + k, basev, off + (k >> 2) * 1024 + (k & 3) * 7168)
            for tile in tiles:
                x = a(self.xfrag(k // 4, k % 4, tile), 4)
                L.append((mfma(acc + 16 * tile, w if transposed else x, x if transposed else w, None if k == 0 else acc + 16 * tile), 'lead' if (lead and tile == 0) else None))
        return L

    def pack(self, r, n=8): return ['v_cvt_pk_bf16_f32 %s, %s, %s' % (v(r + u), v(r + 2 * u), v(r + 2 * u + 1)) for u in range(n)]
    def zero_hi_pads(self, r): return ['v_cndmask_b32_e64 %s, %s, 0, s[%d:%d]' % (v(r + u), v(r + u), sHI, sHI + 1) for u in (6, 7)]

    def softmax(self, p, ep, en, tmp, pk):
        L = []; A = L.append
        Z, T, S1, S2 = tmp, tmp + 2, tmp + 4, tmp + 6
        VAL = [0, 1, 2, 3, 4, 5, 6, 8, 9, 10, 11, 12, 13, 14]
        if pk:
            for r in (ep + 7, ep + 15, en + 7, en + 15): A('v_mov_b32 %s, 0' % v(r))
        for (d, sg) in ((Z, ''), (T, '-')):
            A('v_max3_f32 %s, %s%s, %s%s, %s%s' % (v(d), sg, v(p), sg, v(p + 1), sg, v(p + 2)))
            A('v_max3_f32 %s, %s%s, %s%s, %s%s' % (v(d + 1), sg, v(p + 8), sg, v(p + 9), sg, v(p + 10)))
            for (x, y) in ((3, 4), (5, 6)): A('v_max3_f32 %s, %s, %s%s, %s%s' % (v(d), v(d), sg, v(p + x), sg, v(p + y)))
            for (x, y) in ((11, 12), (13, 14)): A('v_max3_f32 %s, %s, %s%s, %s%s' % (v(d + 1), v(d + 1), sg, v(p + x), sg, v(p + y)))
            A('v_max_f32 %s, %s, %s' % (v(d), v(d), v(d + 1)))
        A('v_permlane32_swap_b32 %s, %s' % (v(Z), v(T))); A('v_max_f32 %s, %s, %s' % (v(Z), v(Z), v(T)))
        A('v_mul_f32 %s, %s, %s' % (v(Z), v(vC), v(Z))); A('v_mov_b32 %s, %s' % (v(T), v(Z)))
        A('v_permlane32_swap_b32 %s, %s' % (v(Z), v(T)))
        for (e, z, ng) in ((ep, Z, 0), (en, T, 1)):
            for u in VAL:
                if pk and u not in (6, 14):
                    if u & 1 == 0: A('v_pk_fma_f32 %s, %s, %s, %s op_sel_hi:[1,0,0] neg_lo:[%d,0,1] neg_hi:[%d,0,1]' % (v(e + u, 2), v(p + u, 2), v(vC, 2), v(z, 2), ng, ng))
                else: A('v_fma_f32 %s, %s%s, %s, -%s' % (v(e + u), '-' if ng else '', v(p + u), v(vC), v(z)))
                A('v_exp_f32 %s, %s' % (v(e + u), v(e + u)))
        for (e, S, z) in ((ep, S1, Z), (en, S2, T)):
            if pk:
                A('v_pk_add_f32 %s, %s, %s' % (v(S, 2), v(e, 2), v(e + 2, 2)))
                for u in (4, 6, 8, 10, 12, 14): A('v_pk_add_f32 %s, %s, %s' % (v(S, 2), v(S, 2), v(e + u, 2)))
            else:
                A('v_add_f32 %s, %s, %s' % (v(S), v(e), v(e + 1))); A('v_add_f32 %s, %s, %s' % (v(S + 1), v(e + 8), v(e + 9)))
                for u in range(2, 7):
                    A('v_add_f32 %s, %s, %s' % (v(S), v(S), v(e + u))); A('v_add_f32 %s, %s, %s' % (v(S + 1), v(S + 1), v(e + 8 + u)))
            A('v_add_f32 %s, %s, %s' % (v(S), v(S), v(S + 1)))
        A('v_permlane32_swap_b32 %s, %s' % (v(S1), v(S2))); A('v_add_f32 %s, %s, %s' % (v(S1), v(S1), v(S2)))
        A('v_rcp_f32 %s, %s' % (v(S1), v(S1))); A('v_mov_b32 %s, %s' % (v(S2), v(S1)))
        A('v_permlane32_swap_b32 %s, %s' % (v(S1), v(S2)))
        for (e, z) in ((ep, S1), (en, S2)):
            for u in range(8):
                if pk: A('v_pk_mul_f32 %s, %s, %s op_sel_hi:[1,0]' % (v(e + 2 * u, 2), v(e + 2 * u, 2), v(z, 2)))
                else:
                    for k in range(1 if u in (3, 7) else 2): A('v_mul_f32 %s, %s, %s' % (v(e + 2 * u + k), v(e + 2 * u + k), v(z)))
                A('v_cvt_pk_bf16_f32 %s, %s, %s' % (v(e + u), v(e + 2 * u), '0' if (u in (3, 7) and not pk) else v(e + 2 * u + 1)))
        return L

    def elu1(self, p, e, pads, pk):
        L = []; A = L.append
        for u in range(0, 16, 2):
            n = 1 if (pads and u in (6, 14)) else 2
            if pk and n == 2: A('v_pk_mul_f32 %s, %s, %s op_sel_hi:[1,0]' % (v(e + u, 2), v(p + u, 2), v(vC, 2)))
            for k in range(n):
                if not (pk and n == 2): A('v_mul_f32 %s, %s, %s' % (v(e + u + k), v(vC), v(p + u + k)))
                A('v_exp_f32_e64 %s, %s clamp' % (v(e + u + k), v(e + u + k)))
                A('v_max_f32 %s, 0x358637bd, %s' % (v(p + u + k), v(p + u + k)))
                if not (pk and n == 2): A('v_add_f32 %s, %s, %s' % (v(e + u + k), v(e + u + k), v(p + u + k)))
            if pk and n == 2: A('v_pk_add_f32 %s, %s, %s' % (v(e + u, 2), v(e + u, 2), v(p + u, 2)))
            A('v_cvt_pk_bf16_f32 %s, %s, %s' % (v(e + u // 2), v(e + u), v(e + u + 1) if n == 2 else '0'))
        return L

    def nonce_load(self): return [('global_load_dwordx2 %s, %s, s[%d:%d] sc1' % (v(vN, 2), v(vZ), sDBG, sDBG + 1), 'nonce')]
    def use_nonce(self, br):
        L = []; A = L.append
        t0, t1 = vXR2, vXR2 + 1
        A('v_readfirstlane_b32 %s, %s' % (s(sN0), v(vN))); A('v_readfirstlane_b32 %s, %s' % (s(sN1), v(vN + 1)))
        A('v_cndmask_b32_e64 %s, %s, %s, s[%d:%d]' % (v(t0), v(vN), v(vN + 1), sM2, sM2 + 1))
        A('v_lshlrev_b32 %s, 16, %s' % (v(t1), v(t0))); A('v_and_b32 %s, 0xffff0000, %s' % (v(t0), v(t0)))
        A('v_cndmask_b32_e64 %s, %s, %s, s[%d:%d]' % (v(vTAG), v(t1), v(t0), sM1, sM1 + 1))
        if br == 'A': A('v_and_b32 %s, %s, %s' % (v(vTAG), s(sXB), v(vTAG)))
        A('s_and_b32 %s, %s, 0xfffffff0' % (s(sROT), s(sN1))); A('s_or_b32 %s, %s, %s' % (s(sREC), s(sXCC), s(sROT)))
        A('v_mov_b32 %s, %s' % (v(vN + 1), s(sREC)))
        L.append(('buffer_store_dwordx2 %s, %s, s[%d:%d], %s offen sc1' % (v(vN, 2), v(vT), SWS, SWS + 3, s(sRECA)), 'side'))
        return L
    def nonce_chk(self, br):
        return ['L_nonce_chk%s:' % br, 's_min_u32 %s, %s, %s' % (s(sT2), s(sN0), s(sN1)), 's_cmp_eq_u32 %s, 0' % s(sT2), 's_cbranch_scc1 L_nonce_retry%s' % br]
    def nonce_retry(self, br):
        return ['L_nonce_retry%s:' % br, '@assume_idle', 's_sleep 1'] + SPIN + self.nonce_load() + self.use_nonce(br) + ['s_branch L_nonce_chk%s' % br]
    def side_loads(self):
        c = self.cfg
        L = []
        L += self.touches('p2')
        if not any('p' in x for x in c.touch.values()): L.append(('buffer_load_dword %s, %s, s[%d:%d], %s offen %s' % (v(vDUM), v(vPRE), SWS, SWS + 3, s(sOBX), c.prefl), 'pre'))
        L += [('buffer_load_dword %s, %s, s[%d:%d], %s offen %s' % (v(vDUM), v(vZ), SWS, SWS + 3, s(sFLW), c.prefl), 'side')]
        return L

    def middle(self, br):
        c = self.cfg; B = br == 'B'; NT = 2 if B else 1
        L = []; A = L.append
        R = []; A = R.append
        if not B:
            for i in range(8): A('v_mov_b32 %s, %s' % (v(vPH + i), v(vE + i)))
            A('s_cmp_ge_u32 %s, 2' % s(sW)); A('s_cselect_b32 %s, 0, -1' % s(sXB))
        tn = lambda tile, sg: (vP if sg == 0 else vK) + 16 * tile
        def featk(tile):
            X = self.pack(vK + 16 * tile) + self.zero_hi_pads(vK + 16 * tile)
            for t in range(2):
                k4 = v(vK + 16 * tile + 4 * t, 4); w4 = v(vPH + 4 * t, 4)
                X.append((mfma(vP + 16 * tile, w4 if B else k4, k4 if B else w4, None if t == 0 else vP + 16 * tile), 'hi'))
            X += self.softmax(vP + 16 * tile, vE + 32 * tile, vE + 32 * tile + 16, vT2 + 8 * tile, False) if B else self.elu1(vP + 16 * tile, vE + 32 * tile, False, False)
            if B:
                for sg in range(2):
                    for t in range(2):
                        X.append((mfma(tn(tile, sg), v(vE + 32 * tile + 16 * sg + 4 * t, 4), v(vID + 4 * t, 4), None if t == 0 else tn(tile, sg)), 'hi2' if tile else 'hi3'))
                    X += self.pack(tn(tile, sg))
            return X
        wv = []
        for k in range(c.wv_early, 7): wv += self.dma_w(k, 2, L_WV, 'wv%d' % k, k in (c.wv_early, 4))
        R += featk(0)
        for i in range(7, 14):
            R += self.xiter(i, wv if i == max(7, 13 - c.depth) else ())
            if i - 7 < c.wv_early:
                R += self.gemm(vV, vWRk, L_WV - L_WK, False, 4, {0: ['@waitvm wv%d' % (c.wv_early - 1), 's_barrier']}, ks=range(4 * (i - 7), 4 * (i - 6)))
        if c.stamps and not c.lite: R.append(('s_memtime s[%d:%d]' % (SX + 2, SX + 3), 'nowait'))
        R += featk(1)
        wq = self.nonce_load()
        for k in range(c.wq_pre): wq += self.dma_w(k, 0, L_WQ, 'wq%d' % k, k in (0, 4))
        wq += ([] if c.pre_q else self.side_loads()) + self.use_nonce(br)
        hooks = {}; k0 = c.wv_early
        for k1 in c.wv_bar:
            hooks[4 * k0] = (['@waitlgkm xr13'] if k0 == c.wv_early else []) + ['@waitvm wv%d' % (k1 - 1), 's_barrier'] + (wq if k0 == max(c.wq_at, c.wv_early) else []); k0 = k1
        R += self.gemm(vV, vWRk, L_WV - L_WK, False, 0, hooks, lead=True, ks=range(4 * c.wv_early, 28))
        A('v_mov_b32 %s, 0x3f803f80' % v(vXR2 + 3))
        for tile in range(2):
            R += self.pack(vV + 16 * tile)
            for u in range(8): A('v_cndmask_b32_e64 %s, %s, %s, s[%d:%d]' % (v(vV + 16 * tile + u), v(vV + 16 * tile + u), v(vXR2 + 3), sE28, sE28 + 1))
        for tile in range(2):
            for sg in reversed(range(NT)):
                src = tn(tile, sg) if B else vE + 32 * tile
                for t in range(2):
                    A(mfma(vKV + 16 * sg, v(src + 4 * t, 4), v(vV + 16 * tile + 4 * t, 4), None if (tile == 0 and t == 0) else vKV + 16 * sg))
        t0, t1, t2 = vXR, vXR + 1, vXR2 + 2
        A('v_add_u32 %s, %s, %s' % (v(t0), s(sSCR), v(vL16)))
        for q in ((4, 5, 6, 7, 2, 3) if B else range(4)): A('ds_write_b128 %s, %s offset:%d' % (v(t0), v(vKV + 4 * q, 4), 16384 * (q >> 2) + 1024 * (q & 3)))
        for d in range(1, 4): A('v_xor_b32 %s, %d, %s' % (v(t0 + d), 4096 * d, v(t0)))
        if not B:
            A('s_cmp_ge_u32 %s, 2' % s(sW)); A('s_cselect_b32 %s, 0x%x, 0' % (s(sA), OOB)); A('v_add_u32 %s, %s, %s' % (v(t2), s(sA), v(vL16)))
        A('v_mov_b32 %s, 0xffff' % v(vXD))
        if c.thr: L += ['s_lshr_b32 %s, 0x2a54, %s' % (s(sT2), s(sH)), 's_bitcmp0_b32 %s, 0' % s(sT2), 's_cselect_b64 vcc, -1, 0']
        L += self.throttle(self.sched(R, 'phase2' + br, boost={'hi': 9000, 'kk': 12000, 'lead': 5000, 'hi2': c.hi2, 'hi3': c.hi2 + c.t0boost}, tight=c.p2_tight), br)
        if c.stamps and not c.lite: L += ['@waitlgkm_all', 'v_writelane_b32 %s, %s, 2' % (v(vST), s(SX + 2))]
        L += self.stamp(3)
        g0 = len(L)
        L += self.nonce_chk(br)
        A = L.append
        A('@waitlgkm_all'); A('s_barrier')
        for d in range(1, 4):
            for hf in range(2): A('ds_read_b128 %s, %s offset:%d' % (v(vV + 8 * d + 4 * hf, 4), v(t0 + d), (16384 * (d >> 1) if B else 0) + 2048 * (d & 1) + 1024 * hf))
        for d in range(1, 4):
            for u in range(0, 8, 2): A('v_pk_add_f32 %s, %s, %s' % (v(vKV + u, 2), v(vKV + u, 2), v(vV + 8 * d + u, 2)))
        L += self.pack(vKV, 4)
        A('v_bfi_b32 %s, %s, %s, %s' % (v(vKV + 3), v(vXD), v(vKV + 3), v(vTAG)))
        L.append(('buffer_store_dwordx4 %s, %s, s[%d:%d], %s offen sc1' % (v(vKV, 4), v(vL16 if B else t2), SWS, SWS + 3, s(sPX)), 'pst'))
        L += self.stamp(4)
        L += ['s_getpc_b64 s[%d:%d]' % (sTAB, sTAB + 1), 'L_pc%s:' % br, 's_add_u32 %s, %s, L_tab - L_pc%s' % (s(sTAB), s(sTAB), br), 's_addc_u32 %s, %s, 0' % (s(sTAB + 1), s(sTAB + 1))]
        for k in range(c.wq_pre, 7): L += self.dma_w(k, 0, L_WQ, 'wq%d' % k, k in (c.wq_pre, 4))
        A('@waitvm wq%d' % (c.wq_pre - 1)); A('s_barrier')
        self.glue(L[g0:])
        R = []; A = R.append
        t0, t1, t2 = vXR, vXR + 1, vXR + 2
        A('v_add_u32 %s, 2560, %s' % (v(vXD + 1), v(vWOD))); A('v_xor_b32 %s, 32, %s' % (v(vXD + 3), v(vWOD)))
        A('v_add_u32 %s, 5120, %s' % (v(vXD + 2), v(vXD + 3))); A('v_add_u32 %s, 7680, %s' % (v(vXD + 3), v(vXD + 3)))
        A('s_mul_i32 %s, %s, 14336' % (s(sWOS), s(sW))); A('s_lshl_b32 %s, %s, 8' % (s(sA), s(sCB))); A('s_add_u32 %s, %s, %s' % (s(sWOS), s(sWOS), s(sA)))
        A('v_and_b32 %s, 15, %s' % (v(vXR + 3), v(vL))); A('v_lshlrev_b32 %s, 3, %s' % (v(vXR + 3), v(vXR + 3)))
        wo_block = self.wo_block
        if c.pre_q: R += self.side_loads()
        for m in range(c.wo_before): R += wo_block(m)
        npart = len(R); R += self.part_loads(br)
        for m in range(c.wo_before, c.wo_mid): R += wo_block(m)
        tabs = self.table_loads()
        tm = c.q_tm and B
        hk = {4 * c.wq_pre: ['@waitvm wq6', 's_barrier']} if c.wq_pre < 7 else {}
        if not tm: R += self.gemm(vK, vWRq, L_WQ, True, 4, hk)
        for tile in range(2):
            if tm: R += self.gemm(vK, vWRq, L_WQ, True, 4 + 28 * tile, hk if tile == 0 else None, tiles=(tile,))
            R += self.pack(vK + 16 * tile) + self.zero_hi_pads(vK + 16 * tile)
            for t in range(2):
                R.append((mfma(vP + 16 * tile, v(vPH + 4 * t, 4), v(vK + 16 * tile + 4 * t, 4), None if t == 0 else vP + 16 * tile), 'hi' if tile == 0 else None))
        for tile in range(2):
            pk = not (tm and tile == 0)
            R += self.softmax(vP + 16 * tile, vE + 32 * tile, vE + 32 * tile + 16, vT2 + 8 * tile, pk) if B else self.elu1(vP + 16 * tile, vE + 32 * tile, True, True)
        if c.tab_late: late0 = tabs; tabs = []
        else: late0 = []
        L += self.sched(R + tabs, 'q' + br, release={npart: c.rel_part if B else c.rel_partA}, boost={'hi': 4000}, tight=c.q_tight)
        L += self.stamp(6)
        A = L.append
        A('@waitvm part'); self.glue(L[-1:])
        L += self.stamp(5)
        A('L_part_chk%s:' % br)
        R = []; A = R.append
        G0 = vKV
        for p in range(8): A(mfma(vV, v(vID, 4), v(G0 + 4 * p, 4), None if p == 0 else vV))
        x, z, y = vT2, vT2 + 1, vT2 + 12
        A('v_max3_u32 %s, %s, %s, %s' % (v(x), v(G0 + 3), v(G0 + 7), v(G0 + 11))); A('v_min3_u32 %s, %s, %s, %s' % (v(y), v(G0 + 3), v(G0 + 7), v(G0 + 11)))
        A('v_max3_u32 %s, %s, %s, %s' % (v(x), v(x), v(G0 + 15), v(G0 + 19))); A('v_min3_u32 %s, %s, %s, %s' % (v(y), v(y), v(G0 + 15), v(G0 + 19)))
        A('v_max3_u32 %s, %s, %s, %s' % (v(x), v(x), v(G0 + 23), v(G0 + 27))); A('v_min3_u32 %s, %s, %s, %s' % (v(y), v(y), v(G0 + 23), v(G0 + 27)))
        A('v_max_u32 %s, %s, %s' % (v(x), v(x), v(G0 + 31))); A('v_min_u32 %s, %s, %s' % (v(y), v(y), v(G0 + 31)))
        A('v_xor_b32 %s, %s, %s' % (v(x), v(x), v(vTAG))); A('v_xor_b32 %s, %s, %s' % (v(y), v(y), v(vTAG)))
        A('v_or_b32 %s, %s, %s' % (v(x), v(x), v(y))); A('v_lshrrev_b32 %s, 16, %s' % (v(x), v(x)))
        A('v_xor_b32 %s, %s, %s' % (v(y), s(sN0), v(vN))); A('v_xor_b32 %s, %s, %s' % (v(z), s(sREC), v(vN + 1)))
        A('v_cmp_ne_u32_e64 s[%d:%d], 0, %s' % (sFAR, sFAR + 1, v(z)))
        A('v_lshrrev_b32 %s, 4, %s' % (v(z), v(z))); A('v_or3_b32 %s, %s, %s, %s' % (v(x), v(x), v(y), v(z)))
        A('v_cmp_ne_u32 vcc, 0, %s' % v(x))
        A('v_add_u32 %s, %s, %s' % (v(y), s(sSET), v(vL16))); A('v_add_u32 %s, %d, %s' % (v(y), L_MISC, v(y)))
        for q in range(1, 2 * NT): A('v_xor_b32 %s, %d, %s' % (v(y + q), 1024 * q, v(y)))
        L += self.sched(R, 'sum' + br)
        A = L.append
        A('s_cbranch_vccnz L_part_retry%s' % br)
        late = list(late0)
        for m in range(c.wo_mid, c.wo_imp): late += wo_block(m)
        nl = c.late0
        L += late[:nl]
        L += self.pack(vV, 4)
        A('v_and_b32 %s, 0xffff, %s' % (v(vV + 3), v(vV + 3)))
        if not B: A('s_add_u32 %s, %s, %d' % (s(sT2), s(sM0W), L_MISC)); A('v_add_u32 %s, %s, %s' % (v(x), s(sT2), v(vL16)))
        A('ds_write_b128 %s, %s' % (v(y), v(vV, 4)) if B else 'ds_write_b128 %s, %s offset:%d' % (v(x), v(vV, 4), 0))
        A('@waitlgkm_all'); A('s_barrier')
        self.glue(L[-nl - 9:])
        R = []; A = R.append
        R += late[nl:]
        early = self.wo_reads()[:3 + 8 * c.wo_early]
        for q in range(2 * NT): A('ds_read_b128 %s, %s' % (v(vV + 16 + 4 * q, 4), v(y + q)))
        for tile in range(2):
            for q in range(2 * NT):
                A(mfma(vP + 16 * tile, v(vV + 16 + 4 * q, 4), v(vE + 32 * tile + 16 * (q >> 1) + 4 * (q & 1), 4), None if q == 0 else vP + 16 * tile))
        for tile in range(2):
            P = vP + 16 * tile; d = vT2 + 4 + 4 * tile
            A('v_mov_b32 %s, %s' % (v(d), v(P + 12))); A('v_permlane32_swap_b32 %s, %s' % (v(P + 12), v(d)))
            A('v_add_f32 %s, 0x358637bd, %s' % (v(d), v(d))); A('v_rcp_f32 %s, %s' % (v(d), v(d)))
            for u in range(8):
                if tile: A('v_pk_mul_f32 %s, %s, %s op_sel_hi:[1,0]' % (v(P + 2 * u, 2), v(P + 2 * u, 2), v(d, 2)))
                else:
                    for k in range(2): A('v_mul_f32 %s, %s, %s' % (v(P + 2 * u + k), v(P + 2 * u + k), v(d)))
                A('v_cvt_pk_bf16_f32 %s, %s, %s' % (v(P + u), v(P + 2 * u), v(P + 2 * u + 1)))
        A('v_mov_b32 %s, %s' % (v(vN), s(sN0))); A('v_mov_b32 %s, %s' % (v(vN + 1), s(sN1)))
        A('s_lshl_b32 %s, %s, 3' % (s(sT2), s(sH))); A('s_add_u32 %s, %s, %s' % (s(sC_), s(sFLW), s(sT2))); A('s_xor_b32 %s, %s, 32768' % (s(sOBX), s(sOB1))); A('s_add_u32 %s, %s, 16384' % (s(sA), s(sOB1))); A('s_add_u32 %s, %s, 16384' % (s(sB_), s(sOBX)))
        L += self.sched(R + early, 'o' + br, lowds={id(x) for x in early})
        L += self.stamp(7)
        A = L.append
        if c.force_global: A('s_branch L_far')
        A('s_cmp_lg_u64 s[%d:%d], 0' % (sFAR, sFAR + 1)); A('s_cbranch_scc1 L_far')
        return L
    def publish(self, fl):
        c = self.cfg; L = []
        for tile in range(2):
            for t in range(2):
                L.append(('buffer_store_dwordx4 %s, %s, s[%d:%d], %s offen %s' % (v(vP + 16 * tile + 4 * t, 4), v(vL16), SWS, SWS + 3, s(((sOB1, sA), (sOBX, sB_))[tile][t]), fl), 'ost'))
        for m in range(c.wo_imp, 7 - c.wo_g3): L += self.wo_block(m)
        L += self.p3_setup()
        L = self.sched(L, 'pub')
        L += ['@waitvm ost']
        L.append('buffer_store_dwordx2 %s, %s, s[%d:%d], %s offen %s' % (v(vN, 2), v(vT), SWS, SWS + 3, s(sC_), fl))
        return L
    def wo_block(self, m, tag='wo'):
        X = ['s_add_u32 m0, %s, %d' % (s(sM0X), L_WO + 16384 * m)]
        if m: X.append('s_add_u32 %s, %s, %d' % (s(sWOS), s(sWOS), 57344))
        return X + [('buffer_load_dwordx4 %s, s[%d:%d], %s offen offset:%d %s lds' % (v(vXD + j if j else vWOD), SWO, SWO + 3, s(sWOS), 1024 * j, self.cfg.wofl), tag) for j in range(4)]
    def part_loads(self, br):
        L = [('buffer_load_dwordx2 %s, %s, s[%d:%d], %s offen sc1' % (v(vN, 2), v(vXR + 3), SWS, SWS + 3, s(sRECL)), 'rec')]
        for p in range(8):
            L.append(('buffer_load_dwordx4 %s, %s, s[%d:%d], %s offen offset:%d sc1' % (v(vKV + 4 * p, 4), v(vL16 if br == 'B' else vXR2 + 2), SWS, SWS + 3, s(sPL1 if p >= 4 else sPL0), 1024 * (p & 3)), 'part'))
        return L
    def part_retry(self, br):
        P = self.part_loads(br)
        L = ['L_part_retry%s:' % br, '@assume_idle', '@waitvm_all'] + SPIN + [P[0]]
        for p in range(8):
            L += ['v_xor_b32 %s, %s, %s' % (v(vT2), v(vKV + 4 * p + 3), v(vTAG)), 'v_cmp_lt_u32 vcc, 0xffff, %s' % v(vT2), 's_cbranch_vccz L_got%s%d' % (br, p), (P[1 + p][0], 'untracked'), 'L_got%s%d:' % (br, p)]
        return L + ['@waitvm_all', 's_branch L_part_chk%s' % br]
    def far(self):
        return ['L_far:', '@assume_idle', '@waitvm_all', 's_nop 4'] + self.publish('sc1') + ['s_branch L_join']
    def wo_reads(self):
        b = [vWO0, vWO0 + 1, vXR2, vXR2 + 1]
        L = ['v_xor_b32 %s, 32, %s' % (v(b[1]), v(b[0])), 'v_add_u32 %s, 0x10000, %s' % (v(b[2]), v(b[0])), 'v_add_u32 %s, 0x10000, %s' % (v(b[3]), v(b[1]))]
        for k in range(14):
            for nt in range(2):
                for i in range(2):
                    off = (32 * k + 4 * i) * 256
                    L.append('ds_read_b64_tr_b16 %s, %s offset:%d' % (a(8 * k + 4 * nt + 2 * i, 2), v(b[nt + 2 * (off >> 16)]), off & 0xffff))
        return L

    def p3_setup(self):
        L = []; A = L.append
        A('s_lshl_b32 %s, %s, 2' % (s(sT2), s(sRB))); A('s_add_u32 %s, %s, %s' % (s(sT2), s(sT2), s(sRQ))); A('s_mul_i32 %s, %s, %d' % (s(sD_), s(sT2), 64 * 1792))
        A('s_mul_i32 %s, %s, 896' % (s(sT2), s(sBR))); A('s_add_u32 %s, %s, %s' % (s(sD_), s(sD_), s(sT2)))
        A('s_lshl_b32 %s, %s, 2' % (s(sT2), s(sCB))); A('s_add_u32 %s, %s, %s' % (s(sT2), s(sT2), s(sW)))
        A('s_cmp_ge_u32 %s, 14' % s(sT2)); A('s_cselect_b32 %s, 0x%x, 0' % (s(sA), OOB))
        A('s_lshl_b32 %s, %s, 6' % (s(sT2), s(sT2))); A('s_add_u32 %s, %s, %s' % (s(sXO), s(sD_), s(sT2)))
        for b in range(1, 4): A('s_add_u32 %s, %s, %d' % (s(sXO + b), s(sXO), b * 16 * 1792))
        t0, t1, t2 = vT2 + 10, vT2 + 11, vT2 + 12
        A('s_lshl_b32 %s, %s, 12' % (s(sB_), s(sW))); A('s_add_u32 %s, %s, %d' % (s(sB_), s(sB_), L_OT))
        A('v_and_b32 %s, 15, %s' % (v(t0), v(vL))); A('v_lshlrev_b32 %s, 4, %s' % (v(vS16), v(t0))); A('v_lshl_add_u32 %s, %s, 6, %s' % (v(t0), v(t0), s(sB_)))
        A('v_bfe_u32 %s, %s, 4, 1' % (v(t1), v(vL))); A('v_lshl_add_u32 %s, %s, 3, %s' % (v(t0), v(t1), v(t0)))
        A('v_bfe_u32 %s, %s, 1, 2' % (v(t1), v(vL))); A('v_lshrrev_b32 %s, 5, %s' % (v(t2), v(vL))); A('v_xor_b32 %s, %s, %s' % (v(t1), v(t1), v(t2)))
        A('v_lshl_add_u32 %s, %s, 4, %s' % (v(vOW), v(t1), v(t0))); A('v_xor_b32 %s, 32, %s' % (v(vOW + 1), v(vOW)))
        A('v_bfe_u32 %s, %s, 3, 2' % (v(t1), v(vL))); A('v_xor_b32 %s, %s, %s' % (v(t1), v(t1), v(vL))); A('v_and_b32 %s, 3, %s' % (v(t1), v(t1)))
        A('v_lshrrev_b32 %s, 2, %s' % (v(t0), v(vL))); A('v_lshl_add_u32 %s, %s, 6, %s' % (v(t2), v(t0), s(sB_))); A('v_lshl_add_u32 %s, %s, 4, %s' % (v(vOR), v(t1), v(t2)))
        A('v_mul_u32_u24 %s, 1792, %s' % (v(t0), v(t0))); A('v_and_b32 %s, 3, %s' % (v(t1), v(vL))); A('v_lshl_add_u32 %s, %s, 4, %s' % (v(t0), v(t1), v(t0)))
        A('v_add_u32 %s, %s, %s' % (v(vOG), s(sA), v(t0)))
        for r in vOF: A('v_add_u32 %s, %s, %s' % (v(r), v(r), v(vS16)))
        A('s_lshl2_add_u32 %s, %s, %s' % (s(sT2), s(sGID), s(sRQ))); A('s_lshl2_add_u32 %s, %s, %s' % (s(sT2), s(sT2), s(sW)))
        A('s_lshl_b32 %s, %s, 14' % (s(sT2), s(sT2))); A('s_add_u32 %s, %s, %d' % (s(sD_), s(sT2), WS_O))
        A('s_lshl_b32 %s, %s, 14' % (s(sWOM), s(sW))); A('s_mov_b32 m0, %s' % s(sWOM))
        return L
    def table_loads(self):
        L = ['v_and_b32 %s, 0x300, %s' % (v(vWRk), v(vL16)), 'v_lshrrev_b32 %s, 2, %s' % (v(vWRk), v(vWRk))]
        for q in range(4): L.append(('global_load_dwordx%d %s, %s, s[%d:%d] offset:%d' % (4 if q < 3 else 2, v(vOF[4 * q], 4 if q < 3 else 2), v(vWRk), sTAB, sTAB + 1, 16 * q), 'tab'))
        return L
    def table(self):
        T = []
        for g in range(4):
            for r in range(16):
                h, u = divmod(8 * (r >> 1) + 2 * g + (r & 1), 7)
                T.append(h * 1024 + (u >> 2) * 16384 + (u & 1) * 512 + ((u >> 1) & 1) * 8)
        return ['.p2align 6', '.type L_tab,@object', 'L_tab:'] + ['.long %d' % x for x in T] + ['.size L_tab, 256']

    def tail(self):
        c = self.cfg
        L = ['L_pub:'] + self.publish(''); A = L.append
        A('L_join:')
        L += self.stamp(8)
        g3 = 7 - c.wo_g3
        poll = 'buffer_load_dwordx2 %s, %s, s[%d:%d], %s offen sc1' % (v(vT2, 2), v(vXR + 3), SWS, SWS + 3, s(sFLG))
        assert c.wo_early >= 2
        A('@waitvm wo'); A(poll); A('@waitlgkm_all'); A('s_barrier'); L += self.wo_reads()[3 + 8 * c.wo_early:3 + 8 * g3]
        A('L_poll:')
        A('v_xor_b32 %s, %s, %s' % (v(vT2), s(sN0), v(vT2))); A('v_xor_b32 %s, %s, %s' % (v(vT2 + 1), s(sN1), v(vT2 + 1)))
        A('v_or_b32 %s, %s, %s' % (v(vT2), v(vT2), v(vT2 + 1))); A('v_cmp_ne_u32 vcc, 0, %s' % v(vT2)); A('s_cbranch_vccnz L_repoll')
        self.repoll = ['L_repoll:', '@assume_idle'] + SPIN + [poll, '@waitvm_all', 's_branch L_poll']
        L += self.stamp(9)
        od = []
        for h in range(16):
            if h and h % 4 == 0: od += ['s_add_u32 m0, %s, %d' % (s(sWOM), 1024 * h), 's_add_u32 %s, %s, 4096' % (s(sD_), s(sD_))]
            od.append(('buffer_load_dwordx4 %s, s[%d:%d], %s offen offset:%d sc1 lds' % (v(vL16), SWS, SWS + 3, s(sD_), 1024 * (h & 3)), 'o%d' % h))
        assert c.o_first % 4 == 0
        nf = [i for i, x in enumerate(od) if isinstance(x, tuple)][c.o_first - 1] + 1
        L += od[:nf]
        M16 = 'v_mfma_f32_16x16x32_bf16'
        st = {'have': -1}
        def gate(k):
            X = []; h = (8 * k + 7) // 7
            need = min(x for x in c.stages if x >= h)
            wg = k % 2 == 0 and k // 2 >= g3
            if st['have'] < need or wg:
                X = ['@waitvm o%d' % need + (' wog%d' % (k // 2) if wg else ''), 's_barrier']; st['have'] = max(need, st['have'])
            return X
        def rd(k, sg, i): return 'ds_read_b64 %s, %s offset:%d' % (v(vE + 4 * ((4 * k + sg) % 12) + 2 * i, 2), v(vOF[2 * (k % 7) + i]), (k // 7) * 8192 + (sg >> 1) * 32768 + (sg & 1) * 256)
        rds = lambda k: [rd(k, sg, i) for sg in range(4) for i in range(2)]
        later = od[nf:]
        for m in range(g3, 7): later += self.wo_block(m, 'wog%d' % m)
        L += gate(0) + rds(0) + gate(1)
        for k in range(14):
            fill = []
            if k + 2 < 14:
                L += gate(k + 2); fill = (rds(1) if k == 0 else []) + rds(k + 2)
                if (k + 2) % 2 == 0 and (k + 2) // 2 >= g3: fill = interleave(fill, self.wo_reads()[3 + 4 * (k + 2):3 + 4 * (k + 2) + 8])
            per = -(-len(fill) // 8)
            if k == 13: lastk = len(L)
            for j in range(8):
                sg, nt = j >> 1, j & 1
                d = v(vK + 8 * sg + 4 * nt, 4)
                L.append('%s %s, %s, %s, %s' % (M16, d, a(8 * k + 4 * nt, 4), v(vE + 4 * ((4 * k + sg) % 12), 4), d if k else '0'))
                if later and k and j % c.g3_every == 0:
                    while not isinstance(later[0], tuple): L.append(later.pop(0))
                    L.append(later.pop(0))
                L += fill[per * j:per * (j + 1)]
        assert not later
        R = L[lastk:]; del L[lastk:]
        L += self.stamp(10)
        A = R.append
        for sg in range(4):
            for nt in range(2):
                d = vK + 8 * sg + 4 * nt
                R += self.pack(d, 2)
                A('ds_write_b64 %s, %s offset:%d' % (v(vOW + nt), v(d, 2), 1024 * sg))
            A('ds_read_b128 %s, %s offset:%d' % (v(vP + 4 * sg, 4), v(vOR), 1024 * sg))
            A('buffer_store_dwordx4 %s, %s, s[%d:%d], %s offen %s' % (v(vP + 4 * sg, 4), v(vOG), SOUT, SOUT + 3, s(sXO + sg), c.outfl))
        L += self.sched(R, 'out')
        A = L.append
        if c.stamps:
            L += self.stamp(11)
            A('s_memrealtime s[%d:%d]' % (sT0, sT1)); A('@waitlgkm_all')
            A('v_writelane_b32 %s, %s, 12' % (v(vST), s(sT0)))
            A('s_lshl_b32 %s, s2, 2' % s(sT2)); A('s_add_u32 %s, %s, %s' % (s(sT2), s(sT2), s(sW))); A('s_lshl_b32 %s, %s, 8' % (s(sT2), s(sT2)))
            A('s_add_u32 %s, %s, %d' % (s(sT2), s(sT2), WS_STAMP))
            A('v_lshlrev_b32 %s, 2, %s' % (v(vT), v(vL)))
            for k in range(4): A('v_writelane_b32 %s, s%d, %d' % (v(vST), 12 + 2 * k, 32 + k))
            A('buffer_store_dword %s, %s, s[%d:%d], %s offen' % (v(vST), v(vT), SWS, SWS + 3, s(sT2)))
        if c.leak:
            if c.leak == 11: L += self.stamp(11)
            A('s_memrealtime s[100:101]'); A('s_lshl_b32 s11, s11, 2'); A('@waitlgkm_all')
            A('L_leak:'); A('s_memrealtime s[%d:%d]' % (sT0, sT1)); A('@waitlgkm_all'); A('s_sub_u32 %s, %s, s100' % (s(sT0), s(sT0))); A('s_cmp_lt_u32 %s, s11' % s(sT0)); A('s_cbranch_scc1 L_leak')
        if c.tfix:
            A('L_tfix:'); A('s_memrealtime s[%d:%d]' % (sT0, sT1)); A('@waitlgkm_all'); A('s_sub_u32 %s, %s, s100' % (s(sT0), s(sT0))); A('s_cmp_lt_u32 %s, %d' % (s(sT0), c.tfix)); A('s_cbranch_scc1 L_tfix')
        A('L_end:'); A('s_endpgm')
        return L

    def throttle(self, L, br):
        c = self.cfg
        if not c.thr: return L
        out = []; seen = set()
        for x in L:
            if isinstance(x, tuple) and x[1] is not None and x[1] not in seen and x[1] in c.thr_tags:
                if x[1] != 'wq': seen.add(x[1])
                n = self.nthr; self.nthr += 1
                out += ['s_cbranch_vccnz L_thr%d' % n, 'L_thb%d:' % n]
                self.thr_side += ['L_thr%d:' % n, 's_waitcnt vmcnt(%d)' % c.thr, 's_branch L_thb%d' % n]
            out.append(x)
        return out
    def marks(self, L):
        if not self.cfg.marks: return L
        out = []; seen = set()
        for x in L:
            t = x[0] if isinstance(x, tuple) else x
            hit = [k for k, (p, af) in enumerate(self.cfg.marks) if (t == p or t.startswith(p + ' ')) and k not in seen]
            for k in hit:
                if not self.cfg.marks[k][1]: out.append(('s_memtime s[%d:%d]' % (12 + 2 * k, 13 + 2 * k), 'nowait'))
            out.append(x)
            for k in hit:
                if self.cfg.marks[k][1]: out.append(('s_memtime s[%d:%d]' % (12 + 2 * k, 13 + 2 * k), 'nowait'))
                seen.add(k)
        return out
    def build(self):
        shared = self.prologue() + self.part1() + self.stamp(14) + ['s_cmp_eq_u32 %s, 0' % s(sBR), 's_cbranch_scc1 L_brA']
        MK = '.set MARK_A, 0'
        M0 = copy.deepcopy(self.M)
        main = finalize(self.marks(shared + self.middle('B') + self.tail()))
        self.M = M0
        alt = finalize(self.marks(shared + [MK, 'L_brA:'] + self.middle('A') + self.publish('') + ['s_branch L_join']))
        alt = alt[alt.index(MK) + 1:]
        side = finalize(self.repoll + self.far() + self.mknonce() + self.nonce_retry('B') + self.nonce_retry('A') + self.part_retry('B') + self.part_retry('A'))
        return main, alt, side + self.thr_side + self.table()

HEADER = open(os.path.join(os.path.dirname(os.path.abspath(__file__)), 'header.txt')).read()

def generate(cfg):
    import emit
    emit.MERGE = cfg.merge
    import sched
    sched.BURST = cfg.burst; sched.HOLD = cfg.hold
    g = G(cfg)
    main, alt, side = g.build()
    if cfg.align:
        from align import align
        hd = '.amdgcn_target "amdgcn-amd-amdhsa--gfx950"\n.text\n'
        code = [l.replace('CODE_SPAN', '0x5000') for l in main + alt]
        rest = '\n'.join(side) + '\n'
        code, p0, p1 = align(hd, code, rest, cfg.align)
        sys.stderr.write('misalignment penalty %d -> %d\n' % (p0, p1))
        code = [l.replace('0x5000', 'CODE_SPAN') if 's_cselect' in l else l for l in code]
        main, alt = code, []
    body = main + alt + side
    txt = HEADER
    if cfg.extra_empty:
        txt += '; @launch kernel=%s grid=(256,1,1) block=(256,1,1) lds=163840\n; @launch kernel=empty_kernel grid=(256,1,1) block=(256,1,1) lds=0\n' % KNAME
    else:
        txt += '; @launch grid=(256,1,1) block=(256,1,1) lds=163840\n'
    txt += '.amdgcn_target "amdgcn-amd-amdhsa--gfx950"\n.text\n.globl %s\n.p2align 8\n.type %s,@function\n%s:\n' % (KNAME, KNAME, KNAME)
    txt += '\n'.join(('' if l.endswith(':') else '    ') + l for l in body) + '\n'
    if cfg.extra_empty:
        txt += '.globl empty_kernel\n.p2align 8\n.type empty_kernel,@function\nempty_kernel:\n    s_endpgm\n'
        txt += '.section .rodata,"a"\n.p2align 6\n.amdhsa_kernel empty_kernel\n  .amdhsa_next_free_vgpr 8\n  .amdhsa_next_free_sgpr 16\n  .amdhsa_accum_offset 8\n  .amdhsa_group_segment_fixed_size 0\n  .amdhsa_kernarg_size 80\n  .amdhsa_user_sgpr_count 2\n  .amdhsa_user_sgpr_kernarg_segment_ptr 1\n  .amdhsa_system_sgpr_workgroup_id_x 1\n.end_amdhsa_kernel\n'
    txt += '.section .rodata,"a"\n.p2align 6\n.amdhsa_kernel %s\n' % KNAME
    txt += '  .amdhsa_next_free_vgpr 512\n  .amdhsa_next_free_sgpr 102\n  .amdhsa_accum_offset 256\n  .amdhsa_group_segment_fixed_size 0\n'
    txt += '  .amdhsa_kernarg_size 80\n  .amdhsa_user_sgpr_count 2\n  .amdhsa_user_sgpr_kernarg_segment_ptr 1\n  .amdhsa_system_sgpr_workgroup_id_x 1\n.end_amdhsa_kernel\n'
    import subprocess, tempfile, re
    d = tempfile.mkdtemp()
    open(d + '/a.s', 'w').write(txt.replace('CODE_SPAN', '0x5000'))
    r = subprocess.run(['clang', '-x', 'assembler', '-target', 'amdgcn-amd-amdhsa', '-mcpu=gfx950', '-c', d + '/a.s', '-o', d + '/a.o'], capture_output=True, text=True)
    if r.returncode: raise Exception(r.stderr[:3000])
    r = subprocess.run(['llvm-readelf', '-S', d + '/a.o'], capture_output=True, text=True).stdout
    size = int(re.search(r'\.text\s+PROGBITS\s+\w+\s+\w+\s+(\w+)', r).group(1), 16)
    assert size < 32768 + 64
    sys.stderr.write('code bytes: %d\n' % size)
    return txt.replace('CODE_SPAN', hex(size - 64))

if __name__ == '__main__':
    cfg = Cfg()
    out = sys.argv[1]
    for kv in sys.argv[2:]:
        k, val = kv.split('=', 1); assert hasattr(cfg, k), k; setattr(cfg, k, eval(val))
    open(out, 'w').write(generate(cfg))
```

```python
import sys, os
from emit import finalize, interleave
from sched import schedule, Machine
import copy

KNAME = 'concat_heads__linear_attn_block__linear_kernel_hedgehog__prompt_kernel'

class Cfg:
    stamps = False; lite = False; fine = None; frange = (0, 1); marks = None; leak = None; tfix = 0; extra_empty = False; force_global = False; verbose = False
    rotmap = None; rottab = None; tswap = 0; pref_slots = 2
    xfl = ''; wfl = ''; wofl = ''; outfl = 'sc1'; prefl = 'sc1'; tfl = ''
    touch = {"p2": "o"}
    wv_bar = (1, 2, 4, 7); hi2 = 6000; q_tm = False
    rel_part = 1600; rel_partA = 2200; rel_nonce = 0
    wo_before = 2; wo_mid = 2; wo_imp = 4; wo_g3 = 1; tab_late = True; q_tight = False; p2_tight = False; wo_early = 2; late0 = 6; pre_q = False; ws_base = 0
    stages = (3, 5, 7, 11, 15); g3_every = 2; o_first = 8
    dslat = 130; merge = 24; burst = 24; hold = 12
    miss = {}; lines = {}
    wv_early = 0; wv_at = 7
    wq_pre = 7
    fake_n2 = False
    wq_at = 0
    align = 4
    flip = False
    delay = None
    help_plain = False
    help = 'xwX'
    merge_q = 2
    thr = 0; thr_tags = ['x11', 'x12', 'x13', 'wv0', 'wv1', 'wv2', 'wv3', 'wv4', 'wv5', 'wv6', 'wq']
    depth = 4; order0 = 'w2 w3 x2 w4 x3 w5 w6 x4 x5'; wkbar = {0: 'wk1 phi', 2: 'wk3', 4: 'wk6'}; t0boost = 2000
    rate = 2.2; cap = 256; lat = 400; fifo = 4; wlines = 90; cold = 900; pmiss = 900; smiss = 1000

WS_XCC, WS_FLAG, WS_PART, WS_O, WS_STAMP = 4096, 8192, 65536, 2 << 20, 16 << 20
WS_BYTES = 32 << 20
L_WK, L_WV, L_MISC, L_WQ, L_WO, L_SCR, L_OT = 98304, 126976, 155648, 0, 32768, 32768, 65536
OOB = 0x40000000
sAX, sAW, sAWO, sBX, sBW, sPHI, sBWO, sOUT, sDBG, sWSP = 4, 6, 8, 10, 12, 14, 16, 18, 20, 22
SX, SW, SWO, SPHI, SWS, SOUT = 24, 28, 32, 36, 40, 44
sBR, sRB, sH, sW, sGID, sSLOT, sT0, sT1, sT2, sXCC = 48, 49, 50, 51, 52, 53, 54, 55, 56, 57
sN0, sN1 = 58, 59
sHI, sE28 = 60, 62
sXO, sWO_ = 64, 72
sSPIN, sFAR = 71, 72
sM0X, sM0W, sSH, sCB, sRQ, sPB = 80, 81, 82, 83, 84, 85
sA, sB_, sC_, sD_ = 86, 87, 88, 89
sOB1, sWOM, sDT, sROT, sXB, sWB, sOBX, sFLG, sT3, sREC, sRECA = 90, 91, 92, 93, 94, 95, 96, 97, 98, 99, 79
sM0K = 3
sPX, sPL0, sPL1, sSET, sRECL, sSCR = 4, 5, 6, 7, 8, 9
sWOS, sTAB = sXCC, SX
sFLW = sSLOT
sSGN = sSH
sM1, sM2 = SPHI, SPHI + 2
SPIN = ['s_add_u32 s71, s71, 1', 's_cmp_gt_u32 s71, 0x100000', 's_cbranch_scc1 L_end']
vL = 1
vXD, vWD, vWRq, vWRk, vZ = 2, 6, 7, 8, 9
vXR, vXR2 = 10, 14
vDUM, vT = 18, 19
vPH, vID, vC, vST, vN = 20, 28, 36, 37, 38
vK, vV, vP, vE, vKV, vT2 = 40, 72, 104, 136, 200, 232
vTAG, vL16 = 248, 249
vWO0, vWOD = 250, 252
vWDq, vWDv = 253, 251
vTCH, vTCO, vPRE = None, 254, 255
vS16, vOW, vOR, vOG = vT2 + 3, vT2 + 4, vT2 + 8, vT2 + 9
vOF = list(range(20, 28)) + list(range(32, 36)) + [254, 255]
aX, aWR = 0, 224

def v(r, n=1): return 'v%d' % r if n == 1 else 'v[%d:%d]' % (r, r + n - 1)
def a(r, n=1): return 'a%d' % r if n == 1 else 'a[%d:%d]' % (r, r + n - 1)
def s(r, n=1): return 's%d' % r if n == 1 else 's[%d:%d]' % (r, r + n - 1)
MF = 'v_mfma_f32_32x32x16_bf16'
def mfma(d, x, y, c): return '%s %s, %s, %s, %s' % (MF, v(d, 16), x, y, v(c, 16) if c is not None else '0')

class G:
    def __init__(self, cfg):
        self.cfg = c = cfg; self.npc = 0; self.nthr = 0; self.thr_side = []
        self.M = Machine(c.rate, c.cap, c.lat, fifo=c.fifo, lines={'wk': c.wlines, 'wv': c.wlines, 'wq': c.wlines, 'phi': 13, 'touch': 100, 'pre': 128, 'nonce': 4, 'side': 4, 'pref': 4, 'tab': 4, 'rec': 8},
                         miss={'x0': c.cold, 'nonce': 500, 'part': c.pmiss, 'rec': c.pmiss, 'pre': 600, 'touch': 400, 'pst': c.smiss, 'side': 500, 'ost': 250})
        self.M.miss.update(c.miss); self.M.lines.update(c.lines)
    def stamp(self, k):
        if self.cfg.leak == k: return ['@waitlgkm_all', 's_memrealtime s[%d:%d]' % (sT0, sT1), '@waitlgkm_all', 's_sub_u32 s11, %s, s100' % s(sT0)]
        if not self.cfg.stamps or (self.cfg.lite and k not in (11, 13)): return []
        return ['@waitlgkm_all', 's_memtime s[%d:%d]' % (sT0, sT1), 's_memrealtime s[100:101]', '@waitlgkm_all', 'v_writelane_b32 %s, %s, %d' % (v(vST), s(sT0), k),
                'v_writelane_b32 %s, s100, %d' % (v(vST), 16 + k)]
    def sched(self, L, name, **kw): return self.fine(schedule(self.M, L, verbose=name if self.cfg.verbose else False, dslat=self.cfg.dslat, **kw), name)
    def glue(self, L): return self.M.run(L)
    def fine(self, L, name):
        if not self.cfg.fine or not name.startswith(self.cfg.fine): return L
        out = []; n = len(L); lo, hi = [int(f * n) for f in self.cfg.frange]; pos = {lo + (k * (hi - lo)) // 3: k for k in range(4)}
        for i, x in enumerate(L + [None]):
            if i in pos: out.append(('s_memtime s[%d:%d]' % (12 + 2 * pos[i], 13 + 2 * pos[i]), 'nowait'))
            if x is not None: out.append(x)
        T = [self.M.times[i] for i in sorted(pos)]
        sys.stderr.write('model %s: %s\n' % (name, [b - a for a, b in zip(T[:-1], T[1:])]))
        if self.cfg.verbose:
            for i, k in pos.items(): sys.stderr.write('  fine %s %d at %d: %s\n' % (name, k, i, L[i]))
        return out

    def offs(self, i):
        L = ['s_lshl_b32 %s, %s, 7' % (s(sD_), s(sROT)), 's_add_u32 %s, %s, %s' % (s(sXO + i), s(sXB), s(sD_)),
             's_mul_i32 %s, %s, %d' % (s(sD_), s(sROT), 64 * 2688), 's_add_u32 %s, %s, %s' % (s(sD_), s(sWB), s(sD_)), 's_add_u32 %s, %s, %d' % (s(sWO_ + i), s(sD_), 4096 - 1024 * (i & 3))]
        if i < 6: L += ['s_add_u32 %s, %s, 1' % (s(sROT), s(sROT)), 's_cmp_eq_u32 %s, 7' % s(sROT), 's_cselect_b32 %s, 0, %s' % (s(sROT), s(sROT))]
        return L
    def touches(self, pos):
        L = []
        for w in self.cfg.touch.get(pos, ''):
            if w == 'p': L.append(('buffer_load_dword %s, %s, s[%d:%d], %s offen %s' % (v(vDUM), v(vPRE), SWS, SWS + 3, s(sOBX), self.cfg.prefl), 'pre'))
            else: L += self.touch(w)
        return L
    def touch(self, what):
        c = self.cfg
        if what == 'o': return [('buffer_load_dword %s, %s, s[%d:%d], 0 offen %s' % (v(vDUM), v(vTCO), SWO, SWO + 3, c.tfl), 'touch')]
        return [('buffer_load_dword %s, %s, s[%d:%d], 0 offen offset:%d %s' % (v(vDUM), v(vTCH), SW, SW + 3, {'q': 0, 'v': 1792}[what], c.tfl), 'touch')]

    def prologue(self):
        c = self.cfg; L = []; A = L.append
        A('s_load_dwordx16 s[4:19], s[0:1], 0')
        A('s_load_dwordx4 s[20:23], s[0:1], 64')
        if c.stamps or c.tfix or c.leak: A('s_memrealtime s[100:101]')
        A('s_cmp_ge_u32 s2, 256'); A('s_cbranch_scc1 L_end')
        if c.delay:
            A('s_and_b32 s30, s2, 7'); A('s_lshr_b32 s30, %d, s30' % c.delay[0]); A('s_bitcmp0_b32 s30, 0'); A('s_cbranch_scc1 L_nodelay')
            A('L_delay:'); A('s_memrealtime s[30:31]'); A('@waitlgkm_all'); A('s_sub_u32 s30, s30, s100'); A('s_cmp_lt_u32 s30, %d' % c.delay[1]); A('s_cbranch_scc1 L_delay')
            A('L_nodelay:')
        A('s_lshr_b32 %s, s2, 3' % s(sSLOT))
        if c.pref_slots:
            A('s_cmp_lt_u32 %s, %d' % (s(sSLOT), c.pref_slots)); A('s_cselect_b32 %s, CODE_SPAN, 0' % s(sT2))
            A('s_getpc_b64 s[%d:%d]' % (sT0, sT1))
            A('v_lshlrev_b32 %s, 7, v0' % v(vT))
            A('v_min_u32 %s, %s, %s' % (v(vT), s(sT2), v(vT)))
        else:
            A('s_lshl_b32 %s, %s, 10' % (s(sT2), s(sSLOT)))
            A('s_getpc_b64 s[%d:%d]' % (sT0, sT1))
            A('v_and_b32 %s, 0xe0, v0' % v(vT)); A('v_lshl_add_u32 %s, %s, 2, %s' % (v(vT), v(vT), s(sT2)))
            A('v_min_u32 %s, CODE_SPAN, %s' % (v(vT), v(vT)))
        L.append(('global_load_dword %s, %s, s[%d:%d]' % (v(vDUM), v(vT), sT0, sT1), 'pref'))
        A('v_lshrrev_b32 %s, 6, v0' % v(vT)); A('v_and_b32 %s, 63, v0' % v(vL))
        A('v_readfirstlane_b32 %s, %s' % (s(sW), v(vT)))
        A('s_bfe_u32 %s, s2, 0x10002' % s(sBR))
        if c.flip: A('s_xor_b32 %s, %s, 1' % (s(sBR), s(sBR)))
        A('s_and_b32 %s, s2, 3' % s(sRB)); A('s_lshl_b32 %s, %s, 1' % (s(sRB), s(sRB)))
        A('s_lshr_b32 %s, %s, 4' % (s(sT2), s(sSLOT))); A('s_add_u32 %s, %s, %s' % (s(sRB), s(sRB), s(sT2)))
        A('s_and_b32 %s, %s, 15' % (s(sH), s(sSLOT)))
        if c.rottab:
            w = sum(x << (4 * i) for i, x in enumerate(c.rottab))
            A('s_mov_b32 %s, 0x%x' % (s(sN0), w & 0xffffffff)); A('s_mov_b32 %s, 0x%x' % (s(sN1), w >> 32)); A('s_lshl_b32 %s, %s, 2' % (s(sROT), s(sH)))
            A('s_lshr_b64 s[%d:%d], s[%d:%d], %s' % (sN0, sN1, sN0, sN1, s(sROT))); A('s_and_b32 %s, %s, 7' % (s(sROT), s(sN0)))
            A('s_mul_i32 %s, %s, 3' % (s(sT2), s(sT2))); A('s_add_u32 %s, %s, %s' % (s(sROT), s(sROT), s(sT2)))
            A('s_sub_u32 %s, %s, 7' % (s(sB_), s(sROT))); A('s_cselect_b32 %s, %s, %s' % (s(sROT), s(sROT), s(sB_)))
        else:
            A('s_mul_i32 %s, %s, 3' % (s(sT2), s(sT2))); A('s_add_u32 %s, %s, %s' % (s(sROT), s(sH), s(sT2)))
            A('s_mul_i32 %s, %s, 37' % (s(sB_), s(sROT))); A('s_lshr_b32 %s, %s, 8' % (s(sB_), s(sB_)))
            A('s_mul_i32 %s, %s, 7' % (s(sB_), s(sB_))); A('s_sub_u32 %s, %s, %s' % (s(sROT), s(sROT), s(sB_)))
        if c.rotmap:
            w = sum(x << (4 * i) for i, x in enumerate(c.rotmap))
            A('s_lshl_b32 %s, %s, 2' % (s(sROT), s(sROT))); A('s_lshr_b32 %s, 0x%x, %s' % (s(sROT), w, s(sROT))); A('s_and_b32 %s, %s, 7' % (s(sROT), s(sROT)))
        A('s_and_b32 %s, %s, %d' % (s(sA), s(sH), c.tswap))
        A('s_lshl_b32 %s, %s, 2' % (s(sB_), s(sRB))); A('s_add_u32 %s, %s, %s' % (s(sB_), s(sB_), s(sW)))
        A('s_lshl1_add_u32 %s, %s, %s' % (s(sB_), s(sB_), s(sA))); A('s_mul_i32 %s, %s, 28672' % (s(sXB), s(sB_)))
        if c.fake_n2:
            A('s_lshr_b32 %s, %s, 3' % (s(sB_), s(sH))); A('s_mul_i32 %s, %s, 14336' % (s(sB_), s(sB_))); A('s_add_u32 %s, %s, %s' % (s(sXB), s(sXB), s(sB_)))
        A('s_lshl_b32 %s, %s, 12' % (s(sM0X), s(sW))); A('s_lshl_b32 %s, %s, 10' % (s(sM0W), s(sW)))
        A('s_mul_i32 %s, %s, -57344' % (s(sDT), s(sA))); A('s_add_u32 %s, %s, 28672' % (s(sDT), s(sDT)))
        A('s_cmp_eq_u32 %s, 15' % s(sH)); A('s_cselect_b32 %s, 8, 0' % s(sSH))
        A('s_mul_i32 %s, %s, 56' % (s(sC_), s(sH))); A('s_sub_u32 %s, %s, %s' % (s(sC_), s(sC_), s(sSH)))
        if c.fake_n2:
            A('s_and_b32 %s, %s, 7' % (s(sC_), s(sH))); A('s_mul_i32 %s, %s, 112' % (s(sC_), s(sC_))); A('s_min_u32 %s, %s, 768' % (s(sC_), s(sC_)))
        A('s_mul_i32 %s, %s, %d' % (s(sD_), s(sW), 16 * 2688)); A('s_add_u32 %s, %s, %s' % (s(sWB), s(sC_), s(sD_)))
        L += self.offs(0) + self.offs(1)
        t0, t1, t2 = vT2, vT2 + 1, vT2 + 2
        A('v_lshrrev_b32 %s, 3, %s' % (v(t0), v(vL))); A('v_mul_u32_u24 %s, 896, %s' % (v(t0), v(t0)))
        A('v_lshrrev_b32 %s, 4, %s' % (v(t1), v(vL))); A('v_and_b32 %s, 7, %s' % (v(t2), v(vL)))
        A('v_xor_b32 %s, %s, %s' % (v(t2), v(t1), v(t2)))
        A('v_lshl_add_u32 %s, %s, 4, %s' % (v(vXD), v(t2), v(t0)))
        A('v_xor_b32 %s, 4, %s' % (v(t2), v(t2))); A('v_lshl_add_u32 %s, %s, 4, %s' % (v(vXD + 1), v(t2), v(t0)))
        A('v_add_u32 %s, %d, %s' % (v(vXD + 2), 2 * 6144, v(vXD))); A('v_add_u32 %s, %d, %s' % (v(vXD + 3), 3 * 6144, v(vXD + 1)))
        A('v_add_u32 %s, %d, %s' % (v(vXD + 1), 6144, v(vXD + 1)))
        A('v_lshrrev_b32 %s, %d, %s' % (v(t0), 3 if c.fake_n2 else 2, v(vL))); A('v_mul_u32_u24 %s, 2688, %s' % (v(t0), v(t0)))
        A('v_and_b32 %s, %d, %s' % (v(t2), 7 if c.fake_n2 else 3, v(vL))); A('v_lshl_add_u32 %s, %s, 4, %s' % (v(vWDq), v(t2), v(t0))); A('v_add_u32 %s, 896, %s' % (v(vWD), v(vWDq)))
        A('s_mul_i32 %s, %s, 7168' % (s(sM0K), s(sW)))
        if c.fake_n2:
            for r, o in ((vV + 30, 896), (vKV + 31, 1792), (vKV + 30, 0)): A('v_add_u32 %s, %d, %s' % (v(r), 8 * 2688 + o, v(vWDq)))
        for srd, n in ((SX, 1835008), (SW, 1204224 + 4096), (SWO, 401408), (SWS, WS_BYTES), (SOUT, 3670016)):
            A('s_mov_b32 %s, %d' % (s(srd + 2), n)); A('s_mov_b32 %s, 0x20000' % s(srd + 3))
        A('s_cmp_eq_u32 %s, 0' % s(sBR))
        A('@waitlgkm_all')
        if c.leak == 13: L += self.stamp(13); A('s_cmp_eq_u32 %s, 0' % s(sBR))
        if c.stamps: A('v_writelane_b32 %s, s100, 0' % v(vST)); L += self.stamp(13); A('s_cmp_eq_u32 %s, 0' % s(sBR))
        for (srd, pa, pb) in ((SX, sAX, sBX), (SW, sAW, sBW), (SWO, sAWO, sBWO)):
            A('s_cselect_b32 %s, %s, %s' % (s(srd), s(pa), s(pb))); A('s_cselect_b32 %s, %s, %s' % (s(srd + 1), s(pa + 1), s(pb + 1)))
        A('s_cselect_b32 %s, 0, 25088' % s(SPHI + 2))
        L += self.dma_x(0)
        A('s_sub_u32 %s, %s, 4096' % (s(SW), s(SW))); A('s_subb_u32 %s, %s, 0' % (s(SW + 1), s(SW + 1)))
        L += self.dma_w(0, 1, L_WK, 'wk0') + self.dma_w(1, 1, L_WK, 'wk1', False)
        A('s_mov_b32 %s, %s' % (s(SPHI), s(sPHI))); A('s_mov_b32 %s, %s' % (s(SPHI + 1), s(sPHI + 1))); A('s_mov_b32 %s, 0x20000' % s(SPHI + 3))
        A('v_lshlrev_b32 %s, 4, %s' % (v(vL16), v(vL)))
        A('s_cmp_ge_u32 %s, 2' % s(sW)); A('s_cselect_b32 %s, 0x%x, %s' % (s(sA), OOB, s(sM0W))); A('v_add_u32 %s, %s, %s' % (v(t0), s(sA), v(vL16)))
        A('s_mul_i32 %s, %s, 1568' % (s(sT2), s(sH))); A('s_add_u32 m0, %s, %d' % (s(sM0W), L_MISC))
        L.append(('buffer_load_dwordx4 %s, s[%d:%d], %s offen lds' % (v(t0), SPHI, SPHI + 3, s(sT2)), 'phi'))
        L += self.dma_x(1)
        if c.ws_base: A('s_add_u32 %s, %s, %d' % (s(sWSP), s(sWSP), c.ws_base)); A('s_addc_u32 %s, %s, 0' % (s(sWSP + 1), s(sWSP + 1)))
        for (srd, p) in ((SWS, sWSP), (SOUT, sOUT)):
            A('s_mov_b32 %s, %s' % (s(srd), s(p))); A('s_mov_b32 %s, %s' % (s(srd + 1), s(p + 1)))
        A('v_mov_b32 %s, 0' % v(vZ))
        A('s_or_b32 %s, s2, %s' % (s(sT2), s(sW))); A('s_cmp_eq_u32 %s, 0' % s(sT2)); A('s_cbranch_scc1 L_mknonce')
        A('L_nononce:')
        if c.help:
            if c.help_plain: A('s_lshr_b32 %s, 0x2a54, %s' % (s(sA), s(sH))); A('s_or_b32 %s, %s, %s' % (s(sA), s(sA), s(sBR))); A('s_bitcmp0_b32 %s, 0' % s(sA))
            else: A('s_cmp_eq_u32 %s, 0' % s(sBR))
            A('s_cbranch_scc1 L_help'); A('L_helped:')
        self.glue(L)
        return L

    def setup(self):
        c = self.cfg; L = []; A = L.append
        t0, t1, t2 = vT2, vT2 + 1, vT2 + 2
        A('v_add_u32 %s, 1792, %s' % (v(vWDv), v(vWDq)))
        A('s_mov_b32 %s, 0' % s(sSPIN))
        A('s_getreg_b32 %s, hwreg(HW_REG_XCC_ID, 0, 4)' % s(sXCC))
        m, hi, t3, t4 = vT2 + 3, vT2 + 4, vT2 + 5, vT2 + 6
        A('s_mul_i32 %s, %s, 98' % (s(sA), s(sSLOT))); A('s_mul_i32 %s, %s, 25' % (s(sB_), s(sW))); A('s_add_u32 %s, %s, %s' % (s(sA), s(sA), s(sB_)))
        A('v_min_u32 %s, 24, %s' % (v(t0), v(vL))); A('v_add_u32 %s, %s, %s' % (v(t0), s(sA), v(t0))); A('v_min_u32 %s, 3135, %s' % (v(t0), v(t0)))
        A('v_lshlrev_b32 %s, 7, %s' % (v(vTCO), v(t0)))
        A('v_and_b32 %s, 31, %s' % (v(m), v(vL))); A('v_lshrrev_b32 %s, 5, %s' % (v(hi), v(vL)))
        A('v_bfe_u32 %s, %s, 1, 3' % (v(t1), v(m))); A('v_xor_b32 %s, %s, %s' % (v(t1), v(t1), v(hi)))
        A('v_lshl_add_u32 %s, %s, 7, %s' % (v(t2), v(m), s(sM0X)))
        for ks in range(4):
            A('v_xor_b32 %s, %d, %s' % (v(t3), 2 * ks, v(t1))); A('v_lshl_add_u32 %s, %s, 4, %s' % (v(vXR + ks), v(t3), v(t2)))
            A('v_add_u32 %s, 0x10000, %s' % (v(vXR2 + ks), v(vXR + ks)))
        A('v_bfe_u32 %s, %s, 2, 2' % (v(t1), v(vL))); A('v_lshlrev_b32 %s, 6, %s' % (v(t2), v(t1)))
        A('v_lshl_add_u32 %s, %s, 9, %s' % (v(t2), v(hi), v(t2)))
        A('v_bfe_u32 %s, %s, 4, 1' % (v(t3), v(vL))); A('v_and_b32 %s, 3, %s' % (v(t4), v(vL)))
        A('v_lshlrev_b32 %s, 3, %s' % (v(t4), v(t4))); A('v_lshl_add_u32 %s, %s, 5, %s' % (v(t4), v(t3), v(t4)))
        A('v_add3_u32 %s, %s, %s, %s' % (v(vWRq), v(t2), v(t4), s(sSH)))
        A('v_add_u32 %s, %d, %s' % (v(vWRk), L_WK, v(vWRq)))
        A('v_xor_b32 %s, %s, %s' % (v(t3), s(sW), v(t1))); A('v_lshl_add_u32 %s, %s, 6, %s' % (v(t4), v(t3), v(t4)))
        A('v_lshl_add_u32 %s, %s, 8, %s' % (v(t4), v(t1), v(t4))); A('v_lshrrev_b32 %s, 4, %s' % (v(t3), v(vL))); A('v_lshl_add_u32 %s, %s, 11, %s' % (v(t4), v(t3), v(t4)))
        A('v_add_u32 %s, %d, %s' % (v(vWO0), L_WO, v(t4)))
        A('s_and_b32 %s, %s, 1' % (s(sA), s(sW))); A('s_lshl_b32 %s, %s, 4' % (s(sA), s(sA))); A('v_xor_b32 %s, %s, %s' % (v(t4), s(sA), v(m)))
        A('s_bitcmp1_b32 %s, 1' % s(sW)); A('s_cselect_b32 %s, 0x80008000, 0' % s(sSGN))
        A('v_lshrrev_b32 %s, 3, %s' % (v(t0), v(t4))); A('v_and_b32 %s, 3, %s' % (v(t1), v(t4)))
        A('v_lshl_add_u32 %s, %s, 2, %s' % (v(t0), v(t0), v(t1)))
        A('v_lshrrev_b32 %s, 4, %s' % (v(t1), v(t4))); A('v_sub_u32 %s, %s, %s' % (v(t0), v(t0), v(t1)))
        A('v_bfe_u32 %s, %s, 2, 1' % (v(t1), v(m))); A('v_mad_u32_u24 %s, %s, 14, %s' % (v(t0), v(t1), v(t0)))
        A('v_and_b32 %s, 11, %s' % (v(t1), v(m))); A('v_cmp_eq_u32 vcc, 11, %s' % v(t1))
        A('v_mov_b32 %s, %d' % (v(t2), L_MISC + 2048))
        A('v_mul_u32_u24 %s, 224, %s' % (v(t3), v(hi))); A('v_lshl_add_u32 %s, %s, 1, %s' % (v(t3), v(t0), v(t3))); A('v_add_u32 %s, %d, %s' % (v(t3), L_MISC, v(t3)))
        A('v_cndmask_b32_e64 %s, %s, %s, vcc' % (v(vT2 + 12), v(t3), v(t2)))
        A('v_cndmask_b32_e64 %s, %s, 63, vcc' % (v(vT2 + 11), v(t0)))
        A('v_cmp_lt_u32_e64 s[%d:%d], 31, %s' % (sHI, sHI + 1, v(vL)))
        A('v_cmp_eq_u32_e64 s[%d:%d], 28, %s' % (sE28, sE28 + 1, v(m)))
        A('v_cndmask_b32_e64 %s, %s, %s, s[%d:%d]' % (v(vT2 + 13), v(vT2 + 12), v(t2), sHI, sHI + 1))
        return L

    def help(self):
        c = self.cfg; L = ['L_help:', '@assume_idle']; A = L.append
        t0, t1, t2 = vT2 + 8, vT2 + 9, vT2 + 10
        nh = 10 if c.help_plain else 16
        if c.help_plain:
            A('s_bfm_b32 %s, %s, 0' % (s(sC_), s(sH))); A('s_and_b32 %s, %s, 0xd5ab' % (s(sC_), s(sC_))); A('s_bcnt1_i32_b32 %s, %s' % (s(sC_), s(sC_)))
        else: A('s_mov_b32 %s, %s' % (s(sC_), s(sH)))
        A('s_mul_i32 %s, %s, %d' % (s(sA), s(sRB), nh)); A('s_add_u32 %s, %s, %s' % (s(sA), s(sA), s(sC_))); A('s_lshl2_add_u32 %s, %s, %s' % (s(sA), s(sA), s(sW)))
        def index(n, last):
            n = -(-(last + 1) // (32 * nh))
            A('s_mul_i32 %s, %s, %d' % (s(sB_), s(sA), n)); A('v_min_u32 %s, %d, %s' % (v(t0), n - 1, v(vL))); A('v_add_u32 %s, %s, %s' % (v(t0), s(sB_), v(t0)))
            A('v_min_u32 %s, %d, %s' % (v(t0), last, v(t0)))
        if 'x' in c.help:
            index(14, 7167)
            A('v_mul_u32_u24 %s, 9363, %s' % (v(t1), v(t0))); A('v_lshrrev_b32 %s, 21, %s' % (v(t1), v(t1))); A('v_add_u32 %s, 1, %s' % (v(t1), v(t1)))
            A('v_mul_u32_u24 %s, 28672, %s' % (v(t1), v(t1))); A('v_lshl_add_u32 %s, %s, 7, %s' % (v(t1), v(t0), v(t1)))
            A('global_load_dword %s, %s, s[%d:%d]' % (v(vDUM), v(t1), sBX, sBX + 1))
        if 'w' in c.help:
            index(13, 6271)
            A('v_mul_u32_u24 %s, 9363, %s' % (v(t1), v(t0))); A('v_lshrrev_b32 %s, 16, %s' % (v(t1), v(t1))); A('v_add_u32 %s, 1, %s' % (v(t1), v(t1))); A('v_lshrrev_b32 %s, 1, %s' % (v(t1), v(t1)))
            A('v_mul_u32_u24 %s, 896, %s' % (v(t1), v(t1))); A('v_lshl_add_u32 %s, %s, 7, %s' % (v(t1), v(t0), v(t1)))
            A('global_load_dword %s, %s, s[%d:%d]' % (v(vDUM), v(t1), sBW, sBW + 1))
        A('s_and_b32 %s, %s, 1' % (s(sB_), s(sRB))); A('s_mul_i32 %s, %s, %d' % (s(sB_), s(sB_), nh)); A('s_add_u32 %s, %s, %s' % (s(sC_), s(sC_), s(sB_))); A('s_lshl2_add_u32 %s, %s, %s' % (s(sC_), s(sC_), s(sW)))
        def index2(n, last):
            n = -(-(last + 1) // (8 * nh))
            A('s_mul_i32 %s, %s, %d' % (s(sB_), s(sC_), n)); A('v_min_u32 %s, %d, %s' % (v(t0), n - 1, v(vL))); A('v_add_u32 %s, %s, %s' % (v(t0), s(sB_), v(t0)))
            A('v_min_u32 %s, %d, %s' % (v(t0), last, v(t0)))
        if 'X' in c.help:
            index2(14, 1791)
            A('s_and_b32 %s, s2, 3' % s(sB_)); A('s_mul_i32 %s, %s, 1792' % (s(sB_), s(sB_))); A('v_add_u32 %s, %s, %s' % (v(t0), s(sB_), v(t0)))
            A('v_mul_u32_u24 %s, 9363, %s' % (v(t1), v(t0))); A('v_lshrrev_b32 %s, 21, %s' % (v(t1), v(t1))); A('v_add_u32 %s, 1, %s' % (v(t1), v(t1)))
            A('v_mul_u32_u24 %s, 28672, %s' % (v(t1), v(t1))); A('v_lshl_add_u32 %s, %s, 7, %s' % (v(t1), v(t0), v(t1)))
            A('global_load_dword %s, %s, s[%d:%d]' % (v(vDUM), v(t1), sAX, sAX + 1))
        if 'W' in c.help:
            index(13, 6271)
            A('v_mul_u32_u24 %s, 9363, %s' % (v(t1), v(t0))); A('v_lshrrev_b32 %s, 16, %s' % (v(t1), v(t1))); A('v_add_u32 %s, 1, %s' % (v(t1), v(t1))); A('v_lshrrev_b32 %s, 1, %s' % (v(t1), v(t1)))
            A('v_mul_u32_u24 %s, 896, %s' % (v(t1), v(t1))); A('v_lshl_add_u32 %s, %s, 7, %s' % (v(t1), v(t0), v(t1)))
            A('global_load_dword %s, %s, s[%d:%d]' % (v(vDUM), v(t1), sAW, sAW + 1))
        if 'p' in c.help:
            index(32, 16383)
            A('v_lshlrev_b32 %s, 7, %s' % (v(t1), v(t0))); A('v_add_u32 %s, %d, %s' % (v(t1), WS_O + (2 << 20), v(t1)))
            A('global_load_dword %s, %s, s[%d:%d]' % (v(vDUM), v(t1), sWSP, sWSP + 1))
        if 'O' in c.help:
            index(7, 3135)
            A('v_lshlrev_b32 %s, 7, %s' % (v(t1), v(t0)))
            A('global_load_dword %s, %s, s[%d:%d]' % (v(vDUM), v(t1), sAWO, sAWO + 1))
        if 'o' in c.help:
            index(7, 3135)
            A('v_lshlrev_b32 %s, 7, %s' % (v(t1), v(t0)))
            A('global_load_dword %s, %s, s[%d:%d]' % (v(vDUM), v(t1), sBWO, sBWO + 1))
        A('s_branch L_helped')
        return L
    def mknonce(self):
        L = ['L_mknonce:', '@assume_idle']; A = L.append
        A('s_load_dwordx2 s[%d:%d], s[%d:%d], 0' % (sT0, sT1, sWSP, sWSP + 1))
        A('@waitlgkm_all')
        A('s_add_u32 %s, %s, 0x9e3679b8' % (s(sT0), s(sT0))); A('s_add_u32 %s, %s, 0x85eaca6a' % (s(sT1), s(sT1)))
        for r in (sT0, sT1):
            A('s_or_b32 %s, %s, 0x00010001' % (s(r), s(r))); A('s_and_b32 %s, %s, 0xbfffbfff' % (s(r), s(r)))
        A('v_mov_b32 %s, %s' % (v(vN), s(sT0))); A('v_mov_b32 %s, %s' % (v(vN + 1), s(sT1)))
        A('s_mov_b64 exec, 1')
        A('global_store_dwordx2 %s, %s, s[%d:%d] sc1' % (v(vZ), v(vN, 2), sDBG, sDBG + 1))
        A('global_store_dwordx2 %s, %s, s[%d:%d] sc1' % (v(vZ), v(vN, 2), sWSP, sWSP + 1))
        A('s_mov_b64 exec, -1'); A('s_branch L_nononce')
        return L

    def setup2(self):
        m, hi, fp, ofs, ofs2 = vT2 + 3, vT2 + 4, vT2 + 11, vT2 + 12, vT2 + 13
        P0 = []
        for t in range(2):
            for j in range(8):
                d = 16 * t + 8 * (j >> 2) + (j & 3)
                P0.append('ds_read_u16 %s, %s offset:%d' % (v(vP + 8 * t + j), v(ofs2 if (t == 1 and j >= 4) else ofs), d * 56))
        def selector(dst, tgt):
            R = []
            x, y, z = vT2 + 8, vT2 + 9, vT2 + 10
            R.append('v_lshrrev_b32 %s, 3, %s' % (v(x), v(tgt))); R.append('v_bfe_u32 %s, %s, 1, 1' % (v(y), v(tgt)))
            R.append('v_lshl_add_u32 %s, %s, 1, %s' % (v(x), v(x), v(y)))
            R.append('v_and_b32 %s, 1, %s' % (v(y), v(tgt))); R.append('v_lshlrev_b32 %s, 4, %s' % (v(y), v(y)))
            R.append('v_mov_b32 %s, 0x3f80' % v(z)); R.append('v_lshlrev_b32 %s, %s, %s' % (v(z), v(y), v(z)))
            R.append('v_bfe_u32 %s, %s, 2, 1' % (v(y), v(tgt))); R.append('v_cmp_eq_u32 vcc, %s, %s' % (v(y), v(hi)))
            R.append('v_cndmask_b32_e64 %s, 15, %s, vcc' % (v(x), v(x)))
            mk = [sN0, sHI + 0, sPB - 1, sN0]
            for i in range(8):
                r = (sN0, sT0)[i & 1]
                R.append('v_cmp_eq_u32_e64 s[%d:%d], %d, %s' % (r, r + 1, i, v(x)))
                R.append('v_cndmask_b32_e64 %s, 0, %s, s[%d:%d]' % (v(dst + i), v(z), r, r + 1))
            return R
        P1 = selector(vID, m)
        P2 = selector(vE, fp)
        P2 += ['v_mov_b32 %s, 0x3fb8aa3b' % v(vC),
               'v_bfe_u32 %s, %s, 3, 2' % (v(vT2 + 8), v(vL)), 'v_and_b32 %s, 7, %s' % (v(vPRE), v(vL)), 'v_lshlrev_b32 %s, 7, %s' % (v(vPRE), v(vPRE)), 'v_lshl_add_u32 %s, %s, 14, %s' % (v(vPRE), v(vT2 + 8), v(vPRE)),
               's_lshl_b32 %s, %s, 3' % (s(sGID), s(sBR)), 's_add_u32 %s, %s, %s' % (s(sGID), s(sGID), s(sRB)),
               's_and_b32 %s, %s, 3' % (s(sCB), s(sH)), 's_lshr_b32 %s, %s, 2' % (s(sRQ), s(sH)),
               's_lshl_b32 %s, %s, 4' % (s(sT3), s(sGID)), 's_add_u32 %s, %s, %s' % (s(sPB), s(sT3), s(sH)),
               's_lshl2_add_u32 %s, %s, %s' % (s(sT3), s(sGID), s(sW)), 's_lshl_b32 %s, %s, 6' % (s(sT3), s(sT3)), 's_add_u32 %s, %s, %s' % (s(sT3), s(sT3), s(sH)), 's_lshl_b32 %s, %s, 10' % (s(sOBX), s(sT3)),
               's_add_u32 %s, %s, %d' % (s(sOBX), s(sOBX), WS_O),
               's_and_b32 %s, %s, %d' % (s(sOB1), s(sH), self.cfg.tswap), 's_lshl_b32 %s, %s, 15' % (s(sOB1), s(sOB1)), 's_add_u32 %s, %s, %s' % (s(sOB1), s(sOB1), s(sOBX)),
               's_lshl_b32 %s, %s, 9' % (s(sT3), s(sGID)), 's_add_u32 %s, %s, %d' % (s(sT3), s(sT3), WS_FLAG),
               's_lshl_b32 %s, %s, 7' % (s(sFLW), s(sW)), 's_add_u32 %s, %s, %s' % (s(sFLW), s(sFLW), s(sT3)),
               's_lshl_b32 %s, %s, 7' % (s(sFLG), s(sRQ)), 's_add_u32 %s, %s, %s' % (s(sFLG), s(sFLG), s(sT3))]
        A = P2.append; t0, t1, t2 = vT2 + 8, vT2 + 9, vT2 + 10
        A('v_lshrrev_b32 %s, 4, %s' % (v(t0), v(vL))); A('v_bfe_u32 %s, %s, 2, 2' % (v(t1), v(vL))); A('v_xor_b32 %s, %s, %s' % (v(t1), v(t1), v(t0)))
        A('v_mul_u32_u24 %s, 896, %s' % (v(t0), v(t0))); A('v_lshl_add_u32 %s, %s, 6, %s' % (v(t0), v(t1), v(t0)))
        A('v_and_b32 %s, 3, %s' % (v(t2), v(vL))); A('v_lshl_add_u32 %s, %s, 4, %s' % (v(t0), v(t2), v(t0)))
        A('s_cmp_eq_u32 %s, 3' % s(sCB)); A('s_cselect_b32 %s, 1, 3' % s(sT3))
        A('v_cmp_lt_u32 vcc, %s, %s' % (s(sT3), v(t1))); A('v_mov_b32 %s, 0x%x' % (v(t2), OOB))
        A('v_cndmask_b32_e64 %s, %s, %s, vcc' % (v(vWOD), v(t0), v(t2)))
        A('s_lshl_b32 %s, %s, 3' % (s(sRECA), s(sPB))); A('s_add_u32 %s, %s, %d' % (s(sRECA), s(sRECA), WS_XCC))
        A('v_cmp_eq_u32 vcc, 0, %s' % v(vL)); A('v_and_b32 %s, 1, %s' % (v(t0), v(vL))); A('v_and_b32 %s, 2, %s' % (v(t1), v(vL)))
        A('v_cndmask_b32_e64 %s, %s, 0, vcc' % (v(vT), v(t2)))
        A('v_cmp_ne_u32_e64 s[%d:%d], 0, %s' % (sM1, sM1 + 1, v(t0))); A('v_cmp_ne_u32_e64 s[%d:%d], 0, %s' % (sM2, sM2 + 1, v(t1)))
        A('s_lshl1_add_u32 %s, %s, 1' % (s(sSET), s(sBR))); A('s_and_b32 %s, %s, %s' % (s(sSET), s(sSET), s(sW)))
        A('s_lshl_b32 %s, %s, 4' % (s(sT3), s(sBR))); A('s_add_u32 %s, %s, %s' % (s(sT3), s(sT3), s(sH))); A('s_lshl2_add_u32 %s, %s, %s' % (s(sT3), s(sT3), s(sSET)))
        A('s_lshl_b32 %s, %s, 13' % (s(sT3), s(sT3))); A('s_add_u32 %s, %s, %d' % (s(sPL0), s(sT3), WS_PART)); A('s_add_u32 %s, %s, 4096' % (s(sPL1), s(sPL0)))
        A('s_lshl_b32 %s, %s, 10' % (s(sT3), s(sRB))); A('s_add_u32 %s, %s, %s' % (s(sPX), s(sPL0), s(sT3))); A('s_lshl_b32 %s, %s, 10' % (s(sSET), s(sSET)))
        A('s_and_b32 %s, %s, 0xffffff80' % (s(sRECL), s(sRECA))); A('s_add_u32 %s, %s, %d' % (s(sSCR), s(sM0X), L_SCR))
        return P0, P1, P2

    def dma_x(self, i):
        L = ['s_add_u32 m0, %s, %d' % (s(sM0X), (i % 6) * 16384)]
        if i >= 7: L.append('s_add_u32 %s, %s, %s' % (s(sXO + i - 7), s(sXO + i - 7), s(sDT)))
        for j in range(2 if self.cfg.fake_n2 else 4):
            L.append(('buffer_load_dwordx4 %s, s[%d:%d], %s offen offset:%d %s lds' % (v(vXD + j), SX, SX + 3, s(sXO + i % 7), 1024 * j, self.cfg.xfl), 'x%d' % i))
        return L
    def dma_w(self, i, part, base, tag, m0=True):
        L = ['s_add_u32 m0, %s, %d' % (s(sM0K), base + (i & 4) * 1024)] if m0 else []
        if self.cfg.fake_n2: L.append(('buffer_load_dwordx4 %s, s[%d:%d], %s offen offset:%d %s lds' % (v((vKV + 30, vV + 30, vKV + 31)[part]), SW, SW + 3, s(sWO_ + i), 1024 * (i & 3), self.cfg.wfl), tag))
        return L + [('buffer_load_dwordx4 %s, s[%d:%d], %s offen offset:%d %s lds' % (v((vWDq, vWD, vWDv)[part]), SW, SW + 3, s(sWO_ + i), 1024 * (i & 3), self.cfg.wfl), tag)]
    def xfrag(self, i, ks, tile): return aX + ((i * 4 + ks) * 2 + tile) * 4
    def wread(self, slot, basev, off):
        r = aWR + 4 * (slot % 8)
        return ['ds_read_b64_tr_b16 %s, %s offset:%d' % (a(r + 2 * u, 2), v(basev), off + 256 * u) for u in range(2)]

    def xiter(self, i, extra=()):
        R = []; A = R.append
        ch, tile, sl = i % 7, i // 7, i % 6
        wk = ' ' + self.cfg.wkbar[i] if i in self.cfg.wkbar else ''
        A('@waitvm x%d' % i + wk)
        if wk: A('s_barrier')
        if i == 0: R += self.stamp(1)
        for ks in range(4):
            R += self.wread(4 * i + ks, vWRk, ch * 1024 + ks * 7168)
            R.append(('ds_read_b128 %s, %s offset:%d' % (a(self.xfrag(ch, ks, tile), 4), v((vXR2 if sl >= 4 else vXR) + ks), (sl & 3) * 16384), 'xr%d' % i))
        D = self.cfg.depth
        if i + D < 14:
            if i + D >= 6: A('@waitlgkm xr%d' % (i + D - 6))
            R += self.dma_x(i + D)
        R += self.touches(i)
        R += extra
        for ks in range(4):
            R.append((mfma(vK + 16 * tile, a(aWR + 4 * ((4 * i + ks) % 8), 4), a(self.xfrag(ch, ks, tile), 4), None if (ch == 0 and ks == 0) else vK + 16 * tile), 'kk'))
        return R
    def part1(self):
        P = self.setup2()
        R = []
        for i in range(2, 7): R += self.offs(i)
        W = lambda i: self.dma_w(i, 1, L_WK, 'wk%d' % i)
        su = self.setup() + P[2]
        R = su + self.touches('a') + R if 'a' in self.cfg.touch else R
        X = lambda i: self.dma_x(i) if i < self.cfg.depth else []
        late = {}
        for tok in self.cfg.order0.split():
            if '@' in tok:
                tok, at = tok.split('@'); late.setdefault(int(at), []).extend(W(int(tok[1])))
            else: R += W(int(tok[1])) if tok[0] == 'w' else X(int(tok[1]))
        R += ([] if 'a' in self.cfg.touch else su) + P[1]
        pk = []
        for u in range(8): pk += ['v_lshl_or_b32 %s, %s, 16, %s' % (v(vPH + u), v(vP + 2 * u + 1), v(vP + 2 * u)), 'v_xor_b32 %s, %s, %s' % (v(vPH + u), s(sSGN), v(vPH + u))]
        c = self.cfg
        for part, n, at, base, tg in ((2, c.wv_early, c.wv_at, L_WV, 'wv'),):
            for k in range(n): late.setdefault(at - c.depth, []).extend(self.dma_w(k, part, base, '%s%d' % (tg, k), k in (0, 4)))
        for i in range(7): R += self.xiter(i, late.get(i, []) + (P[0] + pk if i == 1 else []))
        return self.sched(R, 'part1')

    def gemm(self, acc, basev, off, transposed, first_slot, hooks=None, tiles=(0, 1), lead=False, ks=range(28)):
        L = []; hooks = hooks or {}
        for k in ks:
            L += hooks.get(k, [])
            w = a(aWR + 4 * ((first_slot + k) % 8), 4)
            L += self.wread(first_slot + k, basev, off + (k >> 2) * 1024 + (k & 3) * 7168)
            for tile in tiles:
                x = a(self.xfrag(k // 4, k % 4, tile), 4)
                L.append((mfma(acc + 16 * tile, w if transposed else x, x if transposed else w, None if k == 0 else acc + 16 * tile), 'lead' if (lead and tile == 0) else None))
        return L

    def pack(self, r, n=8): return ['v_cvt_pk_bf16_f32 %s, %s, %s' % (v(r + u), v(r + 2 * u), v(r + 2 * u + 1)) for u in range(n)]
    def zero_hi_pads(self, r): return ['v_cndmask_b32_e64 %s, %s, 0, s[%d:%d]' % (v(r + u), v(r + u), sHI, sHI + 1) for u in (6, 7)]

    def softmax(self, p, ep, en, tmp, pk):
        L = []; A = L.append
        Z, T, S1, S2 = tmp, tmp + 2, tmp + 4, tmp + 6
        VAL = [0, 1, 2, 3, 4, 5, 6, 8, 9, 10, 11, 12, 13, 14]
        if pk:
            for r in (ep + 7, ep + 15, en + 7, en + 15): A('v_mov_b32 %s, 0' % v(r))
        for (d, sg) in ((Z, ''), (T, '-')):
            A('v_max3_f32 %s, %s%s, %s%s, %s%s' % (v(d), sg, v(p), sg, v(p + 1), sg, v(p + 2)))
            A('v_max3_f32 %s, %s%s, %s%s, %s%s' % (v(d + 1), sg, v(p + 8), sg, v(p + 9), sg, v(p + 10)))
            for (x, y) in ((3, 4), (5, 6)): A('v_max3_f32 %s, %s, %s%s, %s%s' % (v(d), v(d), sg, v(p + x), sg, v(p + y)))
            for (x, y) in ((11, 12), (13, 14)): A('v_max3_f32 %s, %s, %s%s, %s%s' % (v(d + 1), v(d + 1), sg, v(p + x), sg, v(p + y)))
            A('v_max_f32 %s, %s, %s' % (v(d), v(d), v(d + 1)))
        A('v_permlane32_swap_b32 %s, %s' % (v(Z), v(T))); A('v_max_f32 %s, %s, %s' % (v(Z), v(Z), v(T)))
        A('v_mul_f32 %s, %s, %s' % (v(Z), v(vC), v(Z))); A('v_mov_b32 %s, %s' % (v(T), v(Z)))
        A('v_permlane32_swap_b32 %s, %s' % (v(Z), v(T)))
        for (e, z, ng) in ((ep, Z, 0), (en, T, 1)):
            for u in VAL:
                if pk and u not in (6, 14):
                    if u & 1 == 0: A('v_pk_fma_f32 %s, %s, %s, %s op_sel_hi:[1,0,0] neg_lo:[%d,0,1] neg_hi:[%d,0,1]' % (v(e + u, 2), v(p + u, 2), v(vC, 2), v(z, 2), ng, ng))
                else: A('v_fma_f32 %s, %s%s, %s, -%s' % (v(e + u), '-' if ng else '', v(p + u), v(vC), v(z)))
                A('v_exp_f32 %s, %s' % (v(e + u), v(e + u)))
        for (e, S, z) in ((ep, S1, Z), (en, S2, T)):
            if pk:
                A('v_pk_add_f32 %s, %s, %s' % (v(S, 2), v(e, 2), v(e + 2, 2)))
                for u in (4, 6, 8, 10, 12, 14): A('v_pk_add_f32 %s, %s, %s' % (v(S, 2), v(S, 2), v(e + u, 2)))
            else:
                A('v_add_f32 %s, %s, %s' % (v(S), v(e), v(e + 1))); A('v_add_f32 %s, %s, %s' % (v(S + 1), v(e + 8), v(e + 9)))
                for u in range(2, 7):
                    A('v_add_f32 %s, %s, %s' % (v(S), v(S), v(e + u))); A('v_add_f32 %s, %s, %s' % (v(S + 1), v(S + 1), v(e + 8 + u)))
            A('v_add_f32 %s, %s, %s' % (v(S), v(S), v(S + 1)))
        A('v_permlane32_swap_b32 %s, %s' % (v(S1), v(S2))); A('v_add_f32 %s, %s, %s' % (v(S1), v(S1), v(S2)))
        A('v_rcp_f32 %s, %s' % (v(S1), v(S1))); A('v_mov_b32 %s, %s' % (v(S2), v(S1)))
        A('v_permlane32_swap_b32 %s, %s' % (v(S1), v(S2)))
        for (e, z) in ((ep, S1), (en, S2)):
            for u in range(8):
                if pk: A('v_pk_mul_f32 %s, %s, %s op_sel_hi:[1,0]' % (v(e + 2 * u, 2), v(e + 2 * u, 2), v(z, 2)))
                else:
                    for k in range(1 if u in (3, 7) else 2): A('v_mul_f32 %s, %s, %s' % (v(e + 2 * u + k), v(e + 2 * u + k), v(z)))
                A('v_cvt_pk_bf16_f32 %s, %s, %s' % (v(e + u), v(e + 2 * u), '0' if (u in (3, 7) and not pk) else v(e + 2 * u + 1)))
        return L

    def elu1(self, p, e, pads, pk):
        L = []; A = L.append
        for u in range(0, 16, 2):
            n = 1 if (pads and u in (6, 14)) else 2
            if pk and n == 2: A('v_pk_mul_f32 %s, %s, %s op_sel_hi:[1,0]' % (v(e + u, 2), v(p + u, 2), v(vC, 2)))
            for k in range(n):
                if not (pk and n == 2): A('v_mul_f32 %s, %s, %s' % (v(e + u + k), v(vC), v(p + u + k)))
                A('v_exp_f32_e64 %s, %s clamp' % (v(e + u + k), v(e + u + k)))
                A('v_max_f32 %s, 0x358637bd, %s' % (v(p + u + k), v(p + u + k)))
                if not (pk and n == 2): A('v_add_f32 %s, %s, %s' % (v(e + u + k), v(e + u + k), v(p + u + k)))
            if pk and n == 2: A('v_pk_add_f32 %s, %s, %s' % (v(e + u, 2), v(e + u, 2), v(p + u, 2)))
            A('v_cvt_pk_bf16_f32 %s, %s, %s' % (v(e + u // 2), v(e + u), v(e + u + 1) if n == 2 else '0'))
        return L

    def nonce_load(self): return [('global_load_dwordx2 %s, %s, s[%d:%d] sc1' % (v(vN, 2), v(vZ), sDBG, sDBG + 1), 'nonce')]
    def use_nonce(self, br):
        L = []; A = L.append
        t0, t1 = vXR2, vXR2 + 1
        A('v_readfirstlane_b32 %s, %s' % (s(sN0), v(vN))); A('v_readfirstlane_b32 %s, %s' % (s(sN1), v(vN + 1)))
        A('v_cndmask_b32_e64 %s, %s, %s, s[%d:%d]' % (v(t0), v(vN), v(vN + 1), sM2, sM2 + 1))
        A('v_lshlrev_b32 %s, 16, %s' % (v(t1), v(t0))); A('v_and_b32 %s, 0xffff0000, %s' % (v(t0), v(t0)))
        A('v_cndmask_b32_e64 %s, %s, %s, s[%d:%d]' % (v(vTAG), v(t1), v(t0), sM1, sM1 + 1))
        if br == 'A': A('v_and_b32 %s, %s, %s' % (v(vTAG), s(sXB), v(vTAG)))
        A('s_and_b32 %s, %s, 0xfffffff0' % (s(sROT), s(sN1))); A('s_or_b32 %s, %s, %s' % (s(sREC), s(sXCC), s(sROT)))
        A('v_mov_b32 %s, %s' % (v(vN + 1), s(sREC)))
        L.append(('buffer_store_dwordx2 %s, %s, s[%d:%d], %s offen sc1' % (v(vN, 2), v(vT), SWS, SWS + 3, s(sRECA)), 'side'))
        return L
    def nonce_chk(self, br):
        return ['L_nonce_chk%s:' % br, 's_min_u32 %s, %s, %s' % (s(sT2), s(sN0), s(sN1)), 's_cmp_eq_u32 %s, 0' % s(sT2), 's_cbranch_scc1 L_nonce_retry%s' % br]
    def nonce_retry(self, br):
        return ['L_nonce_retry%s:' % br, '@assume_idle', 's_sleep 1'] + SPIN + self.nonce_load() + self.use_nonce(br) + ['s_branch L_nonce_chk%s' % br]
    def side_loads(self):
        c = self.cfg
        L = []
        L += self.touches('p2')
        if not any('p' in x for x in c.touch.values()): L.append(('buffer_load_dword %s, %s, s[%d:%d], %s offen %s' % (v(vDUM), v(vPRE), SWS, SWS + 3, s(sOBX), c.prefl), 'pre'))
        L += [('buffer_load_dword %s, %s, s[%d:%d], %s offen %s' % (v(vDUM), v(vZ), SWS, SWS + 3, s(sFLW), c.prefl), 'side')]
        return L

    def middle(self, br):
        c = self.cfg; B = br == 'B'; NT = 2 if B else 1
        L = []; A = L.append
        R = []; A = R.append
        if not B:
            for i in range(8): A('v_mov_b32 %s, %s' % (v(vPH + i), v(vE + i)))
            A('s_cmp_ge_u32 %s, 2' % s(sW)); A('s_cselect_b32 %s, 0, -1' % s(sXB))
        tn = lambda tile, sg: (vP if sg == 0 else vK) + 16 * tile
        def featk(tile):
            X = self.pack(vK + 16 * tile) + self.zero_hi_pads(vK + 16 * tile)
            for t in range(2):
                k4 = v(vK + 16 * tile + 4 * t, 4); w4 = v(vPH + 4 * t, 4)
                X.append((mfma(vP + 16 * tile, w4 if B else k4, k4 if B else w4, None if t == 0 else vP + 16 * tile), 'hi'))
            X += self.softmax(vP + 16 * tile, vE + 32 * tile, vE + 32 * tile + 16, vT2 + 8 * tile, False) if B else self.elu1(vP + 16 * tile, vE + 32 * tile, False, False)
            if B:
                for sg in range(2):
                    for t in range(2):
                        X.append((mfma(tn(tile, sg), v(vE + 32 * tile + 16 * sg + 4 * t, 4), v(vID + 4 * t, 4), None if t == 0 else tn(tile, sg)), 'hi2' if tile else 'hi3'))
                    X += self.pack(tn(tile, sg))
            return X
        wv = []
        for k in range(c.wv_early, 7): wv += self.dma_w(k, 2, L_WV, 'wv%d' % k, k in (c.wv_early, 4))
        R += featk(0)
        for i in range(7, 14):
            R += self.xiter(i, wv if i == max(7, 13 - c.depth) else ())
            if i - 7 < c.wv_early:
                R += self.gemm(vV, vWRk, L_WV - L_WK, False, 4, {0: ['@waitvm wv%d' % (c.wv_early - 1), 's_barrier']}, ks=range(4 * (i - 7), 4 * (i - 6)))
        if c.stamps and not c.lite: R.append(('s_memtime s[%d:%d]' % (SX + 2, SX + 3), 'nowait'))
        R += featk(1)
        wq = self.nonce_load()
        for k in range(c.wq_pre): wq += self.dma_w(k, 0, L_WQ, 'wq%d' % k, k in (0, 4))
        wq += ([] if c.pre_q else self.side_loads()) + self.use_nonce(br)
        hooks = {}; k0 = c.wv_early
        for k1 in c.wv_bar:
            hooks[4 * k0] = (['@waitlgkm xr13'] if k0 == c.wv_early else []) + ['@waitvm wv%d' % (k1 - 1), 's_barrier'] + (wq if k0 == max(c.wq_at, c.wv_early) else []); k0 = k1
        R += self.gemm(vV, vWRk, L_WV - L_WK, False, 0, hooks, lead=True, ks=range(4 * c.wv_early, 28))
        A('v_mov_b32 %s, 0x3f803f80' % v(vXR2 + 3))
        for tile in range(2):
            R += self.pack(vV + 16 * tile)
            for u in range(8): A('v_cndmask_b32_e64 %s, %s, %s, s[%d:%d]' % (v(vV + 16 * tile + u), v(vV + 16 * tile + u), v(vXR2 + 3), sE28, sE28 + 1))
        for tile in range(2):
            for sg in reversed(range(NT)):
                src = tn(tile, sg) if B else vE + 32 * tile
                for t in range(2):
                    A(mfma(vKV + 16 * sg, v(src + 4 * t, 4), v(vV + 16 * tile + 4 * t, 4), None if (tile == 0 and t == 0) else vKV + 16 * sg))
        t0, t1, t2 = vXR, vXR + 1, vXR2 + 2
        A('v_add_u32 %s, %s, %s' % (v(t0), s(sSCR), v(vL16)))
        for q in ((4, 5, 6, 7, 2, 3) if B else range(4)): A('ds_write_b128 %s, %s offset:%d' % (v(t0), v(vKV + 4 * q, 4), 16384 * (q >> 2) + 1024 * (q & 3)))
        for d in range(1, 4): A('v_xor_b32 %s, %d, %s' % (v(t0 + d), 4096 * d, v(t0)))
        if not B:
            A('s_cmp_ge_u32 %s, 2' % s(sW)); A('s_cselect_b32 %s, 0x%x, 0' % (s(sA), OOB)); A('v_add_u32 %s, %s, %s' % (v(t2), s(sA), v(vL16)))
        A('v_mov_b32 %s, 0xffff' % v(vXD))
        if c.thr: L += ['s_lshr_b32 %s, 0x2a54, %s' % (s(sT2), s(sH)), 's_bitcmp0_b32 %s, 0' % s(sT2), 's_cselect_b64 vcc, -1, 0']
        L += self.throttle(self.sched(R, 'phase2' + br, boost={'hi': 9000, 'kk': 12000, 'lead': 5000, 'hi2': c.hi2, 'hi3': c.hi2 + c.t0boost}, tight=c.p2_tight), br)
        if c.stamps and not c.lite: L += ['@waitlgkm_all', 'v_writelane_b32 %s, %s, 2' % (v(vST), s(SX + 2))]
        L += self.stamp(3)
        g0 = len(L)
        L += ['s_getpc_b64 s[%d:%d]' % (sTAB, sTAB + 1), 'L_pc%s:' % br, 's_add_u32 %s, %s, L_tab - L_pc%s' % (s(sTAB), s(sTAB), br), 's_addc_u32 %s, %s, 0' % (s(sTAB + 1), s(sTAB + 1))]
        L += self.nonce_chk(br)
        mg = c.merge_q
        X = []; A = X.append
        A('@waitlgkm_all')
        if mg: A('@waitvm wq%d' % (mg - 1))
        A('s_barrier')
        L += X; self.glue(L[g0:]); X = []; A = X.append
        for d in range(1, 4):
            for hf in range(2): X.append(('ds_read_b128 %s, %s offset:%d' % (v(vV + 8 * d + 4 * hf, 4), v(t0 + d), (16384 * (d >> 1) if B else 0) + 2048 * (d & 1) + 1024 * hf), 'exr'))
        for d in range(1, 4):
            if mg:
                for u in range(7): A('v_add_f32 %s, %s, %s' % (v(vKV + u), v(vKV + u), v(vV + 8 * d + u)))
            else:
                for u in range(0, 8, 2): A('v_pk_add_f32 %s, %s, %s' % (v(vKV + u, 2), v(vKV + u, 2), v(vV + 8 * d + u, 2)))
        X += self.pack(vKV, 4)
        A('v_bfi_b32 %s, %s, %s, %s' % (v(vKV + 3), v(vXD), v(vKV + 3), v(vTAG)))
        X.append(('buffer_store_dwordx4 %s, %s, s[%d:%d], %s offen sc1' % (v(vKV, 4), v(vL16 if B else t2), SWS, SWS + 3, s(sPX)), 'pst'))
        tm = c.q_tm and B
        X2 = ['@waitlgkm exr', '@waitvm wq6', 's_barrier']
        if mg: R = X + self.gemm(vK, vWRq, L_WQ, True, 4, tiles=(0,) if tm else (0, 1), ks=range(4 * mg)) + X2
        else:
            L += self.glue(X + self.stamp(4) + X2); R = []
        A = R.append
        t0, t1, t2 = vXR, vXR + 1, vXR + 2
        A('v_add_u32 %s, 2560, %s' % (v(vXD + 1), v(vWOD))); A('v_xor_b32 %s, 32, %s' % (v(vXD + 3), v(vWOD)))
        A('v_add_u32 %s, 5120, %s' % (v(vXD + 2), v(vXD + 3))); A('v_add_u32 %s, 7680, %s' % (v(vXD + 3), v(vXD + 3)))
        A('s_mul_i32 %s, %s, 14336' % (s(sWOS), s(sW))); A('s_lshl_b32 %s, %s, 8' % (s(sA), s(sCB))); A('s_add_u32 %s, %s, %s' % (s(sWOS), s(sWOS), s(sA)))
        A('v_and_b32 %s, 15, %s' % (v(vXR + 3), v(vL))); A('v_lshlrev_b32 %s, 3, %s' % (v(vXR + 3), v(vXR + 3)))
        A('v_lshrrev_b32 %s, 4, %s' % (v(t1), v(vL))); A('v_lshlrev_b32 %s, 1, %s' % (v(t0), v(vXR + 3))); A('v_lshl_add_u32 %s, %s, 10, %s' % (v(t2), v(t1), v(t0)))
        A('s_add_u32 %s, %s, %d' % (s(sB_), s(sSET if B else sM0W), L_MISC))
        A('v_lshl_add_u32 %s, %s, 3, %s' % (v(vXR2 + 3), v(t1), v(t0))); A('v_add_u32 %s, %s, %s' % (v(t0), s(sB_), v(vXR2 + 3))); A('v_add_u32 %s, %d, %s' % (v(vXR2 + 3), L_MISC + 4096, v(vXR2 + 3)))
        A('v_cndmask_b32_e64 %s, %s, %s, s[%d:%d]' % (v(vXR2 + 3), v(t0), v(vXR2 + 3), sHI, sHI + 1))
        if B: A('v_mov_b32 %s, %s' % (v(t0), v(t2)))
        else: A('v_sub_u32 %s, %s, %s' % (v(t0), v(vXR2 + 2), v(vL16))); A('v_add_u32 %s, %s, %s' % (v(t0), v(t0), v(t2)))
        A('v_and_b32 %s, 1, %s' % (v(t1), v(vL))); A('v_lshlrev_b32 %s, 4, %s' % (v(t1), v(t1))); A('v_mov_b32 %s, 0x3f80' % v(t2)); A('v_lshlrev_b32 %s, %s, %s' % (v(t2), v(t1), v(t2)))
        A('v_and_b32 %s, 15, %s' % (v(t1), v(vL))); A('v_cmp_eq_u32 vcc, 7, %s' % v(t1)); A('v_cndmask_b32_e64 %s, %s, 0, vcc' % (v(t2), v(t2))); A('v_lshrrev_b32 %s, 1, %s' % (v(t1), v(t1)))
        for i in range(4):
            r = (sT0, sFAR)[i & 1]
            A('v_cmp_eq_u32_e64 s[%d:%d], %d, %s' % (r, r + 1, i, v(t1))); A('v_cndmask_b32_e64 %s, 0, %s, s[%d:%d]' % (v(vID + i), v(t2), r, r + 1))
        wo_block = self.wo_block
        if c.pre_q: R += self.side_loads()
        for m in range(c.wo_before): R += wo_block(m)
        npart = len(R); R += self.part_loads(br)
        for m in range(c.wo_before, c.wo_mid): R += wo_block(m)
        tabs = self.table_loads()
        if not tm: R += self.gemm(vK, vWRq, L_WQ, True, 4, ks=range(4 * mg, 28))
        for tile in range(2):
            if tm: R += self.gemm(vK, vWRq, L_WQ, True, 4 + 28 * tile, tiles=(tile,), ks=range(0 if tile else 4 * mg, 28))
            R += self.pack(vK + 16 * tile) + self.zero_hi_pads(vK + 16 * tile)
            for t in range(2):
                R.append((mfma(vP + 16 * tile, v(vPH + 4 * t, 4), v(vK + 16 * tile + 4 * t, 4), None if t == 0 else vP + 16 * tile), 'hi' if tile == 0 else None))
        for tile in range(2):
            pk = not (tm and tile == 0)
            R += self.softmax(vP + 16 * tile, vE + 32 * tile, vE + 32 * tile + 16, vT2 + 8 * tile, pk) if B else self.elu1(vP + 16 * tile, vE + 32 * tile, True, True)
        vIM = [vWD, vWDq, vXR2 + 2, vWRq]
        R += ['s_add_u32 %s, %s, %d' % (s(sB_), s(sSET), L_MISC), 'v_add_u32 %s, %s, %s' % (v(vIM[0]), s(sB_), v(vL16))]
        for q in range(1, 2 * NT): R.append('v_xor_b32 %s, %d, %s' % (v(vIM[q]), 1024 * q, v(vIM[0])))
        if c.tab_late: late0 = tabs; tabs = []
        else: late0 = []
        L += self.sched(R + tabs, 'q' + br, release={npart: (c.rel_part if B else c.rel_partA) + (330 if mg else 0)}, boost={'hi': 4000, 'pst': 30000, 'exr': 40000}, tight=c.q_tight)
        L += self.stamp(6)
        A = L.append
        A('@waitvm part'); self.glue(L[-1:])
        L += self.stamp(5)
        A('L_part_chk%s:' % br)
        R = []; A = R.append
        G0 = vKV
        for p in range(8): A('v_mfma_f32_16x16x32_bf16 %s, %s, %s, %s' % (v(vV + 4 * (p & 3), 4), v(vID, 4), v(G0 + 4 * p, 4), v(vV + 4 * (p & 3), 4) if p >= 4 else '0'))
        x, z, y = vT2, vT2 + 1, vT2 + 12
        A('v_max3_u32 %s, %s, %s, %s' % (v(x), v(G0 + 3), v(G0 + 7), v(G0 + 11))); A('v_min3_u32 %s, %s, %s, %s' % (v(y), v(G0 + 3), v(G0 + 7), v(G0 + 11)))
        A('v_max3_u32 %s, %s, %s, %s' % (v(x), v(x), v(G0 + 15), v(G0 + 19))); A('v_min3_u32 %s, %s, %s, %s' % (v(y), v(y), v(G0 + 15), v(G0 + 19)))
        A('v_max3_u32 %s, %s, %s, %s' % (v(x), v(x), v(G0 + 23), v(G0 + 27))); A('v_min3_u32 %s, %s, %s, %s' % (v(y), v(y), v(G0 + 23), v(G0 + 27)))
        A('v_max_u32 %s, %s, %s' % (v(x), v(x), v(G0 + 31))); A('v_min_u32 %s, %s, %s' % (v(y), v(y), v(G0 + 31)))
        A('v_xor_b32 %s, %s, %s' % (v(x), v(x), v(vTAG))); A('v_xor_b32 %s, %s, %s' % (v(y), v(y), v(vTAG)))
        A('v_or_b32 %s, %s, %s' % (v(x), v(x), v(y))); A('v_lshrrev_b32 %s, 16, %s' % (v(x), v(x)))
        A('v_xor_b32 %s, %s, %s' % (v(y), s(sN0), v(vN))); A('v_xor_b32 %s, %s, %s' % (v(z), s(sREC), v(vN + 1)))
        A('v_cmp_ne_u32_e64 s[%d:%d], 0, %s' % (sFAR, sFAR + 1, v(z)))
        A('v_lshrrev_b32 %s, 4, %s' % (v(z), v(z))); A('v_or3_b32 %s, %s, %s, %s' % (v(x), v(x), v(y), v(z)))
        A('v_cmp_ne_u32 vcc, 0, %s' % v(x))
        L += self.sched(R, 'sum' + br)
        A = L.append
        A('s_cbranch_vccnz L_part_retry%s' % br)
        late = list(late0)
        for m in range(c.wo_mid, c.wo_imp): late += wo_block(m)
        nl = c.late0
        L += late[:nl]
        for q in range(4): L += self.pack(vV + 4 * q, 2)
        for q in range(4): A('ds_write_b64 %s, %s offset:%d' % (v(vXR2 + 3), v(vV + 4 * q, 2), 256 * q))
        A('@waitlgkm_all'); A('s_barrier')
        self.glue(L[-nl - 15:])
        R = []; A = R.append
        R += late[nl:]
        early = self.wo_reads()[:3 + 8 * c.wo_early]
        for q in range(2 * NT): A('ds_read_b128 %s, %s' % (v(vV + 16 + 4 * q, 4), v(vIM[q])))
        for tile in range(2):
            for q in range(2 * NT):
                A(mfma(vP + 16 * tile, v(vV + 16 + 4 * q, 4), v(vE + 32 * tile + 16 * (q >> 1) + 4 * (q & 1), 4), None if q == 0 else vP + 16 * tile))
        for tile in range(2):
            P = vP + 16 * tile; d = vT2 + 4 + 4 * tile
            A('v_mov_b32 %s, %s' % (v(d), v(P + 12))); A('v_permlane32_swap_b32 %s, %s' % (v(P + 12), v(d)))
            A('v_add_f32 %s, 0x358637bd, %s' % (v(d), v(d))); A('v_rcp_f32 %s, %s' % (v(d), v(d)))
            for u in range(8):
                if tile: A('v_pk_mul_f32 %s, %s, %s op_sel_hi:[1,0]' % (v(P + 2 * u, 2), v(P + 2 * u, 2), v(d, 2)))
                else:
                    for k in range(2): A('v_mul_f32 %s, %s, %s' % (v(P + 2 * u + k), v(P + 2 * u + k), v(d)))
                A('v_cvt_pk_bf16_f32 %s, %s, %s' % (v(P + u), v(P + 2 * u), v(P + 2 * u + 1)))
        A('v_mov_b32 %s, %s' % (v(vN), s(sN0))); A('v_mov_b32 %s, %s' % (v(vN + 1), s(sN1)))
        A('s_lshl_b32 %s, %s, 3' % (s(sT2), s(sH))); A('s_add_u32 %s, %s, %s' % (s(sC_), s(sFLW), s(sT2))); A('s_xor_b32 %s, %s, 32768' % (s(sOBX), s(sOB1))); A('s_add_u32 %s, %s, 16384' % (s(sA), s(sOB1))); A('s_add_u32 %s, %s, 16384' % (s(sB_), s(sOBX)))
        L += self.sched(R + early, 'o' + br, lowds={id(x) for x in early}, vmlow=True)
        L += self.stamp(7)
        A = L.append
        if c.force_global: A('s_branch L_far')
        A('s_cmp_lg_u64 s[%d:%d], 0' % (sFAR, sFAR + 1)); A('s_cbranch_scc1 L_far')
        return L
    def publish(self, fl):
        c = self.cfg; L = []
        for tile in range(2):
            for t in range(2):
                L.append(('buffer_store_dwordx4 %s, %s, s[%d:%d], %s offen %s' % (v(vP + 16 * tile + 4 * t, 4), v(vL16), SWS, SWS + 3, s(((sOB1, sA), (sOBX, sB_))[tile][t]), fl), 'ost'))
        for m in range(c.wo_imp, 7 - c.wo_g3): L += self.wo_block(m)
        L += self.p3_setup()
        L = self.sched(L, 'pub')
        L += ['@waitvm ost']
        L.append('buffer_store_dwordx2 %s, %s, s[%d:%d], %s offen %s' % (v(vN, 2), v(vT), SWS, SWS + 3, s(sC_), fl))
        return L
    def wo_block(self, m, tag='wo'):
        X = ['s_add_u32 m0, %s, %d' % (s(sM0X), L_WO + 16384 * m)]
        if m: X.append('s_add_u32 %s, %s, %d' % (s(sWOS), s(sWOS), 57344))
        return X + [('buffer_load_dwordx4 %s, s[%d:%d], %s offen offset:%d %s lds' % (v(vXD + j if j else vWOD), SWO, SWO + 3, s(sWOS), 1024 * j, self.cfg.wofl), tag) for j in range(4)]
    def part_loads(self, br):
        L = [('buffer_load_dwordx2 %s, %s, s[%d:%d], %s offen sc1' % (v(vN, 2), v(vXR + 3), SWS, SWS + 3, s(sRECL)), 'rec')]
        for p in range(8):
            L.append(('buffer_load_dwordx4 %s, %s, s[%d:%d], %s offen offset:%d sc1' % (v(vKV + 4 * p, 4), v(vXR), SWS, SWS + 3, s(sPL1 if p >= 4 else sPL0), 256 * (p & 3)), 'part'))
        return L
    def part_retry(self, br):
        P = self.part_loads(br)
        L = ['L_part_retry%s:' % br, '@assume_idle', '@waitvm_all'] + SPIN + [P[0]]
        for p in range(8):
            L += ['v_xor_b32 %s, %s, %s' % (v(vT2), v(vKV + 4 * p + 3), v(vTAG)), 'v_cmp_lt_u32 vcc, 0xffff, %s' % v(vT2), 's_cbranch_vccz L_got%s%d' % (br, p), (P[1 + p][0], 'untracked'), 'L_got%s%d:' % (br, p)]
        return L + ['@waitvm_all', 's_branch L_part_chk%s' % br]
    def far(self):
        return ['L_far:', '@assume_idle', '@waitvm_all', 's_nop 4'] + self.publish('sc1') + ['s_branch L_join']
    def wo_reads(self):
        b = [vWO0, vWO0 + 1, vXR2, vXR2 + 1]
        L = ['v_xor_b32 %s, 32, %s' % (v(b[1]), v(b[0])), 'v_add_u32 %s, 0x10000, %s' % (v(b[2]), v(b[0])), 'v_add_u32 %s, 0x10000, %s' % (v(b[3]), v(b[1]))]
        for k in range(14):
            for nt in range(2):
                for i in range(2):
                    off = (32 * k + 4 * i) * 256
                    L.append('ds_read_b64_tr_b16 %s, %s offset:%d' % (a(8 * k + 4 * nt + 2 * i, 2), v(b[nt + 2 * (off >> 16)]), off & 0xffff))
        return L

    def p3_setup(self):
        L = []; A = L.append
        A('s_lshl_b32 %s, %s, 2' % (s(sT2), s(sRB))); A('s_add_u32 %s, %s, %s' % (s(sT2), s(sT2), s(sRQ))); A('s_mul_i32 %s, %s, %d' % (s(sD_), s(sT2), 64 * 1792))
        A('s_mul_i32 %s, %s, 896' % (s(sT2), s(sBR))); A('s_add_u32 %s, %s, %s' % (s(sD_), s(sD_), s(sT2)))
        A('s_lshl_b32 %s, %s, 2' % (s(sT2), s(sCB))); A('s_add_u32 %s, %s, %s' % (s(sT2), s(sT2), s(sW)))
        A('s_cmp_ge_u32 %s, 14' % s(sT2)); A('s_cselect_b32 %s, 0x%x, 0' % (s(sA), OOB))
        A('s_lshl_b32 %s, %s, 6' % (s(sT2), s(sT2))); A('s_add_u32 %s, %s, %s' % (s(sXO), s(sD_), s(sT2)))
        for b in range(1, 4): A('s_add_u32 %s, %s, %d' % (s(sXO + b), s(sXO), b * 16 * 1792))
        t0, t1, t2 = vT2 + 10, vT2 + 11, vT2 + 12
        A('s_lshl_b32 %s, %s, 12' % (s(sB_), s(sW))); A('s_add_u32 %s, %s, %d' % (s(sB_), s(sB_), L_OT))
        A('v_and_b32 %s, 15, %s' % (v(t0), v(vL))); A('v_lshlrev_b32 %s, 4, %s' % (v(vS16), v(t0))); A('v_lshl_add_u32 %s, %s, 6, %s' % (v(t0), v(t0), s(sB_)))
        A('v_bfe_u32 %s, %s, 4, 1' % (v(t1), v(vL))); A('v_lshl_add_u32 %s, %s, 3, %s' % (v(t0), v(t1), v(t0)))
        A('v_bfe_u32 %s, %s, 1, 2' % (v(t1), v(vL))); A('v_lshrrev_b32 %s, 5, %s' % (v(t2), v(vL))); A('v_xor_b32 %s, %s, %s' % (v(t1), v(t1), v(t2)))
        A('v_lshl_add_u32 %s, %s, 4, %s' % (v(vOW), v(t1), v(t0))); A('v_xor_b32 %s, 32, %s' % (v(vOW + 1), v(vOW)))
        A('v_bfe_u32 %s, %s, 3, 2' % (v(t1), v(vL))); A('v_xor_b32 %s, %s, %s' % (v(t1), v(t1), v(vL))); A('v_and_b32 %s, 3, %s' % (v(t1), v(t1)))
        A('v_lshrrev_b32 %s, 2, %s' % (v(t0), v(vL))); A('v_lshl_add_u32 %s, %s, 6, %s' % (v(t2), v(t0), s(sB_))); A('v_lshl_add_u32 %s, %s, 4, %s' % (v(vOR), v(t1), v(t2)))
        A('v_mul_u32_u24 %s, 1792, %s' % (v(t0), v(t0))); A('v_and_b32 %s, 3, %s' % (v(t1), v(vL))); A('v_lshl_add_u32 %s, %s, 4, %s' % (v(t0), v(t1), v(t0)))
        A('v_add_u32 %s, %s, %s' % (v(vOG), s(sA), v(t0)))
        for r in vOF: A('v_add_u32 %s, %s, %s' % (v(r), v(r), v(vS16)))
        A('s_lshl2_add_u32 %s, %s, %s' % (s(sT2), s(sGID), s(sRQ))); A('s_lshl2_add_u32 %s, %s, %s' % (s(sT2), s(sT2), s(sW)))
        A('s_lshl_b32 %s, %s, 14' % (s(sT2), s(sT2))); A('s_add_u32 %s, %s, %d' % (s(sD_), s(sT2), WS_O))
        A('s_lshl_b32 %s, %s, 14' % (s(sWOM), s(sW))); A('s_mov_b32 m0, %s' % s(sWOM))
        return L
    def table_loads(self):
        L = ['v_and_b32 %s, 0x300, %s' % (v(vWRk), v(vL16)), 'v_lshrrev_b32 %s, 2, %s' % (v(vWRk), v(vWRk))]
        for q in range(4): L.append(('global_load_dwordx%d %s, %s, s[%d:%d] offset:%d' % (4 if q < 3 else 2, v(vOF[4 * q], 4 if q < 3 else 2), v(vWRk), sTAB, sTAB + 1, 16 * q), 'tab'))
        return L
    def table(self):
        T = []
        for g in range(4):
            for r in range(16):
                h, u = divmod(8 * (r >> 1) + 2 * g + (r & 1), 7)
                T.append(h * 1024 + (u >> 2) * 16384 + (u & 1) * 512 + ((u >> 1) & 1) * 8)
        return ['.p2align 6', '.type L_tab,@object', 'L_tab:'] + ['.long %d' % x for x in T] + ['.size L_tab, 256']

    def tail(self):
        c = self.cfg
        L = ['L_pub:'] + self.publish(''); A = L.append
        A('L_join:')
        L += self.stamp(8)
        g3 = 7 - c.wo_g3
        poll = 'buffer_load_dwordx2 %s, %s, s[%d:%d], %s offen sc1' % (v(vT2, 2), v(vXR + 3), SWS, SWS + 3, s(sFLG))
        assert c.wo_early >= 2
        A('@waitvm wo'); A(poll); A('@waitlgkm_all'); A('s_barrier'); L += self.wo_reads()[3 + 8 * c.wo_early:3 + 8 * g3]
        A('L_poll:')
        A('v_xor_b32 %s, %s, %s' % (v(vT2), s(sN0), v(vT2))); A('v_xor_b32 %s, %s, %s' % (v(vT2 + 1), s(sN1), v(vT2 + 1)))
        A('v_or_b32 %s, %s, %s' % (v(vT2), v(vT2), v(vT2 + 1))); A('v_cmp_ne_u32 vcc, 0, %s' % v(vT2)); A('s_cbranch_vccnz L_repoll')
        self.repoll = ['L_repoll:', '@assume_idle'] + SPIN + [poll, '@waitvm_all', 's_branch L_poll']
        L += self.stamp(9)
        od = []
        for h in range(16):
            if h and h % 4 == 0: od += ['s_add_u32 m0, %s, %d' % (s(sWOM), 1024 * h), 's_add_u32 %s, %s, 4096' % (s(sD_), s(sD_))]
            od.append(('buffer_load_dwordx4 %s, s[%d:%d], %s offen offset:%d sc1 lds' % (v(vL16), SWS, SWS + 3, s(sD_), 1024 * (h & 3)), 'o%d' % h))
        assert c.o_first % 4 == 0
        nf = [i for i, x in enumerate(od) if isinstance(x, tuple)][c.o_first - 1] + 1
        L += od[:nf]
        M16 = 'v_mfma_f32_16x16x32_bf16'
        st = {'have': -1}
        def gate(k):
            X = []; h = (8 * k + 7) // 7
            need = min(x for x in c.stages if x >= h)
            wg = k % 2 == 0 and k // 2 >= g3
            if st['have'] < need or wg:
                X = ['@waitvm o%d' % need + (' wog%d' % (k // 2) if wg else ''), 's_barrier']; st['have'] = max(need, st['have'])
            return X
        def rd(k, sg, i): return 'ds_read_b64 %s, %s offset:%d' % (v(vE + 4 * ((4 * k + sg) % 12) + 2 * i, 2), v(vOF[2 * (k % 7) + i]), (k // 7) * 8192 + (sg >> 1) * 32768 + (sg & 1) * 256)
        rds = lambda k: [rd(k, sg, i) for sg in range(4) for i in range(2)]
        later = od[nf:]
        for m in range(g3, 7): later += self.wo_block(m, 'wog%d' % m)
        L += gate(0) + rds(0) + gate(1)
        for k in range(14):
            fill = []
            if k + 2 < 14:
                L += gate(k + 2); fill = (rds(1) if k == 0 else []) + rds(k + 2)
                if (k + 2) % 2 == 0 and (k + 2) // 2 >= g3: fill = interleave(fill, self.wo_reads()[3 + 4 * (k + 2):3 + 4 * (k + 2) + 8])
            per = -(-len(fill) // 8)
            if k == 13: lastk = len(L)
            for j in range(8):
                sg, nt = j >> 1, j & 1
                d = v(vK + 8 * sg + 4 * nt, 4)
                L.append('%s %s, %s, %s, %s' % (M16, d, a(8 * k + 4 * nt, 4), v(vE + 4 * ((4 * k + sg) % 12), 4), d if k else '0'))
                if later and k and j % c.g3_every == 0:
                    while not isinstance(later[0], tuple): L.append(later.pop(0))
                    L.append(later.pop(0))
                L += fill[per * j:per * (j + 1)]
        assert not later
        R = L[lastk:]; del L[lastk:]
        L += self.stamp(10)
        A = R.append
        for sg in range(4):
            for nt in range(2):
                d = vK + 8 * sg + 4 * nt
                R += self.pack(d, 2)
                A('ds_write_b64 %s, %s offset:%d' % (v(vOW + nt), v(d, 2), 1024 * sg))
            A('ds_read_b128 %s, %s offset:%d' % (v(vP + 4 * sg, 4), v(vOR), 1024 * sg))
            A('buffer_store_dwordx4 %s, %s, s[%d:%d], %s offen %s' % (v(vP + 4 * sg, 4), v(vOG), SOUT, SOUT + 3, s(sXO + sg), c.outfl))
        L += self.sched(R, 'out')
        A = L.append
        if c.stamps:
            L += self.stamp(11)
            A('s_memrealtime s[%d:%d]' % (sT0, sT1)); A('@waitlgkm_all')
            A('v_writelane_b32 %s, %s, 12' % (v(vST), s(sT0)))
            A('s_lshl_b32 %s, s2, 2' % s(sT2)); A('s_add_u32 %s, %s, %s' % (s(sT2), s(sT2), s(sW))); A('s_lshl_b32 %s, %s, 8' % (s(sT2), s(sT2)))
            A('s_add_u32 %s, %s, %d' % (s(sT2), s(sT2), WS_STAMP))
            A('v_lshlrev_b32 %s, 2, %s' % (v(vT), v(vL)))
            for k in range(4): A('v_writelane_b32 %s, s%d, %d' % (v(vST), 12 + 2 * k, 32 + k))
            A('buffer_store_dword %s, %s, s[%d:%d], %s offen' % (v(vST), v(vT), SWS, SWS + 3, s(sT2)))
        if c.leak:
            if c.leak == 11: L += self.stamp(11)
            A('s_memrealtime s[100:101]'); A('s_lshl_b32 s11, s11, 2'); A('@waitlgkm_all')
            A('L_leak:'); A('s_memrealtime s[%d:%d]' % (sT0, sT1)); A('@waitlgkm_all'); A('s_sub_u32 %s, %s, s100' % (s(sT0), s(sT0))); A('s_cmp_lt_u32 %s, s11' % s(sT0)); A('s_cbranch_scc1 L_leak')
        if c.tfix:
            A('L_tfix:'); A('s_memrealtime s[%d:%d]' % (sT0, sT1)); A('@waitlgkm_all'); A('s_sub_u32 %s, %s, s100' % (s(sT0), s(sT0))); A('s_cmp_lt_u32 %s, %d' % (s(sT0), c.tfix)); A('s_cbranch_scc1 L_tfix')
        A('L_end:'); A('s_endpgm')
        return L

    def throttle(self, L, br):
        c = self.cfg
        if not c.thr: return L
        out = []; seen = set()
        for x in L:
            if isinstance(x, tuple) and x[1] is not None and x[1] not in seen and x[1] in c.thr_tags:
                if x[1] != 'wq': seen.add(x[1])
                n = self.nthr; self.nthr += 1
                out += ['s_cbranch_vccnz L_thr%d' % n, 'L_thb%d:' % n]
                self.thr_side += ['L_thr%d:' % n, 's_waitcnt vmcnt(%d)' % c.thr, 's_branch L_thb%d' % n]
            out.append(x)
        return out
    def marks(self, L):
        if not self.cfg.marks: return L
        out = []; seen = set()
        for x in L:
            t = x[0] if isinstance(x, tuple) else x
            hit = [k for k, (p, af) in enumerate(self.cfg.marks) if (t == p or t.startswith(p + ' ')) and k not in seen]
            for k in hit:
                if not self.cfg.marks[k][1]: out.append(('s_memtime s[%d:%d]' % (12 + 2 * k, 13 + 2 * k), 'nowait'))
            out.append(x)
            for k in hit:
                if self.cfg.marks[k][1]: out.append(('s_memtime s[%d:%d]' % (12 + 2 * k, 13 + 2 * k), 'nowait'))
                seen.add(k)
        return out
    def build(self):
        shared = self.prologue() + self.part1() + self.stamp(14) + ['s_cmp_eq_u32 %s, 0' % s(sBR), 's_cbranch_scc1 L_brA']
        MK = '.set MARK_A, 0'
        M0 = copy.deepcopy(self.M)
        main = finalize(self.marks(shared + self.middle('B') + self.tail()))
        self.M = M0
        alt = finalize(self.marks(shared + [MK, 'L_brA:'] + self.middle('A') + self.publish('') + ['s_branch L_join']))
        alt = alt[alt.index(MK) + 1:]
        side = finalize(self.repoll + self.far() + (self.help() if self.cfg.help else []) + self.mknonce() + self.nonce_retry('B') + self.nonce_retry('A') + self.part_retry('B') + self.part_retry('A'))
        return main, alt, side + self.thr_side + self.table()

HEADER = open(os.path.join(os.path.dirname(os.path.abspath(__file__)), 'header.txt')).read()

def generate(cfg):
    import emit
    emit.MERGE = cfg.merge
    import sched
    sched.BURST = cfg.burst; sched.HOLD = cfg.hold
    g = G(cfg)
    main, alt, side = g.build()
    if cfg.align:
        from align import align
        hd = '.amdgcn_target "amdgcn-amd-amdhsa--gfx950"\n.text\n'
        code = [l.replace('CODE_SPAN', '0x5000') for l in main + alt]
        rest = '\n'.join(side) + '\n'
        code, p0, p1 = align(hd, code, rest, cfg.align)
        sys.stderr.write('misalignment penalty %d -> %d\n' % (p0, p1))
        code = [l.replace('0x5000', 'CODE_SPAN') if ('s_cselect' in l or 'v_min_u32' in l) else l for l in code]
        main, alt = code, []
    body = main + alt + side
    txt = HEADER
    if cfg.extra_empty:
        txt += '; @launch kernel=%s grid=(256,1,1) block=(256,1,1) lds=163840\n; @launch kernel=empty_kernel grid=(256,1,1) block=(256,1,1) lds=0\n' % KNAME
    else:
        txt += '; @launch grid=(256,1,1) block=(256,1,1) lds=163840\n'
    txt += '.amdgcn_target "amdgcn-amd-amdhsa--gfx950"\n.text\n.globl %s\n.p2align 8\n.type %s,@function\n%s:\n' % (KNAME, KNAME, KNAME)
    txt += '\n'.join(('' if l.endswith(':') else '    ') + l for l in body) + '\n'
    if cfg.extra_empty:
        txt += '.globl empty_kernel\n.p2align 8\n.type empty_kernel,@function\nempty_kernel:\n    s_endpgm\n'
        txt += '.section .rodata,"a"\n.p2align 6\n.amdhsa_kernel empty_kernel\n  .amdhsa_next_free_vgpr 8\n  .amdhsa_next_free_sgpr 16\n  .amdhsa_accum_offset 8\n  .amdhsa_group_segment_fixed_size 0\n  .amdhsa_kernarg_size 80\n  .amdhsa_user_sgpr_count 2\n  .amdhsa_user_sgpr_kernarg_segment_ptr 1\n  .amdhsa_system_sgpr_workgroup_id_x 1\n.end_amdhsa_kernel\n'
    txt += '.section .rodata,"a"\n.p2align 6\n.amdhsa_kernel %s\n' % KNAME
    txt += '  .amdhsa_next_free_vgpr 512\n  .amdhsa_next_free_sgpr 102\n  .amdhsa_accum_offset 256\n  .amdhsa_group_segment_fixed_size 0\n'
    txt += '  .amdhsa_kernarg_size 80\n  .amdhsa_user_sgpr_count 2\n  .amdhsa_user_sgpr_kernarg_segment_ptr 1\n  .amdhsa_system_sgpr_workgroup_id_x 1\n.end_amdhsa_kernel\n'
    import subprocess, tempfile, re
    d = tempfile.mkdtemp()
    open(d + '/a.s', 'w').write(txt.replace('CODE_SPAN', '0x5000'))
    r = subprocess.run(['clang', '-x', 'assembler', '-target', 'amdgcn-amd-amdhsa', '-mcpu=gfx950', '-c', d + '/a.s', '-o', d + '/a.o'], capture_output=True, text=True)
    if r.returncode: raise Exception(r.stderr[:3000])
    r = subprocess.run(['llvm-readelf', '-S', d + '/a.o'], capture_output=True, text=True).stdout
    size = int(re.search(r'\.text\s+PROGBITS\s+\w+\s+\w+\s+(\w+)', r).group(1), 16)
    assert size < 32768 + 64
    sys.stderr.write('code bytes: %d\n' % size)
    return txt.replace('CODE_SPAN', hex(size - 64))

if __name__ == '__main__':
    cfg = Cfg()
    out = sys.argv[1]
    for kv in sys.argv[2:]:
        k, val = kv.split('=', 1); assert hasattr(cfg, k), k; setattr(cfg, k, eval(val))
    open(out, 'w').write(generate(cfg))
```

```python
import sys, os
from emit import finalize, interleave
from sched import schedule, Machine
import copy

KNAME = 'concat_heads__linear_attn_block__linear_kernel_hedgehog__prompt_kernel'

class Cfg:
    stamps = False; lite = False; fine = None; frange = (0, 1); marks = None; leak = None; leak_br = 1; tfix = 0; extra_empty = False; force_global = False; verbose = False
    rotmap = None; rottab = None; tswap = 0; pref_slots = 0
    xfl = ''; wfl = ''; wofl = ''; outfl = 'sc1'; prefl = 'sc1'; tfl = ''
    touch = {"p2": "o"}
    wv_bar = (1, 2, 4, 7); hi2 = 6000; q_tm = False
    rel_part = 1600; rel_partA = 2200; rel_nonce = 0
    wo_before = 2; wo_mid = 2; wo_imp = 5; wo_g3 = 1; tab_late = True; q_tight = False; p2_tight = False; wo_early = 2; late0 = 6; pre_q = False; ws_base = 0
    stages = (3, 5, 7, 11, 15); g3_every = 2; o_first = 8
    dslat = 130; merge = 24; burst = 24; hold = 12
    miss = {}; lines = {}
    wv_early = 0; wv_at = 7
    wq_pre = 7
    fake_n2 = False
    wq_at = 0
    align = 4
    flip = False
    delay = None
    help_plain = False
    help = 'xwX'
    merge_q = 2
    poll_first = True; wrest_at = 3; wrest_n = 4
    prost = False
    thr = 0; thr_tags = ['x11', 'x12', 'x13', 'wv0', 'wv1', 'wv2', 'wv3', 'wv4', 'wv5', 'wv6', 'wq']
    depth = 4; order0 = 'w2 w3 x2 w4 x3 w5 w6 x4 x5'; wkbar = {0: 'wk1 phi', 2: 'wk3', 4: 'wk6'}; t0boost = 2000
    rate = 2.2; cap = 256; lat = 400; fifo = 4; wlines = 90; cold = 900; pmiss = 900; smiss = 1000

WS_XCC, WS_FLAG, WS_PART, WS_O, WS_STAMP = 4096, 8192, 65536, 2 << 20, 16 << 20
WS_BYTES = 32 << 20
L_WK, L_WV, L_MISC, L_WQ, L_WO, L_SCR, L_OT = 98304, 126976, 155648, 0, 32768, 32768, 65536
OOB = 0x40000000
sAX, sAW, sAWO, sBX, sBW, sPHI, sBWO, sOUT, sDBG, sWSP = 4, 6, 8, 10, 12, 14, 16, 18, 20, 22
SX, SW, SWO, SPHI, SWS, SOUT = 24, 28, 32, 36, 40, 44
sBR, sRB, sH, sW, sGID, sSLOT, sT0, sT1, sT2, sXCC = 48, 49, 50, 51, 52, 53, 54, 55, 56, 57
sN0, sN1 = 58, 59
sHI, sE28 = 60, 62
sXO, sWO_ = 64, 72
sSPIN, sFAR = 71, 72
sM0X, sM0W, sSH, sCB, sRQ, sPB = 80, 81, 82, 83, 84, 85
sA, sB_, sC_, sD_ = 86, 87, 88, 89
sOB1, sWOM, sDT, sROT, sXB, sWB, sOBX, sFLG, sT3, sREC, sRECA = 90, 91, 92, 93, 94, 95, 96, 97, 98, 99, 79
sOWN = 74
sM0K = 3
sPX, sPL0, sPL1, sSET, sRECL, sSCR = 4, 5, 6, 7, 8, 9
sWOS, sTAB = sXCC, SX
sFLW = sSLOT
sSGN = sSH
sM1, sM2 = SPHI, SPHI + 2
SPIN = ['s_add_u32 s71, s71, 1', 's_cmp_gt_u32 s71, 0x100000', 's_cbranch_scc1 L_end']
vL = 1
vXD, vWD, vWRq, vWRk, vZ = 2, 6, 7, 8, 9
vXR, vXR2 = 10, 14
vDUM, vT = 18, 19
vPH, vID, vC, vST, vN = 20, 28, 36, 37, 38
vK, vV, vP, vE, vKV, vT2 = 40, 72, 104, 136, 200, 232
vTAG, vL16 = 248, 249
vWO0, vWOD = 250, 252
vWDq, vWDv = 253, 251
vTCH, vTCO, vPRE = None, 254, 255
vS16, vOW, vOR, vOG = vT2 + 3, vT2 + 4, vT2 + 8, vT2 + 9
vOF = list(range(20, 28)) + list(range(32, 36)) + [254, 255]
aX, aWR = 0, 224

def v(r, n=1): return 'v%d' % r if n == 1 else 'v[%d:%d]' % (r, r + n - 1)
def a(r, n=1): return 'a%d' % r if n == 1 else 'a[%d:%d]' % (r, r + n - 1)
def s(r, n=1): return 's%d' % r if n == 1 else 's[%d:%d]' % (r, r + n - 1)
MF = 'v_mfma_f32_32x32x16_bf16'
def mfma(d, x, y, c): return '%s %s, %s, %s, %s' % (MF, v(d, 16), x, y, v(c, 16) if c is not None else '0')

class G:
    def __init__(self, cfg):
        self.cfg = c = cfg; self.npc = 0; self.nthr = 0; self.thr_side = []
        self.M = Machine(c.rate, c.cap, c.lat, fifo=c.fifo, lines={'wk': c.wlines, 'wv': c.wlines, 'wq': c.wlines, 'phi': 13, 'touch': 100, 'pre': 128, 'nonce': 4, 'side': 4, 'pref': 4, 'tab': 4, 'rec': 8},
                         miss={'x0': c.cold, 'nonce': 500, 'part': c.pmiss, 'rec': c.pmiss, 'pre': 600, 'touch': 400, 'pst': c.smiss, 'side': 500, 'ost': 250})
        self.M.miss.update(c.miss); self.M.lines.update(c.lines)
    def stamp(self, k):
        if self.cfg.leak == k: return ['@waitlgkm_all', 's_memrealtime s[%d:%d]' % (sT0, sT1), '@waitlgkm_all', 's_sub_u32 s101, %s, s100' % s(sT0)]
        if not self.cfg.stamps or (self.cfg.lite and k not in (11, 13)): return []
        return ['@waitlgkm_all', 's_memtime s[%d:%d]' % (sT0, sT1), 's_memrealtime s[100:101]', '@waitlgkm_all', 'v_writelane_b32 %s, %s, %d' % (v(vST), s(sT0), k),
                'v_writelane_b32 %s, s100, %d' % (v(vST), 16 + k)]
    def sched(self, L, name, **kw): return self.fine(schedule(self.M, L, verbose=name if self.cfg.verbose else False, dslat=self.cfg.dslat, **kw), name)
    def glue(self, L): return self.M.run(L)
    def fine(self, L, name):
        if not self.cfg.fine or not name.startswith(self.cfg.fine): return L
        out = []; n = len(L); lo, hi = [int(f * n) for f in self.cfg.frange]; pos = {lo + (k * (hi - lo)) // 3: k for k in range(4)}
        for i, x in enumerate(L + [None]):
            if i in pos: out.append(('s_memtime s[%d:%d]' % (12 + 2 * pos[i], 13 + 2 * pos[i]), 'nowait'))
            if x is not None: out.append(x)
        T = [self.M.times[i] for i in sorted(pos)]
        sys.stderr.write('model %s: %s\n' % (name, [b - a for a, b in zip(T[:-1], T[1:])]))
        if self.cfg.verbose:
            for i, k in pos.items(): sys.stderr.write('  fine %s %d at %d: %s\n' % (name, k, i, L[i]))
        return out

    def offs(self, i):
        L = ['s_lshl_b32 %s, %s, 7' % (s(sD_), s(sROT)), 's_add_u32 %s, %s, %s' % (s(sXO + i), s(sXB), s(sD_)),
             's_mul_i32 %s, %s, %d' % (s(sD_), s(sROT), 64 * 2688), 's_add_u32 %s, %s, %s' % (s(sD_), s(sWB), s(sD_)), 's_add_u32 %s, %s, %d' % (s(sWO_ + i), s(sD_), 4096 - 1024 * (i & 3))]
        if i < 6: L += ['s_add_u32 %s, %s, 1' % (s(sROT), s(sROT)), 's_cmp_eq_u32 %s, 7' % s(sROT), 's_cselect_b32 %s, 0, %s' % (s(sROT), s(sROT))]
        return L
    def touches(self, pos):
        L = []
        for w in self.cfg.touch.get(pos, ''):
            if w == 'p': L.append(('buffer_load_dword %s, %s, s[%d:%d], %s offen %s' % (v(vDUM), v(vPRE), SWS, SWS + 3, s(sOBX), self.cfg.prefl), 'pre'))
            else: L += self.touch(w)
        return L
    def touch(self, what):
        c = self.cfg
        if what == 'o': return [('buffer_load_dword %s, %s, s[%d:%d], 0 offen %s' % (v(vDUM), v(vTCO), SWO, SWO + 3, c.tfl), 'touch')]
        return [('buffer_load_dword %s, %s, s[%d:%d], 0 offen offset:%d %s' % (v(vDUM), v(vTCH), SW, SW + 3, {'q': 0, 'v': 1792}[what], c.tfl), 'touch')]

    def prologue(self):
        c = self.cfg; L = []; A = L.append
        A('s_load_dwordx16 s[4:19], s[0:1], 0')
        A('s_load_dwordx4 s[20:23], s[0:1], 64')
        if c.prost: L.append(('s_memtime s[96:97]', 'nowait'))
        if c.stamps or c.tfix or c.leak: A('s_memrealtime s[100:101]')
        A('s_cmpk_ge_u32 s2, 0x100'); A('s_cbranch_scc1 L_end')
        if c.delay:
            A('s_and_b32 s30, s2, 7'); A('s_lshr_b32 s30, %d, s30' % c.delay[0]); A('s_bitcmp0_b32 s30, 0'); A('s_cbranch_scc1 L_nodelay')
            A('L_delay:'); A('s_memrealtime s[30:31]'); A('@waitlgkm_all'); A('s_sub_u32 s30, s30, s100'); A('s_cmp_lt_u32 s30, %d' % c.delay[1]); A('s_cbranch_scc1 L_delay')
            A('L_nodelay:')
        t0, t1, t2 = vT2, vT2 + 1, vT2 + 2
        A('v_readfirstlane_b32 %s, v0' % s(sW)); A('v_and_b32 %s, 63, v0' % v(vL))
        A('s_lshr_b32 %s, s2, 3' % s(sSLOT)); A('s_and_b32 %s, %s, 15' % (s(sH), s(sSLOT))); A('s_lshr_b32 %s, %s, 4' % (s(sT2), s(sSLOT)))
        A('s_lshl_b32 %s, %s, 3' % (s(sB_), s(sSLOT))); A('v_lshrrev_b32 %s, 5, v0' % v(vT)); A('s_getpc_b64 s[%d:%d]' % (sT0, sT1))
        A('v_add_lshl_u32 %s, %s, %s, 7' % (v(vT), v(vT), s(sB_)))
        L.append(('global_load_dword %s, %s, s[%d:%d]' % (v(vDUM), v(vT), sT0, sT1), 'pref'))
        A('s_and_b32 %s, s2, 3' % s(sRB)); A('s_lshl1_add_u32 %s, %s, %s' % (s(sRB), s(sRB), s(sT2))); A('s_lshr_b32 %s, %s, 6' % (s(sW), s(sW)))
        A('s_mul_i32 %s, %s, 3' % (s(sT2), s(sT2))); A('s_add_u32 %s, %s, %s' % (s(sROT), s(sH), s(sT2)))
        A('s_mul_i32 %s, %s, 37' % (s(sB_), s(sROT))); A('s_lshr_b32 %s, %s, 8' % (s(sB_), s(sB_)))
        A('s_mul_i32 %s, %s, 7' % (s(sB_), s(sB_))); A('s_sub_u32 %s, %s, %s' % (s(sROT), s(sROT), s(sB_)))
        A('s_lshl2_add_u32 %s, %s, %s' % (s(sB_), s(sRB), s(sW))); A('s_mul_i32 %s, %s, 57344' % (s(sXB), s(sB_)))
        o0 = self.offs(0); L += o0[:2]
        A('s_lshl_b32 %s, %s, 12' % (s(sM0X), s(sW))); A('s_mov_b32 m0, %s' % s(sM0X))
        A('v_lshrrev_b32 %s, 3, %s' % (v(t0), v(vL))); A('v_mul_u32_u24 %s, 896, %s' % (v(t0), v(t0)))
        A('v_lshrrev_b32 %s, 4, %s' % (v(t1), v(vL))); A('v_and_b32 %s, 7, %s' % (v(t2), v(vL))); A('v_xor_b32 %s, %s, %s' % (v(t2), v(t1), v(t2)))
        A('v_lshl_add_u32 %s, %s, 4, %s' % (v(vXD), v(t2), v(t0))); A('v_xor_b32 %s, 64, %s' % (v(t2), v(vXD)))
        A('v_add_u32 %s, 6144, %s' % (v(vXD + 1), v(t2))); A('v_add_u32 %s, 12288, %s' % (v(vXD + 2), v(vXD))); A('v_add_u32 %s, 18432, %s' % (v(vXD + 3), v(t2)))
        A('s_mov_b32 %s, 1835008' % s(SX + 2)); A('s_mov_b32 %s, 0x20000' % s(SX + 3))
        if c.prost: L.append(('s_memtime s[98:99]', 'nowait'))
        A('s_bitcmp0_b32 s2, 2')
        A('@waitlgkm_all')
        if c.prost: A('v_writelane_b32 %s, s98, 33' % v(vST)); A('v_writelane_b32 %s, s96, 32' % v(vST))
        if c.leak == 13: L += self.stamp(13); A('s_bitcmp0_b32 s2, 2')
        if c.stamps: A('v_writelane_b32 %s, s100, 0' % v(vST)); L += self.stamp(13); A('s_bitcmp0_b32 s2, 2')
        sel = lambda srd, pa, pb: ['s_cselect_b32 %s, %s, %s' % (s(srd + k), s(pa + k), s(pb + k)) for k in range(2)]
        L += sel(SX, sAX, sBX) + self.dma_x(0)[1:]
        L += sel(SW, sAW, sBW) + sel(SWO, sAWO, sBWO); A('s_cselect_b32 %s, 0, 25088' % s(SPHI + 2))
        A('s_sub_u32 %s, %s, 4096' % (s(SW), s(SW))); A('s_subb_u32 %s, %s, 0' % (s(SW + 1), s(SW + 1)))
        A('s_mov_b32 %s, %d' % (s(SW + 2), 1204224 + 4096)); A('s_mov_b32 %s, %s' % (s(SW + 3), s(SX + 3)))
        A('v_lshrrev_b32 %s, 2, %s' % (v(t0), v(vL))); A('v_mul_u32_u24 %s, 2688, %s' % (v(t0), v(t0)))
        A('v_and_b32 %s, 3, %s' % (v(t2), v(vL))); A('v_lshl_add_u32 %s, %s, 4, %s' % (v(vWDq), v(t2), v(t0))); A('v_add_u32 %s, 896, %s' % (v(vWD), v(vWDq)))
        A('s_cmp_eq_u32 %s, 15' % s(sH)); A('s_cselect_b32 %s, 8, 0' % s(sSH))
        A('s_mul_i32 %s, %s, 56' % (s(sC_), s(sH))); A('s_sub_u32 %s, %s, %s' % (s(sC_), s(sC_), s(sSH)))
        A('s_mul_i32 %s, %s, %d' % (s(sD_), s(sW), 16 * 2688)); A('s_add_u32 %s, %s, %s' % (s(sWB), s(sC_), s(sD_)))
        A('s_mul_i32 %s, %s, 7168' % (s(sM0K), s(sW)))
        L += o0[2:5] + self.dma_w(0, 1, L_WK, 'wk0') + o0[5:] + self.offs(1) + self.dma_w(1, 1, L_WK, 'wk1', False)
        A('s_bfe_u32 %s, s2, 0x10002' % s(sBR)); A('s_lshl_b32 %s, %s, 10' % (s(sM0W), s(sW)))
        for srd, n in ((SWO, 401408), (SWS, WS_BYTES), (SOUT, 3670016)):
            A('s_mov_b32 %s, %d' % (s(srd + 2), n)); A('s_mov_b32 %s, 0x20000' % s(srd + 3))
        A('s_mov_b32 %s, %s' % (s(SPHI), s(sPHI))); A('s_mov_b32 %s, %s' % (s(SPHI + 1), s(sPHI + 1))); A('s_mov_b32 %s, 0x20000' % s(SPHI + 3))
        A('v_lshlrev_b32 %s, 4, %s' % (v(vL16), v(vL)))
        A('s_cmp_ge_u32 %s, 2' % s(sW)); A('s_cselect_b32 %s, 0x%x, %s' % (s(sA), OOB, s(sM0W))); A('v_add_u32 %s, %s, %s' % (v(t0), s(sA), v(vL16)))
        A('s_mul_i32 %s, %s, 1568' % (s(sT2), s(sH))); A('s_add_u32 m0, %s, %d' % (s(sM0W), L_MISC))
        L.append(('buffer_load_dwordx4 %s, s[%d:%d], %s offen lds' % (v(t0), SPHI, SPHI + 3, s(sT2)), 'phi'))
        L += self.dma_x(1)
        if c.ws_base: A('s_add_u32 %s, %s, %d' % (s(sWSP), s(sWSP), c.ws_base)); A('s_addc_u32 %s, %s, 0' % (s(sWSP + 1), s(sWSP + 1)))
        for (srd, p) in ((SWS, sWSP), (SOUT, sOUT)):
            A('s_mov_b32 %s, %s' % (s(srd), s(p))); A('s_mov_b32 %s, %s' % (s(srd + 1), s(p + 1)))
        A('v_mov_b32 %s, 0' % v(vZ))
        A('s_or_b32 %s, s2, %s' % (s(sT2), s(sW))); A('s_cmp_eq_u32 %s, 0' % s(sT2)); A('s_cbranch_scc1 L_mknonce')
        A('L_nononce:')
        if c.help:
            if c.help_plain: A('s_lshr_b32 %s, 0x2a54, %s' % (s(sA), s(sH))); A('s_or_b32 %s, %s, %s' % (s(sA), s(sA), s(sBR))); A('s_bitcmp0_b32 %s, 0' % s(sA))
            else: A('s_cmp_eq_u32 %s, 0' % s(sBR))
            A('s_cbranch_scc1 L_help'); A('L_helped:')
        self.glue(L)
        return L

    def setup(self):
        c = self.cfg; L = []; A = L.append
        t0, t1, t2 = vT2, vT2 + 1, vT2 + 2
        A('v_add_u32 %s, 1792, %s' % (v(vWDv), v(vWDq)))
        A('s_mov_b32 %s, 0' % s(sSPIN))
        A('s_getreg_b32 %s, hwreg(HW_REG_XCC_ID, 0, 4)' % s(sXCC))
        m, hi, t3, t4 = vT2 + 3, vT2 + 4, vT2 + 5, vT2 + 6
        A('s_mul_i32 %s, %s, 98' % (s(sA), s(sSLOT))); A('s_mul_i32 %s, %s, 25' % (s(sB_), s(sW))); A('s_add_u32 %s, %s, %s' % (s(sA), s(sA), s(sB_)))
        A('v_min_u32 %s, 24, %s' % (v(t0), v(vL))); A('v_add_u32 %s, %s, %s' % (v(t0), s(sA), v(t0))); A('v_min_u32 %s, 3135, %s' % (v(t0), v(t0)))
        A('v_lshlrev_b32 %s, 7, %s' % (v(vTCO), v(t0)))
        A('v_and_b32 %s, 31, %s' % (v(m), v(vL))); A('v_lshrrev_b32 %s, 5, %s' % (v(hi), v(vL)))
        A('v_bfe_u32 %s, %s, 1, 3' % (v(t1), v(m))); A('v_xor_b32 %s, %s, %s' % (v(t1), v(t1), v(hi)))
        A('v_lshl_add_u32 %s, %s, 7, %s' % (v(t2), v(m), s(sM0X)))
        for ks in range(4):
            A('v_xor_b32 %s, %d, %s' % (v(t3), 2 * ks, v(t1))); A('v_lshl_add_u32 %s, %s, 4, %s' % (v(vXR + ks), v(t3), v(t2)))
            A('v_add_u32 %s, 0x10000, %s' % (v(vXR2 + ks), v(vXR + ks)))
        A('v_bfe_u32 %s, %s, 2, 2' % (v(t1), v(vL))); A('v_lshlrev_b32 %s, 6, %s' % (v(t2), v(t1)))
        A('v_lshl_add_u32 %s, %s, 9, %s' % (v(t2), v(hi), v(t2)))
        A('v_bfe_u32 %s, %s, 4, 1' % (v(t3), v(vL))); A('v_and_b32 %s, 3, %s' % (v(t4), v(vL)))
        A('v_lshlrev_b32 %s, 3, %s' % (v(t4), v(t4))); A('v_lshl_add_u32 %s, %s, 5, %s' % (v(t4), v(t3), v(t4)))
        A('v_add3_u32 %s, %s, %s, %s' % (v(vWRq), v(t2), v(t4), s(sSH)))
        A('v_add_u32 %s, %d, %s' % (v(vWRk), L_WK, v(vWRq)))
        A('v_xor_b32 %s, %s, %s' % (v(t3), s(sW), v(t1))); A('v_lshl_add_u32 %s, %s, 6, %s' % (v(t4), v(t3), v(t4)))
        A('v_lshl_add_u32 %s, %s, 8, %s' % (v(t4), v(t1), v(t4))); A('v_lshrrev_b32 %s, 4, %s' % (v(t3), v(vL))); A('v_lshl_add_u32 %s, %s, 11, %s' % (v(t4), v(t3), v(t4)))
        A('v_add_u32 %s, %d, %s' % (v(vWO0), L_WO, v(t4)))
        A('s_and_b32 %s, %s, 1' % (s(sA), s(sW))); A('s_lshl_b32 %s, %s, 4' % (s(sA), s(sA))); A('v_xor_b32 %s, %s, %s' % (v(t4), s(sA), v(m)))
        A('s_bitcmp1_b32 %s, 1' % s(sW)); A('s_cselect_b32 %s, 0x80008000, 0' % s(sSGN))
        A('v_lshrrev_b32 %s, 3, %s' % (v(t0), v(t4))); A('v_and_b32 %s, 3, %s' % (v(t1), v(t4)))
        A('v_lshl_add_u32 %s, %s, 2, %s' % (v(t0), v(t0), v(t1)))
        A('v_lshrrev_b32 %s, 4, %s' % (v(t1), v(t4))); A('v_sub_u32 %s, %s, %s' % (v(t0), v(t0), v(t1)))
        A('v_bfe_u32 %s, %s, 2, 1' % (v(t1), v(m))); A('v_mad_u32_u24 %s, %s, 14, %s' % (v(t0), v(t1), v(t0)))
        A('v_and_b32 %s, 11, %s' % (v(t1), v(m))); A('v_cmp_eq_u32 vcc, 11, %s' % v(t1))
        A('v_mov_b32 %s, %d' % (v(t2), L_MISC + 2048))
        A('v_mul_u32_u24 %s, 224, %s' % (v(t3), v(hi))); A('v_lshl_add_u32 %s, %s, 1, %s' % (v(t3), v(t0), v(t3))); A('v_add_u32 %s, %d, %s' % (v(t3), L_MISC, v(t3)))
        A('v_cndmask_b32_e64 %s, %s, %s, vcc' % (v(vT2 + 12), v(t3), v(t2)))
        A('v_cndmask_b32_e64 %s, %s, 63, vcc' % (v(vT2 + 11), v(t0)))
        A('v_cmp_lt_u32_e64 s[%d:%d], 31, %s' % (sHI, sHI + 1, v(vL)))
        A('v_cmp_eq_u32_e64 s[%d:%d], 28, %s' % (sE28, sE28 + 1, v(m)))
        A('v_cndmask_b32_e64 %s, %s, %s, s[%d:%d]' % (v(vT2 + 13), v(vT2 + 12), v(t2), sHI, sHI + 1))
        return L

    def help(self):
        c = self.cfg; L = ['L_help:', '@assume_idle']; A = L.append
        t0, t1, t2 = vT2 + 8, vT2 + 9, vT2 + 10
        nh = 10 if c.help_plain else 16
        if c.help_plain:
            A('s_bfm_b32 %s, %s, 0' % (s(sC_), s(sH))); A('s_and_b32 %s, %s, 0xd5ab' % (s(sC_), s(sC_))); A('s_bcnt1_i32_b32 %s, %s' % (s(sC_), s(sC_)))
        else: A('s_mov_b32 %s, %s' % (s(sC_), s(sH)))
        A('s_mul_i32 %s, %s, %d' % (s(sA), s(sRB), nh)); A('s_add_u32 %s, %s, %s' % (s(sA), s(sA), s(sC_))); A('s_lshl2_add_u32 %s, %s, %s' % (s(sA), s(sA), s(sW)))
        def index(n, last):
            n = -(-(last + 1) // (32 * nh))
            A('s_mul_i32 %s, %s, %d' % (s(sB_), s(sA), n)); A('v_min_u32 %s, %d, %s' % (v(t0), n - 1, v(vL))); A('v_add_u32 %s, %s, %s' % (v(t0), s(sB_), v(t0)))
            A('v_min_u32 %s, %d, %s' % (v(t0), last, v(t0)))
        if 'x' in c.help:
            index(14, 7167)
            A('v_mul_u32_u24 %s, 9363, %s' % (v(t1), v(t0))); A('v_lshrrev_b32 %s, 21, %s' % (v(t1), v(t1))); A('v_add_u32 %s, 1, %s' % (v(t1), v(t1)))
            A('v_mul_u32_u24 %s, 28672, %s' % (v(t1), v(t1))); A('v_lshl_add_u32 %s, %s, 7, %s' % (v(t1), v(t0), v(t1)))
            A('global_load_dword %s, %s, s[%d:%d]' % (v(vDUM), v(t1), sBX, sBX + 1))
        if 'w' in c.help:
            index(13, 6271)
            A('v_mul_u32_u24 %s, 9363, %s' % (v(t1), v(t0))); A('v_lshrrev_b32 %s, 16, %s' % (v(t1), v(t1))); A('v_add_u32 %s, 1, %s' % (v(t1), v(t1))); A('v_lshrrev_b32 %s, 1, %s' % (v(t1), v(t1)))
            A('v_mul_u32_u24 %s, 896, %s' % (v(t1), v(t1))); A('v_lshl_add_u32 %s, %s, 7, %s' % (v(t1), v(t0), v(t1)))
            A('global_load_dword %s, %s, s[%d:%d]' % (v(vDUM), v(t1), sBW, sBW + 1))
        A('s_and_b32 %s, %s, 1' % (s(sB_), s(sRB))); A('s_mul_i32 %s, %s, %d' % (s(sB_), s(sB_), nh)); A('s_add_u32 %s, %s, %s' % (s(sC_), s(sC_), s(sB_))); A('s_lshl2_add_u32 %s, %s, %s' % (s(sC_), s(sC_), s(sW)))
        def index2(n, last):
            n = -(-(last + 1) // (8 * nh))
            A('s_mul_i32 %s, %s, %d' % (s(sB_), s(sC_), n)); A('v_min_u32 %s, %d, %s' % (v(t0), n - 1, v(vL))); A('v_add_u32 %s, %s, %s' % (v(t0), s(sB_), v(t0)))
            A('v_min_u32 %s, %d, %s' % (v(t0), last, v(t0)))
        if 'X' in c.help:
            index2(14, 1791)
            A('s_and_b32 %s, s2, 3' % s(sB_)); A('s_mul_i32 %s, %s, 1792' % (s(sB_), s(sB_))); A('v_add_u32 %s, %s, %s' % (v(t0), s(sB_), v(t0)))
            A('v_mul_u32_u24 %s, 9363, %s' % (v(t1), v(t0))); A('v_lshrrev_b32 %s, 21, %s' % (v(t1), v(t1))); A('v_add_u32 %s, 1, %s' % (v(t1), v(t1)))
            A('v_mul_u32_u24 %s, 28672, %s' % (v(t1), v(t1))); A('v_lshl_add_u32 %s, %s, 7, %s' % (v(t1), v(t0), v(t1)))
            A('global_load_dword %s, %s, s[%d:%d]' % (v(vDUM), v(t1), sAX, sAX + 1))
        if 'W' in c.help:
            index(13, 6271)
            A('v_mul_u32_u24 %s, 9363, %s' % (v(t1), v(t0))); A('v_lshrrev_b32 %s, 16, %s' % (v(t1), v(t1))); A('v_add_u32 %s, 1, %s' % (v(t1), v(t1))); A('v_lshrrev_b32 %s, 1, %s' % (v(t1), v(t1)))
            A('v_mul_u32_u24 %s, 896, %s' % (v(t1), v(t1))); A('v_lshl_add_u32 %s, %s, 7, %s' % (v(t1), v(t0), v(t1)))
            A('global_load_dword %s, %s, s[%d:%d]' % (v(vDUM), v(t1), sAW, sAW + 1))
        if 'p' in c.help:
            index(32, 16383)
            A('v_lshlrev_b32 %s, 7, %s' % (v(t1), v(t0))); A('v_add_u32 %s, %d, %s' % (v(t1), WS_O + (2 << 20), v(t1)))
            A('global_load_dword %s, %s, s[%d:%d]' % (v(vDUM), v(t1), sWSP, sWSP + 1))
        if 'O' in c.help:
            index(7, 3135)
            A('v_lshlrev_b32 %s, 7, %s' % (v(t1), v(t0)))
            A('global_load_dword %s, %s, s[%d:%d]' % (v(vDUM), v(t1), sAWO, sAWO + 1))
        if 'o' in c.help:
            index(7, 3135)
            A('v_lshlrev_b32 %s, 7, %s' % (v(t1), v(t0)))
            A('global_load_dword %s, %s, s[%d:%d]' % (v(vDUM), v(t1), sBWO, sBWO + 1))
        A('s_branch L_helped')
        return L
    def mknonce(self):
        L = ['L_mknonce:', '@assume_idle']; A = L.append
        A('s_load_dwordx2 s[%d:%d], s[%d:%d], 0' % (sT0, sT1, sWSP, sWSP + 1))
        A('@waitlgkm_all')
        A('s_add_u32 %s, %s, 0x9e3679b8' % (s(sT0), s(sT0))); A('s_add_u32 %s, %s, 0x85eaca6a' % (s(sT1), s(sT1)))
        for r in (sT0, sT1):
            A('s_or_b32 %s, %s, 0x00010001' % (s(r), s(r))); A('s_and_b32 %s, %s, 0xbfffbfff' % (s(r), s(r)))
        A('v_mov_b32 %s, %s' % (v(vN), s(sT0))); A('v_mov_b32 %s, %s' % (v(vN + 1), s(sT1)))
        A('s_mov_b64 exec, 1')
        A('global_store_dwordx2 %s, %s, s[%d:%d] sc1' % (v(vZ), v(vN, 2), sDBG, sDBG + 1))
        A('global_store_dwordx2 %s, %s, s[%d:%d] sc1' % (v(vZ), v(vN, 2), sWSP, sWSP + 1))
        A('s_mov_b64 exec, -1'); A('s_branch L_nononce')
        return L

    def setup2(self):
        m, hi, fp, ofs, ofs2 = vT2 + 3, vT2 + 4, vT2 + 11, vT2 + 12, vT2 + 13
        P0 = []
        for t in range(2):
            for j in range(8):
                d = 16 * t + 8 * (j >> 2) + (j & 3)
                P0.append('ds_read_u16 %s, %s offset:%d' % (v(vP + 8 * t + j), v(ofs2 if (t == 1 and j >= 4) else ofs), d * 56))
        def selector(dst, tgt):
            R = []
            x, y, z = vT2 + 8, vT2 + 9, vT2 + 10
            R.append('v_lshrrev_b32 %s, 3, %s' % (v(x), v(tgt))); R.append('v_bfe_u32 %s, %s, 1, 1' % (v(y), v(tgt)))
            R.append('v_lshl_add_u32 %s, %s, 1, %s' % (v(x), v(x), v(y)))
            R.append('v_and_b32 %s, 1, %s' % (v(y), v(tgt))); R.append('v_lshlrev_b32 %s, 4, %s' % (v(y), v(y)))
            R.append('v_mov_b32 %s, 0x3f80' % v(z)); R.append('v_lshlrev_b32 %s, %s, %s' % (v(z), v(y), v(z)))
            R.append('v_bfe_u32 %s, %s, 2, 1' % (v(y), v(tgt))); R.append('v_cmp_eq_u32 vcc, %s, %s' % (v(y), v(hi)))
            R.append('v_cndmask_b32_e64 %s, 15, %s, vcc' % (v(x), v(x)))
            mk = [sN0, sHI + 0, sPB - 1, sN0]
            for i in range(8):
                r = (sN0, sT0)[i & 1]
                R.append('v_cmp_eq_u32_e64 s[%d:%d], %d, %s' % (r, r + 1, i, v(x)))
                R.append('v_cndmask_b32_e64 %s, 0, %s, s[%d:%d]' % (v(dst + i), v(z), r, r + 1))
            return R
        P1 = selector(vID, m)
        P2 = selector(vE, fp)
        P2 += ['v_mov_b32 %s, 0x3fb8aa3b' % v(vC),
               'v_bfe_u32 %s, %s, 3, 2' % (v(vT2 + 8), v(vL)), 'v_and_b32 %s, 7, %s' % (v(vPRE), v(vL)), 'v_lshlrev_b32 %s, 7, %s' % (v(vPRE), v(vPRE)), 'v_lshl_add_u32 %s, %s, 14, %s' % (v(vPRE), v(vT2 + 8), v(vPRE)),
               's_lshl_b32 %s, %s, 3' % (s(sGID), s(sBR)), 's_add_u32 %s, %s, %s' % (s(sGID), s(sGID), s(sRB)),
               's_and_b32 %s, %s, 3' % (s(sCB), s(sH)), 's_lshr_b32 %s, %s, 2' % (s(sRQ), s(sH)),
               's_lshl_b32 %s, %s, 4' % (s(sT3), s(sGID)), 's_add_u32 %s, %s, %s' % (s(sPB), s(sT3), s(sH)),
               's_lshl2_add_u32 %s, %s, %s' % (s(sT3), s(sGID), s(sW)), 's_lshl_b32 %s, %s, 6' % (s(sT3), s(sT3)), 's_add_u32 %s, %s, %s' % (s(sT3), s(sT3), s(sH)), 's_lshl_b32 %s, %s, 10' % (s(sOBX), s(sT3)),
               's_add_u32 %s, %s, %d' % (s(sOBX), s(sOBX), WS_O),
               's_and_b32 %s, %s, %d' % (s(sOB1), s(sH), self.cfg.tswap), 's_lshl_b32 %s, %s, 15' % (s(sOB1), s(sOB1)), 's_add_u32 %s, %s, %s' % (s(sOB1), s(sOB1), s(sOBX)),
               's_lshl_b32 %s, %s, 9' % (s(sT3), s(sGID)), 's_add_u32 %s, %s, %d' % (s(sT3), s(sT3), WS_FLAG),
               's_lshl_b32 %s, %s, 7' % (s(sFLW), s(sW)), 's_add_u32 %s, %s, %s' % (s(sFLW), s(sFLW), s(sT3)),
               's_lshl_b32 %s, %s, 7' % (s(sFLG), s(sRQ)), 's_add_u32 %s, %s, %s' % (s(sFLG), s(sFLG), s(sT3))]
        A = P2.append; t0, t1, t2 = vT2 + 8, vT2 + 9, vT2 + 10
        A('v_lshrrev_b32 %s, 4, %s' % (v(t0), v(vL))); A('v_bfe_u32 %s, %s, 2, 2' % (v(t1), v(vL))); A('v_xor_b32 %s, %s, %s' % (v(t1), v(t1), v(t0)))
        A('v_mul_u32_u24 %s, 896, %s' % (v(t0), v(t0))); A('v_lshl_add_u32 %s, %s, 6, %s' % (v(t0), v(t1), v(t0)))
        A('v_and_b32 %s, 3, %s' % (v(t2), v(vL))); A('v_lshl_add_u32 %s, %s, 4, %s' % (v(t0), v(t2), v(t0)))
        A('s_cmp_eq_u32 %s, 3' % s(sCB)); A('s_cselect_b32 %s, 1, 3' % s(sT3))
        A('v_cmp_lt_u32 vcc, %s, %s' % (s(sT3), v(t1))); A('v_mov_b32 %s, 0x%x' % (v(t2), OOB))
        A('v_cndmask_b32_e64 %s, %s, %s, vcc' % (v(vWOD), v(t0), v(t2)))
        A('s_lshl_b32 %s, %s, 3' % (s(sRECA), s(sPB))); A('s_add_u32 %s, %s, %d' % (s(sRECA), s(sRECA), WS_XCC))
        A('v_cmp_eq_u32 vcc, 0, %s' % v(vL)); A('v_and_b32 %s, 1, %s' % (v(t0), v(vL))); A('v_and_b32 %s, 2, %s' % (v(t1), v(vL)))
        A('v_cndmask_b32_e64 %s, %s, 0, vcc' % (v(vT), v(t2)))
        A('v_cmp_ne_u32_e64 s[%d:%d], 0, %s' % (sM1, sM1 + 1, v(t0))); A('v_cmp_ne_u32_e64 s[%d:%d], 0, %s' % (sM2, sM2 + 1, v(t1)))
        A('s_lshl1_add_u32 %s, %s, 1' % (s(sSET), s(sBR))); A('s_and_b32 %s, %s, %s' % (s(sSET), s(sSET), s(sW)))
        A('s_lshl_b32 %s, %s, 4' % (s(sT3), s(sBR))); A('s_add_u32 %s, %s, %s' % (s(sT3), s(sT3), s(sH))); A('s_lshl2_add_u32 %s, %s, %s' % (s(sT3), s(sT3), s(sSET)))
        A('s_lshl_b32 %s, %s, 13' % (s(sT3), s(sT3))); A('s_add_u32 %s, %s, %d' % (s(sPL0), s(sT3), WS_PART)); A('s_add_u32 %s, %s, 4096' % (s(sPL1), s(sPL0)))
        A('s_lshl_b32 %s, %s, 10' % (s(sT3), s(sRB))); A('s_add_u32 %s, %s, %s' % (s(sPX), s(sPL0), s(sT3))); A('s_lshl_b32 %s, %s, 10' % (s(sSET), s(sSET)))
        A('s_and_b32 %s, %s, 0xffffff80' % (s(sRECL), s(sRECA))); A('s_add_u32 %s, %s, %d' % (s(sSCR), s(sM0X), L_SCR))
        return P0, P1, P2

    def dma_x(self, i):
        L = ['s_add_u32 m0, %s, %d' % (s(sM0X), (i % 6) * 16384)]
        if i >= 7: L.append('s_add_u32 %s, %s, 28672' % (s(sXO + i - 7), s(sXO + i - 7)))
        for j in range(2 if self.cfg.fake_n2 else 4):
            L.append(('buffer_load_dwordx4 %s, s[%d:%d], %s offen offset:%d %s lds' % (v(vXD + j), SX, SX + 3, s(sXO + i % 7), 1024 * j, self.cfg.xfl), 'x%d' % i))
        return L
    def dma_w(self, i, part, base, tag, m0=True):
        L = ['s_add_u32 m0, %s, %d' % (s(sM0K), base + (i & 4) * 1024)] if m0 else []
        if self.cfg.fake_n2: L.append(('buffer_load_dwordx4 %s, s[%d:%d], %s offen offset:%d %s lds' % (v((vKV + 30, vV + 30, vKV + 31)[part]), SW, SW + 3, s(sWO_ + i), 1024 * (i & 3), self.cfg.wfl), tag))
        return L + [('buffer_load_dwordx4 %s, s[%d:%d], %s offen offset:%d %s lds' % (v((vWDq, vWD, vWDv)[part]), SW, SW + 3, s(sWO_ + i), 1024 * (i & 3), self.cfg.wfl), tag)]
    def xfrag(self, i, ks, tile): return aX + ((i * 4 + ks) * 2 + tile) * 4
    def wread(self, slot, basev, off):
        r = aWR + 4 * (slot % 8)
        return ['ds_read_b64_tr_b16 %s, %s offset:%d' % (a(r + 2 * u, 2), v(basev), off + 256 * u) for u in range(2)]

    def xiter(self, i, extra=()):
        R = []; A = R.append
        ch, tile, sl = i % 7, i // 7, i % 6
        wk = ' ' + self.cfg.wkbar[i] if i in self.cfg.wkbar else ''
        A('@waitvm x%d' % i + wk)
        if wk: A('s_barrier')
        if i == 0: R += self.stamp(1)
        for ks in range(4):
            R += self.wread(4 * i + ks, vWRk, ch * 1024 + ks * 7168)
            R.append(('ds_read_b128 %s, %s offset:%d' % (a(self.xfrag(ch, ks, tile), 4), v((vXR2 if sl >= 4 else vXR) + ks), (sl & 3) * 16384), 'xr%d' % i))
        D = self.cfg.depth
        if i + D < 14:
            if i + D >= 6: A('@waitlgkm xr%d' % (i + D - 6))
            R += self.dma_x(i + D)
        R += self.touches(i)
        R += extra
        for ks in range(4):
            R.append((mfma(vK + 16 * tile, a(aWR + 4 * ((4 * i + ks) % 8), 4), a(self.xfrag(ch, ks, tile), 4), None if (ch == 0 and ks == 0) else vK + 16 * tile), 'kk'))
        return R
    def part1(self):
        P = self.setup2()
        R = []
        for i in range(2, 7): R += self.offs(i)
        W = lambda i: self.dma_w(i, 1, L_WK, 'wk%d' % i)
        su = self.setup() + P[2]
        R = su + self.touches('a') + R if 'a' in self.cfg.touch else R
        X = lambda i: self.dma_x(i) if i < self.cfg.depth else []
        late = {}
        for tok in self.cfg.order0.split():
            if '@' in tok:
                tok, at = tok.split('@'); late.setdefault(int(at), []).extend(W(int(tok[1])))
            else: R += W(int(tok[1])) if tok[0] == 'w' else X(int(tok[1]))
        R += ([] if 'a' in self.cfg.touch else su) + P[1]
        pk = []
        for u in range(8): pk += ['v_lshl_or_b32 %s, %s, 16, %s' % (v(vPH + u), v(vP + 2 * u + 1), v(vP + 2 * u)), 'v_xor_b32 %s, %s, %s' % (v(vPH + u), s(sSGN), v(vPH + u))]
        c = self.cfg
        for part, n, at, base, tg in ((2, c.wv_early, c.wv_at, L_WV, 'wv'),):
            for k in range(n): late.setdefault(at - c.depth, []).extend(self.dma_w(k, part, base, '%s%d' % (tg, k), k in (0, 4)))
        for i in range(7): R += self.xiter(i, late.get(i, []) + (P[0] + pk if i == 1 else []))
        return self.sched(R, 'part1')

    def gemm(self, acc, basev, off, transposed, first_slot, hooks=None, tiles=(0, 1), lead=False, ks=range(28)):
        L = []; hooks = hooks or {}
        for k in ks:
            L += hooks.get(k, [])
            w = a(aWR + 4 * ((first_slot + k) % 8), 4)
            L += self.wread(first_slot + k, basev, off + (k >> 2) * 1024 + (k & 3) * 7168)
            for tile in tiles:
                x = a(self.xfrag(k // 4, k % 4, tile), 4)
                L.append((mfma(acc + 16 * tile, w if transposed else x, x if transposed else w, None if k == 0 else acc + 16 * tile), 'lead' if (lead and tile == 0) else None))
        return L

    def pack(self, r, n=8): return ['v_cvt_pk_bf16_f32 %s, %s, %s' % (v(r + u), v(r + 2 * u), v(r + 2 * u + 1)) for u in range(n)]
    def zero_hi_pads(self, r): return ['v_cndmask_b32_e64 %s, %s, 0, s[%d:%d]' % (v(r + u), v(r + u), sHI, sHI + 1) for u in (6, 7)]

    def softmax(self, p, ep, en, tmp, pk):
        L = []; A = L.append
        Z, T, S1, S2 = tmp, tmp + 2, tmp + 4, tmp + 6
        VAL = [0, 1, 2, 3, 4, 5, 6, 8, 9, 10, 11, 12, 13, 14]
        if pk:
            for r in (ep + 7, ep + 15, en + 7, en + 15): A('v_mov_b32 %s, 0' % v(r))
        for (d, sg) in ((Z, ''), (T, '-')):
            A('v_max3_f32 %s, %s%s, %s%s, %s%s' % (v(d), sg, v(p), sg, v(p + 1), sg, v(p + 2)))
            A('v_max3_f32 %s, %s%s, %s%s, %s%s' % (v(d + 1), sg, v(p + 8), sg, v(p + 9), sg, v(p + 10)))
            for (x, y) in ((3, 4), (5, 6)): A('v_max3_f32 %s, %s, %s%s, %s%s' % (v(d), v(d), sg, v(p + x), sg, v(p + y)))
            for (x, y) in ((11, 12), (13, 14)): A('v_max3_f32 %s, %s, %s%s, %s%s' % (v(d + 1), v(d + 1), sg, v(p + x), sg, v(p + y)))
            A('v_max_f32 %s, %s, %s' % (v(d), v(d), v(d + 1)))
        A('v_permlane32_swap_b32 %s, %s' % (v(Z), v(T))); A('v_max_f32 %s, %s, %s' % (v(Z), v(Z), v(T)))
        A('v_mul_f32 %s, %s, %s' % (v(Z), v(vC), v(Z))); A('v_mov_b32 %s, %s' % (v(T), v(Z)))
        A('v_permlane32_swap_b32 %s, %s' % (v(Z), v(T)))
        for (e, z, ng) in ((ep, Z, 0), (en, T, 1)):
            for u in VAL:
                if pk and u not in (6, 14):
                    if u & 1 == 0: A('v_pk_fma_f32 %s, %s, %s, %s op_sel_hi:[1,0,0] neg_lo:[%d,0,1] neg_hi:[%d,0,1]' % (v(e + u, 2), v(p + u, 2), v(vC, 2), v(z, 2), ng, ng))
                else: A('v_fma_f32 %s, %s%s, %s, -%s' % (v(e + u), '-' if ng else '', v(p + u), v(vC), v(z)))
                A('v_exp_f32 %s, %s' % (v(e + u), v(e + u)))
        for (e, S, z) in ((ep, S1, Z), (en, S2, T)):
            if pk:
                A('v_pk_add_f32 %s, %s, %s' % (v(S, 2), v(e, 2), v(e + 2, 2)))
                for u in (4, 6, 8, 10, 12, 14): A('v_pk_add_f32 %s, %s, %s' % (v(S, 2), v(S, 2), v(e + u, 2)))
            else:
                A('v_add_f32 %s, %s, %s' % (v(S), v(e), v(e + 1))); A('v_add_f32 %s, %s, %s' % (v(S + 1), v(e + 8), v(e + 9)))
                for u in range(2, 7):
                    A('v_add_f32 %s, %s, %s' % (v(S), v(S), v(e + u))); A('v_add_f32 %s, %s, %s' % (v(S + 1), v(S + 1), v(e + 8 + u)))
            A('v_add_f32 %s, %s, %s' % (v(S), v(S), v(S + 1)))
        A('v_permlane32_swap_b32 %s, %s' % (v(S1), v(S2))); A('v_add_f32 %s, %s, %s' % (v(S1), v(S1), v(S2)))
        A('v_rcp_f32 %s, %s' % (v(S1), v(S1))); A('v_mov_b32 %s, %s' % (v(S2), v(S1)))
        A('v_permlane32_swap_b32 %s, %s' % (v(S1), v(S2)))
        for (e, z) in ((ep, S1), (en, S2)):
            for u in range(8):
                if pk: A('v_pk_mul_f32 %s, %s, %s op_sel_hi:[1,0]' % (v(e + 2 * u, 2), v(e + 2 * u, 2), v(z, 2)))
                else:
                    for k in range(1 if u in (3, 7) else 2): A('v_mul_f32 %s, %s, %s' % (v(e + 2 * u + k), v(e + 2 * u + k), v(z)))
                A('v_cvt_pk_bf16_f32 %s, %s, %s' % (v(e + u), v(e + 2 * u), '0' if (u in (3, 7) and not pk) else v(e + 2 * u + 1)))
        return L

    def elu1(self, p, e, pads, pk):
        L = []; A = L.append
        for u in range(0, 16, 2):
            n = 1 if (pads and u in (6, 14)) else 2
            if pk and n == 2: A('v_pk_mul_f32 %s, %s, %s op_sel_hi:[1,0]' % (v(e + u, 2), v(p + u, 2), v(vC, 2)))
            for k in range(n):
                if not (pk and n == 2): A('v_mul_f32 %s, %s, %s' % (v(e + u + k), v(vC), v(p + u + k)))
                A('v_exp_f32_e64 %s, %s clamp' % (v(e + u + k), v(e + u + k)))
                A('v_max_f32 %s, 0x358637bd, %s' % (v(p + u + k), v(p + u + k)))
                if not (pk and n == 2): A('v_add_f32 %s, %s, %s' % (v(e + u + k), v(e + u + k), v(p + u + k)))
            if pk and n == 2: A('v_pk_add_f32 %s, %s, %s' % (v(e + u, 2), v(e + u, 2), v(p + u, 2)))
            A('v_cvt_pk_bf16_f32 %s, %s, %s' % (v(e + u // 2), v(e + u), v(e + u + 1) if n == 2 else '0'))
        return L

    def nonce_load(self): return [('global_load_dwordx2 %s, %s, s[%d:%d] sc1' % (v(vN, 2), v(vZ), sDBG, sDBG + 1), 'nonce')]
    def use_nonce(self, br):
        L = []; A = L.append
        t0, t1 = vXR2, vXR2 + 1
        A('v_readfirstlane_b32 %s, %s' % (s(sN0), v(vN))); A('v_readfirstlane_b32 %s, %s' % (s(sN1), v(vN + 1)))
        A('v_cndmask_b32_e64 %s, %s, %s, s[%d:%d]' % (v(t0), v(vN), v(vN + 1), sM2, sM2 + 1))
        A('v_lshlrev_b32 %s, 16, %s' % (v(t1), v(t0))); A('v_and_b32 %s, 0xffff0000, %s' % (v(t0), v(t0)))
        A('v_cndmask_b32_e64 %s, %s, %s, s[%d:%d]' % (v(vTAG), v(t1), v(t0), sM1, sM1 + 1))
        if br == 'A': A('v_and_b32 %s, %s, %s' % (v(vTAG), s(sXB), v(vTAG)))
        A('s_and_b32 %s, %s, 0xfffffff0' % (s(sROT), s(sN1))); A('s_or_b32 %s, %s, %s' % (s(sREC), s(sXCC), s(sROT)))
        A('v_mov_b32 %s, %s' % (v(vN + 1), s(sREC)))
        L.append(('buffer_store_dwordx2 %s, %s, s[%d:%d], %s offen sc1' % (v(vN, 2), v(vT), SWS, SWS + 3, s(sRECA)), 'side'))
        return L
    def nonce_chk(self, br):
        return ['L_nonce_chk%s:' % br, 's_min_u32 %s, %s, %s' % (s(sT2), s(sN0), s(sN1)), 's_cmp_eq_u32 %s, 0' % s(sT2), 's_cbranch_scc1 L_nonce_retry%s' % br]
    def nonce_retry(self, br):
        return ['L_nonce_retry%s:' % br, '@assume_idle', 's_sleep 1'] + SPIN + self.nonce_load() + self.use_nonce(br) + ['s_branch L_nonce_chk%s' % br]
    def side_loads(self):
        c = self.cfg
        L = []
        L += self.touches('p2')
        if not any('p' in x for x in c.touch.values()): L.append(('buffer_load_dword %s, %s, s[%d:%d], %s offen %s' % (v(vDUM), v(vPRE), SWS, SWS + 3, s(sOBX), c.prefl), 'pre'))
        L += [('buffer_load_dword %s, %s, s[%d:%d], %s offen %s' % (v(vDUM), v(vZ), SWS, SWS + 3, s(sFLW), c.prefl), 'side')]
        return L

    def middle(self, br):
        c = self.cfg; B = br == 'B'; NT = 2 if B else 1
        L = []; A = L.append
        R = []; A = R.append
        if not B:
            for i in range(8): A('v_mov_b32 %s, %s' % (v(vPH + i), v(vE + i)))
            A('s_cmp_ge_u32 %s, 2' % s(sW)); A('s_cselect_b32 %s, 0, -1' % s(sXB))
        tn = lambda tile, sg: (vP if sg == 0 else vK) + 16 * tile
        def featk(tile):
            X = self.pack(vK + 16 * tile) + self.zero_hi_pads(vK + 16 * tile)
            for t in range(2):
                k4 = v(vK + 16 * tile + 4 * t, 4); w4 = v(vPH + 4 * t, 4)
                X.append((mfma(vP + 16 * tile, w4 if B else k4, k4 if B else w4, None if t == 0 else vP + 16 * tile), 'hi'))
            X += self.softmax(vP + 16 * tile, vE + 32 * tile, vE + 32 * tile + 16, vT2 + 8 * tile, False) if B else self.elu1(vP + 16 * tile, vE + 32 * tile, False, False)
            if B:
                for sg in range(2):
                    for t in range(2):
                        X.append((mfma(tn(tile, sg), v(vE + 32 * tile + 16 * sg + 4 * t, 4), v(vID + 4 * t, 4), None if t == 0 else tn(tile, sg)), 'hi2' if tile else 'hi3'))
                    X += self.pack(tn(tile, sg))
            return X
        wv = []
        for k in range(c.wv_early, 7): wv += self.dma_w(k, 2, L_WV, 'wv%d' % k, k in (c.wv_early, 4))
        R += featk(0)
        for i in range(7, 14):
            R += self.xiter(i, wv if i == max(7, 13 - c.depth) else ())
            if i - 7 < c.wv_early:
                R += self.gemm(vV, vWRk, L_WV - L_WK, False, 4, {0: ['@waitvm wv%d' % (c.wv_early - 1), 's_barrier']}, ks=range(4 * (i - 7), 4 * (i - 6)))
        if c.stamps and not c.lite: R.append(('s_memtime s[%d:%d]' % (SX + 2, SX + 3), 'nowait'))
        R += featk(1)
        wq = self.nonce_load()
        for k in range(c.wq_pre): wq += self.dma_w(k, 0, L_WQ, 'wq%d' % k, k in (0, 4))
        wq += ([] if c.pre_q else self.side_loads()) + self.use_nonce(br)
        hooks = {}; k0 = c.wv_early
        for k1 in c.wv_bar:
            hooks[4 * k0] = (['@waitlgkm xr13'] if k0 == c.wv_early else []) + ['@waitvm wv%d' % (k1 - 1), 's_barrier'] + (wq if k0 == max(c.wq_at, c.wv_early) else []); k0 = k1
        R += self.gemm(vV, vWRk, L_WV - L_WK, False, 0, hooks, lead=True, ks=range(4 * c.wv_early, 28))
        A('v_mov_b32 %s, 0x3f803f80' % v(vXR2 + 3))
        for tile in range(2):
            R += self.pack(vV + 16 * tile)
            for u in range(8): A('v_cndmask_b32_e64 %s, %s, %s, s[%d:%d]' % (v(vV + 16 * tile + u), v(vV + 16 * tile + u), v(vXR2 + 3), sE28, sE28 + 1))
        for tile in range(2):
            for sg in reversed(range(NT)):
                src = tn(tile, sg) if B else vE + 32 * tile
                for t in range(2):
                    A(mfma(vKV + 16 * sg, v(src + 4 * t, 4), v(vV + 16 * tile + 4 * t, 4), None if (tile == 0 and t == 0) else vKV + 16 * sg))
        t0, t1, t2 = vXR, vXR + 1, vXR2 + 2
        A('v_add_u32 %s, %s, %s' % (v(t0), s(sSCR), v(vL16)))
        for q in ((4, 5, 6, 7, 2, 3) if B else range(4)): A('ds_write_b128 %s, %s offset:%d' % (v(t0), v(vKV + 4 * q, 4), 16384 * (q >> 2) + 1024 * (q & 3)))
        for d in range(1, 4): A('v_xor_b32 %s, %d, %s' % (v(t0 + d), 4096 * d, v(t0)))
        if not B:
            A('s_cmp_ge_u32 %s, 2' % s(sW)); A('s_cselect_b32 %s, 0x%x, 0' % (s(sA), OOB)); A('v_add_u32 %s, %s, %s' % (v(t2), s(sA), v(vL16)))
        A('v_mov_b32 %s, 0xffff' % v(vXD))
        if c.thr: L += ['s_lshr_b32 %s, 0x2a54, %s' % (s(sT2), s(sH)), 's_bitcmp0_b32 %s, 0' % s(sT2), 's_cselect_b64 vcc, -1, 0']
        L += self.throttle(self.sched(R, 'phase2' + br, boost={'hi': 9000, 'kk': 12000, 'lead': 5000, 'hi2': c.hi2, 'hi3': c.hi2 + c.t0boost}, tight=c.p2_tight), br)
        if c.stamps and not c.lite: L += ['@waitlgkm_all', 'v_writelane_b32 %s, %s, 2' % (v(vST), s(SX + 2))]
        L += self.stamp(3)
        g0 = len(L)
        L += ['s_getpc_b64 s[%d:%d]' % (sTAB, sTAB + 1), 'L_pc%s:' % br, 's_add_u32 %s, %s, L_tab - L_pc%s' % (s(sTAB), s(sTAB), br), 's_addc_u32 %s, %s, 0' % (s(sTAB + 1), s(sTAB + 1))]
        L += self.nonce_chk(br)
        mg = c.merge_q
        X = []; A = X.append
        A('@waitlgkm_all')
        if mg: A('@waitvm wq%d' % (mg - 1))
        A('s_barrier')
        L += X; self.glue(L[g0:]); X = []; A = X.append
        for d in range(1, 4):
            for hf in range(2): X.append(('ds_read_b128 %s, %s offset:%d' % (v(vV + 8 * d + 4 * hf, 4), v(t0 + d), (16384 * (d >> 1) if B else 0) + 2048 * (d & 1) + 1024 * hf), 'exr'))
        for d in range(1, 4):
            if mg:
                for u in range(7): A('v_add_f32 %s, %s, %s' % (v(vKV + u), v(vKV + u), v(vV + 8 * d + u)))
            else:
                for u in range(0, 8, 2): A('v_pk_add_f32 %s, %s, %s' % (v(vKV + u, 2), v(vKV + u, 2), v(vV + 8 * d + u, 2)))
        X += self.pack(vKV, 4)
        A('v_bfi_b32 %s, %s, %s, %s' % (v(vKV + 3), v(vXD), v(vKV + 3), v(vTAG)))
        X.append(('buffer_store_dwordx4 %s, %s, s[%d:%d], %s offen sc1' % (v(vKV, 4), v(vL16 if B else t2), SWS, SWS + 3, s(sPX)), 'pst'))
        tm = c.q_tm and B
        X2 = ['@waitlgkm exr', '@waitvm wq6', 's_barrier']
        if mg: R = X + self.gemm(vK, vWRq, L_WQ, True, 4, tiles=(0,) if tm else (0, 1), ks=range(4 * mg)) + X2
        else:
            L += self.glue(X + self.stamp(4) + X2); R = []
        A = R.append
        t0, t1, t2 = vXR, vXR + 1, vXR + 2
        A('v_add_u32 %s, 2560, %s' % (v(vXD + 1), v(vWOD))); A('v_xor_b32 %s, 32, %s' % (v(vXD + 3), v(vWOD)))
        A('v_add_u32 %s, 5120, %s' % (v(vXD + 2), v(vXD + 3))); A('v_add_u32 %s, 7680, %s' % (v(vXD + 3), v(vXD + 3)))
        A('s_mul_i32 %s, %s, 14336' % (s(sWOS), s(sW))); A('s_lshl_b32 %s, %s, 8' % (s(sA), s(sCB))); A('s_add_u32 %s, %s, %s' % (s(sWOS), s(sWOS), s(sA)))
        A('v_and_b32 %s, 15, %s' % (v(vXR + 3), v(vL))); A('v_lshlrev_b32 %s, 3, %s' % (v(vXR + 3), v(vXR + 3)))
        A('v_lshrrev_b32 %s, 4, %s' % (v(t1), v(vL))); A('v_lshlrev_b32 %s, 1, %s' % (v(t0), v(vXR + 3))); A('v_lshl_add_u32 %s, %s, 10, %s' % (v(t2), v(t1), v(t0)))
        A('s_add_u32 %s, %s, %d' % (s(sB_), s(sSET if B else sM0W), L_MISC))
        A('v_lshl_add_u32 %s, %s, 3, %s' % (v(vXR2 + 3), v(t1), v(t0))); A('v_add_u32 %s, %s, %s' % (v(t0), s(sB_), v(vXR2 + 3))); A('v_add_u32 %s, %d, %s' % (v(vXR2 + 3), L_MISC + 4096, v(vXR2 + 3)))
        A('v_cndmask_b32_e64 %s, %s, %s, s[%d:%d]' % (v(vXR2 + 3), v(t0), v(vXR2 + 3), sHI, sHI + 1))
        if B: A('v_mov_b32 %s, %s' % (v(t0), v(t2)))
        else: A('v_sub_u32 %s, %s, %s' % (v(t0), v(vXR2 + 2), v(vL16))); A('v_add_u32 %s, %s, %s' % (v(t0), v(t0), v(t2)))
        A('v_and_b32 %s, 1, %s' % (v(t1), v(vL))); A('v_lshlrev_b32 %s, 4, %s' % (v(t1), v(t1))); A('v_mov_b32 %s, 0x3f80' % v(t2)); A('v_lshlrev_b32 %s, %s, %s' % (v(t2), v(t1), v(t2)))
        A('v_and_b32 %s, 15, %s' % (v(t1), v(vL))); A('v_cmp_eq_u32 vcc, 7, %s' % v(t1)); A('v_cndmask_b32_e64 %s, %s, 0, vcc' % (v(t2), v(t2))); A('v_lshrrev_b32 %s, 1, %s' % (v(t1), v(t1)))
        for i in range(4):
            r = (sT0, sFAR)[i & 1]
            A('v_cmp_eq_u32_e64 s[%d:%d], %d, %s' % (r, r + 1, i, v(t1))); A('v_cndmask_b32_e64 %s, 0, %s, s[%d:%d]' % (v(vID + i), v(t2), r, r + 1))
        wo_block = self.wo_block
        if c.pre_q: R += self.side_loads()
        for m in range(c.wo_before): R += wo_block(m)
        npart = len(R); R += self.part_loads(br)
        for m in range(c.wo_before, c.wo_mid): R += wo_block(m)
        tabs = self.table_loads()
        if not tm: R += self.gemm(vK, vWRq, L_WQ, True, 4, ks=range(4 * mg, 28))
        for tile in range(2):
            if tm: R += self.gemm(vK, vWRq, L_WQ, True, 4 + 28 * tile, tiles=(tile,), ks=range(0 if tile else 4 * mg, 28))
            R += self.pack(vK + 16 * tile) + self.zero_hi_pads(vK + 16 * tile)
            for t in range(2):
                R.append((mfma(vP + 16 * tile, v(vPH + 4 * t, 4), v(vK + 16 * tile + 4 * t, 4), None if t == 0 else vP + 16 * tile), 'hi' if tile == 0 else None))
        for tile in range(2):
            pk = not (tm and tile == 0)
            R += self.softmax(vP + 16 * tile, vE + 32 * tile, vE + 32 * tile + 16, vT2 + 8 * tile, pk) if B else self.elu1(vP + 16 * tile, vE + 32 * tile, True, True)
        vIM = [vWD, vWDq, vXR2 + 2, vWRq]
        R += ['s_add_u32 %s, %s, %d' % (s(sB_), s(sSET), L_MISC), 'v_add_u32 %s, %s, %s' % (v(vIM[0]), s(sB_), v(vL16))]
        for q in range(1, 2 * NT): R.append('v_xor_b32 %s, %d, %s' % (v(vIM[q]), 1024 * q, v(vIM[0])))
        if c.tab_late: late0 = tabs; tabs = []
        else: late0 = []
        L += self.sched(R + tabs, 'q' + br, release={npart: (c.rel_part if B else c.rel_partA) + (330 if mg else 0)}, boost={'hi': 4000, 'pst': 30000, 'exr': 40000}, tight=c.q_tight)
        L += self.stamp(6)
        A = L.append
        A('@waitvm part'); self.glue(L[-1:])
        L += self.stamp(5)
        A('L_part_chk%s:' % br)
        R = []; A = R.append
        G0 = vKV
        for p in range(8): A('v_mfma_f32_16x16x32_bf16 %s, %s, %s, %s' % (v(vV + 4 * (p & 3), 4), v(vID, 4), v(G0 + 4 * p, 4), v(vV + 4 * (p & 3), 4) if p >= 4 else '0'))
        x, z, y = vT2, vT2 + 1, vT2 + 12
        A('v_max3_u32 %s, %s, %s, %s' % (v(x), v(G0 + 3), v(G0 + 7), v(G0 + 11))); A('v_min3_u32 %s, %s, %s, %s' % (v(y), v(G0 + 3), v(G0 + 7), v(G0 + 11)))
        A('v_max3_u32 %s, %s, %s, %s' % (v(x), v(x), v(G0 + 15), v(G0 + 19))); A('v_min3_u32 %s, %s, %s, %s' % (v(y), v(y), v(G0 + 15), v(G0 + 19)))
        A('v_max3_u32 %s, %s, %s, %s' % (v(x), v(x), v(G0 + 23), v(G0 + 27))); A('v_min3_u32 %s, %s, %s, %s' % (v(y), v(y), v(G0 + 23), v(G0 + 27)))
        A('v_max_u32 %s, %s, %s' % (v(x), v(x), v(G0 + 31))); A('v_min_u32 %s, %s, %s' % (v(y), v(y), v(G0 + 31)))
        A('v_xor_b32 %s, %s, %s' % (v(x), v(x), v(vTAG))); A('v_xor_b32 %s, %s, %s' % (v(y), v(y), v(vTAG)))
        A('v_or_b32 %s, %s, %s' % (v(x), v(x), v(y))); A('v_lshrrev_b32 %s, 16, %s' % (v(x), v(x)))
        A('v_xor_b32 %s, %s, %s' % (v(y), s(sN0), v(vN))); A('v_xor_b32 %s, %s, %s' % (v(z), s(sREC), v(vN + 1)))
        A('v_cmp_ne_u32_e64 s[%d:%d], 0, %s' % (sFAR, sFAR + 1, v(z)))
        A('v_lshrrev_b32 %s, 4, %s' % (v(z), v(z))); A('v_or3_b32 %s, %s, %s, %s' % (v(x), v(x), v(y), v(z)))
        A('v_cmp_ne_u32 vcc, 0, %s' % v(x))
        L += self.sched(R, 'sum' + br)
        A = L.append
        A('s_cbranch_vccnz L_part_retry%s' % br)
        late = list(late0)
        for m in range(c.wo_mid, c.wo_imp): late += wo_block(m)
        nl = c.late0
        L += late[:nl]
        for q in range(4): L += self.pack(vV + 4 * q, 2)
        for q in range(4): A('ds_write_b64 %s, %s offset:%d' % (v(vXR2 + 3), v(vV + 4 * q, 2), 256 * q))
        A('@waitlgkm_all'); A('s_barrier')
        self.glue(L[-nl - 15:])
        R = []; A = R.append
        R += late[nl:]
        early = self.wo_reads()[:3 + 8 * c.wo_early]
        for q in range(2 * NT): A('ds_read_b128 %s, %s' % (v(vV + 16 + 4 * q, 4), v(vIM[q])))
        for tile in range(2):
            for q in range(2 * NT):
                A(mfma(vP + 16 * tile, v(vV + 16 + 4 * q, 4), v(vE + 32 * tile + 16 * (q >> 1) + 4 * (q & 1), 4), None if q == 0 else vP + 16 * tile))
        for tile in range(2):
            P = vP + 16 * tile; d = vT2 + 4 + 4 * tile
            A('v_mov_b32 %s, %s' % (v(d), v(P + 12))); A('v_permlane32_swap_b32 %s, %s' % (v(P + 12), v(d)))
            A('v_add_f32 %s, 0x358637bd, %s' % (v(d), v(d))); A('v_rcp_f32 %s, %s' % (v(d), v(d)))
            for u in range(8):
                if tile: A('v_pk_mul_f32 %s, %s, %s op_sel_hi:[1,0]' % (v(P + 2 * u, 2), v(P + 2 * u, 2), v(d, 2)))
                else:
                    for k in range(2): A('v_mul_f32 %s, %s, %s' % (v(P + 2 * u + k), v(P + 2 * u + k), v(d)))
                A('v_cvt_pk_bf16_f32 %s, %s, %s' % (v(P + u), v(P + 2 * u), v(P + 2 * u + 1)))
        A('v_mov_b32 %s, %s' % (v(vN), s(sN0))); A('v_mov_b32 %s, %s' % (v(vN + 1), s(sN1)))
        A('s_lshl_b32 %s, %s, 3' % (s(sT2), s(sH))); A('s_add_u32 %s, %s, %s' % (s(sC_), s(sFLW), s(sT2))); A('s_xor_b32 %s, %s, 32768' % (s(sOBX), s(sOB1))); A('s_add_u32 %s, %s, 16384' % (s(sA), s(sOB1))); A('s_add_u32 %s, %s, 16384' % (s(sB_), s(sOBX)))
        L += self.sched(R + early, 'o' + br, lowds={id(x) for x in early}, vmlow=True)
        L += self.stamp(7)
        A = L.append
        if c.force_global: A('s_branch L_far')
        A('s_cmp_lg_u64 s[%d:%d], 0' % (sFAR, sFAR + 1)); A('s_cbranch_scc1 L_far')
        return L
    def publish(self, fl):
        c = self.cfg; L = []
        for tile in range(2):
            for t in range(2):
                L.append(('buffer_store_dwordx4 %s, %s, s[%d:%d], %s offen %s' % (v(vP + 16 * tile + 4 * t, 4), v(vL16), SWS, SWS + 3, s(((sOB1, sA), (sOBX, sB_))[tile][t]), fl), 'ost'))
        for m in range(c.wo_imp, 7 - c.wo_g3): L += self.wo_block(m)
        L += self.p3_setup()
        L = self.sched(L, 'pub')
        L += ['@waitvm ost']
        L.append('buffer_store_dwordx2 %s, %s, s[%d:%d], %s offen %s' % (v(vN, 2), v(vT), SWS, SWS + 3, s(sC_), fl))
        return L
    def wo_block(self, m, tag='wo'):
        X = ['s_add_u32 m0, %s, %d' % (s(sM0X), L_WO + 16384 * m)]
        if m: X.append('s_add_u32 %s, %s, %d' % (s(sWOS), s(sWOS), 57344))
        return X + [('buffer_load_dwordx4 %s, s[%d:%d], %s offen offset:%d %s lds' % (v(vXD + j if j else vWOD), SWO, SWO + 3, s(sWOS), 1024 * j, self.cfg.wofl), tag) for j in range(4)]
    def part_loads(self, br):
        L = [('buffer_load_dwordx2 %s, %s, s[%d:%d], %s offen sc1' % (v(vN, 2), v(vXR + 3), SWS, SWS + 3, s(sRECL)), 'rec')]
        for p in range(8):
            L.append(('buffer_load_dwordx4 %s, %s, s[%d:%d], %s offen offset:%d sc1' % (v(vKV + 4 * p, 4), v(vXR), SWS, SWS + 3, s(sPL1 if p >= 4 else sPL0), 256 * (p & 3)), 'part'))
        return L
    def part_retry(self, br):
        P = self.part_loads(br)
        L = ['L_part_retry%s:' % br, '@assume_idle', '@waitvm_all'] + SPIN + [P[0]]
        for p in range(8):
            L += ['v_xor_b32 %s, %s, %s' % (v(vT2), v(vKV + 4 * p + 3), v(vTAG)), 'v_cmp_lt_u32 vcc, 0xffff, %s' % v(vT2), 's_cbranch_vccz L_got%s%d' % (br, p), (P[1 + p][0], 'untracked'), 'L_got%s%d:' % (br, p)]
        return L + ['@waitvm_all', 's_branch L_part_chk%s' % br]
    def far(self):
        return ['L_far:', '@assume_idle', '@waitvm_all', 's_nop 4'] + self.publish('sc1') + ['s_branch L_join']
    def wo_reads(self):
        b = [vWO0, vWO0 + 1, vXR2, vXR2 + 1]
        L = ['v_xor_b32 %s, 32, %s' % (v(b[1]), v(b[0])), 'v_add_u32 %s, 0x10000, %s' % (v(b[2]), v(b[0])), 'v_add_u32 %s, 0x10000, %s' % (v(b[3]), v(b[1]))]
        for k in range(14):
            for nt in range(2):
                for i in range(2):
                    off = (32 * k + 4 * i) * 256
                    L.append('ds_read_b64_tr_b16 %s, %s offset:%d' % (a(8 * k + 4 * nt + 2 * i, 2), v(b[nt + 2 * (off >> 16)]), off & 0xffff))
        return L

    def p3_setup(self):
        L = []; A = L.append
        A('s_lshl_b32 %s, %s, 2' % (s(sT2), s(sRB))); A('s_add_u32 %s, %s, %s' % (s(sT2), s(sT2), s(sRQ))); A('s_mul_i32 %s, %s, %d' % (s(sD_), s(sT2), 64 * 1792))
        A('s_mul_i32 %s, %s, 896' % (s(sT2), s(sBR))); A('s_add_u32 %s, %s, %s' % (s(sD_), s(sD_), s(sT2)))
        A('s_lshl_b32 %s, %s, 2' % (s(sT2), s(sCB))); A('s_add_u32 %s, %s, %s' % (s(sT2), s(sT2), s(sW)))
        A('s_cmp_ge_u32 %s, 14' % s(sT2)); A('s_cselect_b32 %s, 0x%x, 0' % (s(sA), OOB))
        A('s_lshl_b32 %s, %s, 6' % (s(sT2), s(sT2))); A('s_add_u32 %s, %s, %s' % (s(sXO), s(sD_), s(sT2)))
        for b in range(1, 4): A('s_add_u32 %s, %s, %d' % (s(sXO + b), s(sXO), b * 16 * 1792))
        t0, t1, t2 = vT2 + 10, vT2 + 11, vT2 + 12
        A('s_lshl_b32 %s, %s, 12' % (s(sB_), s(sW))); A('s_add_u32 %s, %s, %d' % (s(sB_), s(sB_), L_OT))
        A('v_and_b32 %s, 15, %s' % (v(t0), v(vL))); A('v_lshlrev_b32 %s, 4, %s' % (v(vS16), v(t0))); A('v_lshl_add_u32 %s, %s, 6, %s' % (v(t0), v(t0), s(sB_)))
        A('v_bfe_u32 %s, %s, 4, 1' % (v(t1), v(vL))); A('v_lshl_add_u32 %s, %s, 3, %s' % (v(t0), v(t1), v(t0)))
        A('v_bfe_u32 %s, %s, 1, 2' % (v(t1), v(vL))); A('v_lshrrev_b32 %s, 5, %s' % (v(t2), v(vL))); A('v_xor_b32 %s, %s, %s' % (v(t1), v(t1), v(t2)))
        A('v_lshl_add_u32 %s, %s, 4, %s' % (v(vOW), v(t1), v(t0))); A('v_xor_b32 %s, 32, %s' % (v(vOW + 1), v(vOW)))
        A('v_bfe_u32 %s, %s, 3, 2' % (v(t1), v(vL))); A('v_xor_b32 %s, %s, %s' % (v(t1), v(t1), v(vL))); A('v_and_b32 %s, 3, %s' % (v(t1), v(t1)))
        A('v_lshrrev_b32 %s, 2, %s' % (v(t0), v(vL))); A('v_lshl_add_u32 %s, %s, 6, %s' % (v(t2), v(t0), s(sB_))); A('v_lshl_add_u32 %s, %s, 4, %s' % (v(vOR), v(t1), v(t2)))
        A('v_mul_u32_u24 %s, 1792, %s' % (v(t0), v(t0))); A('v_and_b32 %s, 3, %s' % (v(t1), v(vL))); A('v_lshl_add_u32 %s, %s, 4, %s' % (v(t0), v(t1), v(t0)))
        A('v_add_u32 %s, %s, %s' % (v(vOG), s(sA), v(t0)))
        A('v_and_b32 %s, 15, %s' % (v(t0), v(vL))); A('v_cmp_eq_u32_e64 s[%d:%d], %s, %s' % (sOWN, sOWN + 1, s(sH), v(t0)))
        for r in vOF: A('v_add_u32 %s, %s, %s' % (v(r), v(r), v(vS16)))
        A('s_lshl2_add_u32 %s, %s, %s' % (s(sT2), s(sGID), s(sRQ))); A('s_lshl2_add_u32 %s, %s, %s' % (s(sT2), s(sT2), s(sW)))
        A('s_lshl_b32 %s, %s, 14' % (s(sT2), s(sT2))); A('s_add_u32 %s, %s, %d' % (s(sD_), s(sT2), WS_O))
        A('s_lshl_b32 %s, %s, 14' % (s(sWOM), s(sW))); A('s_mov_b32 m0, %s' % s(sWOM))
        return L
    def table_loads(self):
        L = ['v_and_b32 %s, 0x300, %s' % (v(vWRk), v(vL16)), 'v_lshrrev_b32 %s, 2, %s' % (v(vWRk), v(vWRk))]
        for q in range(4): L.append(('global_load_dwordx%d %s, %s, s[%d:%d] offset:%d' % (4 if q < 3 else 2, v(vOF[4 * q], 4 if q < 3 else 2), v(vWRk), sTAB, sTAB + 1, 16 * q), 'tab'))
        return L
    def table(self):
        T = []
        for g in range(4):
            for r in range(16):
                h, u = divmod(8 * (r >> 1) + 2 * g + (r & 1), 7)
                T.append(h * 1024 + (u >> 2) * 16384 + (u & 1) * 512 + ((u >> 1) & 1) * 8)
        return ['.p2align 6', '.type L_tab,@object', 'L_tab:'] + ['.long %d' % x for x in T] + ['.fill L_PAD, 4, 0', '.size L_tab, 256 + 4 * L_PAD']

    def tail(self):
        c = self.cfg
        L = ['L_pub:'] + self.publish(''); A = L.append
        A('L_join:')
        L += self.stamp(8)
        g3 = 7 - c.wo_g3
        poll = 'buffer_load_dwordx2 %s, %s, s[%d:%d], %s offen sc1' % (v(vT2, 2), v(vXR + 3), SWS, SWS + 3, s(sFLG))
        assert c.wo_early >= 2
        if c.poll_first:
            A(poll); A('@waitlgkm_all'); A('s_barrier'); L += self.wo_reads()[3 + 8 * c.wo_early:3 + 8 * c.wo_imp]
            wrest = self.wo_reads()[3 + 8 * c.wo_imp:3 + 8 * g3]
        else:
            A('@waitvm wo'); A(poll); A('@waitlgkm_all'); A('s_barrier'); L += self.wo_reads()[3 + 8 * c.wo_early:3 + 8 * g3]
            wrest = []
        def test(r): return ['v_xor_b32 %s, %s, %s' % (v(r), s(sN0), v(r)), 'v_xor_b32 %s, %s, %s' % (v(r + 1), s(sN1), v(r + 1)),
                             'v_or_b32 %s, %s, %s' % (v(r), v(r), v(r + 1)), 'v_cmp_ne_u32 vcc, 0, %s' % v(r), 's_andn2_b64 vcc, vcc, s[%d:%d]' % (sOWN, sOWN + 1)]
        A('L_poll:')
        L += test(vT2); A('s_cbranch_vccnz L_repoll'); A('L_seen:')
        p2 = poll.replace(v(vT2, 2), v(vT2 + 14, 2))
        self.repoll = ['L_repoll:', '@assume_idle', (poll, 'p1')] + SPIN + ['s_nop 15', (p2, 'p2')] + test(vT2) + ['s_cbranch_vccz L_seen2'] + test(vT2 + 14) + ['s_cbranch_vccnz L_repoll',
                       'L_seen2:', '@waitvm_all', 's_branch L_seen']
        L += self.stamp(9)
        od = []
        for h in range(16):
            if h and h % 4 == 0: od += ['s_add_u32 m0, %s, %d' % (s(sWOM), 1024 * h), 's_add_u32 %s, %s, 4096' % (s(sD_), s(sD_))]
            od.append(('buffer_load_dwordx4 %s, s[%d:%d], %s offen offset:%d sc1 lds' % (v(vL16), SWS, SWS + 3, s(sD_), 1024 * (h & 3)), 'o%d' % h))
        assert c.o_first % 4 == 0
        nf = [i for i, x in enumerate(od) if isinstance(x, tuple)][c.o_first - 1] + 1
        L += od[:nf]
        M16 = 'v_mfma_f32_16x16x32_bf16'
        st = {'have': -1}
        def gate(k):
            X = []; h = (8 * k + 7) // 7
            need = min(x for x in c.stages if x >= h)
            wg = k % 2 == 0 and k // 2 >= g3
            if st['have'] < need or wg:
                X = ['@waitvm o%d' % need + (' wog%d' % (k // 2) if wg else ''), 's_barrier']; st['have'] = max(need, st['have'])
            return X
        def rd(k, sg, i): return 'ds_read_b64 %s, %s offset:%d' % (v(vE + 4 * ((4 * k + sg) % 12) + 2 * i, 2), v(vOF[2 * (k % 7) + i]), (k // 7) * 8192 + (sg >> 1) * 32768 + (sg & 1) * 256)
        rds = lambda k: [rd(k, sg, i) for sg in range(4) for i in range(2)]
        later = od[nf:]
        for m in range(g3, 7): later += self.wo_block(m, 'wog%d' % m)
        L += gate(0) + rds(0) + gate(1)
        for k in range(14):
            fill = []
            if k + 2 < 14:
                L += gate(k + 2); fill = (rds(1) if k == 0 else []) + rds(k + 2)
                if k >= c.wrest_at and wrest: fill = interleave(fill, wrest[:c.wrest_n]); del wrest[:c.wrest_n]
                assert not wrest or k + 1 < 2 * c.wo_imp
                if (k + 2) % 2 == 0 and (k + 2) // 2 >= g3: fill = interleave(fill, self.wo_reads()[3 + 4 * (k + 2):3 + 4 * (k + 2) + 8])
            per = -(-len(fill) // 8)
            if k == 13: lastk = len(L)
            for j in range(8):
                sg, nt = j >> 1, j & 1
                d = v(vK + 8 * sg + 4 * nt, 4)
                L.append('%s %s, %s, %s, %s' % (M16, d, a(8 * k + 4 * nt, 4), v(vE + 4 * ((4 * k + sg) % 12), 4), d if k else '0'))
                if later and k and j % c.g3_every == 0:
                    while not isinstance(later[0], tuple): L.append(later.pop(0))
                    L.append(later.pop(0))
                L += fill[per * j:per * (j + 1)]
        assert not later
        R = L[lastk:]; del L[lastk:]
        L += self.stamp(10)
        A = R.append
        for sg in range(4):
            for nt in range(2):
                d = vK + 8 * sg + 4 * nt
                R += self.pack(d, 2)
                A('ds_write_b64 %s, %s offset:%d' % (v(vOW + nt), v(d, 2), 1024 * sg))
            A('ds_read_b128 %s, %s offset:%d' % (v(vP + 4 * sg, 4), v(vOR), 1024 * sg))
            A('buffer_store_dwordx4 %s, %s, s[%d:%d], %s offen %s' % (v(vP + 4 * sg, 4), v(vOG), SOUT, SOUT + 3, s(sXO + sg), c.outfl))
        L += self.sched(R, 'out')
        A = L.append
        if c.stamps:
            L += self.stamp(11)
            A('s_memrealtime s[%d:%d]' % (sT0, sT1)); A('@waitlgkm_all')
            A('v_writelane_b32 %s, %s, 12' % (v(vST), s(sT0)))
            A('s_lshl_b32 %s, s2, 2' % s(sT2)); A('s_add_u32 %s, %s, %s' % (s(sT2), s(sT2), s(sW))); A('s_lshl_b32 %s, %s, 8' % (s(sT2), s(sT2)))
            A('s_add_u32 %s, %s, %d' % (s(sT2), s(sT2), WS_STAMP))
            A('v_lshlrev_b32 %s, 2, %s' % (v(vT), v(vL)))
            for k in range(0 if not c.prost else 4, 4): A('v_writelane_b32 %s, s%d, %d' % (v(vST), 12 + 2 * k, 32 + k))
            A('buffer_store_dword %s, %s, s[%d:%d], %s offen' % (v(vST), v(vT), SWS, SWS + 3, s(sT2)))
        if c.leak:
            if c.leak == 11: L += self.stamp(11)
            A('s_lshl_b32 s11, s101, 2'); A('s_cmp_eq_u32 %s, %d' % (s(sBR), c.leak_br)); A('s_cselect_b32 s11, s11, 0'); A('s_memrealtime s[100:101]'); A('@waitlgkm_all')
            A('L_leak:'); A('s_memrealtime s[%d:%d]' % (sT0, sT1)); A('@waitlgkm_all'); A('s_sub_u32 %s, %s, s100' % (s(sT0), s(sT0))); A('s_cmp_lt_u32 %s, s11' % s(sT0)); A('s_cbranch_scc1 L_leak')
        if c.tfix:
            A('L_tfix:'); A('s_memrealtime s[%d:%d]' % (sT0, sT1)); A('@waitlgkm_all'); A('s_sub_u32 %s, %s, s100' % (s(sT0), s(sT0))); A('s_cmp_lt_u32 %s, %d' % (s(sT0), c.tfix)); A('s_cbranch_scc1 L_tfix')
        A('L_end:'); A('s_endpgm')
        return L

    def throttle(self, L, br):
        c = self.cfg
        if not c.thr: return L
        out = []; seen = set()
        for x in L:
            if isinstance(x, tuple) and x[1] is not None and x[1] not in seen and x[1] in c.thr_tags:
                if x[1] != 'wq': seen.add(x[1])
                n = self.nthr; self.nthr += 1
                out += ['s_cbranch_vccnz L_thr%d' % n, 'L_thb%d:' % n]
                self.thr_side += ['L_thr%d:' % n, 's_waitcnt vmcnt(%d)' % c.thr, 's_branch L_thb%d' % n]
            out.append(x)
        return out
    def marks(self, L):
        if not self.cfg.marks: return L
        out = []; seen = set()
        for x in L:
            t = x[0] if isinstance(x, tuple) else x
            hit = [k for k, (p, af) in enumerate(self.cfg.marks) if (t == p or t.startswith(p + ' ')) and k not in seen]
            for k in hit:
                if not self.cfg.marks[k][1]: out.append(('s_memtime s[%d:%d]' % (12 + 2 * k, 13 + 2 * k), 'nowait'))
            out.append(x)
            for k in hit:
                if self.cfg.marks[k][1]: out.append(('s_memtime s[%d:%d]' % (12 + 2 * k, 13 + 2 * k), 'nowait'))
                seen.add(k)
        return out
    def build(self):
        shared = self.prologue() + self.part1() + self.stamp(14) + ['s_cmp_eq_u32 %s, 0' % s(sBR), 's_cbranch_scc1 L_brA']
        MK = '.set MARK_A, 0'
        M0 = copy.deepcopy(self.M)
        main = finalize(self.marks(shared + self.middle('B') + self.tail()))
        self.M = M0
        alt = finalize(self.marks(shared + [MK, 'L_brA:'] + self.middle('A') + self.publish('') + ['s_branch L_join']))
        alt = alt[alt.index(MK) + 1:]
        side = finalize(self.repoll + self.far() + (self.help() if self.cfg.help else []) + self.mknonce() + self.nonce_retry('B') + self.nonce_retry('A') + self.part_retry('B') + self.part_retry('A'))
        return main, alt, side + self.thr_side + self.table()

HEADER = open(os.path.join(os.path.dirname(os.path.abspath(__file__)), 'header.txt')).read()

def generate(cfg):
    import emit
    emit.MERGE = cfg.merge
    import sched
    sched.BURST = cfg.burst; sched.HOLD = cfg.hold
    g = G(cfg)
    main, alt, side = g.build()
    if cfg.align:
        from align import align
        hd = '.amdgcn_target "amdgcn-amd-amdhsa--gfx950"\n.text\n'
        code = [l.replace('CODE_SPAN', '0x5000') for l in main + alt]
        rest = '\n'.join(side).replace('L_PAD', '0') + '\n'
        code, p0, p1 = align(hd, code, rest, cfg.align)
        sys.stderr.write('misalignment penalty %d -> %d\n' % (p0, p1))
        code = [l.replace('0x5000', 'CODE_SPAN') if ('s_cselect' in l or 'v_min_u32' in l) else l for l in code]
        main, alt = code, []
    body = main + alt + side
    txt = HEADER
    if cfg.extra_empty:
        txt += '; @launch kernel=%s grid=(256,1,1) block=(256,1,1) lds=163840\n; @launch kernel=empty_kernel grid=(256,1,1) block=(256,1,1) lds=0\n' % KNAME
    else:
        txt += '; @launch grid=(256,1,1) block=(256,1,1) lds=163840\n'
    txt += '.amdgcn_target "amdgcn-amd-amdhsa--gfx950"\n.text\n.globl %s\n.p2align 8\n.type %s,@function\n%s:\n' % (KNAME, KNAME, KNAME)
    txt += '\n'.join(('' if l.endswith(':') else '    ') + l for l in body) + '\n'
    if cfg.extra_empty:
        txt += '.globl empty_kernel\n.p2align 8\n.type empty_kernel,@function\nempty_kernel:\n    s_endpgm\n'
        txt += '.section .rodata,"a"\n.p2align 6\n.amdhsa_kernel empty_kernel\n  .amdhsa_next_free_vgpr 8\n  .amdhsa_next_free_sgpr 16\n  .amdhsa_accum_offset 8\n  .amdhsa_group_segment_fixed_size 0\n  .amdhsa_kernarg_size 80\n  .amdhsa_user_sgpr_count 2\n  .amdhsa_user_sgpr_kernarg_segment_ptr 1\n  .amdhsa_system_sgpr_workgroup_id_x 1\n.end_amdhsa_kernel\n'
    txt += '.section .rodata,"a"\n.p2align 6\n.amdhsa_kernel %s\n' % KNAME
    txt += '  .amdhsa_next_free_vgpr 512\n  .amdhsa_next_free_sgpr 102\n  .amdhsa_accum_offset 256\n  .amdhsa_group_segment_fixed_size 0\n'
    txt += '  .amdhsa_kernarg_size 80\n  .amdhsa_user_sgpr_count 2\n  .amdhsa_user_sgpr_kernarg_segment_ptr 1\n  .amdhsa_system_sgpr_workgroup_id_x 1\n.end_amdhsa_kernel\n'
    import subprocess, tempfile, re
    d = tempfile.mkdtemp()
    open(d + '/a.s', 'w').write(txt.replace('L_PAD', '0'))
    r = subprocess.run(['clang', '-x', 'assembler', '-target', 'amdgcn-amd-amdhsa', '-mcpu=gfx950', '-c', d + '/a.s', '-o', d + '/a.o'], capture_output=True, text=True)
    if r.returncode: raise Exception(r.stderr[:3000])
    r = subprocess.run(['llvm-readelf', '-S', d + '/a.o'], capture_output=True, text=True).stdout
    size = int(re.search(r'\.text\s+PROGBITS\s+\w+\s+\w+\s+(\w+)', r).group(1), 16)
    assert size < 32768 + 64
    sys.stderr.write('code bytes: %d\n' % size)
    return txt.replace('L_PAD', str((32768 + 256 - size) // 4))

if __name__ == '__main__':
    cfg = Cfg()
    out = sys.argv[1]
    for kv in sys.argv[2:]:
        k, val = kv.split('=', 1); assert hasattr(cfg, k), k; setattr(cfg, k, eval(val))
    open(out, 'w').write(generate(cfg))
```

```python
import sys, os
from emit import finalize, interleave
from sched import schedule, Machine
import copy

KNAME = 'concat_heads__linear_attn_block__linear_kernel_hedgehog__prompt_kernel'

class Cfg:
    stamps = False; lite = False; fine = None; frange = (0, 1); marks = None; leak = None; leak_br = 1; tfix = 0; extra_empty = False; force_global = False; verbose = False
    rotmap = None; rottab = None; tswap = 0; pref_slots = 0
    xfl = ''; wfl = ''; wofl = ''; outfl = 'sc1'; prefl = 'sc1'; tfl = ''
    touch = {"p2": "o"}
    wv_bar = (1, 2, 4, 7); hi2 = 6000; q_tm = False
    rel_part = 1600; rel_partA = 1900; rel_nonce = 0
    wo_before = 2; wo_mid = 2; wo_imp = 5; wo_g3 = 1; tab_late = True; q_tight = False; p2_tight = False; wo_early = 2; late0 = 6; pre_q = False; ws_base = 0
    stages = (3, 5, 7, 11, 15); g3_every = 2; o_first = 8
    dslat = 130; merge = 24; burst = 24; hold = 12
    miss = {}; lines = {}
    wv_early = 0; wv_at = 7
    wq_pre = 7
    fake_n2 = False
    wq_at = 0
    align = 4
    flip = False
    delay = None
    help_plain = False
    help = 'xwX'
    merge_q = 2
    poll_first = True; wrest_at = 3; wrest_n = 4
    prost = False
    thr = 0; thr_tags = ['x11', 'x12', 'x13', 'wv0', 'wv1', 'wv2', 'wv3', 'wv4', 'wv5', 'wv6', 'wq']
    depth = 4; order0 = 'w2 w3 x2 w4 x3 w5 w6 x4 x5'; wkbar = {0: 'wk1 phi', 2: 'wk3', 4: 'wk6'}; t0boost = 2000
    rate = 2.2; cap = 256; lat = 400; fifo = 4; wlines = 90; cold = 900; pmiss = 900; smiss = 1000

WS_XCC, WS_FLAG, WS_PART, WS_O, WS_STAMP = 4096, 8192, 65536, 2 << 20, 16 << 20
WS_BYTES = 32 << 20
L_WK, L_WV, L_MISC, L_WQ, L_WO, L_SCR, L_OT = 98304, 126976, 155648, 0, 32768, 32768, 65536
OOB = 0x40000000
sAX, sAW, sAWO, sBX, sBW, sPHI, sBWO, sOUT, sDBG, sWSP = 4, 6, 8, 10, 12, 14, 16, 18, 20, 22
SX, SW, SWO, SPHI, SWS, SOUT = 24, 28, 32, 36, 40, 44
sBR, sRB, sH, sW, sGID, sSLOT, sT0, sT1, sT2, sXCC = 48, 49, 50, 51, 52, 53, 54, 55, 56, 57
sN0, sN1 = 58, 59
sHI, sE28 = 60, 62
sXO, sWO_ = 64, 72
sSPIN, sFAR = 71, 72
sM0X, sM0W, sSH, sCB, sRQ, sPB = 80, 81, 82, 83, 84, 85
sA, sB_, sC_, sD_ = 86, 87, 88, 89
sOB1, sWOM, sDT, sROT, sXB, sWB, sOBX, sFLG, sT3, sREC, sRECA = 90, 91, 92, 93, 94, 95, 96, 97, 98, 99, 79
sOWN = 74
sM0K = 3
sPX, sPL0, sPL1, sSET, sRECL, sSCR = 4, 5, 6, 7, 8, 9
sWOS, sTAB = sXCC, SX
sFLW = sSLOT
sSGN = sSH
sM1, sM2 = SPHI, SPHI + 2
SPIN = ['s_add_u32 s71, s71, 1', 's_cmp_gt_u32 s71, 0x100000', 's_cbranch_scc1 L_end']
vL = 1
vXD, vWD, vWRq, vWRk, vZ = 2, 6, 7, 8, 9
vXR, vXR2 = 10, 14
vDUM, vT = 18, 19
vPH, vID, vC, vST, vN = 20, 28, 36, 37, 38
vK, vV, vP, vE, vKV, vT2 = 40, 72, 104, 136, 200, 232
vTAG, vL16 = 248, 249
vWO0, vWOD = 250, 252
vWDq, vWDv = 253, 251
vTCH, vTCO, vPRE = None, 254, 255
vS16, vOW, vOR, vOG = vT2 + 3, vT2 + 4, vT2 + 8, vT2 + 9
vOF = list(range(20, 28)) + list(range(32, 36)) + [254, 255]
aX, aWR = 0, 224

def v(r, n=1): return 'v%d' % r if n == 1 else 'v[%d:%d]' % (r, r + n - 1)
def a(r, n=1): return 'a%d' % r if n == 1 else 'a[%d:%d]' % (r, r + n - 1)
def s(r, n=1): return 's%d' % r if n == 1 else 's[%d:%d]' % (r, r + n - 1)
MF = 'v_mfma_f32_32x32x16_bf16'
def mfma(d, x, y, c): return '%s %s, %s, %s, %s' % (MF, v(d, 16), x, y, v(c, 16) if c is not None else '0')

class G:
    def __init__(self, cfg):
        self.cfg = c = cfg; self.npc = 0; self.nthr = 0; self.thr_side = []
        self.M = Machine(c.rate, c.cap, c.lat, fifo=c.fifo, lines={'wk': c.wlines, 'wv': c.wlines, 'wq': c.wlines, 'phi': 13, 'touch': 100, 'pre': 128, 'nonce': 4, 'side': 4, 'pref': 4, 'tab': 4, 'rec': 8},
                         miss={'x0': c.cold, 'nonce': 500, 'part': c.pmiss, 'rec': c.pmiss, 'pre': 600, 'touch': 400, 'pst': c.smiss, 'side': 500, 'ost': 250})
        self.M.miss.update(c.miss); self.M.lines.update(c.lines)
    def stamp(self, k):
        if self.cfg.leak == k: return ['@waitlgkm_all', 's_memrealtime s[%d:%d]' % (sT0, sT1), '@waitlgkm_all', 's_sub_u32 s101, %s, s100' % s(sT0)]
        if not self.cfg.stamps or (self.cfg.lite and k not in (11, 13)): return []
        return ['@waitlgkm_all', 's_memtime s[%d:%d]' % (sT0, sT1), 's_memrealtime s[100:101]', '@waitlgkm_all', 'v_writelane_b32 %s, %s, %d' % (v(vST), s(sT0), k),
                'v_writelane_b32 %s, s100, %d' % (v(vST), 16 + k)]
    def sched(self, L, name, **kw): return self.fine(schedule(self.M, L, verbose=name if self.cfg.verbose else False, dslat=self.cfg.dslat, **kw), name)
    def glue(self, L): return self.M.run(L)
    def fine(self, L, name):
        if not self.cfg.fine or not name.startswith(self.cfg.fine): return L
        out = []; n = len(L); lo, hi = [int(f * n) for f in self.cfg.frange]; pos = {lo + (k * (hi - lo)) // 3: k for k in range(4)}
        for i, x in enumerate(L + [None]):
            if i in pos: out.append(('s_memtime s[%d:%d]' % (12 + 2 * pos[i], 13 + 2 * pos[i]), 'nowait'))
            if x is not None: out.append(x)
        T = [self.M.times[i] for i in sorted(pos)]
        sys.stderr.write('model %s: %s\n' % (name, [b - a for a, b in zip(T[:-1], T[1:])]))
        if self.cfg.verbose:
            for i, k in pos.items(): sys.stderr.write('  fine %s %d at %d: %s\n' % (name, k, i, L[i]))
        return out

    def offs(self, i):
        L = ['s_lshl_b32 %s, %s, 7' % (s(sD_), s(sROT)), 's_add_u32 %s, %s, %s' % (s(sXO + i), s(sXB), s(sD_)),
             's_mul_i32 %s, %s, %d' % (s(sD_), s(sROT), 64 * 2688), 's_add_u32 %s, %s, %s' % (s(sD_), s(sWB), s(sD_)), 's_add_u32 %s, %s, %d' % (s(sWO_ + i), s(sD_), 4096 - 1024 * (i & 3))]
        if i < 6: L += ['s_add_u32 %s, %s, 1' % (s(sROT), s(sROT)), 's_cmp_eq_u32 %s, 7' % s(sROT), 's_cselect_b32 %s, 0, %s' % (s(sROT), s(sROT))]
        return L
    def touches(self, pos):
        L = []
        for w in self.cfg.touch.get(pos, ''):
            if w == 'p': L.append(('buffer_load_dword %s, %s, s[%d:%d], %s offen %s' % (v(vDUM), v(vPRE), SWS, SWS + 3, s(sOBX), self.cfg.prefl), 'pre'))
            else: L += self.touch(w)
        return L
    def touch(self, what):
        c = self.cfg
        if what == 'o': return [('buffer_load_dword %s, %s, s[%d:%d], 0 offen %s' % (v(vDUM), v(vTCO), SWO, SWO + 3, c.tfl), 'touch')]
        return [('buffer_load_dword %s, %s, s[%d:%d], 0 offen offset:%d %s' % (v(vDUM), v(vTCH), SW, SW + 3, {'q': 0, 'v': 1792}[what], c.tfl), 'touch')]

    def prologue(self):
        c = self.cfg; L = []; A = L.append
        A('s_load_dwordx16 s[4:19], s[0:1], 0')
        A('s_load_dwordx4 s[20:23], s[0:1], 64')
        if c.prost: L.append(('s_memtime s[96:97]', 'nowait'))
        if c.stamps or c.tfix or c.leak: A('s_memrealtime s[100:101]')
        A('s_cmpk_ge_u32 s2, 0x100'); A('s_cbranch_scc1 L_end')
        if c.delay:
            A('s_and_b32 s30, s2, 7'); A('s_lshr_b32 s30, %d, s30' % c.delay[0]); A('s_bitcmp0_b32 s30, 0'); A('s_cbranch_scc1 L_nodelay')
            A('L_delay:'); A('s_memrealtime s[30:31]'); A('@waitlgkm_all'); A('s_sub_u32 s30, s30, s100'); A('s_cmp_lt_u32 s30, %d' % c.delay[1]); A('s_cbranch_scc1 L_delay')
            A('L_nodelay:')
        t0, t1, t2 = vT2, vT2 + 1, vT2 + 2
        A('v_readfirstlane_b32 %s, v0' % s(sW)); A('v_and_b32 %s, 63, v0' % v(vL))
        A('s_lshr_b32 %s, s2, 3' % s(sSLOT)); A('s_and_b32 %s, %s, 15' % (s(sH), s(sSLOT))); A('s_lshr_b32 %s, %s, 4' % (s(sT2), s(sSLOT)))
        A('s_bitcmp0_b32 s2, 2'); A('s_cselect_b32 %s, L_AOFF, 0' % s(sB_)); A('s_lshl3_add_u32 %s, %s, %s' % (s(sB_), s(sSLOT), s(sB_)))
        A('v_lshrrev_b32 %s, 5, v0' % v(vT)); A('s_getpc_b64 s[%d:%d]' % (sT0, sT1))
        A('v_add_lshl_u32 %s, %s, %s, 7' % (v(vT), v(vT), s(sB_)))
        L.append(('global_load_dword %s, %s, s[%d:%d]' % (v(vDUM), v(vT), sT0, sT1), 'pref'))
        A('s_and_b32 %s, s2, 3' % s(sRB)); A('s_lshl1_add_u32 %s, %s, %s' % (s(sRB), s(sRB), s(sT2))); A('s_lshr_b32 %s, %s, 6' % (s(sW), s(sW)))
        A('s_mul_i32 %s, %s, 3' % (s(sT2), s(sT2))); A('s_add_u32 %s, %s, %s' % (s(sROT), s(sH), s(sT2)))
        A('s_mul_i32 %s, %s, 37' % (s(sB_), s(sROT))); A('s_lshr_b32 %s, %s, 8' % (s(sB_), s(sB_)))
        A('s_mul_i32 %s, %s, 7' % (s(sB_), s(sB_))); A('s_sub_u32 %s, %s, %s' % (s(sROT), s(sROT), s(sB_)))
        A('s_lshl2_add_u32 %s, %s, %s' % (s(sB_), s(sRB), s(sW))); A('s_mul_i32 %s, %s, 57344' % (s(sXB), s(sB_)))
        o0 = self.offs(0); L += o0[:2]
        A('s_lshl_b32 %s, %s, 12' % (s(sM0X), s(sW))); A('s_mov_b32 m0, %s' % s(sM0X))
        A('v_lshrrev_b32 %s, 3, %s' % (v(t0), v(vL))); A('v_mul_u32_u24 %s, 896, %s' % (v(t0), v(t0)))
        A('v_lshrrev_b32 %s, 4, %s' % (v(t1), v(vL))); A('v_and_b32 %s, 7, %s' % (v(t2), v(vL))); A('v_xor_b32 %s, %s, %s' % (v(t2), v(t1), v(t2)))
        A('v_lshl_add_u32 %s, %s, 4, %s' % (v(vXD), v(t2), v(t0))); A('v_xor_b32 %s, 64, %s' % (v(t2), v(vXD)))
        A('v_add_u32 %s, 6144, %s' % (v(vXD + 1), v(t2))); A('v_add_u32 %s, 12288, %s' % (v(vXD + 2), v(vXD))); A('v_add_u32 %s, 18432, %s' % (v(vXD + 3), v(t2)))
        A('s_mov_b32 %s, 1835008' % s(SX + 2)); A('s_mov_b32 %s, 0x20000' % s(SX + 3))
        if c.prost: L.append(('s_memtime s[98:99]', 'nowait'))
        A('s_bitcmp0_b32 s2, 2')
        A('@waitlgkm_all')
        if c.prost: A('v_writelane_b32 %s, s98, 33' % v(vST)); A('v_writelane_b32 %s, s96, 32' % v(vST))
        if c.leak == 13: L += self.stamp(13); A('s_bitcmp0_b32 s2, 2')
        if c.stamps: A('v_writelane_b32 %s, s100, 0' % v(vST)); L += self.stamp(13); A('s_bitcmp0_b32 s2, 2')
        sel = lambda srd, pa, pb: ['s_cselect_b32 %s, %s, %s' % (s(srd + k), s(pa + k), s(pb + k)) for k in range(2)]
        L += sel(SX, sAX, sBX) + self.dma_x(0)[1:]
        if c.prost == 2: L.append(('s_memtime s[98:99]', 'nowait'))
        L += sel(SW, sAW, sBW) + sel(SWO, sAWO, sBWO); A('s_cselect_b32 %s, 0, 25088' % s(SPHI + 2))
        A('s_sub_u32 %s, %s, 4096' % (s(SW), s(SW))); A('s_subb_u32 %s, %s, 0' % (s(SW + 1), s(SW + 1)))
        A('s_mov_b32 %s, %d' % (s(SW + 2), 1204224 + 4096)); A('s_mov_b32 %s, %s' % (s(SW + 3), s(SX + 3)))
        A('v_lshrrev_b32 %s, 2, %s' % (v(t0), v(vL))); A('v_mul_u32_u24 %s, 2688, %s' % (v(t0), v(t0)))
        A('v_and_b32 %s, 3, %s' % (v(t2), v(vL))); A('v_lshl_add_u32 %s, %s, 4, %s' % (v(vWDq), v(t2), v(t0))); A('v_add_u32 %s, 896, %s' % (v(vWD), v(vWDq)))
        A('s_cmp_eq_u32 %s, 15' % s(sH)); A('s_cselect_b32 %s, 8, 0' % s(sSH))
        A('s_mul_i32 %s, %s, 56' % (s(sC_), s(sH))); A('s_sub_u32 %s, %s, %s' % (s(sC_), s(sC_), s(sSH)))
        A('s_mul_i32 %s, %s, %d' % (s(sD_), s(sW), 16 * 2688)); A('s_add_u32 %s, %s, %s' % (s(sWB), s(sC_), s(sD_)))
        A('s_mul_i32 %s, %s, 7168' % (s(sM0K), s(sW)))
        L += o0[2:5] + self.dma_w(0, 1, L_WK, 'wk0')
        if c.prost == 2: L.append(('s_memtime s[4:5]', 'nowait'))
        L += o0[5:] + self.offs(1) + self.dma_w(1, 1, L_WK, 'wk1', False)
        A('s_bfe_u32 %s, s2, 0x10002' % s(sBR)); A('s_lshl_b32 %s, %s, 10' % (s(sM0W), s(sW)))
        for srd, n in ((SWO, 401408), (SWS, WS_BYTES), (SOUT, 3670016)):
            A('s_mov_b32 %s, %d' % (s(srd + 2), n)); A('s_mov_b32 %s, 0x20000' % s(srd + 3))
        A('s_mov_b32 %s, %s' % (s(SPHI), s(sPHI))); A('s_mov_b32 %s, %s' % (s(SPHI + 1), s(sPHI + 1))); A('s_mov_b32 %s, 0x20000' % s(SPHI + 3))
        A('v_lshlrev_b32 %s, 4, %s' % (v(vL16), v(vL)))
        A('s_cmp_ge_u32 %s, 2' % s(sW)); A('s_cselect_b32 %s, 0x%x, %s' % (s(sA), OOB, s(sM0W))); A('v_add_u32 %s, %s, %s' % (v(t0), s(sA), v(vL16)))
        A('s_mul_i32 %s, %s, 1568' % (s(sT2), s(sH))); A('s_add_u32 m0, %s, %d' % (s(sM0W), L_MISC))
        L.append(('buffer_load_dwordx4 %s, s[%d:%d], %s offen lds' % (v(t0), SPHI, SPHI + 3, s(sT2)), 'phi'))
        L += self.dma_x(1)
        if c.prost == 2: L.append(('s_memtime s[6:7]', 'nowait'))
        if c.ws_base: A('s_add_u32 %s, %s, %d' % (s(sWSP), s(sWSP), c.ws_base)); A('s_addc_u32 %s, %s, 0' % (s(sWSP + 1), s(sWSP + 1)))
        for (srd, p) in ((SWS, sWSP), (SOUT, sOUT)):
            A('s_mov_b32 %s, %s' % (s(srd), s(p))); A('s_mov_b32 %s, %s' % (s(srd + 1), s(p + 1)))
        A('v_mov_b32 %s, 0' % v(vZ))
        A('s_or_b32 %s, s2, %s' % (s(sT2), s(sW))); A('s_cmp_eq_u32 %s, 0' % s(sT2)); A('s_cbranch_scc1 L_mknonce')
        A('L_nononce:')
        if c.prost == 2: L += ['@waitlgkm_all', 'v_writelane_b32 %s, s98, 33' % v(vST), 'v_writelane_b32 %s, s4, 34' % v(vST), 'v_writelane_b32 %s, s6, 35' % v(vST)]
        self.glue(L)
        return L

    def setup(self):
        c = self.cfg; L = []; A = L.append
        t0, t1, t2 = vT2, vT2 + 1, vT2 + 2
        A('v_add_u32 %s, 1792, %s' % (v(vWDv), v(vWDq)))
        A('s_mov_b32 %s, 0' % s(sSPIN))
        A('s_getreg_b32 %s, hwreg(HW_REG_XCC_ID, 0, 4)' % s(sXCC))
        m, hi, t3, t4 = vT2 + 3, vT2 + 4, vT2 + 5, vT2 + 6
        A('s_mul_i32 %s, %s, 98' % (s(sA), s(sSLOT))); A('s_mul_i32 %s, %s, 25' % (s(sB_), s(sW))); A('s_add_u32 %s, %s, %s' % (s(sA), s(sA), s(sB_)))
        A('v_min_u32 %s, 24, %s' % (v(t0), v(vL))); A('v_add_u32 %s, %s, %s' % (v(t0), s(sA), v(t0))); A('v_min_u32 %s, 3135, %s' % (v(t0), v(t0)))
        A('v_lshlrev_b32 %s, 7, %s' % (v(vTCO), v(t0)))
        A('v_and_b32 %s, 31, %s' % (v(m), v(vL))); A('v_lshrrev_b32 %s, 5, %s' % (v(hi), v(vL)))
        A('v_bfe_u32 %s, %s, 1, 3' % (v(t1), v(m))); A('v_xor_b32 %s, %s, %s' % (v(t1), v(t1), v(hi)))
        A('v_lshl_add_u32 %s, %s, 7, %s' % (v(t2), v(m), s(sM0X)))
        for ks in range(4):
            A('v_xor_b32 %s, %d, %s' % (v(t3), 2 * ks, v(t1))); A('v_lshl_add_u32 %s, %s, 4, %s' % (v(vXR + ks), v(t3), v(t2)))
            A('v_add_u32 %s, 0x10000, %s' % (v(vXR2 + ks), v(vXR + ks)))
        A('v_bfe_u32 %s, %s, 2, 2' % (v(t1), v(vL))); A('v_lshlrev_b32 %s, 6, %s' % (v(t2), v(t1)))
        A('v_lshl_add_u32 %s, %s, 9, %s' % (v(t2), v(hi), v(t2)))
        A('v_bfe_u32 %s, %s, 4, 1' % (v(t3), v(vL))); A('v_and_b32 %s, 3, %s' % (v(t4), v(vL)))
        A('v_lshlrev_b32 %s, 3, %s' % (v(t4), v(t4))); A('v_lshl_add_u32 %s, %s, 5, %s' % (v(t4), v(t3), v(t4)))
        A('v_add3_u32 %s, %s, %s, %s' % (v(vWRq), v(t2), v(t4), s(sSH)))
        A('v_add_u32 %s, %d, %s' % (v(vWRk), L_WK, v(vWRq)))
        A('v_xor_b32 %s, %s, %s' % (v(t3), s(sW), v(t1))); A('v_lshl_add_u32 %s, %s, 6, %s' % (v(t4), v(t3), v(t4)))
        A('v_lshl_add_u32 %s, %s, 8, %s' % (v(t4), v(t1), v(t4))); A('v_lshrrev_b32 %s, 4, %s' % (v(t3), v(vL))); A('v_lshl_add_u32 %s, %s, 11, %s' % (v(t4), v(t3), v(t4)))
        A('v_add_u32 %s, %d, %s' % (v(vWO0), L_WO, v(t4)))
        A('s_and_b32 %s, %s, 1' % (s(sA), s(sW))); A('s_lshl_b32 %s, %s, 4' % (s(sA), s(sA))); A('v_xor_b32 %s, %s, %s' % (v(t4), s(sA), v(m)))
        A('s_bitcmp1_b32 %s, 1' % s(sW)); A('s_cselect_b32 %s, 0x80008000, 0' % s(sSGN))
        A('v_lshrrev_b32 %s, 3, %s' % (v(t0), v(t4))); A('v_and_b32 %s, 3, %s' % (v(t1), v(t4)))
        A('v_lshl_add_u32 %s, %s, 2, %s' % (v(t0), v(t0), v(t1)))
        A('v_lshrrev_b32 %s, 4, %s' % (v(t1), v(t4))); A('v_sub_u32 %s, %s, %s' % (v(t0), v(t0), v(t1)))
        A('v_bfe_u32 %s, %s, 2, 1' % (v(t1), v(m))); A('v_mad_u32_u24 %s, %s, 14, %s' % (v(t0), v(t1), v(t0)))
        A('v_and_b32 %s, 11, %s' % (v(t1), v(m))); A('v_cmp_eq_u32 vcc, 11, %s' % v(t1))
        A('v_mov_b32 %s, %d' % (v(t2), L_MISC + 2048))
        A('v_mul_u32_u24 %s, 224, %s' % (v(t3), v(hi))); A('v_lshl_add_u32 %s, %s, 1, %s' % (v(t3), v(t0), v(t3))); A('v_add_u32 %s, %d, %s' % (v(t3), L_MISC, v(t3)))
        A('v_cndmask_b32_e64 %s, %s, %s, vcc' % (v(vT2 + 12), v(t3), v(t2)))
        A('v_cndmask_b32_e64 %s, %s, 63, vcc' % (v(vT2 + 11), v(t0)))
        A('v_cmp_lt_u32_e64 s[%d:%d], 31, %s' % (sHI, sHI + 1, v(vL)))
        A('v_cmp_eq_u32_e64 s[%d:%d], 28, %s' % (sE28, sE28 + 1, v(m)))
        A('v_cndmask_b32_e64 %s, %s, %s, s[%d:%d]' % (v(vT2 + 13), v(vT2 + 12), v(t2), sHI, sHI + 1))
        return L

    def help(self):
        c = self.cfg; L = []; A = L.append
        t0, t1, t2 = vT2 + 8, vT2 + 9, vT2 + 10
        nh = 10 if c.help_plain else 16
        if c.help_plain:
            A('s_bfm_b32 %s, %s, 0' % (s(sC_), s(sH))); A('s_and_b32 %s, %s, 0xd5ab' % (s(sC_), s(sC_))); A('s_bcnt1_i32_b32 %s, %s' % (s(sC_), s(sC_)))
        else: A('s_mov_b32 %s, %s' % (s(sC_), s(sH)))
        A('s_mul_i32 %s, %s, %d' % (s(sA), s(sRB), nh)); A('s_add_u32 %s, %s, %s' % (s(sA), s(sA), s(sC_))); A('s_lshl2_add_u32 %s, %s, %s' % (s(sA), s(sA), s(sW)))
        def index(n, last):
            n = -(-(last + 1) // (32 * nh))
            A('s_mul_i32 %s, %s, %d' % (s(sB_), s(sA), n)); A('v_min_u32 %s, %d, %s' % (v(t0), n - 1, v(vL))); A('v_add_u32 %s, %s, %s' % (v(t0), s(sB_), v(t0)))
            A('v_min_u32 %s, %d, %s' % (v(t0), last, v(t0)))
        if 'x' in c.help:
            index(14, 7167)
            A('v_mul_u32_u24 %s, 9363, %s' % (v(t1), v(t0))); A('v_lshrrev_b32 %s, 21, %s' % (v(t1), v(t1))); A('v_add_u32 %s, 1, %s' % (v(t1), v(t1)))
            A('v_mul_u32_u24 %s, 28672, %s' % (v(t1), v(t1))); A('v_lshl_add_u32 %s, %s, 7, %s' % (v(t1), v(t0), v(t1)))
            A('global_load_dword %s, %s, s[%d:%d]' % (v(vDUM), v(t1), sBX, sBX + 1))
        if 'w' in c.help:
            index(13, 6271)
            A('v_mul_u32_u24 %s, 9363, %s' % (v(t1), v(t0))); A('v_lshrrev_b32 %s, 16, %s' % (v(t1), v(t1))); A('v_add_u32 %s, 1, %s' % (v(t1), v(t1))); A('v_lshrrev_b32 %s, 1, %s' % (v(t1), v(t1)))
            A('v_mul_u32_u24 %s, 896, %s' % (v(t1), v(t1))); A('v_lshl_add_u32 %s, %s, 7, %s' % (v(t1), v(t0), v(t1)))
            A('global_load_dword %s, %s, s[%d:%d]' % (v(vDUM), v(t1), sBW, sBW + 1))
        A('s_and_b32 %s, %s, 1' % (s(sB_), s(sRB))); A('s_mul_i32 %s, %s, %d' % (s(sB_), s(sB_), nh)); A('s_add_u32 %s, %s, %s' % (s(sC_), s(sC_), s(sB_))); A('s_lshl2_add_u32 %s, %s, %s' % (s(sC_), s(sC_), s(sW)))
        def index2(n, last):
            n = -(-(last + 1) // (8 * nh))
            A('s_mul_i32 %s, %s, %d' % (s(sB_), s(sC_), n)); A('v_min_u32 %s, %d, %s' % (v(t0), n - 1, v(vL))); A('v_add_u32 %s, %s, %s' % (v(t0), s(sB_), v(t0)))
            A('v_min_u32 %s, %d, %s' % (v(t0), last, v(t0)))
        if 'X' in c.help:
            index2(14, 1791)
            A('s_and_b32 %s, s2, 3' % s(sB_)); A('s_mul_i32 %s, %s, 1792' % (s(sB_), s(sB_))); A('v_add_u32 %s, %s, %s' % (v(t0), s(sB_), v(t0)))
            A('v_mul_u32_u24 %s, 9363, %s' % (v(t1), v(t0))); A('v_lshrrev_b32 %s, 21, %s' % (v(t1), v(t1))); A('v_add_u32 %s, 1, %s' % (v(t1), v(t1)))
            A('v_mul_u32_u24 %s, 28672, %s' % (v(t1), v(t1))); A('v_lshl_add_u32 %s, %s, 7, %s' % (v(t1), v(t0), v(t1)))
            A('global_load_dword %s, %s, s[%d:%d]' % (v(vDUM), v(t1), sAX, sAX + 1))
        if 'W' in c.help:
            index(13, 6271)
            A('v_mul_u32_u24 %s, 9363, %s' % (v(t1), v(t0))); A('v_lshrrev_b32 %s, 16, %s' % (v(t1), v(t1))); A('v_add_u32 %s, 1, %s' % (v(t1), v(t1))); A('v_lshrrev_b32 %s, 1, %s' % (v(t1), v(t1)))
            A('v_mul_u32_u24 %s, 896, %s' % (v(t1), v(t1))); A('v_lshl_add_u32 %s, %s, 7, %s' % (v(t1), v(t0), v(t1)))
            A('global_load_dword %s, %s, s[%d:%d]' % (v(vDUM), v(t1), sAW, sAW + 1))
        if 'p' in c.help:
            index(32, 16383)
            A('v_lshlrev_b32 %s, 7, %s' % (v(t1), v(t0))); A('v_add_u32 %s, %d, %s' % (v(t1), WS_O + (2 << 20), v(t1)))
            A('global_load_dword %s, %s, s[%d:%d]' % (v(vDUM), v(t1), sWSP, sWSP + 1))
        if 'O' in c.help:
            index(7, 3135)
            A('v_lshlrev_b32 %s, 7, %s' % (v(t1), v(t0)))
            A('global_load_dword %s, %s, s[%d:%d]' % (v(vDUM), v(t1), sAWO, sAWO + 1))
        if 'o' in c.help:
            index(7, 3135)
            A('v_lshlrev_b32 %s, 7, %s' % (v(t1), v(t0)))
            A('global_load_dword %s, %s, s[%d:%d]' % (v(vDUM), v(t1), sBWO, sBWO + 1))
        return L
    def mknonce(self):
        L = ['L_mknonce:', '@assume_idle']; A = L.append
        A('s_load_dwordx2 s[%d:%d], s[%d:%d], 0' % (sT0, sT1, sWSP, sWSP + 1))
        A('@waitlgkm_all')
        A('s_add_u32 %s, %s, 0x9e3679b8' % (s(sT0), s(sT0))); A('s_add_u32 %s, %s, 0x85eaca6a' % (s(sT1), s(sT1)))
        for r in (sT0, sT1):
            A('s_or_b32 %s, %s, 0x00010001' % (s(r), s(r))); A('s_and_b32 %s, %s, 0xbfffbfff' % (s(r), s(r)))
        A('v_mov_b32 %s, %s' % (v(vN), s(sT0))); A('v_mov_b32 %s, %s' % (v(vN + 1), s(sT1)))
        A('s_mov_b64 exec, 1')
        A('global_store_dwordx2 %s, %s, s[%d:%d] sc1' % (v(vZ), v(vN, 2), sDBG, sDBG + 1))
        A('global_store_dwordx2 %s, %s, s[%d:%d] sc1' % (v(vZ), v(vN, 2), sWSP, sWSP + 1))
        A('s_mov_b64 exec, -1'); A('s_branch L_nononce')
        return L

    def setup2(self, br):
        m, hi, fp, ofs, ofs2 = vT2 + 3, vT2 + 4, vT2 + 11, vT2 + 12, vT2 + 13
        P0 = []
        for t in range(2):
            for j in range(8):
                d = 16 * t + 8 * (j >> 2) + (j & 3)
                P0.append('ds_read_u16 %s, %s offset:%d' % (v(vP + 8 * t + j), v(ofs2 if (t == 1 and j >= 4) else ofs), d * 56))
        def selector(dst, tgt):
            R = []
            x, y, z = vT2 + 8, vT2 + 9, vT2 + 10
            R.append('v_lshrrev_b32 %s, 3, %s' % (v(x), v(tgt))); R.append('v_bfe_u32 %s, %s, 1, 1' % (v(y), v(tgt)))
            R.append('v_lshl_add_u32 %s, %s, 1, %s' % (v(x), v(x), v(y)))
            R.append('v_and_b32 %s, 1, %s' % (v(y), v(tgt))); R.append('v_lshlrev_b32 %s, 4, %s' % (v(y), v(y)))
            R.append('v_mov_b32 %s, 0x3f80' % v(z)); R.append('v_lshlrev_b32 %s, %s, %s' % (v(z), v(y), v(z)))
            R.append('v_bfe_u32 %s, %s, 2, 1' % (v(y), v(tgt))); R.append('v_cmp_eq_u32 vcc, %s, %s' % (v(y), v(hi)))
            R.append('v_cndmask_b32_e64 %s, 15, %s, vcc' % (v(x), v(x)))
            mk = [sN0, sHI + 0, sPB - 1, sN0]
            for i in range(8):
                r = (sN0, sT0)[i & 1]
                R.append('v_cmp_eq_u32_e64 s[%d:%d], %d, %s' % (r, r + 1, i, v(x)))
                R.append('v_cndmask_b32_e64 %s, 0, %s, s[%d:%d]' % (v(dst + i), v(z), r, r + 1))
            return R
        P1 = selector(vID, m) if br == 'B' else selector(vPH, fp)
        P2 = []
        P2 += ['v_mov_b32 %s, 0x3fb8aa3b' % v(vC),
               'v_bfe_u32 %s, %s, 3, 2' % (v(vT2 + 8), v(vL)), 'v_and_b32 %s, 7, %s' % (v(vPRE), v(vL)), 'v_lshlrev_b32 %s, 7, %s' % (v(vPRE), v(vPRE)), 'v_lshl_add_u32 %s, %s, 14, %s' % (v(vPRE), v(vT2 + 8), v(vPRE)),
               's_lshl_b32 %s, %s, 3' % (s(sGID), s(sBR)), 's_add_u32 %s, %s, %s' % (s(sGID), s(sGID), s(sRB)),
               's_and_b32 %s, %s, 3' % (s(sCB), s(sH)), 's_lshr_b32 %s, %s, 2' % (s(sRQ), s(sH)),
               's_lshl_b32 %s, %s, 4' % (s(sT3), s(sGID)), 's_add_u32 %s, %s, %s' % (s(sPB), s(sT3), s(sH)),
               's_lshl2_add_u32 %s, %s, %s' % (s(sT3), s(sGID), s(sW)), 's_lshl_b32 %s, %s, 6' % (s(sT3), s(sT3)), 's_add_u32 %s, %s, %s' % (s(sT3), s(sT3), s(sH)), 's_lshl_b32 %s, %s, 10' % (s(sOBX), s(sT3)),
               's_add_u32 %s, %s, %d' % (s(sOBX), s(sOBX), WS_O),
               's_and_b32 %s, %s, %d' % (s(sOB1), s(sH), self.cfg.tswap), 's_lshl_b32 %s, %s, 15' % (s(sOB1), s(sOB1)), 's_add_u32 %s, %s, %s' % (s(sOB1), s(sOB1), s(sOBX)),
               's_lshl_b32 %s, %s, 9' % (s(sT3), s(sGID)), 's_add_u32 %s, %s, %d' % (s(sT3), s(sT3), WS_FLAG),
               's_lshl_b32 %s, %s, 7' % (s(sFLW), s(sW)), 's_add_u32 %s, %s, %s' % (s(sFLW), s(sFLW), s(sT3)),
               's_lshl_b32 %s, %s, 7' % (s(sFLG), s(sRQ)), 's_add_u32 %s, %s, %s' % (s(sFLG), s(sFLG), s(sT3))]
        A = P2.append; t0, t1, t2 = vT2 + 8, vT2 + 9, vT2 + 10
        A('v_lshrrev_b32 %s, 4, %s' % (v(t0), v(vL))); A('v_bfe_u32 %s, %s, 2, 2' % (v(t1), v(vL))); A('v_xor_b32 %s, %s, %s' % (v(t1), v(t1), v(t0)))
        A('v_mul_u32_u24 %s, 896, %s' % (v(t0), v(t0))); A('v_lshl_add_u32 %s, %s, 6, %s' % (v(t0), v(t1), v(t0)))
        A('v_and_b32 %s, 3, %s' % (v(t2), v(vL))); A('v_lshl_add_u32 %s, %s, 4, %s' % (v(t0), v(t2), v(t0)))
        A('s_cmp_eq_u32 %s, 3' % s(sCB)); A('s_cselect_b32 %s, 1, 3' % s(sT3))
        A('v_cmp_lt_u32 vcc, %s, %s' % (s(sT3), v(t1))); A('v_mov_b32 %s, 0x%x' % (v(t2), OOB))
        A('v_cndmask_b32_e64 %s, %s, %s, vcc' % (v(vWOD), v(t0), v(t2)))
        A('s_lshl_b32 %s, %s, 3' % (s(sRECA), s(sPB))); A('s_add_u32 %s, %s, %d' % (s(sRECA), s(sRECA), WS_XCC))
        A('v_cmp_eq_u32 vcc, 0, %s' % v(vL)); A('v_and_b32 %s, 1, %s' % (v(t0), v(vL))); A('v_and_b32 %s, 2, %s' % (v(t1), v(vL)))
        A('v_cndmask_b32_e64 %s, %s, 0, vcc' % (v(vT), v(t2)))
        A('v_cmp_ne_u32_e64 s[%d:%d], 0, %s' % (sM1, sM1 + 1, v(t0))); A('v_cmp_ne_u32_e64 s[%d:%d], 0, %s' % (sM2, sM2 + 1, v(t1)))
        A('s_lshl1_add_u32 %s, %s, 1' % (s(sSET), s(sBR))); A('s_and_b32 %s, %s, %s' % (s(sSET), s(sSET), s(sW)))
        A('s_lshl_b32 %s, %s, 4' % (s(sT3), s(sBR))); A('s_add_u32 %s, %s, %s' % (s(sT3), s(sT3), s(sH))); A('s_lshl2_add_u32 %s, %s, %s' % (s(sT3), s(sT3), s(sSET)))
        A('s_lshl_b32 %s, %s, 13' % (s(sT3), s(sT3))); A('s_add_u32 %s, %s, %d' % (s(sPL0), s(sT3), WS_PART)); A('s_add_u32 %s, %s, 4096' % (s(sPL1), s(sPL0)))
        A('s_lshl_b32 %s, %s, 10' % (s(sT3), s(sRB))); A('s_add_u32 %s, %s, %s' % (s(sPX), s(sPL0), s(sT3))); A('s_lshl_b32 %s, %s, 10' % (s(sSET), s(sSET)))
        A('s_and_b32 %s, %s, 0xffffff80' % (s(sRECL), s(sRECA))); A('s_add_u32 %s, %s, %d' % (s(sSCR), s(sM0X), L_SCR))
        return P0, P1, P2

    def dma_x(self, i):
        L = ['s_add_u32 m0, %s, %d' % (s(sM0X), (i % 6) * 16384)]
        if i >= 7: L.append('s_add_u32 %s, %s, 28672' % (s(sXO + i - 7), s(sXO + i - 7)))
        for j in range(2 if self.cfg.fake_n2 else 4):
            L.append(('buffer_load_dwordx4 %s, s[%d:%d], %s offen offset:%d %s lds' % (v(vXD + j), SX, SX + 3, s(sXO + i % 7), 1024 * j, self.cfg.xfl), 'x%d' % i))
        return L
    def dma_w(self, i, part, base, tag, m0=True):
        L = ['s_add_u32 m0, %s, %d' % (s(sM0K), base + (i & 4) * 1024)] if m0 else []
        if self.cfg.fake_n2: L.append(('buffer_load_dwordx4 %s, s[%d:%d], %s offen offset:%d %s lds' % (v((vKV + 30, vV + 30, vKV + 31)[part]), SW, SW + 3, s(sWO_ + i), 1024 * (i & 3), self.cfg.wfl), tag))
        return L + [('buffer_load_dwordx4 %s, s[%d:%d], %s offen offset:%d %s lds' % (v((vWDq, vWD, vWDv)[part]), SW, SW + 3, s(sWO_ + i), 1024 * (i & 3), self.cfg.wfl), tag)]
    def xfrag(self, i, ks, tile): return aX + ((i * 4 + ks) * 2 + tile) * 4
    def wread(self, slot, basev, off):
        r = aWR + 4 * (slot % 8)
        return ['ds_read_b64_tr_b16 %s, %s offset:%d' % (a(r + 2 * u, 2), v(basev), off + 256 * u) for u in range(2)]

    def xiter(self, i, extra=()):
        R = []; A = R.append
        ch, tile, sl = i % 7, i // 7, i % 6
        wk = ' ' + self.cfg.wkbar[i] if i in self.cfg.wkbar else ''
        A('@waitvm x%d' % i + wk)
        if wk: A('s_barrier')
        if i == 0: R += self.stamp(1)
        for ks in range(4):
            R += self.wread(4 * i + ks, vWRk, ch * 1024 + ks * 7168)
            R.append(('ds_read_b128 %s, %s offset:%d' % (a(self.xfrag(ch, ks, tile), 4), v((vXR2 if sl >= 4 else vXR) + ks), (sl & 3) * 16384), 'xr%d' % i))
        D = self.cfg.depth
        if i + D < 14:
            if i + D >= 6: A('@waitlgkm xr%d' % (i + D - 6))
            R += self.dma_x(i + D)
        R += self.touches(i)
        R += extra
        for ks in range(4):
            R.append((mfma(vK + 16 * tile, a(aWR + 4 * ((4 * i + ks) % 8), 4), a(self.xfrag(ch, ks, tile), 4), None if (ch == 0 and ks == 0) else vK + 16 * tile), 'kk'))
        return R
    def part1(self, br):
        B = br == 'B'
        P = self.setup2(br)
        R = []
        for i in range(2, 7): R += self.offs(i)
        W = lambda i: self.dma_w(i, 1, L_WK, 'wk%d' % i)
        su = self.setup() + P[2]
        R = su + self.touches('a') + R if 'a' in self.cfg.touch else R
        X = lambda i: self.dma_x(i) if i < self.cfg.depth else []
        late = {}
        for tok in self.cfg.order0.split():
            if '@' in tok:
                tok, at = tok.split('@'); late.setdefault(int(at), []).extend(W(int(tok[1])))
            else: R += W(int(tok[1])) if tok[0] == 'w' else X(int(tok[1]))
        R += ([] if 'a' in self.cfg.touch else su) + P[1]
        pk = []
        for u in range(8): pk += ['v_lshl_or_b32 %s, %s, 16, %s' % (v(vPH + u), v(vP + 2 * u + 1), v(vP + 2 * u)), 'v_xor_b32 %s, %s, %s' % (v(vPH + u), s(sSGN), v(vPH + u))]
        c = self.cfg
        for part, n, at, base, tg in ((2, c.wv_early, c.wv_at, L_WV, 'wv'),):
            for k in range(n): late.setdefault(at - c.depth, []).extend(self.dma_w(k, part, base, '%s%d' % (tg, k), k in (0, 4)))
        for i in range(7): R += self.xiter(i, late.get(i, []) + (P[0] + pk if (i == 1 and B) else []))
        return self.sched(R, 'part1')

    def gemm(self, acc, basev, off, transposed, first_slot, hooks=None, tiles=(0, 1), lead=False, ks=range(28)):
        L = []; hooks = hooks or {}
        for k in ks:
            L += hooks.get(k, [])
            w = a(aWR + 4 * ((first_slot + k) % 8), 4)
            L += self.wread(first_slot + k, basev, off + (k >> 2) * 1024 + (k & 3) * 7168)
            for tile in tiles:
                x = a(self.xfrag(k // 4, k % 4, tile), 4)
                L.append((mfma(acc + 16 * tile, w if transposed else x, x if transposed else w, None if k == 0 else acc + 16 * tile), 'lead' if (lead and tile == 0) else None))
        return L

    def pack(self, r, n=8): return ['v_cvt_pk_bf16_f32 %s, %s, %s' % (v(r + u), v(r + 2 * u), v(r + 2 * u + 1)) for u in range(n)]
    def zero_hi_pads(self, r): return ['v_cndmask_b32_e64 %s, %s, 0, s[%d:%d]' % (v(r + u), v(r + u), sHI, sHI + 1) for u in (6, 7)]

    def softmax(self, p, ep, en, tmp, pk):
        L = []; A = L.append
        Z, T, S1, S2 = tmp, tmp + 2, tmp + 4, tmp + 6
        VAL = [0, 1, 2, 3, 4, 5, 6, 8, 9, 10, 11, 12, 13, 14]
        if pk:
            for r in (ep + 7, ep + 15, en + 7, en + 15): A('v_mov_b32 %s, 0' % v(r))
        for (d, sg) in ((Z, ''), (T, '-')):
            A('v_max3_f32 %s, %s%s, %s%s, %s%s' % (v(d), sg, v(p), sg, v(p + 1), sg, v(p + 2)))
            A('v_max3_f32 %s, %s%s, %s%s, %s%s' % (v(d + 1), sg, v(p + 8), sg, v(p + 9), sg, v(p + 10)))
            for (x, y) in ((3, 4), (5, 6)): A('v_max3_f32 %s, %s, %s%s, %s%s' % (v(d), v(d), sg, v(p + x), sg, v(p + y)))
            for (x, y) in ((11, 12), (13, 14)): A('v_max3_f32 %s, %s, %s%s, %s%s' % (v(d + 1), v(d + 1), sg, v(p + x), sg, v(p + y)))
            A('v_max_f32 %s, %s, %s' % (v(d), v(d), v(d + 1)))
        A('v_permlane32_swap_b32 %s, %s' % (v(Z), v(T))); A('v_max_f32 %s, %s, %s' % (v(Z), v(Z), v(T)))
        A('v_mul_f32 %s, %s, %s' % (v(Z), v(vC), v(Z))); A('v_mov_b32 %s, %s' % (v(T), v(Z)))
        A('v_permlane32_swap_b32 %s, %s' % (v(Z), v(T)))
        for (e, z, ng) in ((ep, Z, 0), (en, T, 1)):
            for u in VAL:
                if pk and u not in (6, 14):
                    if u & 1 == 0: A('v_pk_fma_f32 %s, %s, %s, %s op_sel_hi:[1,0,0] neg_lo:[%d,0,1] neg_hi:[%d,0,1]' % (v(e + u, 2), v(p + u, 2), v(vC, 2), v(z, 2), ng, ng))
                else: A('v_fma_f32 %s, %s%s, %s, -%s' % (v(e + u), '-' if ng else '', v(p + u), v(vC), v(z)))
                A('v_exp_f32 %s, %s' % (v(e + u), v(e + u)))
        for (e, S, z) in ((ep, S1, Z), (en, S2, T)):
            if pk:
                A('v_pk_add_f32 %s, %s, %s' % (v(S, 2), v(e, 2), v(e + 2, 2)))
                for u in (4, 6, 8, 10, 12, 14): A('v_pk_add_f32 %s, %s, %s' % (v(S, 2), v(S, 2), v(e + u, 2)))
            else:
                A('v_add_f32 %s, %s, %s' % (v(S), v(e), v(e + 1))); A('v_add_f32 %s, %s, %s' % (v(S + 1), v(e + 8), v(e + 9)))
                for u in range(2, 7):
                    A('v_add_f32 %s, %s, %s' % (v(S), v(S), v(e + u))); A('v_add_f32 %s, %s, %s' % (v(S + 1), v(S + 1), v(e + 8 + u)))
            A('v_add_f32 %s, %s, %s' % (v(S), v(S), v(S + 1)))
        A('v_permlane32_swap_b32 %s, %s' % (v(S1), v(S2))); A('v_add_f32 %s, %s, %s' % (v(S1), v(S1), v(S2)))
        A('v_rcp_f32 %s, %s' % (v(S1), v(S1))); A('v_mov_b32 %s, %s' % (v(S2), v(S1)))
        A('v_permlane32_swap_b32 %s, %s' % (v(S1), v(S2)))
        for (e, z) in ((ep, S1), (en, S2)):
            for u in range(8):
                if pk: A('v_pk_mul_f32 %s, %s, %s op_sel_hi:[1,0]' % (v(e + 2 * u, 2), v(e + 2 * u, 2), v(z, 2)))
                else:
                    for k in range(1 if u in (3, 7) else 2): A('v_mul_f32 %s, %s, %s' % (v(e + 2 * u + k), v(e + 2 * u + k), v(z)))
                A('v_cvt_pk_bf16_f32 %s, %s, %s' % (v(e + u), v(e + 2 * u), '0' if (u in (3, 7) and not pk) else v(e + 2 * u + 1)))
        return L

    def elu1(self, p, e, pads, pk):
        L = []; A = L.append
        for u in range(0, 16, 2):
            n = 1 if (pads and u in (6, 14)) else 2
            if pk and n == 2: A('v_pk_mul_f32 %s, %s, %s op_sel_hi:[1,0]' % (v(e + u, 2), v(p + u, 2), v(vC, 2)))
            for k in range(n):
                if not (pk and n == 2): A('v_mul_f32 %s, %s, %s' % (v(e + u + k), v(vC), v(p + u + k)))
                A('v_exp_f32_e64 %s, %s clamp' % (v(e + u + k), v(e + u + k)))
                A('v_max_f32 %s, 0x358637bd, %s' % (v(p + u + k), v(p + u + k)))
                if not (pk and n == 2): A('v_add_f32 %s, %s, %s' % (v(e + u + k), v(e + u + k), v(p + u + k)))
            if pk and n == 2: A('v_pk_add_f32 %s, %s, %s' % (v(e + u, 2), v(e + u, 2), v(p + u, 2)))
            A('v_cvt_pk_bf16_f32 %s, %s, %s' % (v(e + u // 2), v(e + u), v(e + u + 1) if n == 2 else '0'))
        return L

    def nonce_load(self): return [('global_load_dwordx2 %s, %s, s[%d:%d] sc1' % (v(vN, 2), v(vZ), sDBG, sDBG + 1), 'nonce')]
    def use_nonce(self, br):
        L = []; A = L.append
        t0, t1 = vXR2, vXR2 + 1
        A('v_readfirstlane_b32 %s, %s' % (s(sN0), v(vN))); A('v_readfirstlane_b32 %s, %s' % (s(sN1), v(vN + 1)))
        A('v_cndmask_b32_e64 %s, %s, %s, s[%d:%d]' % (v(t0), v(vN), v(vN + 1), sM2, sM2 + 1))
        A('v_lshlrev_b32 %s, 16, %s' % (v(t1), v(t0))); A('v_and_b32 %s, 0xffff0000, %s' % (v(t0), v(t0)))
        A('v_cndmask_b32_e64 %s, %s, %s, s[%d:%d]' % (v(vTAG), v(t1), v(t0), sM1, sM1 + 1))
        if br == 'A': A('v_and_b32 %s, %s, %s' % (v(vTAG), s(sXB), v(vTAG)))
        A('s_and_b32 %s, %s, 0xfffffff0' % (s(sROT), s(sN1))); A('s_or_b32 %s, %s, %s' % (s(sREC), s(sXCC), s(sROT)))
        A('v_mov_b32 %s, %s' % (v(vN + 1), s(sREC)))
        L.append(('buffer_store_dwordx2 %s, %s, s[%d:%d], %s offen sc1' % (v(vN, 2), v(vT), SWS, SWS + 3, s(sRECA)), 'side'))
        return L
    def nonce_chk(self, br):
        return ['L_nonce_chk%s:' % br, 's_min_u32 %s, %s, %s' % (s(sT2), s(sN0), s(sN1)), 's_cmp_eq_u32 %s, 0' % s(sT2), 's_cbranch_scc1 L_nonce_retry%s' % br]
    def nonce_retry(self, br):
        return ['L_nonce_retry%s:' % br, '@assume_idle', 's_sleep 1'] + SPIN + self.nonce_load() + self.use_nonce(br) + ['s_branch L_nonce_chk%s' % br]
    def side_loads(self):
        c = self.cfg
        L = []
        L += self.touches('p2')
        if not any('p' in x for x in c.touch.values()): L.append(('buffer_load_dword %s, %s, s[%d:%d], %s offen %s' % (v(vDUM), v(vPRE), SWS, SWS + 3, s(sOBX), c.prefl), 'pre'))
        L += [('buffer_load_dword %s, %s, s[%d:%d], %s offen %s' % (v(vDUM), v(vZ), SWS, SWS + 3, s(sFLW), c.prefl), 'side')]
        return L

    def middle(self, br):
        c = self.cfg; B = br == 'B'; NT = 2 if B else 1
        L = []; A = L.append
        R = []; A = R.append
        if not B:
            A('s_cmp_ge_u32 %s, 2' % s(sW)); A('s_cselect_b32 %s, 0, -1' % s(sXB))
        tn = lambda tile, sg: (vP if sg == 0 else vK) + 16 * tile
        def featk(tile):
            X = self.pack(vK + 16 * tile) + self.zero_hi_pads(vK + 16 * tile)
            for t in range(2):
                k4 = v(vK + 16 * tile + 4 * t, 4); w4 = v(vPH + 4 * t, 4)
                X.append((mfma(vP + 16 * tile, w4 if B else k4, k4 if B else w4, None if t == 0 else vP + 16 * tile), 'hi'))
            X += self.softmax(vP + 16 * tile, vE + 32 * tile, vE + 32 * tile + 16, vT2 + 8 * tile, False) if B else self.elu1(vP + 16 * tile, vE + 32 * tile, False, False)
            if B:
                for sg in range(2):
                    for t in range(2):
                        X.append((mfma(tn(tile, sg), v(vE + 32 * tile + 16 * sg + 4 * t, 4), v(vID + 4 * t, 4), None if t == 0 else tn(tile, sg)), 'hi2' if tile else 'hi3'))
                    X += self.pack(tn(tile, sg))
            return X
        wv = []
        for k in range(c.wv_early, 7): wv += self.dma_w(k, 2, L_WV, 'wv%d' % k, k in (c.wv_early, 4))
        R += featk(0)
        for i in range(7, 14):
            R += self.xiter(i, wv if i == max(7, 13 - c.depth) else ())
            if i - 7 < c.wv_early:
                R += self.gemm(vV, vWRk, L_WV - L_WK, False, 4, {0: ['@waitvm wv%d' % (c.wv_early - 1), 's_barrier']}, ks=range(4 * (i - 7), 4 * (i - 6)))
        if c.stamps and not c.lite: R.append(('s_memtime s[%d:%d]' % (SX + 2, SX + 3), 'nowait'))
        R += featk(1)
        wq = self.nonce_load()
        for k in range(c.wq_pre): wq += self.dma_w(k, 0, L_WQ, 'wq%d' % k, k in (0, 4))
        wq += ([] if c.pre_q else self.side_loads()) + self.use_nonce(br)
        hooks = {}; k0 = c.wv_early
        for k1 in c.wv_bar:
            hooks[4 * k0] = (['@waitlgkm xr13'] if k0 == c.wv_early else []) + ['@waitvm wv%d' % (k1 - 1), 's_barrier'] + (wq if k0 == max(c.wq_at, c.wv_early) else []); k0 = k1
        R += self.gemm(vV, vWRk, L_WV - L_WK, False, 0, hooks, lead=True, ks=range(4 * c.wv_early, 28))
        A('v_mov_b32 %s, 0x3f803f80' % v(vXR2 + 3))
        for tile in range(2):
            R += self.pack(vV + 16 * tile)
            for u in range(8): A('v_cndmask_b32_e64 %s, %s, %s, s[%d:%d]' % (v(vV + 16 * tile + u), v(vV + 16 * tile + u), v(vXR2 + 3), sE28, sE28 + 1))
        for tile in range(2):
            for sg in reversed(range(NT)):
                src = tn(tile, sg) if B else vE + 32 * tile
                for t in range(2):
                    A(mfma(vKV + 16 * sg, v(src + 4 * t, 4), v(vV + 16 * tile + 4 * t, 4), None if (tile == 0 and t == 0) else vKV + 16 * sg))
        t0, t1, t2 = vXR, vXR + 1, vXR2 + 2
        A('v_add_u32 %s, %s, %s' % (v(t0), s(sSCR), v(vL16)))
        for q in ((4, 5, 6, 7, 2, 3) if B else range(4)): A('ds_write_b128 %s, %s offset:%d' % (v(t0), v(vKV + 4 * q, 4), 16384 * (q >> 2) + 1024 * (q & 3)))
        for d in range(1, 4): A('v_xor_b32 %s, %d, %s' % (v(t0 + d), 4096 * d, v(t0)))
        if not B:
            A('s_cmp_ge_u32 %s, 2' % s(sW)); A('s_cselect_b32 %s, 0x%x, 0' % (s(sA), OOB)); A('v_add_u32 %s, %s, %s' % (v(t2), s(sA), v(vL16)))
        A('v_mov_b32 %s, 0xffff' % v(vXD))
        if c.thr: L += ['s_lshr_b32 %s, 0x2a54, %s' % (s(sT2), s(sH)), 's_bitcmp0_b32 %s, 0' % s(sT2), 's_cselect_b64 vcc, -1, 0']
        L += self.throttle(self.sched(R, 'phase2' + br, boost={'hi': 9000, 'kk': 12000, 'lead': 5000, 'hi2': c.hi2, 'hi3': c.hi2 + c.t0boost}, tight=c.p2_tight), br)
        if c.stamps and not c.lite: L += ['@waitlgkm_all', 'v_writelane_b32 %s, %s, 2' % (v(vST), s(SX + 2))]
        L += self.stamp(3)
        g0 = len(L)
        L += ['s_getpc_b64 s[%d:%d]' % (sTAB, sTAB + 1), 'L_pc%s:' % br, 's_add_u32 %s, %s, L_tab - L_pc%s' % (s(sTAB), s(sTAB), br), 's_addc_u32 %s, %s, 0' % (s(sTAB + 1), s(sTAB + 1))]
        L += self.nonce_chk(br)
        mg = c.merge_q
        X = []; A = X.append
        A('@waitlgkm_all')
        if mg: A('@waitvm wq%d' % (mg - 1))
        A('s_barrier')
        L += X; self.glue(L[g0:]); X = []; A = X.append
        for d in range(1, 4):
            for hf in range(2): X.append(('ds_read_b128 %s, %s offset:%d' % (v(vV + 8 * d + 4 * hf, 4), v(t0 + d), (16384 * (d >> 1) if B else 0) + 2048 * (d & 1) + 1024 * hf), 'exr'))
        for d in range(1, 4):
            if mg:
                for u in range(7): A('v_add_f32 %s, %s, %s' % (v(vKV + u), v(vKV + u), v(vV + 8 * d + u)))
            else:
                for u in range(0, 8, 2): A('v_pk_add_f32 %s, %s, %s' % (v(vKV + u, 2), v(vKV + u, 2), v(vV + 8 * d + u, 2)))
        X += self.pack(vKV, 4)
        A('v_bfi_b32 %s, %s, %s, %s' % (v(vKV + 3), v(vXD), v(vKV + 3), v(vTAG)))
        X.append(('buffer_store_dwordx4 %s, %s, s[%d:%d], %s offen sc1' % (v(vKV, 4), v(vL16 if B else t2), SWS, SWS + 3, s(sPX)), 'pst'))
        tm = c.q_tm and B
        X2 = ['@waitlgkm exr', '@waitvm wq6', 's_barrier']
        if mg: R = X + self.gemm(vK, vWRq, L_WQ, True, 4, tiles=(0,) if tm else (0, 1), ks=range(4 * mg)) + X2
        else:
            L += self.glue(X + self.stamp(4) + X2); R = []
        A = R.append
        t0, t1, t2 = vXR, vXR + 1, vXR + 2
        A('v_add_u32 %s, 2560, %s' % (v(vXD + 1), v(vWOD))); A('v_xor_b32 %s, 32, %s' % (v(vXD + 3), v(vWOD)))
        A('v_add_u32 %s, 5120, %s' % (v(vXD + 2), v(vXD + 3))); A('v_add_u32 %s, 7680, %s' % (v(vXD + 3), v(vXD + 3)))
        A('s_mul_i32 %s, %s, 14336' % (s(sWOS), s(sW))); A('s_lshl_b32 %s, %s, 8' % (s(sA), s(sCB))); A('s_add_u32 %s, %s, %s' % (s(sWOS), s(sWOS), s(sA)))
        A('v_and_b32 %s, 15, %s' % (v(vXR + 3), v(vL))); A('v_lshlrev_b32 %s, 3, %s' % (v(vXR + 3), v(vXR + 3)))
        A('v_lshrrev_b32 %s, 4, %s' % (v(t1), v(vL))); A('v_lshlrev_b32 %s, 1, %s' % (v(t0), v(vXR + 3))); A('v_lshl_add_u32 %s, %s, 10, %s' % (v(t2), v(t1), v(t0)))
        A('s_add_u32 %s, %s, %d' % (s(sB_), s(sSET if B else sM0W), L_MISC))
        A('v_lshl_add_u32 %s, %s, 3, %s' % (v(vXR2 + 3), v(t1), v(t0))); A('v_add_u32 %s, %s, %s' % (v(t0), s(sB_), v(vXR2 + 3))); A('v_add_u32 %s, %d, %s' % (v(vXR2 + 3), L_MISC + 4096, v(vXR2 + 3)))
        A('v_cndmask_b32_e64 %s, %s, %s, s[%d:%d]' % (v(vXR2 + 3), v(t0), v(vXR2 + 3), sHI, sHI + 1))
        if B: A('v_mov_b32 %s, %s' % (v(t0), v(t2)))
        else: A('v_sub_u32 %s, %s, %s' % (v(t0), v(vXR2 + 2), v(vL16))); A('v_add_u32 %s, %s, %s' % (v(t0), v(t0), v(t2)))
        A('v_and_b32 %s, 1, %s' % (v(t1), v(vL))); A('v_lshlrev_b32 %s, 4, %s' % (v(t1), v(t1))); A('v_mov_b32 %s, 0x3f80' % v(t2)); A('v_lshlrev_b32 %s, %s, %s' % (v(t2), v(t1), v(t2)))
        A('v_and_b32 %s, 15, %s' % (v(t1), v(vL))); A('v_cmp_eq_u32 vcc, 7, %s' % v(t1)); A('v_cndmask_b32_e64 %s, %s, 0, vcc' % (v(t2), v(t2))); A('v_lshrrev_b32 %s, 1, %s' % (v(t1), v(t1)))
        for i in range(4):
            r = (sT0, sFAR)[i & 1]
            A('v_cmp_eq_u32_e64 s[%d:%d], %d, %s' % (r, r + 1, i, v(t1))); A('v_cndmask_b32_e64 %s, 0, %s, s[%d:%d]' % (v(vID + i), v(t2), r, r + 1))
        wo_block = self.wo_block
        if c.pre_q: R += self.side_loads()
        for m in range(c.wo_before): R += wo_block(m)
        npart = len(R); R += self.part_loads(br)
        for m in range(c.wo_before, c.wo_mid): R += wo_block(m)
        tabs = self.table_loads()
        if not tm: R += self.gemm(vK, vWRq, L_WQ, True, 4, ks=range(4 * mg, 28))
        for tile in range(2):
            if tm: R += self.gemm(vK, vWRq, L_WQ, True, 4 + 28 * tile, tiles=(tile,), ks=range(0 if tile else 4 * mg, 28))
            R += self.pack(vK + 16 * tile) + self.zero_hi_pads(vK + 16 * tile)
            for t in range(2):
                R.append((mfma(vP + 16 * tile, v(vPH + 4 * t, 4), v(vK + 16 * tile + 4 * t, 4), None if t == 0 else vP + 16 * tile), 'hi' if tile == 0 else None))
        for tile in range(2):
            pk = not (tm and tile == 0)
            R += self.softmax(vP + 16 * tile, vE + 32 * tile, vE + 32 * tile + 16, vT2 + 8 * tile, pk) if B else self.elu1(vP + 16 * tile, vE + 32 * tile, True, True)
        vIM = [vWD, vWDq, vXR2 + 2, vWRq]
        R += ['s_add_u32 %s, %s, %d' % (s(sB_), s(sSET), L_MISC), 'v_add_u32 %s, %s, %s' % (v(vIM[0]), s(sB_), v(vL16))]
        for q in range(1, 2 * NT): R.append('v_xor_b32 %s, %d, %s' % (v(vIM[q]), 1024 * q, v(vIM[0])))
        if c.tab_late: late0 = tabs; tabs = []
        else: late0 = []
        L += self.sched(R + tabs, 'q' + br, release={npart: (c.rel_part if B else c.rel_partA) + (330 if mg else 0)}, boost={'hi': 4000, 'pst': 30000, 'exr': 40000}, tight=c.q_tight)
        L += self.stamp(6)
        A = L.append
        A('@waitvm part'); self.glue(L[-1:])
        L += self.stamp(5)
        A('L_part_chk%s:' % br)
        R = []; A = R.append
        G0 = vKV
        for p in range(8): A('v_mfma_f32_16x16x32_bf16 %s, %s, %s, %s' % (v(vV + 4 * (p & 3), 4), v(vID, 4), v(G0 + 4 * p, 4), v(vV + 4 * (p & 3), 4) if p >= 4 else '0'))
        x, z, y = vT2, vT2 + 1, vT2 + 12
        A('v_max3_u32 %s, %s, %s, %s' % (v(x), v(G0 + 3), v(G0 + 7), v(G0 + 11))); A('v_min3_u32 %s, %s, %s, %s' % (v(y), v(G0 + 3), v(G0 + 7), v(G0 + 11)))
        A('v_max3_u32 %s, %s, %s, %s' % (v(x), v(x), v(G0 + 15), v(G0 + 19))); A('v_min3_u32 %s, %s, %s, %s' % (v(y), v(y), v(G0 + 15), v(G0 + 19)))
        A('v_max3_u32 %s, %s, %s, %s' % (v(x), v(x), v(G0 + 23), v(G0 + 27))); A('v_min3_u32 %s, %s, %s, %s' % (v(y), v(y), v(G0 + 23), v(G0 + 27)))
        A('v_max_u32 %s, %s, %s' % (v(x), v(x), v(G0 + 31))); A('v_min_u32 %s, %s, %s' % (v(y), v(y), v(G0 + 31)))
        A('v_xor_b32 %s, %s, %s' % (v(x), v(x), v(vTAG))); A('v_xor_b32 %s, %s, %s' % (v(y), v(y), v(vTAG)))
        A('v_or_b32 %s, %s, %s' % (v(x), v(x), v(y))); A('v_lshrrev_b32 %s, 16, %s' % (v(x), v(x)))
        A('v_xor_b32 %s, %s, %s' % (v(y), s(sN0), v(vN))); A('v_xor_b32 %s, %s, %s' % (v(z), s(sREC), v(vN + 1)))
        A('v_cmp_ne_u32_e64 s[%d:%d], 0, %s' % (sFAR, sFAR + 1, v(z)))
        A('v_lshrrev_b32 %s, 4, %s' % (v(z), v(z))); A('v_or3_b32 %s, %s, %s, %s' % (v(x), v(x), v(y), v(z)))
        A('v_cmp_ne_u32 vcc, 0, %s' % v(x))
        L += self.sched(R, 'sum' + br)
        A = L.append
        A('s_cbranch_vccnz L_part_retry%s' % br)
        late = list(late0)
        for m in range(c.wo_mid, c.wo_imp): late += wo_block(m)
        nl = c.late0
        L += late[:nl]
        for q in range(4): L += self.pack(vV + 4 * q, 2)
        for q in range(4): A('ds_write_b64 %s, %s offset:%d' % (v(vXR2 + 3), v(vV + 4 * q, 2), 256 * q))
        A('@waitlgkm_all'); A('s_barrier')
        self.glue(L[-nl - 15:])
        R = []; A = R.append
        R += late[nl:]
        early = self.wo_reads()[:3 + 8 * c.wo_early]
        for q in range(2 * NT): A('ds_read_b128 %s, %s' % (v(vV + 16 + 4 * q, 4), v(vIM[q])))
        for tile in range(2):
            for q in range(2 * NT):
                A(mfma(vP + 16 * tile, v(vV + 16 + 4 * q, 4), v(vE + 32 * tile + 16 * (q >> 1) + 4 * (q & 1), 4), None if q == 0 else vP + 16 * tile))
        for tile in range(2):
            P = vP + 16 * tile; d = vT2 + 4 + 4 * tile
            A('v_mov_b32 %s, %s' % (v(d), v(P + 12))); A('v_permlane32_swap_b32 %s, %s' % (v(P + 12), v(d)))
            A('v_add_f32 %s, 0x358637bd, %s' % (v(d), v(d))); A('v_rcp_f32 %s, %s' % (v(d), v(d)))
            for u in range(8):
                if tile: A('v_pk_mul_f32 %s, %s, %s op_sel_hi:[1,0]' % (v(P + 2 * u, 2), v(P + 2 * u, 2), v(d, 2)))
                else:
                    for k in range(2): A('v_mul_f32 %s, %s, %s' % (v(P + 2 * u + k), v(P + 2 * u + k), v(d)))
                A('v_cvt_pk_bf16_f32 %s, %s, %s' % (v(P + u), v(P + 2 * u), v(P + 2 * u + 1)))
        A('v_mov_b32 %s, %s' % (v(vN), s(sN0))); A('v_mov_b32 %s, %s' % (v(vN + 1), s(sN1)))
        A('s_lshl_b32 %s, %s, 3' % (s(sT2), s(sH))); A('s_add_u32 %s, %s, %s' % (s(sC_), s(sFLW), s(sT2))); A('s_xor_b32 %s, %s, 32768' % (s(sOBX), s(sOB1))); A('s_add_u32 %s, %s, 16384' % (s(sA), s(sOB1))); A('s_add_u32 %s, %s, 16384' % (s(sB_), s(sOBX)))
        L += self.sched(R + early, 'o' + br, lowds={id(x) for x in early}, vmlow=True)
        L += self.stamp(7)
        A = L.append
        if c.force_global: A('s_branch L_far')
        A('s_cmp_lg_u64 s[%d:%d], 0' % (sFAR, sFAR + 1)); A('s_cbranch_scc1 L_far')
        return L
    def publish(self, fl):
        c = self.cfg; L = []
        for tile in range(2):
            for t in range(2):
                L.append(('buffer_store_dwordx4 %s, %s, s[%d:%d], %s offen %s' % (v(vP + 16 * tile + 4 * t, 4), v(vL16), SWS, SWS + 3, s(((sOB1, sA), (sOBX, sB_))[tile][t]), fl), 'ost'))
        for m in range(c.wo_imp, 7 - c.wo_g3): L += self.wo_block(m)
        L += self.p3_setup()
        L = self.sched(L, 'pub')
        L += ['@waitvm ost']
        L.append('buffer_store_dwordx2 %s, %s, s[%d:%d], %s offen %s' % (v(vN, 2), v(vT), SWS, SWS + 3, s(sC_), fl))
        return L
    def wo_block(self, m, tag='wo'):
        X = ['s_add_u32 m0, %s, %d' % (s(sM0X), L_WO + 16384 * m)]
        if m: X.append('s_add_u32 %s, %s, %d' % (s(sWOS), s(sWOS), 57344))
        return X + [('buffer_load_dwordx4 %s, s[%d:%d], %s offen offset:%d %s lds' % (v(vXD + j if j else vWOD), SWO, SWO + 3, s(sWOS), 1024 * j, self.cfg.wofl), tag) for j in range(4)]
    def part_loads(self, br):
        L = [('buffer_load_dwordx2 %s, %s, s[%d:%d], %s offen sc1' % (v(vN, 2), v(vXR + 3), SWS, SWS + 3, s(sRECL)), 'rec')]
        for p in range(8):
            L.append(('buffer_load_dwordx4 %s, %s, s[%d:%d], %s offen offset:%d sc1' % (v(vKV + 4 * p, 4), v(vXR), SWS, SWS + 3, s(sPL1 if p >= 4 else sPL0), 256 * (p & 3)), 'part'))
        return L
    def part_retry(self, br):
        P = self.part_loads(br)
        L = ['L_part_retry%s:' % br, '@assume_idle', '@waitvm_all'] + SPIN + [P[0]]
        for p in range(8):
            L += ['v_xor_b32 %s, %s, %s' % (v(vT2), v(vKV + 4 * p + 3), v(vTAG)), 'v_cmp_lt_u32 vcc, 0xffff, %s' % v(vT2), 's_cbranch_vccz L_got%s%d' % (br, p), (P[1 + p][0], 'untracked'), 'L_got%s%d:' % (br, p)]
        return L + ['@waitvm_all', 's_branch L_part_chk%s' % br]
    def far(self):
        return ['L_far:', '@assume_idle', '@waitvm_all', 's_nop 4'] + self.publish('sc1') + ['s_branch L_join']
    def wo_reads(self):
        b = [vWO0, vWO0 + 1, vXR2, vXR2 + 1]
        L = ['v_xor_b32 %s, 32, %s' % (v(b[1]), v(b[0])), 'v_add_u32 %s, 0x10000, %s' % (v(b[2]), v(b[0])), 'v_add_u32 %s, 0x10000, %s' % (v(b[3]), v(b[1]))]
        for k in range(14):
            for nt in range(2):
                for i in range(2):
                    off = (32 * k + 4 * i) * 256
                    L.append('ds_read_b64_tr_b16 %s, %s offset:%d' % (a(8 * k + 4 * nt + 2 * i, 2), v(b[nt + 2 * (off >> 16)]), off & 0xffff))
        return L

    def p3_setup(self):
        L = []; A = L.append
        A('s_lshl_b32 %s, %s, 2' % (s(sT2), s(sRB))); A('s_add_u32 %s, %s, %s' % (s(sT2), s(sT2), s(sRQ))); A('s_mul_i32 %s, %s, %d' % (s(sD_), s(sT2), 64 * 1792))
        A('s_mul_i32 %s, %s, 896' % (s(sT2), s(sBR))); A('s_add_u32 %s, %s, %s' % (s(sD_), s(sD_), s(sT2)))
        A('s_lshl_b32 %s, %s, 2' % (s(sT2), s(sCB))); A('s_add_u32 %s, %s, %s' % (s(sT2), s(sT2), s(sW)))
        A('s_cmp_ge_u32 %s, 14' % s(sT2)); A('s_cselect_b32 %s, 0x%x, 0' % (s(sA), OOB))
        A('s_lshl_b32 %s, %s, 6' % (s(sT2), s(sT2))); A('s_add_u32 %s, %s, %s' % (s(sXO), s(sD_), s(sT2)))
        for b in range(1, 4): A('s_add_u32 %s, %s, %d' % (s(sXO + b), s(sXO), b * 16 * 1792))
        t0, t1, t2 = vT2 + 10, vT2 + 11, vT2 + 12
        A('s_lshl_b32 %s, %s, 12' % (s(sB_), s(sW))); A('s_add_u32 %s, %s, %d' % (s(sB_), s(sB_), L_OT))
        A('v_and_b32 %s, 15, %s' % (v(t0), v(vL))); A('v_lshlrev_b32 %s, 4, %s' % (v(vS16), v(t0))); A('v_lshl_add_u32 %s, %s, 6, %s' % (v(t0), v(t0), s(sB_)))
        A('v_bfe_u32 %s, %s, 4, 1' % (v(t1), v(vL))); A('v_lshl_add_u32 %s, %s, 3, %s' % (v(t0), v(t1), v(t0)))
        A('v_bfe_u32 %s, %s, 1, 2' % (v(t1), v(vL))); A('v_lshrrev_b32 %s, 5, %s' % (v(t2), v(vL))); A('v_xor_b32 %s, %s, %s' % (v(t1), v(t1), v(t2)))
        A('v_lshl_add_u32 %s, %s, 4, %s' % (v(vOW), v(t1), v(t0))); A('v_xor_b32 %s, 32, %s' % (v(vOW + 1), v(vOW)))
        A('v_bfe_u32 %s, %s, 3, 2' % (v(t1), v(vL))); A('v_xor_b32 %s, %s, %s' % (v(t1), v(t1), v(vL))); A('v_and_b32 %s, 3, %s' % (v(t1), v(t1)))
        A('v_lshrrev_b32 %s, 2, %s' % (v(t0), v(vL))); A('v_lshl_add_u32 %s, %s, 6, %s' % (v(t2), v(t0), s(sB_))); A('v_lshl_add_u32 %s, %s, 4, %s' % (v(vOR), v(t1), v(t2)))
        A('v_mul_u32_u24 %s, 1792, %s' % (v(t0), v(t0))); A('v_and_b32 %s, 3, %s' % (v(t1), v(vL))); A('v_lshl_add_u32 %s, %s, 4, %s' % (v(t0), v(t1), v(t0)))
        A('v_add_u32 %s, %s, %s' % (v(vOG), s(sA), v(t0)))
        A('v_and_b32 %s, 15, %s' % (v(t0), v(vL))); A('v_cmp_eq_u32_e64 s[%d:%d], %s, %s' % (sOWN, sOWN + 1, s(sH), v(t0)))
        for r in vOF: A('v_add_u32 %s, %s, %s' % (v(r), v(r), v(vS16)))
        A('s_lshl2_add_u32 %s, %s, %s' % (s(sT2), s(sGID), s(sRQ))); A('s_lshl2_add_u32 %s, %s, %s' % (s(sT2), s(sT2), s(sW)))
        A('s_lshl_b32 %s, %s, 14' % (s(sT2), s(sT2))); A('s_add_u32 %s, %s, %d' % (s(sD_), s(sT2), WS_O))
        A('s_lshl_b32 %s, %s, 14' % (s(sWOM), s(sW))); A('s_mov_b32 m0, %s' % s(sWOM))
        return L
    def table_loads(self):
        L = ['v_and_b32 %s, 0x300, %s' % (v(vWRk), v(vL16)), 'v_lshrrev_b32 %s, 2, %s' % (v(vWRk), v(vWRk))]
        for q in range(4): L.append(('global_load_dwordx%d %s, %s, s[%d:%d] offset:%d' % (4 if q < 3 else 2, v(vOF[4 * q], 4 if q < 3 else 2), v(vWRk), sTAB, sTAB + 1, 16 * q), 'tab'))
        return L
    def table(self, pad):
        T = []
        for g in range(4):
            for r in range(16):
                h, u = divmod(8 * (r >> 1) + 2 * g + (r & 1), 7)
                T.append(h * 1024 + (u >> 2) * 16384 + (u & 1) * 512 + ((u >> 1) & 1) * 8)
        return ['.p2align 6', '.type L_tab,@object', 'L_tab:'] + ['.long %d' % x for x in T] + (['.fill L_PAD, 4, 0', '.size L_tab, 256 + 4 * L_PAD'] if pad else ['.size L_tab, 256', '.p2align 7'])

    def tail(self):
        c = self.cfg
        L = ['L_pub:'] + self.publish(''); A = L.append
        A('L_join:')
        L += self.stamp(8)
        g3 = 7 - c.wo_g3
        poll = 'buffer_load_dwordx2 %s, %s, s[%d:%d], %s offen sc1' % (v(vT2, 2), v(vXR + 3), SWS, SWS + 3, s(sFLG))
        assert c.wo_early >= 2
        if c.poll_first:
            A(poll); A('@waitlgkm_all'); A('s_barrier'); L += self.wo_reads()[3 + 8 * c.wo_early:3 + 8 * c.wo_imp]
            wrest = self.wo_reads()[3 + 8 * c.wo_imp:3 + 8 * g3]
        else:
            A('@waitvm wo'); A(poll); A('@waitlgkm_all'); A('s_barrier'); L += self.wo_reads()[3 + 8 * c.wo_early:3 + 8 * g3]
            wrest = []
        def test(r): return ['v_xor_b32 %s, %s, %s' % (v(r), s(sN0), v(r)), 'v_xor_b32 %s, %s, %s' % (v(r + 1), s(sN1), v(r + 1)),
                             'v_or_b32 %s, %s, %s' % (v(r), v(r), v(r + 1)), 'v_cmp_ne_u32 vcc, 0, %s' % v(r), 's_andn2_b64 vcc, vcc, s[%d:%d]' % (sOWN, sOWN + 1)]
        A('L_poll:')
        L += test(vT2); A('s_cbranch_vccnz L_repoll'); A('L_seen:')
        p2 = poll.replace(v(vT2, 2), v(vT2 + 14, 2))
        self.repoll = ['L_repoll:', '@assume_idle', (poll, 'p1')] + SPIN + ['s_nop 15', (p2, 'p2')] + test(vT2) + ['s_cbranch_vccz L_seen2'] + test(vT2 + 14) + ['s_cbranch_vccnz L_repoll',
                       'L_seen2:', '@waitvm_all', 's_branch L_seen']
        L += self.stamp(9)
        od = []
        for h in range(16):
            if h and h % 4 == 0: od += ['s_add_u32 m0, %s, %d' % (s(sWOM), 1024 * h), 's_add_u32 %s, %s, 4096' % (s(sD_), s(sD_))]
            od.append(('buffer_load_dwordx4 %s, s[%d:%d], %s offen offset:%d sc1 lds' % (v(vL16), SWS, SWS + 3, s(sD_), 1024 * (h & 3)), 'o%d' % h))
        assert c.o_first % 4 == 0
        nf = [i for i, x in enumerate(od) if isinstance(x, tuple)][c.o_first - 1] + 1
        L += od[:nf]
        M16 = 'v_mfma_f32_16x16x32_bf16'
        st = {'have': -1}
        def gate(k):
            X = []; h = (8 * k + 7) // 7
            need = min(x for x in c.stages if x >= h)
            wg = k % 2 == 0 and k // 2 >= g3
            if st['have'] < need or wg:
                X = ['@waitvm o%d' % need + (' wog%d' % (k // 2) if wg else ''), 's_barrier']; st['have'] = max(need, st['have'])
            return X
        def rd(k, sg, i): return 'ds_read_b64 %s, %s offset:%d' % (v(vE + 4 * ((4 * k + sg) % 12) + 2 * i, 2), v(vOF[2 * (k % 7) + i]), (k // 7) * 8192 + (sg >> 1) * 32768 + (sg & 1) * 256)
        rds = lambda k: [rd(k, sg, i) for sg in range(4) for i in range(2)]
        later = od[nf:]
        for m in range(g3, 7): later += self.wo_block(m, 'wog%d' % m)
        L += gate(0) + rds(0) + gate(1)
        for k in range(14):
            fill = []
            if k + 2 < 14:
                L += gate(k + 2); fill = (rds(1) if k == 0 else []) + rds(k + 2)
                if k >= c.wrest_at and wrest: fill = interleave(fill, wrest[:c.wrest_n]); del wrest[:c.wrest_n]
                assert not wrest or k + 1 < 2 * c.wo_imp
                if (k + 2) % 2 == 0 and (k + 2) // 2 >= g3: fill = interleave(fill, self.wo_reads()[3 + 4 * (k + 2):3 + 4 * (k + 2) + 8])
            per = -(-len(fill) // 8)
            if k == 13: lastk = len(L)
            for j in range(8):
                sg, nt = j >> 1, j & 1
                d = v(vK + 8 * sg + 4 * nt, 4)
                L.append('%s %s, %s, %s, %s' % (M16, d, a(8 * k + 4 * nt, 4), v(vE + 4 * ((4 * k + sg) % 12), 4), d if k else '0'))
                if later and k and j % c.g3_every == 0:
                    while not isinstance(later[0], tuple): L.append(later.pop(0))
                    L.append(later.pop(0))
                L += fill[per * j:per * (j + 1)]
        assert not later
        R = L[lastk:]; del L[lastk:]
        L += self.stamp(10)
        A = R.append
        for sg in range(4):
            for nt in range(2):
                d = vK + 8 * sg + 4 * nt
                R += self.pack(d, 2)
                A('ds_write_b64 %s, %s offset:%d' % (v(vOW + nt), v(d, 2), 1024 * sg))
            A('ds_read_b128 %s, %s offset:%d' % (v(vP + 4 * sg, 4), v(vOR), 1024 * sg))
            A('buffer_store_dwordx4 %s, %s, s[%d:%d], %s offen %s' % (v(vP + 4 * sg, 4), v(vOG), SOUT, SOUT + 3, s(sXO + sg), c.outfl))
        L += self.sched(R, 'out')
        A = L.append
        if c.stamps:
            L += self.stamp(11)
            A('s_memrealtime s[%d:%d]' % (sT0, sT1)); A('@waitlgkm_all')
            A('v_writelane_b32 %s, %s, 12' % (v(vST), s(sT0)))
            A('s_lshl_b32 %s, s2, 2' % s(sT2)); A('s_add_u32 %s, %s, %s' % (s(sT2), s(sT2), s(sW))); A('s_lshl_b32 %s, %s, 8' % (s(sT2), s(sT2)))
            A('s_add_u32 %s, %s, %d' % (s(sT2), s(sT2), WS_STAMP))
            A('v_lshlrev_b32 %s, 2, %s' % (v(vT), v(vL)))
            for k in range(0 if not c.prost else 4, 4): A('v_writelane_b32 %s, s%d, %d' % (v(vST), 12 + 2 * k, 32 + k))
            A('buffer_store_dword %s, %s, s[%d:%d], %s offen' % (v(vST), v(vT), SWS, SWS + 3, s(sT2)))
        if c.leak:
            if c.leak == 11: L += self.stamp(11)
            A('s_lshl_b32 s11, s101, 2'); A('s_cmp_eq_u32 %s, %d' % (s(sBR), c.leak_br)); A('s_cselect_b32 s11, s11, 0'); A('s_memrealtime s[100:101]'); A('@waitlgkm_all')
            A('L_leak:'); A('s_memrealtime s[%d:%d]' % (sT0, sT1)); A('@waitlgkm_all'); A('s_sub_u32 %s, %s, s100' % (s(sT0), s(sT0))); A('s_cmp_lt_u32 %s, s11' % s(sT0)); A('s_cbranch_scc1 L_leak')
        if c.tfix:
            A('L_tfix:'); A('s_memrealtime s[%d:%d]' % (sT0, sT1)); A('@waitlgkm_all'); A('s_sub_u32 %s, %s, s100' % (s(sT0), s(sT0))); A('s_cmp_lt_u32 %s, %d' % (s(sT0), c.tfix)); A('s_cbranch_scc1 L_tfix')
        A('L_end:'); A('s_endpgm')
        return L

    def throttle(self, L, br):
        c = self.cfg
        if not c.thr: return L
        out = []; seen = set()
        for x in L:
            if isinstance(x, tuple) and x[1] is not None and x[1] not in seen and x[1] in c.thr_tags:
                if x[1] != 'wq': seen.add(x[1])
                n = self.nthr; self.nthr += 1
                out += ['s_cbranch_vccnz L_thr%d' % n, 'L_thb%d:' % n]
                self.thr_side += ['L_thr%d:' % n, 's_waitcnt vmcnt(%d)' % c.thr, 's_branch L_thb%d' % n]
            out.append(x)
        return out
    def marks(self, L):
        if not self.cfg.marks: return L
        out = []; seen = set()
        for x in L:
            t = x[0] if isinstance(x, tuple) else x
            hit = [k for k, (p, af) in enumerate(self.cfg.marks) if (t == p or t.startswith(p + ' ')) and k not in seen]
            for k in hit:
                if not self.cfg.marks[k][1]: out.append(('s_memtime s[%d:%d]' % (12 + 2 * k, 13 + 2 * k), 'nowait'))
            out.append(x)
            for k in hit:
                if self.cfg.marks[k][1]: out.append(('s_memtime s[%d:%d]' % (12 + 2 * k, 13 + 2 * k), 'nowait'))
                seen.add(k)
        return out
    def build(self):
        import re
        pro = self.prologue() + ['s_cmp_eq_u32 %s, 0' % s(sBR), 's_cbranch_scc1 L_pathA']
        MK = '.set MARK_A, 0'
        M0 = copy.deepcopy(self.M); out = []
        for br in 'BA':
            self.M = copy.deepcopy(M0)
            hlp = [(x, 'untracked') if x.startswith('global_load') else x for x in self.help()] if (br == 'A' and self.cfg.help) else []
            body = hlp + self.part1(br) + self.stamp(14) + self.middle(br) + self.tail()
            code = finalize(self.marks(pro + [MK] + body)); k = code.index(MK)
            head, code = code[:k], code[k + 1:]
            side = finalize(self.repoll + self.far() + self.nonce_retry(br) + self.part_retry(br) + (self.mknonce() if br == 'B' else []))
            tab = self.table(br == 'A')
            if br == 'A':
                ren = lambda l: re.sub(r'\b(L_(?:end|pub|join|far|poll|repoll|seen2?|tab|leak|tfix))\b', r'\1A', l)
                code, side, tab = [ren(l) for l in ['L_pathA:'] + code], [ren(l) for l in side], [ren(l) for l in tab]
            else: code = head + code
            out.append((code, side + tab))
        return out

HEADER = open(os.path.join(os.path.dirname(os.path.abspath(__file__)), 'header.txt')).read()

def generate(cfg):
    import emit
    emit.MERGE = cfg.merge
    import sched
    sched.BURST = cfg.burst; sched.HOLD = cfg.hold
    g = G(cfg)
    (cb, sb), (ca, sa) = g.build()
    if cfg.align:
        from align import align
        hd = '.amdgcn_target "amdgcn-amd-amdhsa--gfx950"\n.text\n.set L_AOFF, 200\n.set L_PAD, 0\n'
        cb, p0, p1 = align(hd, cb, '\n'.join(sb + ca + sa) + '\n', cfg.align)
        ca, p2, p3 = align(hd, ca, '\n'.join(sa + cb + sb) + '\n', cfg.align)
        if cfg.verbose: sys.stderr.write('misalignment penalty %d -> %d, %d -> %d\n' % (p0, p1, p2, p3))
    body = cb + sb + ca + sa
    txt = HEADER
    if cfg.extra_empty:
        txt += '; @launch kernel=%s grid=(256,1,1) block=(256,1,1) lds=163840\n; @launch kernel=empty_kernel grid=(256,1,1) block=(256,1,1) lds=0\n' % KNAME
    else:
        txt += '; @launch grid=(256,1,1) block=(256,1,1) lds=163840\n'
    txt += '.amdgcn_target "amdgcn-amd-amdhsa--gfx950"\n.text\n.globl %s\n.p2align 8\n.type %s,@function\n%s:\n' % (KNAME, KNAME, KNAME)
    txt += '\n'.join(('' if l.endswith(':') else '    ') + l for l in body) + '\n'
    if cfg.extra_empty:
        txt += '.globl empty_kernel\n.p2align 8\n.type empty_kernel,@function\nempty_kernel:\n    s_endpgm\n'
        txt += '.section .rodata,"a"\n.p2align 6\n.amdhsa_kernel empty_kernel\n  .amdhsa_next_free_vgpr 8\n  .amdhsa_next_free_sgpr 16\n  .amdhsa_accum_offset 8\n  .amdhsa_group_segment_fixed_size 0\n  .amdhsa_kernarg_size 80\n  .amdhsa_user_sgpr_count 2\n  .amdhsa_user_sgpr_kernarg_segment_ptr 1\n  .amdhsa_system_sgpr_workgroup_id_x 1\n.end_amdhsa_kernel\n'
    txt += '.section .rodata,"a"\n.p2align 6\n.amdhsa_kernel %s\n' % KNAME
    txt += '  .amdhsa_next_free_vgpr 512\n  .amdhsa_next_free_sgpr 102\n  .amdhsa_accum_offset 256\n  .amdhsa_group_segment_fixed_size 0\n'
    txt += '  .amdhsa_kernarg_size 80\n  .amdhsa_user_sgpr_count 2\n  .amdhsa_user_sgpr_kernarg_segment_ptr 1\n  .amdhsa_system_sgpr_workgroup_id_x 1\n.end_amdhsa_kernel\n'
    import subprocess, tempfile, re
    d = tempfile.mkdtemp()
    open(d + '/a.s', 'w').write(txt.replace('L_PAD', '0').replace('L_AOFF', '200'))
    r = subprocess.run(['clang', '-x', 'assembler', '-target', 'amdgcn-amd-amdhsa', '-mcpu=gfx950', '-c', d + '/a.s', '-o', d + '/a.o'], capture_output=True, text=True)
    if r.returncode: raise Exception(r.stderr[:3000])
    r = subprocess.run(['llvm-readelf', '-S', '-s', d + '/a.o'], capture_output=True, text=True).stdout
    size = int(re.search(r'\.text\s+PROGBITS\s+\w+\s+\w+\s+(\w+)', r).group(1), 16)
    offa = int(re.search(r': (\w+)\s+\d+\s+\w+\s+\w+\s+\w+\s+\d+ L_pathA', r).group(1), 16)
    assert offa % 128 == 0 and 64 < offa // 128 and offa < 32768 and size - offa < 32768
    sys.stderr.write('code bytes: B %d A %d\n' % (offa, size - offa))
    return txt.replace('L_PAD', str((offa + 32768 + 256 - size) // 4)).replace('L_AOFF', str(offa // 128))

if __name__ == '__main__':
    cfg = Cfg()
    out = sys.argv[1]
    for kv in sys.argv[2:]:
        k, val = kv.split('=', 1); assert hasattr(cfg, k), k; setattr(cfg, k, eval(val))
    open(out, 'w').write(generate(cfg))
```

```python
import sys, os
from emit import finalize, interleave
from sched import schedule, Machine
import copy

KNAME = 'concat_heads__linear_attn_block__linear_kernel_hedgehog__prompt_kernel'

class Cfg:
    stamps = False; lite = False; fine = None; frange = (0, 1); marks = None; leak = None; leak_br = 1; tfix = 0; extra_empty = False; force_global = False; verbose = False
    rotmap = None; rottab = None; tswap = 0; pref_slots = 0
    xfl = ''; wfl = ''; wofl = ''; outfl = 'sc1'; prefl = 'sc1'; tfl = ''
    touch = {"p2": "o"}
    wv_bar = (1, 2, 4, 7); hi2 = 6000; q_tm = False
    rel_part = 1600; rel_partA = 1900; rel_nonce = 0
    wo_before = 2; wo_mid = 2; wo_imp = 5; wo_g3 = 1; tab_late = True; q_tight = False; p2_tight = False; wo_early = 2; late0 = 6; pre_q = False; ws_base = 0
    stages = (3, 5, 7, 11, 15); g3_every = 2; o_first = 8
    dslat = 130; merge = 24; burst = 24; hold = 12
    miss = {}; lines = {}
    wv_early = 0; wv_at = 7
    wq_pre = 7
    fake_n2 = False
    wq_at = 0
    align = 4
    flip = False
    delay = None
    help_plain = False
    help = 'xwX'
    merge_q = 2
    poll_first = True; wrest_at = 3; wrest_n = 4
    prost = False
    tailk = 3
    pk0 = False
    A = {}; B = {}
    thr = 0; thr_tags = ['x11', 'x12', 'x13', 'wv0', 'wv1', 'wv2', 'wv3', 'wv4', 'wv5', 'wv6', 'wq']
    depth = 4; order0 = 'w2 w3 x2 w4 x3 w5 w6 x4 x5'; wkbar = {0: 'wk1 phi', 2: 'wk3', 4: 'wk6'}; t0boost = 2000
    rate = 2.2; cap = 256; lat = 400; fifo = 4; wlines = 90; cold = 900; pmiss = 900; smiss = 1000

WS_XCC, WS_FLAG, WS_PART, WS_O, WS_STAMP = 4096, 8192, 65536, 2 << 20, 16 << 20
WS_BYTES = 32 << 20
L_WK, L_WV, L_MISC, L_WQ, L_WO, L_SCR, L_OT = 98304, 126976, 155648, 0, 32768, 32768, 65536
OOB = 0x40000000
sAX, sAW, sAWO, sBX, sBW, sPHI, sBWO, sOUT, sDBG, sWSP = 4, 6, 8, 10, 12, 14, 16, 18, 20, 22
SX, SW, SWO, SPHI, SWS, SOUT = 24, 28, 32, 36, 40, 44
sBR, sRB, sH, sW, sGID, sSLOT, sT0, sT1, sT2, sXCC = 48, 49, 50, 51, 52, 53, 54, 55, 56, 57
sN0, sN1 = 58, 59
sHI, sE28 = 60, 62
sXO, sWO_ = 64, 72
sSPIN, sFAR = 71, 72
sM0X, sM0W, sSH, sCB, sRQ, sPB = 80, 81, 82, 83, 84, 85
sA, sB_, sC_, sD_ = 86, 87, 88, 89
sOB1, sWOM, sDT, sROT, sXB, sWB, sOBX, sFLG, sT3, sREC, sRECA = 90, 91, 92, 93, 94, 95, 96, 97, 98, 99, 79
sOWN = 74
sM0K = 3
sPX, sPL0, sPL1, sSET, sRECL, sSCR = 4, 5, 6, 7, 8, 9
sWOS, sTAB = sXCC, SX
sFLW = sSLOT
sSGN = sSH
sM1, sM2 = SPHI, SPHI + 2
SPIN = ['s_add_u32 s71, s71, 1', 's_cmp_gt_u32 s71, 0x100000', 's_cbranch_scc1 L_end']
vL = 1
vXD, vWD, vWRq, vWRk, vZ = 2, 6, 7, 8, 9
vXR, vXR2 = 10, 14
vDUM, vT = 18, 19
vPH, vID, vC, vST, vN = 20, 28, 36, 37, 38
vK, vV, vP, vE, vKV, vT2 = 40, 72, 104, 136, 200, 232
vTAG, vL16 = 248, 249
vWO0, vWOD = 250, 252
vWDq, vWDv = 253, 251
vTCH, vTCO, vPRE = None, 254, 255
vS16, vOW, vOR, vOG = vT2 + 3, vT2 + 4, vT2 + 8, vT2 + 9
vOF = list(range(20, 28)) + list(range(32, 36)) + [254, 255]
aX, aWR = 0, 224

def v(r, n=1): return 'v%d' % r if n == 1 else 'v[%d:%d]' % (r, r + n - 1)
def a(r, n=1): return 'a%d' % r if n == 1 else 'a[%d:%d]' % (r, r + n - 1)
def s(r, n=1): return 's%d' % r if n == 1 else 's[%d:%d]' % (r, r + n - 1)
MF = 'v_mfma_f32_32x32x16_bf16'
def mfma(d, x, y, c): return '%s %s, %s, %s, %s' % (MF, v(d, 16), x, y, v(c, 16) if c is not None else '0')

class G:
    def __init__(self, cfg):
        self.cfg = c = cfg; self.npc = 0; self.nthr = 0; self.thr_side = []
        self.M = Machine(c.rate, c.cap, c.lat, fifo=c.fifo, lines={'wk': c.wlines, 'wv': c.wlines, 'wq': c.wlines, 'phi': 13, 'touch': 100, 'pre': 128, 'nonce': 4, 'side': 4, 'pref': 4, 'tab': 4, 'rec': 8},
                         miss={'x0': c.cold, 'nonce': 500, 'part': c.pmiss, 'rec': c.pmiss, 'pre': 600, 'touch': 400, 'pst': c.smiss, 'side': 500, 'ost': 250})
        self.M.miss.update(c.miss); self.M.lines.update(c.lines)
    def stamp(self, k):
        if self.cfg.leak == k: return ['@waitlgkm_all', 's_memrealtime s[%d:%d]' % (sT0, sT1), '@waitlgkm_all', 's_sub_u32 s101, %s, s100' % s(sT0)]
        if not self.cfg.stamps or (self.cfg.lite and k not in (11, 13)): return []
        return ['@waitlgkm_all', 's_memtime s[%d:%d]' % (sT0, sT1), 's_memrealtime s[100:101]', '@waitlgkm_all', 'v_writelane_b32 %s, %s, %d' % (v(vST), s(sT0), k),
                'v_writelane_b32 %s, s100, %d' % (v(vST), 16 + k)]
    def sched(self, L, name, **kw): return self.fine(schedule(self.M, L, verbose=name if self.cfg.verbose else False, dslat=self.cfg.dslat, **kw), name)
    def glue(self, L): return self.M.run(L)
    def fine(self, L, name):
        if not self.cfg.fine or not name.startswith(self.cfg.fine): return L
        out = []; n = len(L); lo, hi = [int(f * n) for f in self.cfg.frange]; pos = {lo + (k * (hi - lo)) // 3: k for k in range(4)}
        for i, x in enumerate(L + [None]):
            if i in pos: out.append(('s_memtime s[%d:%d]' % (12 + 2 * pos[i], 13 + 2 * pos[i]), 'nowait'))
            if x is not None: out.append(x)
        T = [self.M.times[i] for i in sorted(pos)]
        sys.stderr.write('model %s: %s\n' % (name, [b - a for a, b in zip(T[:-1], T[1:])]))
        if self.cfg.verbose:
            for i, k in pos.items(): sys.stderr.write('  fine %s %d at %d: %s\n' % (name, k, i, L[i]))
        return out

    def offs(self, i):
        L = ['s_lshl_b32 %s, %s, 7' % (s(sD_), s(sROT)), 's_add_u32 %s, %s, %s' % (s(sXO + i), s(sXB), s(sD_)),
             's_mul_i32 %s, %s, %d' % (s(sD_), s(sROT), 64 * 2688), 's_add_u32 %s, %s, %s' % (s(sD_), s(sWB), s(sD_)), 's_add_u32 %s, %s, %d' % (s(sWO_ + i), s(sD_), 4096 - 1024 * (i & 3))]
        if i < 6: L += ['s_add_u32 %s, %s, 1' % (s(sROT), s(sROT)), 's_cmp_eq_u32 %s, 7' % s(sROT), 's_cselect_b32 %s, 0, %s' % (s(sROT), s(sROT))]
        return L
    def touches(self, pos):
        L = []
        for w in self.cfg.touch.get(pos, ''):
            if w == 'p': L.append(('buffer_load_dword %s, %s, s[%d:%d], %s offen %s' % (v(vDUM), v(vPRE), SWS, SWS + 3, s(sOBX), self.cfg.prefl), 'pre'))
            else: L += self.touch(w)
        return L
    def touch(self, what):
        c = self.cfg
        if what == 'o': return [('buffer_load_dword %s, %s, s[%d:%d], 0 offen %s' % (v(vDUM), v(vTCO), SWO, SWO + 3, c.tfl), 'touch')]
        return [('buffer_load_dword %s, %s, s[%d:%d], 0 offen offset:%d %s' % (v(vDUM), v(vTCH), SW, SW + 3, {'q': 0, 'v': 1792}[what], c.tfl), 'touch')]

    def prologue(self):
        c = self.cfg; L = []; A = L.append
        A('s_load_dwordx16 s[4:19], s[0:1], 0')
        A('s_load_dwordx4 s[20:23], s[0:1], 64')
        if c.prost: L.append(('s_memtime s[96:97]', 'nowait'))
        if c.stamps or c.tfix or c.leak: A('s_memrealtime s[100:101]')
        A('s_cmpk_ge_u32 s2, 0x100'); A('s_cbranch_scc1 L_end')
        if c.delay:
            A('s_and_b32 s30, s2, 7'); A('s_lshr_b32 s30, %d, s30' % c.delay[0]); A('s_bitcmp0_b32 s30, 0'); A('s_cbranch_scc1 L_nodelay')
            A('L_delay:'); A('s_memrealtime s[30:31]'); A('@waitlgkm_all'); A('s_sub_u32 s30, s30, s100'); A('s_cmp_lt_u32 s30, %d' % c.delay[1]); A('s_cbranch_scc1 L_delay')
            A('L_nodelay:')
        t0, t1, t2 = vT2, vT2 + 1, vT2 + 2
        A('v_readfirstlane_b32 %s, v0' % s(sW)); A('v_and_b32 %s, 63, v0' % v(vL))
        A('s_lshr_b32 %s, s2, 3' % s(sSLOT)); A('s_and_b32 %s, %s, 15' % (s(sH), s(sSLOT))); A('s_lshr_b32 %s, %s, 4' % (s(sT2), s(sSLOT)))
        A('s_bitcmp0_b32 s2, 2'); A('s_cselect_b32 %s, L_AOFF, 0' % s(sB_)); A('s_lshl3_add_u32 %s, %s, %s' % (s(sB_), s(sSLOT), s(sB_)))
        A('v_lshrrev_b32 %s, 5, v0' % v(vT)); A('s_getpc_b64 s[%d:%d]' % (sT0, sT1))
        A('v_add_lshl_u32 %s, %s, %s, 7' % (v(vT), v(vT), s(sB_)))
        L.append(('global_load_dword %s, %s, s[%d:%d]' % (v(vDUM), v(vT), sT0, sT1), 'pref'))
        A('s_and_b32 %s, s2, 3' % s(sRB)); A('s_lshl1_add_u32 %s, %s, %s' % (s(sRB), s(sRB), s(sT2))); A('s_lshr_b32 %s, %s, 6' % (s(sW), s(sW)))
        A('s_mul_i32 %s, %s, 3' % (s(sT2), s(sT2))); A('s_add_u32 %s, %s, %s' % (s(sROT), s(sH), s(sT2)))
        A('s_mul_i32 %s, %s, 37' % (s(sB_), s(sROT))); A('s_lshr_b32 %s, %s, 8' % (s(sB_), s(sB_)))
        A('s_mul_i32 %s, %s, 7' % (s(sB_), s(sB_))); A('s_sub_u32 %s, %s, %s' % (s(sROT), s(sROT), s(sB_)))
        A('s_lshl2_add_u32 %s, %s, %s' % (s(sB_), s(sRB), s(sW))); A('s_mul_i32 %s, %s, 57344' % (s(sXB), s(sB_)))
        o0 = self.offs(0); L += o0[:2]
        A('s_lshl_b32 %s, %s, 12' % (s(sM0X), s(sW))); A('s_mov_b32 m0, %s' % s(sM0X))
        A('v_lshrrev_b32 %s, 3, %s' % (v(t0), v(vL))); A('v_mul_u32_u24 %s, 896, %s' % (v(t0), v(t0)))
        A('v_lshrrev_b32 %s, 4, %s' % (v(t1), v(vL))); A('v_and_b32 %s, 7, %s' % (v(t2), v(vL))); A('v_xor_b32 %s, %s, %s' % (v(t2), v(t1), v(t2)))
        A('v_lshl_add_u32 %s, %s, 4, %s' % (v(vXD), v(t2), v(t0))); A('v_xor_b32 %s, 64, %s' % (v(t2), v(vXD)))
        A('v_add_u32 %s, 6144, %s' % (v(vXD + 1), v(t2))); A('v_add_u32 %s, 12288, %s' % (v(vXD + 2), v(vXD))); A('v_add_u32 %s, 18432, %s' % (v(vXD + 3), v(t2)))
        A('s_mov_b32 %s, 1835008' % s(SX + 2)); A('s_mov_b32 %s, 0x20000' % s(SX + 3))
        if c.prost: L.append(('s_memtime s[98:99]', 'nowait'))
        A('s_bitcmp0_b32 s2, 2')
        A('@waitlgkm_all')
        if c.prost: A('v_writelane_b32 %s, s98, 33' % v(vST)); A('v_writelane_b32 %s, s96, 32' % v(vST))
        if c.leak == 13: L += self.stamp(13); A('s_bitcmp0_b32 s2, 2')
        if c.stamps: A('v_writelane_b32 %s, s100, 0' % v(vST)); L += self.stamp(13); A('s_bitcmp0_b32 s2, 2')
        sel = lambda srd, pa, pb: ['s_cselect_b32 %s, %s, %s' % (s(srd + k), s(pa + k), s(pb + k)) for k in range(2)]
        L += sel(SX, sAX, sBX) + self.dma_x(0)[1:]
        if c.prost == 2: L.append(('s_memtime s[98:99]', 'nowait'))
        L += sel(SW, sAW, sBW) + sel(SWO, sAWO, sBWO); A('s_cselect_b32 %s, 0, 25088' % s(SPHI + 2))
        A('s_sub_u32 %s, %s, 4096' % (s(SW), s(SW))); A('s_subb_u32 %s, %s, 0' % (s(SW + 1), s(SW + 1)))
        A('s_mov_b32 %s, %d' % (s(SW + 2), 1204224 + 4096)); A('s_mov_b32 %s, %s' % (s(SW + 3), s(SX + 3)))
        A('v_lshrrev_b32 %s, 2, %s' % (v(t0), v(vL))); A('v_mul_u32_u24 %s, 2688, %s' % (v(t0), v(t0)))
        A('v_and_b32 %s, 3, %s' % (v(t2), v(vL))); A('v_lshl_add_u32 %s, %s, 4, %s' % (v(vWDq), v(t2), v(t0))); A('v_add_u32 %s, 896, %s' % (v(vWD), v(vWDq)))
        A('s_cmp_eq_u32 %s, 15' % s(sH)); A('s_cselect_b32 %s, 8, 0' % s(sSH))
        A('s_mul_i32 %s, %s, 56' % (s(sC_), s(sH))); A('s_sub_u32 %s, %s, %s' % (s(sC_), s(sC_), s(sSH)))
        A('s_mul_i32 %s, %s, %d' % (s(sD_), s(sW), 16 * 2688)); A('s_add_u32 %s, %s, %s' % (s(sWB), s(sC_), s(sD_)))
        A('s_mul_i32 %s, %s, 7168' % (s(sM0K), s(sW)))
        L += o0[2:5] + self.dma_w(0, 1, L_WK, 'wk0')
        if c.prost == 2: L.append(('s_memtime s[4:5]', 'nowait'))
        L += o0[5:] + self.offs(1) + self.dma_w(1, 1, L_WK, 'wk1', False)
        A('s_bfe_u32 %s, s2, 0x10002' % s(sBR)); A('s_lshl_b32 %s, %s, 10' % (s(sM0W), s(sW)))
        for srd, n in ((SWO, 401408), (SWS, WS_BYTES), (SOUT, 3670016)):
            A('s_mov_b32 %s, %d' % (s(srd + 2), n)); A('s_mov_b32 %s, 0x20000' % s(srd + 3))
        A('s_mov_b32 %s, %s' % (s(SPHI), s(sPHI))); A('s_mov_b32 %s, %s' % (s(SPHI + 1), s(sPHI + 1))); A('s_mov_b32 %s, 0x20000' % s(SPHI + 3))
        A('v_lshlrev_b32 %s, 4, %s' % (v(vL16), v(vL)))
        A('s_cmp_ge_u32 %s, 2' % s(sW)); A('s_cselect_b32 %s, 0x%x, %s' % (s(sA), OOB, s(sM0W))); A('v_add_u32 %s, %s, %s' % (v(t0), s(sA), v(vL16)))
        A('s_mul_i32 %s, %s, 1568' % (s(sT2), s(sH))); A('s_add_u32 m0, %s, %d' % (s(sM0W), L_MISC))
        L.append(('buffer_load_dwordx4 %s, s[%d:%d], %s offen lds' % (v(t0), SPHI, SPHI + 3, s(sT2)), 'phi'))
        L += self.dma_x(1)
        if c.prost == 2: L.append(('s_memtime s[6:7]', 'nowait'))
        if c.ws_base: A('s_add_u32 %s, %s, %d' % (s(sWSP), s(sWSP), c.ws_base)); A('s_addc_u32 %s, %s, 0' % (s(sWSP + 1), s(sWSP + 1)))
        for (srd, p) in ((SWS, sWSP), (SOUT, sOUT)):
            A('s_mov_b32 %s, %s' % (s(srd), s(p))); A('s_mov_b32 %s, %s' % (s(srd + 1), s(p + 1)))
        A('v_mov_b32 %s, 0' % v(vZ))
        A('s_or_b32 %s, s2, %s' % (s(sT2), s(sW))); A('s_cmp_eq_u32 %s, 0' % s(sT2)); A('s_cbranch_scc1 L_mknonce')
        A('L_nononce:')
        if c.prost == 2: L += ['@waitlgkm_all', 'v_writelane_b32 %s, s98, 33' % v(vST), 'v_writelane_b32 %s, s4, 34' % v(vST), 'v_writelane_b32 %s, s6, 35' % v(vST)]
        self.glue(L)
        return L

    def setup(self):
        c = self.cfg; L = []; A = L.append
        t0, t1, t2 = vT2, vT2 + 1, vT2 + 2
        A('v_add_u32 %s, 1792, %s' % (v(vWDv), v(vWDq)))
        A('s_mov_b32 %s, 0' % s(sSPIN))
        A('s_getreg_b32 %s, hwreg(HW_REG_XCC_ID, 0, 4)' % s(sXCC))
        m, hi, t3, t4 = vT2 + 3, vT2 + 4, vT2 + 5, vT2 + 6
        A('s_mul_i32 %s, %s, 98' % (s(sA), s(sSLOT))); A('s_mul_i32 %s, %s, 25' % (s(sB_), s(sW))); A('s_add_u32 %s, %s, %s' % (s(sA), s(sA), s(sB_)))
        A('v_min_u32 %s, 24, %s' % (v(t0), v(vL))); A('v_add_u32 %s, %s, %s' % (v(t0), s(sA), v(t0))); A('v_min_u32 %s, 3135, %s' % (v(t0), v(t0)))
        A('v_lshlrev_b32 %s, 7, %s' % (v(vTCO), v(t0)))
        A('v_and_b32 %s, 31, %s' % (v(m), v(vL))); A('v_lshrrev_b32 %s, 5, %s' % (v(hi), v(vL)))
        A('v_bfe_u32 %s, %s, 1, 3' % (v(t1), v(m))); A('v_xor_b32 %s, %s, %s' % (v(t1), v(t1), v(hi)))
        A('v_lshl_add_u32 %s, %s, 7, %s' % (v(t2), v(m), s(sM0X)))
        for ks in range(4):
            A('v_xor_b32 %s, %d, %s' % (v(t3), 2 * ks, v(t1))); A('v_lshl_add_u32 %s, %s, 4, %s' % (v(vXR + ks), v(t3), v(t2)))
            A('v_add_u32 %s, 0x10000, %s' % (v(vXR2 + ks), v(vXR + ks)))
        A('v_bfe_u32 %s, %s, 2, 2' % (v(t1), v(vL))); A('v_lshlrev_b32 %s, 6, %s' % (v(t2), v(t1)))
        A('v_lshl_add_u32 %s, %s, 9, %s' % (v(t2), v(hi), v(t2)))
        A('v_bfe_u32 %s, %s, 4, 1' % (v(t3), v(vL))); A('v_and_b32 %s, 3, %s' % (v(t4), v(vL)))
        A('v_lshlrev_b32 %s, 3, %s' % (v(t4), v(t4))); A('v_lshl_add_u32 %s, %s, 5, %s' % (v(t4), v(t3), v(t4)))
        A('v_add3_u32 %s, %s, %s, %s' % (v(vWRq), v(t2), v(t4), s(sSH)))
        A('v_add_u32 %s, %d, %s' % (v(vWRk), L_WK, v(vWRq)))
        A('v_xor_b32 %s, %s, %s' % (v(t3), s(sW), v(t1))); A('v_lshl_add_u32 %s, %s, 6, %s' % (v(t4), v(t3), v(t4)))
        A('v_lshl_add_u32 %s, %s, 8, %s' % (v(t4), v(t1), v(t4))); A('v_lshrrev_b32 %s, 4, %s' % (v(t3), v(vL))); A('v_lshl_add_u32 %s, %s, 11, %s' % (v(t4), v(t3), v(t4)))
        A('v_add_u32 %s, %d, %s' % (v(vWO0), L_WO, v(t4)))
        A('s_and_b32 %s, %s, 1' % (s(sA), s(sW))); A('s_lshl_b32 %s, %s, 4' % (s(sA), s(sA))); A('v_xor_b32 %s, %s, %s' % (v(t4), s(sA), v(m)))
        A('s_bitcmp1_b32 %s, 1' % s(sW)); A('s_cselect_b32 %s, 0x80008000, 0' % s(sSGN))
        A('v_lshrrev_b32 %s, 3, %s' % (v(t0), v(t4))); A('v_and_b32 %s, 3, %s' % (v(t1), v(t4)))
        A('v_lshl_add_u32 %s, %s, 2, %s' % (v(t0), v(t0), v(t1)))
        A('v_lshrrev_b32 %s, 4, %s' % (v(t1), v(t4))); A('v_sub_u32 %s, %s, %s' % (v(t0), v(t0), v(t1)))
        A('v_bfe_u32 %s, %s, 2, 1' % (v(t1), v(m))); A('v_mad_u32_u24 %s, %s, 14, %s' % (v(t0), v(t1), v(t0)))
        A('v_and_b32 %s, 11, %s' % (v(t1), v(m))); A('v_cmp_eq_u32 vcc, 11, %s' % v(t1))
        A('v_mov_b32 %s, %d' % (v(t2), L_MISC + 2048))
        A('v_mul_u32_u24 %s, 224, %s' % (v(t3), v(hi))); A('v_lshl_add_u32 %s, %s, 1, %s' % (v(t3), v(t0), v(t3))); A('v_add_u32 %s, %d, %s' % (v(t3), L_MISC, v(t3)))
        A('v_cndmask_b32_e64 %s, %s, %s, vcc' % (v(vT2 + 12), v(t3), v(t2)))
        A('v_cndmask_b32_e64 %s, %s, 63, vcc' % (v(vT2 + 11), v(t0)))
        A('v_cmp_lt_u32_e64 s[%d:%d], 31, %s' % (sHI, sHI + 1, v(vL)))
        A('v_cmp_eq_u32_e64 s[%d:%d], 28, %s' % (sE28, sE28 + 1, v(m)))
        A('v_cndmask_b32_e64 %s, %s, %s, s[%d:%d]' % (v(vT2 + 13), v(vT2 + 12), v(t2), sHI, sHI + 1))
        return L

    def help(self):
        c = self.cfg; L = []; A = L.append
        t0, t1, t2 = vT2 + 8, vT2 + 9, vT2 + 10
        nh = 10 if c.help_plain else 16
        if c.help_plain:
            A('s_bfm_b32 %s, %s, 0' % (s(sC_), s(sH))); A('s_and_b32 %s, %s, 0xd5ab' % (s(sC_), s(sC_))); A('s_bcnt1_i32_b32 %s, %s' % (s(sC_), s(sC_)))
        else: A('s_mov_b32 %s, %s' % (s(sC_), s(sH)))
        A('s_mul_i32 %s, %s, %d' % (s(sA), s(sRB), nh)); A('s_add_u32 %s, %s, %s' % (s(sA), s(sA), s(sC_))); A('s_lshl2_add_u32 %s, %s, %s' % (s(sA), s(sA), s(sW)))
        def index(n, last):
            n = -(-(last + 1) // (32 * nh))
            A('s_mul_i32 %s, %s, %d' % (s(sB_), s(sA), n)); A('v_min_u32 %s, %d, %s' % (v(t0), n - 1, v(vL))); A('v_add_u32 %s, %s, %s' % (v(t0), s(sB_), v(t0)))
            A('v_min_u32 %s, %d, %s' % (v(t0), last, v(t0)))
        if 'x' in c.help:
            index(14, 7167)
            A('v_mul_u32_u24 %s, 9363, %s' % (v(t1), v(t0))); A('v_lshrrev_b32 %s, 21, %s' % (v(t1), v(t1))); A('v_add_u32 %s, 1, %s' % (v(t1), v(t1)))
            A('v_mul_u32_u24 %s, 28672, %s' % (v(t1), v(t1))); A('v_lshl_add_u32 %s, %s, 7, %s' % (v(t1), v(t0), v(t1)))
            A('global_load_dword %s, %s, s[%d:%d]' % (v(vDUM), v(t1), sBX, sBX + 1))
        if 'w' in c.help:
            index(13, 6271)
            A('v_mul_u32_u24 %s, 9363, %s' % (v(t1), v(t0))); A('v_lshrrev_b32 %s, 16, %s' % (v(t1), v(t1))); A('v_add_u32 %s, 1, %s' % (v(t1), v(t1))); A('v_lshrrev_b32 %s, 1, %s' % (v(t1), v(t1)))
            A('v_mul_u32_u24 %s, 896, %s' % (v(t1), v(t1))); A('v_lshl_add_u32 %s, %s, 7, %s' % (v(t1), v(t0), v(t1)))
            A('global_load_dword %s, %s, s[%d:%d]' % (v(vDUM), v(t1), sBW, sBW + 1))
        A('s_and_b32 %s, %s, 1' % (s(sB_), s(sRB))); A('s_mul_i32 %s, %s, %d' % (s(sB_), s(sB_), nh)); A('s_add_u32 %s, %s, %s' % (s(sC_), s(sC_), s(sB_))); A('s_lshl2_add_u32 %s, %s, %s' % (s(sC_), s(sC_), s(sW)))
        def index2(n, last):
            n = -(-(last + 1) // (8 * nh))
            A('s_mul_i32 %s, %s, %d' % (s(sB_), s(sC_), n)); A('v_min_u32 %s, %d, %s' % (v(t0), n - 1, v(vL))); A('v_add_u32 %s, %s, %s' % (v(t0), s(sB_), v(t0)))
            A('v_min_u32 %s, %d, %s' % (v(t0), last, v(t0)))
        if 'X' in c.help:
            index2(14, 1791)
            A('s_and_b32 %s, s2, 3' % s(sB_)); A('s_mul_i32 %s, %s, 1792' % (s(sB_), s(sB_))); A('v_add_u32 %s, %s, %s' % (v(t0), s(sB_), v(t0)))
            A('v_mul_u32_u24 %s, 9363, %s' % (v(t1), v(t0))); A('v_lshrrev_b32 %s, 21, %s' % (v(t1), v(t1))); A('v_add_u32 %s, 1, %s' % (v(t1), v(t1)))
            A('v_mul_u32_u24 %s, 28672, %s' % (v(t1), v(t1))); A('v_lshl_add_u32 %s, %s, 7, %s' % (v(t1), v(t0), v(t1)))
            A('global_load_dword %s, %s, s[%d:%d]' % (v(vDUM), v(t1), sAX, sAX + 1))
        if 'W' in c.help:
            index(13, 6271)
            A('v_mul_u32_u24 %s, 9363, %s' % (v(t1), v(t0))); A('v_lshrrev_b32 %s, 16, %s' % (v(t1), v(t1))); A('v_add_u32 %s, 1, %s' % (v(t1), v(t1))); A('v_lshrrev_b32 %s, 1, %s' % (v(t1), v(t1)))
            A('v_mul_u32_u24 %s, 896, %s' % (v(t1), v(t1))); A('v_lshl_add_u32 %s, %s, 7, %s' % (v(t1), v(t0), v(t1)))
            A('global_load_dword %s, %s, s[%d:%d]' % (v(vDUM), v(t1), sAW, sAW + 1))
        if 'p' in c.help:
            index(32, 16383)
            A('v_lshlrev_b32 %s, 7, %s' % (v(t1), v(t0))); A('v_add_u32 %s, %d, %s' % (v(t1), WS_O + (2 << 20), v(t1)))
            A('global_load_dword %s, %s, s[%d:%d]' % (v(vDUM), v(t1), sWSP, sWSP + 1))
        if 'O' in c.help:
            index(7, 3135)
            A('v_lshlrev_b32 %s, 7, %s' % (v(t1), v(t0)))
            A('global_load_dword %s, %s, s[%d:%d]' % (v(vDUM), v(t1), sAWO, sAWO + 1))
        if 'o' in c.help:
            index(7, 3135)
            A('v_lshlrev_b32 %s, 7, %s' % (v(t1), v(t0)))
            A('global_load_dword %s, %s, s[%d:%d]' % (v(vDUM), v(t1), sBWO, sBWO + 1))
        return L
    def mknonce(self):
        L = ['L_mknonce:', '@assume_idle']; A = L.append
        A('s_load_dwordx2 s[%d:%d], s[%d:%d], 0' % (sT0, sT1, sWSP, sWSP + 1))
        A('@waitlgkm_all')
        A('s_add_u32 %s, %s, 0x9e3679b8' % (s(sT0), s(sT0))); A('s_add_u32 %s, %s, 0x85eaca6a' % (s(sT1), s(sT1)))
        for r in (sT0, sT1):
            A('s_or_b32 %s, %s, 0x00010001' % (s(r), s(r))); A('s_and_b32 %s, %s, 0xbfffbfff' % (s(r), s(r)))
        A('v_mov_b32 %s, %s' % (v(vN), s(sT0))); A('v_mov_b32 %s, %s' % (v(vN + 1), s(sT1)))
        A('s_mov_b64 exec, 1')
        A('global_store_dwordx2 %s, %s, s[%d:%d] sc1' % (v(vZ), v(vN, 2), sDBG, sDBG + 1))
        A('global_store_dwordx2 %s, %s, s[%d:%d] sc1' % (v(vZ), v(vN, 2), sWSP, sWSP + 1))
        A('s_mov_b64 exec, -1'); A('s_branch L_nononce')
        return L

    def setup2(self, br):
        m, hi, fp, ofs, ofs2 = vT2 + 3, vT2 + 4, vT2 + 11, vT2 + 12, vT2 + 13
        P0 = []
        for t in range(2):
            for j in range(8):
                d = 16 * t + 8 * (j >> 2) + (j & 3)
                P0.append('ds_read_u16 %s, %s offset:%d' % (v(vP + 8 * t + j), v(ofs2 if (t == 1 and j >= 4) else ofs), d * 56))
        def selector(dst, tgt):
            R = []
            x, y, z = vT2 + 8, vT2 + 9, vT2 + 10
            R.append('v_lshrrev_b32 %s, 3, %s' % (v(x), v(tgt))); R.append('v_bfe_u32 %s, %s, 1, 1' % (v(y), v(tgt)))
            R.append('v_lshl_add_u32 %s, %s, 1, %s' % (v(x), v(x), v(y)))
            R.append('v_and_b32 %s, 1, %s' % (v(y), v(tgt))); R.append('v_lshlrev_b32 %s, 4, %s' % (v(y), v(y)))
            R.append('v_mov_b32 %s, 0x3f80' % v(z)); R.append('v_lshlrev_b32 %s, %s, %s' % (v(z), v(y), v(z)))
            R.append('v_bfe_u32 %s, %s, 2, 1' % (v(y), v(tgt))); R.append('v_cmp_eq_u32 vcc, %s, %s' % (v(y), v(hi)))
            R.append('v_cndmask_b32_e64 %s, 15, %s, vcc' % (v(x), v(x)))
            mk = [sN0, sHI + 0, sPB - 1, sN0]
            for i in range(8):
                r = (sN0, sT0)[i & 1]
                R.append('v_cmp_eq_u32_e64 s[%d:%d], %d, %s' % (r, r + 1, i, v(x)))
                R.append('v_cndmask_b32_e64 %s, 0, %s, s[%d:%d]' % (v(dst + i), v(z), r, r + 1))
            return R
        P1 = selector(vID, m) if br == 'B' else selector(vPH, fp)
        P2 = []
        P2 += ['v_mov_b32 %s, 0x3fb8aa3b' % v(vC),
               'v_bfe_u32 %s, %s, 3, 2' % (v(vT2 + 8), v(vL)), 'v_and_b32 %s, 7, %s' % (v(vPRE), v(vL)), 'v_lshlrev_b32 %s, 7, %s' % (v(vPRE), v(vPRE)), 'v_lshl_add_u32 %s, %s, 14, %s' % (v(vPRE), v(vT2 + 8), v(vPRE)),
               's_lshl_b32 %s, %s, 3' % (s(sGID), s(sBR)), 's_add_u32 %s, %s, %s' % (s(sGID), s(sGID), s(sRB)),
               's_and_b32 %s, %s, 3' % (s(sCB), s(sH)), 's_lshr_b32 %s, %s, 2' % (s(sRQ), s(sH)),
               's_lshl_b32 %s, %s, 4' % (s(sT3), s(sGID)), 's_add_u32 %s, %s, %s' % (s(sPB), s(sT3), s(sH)),
               's_lshl2_add_u32 %s, %s, %s' % (s(sT3), s(sGID), s(sW)), 's_lshl_b32 %s, %s, 6' % (s(sT3), s(sT3)), 's_add_u32 %s, %s, %s' % (s(sT3), s(sT3), s(sH)), 's_lshl_b32 %s, %s, 10' % (s(sOBX), s(sT3)),
               's_add_u32 %s, %s, %d' % (s(sOBX), s(sOBX), WS_O),
               's_and_b32 %s, %s, %d' % (s(sOB1), s(sH), self.cfg.tswap), 's_lshl_b32 %s, %s, 15' % (s(sOB1), s(sOB1)), 's_add_u32 %s, %s, %s' % (s(sOB1), s(sOB1), s(sOBX)),
               's_lshl_b32 %s, %s, 9' % (s(sT3), s(sGID)), 's_add_u32 %s, %s, %d' % (s(sT3), s(sT3), WS_FLAG),
               's_lshl_b32 %s, %s, 7' % (s(sFLW), s(sW)), 's_add_u32 %s, %s, %s' % (s(sFLW), s(sFLW), s(sT3)),
               's_lshl_b32 %s, %s, 7' % (s(sFLG), s(sRQ)), 's_add_u32 %s, %s, %s' % (s(sFLG), s(sFLG), s(sT3))]
        A = P2.append; t0, t1, t2 = vT2 + 8, vT2 + 9, vT2 + 10
        A('v_lshrrev_b32 %s, 4, %s' % (v(t0), v(vL))); A('v_bfe_u32 %s, %s, 2, 2' % (v(t1), v(vL))); A('v_xor_b32 %s, %s, %s' % (v(t1), v(t1), v(t0)))
        A('v_mul_u32_u24 %s, 896, %s' % (v(t0), v(t0))); A('v_lshl_add_u32 %s, %s, 6, %s' % (v(t0), v(t1), v(t0)))
        A('v_and_b32 %s, 3, %s' % (v(t2), v(vL))); A('v_lshl_add_u32 %s, %s, 4, %s' % (v(t0), v(t2), v(t0)))
        A('s_cmp_eq_u32 %s, 3' % s(sCB)); A('s_cselect_b32 %s, 1, 3' % s(sT3))
        A('v_cmp_lt_u32 vcc, %s, %s' % (s(sT3), v(t1))); A('v_mov_b32 %s, 0x%x' % (v(t2), OOB))
        A('v_cndmask_b32_e64 %s, %s, %s, vcc' % (v(vWOD), v(t0), v(t2)))
        A('s_lshl_b32 %s, %s, 3' % (s(sRECA), s(sPB))); A('s_add_u32 %s, %s, %d' % (s(sRECA), s(sRECA), WS_XCC))
        A('v_cmp_eq_u32 vcc, 0, %s' % v(vL)); A('v_and_b32 %s, 1, %s' % (v(t0), v(vL))); A('v_and_b32 %s, 2, %s' % (v(t1), v(vL)))
        A('v_cndmask_b32_e64 %s, %s, 0, vcc' % (v(vT), v(t2)))
        A('v_cmp_ne_u32_e64 s[%d:%d], 0, %s' % (sM1, sM1 + 1, v(t0))); A('v_cmp_ne_u32_e64 s[%d:%d], 0, %s' % (sM2, sM2 + 1, v(t1)))
        A('s_lshl1_add_u32 %s, %s, 1' % (s(sSET), s(sBR))); A('s_and_b32 %s, %s, %s' % (s(sSET), s(sSET), s(sW)))
        A('s_lshl_b32 %s, %s, 4' % (s(sT3), s(sBR))); A('s_add_u32 %s, %s, %s' % (s(sT3), s(sT3), s(sH))); A('s_lshl2_add_u32 %s, %s, %s' % (s(sT3), s(sT3), s(sSET)))
        A('s_lshl_b32 %s, %s, 13' % (s(sT3), s(sT3))); A('s_add_u32 %s, %s, %d' % (s(sPL0), s(sT3), WS_PART)); A('s_add_u32 %s, %s, 4096' % (s(sPL1), s(sPL0)))
        A('s_lshl_b32 %s, %s, 10' % (s(sT3), s(sRB))); A('s_add_u32 %s, %s, %s' % (s(sPX), s(sPL0), s(sT3))); A('s_lshl_b32 %s, %s, 10' % (s(sSET), s(sSET)))
        A('s_and_b32 %s, %s, 0xffffff80' % (s(sRECL), s(sRECA))); A('s_add_u32 %s, %s, %d' % (s(sSCR), s(sM0X), L_SCR))
        return P0, P1, P2

    def dma_x(self, i):
        L = ['s_add_u32 m0, %s, %d' % (s(sM0X), (i % 6) * 16384)]
        if i >= 7: L.append('s_add_u32 %s, %s, 28672' % (s(sXO + i - 7), s(sXO + i - 7)))
        for j in range(2 if self.cfg.fake_n2 else 4):
            L.append(('buffer_load_dwordx4 %s, s[%d:%d], %s offen offset:%d %s lds' % (v(vXD + j), SX, SX + 3, s(sXO + i % 7), 1024 * j, self.cfg.xfl), 'x%d' % i))
        return L
    def dma_w(self, i, part, base, tag, m0=True):
        L = ['s_add_u32 m0, %s, %d' % (s(sM0K), base + (i & 4) * 1024)] if m0 else []
        if self.cfg.fake_n2: L.append(('buffer_load_dwordx4 %s, s[%d:%d], %s offen offset:%d %s lds' % (v((vKV + 30, vV + 30, vKV + 31)[part]), SW, SW + 3, s(sWO_ + i), 1024 * (i & 3), self.cfg.wfl), tag))
        return L + [('buffer_load_dwordx4 %s, s[%d:%d], %s offen offset:%d %s lds' % (v((vWDq, vWD, vWDv)[part]), SW, SW + 3, s(sWO_ + i), 1024 * (i & 3), self.cfg.wfl), tag)]
    def xfrag(self, i, ks, tile): return aX + ((i * 4 + ks) * 2 + tile) * 4
    def wread(self, slot, basev, off):
        r = aWR + 4 * (slot % 8)
        return ['ds_read_b64_tr_b16 %s, %s offset:%d' % (a(r + 2 * u, 2), v(basev), off + 256 * u) for u in range(2)]

    def xiter(self, i, extra=()):
        R = []; A = R.append
        ch, tile, sl = i % 7, i // 7, i % 6
        wk = ' ' + self.cfg.wkbar[i] if i in self.cfg.wkbar else ''
        A('@waitvm x%d' % i + wk)
        if wk: A('s_barrier')
        if i == 0: R += self.stamp(1)
        for ks in range(4):
            R += self.wread(4 * i + ks, vWRk, ch * 1024 + ks * 7168)
            R.append(('ds_read_b128 %s, %s offset:%d' % (a(self.xfrag(ch, ks, tile), 4), v((vXR2 if sl >= 4 else vXR) + ks), (sl & 3) * 16384), 'xr%d' % i))
        D = self.cfg.depth
        if i + D < 14:
            if i + D >= 6: A('@waitlgkm xr%d' % (i + D - 6))
            R += self.dma_x(i + D)
        R += self.touches(i)
        R += extra
        for ks in range(4):
            R.append((mfma(vK + 16 * tile, a(aWR + 4 * ((4 * i + ks) % 8), 4), a(self.xfrag(ch, ks, tile), 4), None if (ch == 0 and ks == 0) else vK + 16 * tile), 'kk'))
        return R
    def part1(self, br):
        B = br == 'B'
        P = self.setup2(br)
        R = []
        for i in range(2, 7): R += self.offs(i)
        W = lambda i: self.dma_w(i, 1, L_WK, 'wk%d' % i)
        su = self.setup() + P[2]
        R = su + self.touches('a') + R if 'a' in self.cfg.touch else R
        X = lambda i: self.dma_x(i) if i < self.cfg.depth else []
        late = {}
        for tok in self.cfg.order0.split():
            if '@' in tok:
                tok, at = tok.split('@'); late.setdefault(int(at), []).extend(W(int(tok[1])))
            else: R += W(int(tok[1])) if tok[0] == 'w' else X(int(tok[1]))
        R += ([] if 'a' in self.cfg.touch else su) + P[1]
        pk = []
        for u in range(8): pk += ['v_lshl_or_b32 %s, %s, 16, %s' % (v(vPH + u), v(vP + 2 * u + 1), v(vP + 2 * u)), 'v_xor_b32 %s, %s, %s' % (v(vPH + u), s(sSGN), v(vPH + u))]
        c = self.cfg
        for part, n, at, base, tg in ((2, c.wv_early, c.wv_at, L_WV, 'wv'),):
            for k in range(n): late.setdefault(at - c.depth, []).extend(self.dma_w(k, part, base, '%s%d' % (tg, k), k in (0, 4)))
        for i in range(7): R += self.xiter(i, late.get(i, []) + (P[0] + pk if (i == 1 and B) else []))
        return self.sched(R, 'part1')

    def gemm(self, acc, basev, off, transposed, first_slot, hooks=None, tiles=(0, 1), lead=False, ks=range(28)):
        L = []; hooks = hooks or {}
        for k in ks:
            L += hooks.get(k, [])
            w = a(aWR + 4 * ((first_slot + k) % 8), 4)
            L += self.wread(first_slot + k, basev, off + (k >> 2) * 1024 + (k & 3) * 7168)
            for tile in tiles:
                x = a(self.xfrag(k // 4, k % 4, tile), 4)
                L.append((mfma(acc + 16 * tile, w if transposed else x, x if transposed else w, None if k == 0 else acc + 16 * tile), 'lead' if (lead and tile == 0) else None))
        return L

    def pack(self, r, n=8): return ['v_cvt_pk_bf16_f32 %s, %s, %s' % (v(r + u), v(r + 2 * u), v(r + 2 * u + 1)) for u in range(n)]
    def zero_hi_pads(self, r): return ['v_cndmask_b32_e64 %s, %s, 0, s[%d:%d]' % (v(r + u), v(r + u), sHI, sHI + 1) for u in (6, 7)]

    def softmax(self, p, ep, en, tmp, pk):
        L = []; A = L.append
        Z, T, S1, S2 = tmp, tmp + 2, tmp + 4, tmp + 6
        VAL = [0, 1, 2, 3, 4, 5, 6, 8, 9, 10, 11, 12, 13, 14]
        if pk:
            for r in (ep + 7, ep + 15, en + 7, en + 15): A('v_mov_b32 %s, 0' % v(r))
        for (d, sg) in ((Z, ''), (T, '-')):
            A('v_max3_f32 %s, %s%s, %s%s, %s%s' % (v(d), sg, v(p), sg, v(p + 1), sg, v(p + 2)))
            A('v_max3_f32 %s, %s%s, %s%s, %s%s' % (v(d + 1), sg, v(p + 8), sg, v(p + 9), sg, v(p + 10)))
            for (x, y) in ((3, 4), (5, 6)): A('v_max3_f32 %s, %s, %s%s, %s%s' % (v(d), v(d), sg, v(p + x), sg, v(p + y)))
            for (x, y) in ((11, 12), (13, 14)): A('v_max3_f32 %s, %s, %s%s, %s%s' % (v(d + 1), v(d + 1), sg, v(p + x), sg, v(p + y)))
            A('v_max_f32 %s, %s, %s' % (v(d), v(d), v(d + 1)))
        A('v_permlane32_swap_b32 %s, %s' % (v(Z), v(T))); A('v_max_f32 %s, %s, %s' % (v(Z), v(Z), v(T)))
        A('v_mul_f32 %s, %s, %s' % (v(Z), v(vC), v(Z))); A('v_mov_b32 %s, %s' % (v(T), v(Z)))
        A('v_permlane32_swap_b32 %s, %s' % (v(Z), v(T)))
        for (e, z, ng) in ((ep, Z, 0), (en, T, 1)):
            for u in VAL:
                if pk and u not in (6, 14):
                    if u & 1 == 0: A('v_pk_fma_f32 %s, %s, %s, %s op_sel_hi:[1,0,0] neg_lo:[%d,0,1] neg_hi:[%d,0,1]' % (v(e + u, 2), v(p + u, 2), v(vC, 2), v(z, 2), ng, ng))
                else: A('v_fma_f32 %s, %s%s, %s, -%s' % (v(e + u), '-' if ng else '', v(p + u), v(vC), v(z)))
                A('v_exp_f32 %s, %s' % (v(e + u), v(e + u)))
        for (e, S, z) in ((ep, S1, Z), (en, S2, T)):
            if pk:
                A('v_pk_add_f32 %s, %s, %s' % (v(S, 2), v(e, 2), v(e + 2, 2)))
                for u in (4, 6, 8, 10, 12, 14): A('v_pk_add_f32 %s, %s, %s' % (v(S, 2), v(S, 2), v(e + u, 2)))
            else:
                A('v_add_f32 %s, %s, %s' % (v(S), v(e), v(e + 1))); A('v_add_f32 %s, %s, %s' % (v(S + 1), v(e + 8), v(e + 9)))
                for u in range(2, 7):
                    A('v_add_f32 %s, %s, %s' % (v(S), v(S), v(e + u))); A('v_add_f32 %s, %s, %s' % (v(S + 1), v(S + 1), v(e + 8 + u)))
            A('v_add_f32 %s, %s, %s' % (v(S), v(S), v(S + 1)))
        A('v_permlane32_swap_b32 %s, %s' % (v(S1), v(S2))); A('v_add_f32 %s, %s, %s' % (v(S1), v(S1), v(S2)))
        A('v_rcp_f32 %s, %s' % (v(S1), v(S1))); A('v_mov_b32 %s, %s' % (v(S2), v(S1)))
        A('v_permlane32_swap_b32 %s, %s' % (v(S1), v(S2)))
        for (e, z) in ((ep, S1), (en, S2)):
            for u in range(8):
                if pk: A('v_pk_mul_f32 %s, %s, %s op_sel_hi:[1,0]' % (v(e + 2 * u, 2), v(e + 2 * u, 2), v(z, 2)))
                else:
                    for k in range(1 if u in (3, 7) else 2): A('v_mul_f32 %s, %s, %s' % (v(e + 2 * u + k), v(e + 2 * u + k), v(z)))
                A('v_cvt_pk_bf16_f32 %s, %s, %s' % (v(e + u), v(e + 2 * u), '0' if (u in (3, 7) and not pk) else v(e + 2 * u + 1)))
        return L

    def elu1(self, p, e, pads, pk):
        L = []; A = L.append
        for u in range(0, 16, 2):
            n = 1 if (pads and u in (6, 14)) else 2
            if pk and n == 2: A('v_pk_mul_f32 %s, %s, %s op_sel_hi:[1,0]' % (v(e + u, 2), v(p + u, 2), v(vC, 2)))
            for k in range(n):
                if not (pk and n == 2): A('v_mul_f32 %s, %s, %s' % (v(e + u + k), v(vC), v(p + u + k)))
                A('v_exp_f32_e64 %s, %s clamp' % (v(e + u + k), v(e + u + k)))
                A('v_max_f32 %s, 0x358637bd, %s' % (v(p + u + k), v(p + u + k)))
                if not (pk and n == 2): A('v_add_f32 %s, %s, %s' % (v(e + u + k), v(e + u + k), v(p + u + k)))
            if pk and n == 2: A('v_pk_add_f32 %s, %s, %s' % (v(e + u, 2), v(e + u, 2), v(p + u, 2)))
            A('v_cvt_pk_bf16_f32 %s, %s, %s' % (v(e + u // 2), v(e + u), v(e + u + 1) if n == 2 else '0'))
        return L

    def nonce_load(self): return [('global_load_dwordx2 %s, %s, s[%d:%d] sc1' % (v(vN, 2), v(vZ), sDBG, sDBG + 1), 'nonce')]
    def use_nonce(self, br):
        L = []; A = L.append
        t0, t1 = vXR2, vXR2 + 1
        A('v_readfirstlane_b32 %s, %s' % (s(sN0), v(vN))); A('v_readfirstlane_b32 %s, %s' % (s(sN1), v(vN + 1)))
        A('v_cndmask_b32_e64 %s, %s, %s, s[%d:%d]' % (v(t0), v(vN), v(vN + 1), sM2, sM2 + 1))
        A('v_lshlrev_b32 %s, 16, %s' % (v(t1), v(t0))); A('v_and_b32 %s, 0xffff0000, %s' % (v(t0), v(t0)))
        A('v_cndmask_b32_e64 %s, %s, %s, s[%d:%d]' % (v(vTAG), v(t1), v(t0), sM1, sM1 + 1))
        if br == 'A': A('v_and_b32 %s, %s, %s' % (v(vTAG), s(sXB), v(vTAG)))
        A('s_and_b32 %s, %s, 0xfffffff0' % (s(sROT), s(sN1))); A('s_or_b32 %s, %s, %s' % (s(sREC), s(sXCC), s(sROT)))
        A('v_mov_b32 %s, %s' % (v(vN + 1), s(sREC)))
        L.append(('buffer_store_dwordx2 %s, %s, s[%d:%d], %s offen sc1' % (v(vN, 2), v(vT), SWS, SWS + 3, s(sRECA)), 'side'))
        return L
    def nonce_chk(self, br):
        return ['L_nonce_chk%s:' % br, 's_min_u32 %s, %s, %s' % (s(sT2), s(sN0), s(sN1)), 's_cmp_eq_u32 %s, 0' % s(sT2), 's_cbranch_scc1 L_nonce_retry%s' % br]
    def nonce_retry(self, br):
        return ['L_nonce_retry%s:' % br, '@assume_idle', 's_sleep 1'] + SPIN + self.nonce_load() + self.use_nonce(br) + ['s_branch L_nonce_chk%s' % br]
    def side_loads(self):
        c = self.cfg
        L = []
        L += self.touches('p2')
        if not any('p' in x for x in c.touch.values()): L.append(('buffer_load_dword %s, %s, s[%d:%d], %s offen %s' % (v(vDUM), v(vPRE), SWS, SWS + 3, s(sOBX), c.prefl), 'pre'))
        L += [('buffer_load_dword %s, %s, s[%d:%d], %s offen %s' % (v(vDUM), v(vZ), SWS, SWS + 3, s(sFLW), c.prefl), 'side')]
        return L

    def middle(self, br):
        c = self.cfg; B = br == 'B'; NT = 2 if B else 1
        L = []; A = L.append
        R = []; A = R.append
        if not B:
            A('s_cmp_ge_u32 %s, 2' % s(sW)); A('s_cselect_b32 %s, 0, -1' % s(sXB))
        tn = lambda tile, sg: (vP if sg == 0 else vK) + 16 * tile
        def featk(tile):
            X = self.pack(vK + 16 * tile) + self.zero_hi_pads(vK + 16 * tile)
            for t in range(2):
                k4 = v(vK + 16 * tile + 4 * t, 4); w4 = v(vPH + 4 * t, 4)
                X.append((mfma(vP + 16 * tile, w4 if B else k4, k4 if B else w4, None if t == 0 else vP + 16 * tile), 'hi'))
            X += self.softmax(vP + 16 * tile, vE + 32 * tile, vE + 32 * tile + 16, vT2 + 8 * tile, c.pk0 and tile == 0) if B else self.elu1(vP + 16 * tile, vE + 32 * tile, False, c.pk0 and tile == 0)
            if B:
                for sg in range(2):
                    for t in range(2):
                        X.append((mfma(tn(tile, sg), v(vE + 32 * tile + 16 * sg + 4 * t, 4), v(vID + 4 * t, 4), None if t == 0 else tn(tile, sg)), 'hi2' if tile else 'hi3'))
                    X += self.pack(tn(tile, sg))
            return X
        wv = []
        for k in range(c.wv_early, 7): wv += self.dma_w(k, 2, L_WV, 'wv%d' % k, k in (c.wv_early, 4))
        R += featk(0)
        for i in range(7, 14):
            R += self.xiter(i, wv if i == max(7, 13 - c.depth) else ())
            if i - 7 < c.wv_early:
                R += self.gemm(vV, vWRk, L_WV - L_WK, False, 4, {0: ['@waitvm wv%d' % (c.wv_early - 1), 's_barrier']}, ks=range(4 * (i - 7), 4 * (i - 6)))
        if c.stamps and not c.lite: R.append(('s_memtime s[%d:%d]' % (SX + 2, SX + 3), 'nowait'))
        R += featk(1)
        wq = self.nonce_load()
        for k in range(c.wq_pre): wq += self.dma_w(k, 0, L_WQ, 'wq%d' % k, k in (0, 4))
        wq += ([] if c.pre_q else self.side_loads()) + self.use_nonce(br)
        hooks = {}; k0 = c.wv_early
        for k1 in c.wv_bar:
            hooks[4 * k0] = (['@waitlgkm xr13'] if k0 == c.wv_early else []) + ['@waitvm wv%d' % (k1 - 1), 's_barrier'] + (wq if k0 == max(c.wq_at, c.wv_early) else []); k0 = k1
        R += self.gemm(vV, vWRk, L_WV - L_WK, False, 0, hooks, lead=True, ks=range(4 * c.wv_early, 28))
        A('v_mov_b32 %s, 0x3f803f80' % v(vXR2 + 3))
        for tile in range(2):
            R += self.pack(vV + 16 * tile)
            for u in range(8): A('v_cndmask_b32_e64 %s, %s, %s, s[%d:%d]' % (v(vV + 16 * tile + u), v(vV + 16 * tile + u), v(vXR2 + 3), sE28, sE28 + 1))
        for tile in range(2):
            for sg in reversed(range(NT)):
                src = tn(tile, sg) if B else vE + 32 * tile
                for t in range(2):
                    A(mfma(vKV + 16 * sg, v(src + 4 * t, 4), v(vV + 16 * tile + 4 * t, 4), None if (tile == 0 and t == 0) else vKV + 16 * sg))
        t0, t1, t2 = vXR, vXR + 1, vXR2 + 2
        A('v_add_u32 %s, %s, %s' % (v(t0), s(sSCR), v(vL16)))
        for q in ((4, 5, 6, 7, 2, 3) if B else range(4)): A('ds_write_b128 %s, %s offset:%d' % (v(t0), v(vKV + 4 * q, 4), 16384 * (q >> 2) + 1024 * (q & 3)))
        for d in range(1, 4): A('v_xor_b32 %s, %d, %s' % (v(t0 + d), 4096 * d, v(t0)))
        if not B:
            A('s_cmp_ge_u32 %s, 2' % s(sW)); A('s_cselect_b32 %s, 0x%x, 0' % (s(sA), OOB)); A('v_add_u32 %s, %s, %s' % (v(t2), s(sA), v(vL16)))
        A('v_mov_b32 %s, 0xffff' % v(vXD))
        if c.thr: L += ['s_lshr_b32 %s, 0x2a54, %s' % (s(sT2), s(sH)), 's_bitcmp0_b32 %s, 0' % s(sT2), 's_cselect_b64 vcc, -1, 0']
        L += self.throttle(self.sched(R, 'phase2' + br, boost={'hi': 9000, 'kk': 12000, 'lead': 5000, 'hi2': c.hi2, 'hi3': c.hi2 + c.t0boost}, tight=c.p2_tight), br)
        if c.stamps and not c.lite: L += ['@waitlgkm_all', 'v_writelane_b32 %s, %s, 2' % (v(vST), s(SX + 2))]
        L += self.stamp(3)
        g0 = len(L)
        L += ['s_getpc_b64 s[%d:%d]' % (sTAB, sTAB + 1), 'L_pc%s:' % br, 's_add_u32 %s, %s, L_tab - L_pc%s' % (s(sTAB), s(sTAB), br), 's_addc_u32 %s, %s, 0' % (s(sTAB + 1), s(sTAB + 1))]
        L += self.nonce_chk(br)
        mg = c.merge_q
        X = []; A = X.append
        A('@waitlgkm_all')
        if mg: A('@waitvm wq%d' % (mg - 1))
        A('s_barrier')
        L += X; self.glue(L[g0:]); X = []; A = X.append
        for d in range(1, 4):
            for hf in range(2): X.append(('ds_read_b128 %s, %s offset:%d' % (v(vV + 8 * d + 4 * hf, 4), v(t0 + d), (16384 * (d >> 1) if B else 0) + 2048 * (d & 1) + 1024 * hf), 'exr'))
        for d in range(1, 4):
            if mg:
                for u in range(7): A('v_add_f32 %s, %s, %s' % (v(vKV + u), v(vKV + u), v(vV + 8 * d + u)))
            else:
                for u in range(0, 8, 2): A('v_pk_add_f32 %s, %s, %s' % (v(vKV + u, 2), v(vKV + u, 2), v(vV + 8 * d + u, 2)))
        X += self.pack(vKV, 4)
        A('v_bfi_b32 %s, %s, %s, %s' % (v(vKV + 3), v(vXD), v(vKV + 3), v(vTAG)))
        X.append(('buffer_store_dwordx4 %s, %s, s[%d:%d], %s offen sc1' % (v(vKV, 4), v(vL16 if B else t2), SWS, SWS + 3, s(sPX)), 'pst'))
        tm = c.q_tm and B
        X2 = ['@waitlgkm exr', '@waitvm wq6', 's_barrier']
        if mg: R = X + self.gemm(vK, vWRq, L_WQ, True, 4, tiles=(0,) if tm else (0, 1), ks=range(4 * mg)) + X2
        else:
            L += self.glue(X + self.stamp(4) + X2); R = []
        A = R.append
        t0, t1, t2 = vXR, vXR + 1, vXR + 2
        A('v_add_u32 %s, 2560, %s' % (v(vXD + 1), v(vWOD))); A('v_xor_b32 %s, 32, %s' % (v(vXD + 3), v(vWOD)))
        A('v_add_u32 %s, 5120, %s' % (v(vXD + 2), v(vXD + 3))); A('v_add_u32 %s, 7680, %s' % (v(vXD + 3), v(vXD + 3)))
        A('s_mul_i32 %s, %s, 14336' % (s(sWOS), s(sW))); A('s_lshl_b32 %s, %s, 8' % (s(sA), s(sCB))); A('s_add_u32 %s, %s, %s' % (s(sWOS), s(sWOS), s(sA)))
        A('v_and_b32 %s, 15, %s' % (v(vXR + 3), v(vL))); A('v_lshlrev_b32 %s, 3, %s' % (v(vXR + 3), v(vXR + 3)))
        A('v_lshrrev_b32 %s, 4, %s' % (v(t1), v(vL))); A('v_lshlrev_b32 %s, 1, %s' % (v(t0), v(vXR + 3))); A('v_lshl_add_u32 %s, %s, 10, %s' % (v(t2), v(t1), v(t0)))
        A('s_add_u32 %s, %s, %d' % (s(sB_), s(sSET if B else sM0W), L_MISC))
        A('v_lshl_add_u32 %s, %s, 3, %s' % (v(vXR2 + 3), v(t1), v(t0))); A('v_add_u32 %s, %s, %s' % (v(t0), s(sB_), v(vXR2 + 3))); A('v_add_u32 %s, %d, %s' % (v(vXR2 + 3), L_MISC + 4096, v(vXR2 + 3)))
        A('v_cndmask_b32_e64 %s, %s, %s, s[%d:%d]' % (v(vXR2 + 3), v(t0), v(vXR2 + 3), sHI, sHI + 1))
        if B: A('v_mov_b32 %s, %s' % (v(t0), v(t2)))
        else: A('v_sub_u32 %s, %s, %s' % (v(t0), v(vXR2 + 2), v(vL16))); A('v_add_u32 %s, %s, %s' % (v(t0), v(t0), v(t2)))
        A('v_and_b32 %s, 1, %s' % (v(t1), v(vL))); A('v_lshlrev_b32 %s, 4, %s' % (v(t1), v(t1))); A('v_mov_b32 %s, 0x3f80' % v(t2)); A('v_lshlrev_b32 %s, %s, %s' % (v(t2), v(t1), v(t2)))
        A('v_and_b32 %s, 15, %s' % (v(t1), v(vL))); A('v_cmp_eq_u32 vcc, 7, %s' % v(t1)); A('v_cndmask_b32_e64 %s, %s, 0, vcc' % (v(t2), v(t2))); A('v_lshrrev_b32 %s, 1, %s' % (v(t1), v(t1)))
        for i in range(4):
            r = (sT0, sFAR)[i & 1]
            A('v_cmp_eq_u32_e64 s[%d:%d], %d, %s' % (r, r + 1, i, v(t1))); A('v_cndmask_b32_e64 %s, 0, %s, s[%d:%d]' % (v(vID + i), v(t2), r, r + 1))
        wo_block = self.wo_block
        if c.pre_q: R += self.side_loads()
        for m in range(c.wo_before): R += wo_block(m)
        npart = len(R); R += self.part_loads(br)
        for m in range(c.wo_before, c.wo_mid): R += wo_block(m)
        tabs = self.table_loads()
        if not tm: R += self.gemm(vK, vWRq, L_WQ, True, 4, ks=range(4 * mg, 28))
        for tile in range(2):
            if tm: R += self.gemm(vK, vWRq, L_WQ, True, 4 + 28 * tile, tiles=(tile,), ks=range(0 if tile else 4 * mg, 28))
            R += self.pack(vK + 16 * tile) + self.zero_hi_pads(vK + 16 * tile)
            for t in range(2):
                R.append((mfma(vP + 16 * tile, v(vPH + 4 * t, 4), v(vK + 16 * tile + 4 * t, 4), None if t == 0 else vP + 16 * tile), 'hi' if tile == 0 else None))
        for tile in range(2):
            pk = not (tm and tile == 0)
            R += self.softmax(vP + 16 * tile, vE + 32 * tile, vE + 32 * tile + 16, vT2 + 8 * tile, pk) if B else self.elu1(vP + 16 * tile, vE + 32 * tile, True, True)
        vIM = [vWD, vWDq, vXR2 + 2, vWRq]
        R += ['s_add_u32 %s, %s, %d' % (s(sB_), s(sSET), L_MISC), 'v_add_u32 %s, %s, %s' % (v(vIM[0]), s(sB_), v(vL16))]
        for q in range(1, 2 * NT): R.append('v_xor_b32 %s, %d, %s' % (v(vIM[q]), 1024 * q, v(vIM[0])))
        if c.tab_late: late0 = tabs; tabs = []
        else: late0 = []
        L += self.sched(R + tabs, 'q' + br, release={npart: (c.rel_part if B else c.rel_partA) + (330 if mg else 0)}, boost={'hi': 4000, 'pst': 30000, 'exr': 40000}, tight=c.q_tight)
        L += self.stamp(6)
        A = L.append
        A('@waitvm part'); self.glue(L[-1:])
        L += self.stamp(5)
        A('L_part_chk%s:' % br)
        R = []; A = R.append
        G0 = vKV
        for p in range(8): A('v_mfma_f32_16x16x32_bf16 %s, %s, %s, %s' % (v(vV + 4 * (p & 3), 4), v(vID, 4), v(G0 + 4 * p, 4), v(vV + 4 * (p & 3), 4) if p >= 4 else '0'))
        x, z, y = vT2, vT2 + 1, vT2 + 12
        A('v_max3_u32 %s, %s, %s, %s' % (v(x), v(G0 + 3), v(G0 + 7), v(G0 + 11))); A('v_min3_u32 %s, %s, %s, %s' % (v(y), v(G0 + 3), v(G0 + 7), v(G0 + 11)))
        A('v_max3_u32 %s, %s, %s, %s' % (v(x), v(x), v(G0 + 15), v(G0 + 19))); A('v_min3_u32 %s, %s, %s, %s' % (v(y), v(y), v(G0 + 15), v(G0 + 19)))
        A('v_max3_u32 %s, %s, %s, %s' % (v(x), v(x), v(G0 + 23), v(G0 + 27))); A('v_min3_u32 %s, %s, %s, %s' % (v(y), v(y), v(G0 + 23), v(G0 + 27)))
        A('v_max_u32 %s, %s, %s' % (v(x), v(x), v(G0 + 31))); A('v_min_u32 %s, %s, %s' % (v(y), v(y), v(G0 + 31)))
        A('v_xor_b32 %s, %s, %s' % (v(x), v(x), v(vTAG))); A('v_xor_b32 %s, %s, %s' % (v(y), v(y), v(vTAG)))
        A('v_or_b32 %s, %s, %s' % (v(x), v(x), v(y))); A('v_lshrrev_b32 %s, 16, %s' % (v(x), v(x)))
        A('v_xor_b32 %s, %s, %s' % (v(y), s(sN0), v(vN))); A('v_xor_b32 %s, %s, %s' % (v(z), s(sREC), v(vN + 1)))
        A('v_cmp_ne_u32_e64 s[%d:%d], 0, %s' % (sFAR, sFAR + 1, v(z)))
        A('v_lshrrev_b32 %s, 4, %s' % (v(z), v(z))); A('v_or3_b32 %s, %s, %s, %s' % (v(x), v(x), v(y), v(z)))
        A('v_cmp_ne_u32 vcc, 0, %s' % v(x))
        L += self.sched(R, 'sum' + br)
        A = L.append
        A('s_cbranch_vccnz L_part_retry%s' % br)
        late = list(late0)
        for m in range(c.wo_mid, c.wo_imp): late += wo_block(m)
        nl = c.late0
        L += late[:nl]
        for q in range(4): L += self.pack(vV + 4 * q, 2)
        for q in range(4): A('ds_write_b64 %s, %s offset:%d' % (v(vXR2 + 3), v(vV + 4 * q, 2), 256 * q))
        A('@waitlgkm_all'); A('s_barrier')
        self.glue(L[-nl - 15:])
        R = []; A = R.append
        R += late[nl:]
        early = self.wo_reads()[:3 + 8 * c.wo_early]
        for q in range(2 * NT): A('ds_read_b128 %s, %s' % (v(vV + 16 + 4 * q, 4), v(vIM[q])))
        for tile in range(2):
            for q in range(2 * NT):
                A(mfma(vP + 16 * tile, v(vV + 16 + 4 * q, 4), v(vE + 32 * tile + 16 * (q >> 1) + 4 * (q & 1), 4), None if q == 0 else vP + 16 * tile))
        for tile in range(2):
            P = vP + 16 * tile; d = vT2 + 4 + 4 * tile
            A('v_mov_b32 %s, %s' % (v(d), v(P + 12))); A('v_permlane32_swap_b32 %s, %s' % (v(P + 12), v(d)))
            A('v_add_f32 %s, 0x358637bd, %s' % (v(d), v(d))); A('v_rcp_f32 %s, %s' % (v(d), v(d)))
            for u in range(8):
                if tile: A('v_pk_mul_f32 %s, %s, %s op_sel_hi:[1,0]' % (v(P + 2 * u, 2), v(P + 2 * u, 2), v(d, 2)))
                else:
                    for k in range(2): A('v_mul_f32 %s, %s, %s' % (v(P + 2 * u + k), v(P + 2 * u + k), v(d)))
                A('v_cvt_pk_bf16_f32 %s, %s, %s' % (v(P + u), v(P + 2 * u), v(P + 2 * u + 1)))
        A('v_mov_b32 %s, %s' % (v(vN), s(sN0))); A('v_mov_b32 %s, %s' % (v(vN + 1), s(sN1)))
        A('s_lshl_b32 %s, %s, 3' % (s(sT2), s(sH))); A('s_add_u32 %s, %s, %s' % (s(sC_), s(sFLW), s(sT2))); A('s_xor_b32 %s, %s, 32768' % (s(sOBX), s(sOB1))); A('s_add_u32 %s, %s, 16384' % (s(sA), s(sOB1))); A('s_add_u32 %s, %s, 16384' % (s(sB_), s(sOBX)))
        L += self.sched(R + early, 'o' + br, lowds={id(x) for x in early}, vmlow=True)
        L += self.stamp(7)
        A = L.append
        if c.force_global: A('s_branch L_far')
        A('s_cmp_lg_u64 s[%d:%d], 0' % (sFAR, sFAR + 1)); A('s_cbranch_scc1 L_far')
        return L
    def publish(self, fl):
        c = self.cfg; L = []
        for tile in range(2):
            for t in range(2):
                L.append(('buffer_store_dwordx4 %s, %s, s[%d:%d], %s offen %s' % (v(vP + 16 * tile + 4 * t, 4), v(vL16), SWS, SWS + 3, s(((sOB1, sA), (sOBX, sB_))[tile][t]), fl), 'ost'))
        for m in range(c.wo_imp, 7 - c.wo_g3): L += self.wo_block(m)
        L += self.p3_setup()
        L = self.sched(L, 'pub')
        L += ['@waitvm ost']
        L.append('buffer_store_dwordx2 %s, %s, s[%d:%d], %s offen %s' % (v(vN, 2), v(vT), SWS, SWS + 3, s(sC_), fl))
        return L
    def wo_block(self, m, tag='wo'):
        X = ['s_add_u32 m0, %s, %d' % (s(sM0X), L_WO + 16384 * m)]
        if m: X.append('s_add_u32 %s, %s, %d' % (s(sWOS), s(sWOS), 57344))
        return X + [('buffer_load_dwordx4 %s, s[%d:%d], %s offen offset:%d %s lds' % (v(vXD + j if j else vWOD), SWO, SWO + 3, s(sWOS), 1024 * j, self.cfg.wofl), tag) for j in range(4)]
    def part_loads(self, br):
        L = [('buffer_load_dwordx2 %s, %s, s[%d:%d], %s offen sc1' % (v(vN, 2), v(vXR + 3), SWS, SWS + 3, s(sRECL)), 'rec')]
        for p in range(8):
            L.append(('buffer_load_dwordx4 %s, %s, s[%d:%d], %s offen offset:%d sc1' % (v(vKV + 4 * p, 4), v(vXR), SWS, SWS + 3, s(sPL1 if p >= 4 else sPL0), 256 * (p & 3)), 'part'))
        return L
    def part_retry(self, br):
        P = self.part_loads(br)
        L = ['L_part_retry%s:' % br, '@assume_idle', '@waitvm_all'] + SPIN + [P[0]]
        for p in range(8):
            L += ['v_xor_b32 %s, %s, %s' % (v(vT2), v(vKV + 4 * p + 3), v(vTAG)), 'v_cmp_lt_u32 vcc, 0xffff, %s' % v(vT2), 's_cbranch_vccz L_got%s%d' % (br, p), (P[1 + p][0], 'untracked'), 'L_got%s%d:' % (br, p)]
        return L + ['@waitvm_all', 's_branch L_part_chk%s' % br]
    def far(self):
        return ['L_far:', '@assume_idle', '@waitvm_all', 's_nop 4'] + self.publish('sc1') + ['s_branch L_join']
    def wo_reads(self):
        b = [vWO0, vWO0 + 1, vXR2, vXR2 + 1]
        L = ['v_xor_b32 %s, 32, %s' % (v(b[1]), v(b[0])), 'v_add_u32 %s, 0x10000, %s' % (v(b[2]), v(b[0])), 'v_add_u32 %s, 0x10000, %s' % (v(b[3]), v(b[1]))]
        for k in range(14):
            for nt in range(2):
                for i in range(2):
                    off = (32 * k + 4 * i) * 256
                    L.append('ds_read_b64_tr_b16 %s, %s offset:%d' % (a(8 * k + 4 * nt + 2 * i, 2), v(b[nt + 2 * (off >> 16)]), off & 0xffff))
        return L

    def p3_setup(self):
        L = []; A = L.append
        A('s_lshl_b32 %s, %s, 2' % (s(sT2), s(sRB))); A('s_add_u32 %s, %s, %s' % (s(sT2), s(sT2), s(sRQ))); A('s_mul_i32 %s, %s, %d' % (s(sD_), s(sT2), 64 * 1792))
        A('s_mul_i32 %s, %s, 896' % (s(sT2), s(sBR))); A('s_add_u32 %s, %s, %s' % (s(sD_), s(sD_), s(sT2)))
        A('s_lshl_b32 %s, %s, 2' % (s(sT2), s(sCB))); A('s_add_u32 %s, %s, %s' % (s(sT2), s(sT2), s(sW)))
        A('s_cmp_ge_u32 %s, 14' % s(sT2)); A('s_cselect_b32 %s, 0x%x, 0' % (s(sA), OOB))
        A('s_lshl_b32 %s, %s, 6' % (s(sT2), s(sT2))); A('s_add_u32 %s, %s, %s' % (s(sXO), s(sD_), s(sT2)))
        for b in range(1, 4): A('s_add_u32 %s, %s, %d' % (s(sXO + b), s(sXO), b * 16 * 1792))
        t0, t1, t2 = vT2 + 10, vT2 + 11, vT2 + 12
        A('s_lshl_b32 %s, %s, 12' % (s(sB_), s(sW))); A('s_add_u32 %s, %s, %d' % (s(sB_), s(sB_), L_OT))
        A('v_and_b32 %s, 15, %s' % (v(t0), v(vL))); A('v_lshlrev_b32 %s, 4, %s' % (v(vS16), v(t0))); A('v_lshl_add_u32 %s, %s, 6, %s' % (v(t0), v(t0), s(sB_)))
        A('v_bfe_u32 %s, %s, 4, 1' % (v(t1), v(vL))); A('v_lshl_add_u32 %s, %s, 3, %s' % (v(t0), v(t1), v(t0)))
        A('v_bfe_u32 %s, %s, 1, 2' % (v(t1), v(vL))); A('v_lshrrev_b32 %s, 5, %s' % (v(t2), v(vL))); A('v_xor_b32 %s, %s, %s' % (v(t1), v(t1), v(t2)))
        A('v_lshl_add_u32 %s, %s, 4, %s' % (v(vOW), v(t1), v(t0))); A('v_xor_b32 %s, 32, %s' % (v(vOW + 1), v(vOW)))
        A('v_bfe_u32 %s, %s, 3, 2' % (v(t1), v(vL))); A('v_xor_b32 %s, %s, %s' % (v(t1), v(t1), v(vL))); A('v_and_b32 %s, 3, %s' % (v(t1), v(t1)))
        A('v_lshrrev_b32 %s, 2, %s' % (v(t0), v(vL))); A('v_lshl_add_u32 %s, %s, 6, %s' % (v(t2), v(t0), s(sB_))); A('v_lshl_add_u32 %s, %s, 4, %s' % (v(vOR), v(t1), v(t2)))
        A('v_mul_u32_u24 %s, 1792, %s' % (v(t0), v(t0))); A('v_and_b32 %s, 3, %s' % (v(t1), v(vL))); A('v_lshl_add_u32 %s, %s, 4, %s' % (v(t0), v(t1), v(t0)))
        A('v_add_u32 %s, %s, %s' % (v(vOG), s(sA), v(t0)))
        A('v_and_b32 %s, 15, %s' % (v(t0), v(vL))); A('v_cmp_eq_u32_e64 s[%d:%d], %s, %s' % (sOWN, sOWN + 1, s(sH), v(t0)))
        for r in vOF: A('v_add_u32 %s, %s, %s' % (v(r), v(r), v(vS16)))
        A('s_lshl2_add_u32 %s, %s, %s' % (s(sT2), s(sGID), s(sRQ))); A('s_lshl2_add_u32 %s, %s, %s' % (s(sT2), s(sT2), s(sW)))
        A('s_lshl_b32 %s, %s, 14' % (s(sT2), s(sT2))); A('s_add_u32 %s, %s, %d' % (s(sD_), s(sT2), WS_O))
        A('s_lshl_b32 %s, %s, 14' % (s(sWOM), s(sW))); A('s_mov_b32 m0, %s' % s(sWOM))
        return L
    def table_loads(self):
        L = ['v_and_b32 %s, 0x300, %s' % (v(vWRk), v(vL16)), 'v_lshrrev_b32 %s, 2, %s' % (v(vWRk), v(vWRk))]
        for q in range(4): L.append(('global_load_dwordx%d %s, %s, s[%d:%d] offset:%d' % (4 if q < 3 else 2, v(vOF[4 * q], 4 if q < 3 else 2), v(vWRk), sTAB, sTAB + 1, 16 * q), 'tab'))
        return L
    def table(self, pad):
        T = []
        for g in range(4):
            for r in range(16):
                h, u = divmod(8 * (r >> 1) + 2 * g + (r & 1), 7)
                T.append(h * 1024 + (u >> 2) * 16384 + (u & 1) * 512 + ((u >> 1) & 1) * 8)
        return ['.p2align 6', '.type L_tab,@object', 'L_tab:'] + ['.long %d' % x for x in T] + (['.fill L_PAD, 4, 0', '.size L_tab, 256 + 4 * L_PAD'] if pad else ['.size L_tab, 256', '.p2align 7'])

    def tail(self):
        c = self.cfg
        L = ['L_pub:'] + self.publish(''); A = L.append
        A('L_join:')
        L += self.stamp(8)
        g3 = 7 - c.wo_g3
        poll = 'buffer_load_dwordx2 %s, %s, s[%d:%d], %s offen sc1' % (v(vT2, 2), v(vXR + 3), SWS, SWS + 3, s(sFLG))
        assert c.wo_early >= 2
        if c.poll_first:
            A(poll); A('@waitlgkm_all'); A('s_barrier'); L += self.wo_reads()[3 + 8 * c.wo_early:3 + 8 * c.wo_imp]
            wrest = self.wo_reads()[3 + 8 * c.wo_imp:3 + 8 * g3]
        else:
            A('@waitvm wo'); A(poll); A('@waitlgkm_all'); A('s_barrier'); L += self.wo_reads()[3 + 8 * c.wo_early:3 + 8 * g3]
            wrest = []
        def test(r): return ['v_xor_b32 %s, %s, %s' % (v(r), s(sN0), v(r)), 'v_xor_b32 %s, %s, %s' % (v(r + 1), s(sN1), v(r + 1)),
                             'v_or_b32 %s, %s, %s' % (v(r), v(r), v(r + 1)), 'v_cmp_ne_u32 vcc, 0, %s' % v(r), 's_andn2_b64 vcc, vcc, s[%d:%d]' % (sOWN, sOWN + 1)]
        A('L_poll:')
        L += test(vT2); A('s_cbranch_vccnz L_repoll'); A('L_seen:')
        p2 = poll.replace(v(vT2, 2), v(vT2 + 14, 2))
        self.repoll = ['L_repoll:', '@assume_idle', (poll, 'p1')] + SPIN + ['s_nop 15', (p2, 'p2')] + test(vT2) + ['s_cbranch_vccz L_seen2'] + test(vT2 + 14) + ['s_cbranch_vccnz L_repoll',
                       'L_seen2:', '@waitvm_all', 's_branch L_seen']
        L += self.stamp(9)
        od = []
        for h in range(16):
            if h and h % 4 == 0: od += ['s_add_u32 m0, %s, %d' % (s(sWOM), 1024 * h), 's_add_u32 %s, %s, 4096' % (s(sD_), s(sD_))]
            od.append(('buffer_load_dwordx4 %s, s[%d:%d], %s offen offset:%d sc1 lds' % (v(vL16), SWS, SWS + 3, s(sD_), 1024 * (h & 3)), 'o%d' % h))
        assert c.o_first % 4 == 0
        nf = [i for i, x in enumerate(od) if isinstance(x, tuple)][c.o_first - 1] + 1
        L += od[:nf]
        M16 = 'v_mfma_f32_16x16x32_bf16'
        st = {'have': -1}
        def gate(k):
            X = []; h = (8 * k + 7) // 7
            need = min(x for x in c.stages if x >= h)
            wg = k % 2 == 0 and k // 2 >= g3
            if st['have'] < need or wg:
                X = ['@waitvm o%d' % need + (' wog%d' % (k // 2) if wg else ''), 's_barrier']; st['have'] = max(need, st['have'])
            return X
        def rd(k, sg, i): return 'ds_read_b64 %s, %s offset:%d' % (v(vE + 4 * ((4 * k + sg) % 12) + 2 * i, 2), v(vOF[2 * (k % 7) + i]), (k // 7) * 8192 + (sg >> 1) * 32768 + (sg & 1) * 256)
        rds = lambda k: [rd(k, sg, i) for sg in range(4) for i in range(2)]
        later = od[nf:]
        for m in range(g3, 7): later += self.wo_block(m, 'wog%d' % m)
        L += gate(0) + rds(0) + gate(1)
        kt = 14 - c.tailk
        for k in range(kt):
            fill = []
            if k + 2 < 14:
                L += gate(k + 2); fill = (rds(1) if k == 0 else []) + rds(k + 2)
                if k >= c.wrest_at and wrest: fill = interleave(fill, wrest[:c.wrest_n]); del wrest[:c.wrest_n]
                assert not wrest or k + 1 < 2 * c.wo_imp
                if (k + 2) % 2 == 0 and (k + 2) // 2 >= g3: fill = interleave(fill, self.wo_reads()[3 + 4 * (k + 2):3 + 4 * (k + 2) + 8])
            per = -(-len(fill) // 8)
            for j in range(8):
                sg, nt = j >> 1, j & 1
                d = v(vK + 8 * sg + 4 * nt, 4)
                L.append('%s %s, %s, %s, %s' % (M16, d, a(8 * k + 4 * nt, 4), v(vE + 4 * ((4 * k + sg) % 12), 4), d if k else '0'))
                if later and k and j % c.g3_every == 0:
                    while not isinstance(later[0], tuple): L.append(later.pop(0))
                    L.append(later.pop(0))
                L += fill[per * j:per * (j + 1)]
        assert not later
        L += self.stamp(10)
        R = []; A = R.append
        for k in range(kt + 2, 14): assert not gate(k); R += rds(k)
        for sg in range(4):
            for k in range(kt, 14):
                for nt in range(2):
                    d = v(vK + 8 * sg + 4 * nt, 4)
                    R.append(('%s %s, %s, %s, %s' % (M16, d, a(8 * k + 4 * nt, 4), v(vE + 4 * ((4 * k + sg) % 12), 4), d), 'sg%d' % sg))
        for sg in range(4):
            for nt in range(2):
                d = vK + 8 * sg + 4 * nt
                R += self.pack(d, 2)
                A('ds_write_b64 %s, %s offset:%d' % (v(vOW + nt), v(d, 2), 1024 * sg))
            A('ds_read_b128 %s, %s offset:%d' % (v(vP + 4 * sg, 4), v(vOR), 1024 * sg))
            A('buffer_store_dwordx4 %s, %s, s[%d:%d], %s offen %s' % (v(vP + 4 * sg, 4), v(vOG), SOUT, SOUT + 3, s(sXO + sg), c.outfl))
        self.M.t += 3000
        L += self.sched(R, 'out', boost={'sg0': 4000, 'sg1': 3000, 'sg2': 2000})
        A = L.append
        if c.stamps:
            L += self.stamp(11)
            A('s_memrealtime s[%d:%d]' % (sT0, sT1)); A('@waitlgkm_all')
            A('v_writelane_b32 %s, %s, 12' % (v(vST), s(sT0)))
            A('s_lshl_b32 %s, s2, 2' % s(sT2)); A('s_add_u32 %s, %s, %s' % (s(sT2), s(sT2), s(sW))); A('s_lshl_b32 %s, %s, 8' % (s(sT2), s(sT2)))
            A('s_add_u32 %s, %s, %d' % (s(sT2), s(sT2), WS_STAMP))
            A('v_lshlrev_b32 %s, 2, %s' % (v(vT), v(vL)))
            for k in range(0 if not c.prost else 4, 4): A('v_writelane_b32 %s, s%d, %d' % (v(vST), 12 + 2 * k, 32 + k))
            A('buffer_store_dword %s, %s, s[%d:%d], %s offen' % (v(vST), v(vT), SWS, SWS + 3, s(sT2)))
        if c.leak:
            if c.leak == 11: L += self.stamp(11)
            A('s_lshl_b32 s11, s101, 2'); A('s_cmp_eq_u32 %s, %d' % (s(sBR), c.leak_br)); A('s_cselect_b32 s11, s11, 0'); A('s_memrealtime s[100:101]'); A('@waitlgkm_all')
            A('L_leak:'); A('s_memrealtime s[%d:%d]' % (sT0, sT1)); A('@waitlgkm_all'); A('s_sub_u32 %s, %s, s100' % (s(sT0), s(sT0))); A('s_cmp_lt_u32 %s, s11' % s(sT0)); A('s_cbranch_scc1 L_leak')
        if c.tfix:
            A('L_tfix:'); A('s_memrealtime s[%d:%d]' % (sT0, sT1)); A('@waitlgkm_all'); A('s_sub_u32 %s, %s, s100' % (s(sT0), s(sT0))); A('s_cmp_lt_u32 %s, %d' % (s(sT0), c.tfix)); A('s_cbranch_scc1 L_tfix')
        A('L_end:'); A('s_endpgm')
        return L

    def throttle(self, L, br):
        c = self.cfg
        if not c.thr: return L
        out = []; seen = set()
        for x in L:
            if isinstance(x, tuple) and x[1] is not None and x[1] not in seen and x[1] in c.thr_tags:
                if x[1] != 'wq': seen.add(x[1])
                n = self.nthr; self.nthr += 1
                out += ['s_cbranch_vccnz L_thr%d' % n, 'L_thb%d:' % n]
                self.thr_side += ['L_thr%d:' % n, 's_waitcnt vmcnt(%d)' % c.thr, 's_branch L_thb%d' % n]
            out.append(x)
        return out
    def marks(self, L):
        if not self.cfg.marks: return L
        out = []; seen = set()
        for x in L:
            t = x[0] if isinstance(x, tuple) else x
            hit = [k for k, (p, af) in enumerate(self.cfg.marks) if (t == p or t.startswith(p + ' ')) and k not in seen]
            for k in hit:
                if not self.cfg.marks[k][1]: out.append(('s_memtime s[%d:%d]' % (12 + 2 * k, 13 + 2 * k), 'nowait'))
            out.append(x)
            for k in hit:
                if self.cfg.marks[k][1]: out.append(('s_memtime s[%d:%d]' % (12 + 2 * k, 13 + 2 * k), 'nowait'))
                seen.add(k)
        return out
    def build(self):
        import re
        pro = self.prologue() + ['s_cmp_eq_u32 %s, 0' % s(sBR), 's_cbranch_scc1 L_pathA']
        MK = '.set MARK_A, 0'
        out = []; base = self.cfg
        for br in 'BA':
            import emit, sched
            c = copy.copy(base)
            for k, x in getattr(base, br).items(): assert hasattr(c, k), k; setattr(c, k, x)
            self.__init__(c); self.prologue()
            emit.MERGE = c.merge; sched.BURST = c.burst; sched.HOLD = c.hold
            hlp = [(x, 'untracked') if x.startswith('global_load') else x for x in self.help()] if (br == 'A' and self.cfg.help) else []
            body = hlp + self.part1(br) + self.stamp(14) + self.middle(br) + self.tail()
            code = finalize(self.marks(pro + [MK] + body)); k = code.index(MK)
            head, code = code[:k], code[k + 1:]
            side = finalize(self.repoll + self.far() + self.nonce_retry(br) + self.part_retry(br) + (self.mknonce() if br == 'B' else []))
            tab = self.table(br == 'A')
            if br == 'A':
                ren = lambda l: re.sub(r'\b(L_(?:end|pub|join|far|poll|repoll|seen2?|tab|leak|tfix))\b', r'\1A', l)
                code, side, tab = [ren(l) for l in ['L_pathA:'] + code], [ren(l) for l in side], [ren(l) for l in tab]
            else: code = head + code
            out.append((code, side + tab))
        return out

HEADER = open(os.path.join(os.path.dirname(os.path.abspath(__file__)), 'header.txt')).read()

def generate(cfg):
    import emit
    emit.MERGE = cfg.merge
    import sched
    sched.BURST = cfg.burst; sched.HOLD = cfg.hold
    g = G(cfg)
    (cb, sb), (ca, sa) = g.build()
    if cfg.align:
        from align import align
        hd = '.amdgcn_target "amdgcn-amd-amdhsa--gfx950"\n.text\n.set L_AOFF, 200\n.set L_PAD, 0\n'
        cb, p0, p1 = align(hd, cb, '\n'.join(sb + ca + sa) + '\n', cfg.align)
        ca, p2, p3 = align(hd, ca, '\n'.join(sa + cb + sb) + '\n', cfg.align)
        if cfg.verbose: sys.stderr.write('misalignment penalty %d -> %d, %d -> %d\n' % (p0, p1, p2, p3))
    body = cb + sb + ca + sa
    txt = HEADER
    if cfg.extra_empty:
        txt += '; @launch kernel=%s grid=(256,1,1) block=(256,1,1) lds=163840\n; @launch kernel=empty_kernel grid=(256,1,1) block=(256,1,1) lds=0\n' % KNAME
    else:
        txt += '; @launch grid=(256,1,1) block=(256,1,1) lds=163840\n'
    txt += '.amdgcn_target "amdgcn-amd-amdhsa--gfx950"\n.text\n.globl %s\n.p2align 8\n.type %s,@function\n%s:\n' % (KNAME, KNAME, KNAME)
    txt += '\n'.join(('' if l.endswith(':') else '    ') + l for l in body) + '\n'
    if cfg.extra_empty:
        txt += '.globl empty_kernel\n.p2align 8\n.type empty_kernel,@function\nempty_kernel:\n    s_endpgm\n'
        txt += '.section .rodata,"a"\n.p2align 6\n.amdhsa_kernel empty_kernel\n  .amdhsa_next_free_vgpr 8\n  .amdhsa_next_free_sgpr 16\n  .amdhsa_accum_offset 8\n  .amdhsa_group_segment_fixed_size 0\n  .amdhsa_kernarg_size 80\n  .amdhsa_user_sgpr_count 2\n  .amdhsa_user_sgpr_kernarg_segment_ptr 1\n  .amdhsa_system_sgpr_workgroup_id_x 1\n.end_amdhsa_kernel\n'
    txt += '.section .rodata,"a"\n.p2align 6\n.amdhsa_kernel %s\n' % KNAME
    txt += '  .amdhsa_next_free_vgpr 512\n  .amdhsa_next_free_sgpr 102\n  .amdhsa_accum_offset 256\n  .amdhsa_group_segment_fixed_size 0\n'
    txt += '  .amdhsa_kernarg_size 80\n  .amdhsa_user_sgpr_count 2\n  .amdhsa_user_sgpr_kernarg_segment_ptr 1\n  .amdhsa_system_sgpr_workgroup_id_x 1\n.end_amdhsa_kernel\n'
    import subprocess, tempfile, re
    d = tempfile.mkdtemp()
    open(d + '/a.s', 'w').write(txt.replace('L_PAD', '0').replace('L_AOFF', '200'))
    r = subprocess.run(['clang', '-x', 'assembler', '-target', 'amdgcn-amd-amdhsa', '-mcpu=gfx950', '-c', d + '/a.s', '-o', d + '/a.o'], capture_output=True, text=True)
    if r.returncode: raise Exception(r.stderr[:3000])
    r = subprocess.run(['llvm-readelf', '-S', '-s', d + '/a.o'], capture_output=True, text=True).stdout
    size = int(re.search(r'\.text\s+PROGBITS\s+\w+\s+\w+\s+(\w+)', r).group(1), 16)
    offa = int(re.search(r': (\w+)\s+\d+\s+\w+\s+\w+\s+\w+\s+\d+ L_pathA', r).group(1), 16)
    assert offa % 128 == 0 and 64 < offa // 128 and offa < 32768 and size - offa < 32768
    sys.stderr.write('code bytes: B %d A %d\n' % (offa, size - offa))
    return txt.replace('L_PAD', str((offa + 32768 + 256 - size) // 4)).replace('L_AOFF', str(offa // 128))

if __name__ == '__main__':
    cfg = Cfg()
    out = sys.argv[1]
    for kv in sys.argv[2:]:
        k, val = kv.split('=', 1); assert hasattr(cfg, k), k; setattr(cfg, k, eval(val))
    open(out, 'w').write(generate(cfg))
```

```python
import sys, os
from emit import finalize, interleave
from sched import schedule, Machine
import copy

KNAME = 'concat_heads__linear_attn_block__linear_kernel_hedgehog__prompt_kernel'

class Cfg:
    stamps = False; lite = False; fine = None; frange = (0, 1); marks = None; leak = None; leak_br = 1; tfix = 0; extra_empty = False; force_global = False; verbose = False
    rotmap = None; rottab = None; tswap = 0; pref_slots = 0
    xfl = ''; wfl = ''; wofl = ''; outfl = 'sc1'; prefl = 'sc1'; tfl = ''
    touch = {"p2": "o"}
    wv_bar = (1, 2, 4, 7); hi2 = 6000; q_tm = False
    rel_part = 1600; rel_partA = 1900; rel_nonce = 0
    wo_before = 2; wo_mid = 2; wo_imp = 5; wo_g3 = 1; tab_late = True; q_tight = False; p2_tight = False; wo_early = 2; late0 = 6; pre_q = False; ws_base = 0
    stages = (3, 5, 7, 11, 15); g3_every = 2; o_first = 8
    dslat = 130; merge = 24; burst = 24; hold = 12
    miss = {}; lines = {}
    wv_early = 0; wv_at = 7
    wq_pre = 7
    fake_n2 = False
    wq_at = 0
    align = 4
    flip = False
    delay = None
    help_plain = False
    help = 'xwX'
    merge_q = 2
    poll_first = True; wrest_at = 3; wrest_n = 4
    prost = False
    tailk = 3
    pk0 = False
    A = {}; B = {}
    pre_part = False
    tlb = False
    thr = 0; thr_tags = ['x11', 'x12', 'x13', 'wv0', 'wv1', 'wv2', 'wv3', 'wv4', 'wv5', 'wv6', 'wq']
    depth = 4; order0 = 'w2 w3 x2 w4 x3 w5 w6 x4 x5'; wkbar = {0: 'wk1 phi', 2: 'wk3', 4: 'wk6'}; t0boost = 2000
    rate = 2.2; cap = 256; lat = 400; fifo = 4; wlines = 90; cold = 900; pmiss = 900; smiss = 1000

WS_XCC, WS_FLAG, WS_PART, WS_O, WS_STAMP = 4096, 8192, 65536, 2 << 20, 16 << 20
WS_BYTES = 32 << 20
L_WK, L_WV, L_MISC, L_WQ, L_WO, L_SCR, L_OT = 98304, 126976, 155648, 0, 32768, 32768, 65536
OOB = 0x40000000
sAX, sAW, sAWO, sBX, sBW, sPHI, sBWO, sOUT, sDBG, sWSP = 4, 6, 8, 10, 12, 14, 16, 18, 20, 22
SX, SW, SWO, SPHI, SWS, SOUT = 24, 28, 32, 36, 40, 44
sBR, sRB, sH, sW, sGID, sSLOT, sT0, sT1, sT2, sXCC = 48, 49, 50, 51, 52, 53, 54, 55, 56, 57
sN0, sN1 = 58, 59
sHI, sE28 = 60, 62
sXO, sWO_ = 64, 72
sSPIN, sFAR = 71, 72
sM0X, sM0W, sSH, sCB, sRQ, sPB = 80, 81, 82, 83, 84, 85
sA, sB_, sC_, sD_ = 86, 87, 88, 89
sOB1, sWOM, sDT, sROT, sXB, sWB, sOBX, sFLG, sT3, sREC, sRECA = 90, 91, 92, 93, 94, 95, 96, 97, 98, 99, 79
sOWN = 74
sM0K = 3
sPX, sPL0, sPL1, sSET, sRECL, sSCR = 4, 5, 6, 7, 8, 9
sWOS, sTAB = sXCC, SX
sFLW = sSLOT
sSGN = sSH
sM1, sM2 = SPHI, SPHI + 2
SPIN = ['s_add_u32 s71, s71, 1', 's_cmp_gt_u32 s71, 0x100000', 's_cbranch_scc1 L_end']
vL = 1
vXD, vWD, vWRq, vWRk, vZ = 2, 6, 7, 8, 9
vXR, vXR2 = 10, 14
vDUM, vT = 18, 19
vPH, vID, vC, vST, vN = 20, 28, 36, 37, 38
vK, vV, vP, vE, vKV, vT2 = 40, 72, 104, 136, 200, 232
vTAG, vL16 = 248, 249
vWO0, vWOD = 250, 252
vWDq, vWDv = 253, 251
vTCH, vTCO, vPRE = None, 254, 255
vS16, vOW, vOR, vOG = vT2 + 3, vT2 + 4, vT2 + 8, vT2 + 9
vOF = list(range(20, 28)) + list(range(32, 36)) + [254, 255]
aX, aWR = 0, 224

def v(r, n=1): return 'v%d' % r if n == 1 else 'v[%d:%d]' % (r, r + n - 1)
def a(r, n=1): return 'a%d' % r if n == 1 else 'a[%d:%d]' % (r, r + n - 1)
def s(r, n=1): return 's%d' % r if n == 1 else 's[%d:%d]' % (r, r + n - 1)
MF = 'v_mfma_f32_32x32x16_bf16'
def mfma(d, x, y, c): return '%s %s, %s, %s, %s' % (MF, v(d, 16), x, y, v(c, 16) if c is not None else '0')

class G:
    def __init__(self, cfg):
        self.cfg = c = cfg; self.npc = 0; self.nthr = 0; self.thr_side = []
        self.M = Machine(c.rate, c.cap, c.lat, fifo=c.fifo, lines={'wk': c.wlines, 'wv': c.wlines, 'wq': c.wlines, 'phi': 13, 'touch': 100, 'pre': 128, 'nonce': 4, 'side': 4, 'pref': 4, 'tab': 4, 'rec': 8},
                         miss={'x0': c.cold, 'nonce': 500, 'part': c.pmiss, 'rec': c.pmiss, 'pre': 600, 'touch': 400, 'pst': c.smiss, 'side': 500, 'ost': 250})
        self.M.miss.update(c.miss); self.M.lines.update(c.lines)
    def stamp(self, k):
        if self.cfg.leak == k: return ['@waitlgkm_all', 's_memrealtime s[%d:%d]' % (sT0, sT1), '@waitlgkm_all', 's_sub_u32 s101, %s, s100' % s(sT0)]
        if not self.cfg.stamps or (self.cfg.lite and k not in (11, 13)): return []
        return ['@waitlgkm_all', 's_memtime s[%d:%d]' % (sT0, sT1), 's_memrealtime s[100:101]', '@waitlgkm_all', 'v_writelane_b32 %s, %s, %d' % (v(vST), s(sT0), k),
                'v_writelane_b32 %s, s100, %d' % (v(vST), 16 + k)]
    def sched(self, L, name, **kw): return self.fine(schedule(self.M, L, verbose=name if self.cfg.verbose else False, dslat=self.cfg.dslat, **kw), name)
    def glue(self, L): return self.M.run(L)
    def fine(self, L, name):
        if not self.cfg.fine or not name.startswith(self.cfg.fine): return L
        out = []; n = len(L); lo, hi = [int(f * n) for f in self.cfg.frange]; pos = {lo + (k * (hi - lo)) // 3: k for k in range(4)}
        for i, x in enumerate(L + [None]):
            if i in pos: out.append(('s_memtime s[%d:%d]' % (12 + 2 * pos[i], 13 + 2 * pos[i]), 'nowait'))
            if x is not None: out.append(x)
        T = [self.M.times[i] for i in sorted(pos)]
        sys.stderr.write('model %s: %s\n' % (name, [b - a for a, b in zip(T[:-1], T[1:])]))
        if self.cfg.verbose:
            for i, k in pos.items(): sys.stderr.write('  fine %s %d at %d: %s\n' % (name, k, i, L[i]))
        return out

    def offs(self, i):
        L = ['s_lshl_b32 %s, %s, 7' % (s(sD_), s(sROT)), 's_add_u32 %s, %s, %s' % (s(sXO + i), s(sXB), s(sD_)),
             's_mul_i32 %s, %s, %d' % (s(sD_), s(sROT), 64 * 2688), 's_add_u32 %s, %s, %s' % (s(sD_), s(sWB), s(sD_)), 's_add_u32 %s, %s, %d' % (s(sWO_ + i), s(sD_), 4096 - 1024 * (i & 3))]
        if i < 6: L += ['s_add_u32 %s, %s, 1' % (s(sROT), s(sROT)), 's_cmp_eq_u32 %s, 7' % s(sROT), 's_cselect_b32 %s, 0, %s' % (s(sROT), s(sROT))]
        return L
    def touches(self, pos):
        L = []
        for w in self.cfg.touch.get(pos, ''):
            if w == 'p': L.append(('buffer_load_dword %s, %s, s[%d:%d], %s offen %s' % (v(vDUM), v(vPRE), SWS, SWS + 3, s(sOBX), self.cfg.prefl), 'pre'))
            else: L += self.touch(w)
        return L
    def touch(self, what):
        c = self.cfg
        if what == 'o': return [('buffer_load_dword %s, %s, s[%d:%d], 0 offen %s' % (v(vDUM), v(vTCO), SWO, SWO + 3, c.tfl), 'touch')]
        return [('buffer_load_dword %s, %s, s[%d:%d], 0 offen offset:%d %s' % (v(vDUM), v(vTCH), SW, SW + 3, {'q': 0, 'v': 1792}[what], c.tfl), 'touch')]

    def prologue(self):
        c = self.cfg; L = []; A = L.append
        A('s_load_dwordx16 s[4:19], s[0:1], 0')
        A('s_load_dwordx4 s[20:23], s[0:1], 64')
        if c.prost: L.append(('s_memtime s[96:97]', 'nowait'))
        if c.stamps or c.tfix or c.leak: A('s_memrealtime s[100:101]')
        A('s_cmpk_ge_u32 s2, 0x100'); A('s_cbranch_scc1 L_end')
        if c.delay:
            A('s_and_b32 s30, s2, 7'); A('s_lshr_b32 s30, %d, s30' % c.delay[0]); A('s_bitcmp0_b32 s30, 0'); A('s_cbranch_scc1 L_nodelay')
            A('L_delay:'); A('s_memrealtime s[30:31]'); A('@waitlgkm_all'); A('s_sub_u32 s30, s30, s100'); A('s_cmp_lt_u32 s30, %d' % c.delay[1]); A('s_cbranch_scc1 L_delay')
            A('L_nodelay:')
        t0, t1, t2 = vT2, vT2 + 1, vT2 + 2
        A('v_readfirstlane_b32 %s, v0' % s(sW)); A('v_and_b32 %s, 63, v0' % v(vL))
        A('s_lshr_b32 %s, s2, 3' % s(sSLOT)); A('s_and_b32 %s, %s, 15' % (s(sH), s(sSLOT))); A('s_lshr_b32 %s, %s, 4' % (s(sT2), s(sSLOT)))
        A('s_bitcmp0_b32 s2, 2'); A('s_cselect_b32 %s, L_AOFF, 0' % s(sB_)); A('s_lshl3_add_u32 %s, %s, %s' % (s(sB_), s(sSLOT), s(sB_)))
        A('v_lshrrev_b32 %s, 5, v0' % v(vT)); A('s_getpc_b64 s[%d:%d]' % (sT0, sT1))
        A('v_add_lshl_u32 %s, %s, %s, 7' % (v(vT), v(vT), s(sB_)))
        L.append(('global_load_dword %s, %s, s[%d:%d]' % (v(vDUM), v(vT), sT0, sT1), 'pref'))
        A('s_and_b32 %s, s2, 3' % s(sRB)); A('s_lshl1_add_u32 %s, %s, %s' % (s(sRB), s(sRB), s(sT2))); A('s_lshr_b32 %s, %s, 6' % (s(sW), s(sW)))
        A('s_mul_i32 %s, %s, 3' % (s(sT2), s(sT2))); A('s_add_u32 %s, %s, %s' % (s(sROT), s(sH), s(sT2)))
        A('s_mul_i32 %s, %s, 37' % (s(sB_), s(sROT))); A('s_lshr_b32 %s, %s, 8' % (s(sB_), s(sB_)))
        A('s_mul_i32 %s, %s, 7' % (s(sB_), s(sB_))); A('s_sub_u32 %s, %s, %s' % (s(sROT), s(sROT), s(sB_)))
        A('s_lshl2_add_u32 %s, %s, %s' % (s(sB_), s(sRB), s(sW))); A('s_mul_i32 %s, %s, 57344' % (s(sXB), s(sB_)))
        o0 = self.offs(0); L += o0[:2]
        A('s_lshl_b32 %s, %s, 12' % (s(sM0X), s(sW))); A('s_mov_b32 m0, %s' % s(sM0X))
        A('v_lshrrev_b32 %s, 3, %s' % (v(t0), v(vL))); A('v_mul_u32_u24 %s, 896, %s' % (v(t0), v(t0)))
        A('v_lshrrev_b32 %s, 4, %s' % (v(t1), v(vL))); A('v_and_b32 %s, 7, %s' % (v(t2), v(vL))); A('v_xor_b32 %s, %s, %s' % (v(t2), v(t1), v(t2)))
        A('v_lshl_add_u32 %s, %s, 4, %s' % (v(vXD), v(t2), v(t0))); A('v_xor_b32 %s, 64, %s' % (v(t2), v(vXD)))
        A('v_add_u32 %s, 6144, %s' % (v(vXD + 1), v(t2))); A('v_add_u32 %s, 12288, %s' % (v(vXD + 2), v(vXD))); A('v_add_u32 %s, 18432, %s' % (v(vXD + 3), v(t2)))
        A('s_mov_b32 %s, 1835008' % s(SX + 2)); A('s_mov_b32 %s, 0x20000' % s(SX + 3))
        if c.prost: L.append(('s_memtime s[98:99]', 'nowait'))
        A('s_bitcmp0_b32 s2, 2')
        A('@waitlgkm_all')
        if c.prost: A('v_writelane_b32 %s, s98, 33' % v(vST)); A('v_writelane_b32 %s, s96, 32' % v(vST))
        if c.leak == 13: L += self.stamp(13); A('s_bitcmp0_b32 s2, 2')
        if c.stamps: A('v_writelane_b32 %s, s100, 0' % v(vST)); L += self.stamp(13); A('s_bitcmp0_b32 s2, 2')
        sel = lambda srd, pa, pb: ['s_cselect_b32 %s, %s, %s' % (s(srd + k), s(pa + k), s(pb + k)) for k in range(2)]
        L += sel(SX, sAX, sBX) + self.dma_x(0)[1:]
        if c.prost == 2: L.append(('s_memtime s[98:99]', 'nowait'))
        L += sel(SW, sAW, sBW) + sel(SWO, sAWO, sBWO); A('s_cselect_b32 %s, 0, 25088' % s(SPHI + 2))
        A('s_sub_u32 %s, %s, 4096' % (s(SW), s(SW))); A('s_subb_u32 %s, %s, 0' % (s(SW + 1), s(SW + 1)))
        A('s_mov_b32 %s, %d' % (s(SW + 2), 1204224 + 4096)); A('s_mov_b32 %s, %s' % (s(SW + 3), s(SX + 3)))
        A('v_lshrrev_b32 %s, 2, %s' % (v(t0), v(vL))); A('v_mul_u32_u24 %s, 2688, %s' % (v(t0), v(t0)))
        A('v_and_b32 %s, 3, %s' % (v(t2), v(vL))); A('v_lshl_add_u32 %s, %s, 4, %s' % (v(vWDq), v(t2), v(t0))); A('v_add_u32 %s, 896, %s' % (v(vWD), v(vWDq)))
        A('s_cmp_eq_u32 %s, 15' % s(sH)); A('s_cselect_b32 %s, 8, 0' % s(sSH))
        A('s_mul_i32 %s, %s, 56' % (s(sC_), s(sH))); A('s_sub_u32 %s, %s, %s' % (s(sC_), s(sC_), s(sSH)))
        A('s_mul_i32 %s, %s, %d' % (s(sD_), s(sW), 16 * 2688)); A('s_add_u32 %s, %s, %s' % (s(sWB), s(sC_), s(sD_)))
        A('s_mul_i32 %s, %s, 7168' % (s(sM0K), s(sW)))
        L += o0[2:5] + self.dma_w(0, 1, L_WK, 'wk0')
        if c.prost == 2: L.append(('s_memtime s[4:5]', 'nowait'))
        L += o0[5:] + self.offs(1) + self.dma_w(1, 1, L_WK, 'wk1', False)
        A('s_bfe_u32 %s, s2, 0x10002' % s(sBR)); A('s_lshl_b32 %s, %s, 10' % (s(sM0W), s(sW)))
        for srd, n in ((SWO, 401408), (SWS, WS_BYTES), (SOUT, 3670016)):
            A('s_mov_b32 %s, %d' % (s(srd + 2), n)); A('s_mov_b32 %s, 0x20000' % s(srd + 3))
        A('s_mov_b32 %s, %s' % (s(SPHI), s(sPHI))); A('s_mov_b32 %s, %s' % (s(SPHI + 1), s(sPHI + 1))); A('s_mov_b32 %s, 0x20000' % s(SPHI + 3))
        A('v_lshlrev_b32 %s, 4, %s' % (v(vL16), v(vL)))
        A('s_cmp_ge_u32 %s, 2' % s(sW)); A('s_cselect_b32 %s, 0x%x, %s' % (s(sA), OOB, s(sM0W))); A('v_add_u32 %s, %s, %s' % (v(t0), s(sA), v(vL16)))
        A('s_mul_i32 %s, %s, 1568' % (s(sT2), s(sH))); A('s_add_u32 m0, %s, %d' % (s(sM0W), L_MISC))
        L.append(('buffer_load_dwordx4 %s, s[%d:%d], %s offen lds' % (v(t0), SPHI, SPHI + 3, s(sT2)), 'phi'))
        L += self.dma_x(1)
        if c.prost == 2: L.append(('s_memtime s[6:7]', 'nowait'))
        if c.ws_base: A('s_add_u32 %s, %s, %d' % (s(sWSP), s(sWSP), c.ws_base)); A('s_addc_u32 %s, %s, 0' % (s(sWSP + 1), s(sWSP + 1)))
        for (srd, p) in ((SWS, sWSP), (SOUT, sOUT)):
            A('s_mov_b32 %s, %s' % (s(srd), s(p))); A('s_mov_b32 %s, %s' % (s(srd + 1), s(p + 1)))
        if c.tlb:
            A('s_lshl_b32 %s, %s, 21' % (s(sA), s(sBR))); A('s_add_u32 %s, %s, %d' % (s(sA), s(sA), WS_O)); A('s_mul_i32 %s, %s, %d' % (s(sB_), s(sRB), 256 * 1792))
            for base, off in ((sWSP, '0x2000'), (sWSP, s(sA)), (sOUT, s(sB_)), (SWO, '0'), (sDBG, '0x80')):
                L.append(('s_load_dword s92, s[%d:%d], %s' % (base, base + 1, off), 'nowait'))
        A('v_mov_b32 %s, 0' % v(vZ))
        A('s_or_b32 %s, s2, %s' % (s(sT2), s(sW))); A('s_cmp_eq_u32 %s, 0' % s(sT2)); A('s_cbranch_scc1 L_mknonce')
        A('L_nononce:')
        if c.prost == 2: L += ['@waitlgkm_all', 'v_writelane_b32 %s, s98, 33' % v(vST), 'v_writelane_b32 %s, s4, 34' % v(vST), 'v_writelane_b32 %s, s6, 35' % v(vST)]
        self.glue(L)
        return L

    def setup(self):
        c = self.cfg; L = []; A = L.append
        t0, t1, t2 = vT2, vT2 + 1, vT2 + 2
        A('v_add_u32 %s, 1792, %s' % (v(vWDv), v(vWDq)))
        A('s_mov_b32 %s, 0' % s(sSPIN))
        A('s_getreg_b32 %s, hwreg(HW_REG_XCC_ID, 0, 4)' % s(sXCC))
        m, hi, t3, t4 = vT2 + 3, vT2 + 4, vT2 + 5, vT2 + 6
        A('s_mul_i32 %s, %s, 98' % (s(sA), s(sSLOT))); A('s_mul_i32 %s, %s, 25' % (s(sB_), s(sW))); A('s_add_u32 %s, %s, %s' % (s(sA), s(sA), s(sB_)))
        A('v_min_u32 %s, 24, %s' % (v(t0), v(vL))); A('v_add_u32 %s, %s, %s' % (v(t0), s(sA), v(t0))); A('v_min_u32 %s, 3135, %s' % (v(t0), v(t0)))
        A('v_lshlrev_b32 %s, 7, %s' % (v(vTCO), v(t0)))
        A('v_and_b32 %s, 31, %s' % (v(m), v(vL))); A('v_lshrrev_b32 %s, 5, %s' % (v(hi), v(vL)))
        A('v_bfe_u32 %s, %s, 1, 3' % (v(t1), v(m))); A('v_xor_b32 %s, %s, %s' % (v(t1), v(t1), v(hi)))
        A('v_lshl_add_u32 %s, %s, 7, %s' % (v(t2), v(m), s(sM0X)))
        for ks in range(4):
            A('v_xor_b32 %s, %d, %s' % (v(t3), 2 * ks, v(t1))); A('v_lshl_add_u32 %s, %s, 4, %s' % (v(vXR + ks), v(t3), v(t2)))
            A('v_add_u32 %s, 0x10000, %s' % (v(vXR2 + ks), v(vXR + ks)))
        A('v_bfe_u32 %s, %s, 2, 2' % (v(t1), v(vL))); A('v_lshlrev_b32 %s, 6, %s' % (v(t2), v(t1)))
        A('v_lshl_add_u32 %s, %s, 9, %s' % (v(t2), v(hi), v(t2)))
        A('v_bfe_u32 %s, %s, 4, 1' % (v(t3), v(vL))); A('v_and_b32 %s, 3, %s' % (v(t4), v(vL)))
        A('v_lshlrev_b32 %s, 3, %s' % (v(t4), v(t4))); A('v_lshl_add_u32 %s, %s, 5, %s' % (v(t4), v(t3), v(t4)))
        A('v_add3_u32 %s, %s, %s, %s' % (v(vWRq), v(t2), v(t4), s(sSH)))
        A('v_add_u32 %s, %d, %s' % (v(vWRk), L_WK, v(vWRq)))
        A('v_xor_b32 %s, %s, %s' % (v(t3), s(sW), v(t1))); A('v_lshl_add_u32 %s, %s, 6, %s' % (v(t4), v(t3), v(t4)))
        A('v_lshl_add_u32 %s, %s, 8, %s' % (v(t4), v(t1), v(t4))); A('v_lshrrev_b32 %s, 4, %s' % (v(t3), v(vL))); A('v_lshl_add_u32 %s, %s, 11, %s' % (v(t4), v(t3), v(t4)))
        A('v_add_u32 %s, %d, %s' % (v(vWO0), L_WO, v(t4)))
        A('s_and_b32 %s, %s, 1' % (s(sA), s(sW))); A('s_lshl_b32 %s, %s, 4' % (s(sA), s(sA))); A('v_xor_b32 %s, %s, %s' % (v(t4), s(sA), v(m)))
        A('s_bitcmp1_b32 %s, 1' % s(sW)); A('s_cselect_b32 %s, 0x80008000, 0' % s(sSGN))
        A('v_lshrrev_b32 %s, 3, %s' % (v(t0), v(t4))); A('v_and_b32 %s, 3, %s' % (v(t1), v(t4)))
        A('v_lshl_add_u32 %s, %s, 2, %s' % (v(t0), v(t0), v(t1)))
        A('v_lshrrev_b32 %s, 4, %s' % (v(t1), v(t4))); A('v_sub_u32 %s, %s, %s' % (v(t0), v(t0), v(t1)))
        A('v_bfe_u32 %s, %s, 2, 1' % (v(t1), v(m))); A('v_mad_u32_u24 %s, %s, 14, %s' % (v(t0), v(t1), v(t0)))
        A('v_and_b32 %s, 11, %s' % (v(t1), v(m))); A('v_cmp_eq_u32 vcc, 11, %s' % v(t1))
        A('v_mov_b32 %s, %d' % (v(t2), L_MISC + 2048))
        A('v_mul_u32_u24 %s, 224, %s' % (v(t3), v(hi))); A('v_lshl_add_u32 %s, %s, 1, %s' % (v(t3), v(t0), v(t3))); A('v_add_u32 %s, %d, %s' % (v(t3), L_MISC, v(t3)))
        A('v_cndmask_b32_e64 %s, %s, %s, vcc' % (v(vT2 + 12), v(t3), v(t2)))
        A('v_cndmask_b32_e64 %s, %s, 63, vcc' % (v(vT2 + 11), v(t0)))
        A('v_cmp_lt_u32_e64 s[%d:%d], 31, %s' % (sHI, sHI + 1, v(vL)))
        A('v_cmp_eq_u32_e64 s[%d:%d], 28, %s' % (sE28, sE28 + 1, v(m)))
        A('v_cndmask_b32_e64 %s, %s, %s, s[%d:%d]' % (v(vT2 + 13), v(vT2 + 12), v(t2), sHI, sHI + 1))
        return L

    def help(self):
        c = self.cfg; L = []; A = L.append
        t0, t1, t2 = vT2 + 8, vT2 + 9, vT2 + 10
        nh = 10 if c.help_plain else 16
        if c.help_plain:
            A('s_bfm_b32 %s, %s, 0' % (s(sC_), s(sH))); A('s_and_b32 %s, %s, 0xd5ab' % (s(sC_), s(sC_))); A('s_bcnt1_i32_b32 %s, %s' % (s(sC_), s(sC_)))
        else: A('s_mov_b32 %s, %s' % (s(sC_), s(sH)))
        A('s_mul_i32 %s, %s, %d' % (s(sA), s(sRB), nh)); A('s_add_u32 %s, %s, %s' % (s(sA), s(sA), s(sC_))); A('s_lshl2_add_u32 %s, %s, %s' % (s(sA), s(sA), s(sW)))
        def index(n, last):
            n = -(-(last + 1) // (32 * nh))
            A('s_mul_i32 %s, %s, %d' % (s(sB_), s(sA), n)); A('v_min_u32 %s, %d, %s' % (v(t0), n - 1, v(vL))); A('v_add_u32 %s, %s, %s' % (v(t0), s(sB_), v(t0)))
            A('v_min_u32 %s, %d, %s' % (v(t0), last, v(t0)))
        if 'x' in c.help:
            index(14, 7167)
            A('v_mul_u32_u24 %s, 9363, %s' % (v(t1), v(t0))); A('v_lshrrev_b32 %s, 21, %s' % (v(t1), v(t1))); A('v_add_u32 %s, 1, %s' % (v(t1), v(t1)))
            A('v_mul_u32_u24 %s, 28672, %s' % (v(t1), v(t1))); A('v_lshl_add_u32 %s, %s, 7, %s' % (v(t1), v(t0), v(t1)))
            A('global_load_dword %s, %s, s[%d:%d]' % (v(vDUM), v(t1), sBX, sBX + 1))
        if 'w' in c.help:
            index(13, 6271)
            A('v_mul_u32_u24 %s, 9363, %s' % (v(t1), v(t0))); A('v_lshrrev_b32 %s, 16, %s' % (v(t1), v(t1))); A('v_add_u32 %s, 1, %s' % (v(t1), v(t1))); A('v_lshrrev_b32 %s, 1, %s' % (v(t1), v(t1)))
            A('v_mul_u32_u24 %s, 896, %s' % (v(t1), v(t1))); A('v_lshl_add_u32 %s, %s, 7, %s' % (v(t1), v(t0), v(t1)))
            A('global_load_dword %s, %s, s[%d:%d]' % (v(vDUM), v(t1), sBW, sBW + 1))
        A('s_and_b32 %s, %s, 1' % (s(sB_), s(sRB))); A('s_mul_i32 %s, %s, %d' % (s(sB_), s(sB_), nh)); A('s_add_u32 %s, %s, %s' % (s(sC_), s(sC_), s(sB_))); A('s_lshl2_add_u32 %s, %s, %s' % (s(sC_), s(sC_), s(sW)))
        def index2(n, last):
            n = -(-(last + 1) // (8 * nh))
            A('s_mul_i32 %s, %s, %d' % (s(sB_), s(sC_), n)); A('v_min_u32 %s, %d, %s' % (v(t0), n - 1, v(vL))); A('v_add_u32 %s, %s, %s' % (v(t0), s(sB_), v(t0)))
            A('v_min_u32 %s, %d, %s' % (v(t0), last, v(t0)))
        if 'X' in c.help:
            index2(14, 1791)
            A('s_and_b32 %s, s2, 3' % s(sB_)); A('s_mul_i32 %s, %s, 1792' % (s(sB_), s(sB_))); A('v_add_u32 %s, %s, %s' % (v(t0), s(sB_), v(t0)))
            A('v_mul_u32_u24 %s, 9363, %s' % (v(t1), v(t0))); A('v_lshrrev_b32 %s, 21, %s' % (v(t1), v(t1))); A('v_add_u32 %s, 1, %s' % (v(t1), v(t1)))
            A('v_mul_u32_u24 %s, 28672, %s' % (v(t1), v(t1))); A('v_lshl_add_u32 %s, %s, 7, %s' % (v(t1), v(t0), v(t1)))
            A('global_load_dword %s, %s, s[%d:%d]' % (v(vDUM), v(t1), sAX, sAX + 1))
        if 'W' in c.help:
            index(13, 6271)
            A('v_mul_u32_u24 %s, 9363, %s' % (v(t1), v(t0))); A('v_lshrrev_b32 %s, 16, %s' % (v(t1), v(t1))); A('v_add_u32 %s, 1, %s' % (v(t1), v(t1))); A('v_lshrrev_b32 %s, 1, %s' % (v(t1), v(t1)))
            A('v_mul_u32_u24 %s, 896, %s' % (v(t1), v(t1))); A('v_lshl_add_u32 %s, %s, 7, %s' % (v(t1), v(t0), v(t1)))
            A('global_load_dword %s, %s, s[%d:%d]' % (v(vDUM), v(t1), sAW, sAW + 1))
        if 'p' in c.help:
            index(32, 16383)
            A('v_lshlrev_b32 %s, 7, %s' % (v(t1), v(t0))); A('v_add_u32 %s, %d, %s' % (v(t1), WS_O + (2 << 20), v(t1)))
            A('global_load_dword %s, %s, s[%d:%d]' % (v(vDUM), v(t1), sWSP, sWSP + 1))
        if 'O' in c.help:
            index(7, 3135)
            A('v_lshlrev_b32 %s, 7, %s' % (v(t1), v(t0)))
            A('global_load_dword %s, %s, s[%d:%d]' % (v(vDUM), v(t1), sAWO, sAWO + 1))
        if 'o' in c.help:
            index(7, 3135)
            A('v_lshlrev_b32 %s, 7, %s' % (v(t1), v(t0)))
            A('global_load_dword %s, %s, s[%d:%d]' % (v(vDUM), v(t1), sBWO, sBWO + 1))
        return L
    def mknonce(self):
        L = ['L_mknonce:', '@assume_idle']; A = L.append
        A('s_load_dwordx2 s[%d:%d], s[%d:%d], 0' % (sT0, sT1, sWSP, sWSP + 1))
        A('@waitlgkm_all')
        A('s_add_u32 %s, %s, 0x9e3679b8' % (s(sT0), s(sT0))); A('s_add_u32 %s, %s, 0x85eaca6a' % (s(sT1), s(sT1)))
        for r in (sT0, sT1):
            A('s_or_b32 %s, %s, 0x00010001' % (s(r), s(r))); A('s_and_b32 %s, %s, 0xbfffbfff' % (s(r), s(r)))
        A('v_mov_b32 %s, %s' % (v(vN), s(sT0))); A('v_mov_b32 %s, %s' % (v(vN + 1), s(sT1)))
        A('s_mov_b64 exec, 1')
        A('global_store_dwordx2 %s, %s, s[%d:%d] sc1' % (v(vZ), v(vN, 2), sDBG, sDBG + 1))
        A('global_store_dwordx2 %s, %s, s[%d:%d] sc1' % (v(vZ), v(vN, 2), sWSP, sWSP + 1))
        A('s_mov_b64 exec, -1'); A('s_branch L_nononce')
        return L

    def setup2(self, br):
        m, hi, fp, ofs, ofs2 = vT2 + 3, vT2 + 4, vT2 + 11, vT2 + 12, vT2 + 13
        P0 = []
        for t in range(2):
            for j in range(8):
                d = 16 * t + 8 * (j >> 2) + (j & 3)
                P0.append('ds_read_u16 %s, %s offset:%d' % (v(vP + 8 * t + j), v(ofs2 if (t == 1 and j >= 4) else ofs), d * 56))
        def selector(dst, tgt):
            R = []
            x, y, z = vT2 + 8, vT2 + 9, vT2 + 10
            R.append('v_lshrrev_b32 %s, 3, %s' % (v(x), v(tgt))); R.append('v_bfe_u32 %s, %s, 1, 1' % (v(y), v(tgt)))
            R.append('v_lshl_add_u32 %s, %s, 1, %s' % (v(x), v(x), v(y)))
            R.append('v_and_b32 %s, 1, %s' % (v(y), v(tgt))); R.append('v_lshlrev_b32 %s, 4, %s' % (v(y), v(y)))
            R.append('v_mov_b32 %s, 0x3f80' % v(z)); R.append('v_lshlrev_b32 %s, %s, %s' % (v(z), v(y), v(z)))
            R.append('v_bfe_u32 %s, %s, 2, 1' % (v(y), v(tgt))); R.append('v_cmp_eq_u32 vcc, %s, %s' % (v(y), v(hi)))
            R.append('v_cndmask_b32_e64 %s, 15, %s, vcc' % (v(x), v(x)))
            mk = [sN0, sHI + 0, sPB - 1, sN0]
            for i in range(8):
                r = (sN0, sT0)[i & 1]
                R.append('v_cmp_eq_u32_e64 s[%d:%d], %d, %s' % (r, r + 1, i, v(x)))
                R.append('v_cndmask_b32_e64 %s, 0, %s, s[%d:%d]' % (v(dst + i), v(z), r, r + 1))
            return R
        P1 = selector(vID, m) if br == 'B' else selector(vPH, fp)
        P2 = []
        P2 += ['v_mov_b32 %s, 0x3fb8aa3b' % v(vC),
               'v_bfe_u32 %s, %s, 3, 2' % (v(vT2 + 8), v(vL)), 'v_and_b32 %s, 7, %s' % (v(vPRE), v(vL)), 'v_lshlrev_b32 %s, 7, %s' % (v(vPRE), v(vPRE)), 'v_lshl_add_u32 %s, %s, 14, %s' % (v(vPRE), v(vT2 + 8), v(vPRE)),
               's_lshl_b32 %s, %s, 3' % (s(sGID), s(sBR)), 's_add_u32 %s, %s, %s' % (s(sGID), s(sGID), s(sRB)),
               's_and_b32 %s, %s, 3' % (s(sCB), s(sH)), 's_lshr_b32 %s, %s, 2' % (s(sRQ), s(sH)),
               's_lshl_b32 %s, %s, 4' % (s(sT3), s(sGID)), 's_add_u32 %s, %s, %s' % (s(sPB), s(sT3), s(sH)),
               's_lshl2_add_u32 %s, %s, %s' % (s(sT3), s(sGID), s(sW)), 's_lshl_b32 %s, %s, 6' % (s(sT3), s(sT3)), 's_add_u32 %s, %s, %s' % (s(sT3), s(sT3), s(sH)), 's_lshl_b32 %s, %s, 10' % (s(sOBX), s(sT3)),
               's_add_u32 %s, %s, %d' % (s(sOBX), s(sOBX), WS_O),
               's_and_b32 %s, %s, %d' % (s(sOB1), s(sH), self.cfg.tswap), 's_lshl_b32 %s, %s, 15' % (s(sOB1), s(sOB1)), 's_add_u32 %s, %s, %s' % (s(sOB1), s(sOB1), s(sOBX)),
               's_lshl_b32 %s, %s, 9' % (s(sT3), s(sGID)), 's_add_u32 %s, %s, %d' % (s(sT3), s(sT3), WS_FLAG),
               's_lshl_b32 %s, %s, 7' % (s(sFLW), s(sW)), 's_add_u32 %s, %s, %s' % (s(sFLW), s(sFLW), s(sT3)),
               's_lshl_b32 %s, %s, 7' % (s(sFLG), s(sRQ)), 's_add_u32 %s, %s, %s' % (s(sFLG), s(sFLG), s(sT3))]
        A = P2.append; t0, t1, t2 = vT2 + 8, vT2 + 9, vT2 + 10
        A('v_lshrrev_b32 %s, 4, %s' % (v(t0), v(vL))); A('v_bfe_u32 %s, %s, 2, 2' % (v(t1), v(vL))); A('v_xor_b32 %s, %s, %s' % (v(t1), v(t1), v(t0)))
        A('v_mul_u32_u24 %s, 896, %s' % (v(t0), v(t0))); A('v_lshl_add_u32 %s, %s, 6, %s' % (v(t0), v(t1), v(t0)))
        A('v_and_b32 %s, 3, %s' % (v(t2), v(vL))); A('v_lshl_add_u32 %s, %s, 4, %s' % (v(t0), v(t2), v(t0)))
        A('s_cmp_eq_u32 %s, 3' % s(sCB)); A('s_cselect_b32 %s, 1, 3' % s(sT3))
        A('v_cmp_lt_u32 vcc, %s, %s' % (s(sT3), v(t1))); A('v_mov_b32 %s, 0x%x' % (v(t2), OOB))
        A('v_cndmask_b32_e64 %s, %s, %s, vcc' % (v(vWOD), v(t0), v(t2)))
        A('s_lshl_b32 %s, %s, 3' % (s(sRECA), s(sPB))); A('s_add_u32 %s, %s, %d' % (s(sRECA), s(sRECA), WS_XCC))
        A('v_cmp_eq_u32 vcc, 0, %s' % v(vL)); A('v_and_b32 %s, 1, %s' % (v(t0), v(vL))); A('v_and_b32 %s, 2, %s' % (v(t1), v(vL)))
        A('v_cndmask_b32_e64 %s, %s, 0, vcc' % (v(vT), v(t2)))
        A('v_cmp_ne_u32_e64 s[%d:%d], 0, %s' % (sM1, sM1 + 1, v(t0))); A('v_cmp_ne_u32_e64 s[%d:%d], 0, %s' % (sM2, sM2 + 1, v(t1)))
        A('s_lshl1_add_u32 %s, %s, 1' % (s(sSET), s(sBR))); A('s_and_b32 %s, %s, %s' % (s(sSET), s(sSET), s(sW)))
        A('s_lshl_b32 %s, %s, 4' % (s(sT3), s(sBR))); A('s_add_u32 %s, %s, %s' % (s(sT3), s(sT3), s(sH))); A('s_lshl2_add_u32 %s, %s, %s' % (s(sT3), s(sT3), s(sSET)))
        A('s_lshl_b32 %s, %s, 13' % (s(sT3), s(sT3))); A('s_add_u32 %s, %s, %d' % (s(sPL0), s(sT3), WS_PART)); A('s_add_u32 %s, %s, 4096' % (s(sPL1), s(sPL0)))
        A('s_lshl_b32 %s, %s, 10' % (s(sT3), s(sRB))); A('s_add_u32 %s, %s, %s' % (s(sPX), s(sPL0), s(sT3))); A('s_lshl_b32 %s, %s, 10' % (s(sSET), s(sSET)))
        A('s_and_b32 %s, %s, 0xffffff80' % (s(sRECL), s(sRECA))); A('s_add_u32 %s, %s, %d' % (s(sSCR), s(sM0X), L_SCR))
        return P0, P1, P2

    def dma_x(self, i):
        L = ['s_add_u32 m0, %s, %d' % (s(sM0X), (i % 6) * 16384)]
        if i >= 7: L.append('s_add_u32 %s, %s, 28672' % (s(sXO + i - 7), s(sXO + i - 7)))
        for j in range(2 if self.cfg.fake_n2 else 4):
            L.append(('buffer_load_dwordx4 %s, s[%d:%d], %s offen offset:%d %s lds' % (v(vXD + j), SX, SX + 3, s(sXO + i % 7), 1024 * j, self.cfg.xfl), 'x%d' % i))
        return L
    def dma_w(self, i, part, base, tag, m0=True):
        L = ['s_add_u32 m0, %s, %d' % (s(sM0K), base + (i & 4) * 1024)] if m0 else []
        if self.cfg.fake_n2: L.append(('buffer_load_dwordx4 %s, s[%d:%d], %s offen offset:%d %s lds' % (v((vKV + 30, vV + 30, vKV + 31)[part]), SW, SW + 3, s(sWO_ + i), 1024 * (i & 3), self.cfg.wfl), tag))
        return L + [('buffer_load_dwordx4 %s, s[%d:%d], %s offen offset:%d %s lds' % (v((vWDq, vWD, vWDv)[part]), SW, SW + 3, s(sWO_ + i), 1024 * (i & 3), self.cfg.wfl), tag)]
    def xfrag(self, i, ks, tile): return aX + ((i * 4 + ks) * 2 + tile) * 4
    def wread(self, slot, basev, off):
        r = aWR + 4 * (slot % 8)
        return ['ds_read_b64_tr_b16 %s, %s offset:%d' % (a(r + 2 * u, 2), v(basev), off + 256 * u) for u in range(2)]

    def xiter(self, i, extra=()):
        R = []; A = R.append
        ch, tile, sl = i % 7, i // 7, i % 6
        wk = ' ' + self.cfg.wkbar[i] if i in self.cfg.wkbar else ''
        A('@waitvm x%d' % i + wk)
        if wk: A('s_barrier')
        if i == 0: R += self.stamp(1)
        for ks in range(4):
            R += self.wread(4 * i + ks, vWRk, ch * 1024 + ks * 7168)
            R.append(('ds_read_b128 %s, %s offset:%d' % (a(self.xfrag(ch, ks, tile), 4), v((vXR2 if sl >= 4 else vXR) + ks), (sl & 3) * 16384), 'xr%d' % i))
        D = self.cfg.depth
        if i + D < 14:
            if i + D >= 6: A('@waitlgkm xr%d' % (i + D - 6))
            R += self.dma_x(i + D)
        R += self.touches(i)
        R += extra
        for ks in range(4):
            R.append((mfma(vK + 16 * tile, a(aWR + 4 * ((4 * i + ks) % 8), 4), a(self.xfrag(ch, ks, tile), 4), None if (ch == 0 and ks == 0) else vK + 16 * tile), 'kk'))
        return R
    def part1(self, br):
        B = br == 'B'
        P = self.setup2(br)
        R = []
        for i in range(2, 7): R += self.offs(i)
        W = lambda i: self.dma_w(i, 1, L_WK, 'wk%d' % i)
        su = self.setup() + P[2]
        R = su + self.touches('a') + R if 'a' in self.cfg.touch else R
        X = lambda i: self.dma_x(i) if i < self.cfg.depth else []
        late = {}
        for tok in self.cfg.order0.split():
            if '@' in tok:
                tok, at = tok.split('@'); late.setdefault(int(at), []).extend(W(int(tok[1])))
            else: R += W(int(tok[1])) if tok[0] == 'w' else X(int(tok[1]))
        R += ([] if 'a' in self.cfg.touch else su) + P[1]
        pk = []
        for u in range(8): pk += ['v_lshl_or_b32 %s, %s, 16, %s' % (v(vPH + u), v(vP + 2 * u + 1), v(vP + 2 * u)), 'v_xor_b32 %s, %s, %s' % (v(vPH + u), s(sSGN), v(vPH + u))]
        c = self.cfg
        for part, n, at, base, tg in ((2, c.wv_early, c.wv_at, L_WV, 'wv'),):
            for k in range(n): late.setdefault(at - c.depth, []).extend(self.dma_w(k, part, base, '%s%d' % (tg, k), k in (0, 4)))
        for i in range(7): R += self.xiter(i, late.get(i, []) + (P[0] + pk if (i == 1 and B) else []))
        return self.sched(R, 'part1')

    def gemm(self, acc, basev, off, transposed, first_slot, hooks=None, tiles=(0, 1), lead=False, ks=range(28)):
        L = []; hooks = hooks or {}
        for k in ks:
            L += hooks.get(k, [])
            w = a(aWR + 4 * ((first_slot + k) % 8), 4)
            L += self.wread(first_slot + k, basev, off + (k >> 2) * 1024 + (k & 3) * 7168)
            for tile in tiles:
                x = a(self.xfrag(k // 4, k % 4, tile), 4)
                L.append((mfma(acc + 16 * tile, w if transposed else x, x if transposed else w, None if k == 0 else acc + 16 * tile), 'lead' if (lead and tile == 0) else None))
        return L

    def pack(self, r, n=8): return ['v_cvt_pk_bf16_f32 %s, %s, %s' % (v(r + u), v(r + 2 * u), v(r + 2 * u + 1)) for u in range(n)]
    def zero_hi_pads(self, r): return ['v_cndmask_b32_e64 %s, %s, 0, s[%d:%d]' % (v(r + u), v(r + u), sHI, sHI + 1) for u in (6, 7)]

    def softmax(self, p, ep, en, tmp, pk):
        L = []; A = L.append
        Z, T, S1, S2 = tmp, tmp + 2, tmp + 4, tmp + 6
        VAL = [0, 1, 2, 3, 4, 5, 6, 8, 9, 10, 11, 12, 13, 14]
        if pk:
            for r in (ep + 7, ep + 15, en + 7, en + 15): A('v_mov_b32 %s, 0' % v(r))
        for (d, sg) in ((Z, ''), (T, '-')):
            A('v_max3_f32 %s, %s%s, %s%s, %s%s' % (v(d), sg, v(p), sg, v(p + 1), sg, v(p + 2)))
            A('v_max3_f32 %s, %s%s, %s%s, %s%s' % (v(d + 1), sg, v(p + 8), sg, v(p + 9), sg, v(p + 10)))
            for (x, y) in ((3, 4), (5, 6)): A('v_max3_f32 %s, %s, %s%s, %s%s' % (v(d), v(d), sg, v(p + x), sg, v(p + y)))
            for (x, y) in ((11, 12), (13, 14)): A('v_max3_f32 %s, %s, %s%s, %s%s' % (v(d + 1), v(d + 1), sg, v(p + x), sg, v(p + y)))
            A('v_max_f32 %s, %s, %s' % (v(d), v(d), v(d + 1)))
        A('v_permlane32_swap_b32 %s, %s' % (v(Z), v(T))); A('v_max_f32 %s, %s, %s' % (v(Z), v(Z), v(T)))
        A('v_mul_f32 %s, %s, %s' % (v(Z), v(vC), v(Z))); A('v_mov_b32 %s, %s' % (v(T), v(Z)))
        A('v_permlane32_swap_b32 %s, %s' % (v(Z), v(T)))
        for (e, z, ng) in ((ep, Z, 0), (en, T, 1)):
            for u in VAL:
                if pk and u not in (6, 14):
                    if u & 1 == 0: A('v_pk_fma_f32 %s, %s, %s, %s op_sel_hi:[1,0,0] neg_lo:[%d,0,1] neg_hi:[%d,0,1]' % (v(e + u, 2), v(p + u, 2), v(vC, 2), v(z, 2), ng, ng))
                else: A('v_fma_f32 %s, %s%s, %s, -%s' % (v(e + u), '-' if ng else '', v(p + u), v(vC), v(z)))
                A('v_exp_f32 %s, %s' % (v(e + u), v(e + u)))
        for (e, S, z) in ((ep, S1, Z), (en, S2, T)):
            if pk:
                A('v_pk_add_f32 %s, %s, %s' % (v(S, 2), v(e, 2), v(e + 2, 2)))
                for u in (4, 6, 8, 10, 12, 14): A('v_pk_add_f32 %s, %s, %s' % (v(S, 2), v(S, 2), v(e + u, 2)))
            else:
                A('v_add_f32 %s, %s, %s' % (v(S), v(e), v(e + 1))); A('v_add_f32 %s, %s, %s' % (v(S + 1), v(e + 8), v(e + 9)))
                for u in range(2, 7):
                    A('v_add_f32 %s, %s, %s' % (v(S), v(S), v(e + u))); A('v_add_f32 %s, %s, %s' % (v(S + 1), v(S + 1), v(e + 8 + u)))
            A('v_add_f32 %s, %s, %s' % (v(S), v(S), v(S + 1)))
        A('v_permlane32_swap_b32 %s, %s' % (v(S1), v(S2))); A('v_add_f32 %s, %s, %s' % (v(S1), v(S1), v(S2)))
        A('v_rcp_f32 %s, %s' % (v(S1), v(S1))); A('v_mov_b32 %s, %s' % (v(S2), v(S1)))
        A('v_permlane32_swap_b32 %s, %s' % (v(S1), v(S2)))
        for (e, z) in ((ep, S1), (en, S2)):
            for u in range(8):
                if pk: A('v_pk_mul_f32 %s, %s, %s op_sel_hi:[1,0]' % (v(e + 2 * u, 2), v(e + 2 * u, 2), v(z, 2)))
                else:
                    for k in range(1 if u in (3, 7) else 2): A('v_mul_f32 %s, %s, %s' % (v(e + 2 * u + k), v(e + 2 * u + k), v(z)))
                A('v_cvt_pk_bf16_f32 %s, %s, %s' % (v(e + u), v(e + 2 * u), '0' if (u in (3, 7) and not pk) else v(e + 2 * u + 1)))
        return L

    def elu1(self, p, e, pads, pk):
        L = []; A = L.append
        for u in range(0, 16, 2):
            n = 1 if (pads and u in (6, 14)) else 2
            if pk and n == 2: A('v_pk_mul_f32 %s, %s, %s op_sel_hi:[1,0]' % (v(e + u, 2), v(p + u, 2), v(vC, 2)))
            for k in range(n):
                if not (pk and n == 2): A('v_mul_f32 %s, %s, %s' % (v(e + u + k), v(vC), v(p + u + k)))
                A('v_exp_f32_e64 %s, %s clamp' % (v(e + u + k), v(e + u + k)))
                A('v_max_f32 %s, 0x358637bd, %s' % (v(p + u + k), v(p + u + k)))
                if not (pk and n == 2): A('v_add_f32 %s, %s, %s' % (v(e + u + k), v(e + u + k), v(p + u + k)))
            if pk and n == 2: A('v_pk_add_f32 %s, %s, %s' % (v(e + u, 2), v(e + u, 2), v(p + u, 2)))
            A('v_cvt_pk_bf16_f32 %s, %s, %s' % (v(e + u // 2), v(e + u), v(e + u + 1) if n == 2 else '0'))
        return L

    def nonce_load(self): return [('global_load_dwordx2 %s, %s, s[%d:%d] sc1' % (v(vN, 2), v(vZ), sDBG, sDBG + 1), 'nonce')]
    def use_nonce(self, br):
        L = []; A = L.append
        t0, t1 = vXR2, vXR2 + 1
        A('v_readfirstlane_b32 %s, %s' % (s(sN0), v(vN))); A('v_readfirstlane_b32 %s, %s' % (s(sN1), v(vN + 1)))
        A('v_cndmask_b32_e64 %s, %s, %s, s[%d:%d]' % (v(t0), v(vN), v(vN + 1), sM2, sM2 + 1))
        A('v_lshlrev_b32 %s, 16, %s' % (v(t1), v(t0))); A('v_and_b32 %s, 0xffff0000, %s' % (v(t0), v(t0)))
        A('v_cndmask_b32_e64 %s, %s, %s, s[%d:%d]' % (v(vTAG), v(t1), v(t0), sM1, sM1 + 1))
        if br == 'A': A('v_and_b32 %s, %s, %s' % (v(vTAG), s(sXB), v(vTAG)))
        A('s_and_b32 %s, %s, 0xfffffff0' % (s(sROT), s(sN1))); A('s_or_b32 %s, %s, %s' % (s(sREC), s(sXCC), s(sROT)))
        A('v_mov_b32 %s, %s' % (v(vN + 1), s(sREC)))
        L.append(('buffer_store_dwordx2 %s, %s, s[%d:%d], %s offen sc1' % (v(vN, 2), v(vT), SWS, SWS + 3, s(sRECA)), 'side'))
        return L
    def nonce_chk(self, br):
        return ['L_nonce_chk%s:' % br, 's_min_u32 %s, %s, %s' % (s(sT2), s(sN0), s(sN1)), 's_cmp_eq_u32 %s, 0' % s(sT2), 's_cbranch_scc1 L_nonce_retry%s' % br]
    def nonce_retry(self, br):
        return ['L_nonce_retry%s:' % br, '@assume_idle', 's_sleep 1'] + SPIN + self.nonce_load() + self.use_nonce(br) + ['s_branch L_nonce_chk%s' % br]
    def side_loads(self):
        c = self.cfg
        L = []
        L += self.touches('p2')
        if not any('p' in x for x in c.touch.values()): L.append(('buffer_load_dword %s, %s, s[%d:%d], %s offen %s' % (v(vDUM), v(vPRE), SWS, SWS + 3, s(sOBX), c.prefl), 'pre'))
        L += [('buffer_load_dword %s, %s, s[%d:%d], %s offen %s' % (v(vDUM), v(vZ), SWS, SWS + 3, s(sFLW), c.prefl), 'side')]
        if c.pre_part: L += [('buffer_load_dword %s, %s, s[%d:%d], %s offen sc1' % (v(vDUM), v(vL16), SWS, SWS + 3, s(sPX)), 'touch8')]
        return L

    def middle(self, br):
        c = self.cfg; B = br == 'B'; NT = 2 if B else 1
        L = []; A = L.append
        R = []; A = R.append
        if not B:
            A('s_cmp_ge_u32 %s, 2' % s(sW)); A('s_cselect_b32 %s, 0, -1' % s(sXB))
        tn = lambda tile, sg: (vP if sg == 0 else vK) + 16 * tile
        def featk(tile):
            X = self.pack(vK + 16 * tile) + self.zero_hi_pads(vK + 16 * tile)
            for t in range(2):
                k4 = v(vK + 16 * tile + 4 * t, 4); w4 = v(vPH + 4 * t, 4)
                X.append((mfma(vP + 16 * tile, w4 if B else k4, k4 if B else w4, None if t == 0 else vP + 16 * tile), 'hi'))
            X += self.softmax(vP + 16 * tile, vE + 32 * tile, vE + 32 * tile + 16, vT2 + 8 * tile, c.pk0 and tile == 0) if B else self.elu1(vP + 16 * tile, vE + 32 * tile, False, c.pk0 and tile == 0)
            if B:
                for sg in range(2):
                    for t in range(2):
                        X.append((mfma(tn(tile, sg), v(vE + 32 * tile + 16 * sg + 4 * t, 4), v(vID + 4 * t, 4), None if t == 0 else tn(tile, sg)), 'hi2' if tile else 'hi3'))
                    X += self.pack(tn(tile, sg))
            return X
        wv = []
        for k in range(c.wv_early, 7): wv += self.dma_w(k, 2, L_WV, 'wv%d' % k, k in (c.wv_early, 4))
        R += featk(0)
        for i in range(7, 14):
            R += self.xiter(i, wv if i == max(7, 13 - c.depth) else ())
            if i - 7 < c.wv_early:
                R += self.gemm(vV, vWRk, L_WV - L_WK, False, 4, {0: ['@waitvm wv%d' % (c.wv_early - 1), 's_barrier']}, ks=range(4 * (i - 7), 4 * (i - 6)))
        if c.stamps and not c.lite: R.append(('s_memtime s[%d:%d]' % (SX + 2, SX + 3), 'nowait'))
        R += featk(1)
        wq = self.nonce_load()
        for k in range(c.wq_pre): wq += self.dma_w(k, 0, L_WQ, 'wq%d' % k, k in (0, 4))
        wq += ([] if c.pre_q else self.side_loads()) + self.use_nonce(br)
        hooks = {}; k0 = c.wv_early
        for k1 in c.wv_bar:
            hooks[4 * k0] = (['@waitlgkm xr13'] if k0 == c.wv_early else []) + ['@waitvm wv%d' % (k1 - 1), 's_barrier'] + (wq if k0 == max(c.wq_at, c.wv_early) else []); k0 = k1
        R += self.gemm(vV, vWRk, L_WV - L_WK, False, 0, hooks, lead=True, ks=range(4 * c.wv_early, 28))
        A('v_mov_b32 %s, 0x3f803f80' % v(vXR2 + 3))
        for tile in range(2):
            R += self.pack(vV + 16 * tile)
            for u in range(8): A('v_cndmask_b32_e64 %s, %s, %s, s[%d:%d]' % (v(vV + 16 * tile + u), v(vV + 16 * tile + u), v(vXR2 + 3), sE28, sE28 + 1))
        for tile in range(2):
            for sg in reversed(range(NT)):
                src = tn(tile, sg) if B else vE + 32 * tile
                for t in range(2):
                    A(mfma(vKV + 16 * sg, v(src + 4 * t, 4), v(vV + 16 * tile + 4 * t, 4), None if (tile == 0 and t == 0) else vKV + 16 * sg))
        t0, t1, t2 = vXR, vXR + 1, vXR2 + 2
        A('v_add_u32 %s, %s, %s' % (v(t0), s(sSCR), v(vL16)))
        for q in ((4, 5, 6, 7, 2, 3) if B else range(4)): A('ds_write_b128 %s, %s offset:%d' % (v(t0), v(vKV + 4 * q, 4), 16384 * (q >> 2) + 1024 * (q & 3)))
        for d in range(1, 4): A('v_xor_b32 %s, %d, %s' % (v(t0 + d), 4096 * d, v(t0)))
        if not B:
            A('s_cmp_ge_u32 %s, 2' % s(sW)); A('s_cselect_b32 %s, 0x%x, 0' % (s(sA), OOB)); A('v_add_u32 %s, %s, %s' % (v(t2), s(sA), v(vL16)))
        A('v_mov_b32 %s, 0xffff' % v(vXD))
        if c.thr: L += ['s_lshr_b32 %s, 0x2a54, %s' % (s(sT2), s(sH)), 's_bitcmp0_b32 %s, 0' % s(sT2), 's_cselect_b64 vcc, -1, 0']
        L += self.throttle(self.sched(R, 'phase2' + br, boost={'hi': 9000, 'kk': 12000, 'lead': 5000, 'hi2': c.hi2, 'hi3': c.hi2 + c.t0boost}, tight=c.p2_tight), br)
        if c.stamps and not c.lite: L += ['@waitlgkm_all', 'v_writelane_b32 %s, %s, 2' % (v(vST), s(SX + 2))]
        L += self.stamp(3)
        g0 = len(L)
        L += ['s_getpc_b64 s[%d:%d]' % (sTAB, sTAB + 1), 'L_pc%s:' % br, 's_add_u32 %s, %s, L_tab - L_pc%s' % (s(sTAB), s(sTAB), br), 's_addc_u32 %s, %s, 0' % (s(sTAB + 1), s(sTAB + 1))]
        L += self.nonce_chk(br)
        mg = c.merge_q
        X = []; A = X.append
        A('@waitlgkm_all')
        if mg: A('@waitvm wq%d' % (mg - 1))
        A('s_barrier')
        L += X; self.glue(L[g0:]); X = []; A = X.append
        for d in range(1, 4):
            for hf in range(2): X.append(('ds_read_b128 %s, %s offset:%d' % (v(vV + 8 * d + 4 * hf, 4), v(t0 + d), (16384 * (d >> 1) if B else 0) + 2048 * (d & 1) + 1024 * hf), 'exr'))
        for d in range(1, 4):
            if mg:
                for u in range(7): A('v_add_f32 %s, %s, %s' % (v(vKV + u), v(vKV + u), v(vV + 8 * d + u)))
            else:
                for u in range(0, 8, 2): A('v_pk_add_f32 %s, %s, %s' % (v(vKV + u, 2), v(vKV + u, 2), v(vV + 8 * d + u, 2)))
        X += self.pack(vKV, 4)
        A('v_bfi_b32 %s, %s, %s, %s' % (v(vKV + 3), v(vXD), v(vKV + 3), v(vTAG)))
        X.append(('buffer_store_dwordx4 %s, %s, s[%d:%d], %s offen sc1' % (v(vKV, 4), v(vL16 if B else t2), SWS, SWS + 3, s(sPX)), 'pst'))
        tm = c.q_tm and B
        X2 = ['@waitlgkm exr', '@waitvm wq6', 's_barrier']
        if mg: R = X + self.gemm(vK, vWRq, L_WQ, True, 4, tiles=(0,) if tm else (0, 1), ks=range(4 * mg)) + X2
        else:
            L += self.glue(X + self.stamp(4) + X2); R = []
        A = R.append
        t0, t1, t2 = vXR, vXR + 1, vXR + 2
        A('v_add_u32 %s, 2560, %s' % (v(vXD + 1), v(vWOD))); A('v_xor_b32 %s, 32, %s' % (v(vXD + 3), v(vWOD)))
        A('v_add_u32 %s, 5120, %s' % (v(vXD + 2), v(vXD + 3))); A('v_add_u32 %s, 7680, %s' % (v(vXD + 3), v(vXD + 3)))
        A('s_mul_i32 %s, %s, 14336' % (s(sWOS), s(sW))); A('s_lshl_b32 %s, %s, 8' % (s(sA), s(sCB))); A('s_add_u32 %s, %s, %s' % (s(sWOS), s(sWOS), s(sA)))
        A('v_and_b32 %s, 15, %s' % (v(vXR + 3), v(vL))); A('v_lshlrev_b32 %s, 3, %s' % (v(vXR + 3), v(vXR + 3)))
        A('v_lshrrev_b32 %s, 4, %s' % (v(t1), v(vL))); A('v_lshlrev_b32 %s, 1, %s' % (v(t0), v(vXR + 3))); A('v_lshl_add_u32 %s, %s, 10, %s' % (v(t2), v(t1), v(t0)))
        A('s_add_u32 %s, %s, %d' % (s(sB_), s(sSET if B else sM0W), L_MISC))
        A('v_lshl_add_u32 %s, %s, 3, %s' % (v(vXR2 + 3), v(t1), v(t0))); A('v_add_u32 %s, %s, %s' % (v(t0), s(sB_), v(vXR2 + 3))); A('v_add_u32 %s, %d, %s' % (v(vXR2 + 3), L_MISC + 4096, v(vXR2 + 3)))
        A('v_cndmask_b32_e64 %s, %s, %s, s[%d:%d]' % (v(vXR2 + 3), v(t0), v(vXR2 + 3), sHI, sHI + 1))
        if B: A('v_mov_b32 %s, %s' % (v(t0), v(t2)))
        else: A('v_sub_u32 %s, %s, %s' % (v(t0), v(vXR2 + 2), v(vL16))); A('v_add_u32 %s, %s, %s' % (v(t0), v(t0), v(t2)))
        A('v_and_b32 %s, 1, %s' % (v(t1), v(vL))); A('v_lshlrev_b32 %s, 4, %s' % (v(t1), v(t1))); A('v_mov_b32 %s, 0x3f80' % v(t2)); A('v_lshlrev_b32 %s, %s, %s' % (v(t2), v(t1), v(t2)))
        A('v_and_b32 %s, 15, %s' % (v(t1), v(vL))); A('v_cmp_eq_u32 vcc, 7, %s' % v(t1)); A('v_cndmask_b32_e64 %s, %s, 0, vcc' % (v(t2), v(t2))); A('v_lshrrev_b32 %s, 1, %s' % (v(t1), v(t1)))
        for i in range(4):
            r = (sT0, sFAR)[i & 1]
            A('v_cmp_eq_u32_e64 s[%d:%d], %d, %s' % (r, r + 1, i, v(t1))); A('v_cndmask_b32_e64 %s, 0, %s, s[%d:%d]' % (v(vID + i), v(t2), r, r + 1))
        wo_block = self.wo_block
        if c.pre_q: R += self.side_loads()
        for m in range(c.wo_before): R += wo_block(m)
        npart = len(R); R += self.part_loads(br)
        for m in range(c.wo_before, c.wo_mid): R += wo_block(m)
        tabs = self.table_loads()
        if not tm: R += self.gemm(vK, vWRq, L_WQ, True, 4, ks=range(4 * mg, 28))
        for tile in range(2):
            if tm: R += self.gemm(vK, vWRq, L_WQ, True, 4 + 28 * tile, tiles=(tile,), ks=range(0 if tile else 4 * mg, 28))
            R += self.pack(vK + 16 * tile) + self.zero_hi_pads(vK + 16 * tile)
            for t in range(2):
                R.append((mfma(vP + 16 * tile, v(vPH + 4 * t, 4), v(vK + 16 * tile + 4 * t, 4), None if t == 0 else vP + 16 * tile), 'hi' if tile == 0 else None))
        for tile in range(2):
            pk = not (tm and tile == 0)
            R += self.softmax(vP + 16 * tile, vE + 32 * tile, vE + 32 * tile + 16, vT2 + 8 * tile, pk) if B else self.elu1(vP + 16 * tile, vE + 32 * tile, True, True)
        vIM = [vWD, vWDq, vXR2 + 2, vWRq]
        R += ['s_add_u32 %s, %s, %d' % (s(sB_), s(sSET), L_MISC), 'v_add_u32 %s, %s, %s' % (v(vIM[0]), s(sB_), v(vL16))]
        for q in range(1, 2 * NT): R.append('v_xor_b32 %s, %d, %s' % (v(vIM[q]), 1024 * q, v(vIM[0])))
        if c.tab_late: late0 = tabs; tabs = []
        else: late0 = []
        L += self.sched(R + tabs, 'q' + br, release={npart: (c.rel_part if B else c.rel_partA) + (330 if mg else 0)}, boost={'hi': 4000, 'pst': 30000, 'exr': 40000}, tight=c.q_tight)
        L += self.stamp(6)
        A = L.append
        A('@waitvm part'); self.glue(L[-1:])
        L += self.stamp(5)
        A('L_part_chk%s:' % br)
        R = []; A = R.append
        G0 = vKV
        for p in range(8): A('v_mfma_f32_16x16x32_bf16 %s, %s, %s, %s' % (v(vV + 4 * (p & 3), 4), v(vID, 4), v(G0 + 4 * p, 4), v(vV + 4 * (p & 3), 4) if p >= 4 else '0'))
        x, z, y = vT2, vT2 + 1, vT2 + 12
        A('v_max3_u32 %s, %s, %s, %s' % (v(x), v(G0 + 3), v(G0 + 7), v(G0 + 11))); A('v_min3_u32 %s, %s, %s, %s' % (v(y), v(G0 + 3), v(G0 + 7), v(G0 + 11)))
        A('v_max3_u32 %s, %s, %s, %s' % (v(x), v(x), v(G0 + 15), v(G0 + 19))); A('v_min3_u32 %s, %s, %s, %s' % (v(y), v(y), v(G0 + 15), v(G0 + 19)))
        A('v_max3_u32 %s, %s, %s, %s' % (v(x), v(x), v(G0 + 23), v(G0 + 27))); A('v_min3_u32 %s, %s, %s, %s' % (v(y), v(y), v(G0 + 23), v(G0 + 27)))
        A('v_max_u32 %s, %s, %s' % (v(x), v(x), v(G0 + 31))); A('v_min_u32 %s, %s, %s' % (v(y), v(y), v(G0 + 31)))
        A('v_xor_b32 %s, %s, %s' % (v(x), v(x), v(vTAG))); A('v_xor_b32 %s, %s, %s' % (v(y), v(y), v(vTAG)))
        A('v_or_b32 %s, %s, %s' % (v(x), v(x), v(y))); A('v_lshrrev_b32 %s, 16, %s' % (v(x), v(x)))
        A('v_xor_b32 %s, %s, %s' % (v(y), s(sN0), v(vN))); A('v_xor_b32 %s, %s, %s' % (v(z), s(sREC), v(vN + 1)))
        A('v_cmp_ne_u32_e64 s[%d:%d], 0, %s' % (sFAR, sFAR + 1, v(z)))
        A('v_lshrrev_b32 %s, 4, %s' % (v(z), v(z))); A('v_or3_b32 %s, %s, %s, %s' % (v(x), v(x), v(y), v(z)))
        A('v_cmp_ne_u32 vcc, 0, %s' % v(x))
        L += self.sched(R, 'sum' + br)
        A = L.append
        A('s_cbranch_vccnz L_part_retry%s' % br)
        late = list(late0)
        for m in range(c.wo_mid, c.wo_imp): late += wo_block(m)
        nl = c.late0
        L += late[:nl]
        for q in range(4): L += self.pack(vV + 4 * q, 2)
        for q in range(4): A('ds_write_b64 %s, %s offset:%d' % (v(vXR2 + 3), v(vV + 4 * q, 2), 256 * q))
        A('@waitlgkm_all'); A('s_barrier')
        self.glue(L[-nl - 15:])
        R = []; A = R.append
        R += late[nl:]
        early = self.wo_reads()[:3 + 8 * c.wo_early]
        for q in range(2 * NT): A('ds_read_b128 %s, %s' % (v(vV + 16 + 4 * q, 4), v(vIM[q])))
        for tile in range(2):
            for q in range(2 * NT):
                A(mfma(vP + 16 * tile, v(vV + 16 + 4 * q, 4), v(vE + 32 * tile + 16 * (q >> 1) + 4 * (q & 1), 4), None if q == 0 else vP + 16 * tile))
        for tile in range(2):
            P = vP + 16 * tile; d = vT2 + 4 + 4 * tile
            A('v_mov_b32 %s, %s' % (v(d), v(P + 12))); A('v_permlane32_swap_b32 %s, %s' % (v(P + 12), v(d)))
            A('v_add_f32 %s, 0x358637bd, %s' % (v(d), v(d))); A('v_rcp_f32 %s, %s' % (v(d), v(d)))
            for u in range(8):
                if tile: A('v_pk_mul_f32 %s, %s, %s op_sel_hi:[1,0]' % (v(P + 2 * u, 2), v(P + 2 * u, 2), v(d, 2)))
                else:
                    for k in range(2): A('v_mul_f32 %s, %s, %s' % (v(P + 2 * u + k), v(P + 2 * u + k), v(d)))
                A('v_cvt_pk_bf16_f32 %s, %s, %s' % (v(P + u), v(P + 2 * u), v(P + 2 * u + 1)))
        A('v_mov_b32 %s, %s' % (v(vN), s(sN0))); A('v_mov_b32 %s, %s' % (v(vN + 1), s(sN1)))
        A('s_lshl_b32 %s, %s, 3' % (s(sT2), s(sH))); A('s_add_u32 %s, %s, %s' % (s(sC_), s(sFLW), s(sT2))); A('s_xor_b32 %s, %s, 32768' % (s(sOBX), s(sOB1))); A('s_add_u32 %s, %s, 16384' % (s(sA), s(sOB1))); A('s_add_u32 %s, %s, 16384' % (s(sB_), s(sOBX)))
        L += self.sched(R + early, 'o' + br, lowds={id(x) for x in early}, vmlow=True)
        L += self.stamp(7)
        A = L.append
        if c.force_global: A('s_branch L_far')
        A('s_cmp_lg_u64 s[%d:%d], 0' % (sFAR, sFAR + 1)); A('s_cbranch_scc1 L_far')
        return L
    def publish(self, fl):
        c = self.cfg; L = []
        for tile in range(2):
            for t in range(2):
                L.append(('buffer_store_dwordx4 %s, %s, s[%d:%d], %s offen %s' % (v(vP + 16 * tile + 4 * t, 4), v(vL16), SWS, SWS + 3, s(((sOB1, sA), (sOBX, sB_))[tile][t]), fl), 'ost'))
        for m in range(c.wo_imp, 7 - c.wo_g3): L += self.wo_block(m)
        L += self.p3_setup()
        L = self.sched(L, 'pub')
        L += ['@waitvm ost']
        L.append('buffer_store_dwordx2 %s, %s, s[%d:%d], %s offen %s' % (v(vN, 2), v(vT), SWS, SWS + 3, s(sC_), fl))
        return L
    def wo_block(self, m, tag='wo'):
        X = ['s_add_u32 m0, %s, %d' % (s(sM0X), L_WO + 16384 * m)]
        if m: X.append('s_add_u32 %s, %s, %d' % (s(sWOS), s(sWOS), 57344))
        return X + [('buffer_load_dwordx4 %s, s[%d:%d], %s offen offset:%d %s lds' % (v(vXD + j if j else vWOD), SWO, SWO + 3, s(sWOS), 1024 * j, self.cfg.wofl), tag) for j in range(4)]
    def part_loads(self, br):
        L = [('buffer_load_dwordx2 %s, %s, s[%d:%d], %s offen sc1' % (v(vN, 2), v(vXR + 3), SWS, SWS + 3, s(sRECL)), 'rec')]
        for p in range(8):
            L.append(('buffer_load_dwordx4 %s, %s, s[%d:%d], %s offen offset:%d sc1' % (v(vKV + 4 * p, 4), v(vXR), SWS, SWS + 3, s(sPL1 if p >= 4 else sPL0), 256 * (p & 3)), 'part'))
        return L
    def part_retry(self, br):
        P = self.part_loads(br)
        L = ['L_part_retry%s:' % br, '@assume_idle', '@waitvm_all'] + SPIN + [P[0]]
        for p in range(8):
            L += ['v_xor_b32 %s, %s, %s' % (v(vT2), v(vKV + 4 * p + 3), v(vTAG)), 'v_cmp_lt_u32 vcc, 0xffff, %s' % v(vT2), 's_cbranch_vccz L_got%s%d' % (br, p), (P[1 + p][0], 'untracked'), 'L_got%s%d:' % (br, p)]
        return L + ['@waitvm_all', 's_branch L_part_chk%s' % br]
    def far(self):
        return ['L_far:', '@assume_idle', '@waitvm_all', 's_nop 4'] + self.publish('sc1') + ['s_branch L_join']
    def wo_reads(self):
        b = [vWO0, vWO0 + 1, vXR2, vXR2 + 1]
        L = ['v_xor_b32 %s, 32, %s' % (v(b[1]), v(b[0])), 'v_add_u32 %s, 0x10000, %s' % (v(b[2]), v(b[0])), 'v_add_u32 %s, 0x10000, %s' % (v(b[3]), v(b[1]))]
        for k in range(14):
            for nt in range(2):
                for i in range(2):
                    off = (32 * k + 4 * i) * 256
                    L.append('ds_read_b64_tr_b16 %s, %s offset:%d' % (a(8 * k + 4 * nt + 2 * i, 2), v(b[nt + 2 * (off >> 16)]), off & 0xffff))
        return L

    def p3_setup(self):
        L = []; A = L.append
        A('s_lshl_b32 %s, %s, 2' % (s(sT2), s(sRB))); A('s_add_u32 %s, %s, %s' % (s(sT2), s(sT2), s(sRQ))); A('s_mul_i32 %s, %s, %d' % (s(sD_), s(sT2), 64 * 1792))
        A('s_mul_i32 %s, %s, 896' % (s(sT2), s(sBR))); A('s_add_u32 %s, %s, %s' % (s(sD_), s(sD_), s(sT2)))
        A('s_lshl_b32 %s, %s, 2' % (s(sT2), s(sCB))); A('s_add_u32 %s, %s, %s' % (s(sT2), s(sT2), s(sW)))
        A('s_cmp_ge_u32 %s, 14' % s(sT2)); A('s_cselect_b32 %s, 0x%x, 0' % (s(sA), OOB))
        A('s_lshl_b32 %s, %s, 6' % (s(sT2), s(sT2))); A('s_add_u32 %s, %s, %s' % (s(sXO), s(sD_), s(sT2)))
        for b in range(1, 4): A('s_add_u32 %s, %s, %d' % (s(sXO + b), s(sXO), b * 16 * 1792))
        t0, t1, t2 = vT2 + 10, vT2 + 11, vT2 + 12
        A('s_lshl_b32 %s, %s, 12' % (s(sB_), s(sW))); A('s_add_u32 %s, %s, %d' % (s(sB_), s(sB_), L_OT))
        A('v_and_b32 %s, 15, %s' % (v(t0), v(vL))); A('v_lshlrev_b32 %s, 4, %s' % (v(vS16), v(t0))); A('v_lshl_add_u32 %s, %s, 6, %s' % (v(t0), v(t0), s(sB_)))
        A('v_bfe_u32 %s, %s, 4, 1' % (v(t1), v(vL))); A('v_lshl_add_u32 %s, %s, 3, %s' % (v(t0), v(t1), v(t0)))
        A('v_bfe_u32 %s, %s, 1, 2' % (v(t1), v(vL))); A('v_lshrrev_b32 %s, 5, %s' % (v(t2), v(vL))); A('v_xor_b32 %s, %s, %s' % (v(t1), v(t1), v(t2)))
        A('v_lshl_add_u32 %s, %s, 4, %s' % (v(vOW), v(t1), v(t0))); A('v_xor_b32 %s, 32, %s' % (v(vOW + 1), v(vOW)))
        A('v_bfe_u32 %s, %s, 3, 2' % (v(t1), v(vL))); A('v_xor_b32 %s, %s, %s' % (v(t1), v(t1), v(vL))); A('v_and_b32 %s, 3, %s' % (v(t1), v(t1)))
        A('v_lshrrev_b32 %s, 2, %s' % (v(t0), v(vL))); A('v_lshl_add_u32 %s, %s, 6, %s' % (v(t2), v(t0), s(sB_))); A('v_lshl_add_u32 %s, %s, 4, %s' % (v(vOR), v(t1), v(t2)))
        A('v_mul_u32_u24 %s, 1792, %s' % (v(t0), v(t0))); A('v_and_b32 %s, 3, %s' % (v(t1), v(vL))); A('v_lshl_add_u32 %s, %s, 4, %s' % (v(t0), v(t1), v(t0)))
        A('v_add_u32 %s, %s, %s' % (v(vOG), s(sA), v(t0)))
        A('v_and_b32 %s, 15, %s' % (v(t0), v(vL))); A('v_cmp_eq_u32_e64 s[%d:%d], %s, %s' % (sOWN, sOWN + 1, s(sH), v(t0)))
        for r in vOF: A('v_add_u32 %s, %s, %s' % (v(r), v(r), v(vS16)))
        A('s_lshl2_add_u32 %s, %s, %s' % (s(sT2), s(sGID), s(sRQ))); A('s_lshl2_add_u32 %s, %s, %s' % (s(sT2), s(sT2), s(sW)))
        A('s_lshl_b32 %s, %s, 14' % (s(sT2), s(sT2))); A('s_add_u32 %s, %s, %d' % (s(sD_), s(sT2), WS_O))
        A('s_lshl_b32 %s, %s, 14' % (s(sWOM), s(sW))); A('s_mov_b32 m0, %s' % s(sWOM))
        return L
    def table_loads(self):
        L = ['v_and_b32 %s, 0x300, %s' % (v(vWRk), v(vL16)), 'v_lshrrev_b32 %s, 2, %s' % (v(vWRk), v(vWRk))]
        for q in range(4): L.append(('global_load_dwordx%d %s, %s, s[%d:%d] offset:%d' % (4 if q < 3 else 2, v(vOF[4 * q], 4 if q < 3 else 2), v(vWRk), sTAB, sTAB + 1, 16 * q), 'tab'))
        return L
    def table(self, pad):
        T = []
        for g in range(4):
            for r in range(16):
                h, u = divmod(8 * (r >> 1) + 2 * g + (r & 1), 7)
                T.append(h * 1024 + (u >> 2) * 16384 + (u & 1) * 512 + ((u >> 1) & 1) * 8)
        return ['.p2align 6', '.type L_tab,@object', 'L_tab:'] + ['.long %d' % x for x in T] + (['.fill L_PAD, 4, 0', '.size L_tab, 256 + 4 * L_PAD'] if pad else ['.size L_tab, 256', '.p2align 7'])

    def tail(self):
        c = self.cfg
        L = ['L_pub:'] + self.publish(''); A = L.append
        A('L_join:')
        L += self.stamp(8)
        g3 = 7 - c.wo_g3
        poll = 'buffer_load_dwordx2 %s, %s, s[%d:%d], %s offen sc1' % (v(vT2, 2), v(vXR + 3), SWS, SWS + 3, s(sFLG))
        assert c.wo_early >= 2
        if c.poll_first:
            A(poll); A('@waitlgkm_all'); A('s_barrier'); L += self.wo_reads()[3 + 8 * c.wo_early:3 + 8 * c.wo_imp]
            wrest = self.wo_reads()[3 + 8 * c.wo_imp:3 + 8 * g3]
        else:
            A('@waitvm wo'); A(poll); A('@waitlgkm_all'); A('s_barrier'); L += self.wo_reads()[3 + 8 * c.wo_early:3 + 8 * g3]
            wrest = []
        def test(r): return ['v_xor_b32 %s, %s, %s' % (v(r), s(sN0), v(r)), 'v_xor_b32 %s, %s, %s' % (v(r + 1), s(sN1), v(r + 1)),
                             'v_or_b32 %s, %s, %s' % (v(r), v(r), v(r + 1)), 'v_cmp_ne_u32 vcc, 0, %s' % v(r), 's_andn2_b64 vcc, vcc, s[%d:%d]' % (sOWN, sOWN + 1)]
        A('L_poll:')
        L += test(vT2); A('s_cbranch_vccnz L_repoll'); A('L_seen:')
        p2 = poll.replace(v(vT2, 2), v(vT2 + 14, 2))
        self.repoll = ['L_repoll:', '@assume_idle', (poll, 'p1')] + SPIN + ['s_nop 15', (p2, 'p2')] + test(vT2) + ['s_cbranch_vccz L_seen2'] + test(vT2 + 14) + ['s_cbranch_vccnz L_repoll',
                       'L_seen2:', '@waitvm_all', 's_branch L_seen']
        L += self.stamp(9)
        od = []
        for h in range(16):
            if h and h % 4 == 0: od += ['s_add_u32 m0, %s, %d' % (s(sWOM), 1024 * h), 's_add_u32 %s, %s, 4096' % (s(sD_), s(sD_))]
            od.append(('buffer_load_dwordx4 %s, s[%d:%d], %s offen offset:%d sc1 lds' % (v(vL16), SWS, SWS + 3, s(sD_), 1024 * (h & 3)), 'o%d' % h))
        assert c.o_first % 4 == 0
        nf = [i for i, x in enumerate(od) if isinstance(x, tuple)][c.o_first - 1] + 1
        L += od[:nf]
        M16 = 'v_mfma_f32_16x16x32_bf16'
        st = {'have': -1}
        def gate(k):
            X = []; h = (8 * k + 7) // 7
            need = min(x for x in c.stages if x >= h)
            wg = k % 2 == 0 and k // 2 >= g3
            if st['have'] < need or wg:
                X = ['@waitvm o%d' % need + (' wog%d' % (k // 2) if wg else ''), 's_barrier']; st['have'] = max(need, st['have'])
            return X
        def rd(k, sg, i): return 'ds_read_b64 %s, %s offset:%d' % (v(vE + 4 * ((4 * k + sg) % 12) + 2 * i, 2), v(vOF[2 * (k % 7) + i]), (k // 7) * 8192 + (sg >> 1) * 32768 + (sg & 1) * 256)
        rds = lambda k: [rd(k, sg, i) for sg in range(4) for i in range(2)]
        later = od[nf:]
        for m in range(g3, 7): later += self.wo_block(m, 'wog%d' % m)
        L += gate(0) + rds(0) + gate(1)
        kt = 14 - c.tailk
        for k in range(kt):
            fill = []
            if k + 2 < 14:
                L += gate(k + 2); fill = (rds(1) if k == 0 else []) + rds(k + 2)
                if k >= c.wrest_at and wrest: fill = interleave(fill, wrest[:c.wrest_n]); del wrest[:c.wrest_n]
                assert not wrest or k + 1 < 2 * c.wo_imp
                if (k + 2) % 2 == 0 and (k + 2) // 2 >= g3: fill = interleave(fill, self.wo_reads()[3 + 4 * (k + 2):3 + 4 * (k + 2) + 8])
            per = -(-len(fill) // 8)
            for j in range(8):
                sg, nt = j >> 1, j & 1
                d = v(vK + 8 * sg + 4 * nt, 4)
                L.append('%s %s, %s, %s, %s' % (M16, d, a(8 * k + 4 * nt, 4), v(vE + 4 * ((4 * k + sg) % 12), 4), d if k else '0'))
                if later and k and j % c.g3_every == 0:
                    while not isinstance(later[0], tuple): L.append(later.pop(0))
                    L.append(later.pop(0))
                L += fill[per * j:per * (j + 1)]
        assert not later
        L += self.stamp(10)
        R = []; A = R.append
        for k in range(kt + 2, 14): assert not gate(k); R += rds(k)
        for sg in range(4):
            for k in range(kt, 14):
                for nt in range(2):
                    d = v(vK + 8 * sg + 4 * nt, 4)
                    R.append(('%s %s, %s, %s, %s' % (M16, d, a(8 * k + 4 * nt, 4), v(vE + 4 * ((4 * k + sg) % 12), 4), d), 'sg%d' % sg))
        for sg in range(4):
            for nt in range(2):
                d = vK + 8 * sg + 4 * nt
                R += self.pack(d, 2)
                A('ds_write_b64 %s, %s offset:%d' % (v(vOW + nt), v(d, 2), 1024 * sg))
            A('ds_read_b128 %s, %s offset:%d' % (v(vP + 4 * sg, 4), v(vOR), 1024 * sg))
            A('buffer_store_dwordx4 %s, %s, s[%d:%d], %s offen %s' % (v(vP + 4 * sg, 4), v(vOG), SOUT, SOUT + 3, s(sXO + sg), c.outfl))
        self.M.t += 3000
        L += self.sched(R, 'out', boost={'sg0': 4000, 'sg1': 3000, 'sg2': 2000})
        A = L.append
        if c.stamps:
            L += self.stamp(11)
            A('s_memrealtime s[%d:%d]' % (sT0, sT1)); A('@waitlgkm_all')
            A('v_writelane_b32 %s, %s, 12' % (v(vST), s(sT0)))
            A('s_lshl_b32 %s, s2, 2' % s(sT2)); A('s_add_u32 %s, %s, %s' % (s(sT2), s(sT2), s(sW))); A('s_lshl_b32 %s, %s, 8' % (s(sT2), s(sT2)))
            A('s_add_u32 %s, %s, %d' % (s(sT2), s(sT2), WS_STAMP))
            A('v_lshlrev_b32 %s, 2, %s' % (v(vT), v(vL)))
            for k in range(0 if not c.prost else 4, 4): A('v_writelane_b32 %s, s%d, %d' % (v(vST), 12 + 2 * k, 32 + k))
            A('buffer_store_dword %s, %s, s[%d:%d], %s offen' % (v(vST), v(vT), SWS, SWS + 3, s(sT2)))
        if c.leak:
            if c.leak == 11: L += self.stamp(11)
            A('s_lshl_b32 s11, s101, 2'); A('s_cmp_eq_u32 %s, %d' % (s(sBR), c.leak_br)); A('s_cselect_b32 s11, s11, 0'); A('s_memrealtime s[100:101]'); A('@waitlgkm_all')
            A('L_leak:'); A('s_memrealtime s[%d:%d]' % (sT0, sT1)); A('@waitlgkm_all'); A('s_sub_u32 %s, %s, s100' % (s(sT0), s(sT0))); A('s_cmp_lt_u32 %s, s11' % s(sT0)); A('s_cbranch_scc1 L_leak')
        if c.tfix:
            A('L_tfix:'); A('s_memrealtime s[%d:%d]' % (sT0, sT1)); A('@waitlgkm_all'); A('s_sub_u32 %s, %s, s100' % (s(sT0), s(sT0))); A('s_cmp_lt_u32 %s, %d' % (s(sT0), c.tfix)); A('s_cbranch_scc1 L_tfix')
        A('L_end:'); A('s_endpgm')
        return L

    def throttle(self, L, br):
        c = self.cfg
        if not c.thr: return L
        out = []; seen = set()
        for x in L:
            if isinstance(x, tuple) and x[1] is not None and x[1] not in seen and x[1] in c.thr_tags:
                if x[1] != 'wq': seen.add(x[1])
                n = self.nthr; self.nthr += 1
                out += ['s_cbranch_vccnz L_thr%d' % n, 'L_thb%d:' % n]
                self.thr_side += ['L_thr%d:' % n, 's_waitcnt vmcnt(%d)' % c.thr, 's_branch L_thb%d' % n]
            out.append(x)
        return out
    def marks(self, L):
        if not self.cfg.marks: return L
        out = []; seen = set()
        for x in L:
            t = x[0] if isinstance(x, tuple) else x
            hit = [k for k, (p, af) in enumerate(self.cfg.marks) if (t == p or t.startswith(p + ' ')) and k not in seen]
            for k in hit:
                if not self.cfg.marks[k][1]: out.append(('s_memtime s[%d:%d]' % (12 + 2 * k, 13 + 2 * k), 'nowait'))
            out.append(x)
            for k in hit:
                if self.cfg.marks[k][1]: out.append(('s_memtime s[%d:%d]' % (12 + 2 * k, 13 + 2 * k), 'nowait'))
                seen.add(k)
        return out
    def build(self):
        import re
        pro = self.prologue() + ['s_cmp_eq_u32 %s, 0' % s(sBR), 's_cbranch_scc1 L_pathA']
        MK = '.set MARK_A, 0'
        out = []; base = self.cfg
        for br in 'BA':
            import emit, sched
            c = copy.copy(base)
            for k, x in getattr(base, br).items(): assert hasattr(c, k), k; setattr(c, k, x)
            self.__init__(c); self.prologue()
            emit.MERGE = c.merge; sched.BURST = c.burst; sched.HOLD = c.hold
            hlp = [(x, 'untracked') if x.startswith('global_load') else x for x in self.help()] if (br == 'A' and self.cfg.help) else []
            body = hlp + self.part1(br) + self.stamp(14) + self.middle(br) + self.tail()
            code = finalize(self.marks(pro + [MK] + body)); k = code.index(MK)
            head, code = code[:k], code[k + 1:]
            side = finalize(self.repoll + self.far() + self.nonce_retry(br) + self.part_retry(br) + (self.mknonce() if br == 'B' else []))
            tab = self.table(br == 'A')
            if br == 'A':
                ren = lambda l: re.sub(r'\b(L_(?:end|pub|join|far|poll|repoll|seen2?|tab|leak|tfix))\b', r'\1A', l)
                code, side, tab = [ren(l) for l in ['L_pathA:'] + code], [ren(l) for l in side], [ren(l) for l in tab]
            else: code = head + code
            out.append((code, side + tab))
        return out

HEADER = open(os.path.join(os.path.dirname(os.path.abspath(__file__)), 'header.txt')).read()

def generate(cfg):
    import emit
    emit.MERGE = cfg.merge
    import sched
    sched.BURST = cfg.burst; sched.HOLD = cfg.hold
    g = G(cfg)
    (cb, sb), (ca, sa) = g.build()
    if cfg.align:
        from align import align
        hd = '.amdgcn_target "amdgcn-amd-amdhsa--gfx950"\n.text\n.set L_AOFF, 200\n.set L_PAD, 0\n'
        cb, p0, p1 = align(hd, cb, '\n'.join(sb + ca + sa) + '\n', cfg.align)
        ca, p2, p3 = align(hd, ca, '\n'.join(sa + cb + sb) + '\n', cfg.align)
        if cfg.verbose: sys.stderr.write('misalignment penalty %d -> %d, %d -> %d\n' % (p0, p1, p2, p3))
    body = cb + sb + ca + sa
    txt = HEADER
    if cfg.extra_empty:
        txt += '; @launch kernel=%s grid=(256,1,1) block=(256,1,1) lds=163840\n; @launch kernel=empty_kernel grid=(256,1,1) block=(256,1,1) lds=0\n' % KNAME
    else:
        txt += '; @launch grid=(256,1,1) block=(256,1,1) lds=163840\n'
    txt += '.amdgcn_target "amdgcn-amd-amdhsa--gfx950"\n.text\n.globl %s\n.p2align 8\n.type %s,@function\n%s:\n' % (KNAME, KNAME, KNAME)
    txt += '\n'.join(('' if l.endswith(':') else '    ') + l for l in body) + '\n'
    if cfg.extra_empty:
        txt += '.globl empty_kernel\n.p2align 8\n.type empty_kernel,@function\nempty_kernel:\n    s_endpgm\n'
        txt += '.section .rodata,"a"\n.p2align 6\n.amdhsa_kernel empty_kernel\n  .amdhsa_next_free_vgpr 8\n  .amdhsa_next_free_sgpr 16\n  .amdhsa_accum_offset 8\n  .amdhsa_group_segment_fixed_size 0\n  .amdhsa_kernarg_size 80\n  .amdhsa_user_sgpr_count 2\n  .amdhsa_user_sgpr_kernarg_segment_ptr 1\n  .amdhsa_system_sgpr_workgroup_id_x 1\n.end_amdhsa_kernel\n'
    txt += '.section .rodata,"a"\n.p2align 6\n.amdhsa_kernel %s\n' % KNAME
    txt += '  .amdhsa_next_free_vgpr 512\n  .amdhsa_next_free_sgpr 102\n  .amdhsa_accum_offset 256\n  .amdhsa_group_segment_fixed_size 0\n'
    txt += '  .amdhsa_kernarg_size 80\n  .amdhsa_user_sgpr_count 2\n  .amdhsa_user_sgpr_kernarg_segment_ptr 1\n  .amdhsa_system_sgpr_workgroup_id_x 1\n.end_amdhsa_kernel\n'
    import subprocess, tempfile, re
    d = tempfile.mkdtemp()
    open(d + '/a.s', 'w').write(txt.replace('L_PAD', '0').replace('L_AOFF', '200'))
    r = subprocess.run(['clang', '-x', 'assembler', '-target', 'amdgcn-amd-amdhsa', '-mcpu=gfx950', '-c', d + '/a.s', '-o', d + '/a.o'], capture_output=True, text=True)
    if r.returncode: raise Exception(r.stderr[:3000])
    r = subprocess.run(['llvm-readelf', '-S', '-s', d + '/a.o'], capture_output=True, text=True).stdout
    size = int(re.search(r'\.text\s+PROGBITS\s+\w+\s+\w+\s+(\w+)', r).group(1), 16)
    offa = int(re.search(r': (\w+)\s+\d+\s+\w+\s+\w+\s+\w+\s+\d+ L_pathA', r).group(1), 16)
    assert offa % 128 == 0 and 64 < offa // 128 and offa < 32768 and size - offa < 32768
    sys.stderr.write('code bytes: B %d A %d\n' % (offa, size - offa))
    return txt.replace('L_PAD', str((offa + 32768 + 256 - size) // 4)).replace('L_AOFF', str(offa // 128))

if __name__ == '__main__':
    cfg = Cfg()
    out = sys.argv[1]
    for kv in sys.argv[2:]:
        k, val = kv.split('=', 1); assert hasattr(cfg, k), k; setattr(cfg, k, eval(val))
    open(out, 'w').write(generate(cfg))
```

```python
import sys, os
from emit import finalize, interleave
from sched import schedule, Machine
import copy

KNAME = 'concat_heads__linear_attn_block__linear_kernel_hedgehog__prompt_kernel'

class Cfg:
    stamps = False; lite = False; fine = None; frange = (0, 1); marks = None; leak = None; leak_br = 1; tfix = 0; extra_empty = False; force_global = False; verbose = False
    rotmap = None; rottab = None; tswap = 0; pref_slots = 0
    xfl = ''; wfl = ''; wofl = ''; outfl = 'sc1'; prefl = 'sc1'; tfl = ''
    touch = {"p2": "o"}
    wv_bar = (1, 2, 4, 7); hi2 = 6000; q_tm = False
    rel_part = 1600; rel_partA = 1900; rel_nonce = 0
    wo_before = 2; wo_mid = 2; wo_imp = 5; wo_g3 = 1; tab_late = True; q_tight = False; p2_tight = False; wo_early = 2; late0 = 6; pre_q = False; ws_base = 0
    stages = (3, 5, 7, 11, 15); g3_every = 2; o_first = 8
    dslat = 130; merge = 24; burst = 24; hold = 12
    miss = {}; lines = {}
    wv_early = 0; wv_at = 7
    wq_pre = 7
    fake_n2 = False
    wq_at = 0
    align = 4
    flip = False
    delay = None
    help_plain = False
    help = 'xwX'
    merge_q = 2
    poll_first = True; wrest_at = 3; wrest_n = 4
    prost = False
    tailk = 3
    pk0 = False
    A = {}; B = {}
    pre_part = False
    tlb = False
    spre = ''
    hperm = None
    qfold = True; tab_acc = False
    thr = 0; thr_tags = ['x11', 'x12', 'x13', 'wv0', 'wv1', 'wv2', 'wv3', 'wv4', 'wv5', 'wv6', 'wq']
    depth = 4; order0 = 'w2 w3 x2 w4 x3 w5 w6 x4 x5'; wkbar = {0: 'wk1 phi', 2: 'wk3', 4: 'wk6'}; t0boost = 2000
    rate = 2.2; cap = 256; lat = 400; fifo = 4; wlines = 90; cold = 900; pmiss = 900; smiss = 1000

WS_XCC, WS_FLAG, WS_PART, WS_O, WS_STAMP = 4096, 8192, 65536, 2 << 20, 16 << 20
WS_BYTES = 32 << 20
L_WK, L_WV, L_MISC, L_WQ, L_WO, L_SCR, L_OT = 98304, 126976, 155648, 0, 32768, 32768, 65536
OOB = 0x40000000
sAX, sAW, sAWO, sBX, sBW, sPHI, sBWO, sOUT, sDBG, sWSP = 4, 6, 8, 10, 12, 14, 16, 18, 20, 22
SX, SW, SWO, SPHI, SWS, SOUT = 24, 28, 32, 36, 40, 44
sBR, sRB, sH, sW, sGID, sSLOT, sT0, sT1, sT2, sXCC = 48, 49, 50, 51, 52, 53, 54, 55, 56, 57
sN0, sN1 = 58, 59
sHI, sE28 = 60, 62
sXO, sWO_ = 64, 72
sSPIN, sFAR = 71, 72
sM0X, sM0W, sSH, sCB, sRQ, sPB = 80, 81, 82, 83, 84, 85
sA, sB_, sC_, sD_ = 86, 87, 88, 89
sOB1, sWOM, sDT, sROT, sXB, sWB, sOBX, sFLG, sT3, sREC, sRECA = 90, 91, 92, 93, 94, 95, 96, 97, 98, 99, 79
sOWN = 74
sM0K = 3
sPX, sPL0, sPL1, sSET, sRECL, sSCR = 4, 5, 6, 7, 8, 9
sWOS, sTAB = sXCC, SX
sFLW = sSLOT
sSGN = sSH
sM1, sM2 = SPHI, SPHI + 2
SPIN = ['s_add_u32 s71, s71, 1', 's_cmp_gt_u32 s71, 0x100000', 's_cbranch_scc1 L_end']
vL = 1
vXD, vWD, vWRq, vWRk, vZ = 2, 6, 7, 8, 9
vXR, vXR2 = 10, 14
vDUM, vT = 18, 19
vPH, vID, vC, vST, vN = 20, 28, 36, 37, 38
vK, vV, vP, vE, vKV, vT2 = 40, 72, 104, 136, 200, 232
vTAG, vL16 = 248, 249
vWO0, vWOD = 250, 252
vWDq, vWDv = 253, 251
vTCH, vTCO, vPRE = None, 254, 255
vS16, vOW, vOR, vOG = vT2 + 3, vT2 + 4, vT2 + 8, vT2 + 9
vOF = list(range(20, 28)) + list(range(32, 36)) + [254, 255]
aX, aWR = 0, 224

def v(r, n=1): return 'v%d' % r if n == 1 else 'v[%d:%d]' % (r, r + n - 1)
def a(r, n=1): return 'a%d' % r if n == 1 else 'a[%d:%d]' % (r, r + n - 1)
def s(r, n=1): return 's%d' % r if n == 1 else 's[%d:%d]' % (r, r + n - 1)
MF = 'v_mfma_f32_32x32x16_bf16'
def mfma(d, x, y, c): return '%s %s, %s, %s, %s' % (MF, v(d, 16), x, y, v(c, 16) if c is not None else '0')

class G:
    def __init__(self, cfg):
        self.cfg = c = cfg; self.npc = 0; self.nthr = 0; self.thr_side = []
        self.M = Machine(c.rate, c.cap, c.lat, fifo=c.fifo, lines={'wk': c.wlines, 'wv': c.wlines, 'wq': c.wlines, 'phi': 13, 'touch': 100, 'pre': 128, 'nonce': 4, 'side': 4, 'pref': 4, 'tab': 4, 'rec': 8},
                         miss={'x0': c.cold, 'nonce': 500, 'part': c.pmiss, 'rec': c.pmiss, 'pre': 600, 'touch': 400, 'pst': c.smiss, 'side': 500, 'ost': 250})
        self.M.miss.update(c.miss); self.M.lines.update(c.lines)
    def stamp(self, k):
        if self.cfg.leak == k: return ['@waitlgkm_all', 's_memrealtime s[%d:%d]' % (sT0, sT1), '@waitlgkm_all', 's_sub_u32 s101, %s, s100' % s(sT0)]
        if not self.cfg.stamps or (self.cfg.lite and k not in (11, 13)): return []
        return ['@waitlgkm_all', 's_memtime s[%d:%d]' % (sT0, sT1), 's_memrealtime s[100:101]', '@waitlgkm_all', 'v_writelane_b32 %s, %s, %d' % (v(vST), s(sT0), k),
                'v_writelane_b32 %s, s100, %d' % (v(vST), 16 + k)]
    def sched(self, L, name, **kw): return self.fine(schedule(self.M, L, verbose=name if self.cfg.verbose else False, dslat=self.cfg.dslat, **kw), name)
    def glue(self, L): return self.M.run(L)
    def fine(self, L, name):
        if not self.cfg.fine or not name.startswith(self.cfg.fine): return L
        out = []; n = len(L); lo, hi = [int(f * n) for f in self.cfg.frange]; pos = {lo + (k * (hi - lo)) // 3: k for k in range(4)}
        for i, x in enumerate(L + [None]):
            if i in pos: out.append(('s_memtime s[%d:%d]' % (12 + 2 * pos[i], 13 + 2 * pos[i]), 'nowait'))
            if x is not None: out.append(x)
        T = [self.M.times[i] for i in sorted(pos)]
        sys.stderr.write('model %s: %s\n' % (name, [b - a for a, b in zip(T[:-1], T[1:])]))
        if self.cfg.verbose:
            for i, k in pos.items(): sys.stderr.write('  fine %s %d at %d: %s\n' % (name, k, i, L[i]))
        return out

    def offs(self, i):
        L = ['s_lshl_b32 %s, %s, 7' % (s(sD_), s(sROT)), 's_add_u32 %s, %s, %s' % (s(sXO + i), s(sXB), s(sD_)),
             's_mul_i32 %s, %s, %d' % (s(sD_), s(sROT), 64 * 2688), 's_add_u32 %s, %s, %s' % (s(sD_), s(sWB), s(sD_)), 's_add_u32 %s, %s, %d' % (s(sWO_ + i), s(sD_), 4096 - 1024 * (i & 3))]
        if i < 6: L += ['s_add_u32 %s, %s, 1' % (s(sROT), s(sROT)), 's_cmp_eq_u32 %s, 7' % s(sROT), 's_cselect_b32 %s, 0, %s' % (s(sROT), s(sROT))]
        return L
    def touches(self, pos):
        L = []
        for w in self.cfg.touch.get(pos, ''):
            if w == 'p': L.append(('buffer_load_dword %s, %s, s[%d:%d], %s offen %s' % (v(vDUM), v(vPRE), SWS, SWS + 3, s(sOBX), self.cfg.prefl), 'pre'))
            else: L += self.touch(w)
        return L
    def touch(self, what):
        c = self.cfg
        if what == 'o': return [('buffer_load_dword %s, %s, s[%d:%d], 0 offen %s' % (v(vDUM), v(vTCO), SWO, SWO + 3, c.tfl), 'touch')]
        return [('buffer_load_dword %s, %s, s[%d:%d], 0 offen offset:%d %s' % (v(vDUM), v(vTCH), SW, SW + 3, {'q': 0, 'v': 1792}[what], c.tfl), 'touch')]

    def prologue(self):
        c = self.cfg; L = []; A = L.append
        A('s_load_dwordx16 s[4:19], s[0:1], 0')
        A('s_load_dwordx4 s[20:23], s[0:1], 64')
        if c.prost: L.append(('s_memtime s[96:97]', 'nowait'))
        if c.stamps or c.tfix or c.leak: A('s_memrealtime s[100:101]')
        A('s_cmpk_ge_u32 s2, 0x100'); A('s_cbranch_scc1 L_end')
        if c.delay:
            A('s_and_b32 s30, s2, 7'); A('s_lshr_b32 s30, %d, s30' % c.delay[0]); A('s_bitcmp0_b32 s30, 0'); A('s_cbranch_scc1 L_nodelay')
            A('L_delay:'); A('s_memrealtime s[30:31]'); A('@waitlgkm_all'); A('s_sub_u32 s30, s30, s100'); A('s_cmp_lt_u32 s30, %d' % c.delay[1]); A('s_cbranch_scc1 L_delay')
            A('L_nodelay:')
        t0, t1, t2 = vT2, vT2 + 1, vT2 + 2
        A('v_readfirstlane_b32 %s, v0' % s(sW)); A('v_and_b32 %s, 63, v0' % v(vL))
        A('s_lshr_b32 %s, s2, 3' % s(sSLOT))
        if c.hperm:
            w = sum(x << (4 * i) for i, x in enumerate(c.hperm))
            A('s_mov_b32 %s, 0x%x' % (s(sN0), w & 0xffffffff)); A('s_mov_b32 %s, 0x%x' % (s(sN1), w >> 32))
            A('s_lshr_b32 %s, s2, 2' % s(sH)); A('s_and_b32 %s, %s, 60' % (s(sH), s(sH))); A('s_lshr_b64 s[%d:%d], s[%d:%d], %s' % (sN0, sN1, sN0, sN1, s(sH)))
            A('s_and_b32 %s, %s, 15' % (s(sH), s(sN0))); A('s_and_b32 %s, %s, 1' % (s(sT2), s(sSLOT)))
        else: A('s_and_b32 %s, %s, 15' % (s(sH), s(sSLOT))); A('s_lshr_b32 %s, %s, 4' % (s(sT2), s(sSLOT)))
        A('s_bitcmp0_b32 s2, 2'); A('s_cselect_b32 %s, L_AOFF, 0' % s(sB_)); A('s_lshl3_add_u32 %s, %s, %s' % (s(sB_), s(sSLOT), s(sB_)))
        A('v_lshrrev_b32 %s, 5, v0' % v(vT)); A('s_getpc_b64 s[%d:%d]' % (sT0, sT1))
        A('v_add_lshl_u32 %s, %s, %s, 7' % (v(vT), v(vT), s(sB_)))
        L.append(('global_load_dword %s, %s, s[%d:%d]' % (v(vDUM), v(vT), sT0, sT1), 'pref'))
        A('s_and_b32 %s, s2, 3' % s(sRB)); A('s_lshl1_add_u32 %s, %s, %s' % (s(sRB), s(sRB), s(sT2))); A('s_lshr_b32 %s, %s, 6' % (s(sW), s(sW)))
        A('s_mul_i32 %s, %s, 3' % (s(sT2), s(sT2))); A('s_add_u32 %s, %s, %s' % (s(sROT), s(sH), s(sT2)))
        A('s_mul_i32 %s, %s, 37' % (s(sB_), s(sROT))); A('s_lshr_b32 %s, %s, 8' % (s(sB_), s(sB_)))
        A('s_mul_i32 %s, %s, 7' % (s(sB_), s(sB_))); A('s_sub_u32 %s, %s, %s' % (s(sROT), s(sROT), s(sB_)))
        A('s_lshl2_add_u32 %s, %s, %s' % (s(sB_), s(sRB), s(sW))); A('s_mul_i32 %s, %s, 57344' % (s(sXB), s(sB_)))
        o0 = self.offs(0); L += o0[:2]
        A('s_lshl_b32 %s, %s, 12' % (s(sM0X), s(sW))); A('s_mov_b32 m0, %s' % s(sM0X))
        A('v_lshrrev_b32 %s, 3, %s' % (v(t0), v(vL))); A('v_mul_u32_u24 %s, 896, %s' % (v(t0), v(t0)))
        A('v_lshrrev_b32 %s, 4, %s' % (v(t1), v(vL))); A('v_and_b32 %s, 7, %s' % (v(t2), v(vL))); A('v_xor_b32 %s, %s, %s' % (v(t2), v(t1), v(t2)))
        A('v_lshl_add_u32 %s, %s, 4, %s' % (v(vXD), v(t2), v(t0))); A('v_xor_b32 %s, 64, %s' % (v(t2), v(vXD)))
        A('v_add_u32 %s, 6144, %s' % (v(vXD + 1), v(t2))); A('v_add_u32 %s, 12288, %s' % (v(vXD + 2), v(vXD))); A('v_add_u32 %s, 18432, %s' % (v(vXD + 3), v(t2)))
        A('s_mov_b32 %s, 1835008' % s(SX + 2)); A('s_mov_b32 %s, 0x20000' % s(SX + 3))
        if c.prost: L.append(('s_memtime s[98:99]', 'nowait'))
        A('s_bitcmp0_b32 s2, 2')
        A('@waitlgkm_all')
        if c.prost: A('v_writelane_b32 %s, s98, 33' % v(vST)); A('v_writelane_b32 %s, s96, 32' % v(vST))
        if c.leak == 13: L += self.stamp(13); A('s_bitcmp0_b32 s2, 2')
        if c.stamps: A('v_writelane_b32 %s, s100, 0' % v(vST)); L += self.stamp(13); A('s_bitcmp0_b32 s2, 2')
        sel = lambda srd, pa, pb: ['s_cselect_b32 %s, %s, %s' % (s(srd + k), s(pa + k), s(pb + k)) for k in range(2)]
        L += sel(SX, sAX, sBX) + self.dma_x(0)[1:]
        if c.prost == 2: L.append(('s_memtime s[98:99]', 'nowait'))
        L += sel(SW, sAW, sBW) + sel(SWO, sAWO, sBWO); A('s_cselect_b32 %s, 0, 25088' % s(SPHI + 2))
        A('s_sub_u32 %s, %s, 4096' % (s(SW), s(SW))); A('s_subb_u32 %s, %s, 0' % (s(SW + 1), s(SW + 1)))
        A('s_mov_b32 %s, %d' % (s(SW + 2), 1204224 + 4096)); A('s_mov_b32 %s, %s' % (s(SW + 3), s(SX + 3)))
        A('v_lshrrev_b32 %s, 2, %s' % (v(t0), v(vL))); A('v_mul_u32_u24 %s, 2688, %s' % (v(t0), v(t0)))
        A('v_and_b32 %s, 3, %s' % (v(t2), v(vL))); A('v_lshl_add_u32 %s, %s, 4, %s' % (v(vWDq), v(t2), v(t0))); A('v_add_u32 %s, 896, %s' % (v(vWD), v(vWDq)))
        A('s_cmp_eq_u32 %s, 15' % s(sH)); A('s_cselect_b32 %s, 8, 0' % s(sSH))
        A('s_mul_i32 %s, %s, 56' % (s(sC_), s(sH))); A('s_sub_u32 %s, %s, %s' % (s(sC_), s(sC_), s(sSH)))
        A('s_mul_i32 %s, %s, %d' % (s(sD_), s(sW), 16 * 2688)); A('s_add_u32 %s, %s, %s' % (s(sWB), s(sC_), s(sD_)))
        A('s_mul_i32 %s, %s, 7168' % (s(sM0K), s(sW)))
        L += o0[2:5] + self.dma_w(0, 1, L_WK, 'wk0')
        if c.prost == 2: L.append(('s_memtime s[4:5]', 'nowait'))
        L += o0[5:] + self.offs(1) + self.dma_w(1, 1, L_WK, 'wk1', False)
        A('s_bfe_u32 %s, s2, 0x10002' % s(sBR)); A('s_lshl_b32 %s, %s, 10' % (s(sM0W), s(sW)))
        for srd, n in ((SWO, 401408), (SWS, WS_BYTES), (SOUT, 3670016)):
            A('s_mov_b32 %s, %d' % (s(srd + 2), n)); A('s_mov_b32 %s, 0x20000' % s(srd + 3))
        A('s_mov_b32 %s, %s' % (s(SPHI), s(sPHI))); A('s_mov_b32 %s, %s' % (s(SPHI + 1), s(sPHI + 1))); A('s_mov_b32 %s, 0x20000' % s(SPHI + 3))
        A('v_lshlrev_b32 %s, 4, %s' % (v(vL16), v(vL)))
        A('s_cmp_ge_u32 %s, 2' % s(sW)); A('s_cselect_b32 %s, 0x%x, %s' % (s(sA), OOB, s(sM0W))); A('v_add_u32 %s, %s, %s' % (v(t0), s(sA), v(vL16)))
        A('s_mul_i32 %s, %s, 1568' % (s(sT2), s(sH))); A('s_add_u32 m0, %s, %d' % (s(sM0W), L_MISC))
        L.append(('buffer_load_dwordx4 %s, s[%d:%d], %s offen lds' % (v(t0), SPHI, SPHI + 3, s(sT2)), 'phi'))
        L += self.dma_x(1)
        if c.prost == 2: L.append(('s_memtime s[6:7]', 'nowait'))
        if c.ws_base: A('s_add_u32 %s, %s, %d' % (s(sWSP), s(sWSP), c.ws_base)); A('s_addc_u32 %s, %s, 0' % (s(sWSP + 1), s(sWSP + 1)))
        for (srd, p) in ((SWS, sWSP), (SOUT, sOUT)):
            A('s_mov_b32 %s, %s' % (s(srd), s(p))); A('s_mov_b32 %s, %s' % (s(srd + 1), s(p + 1)))
        if c.tlb:
            A('s_lshl_b32 %s, %s, 21' % (s(sA), s(sBR))); A('s_add_u32 %s, %s, %d' % (s(sA), s(sA), WS_O)); A('s_mul_i32 %s, %s, %d' % (s(sB_), s(sRB), 256 * 1792))
            for base, off in ((sWSP, '0x2000'), (sWSP, s(sA)), (sOUT, s(sB_)), (SWO, '0'), (sDBG, '0x80')):
                L.append(('s_load_dword s92, s[%d:%d], %s' % (base, base + 1, off), 'nowait'))
        if 'x' in c.spre:
            A('s_lshl2_add_u32 %s, %s, %s' % (s(sA), s(sSLOT), s(sW))); A('s_lshr_b32 %s, %s, 4' % (s(sB_), s(sA))); A('s_and_b32 %s, s2, 3' % s(sC_))
            A('s_lshl3_add_u32 %s, %s, %s' % (s(sB_), s(sC_), s(sB_))); A('s_lshl_b32 %s, %s, 5' % (s(sB_), s(sB_))); A('s_and_b32 %s, %s, 15' % (s(sA), s(sA)))
            A('s_add_u32 %s, %s, %s' % (s(sA), s(sA), s(sB_))); A('s_add_u32 %s, %s, 16' % (s(sA), s(sA))); A('s_mul_i32 %s, %s, 1792' % (s(sA), s(sA)))
            A('s_add_u32 %s, %s, %s' % (s(sN0), s(SX), s(sA))); A('s_addc_u32 %s, %s, 0' % (s(sN1), s(SX + 1)))
            for j in range(14): L.append(('s_load_dword s92, s[%d:%d], 0x%x' % (sN0, sN1, 128 * j), 'nowait'))
        if 'w' in c.spre:
            A('s_lshl_b32 %s, %s, 4' % (s(sA), s(sRB))); A('s_add_u32 %s, %s, %s' % (s(sA), s(sA), s(sH))); A('s_lshl2_add_u32 %s, %s, %s' % (s(sA), s(sA), s(sW)))
            A('s_min_u32 %s, %s, 447' % (s(sA), s(sA))); A('s_mul_i32 %s, %s, 2688' % (s(sA), s(sA)))
            A('s_add_u32 %s, %s, %s' % (s(sHI), s(SW), s(sA))); A('s_addc_u32 %s, %s, 0' % (s(sHI + 1), s(SW + 1)))
            for j in list(range(14, 21)) + list(range(7)): L.append(('s_load_dword s92, s[%d:%d], 0x%x' % (sHI, sHI + 1, 4096 + 128 * j), 'nowait'))
        A('v_mov_b32 %s, 0' % v(vZ))
        A('s_or_b32 %s, s2, %s' % (s(sT2), s(sW))); A('s_cmp_eq_u32 %s, 0' % s(sT2)); A('s_cbranch_scc1 L_mknonce')
        A('L_nononce:')
        if c.prost == 2: L += ['@waitlgkm_all', 'v_writelane_b32 %s, s98, 33' % v(vST), 'v_writelane_b32 %s, s4, 34' % v(vST), 'v_writelane_b32 %s, s6, 35' % v(vST)]
        self.glue(L)
        return L

    def setup(self):
        c = self.cfg; L = []; A = L.append
        t0, t1, t2 = vT2, vT2 + 1, vT2 + 2
        A('v_add_u32 %s, 1792, %s' % (v(vWDv), v(vWDq)))
        A('s_mov_b32 %s, 0' % s(sSPIN))
        A('s_getreg_b32 %s, hwreg(HW_REG_XCC_ID, 0, 4)' % s(sXCC))
        m, hi, t3, t4 = vT2 + 3, vT2 + 4, vT2 + 5, vT2 + 6
        A('s_mul_i32 %s, %s, 98' % (s(sA), s(sSLOT))); A('s_mul_i32 %s, %s, 25' % (s(sB_), s(sW))); A('s_add_u32 %s, %s, %s' % (s(sA), s(sA), s(sB_)))
        A('v_min_u32 %s, 24, %s' % (v(t0), v(vL))); A('v_add_u32 %s, %s, %s' % (v(t0), s(sA), v(t0))); A('v_min_u32 %s, 3135, %s' % (v(t0), v(t0)))
        A('v_lshlrev_b32 %s, 7, %s' % (v(vTCO), v(t0)))
        A('v_and_b32 %s, 31, %s' % (v(m), v(vL))); A('v_lshrrev_b32 %s, 5, %s' % (v(hi), v(vL)))
        A('v_bfe_u32 %s, %s, 1, 3' % (v(t1), v(m))); A('v_xor_b32 %s, %s, %s' % (v(t1), v(t1), v(hi)))
        A('v_lshl_add_u32 %s, %s, 7, %s' % (v(t2), v(m), s(sM0X)))
        for ks in range(4):
            A('v_xor_b32 %s, %d, %s' % (v(t3), 2 * ks, v(t1))); A('v_lshl_add_u32 %s, %s, 4, %s' % (v(vXR + ks), v(t3), v(t2)))
            A('v_add_u32 %s, 0x10000, %s' % (v(vXR2 + ks), v(vXR + ks)))
        A('v_bfe_u32 %s, %s, 2, 2' % (v(t1), v(vL))); A('v_lshlrev_b32 %s, 6, %s' % (v(t2), v(t1)))
        A('v_lshl_add_u32 %s, %s, 9, %s' % (v(t2), v(hi), v(t2)))
        A('v_bfe_u32 %s, %s, 4, 1' % (v(t3), v(vL))); A('v_and_b32 %s, 3, %s' % (v(t4), v(vL)))
        A('v_lshlrev_b32 %s, 3, %s' % (v(t4), v(t4))); A('v_lshl_add_u32 %s, %s, 5, %s' % (v(t4), v(t3), v(t4)))
        A('v_add3_u32 %s, %s, %s, %s' % (v(vWRq), v(t2), v(t4), s(sSH)))
        A('v_add_u32 %s, %d, %s' % (v(vWRk), L_WK, v(vWRq)))
        A('v_xor_b32 %s, %s, %s' % (v(t3), s(sW), v(t1))); A('v_lshl_add_u32 %s, %s, 6, %s' % (v(t4), v(t3), v(t4)))
        A('v_lshl_add_u32 %s, %s, 8, %s' % (v(t4), v(t1), v(t4))); A('v_lshrrev_b32 %s, 4, %s' % (v(t3), v(vL))); A('v_lshl_add_u32 %s, %s, 11, %s' % (v(t4), v(t3), v(t4)))
        A('v_add_u32 %s, %d, %s' % (v(vWO0), L_WO, v(t4)))
        A('s_and_b32 %s, %s, 1' % (s(sA), s(sW))); A('s_lshl_b32 %s, %s, 4' % (s(sA), s(sA))); A('v_xor_b32 %s, %s, %s' % (v(t4), s(sA), v(m)))
        A('s_bitcmp1_b32 %s, 1' % s(sW)); A('s_cselect_b32 %s, 0x80008000, 0' % s(sSGN))
        A('v_lshrrev_b32 %s, 3, %s' % (v(t0), v(t4))); A('v_and_b32 %s, 3, %s' % (v(t1), v(t4)))
        A('v_lshl_add_u32 %s, %s, 2, %s' % (v(t0), v(t0), v(t1)))
        A('v_lshrrev_b32 %s, 4, %s' % (v(t1), v(t4))); A('v_sub_u32 %s, %s, %s' % (v(t0), v(t0), v(t1)))
        A('v_bfe_u32 %s, %s, 2, 1' % (v(t1), v(m))); A('v_mad_u32_u24 %s, %s, 14, %s' % (v(t0), v(t1), v(t0)))
        A('v_and_b32 %s, 11, %s' % (v(t1), v(m))); A('v_cmp_eq_u32 vcc, 11, %s' % v(t1))
        A('v_mov_b32 %s, %d' % (v(t2), L_MISC + 2048))
        A('v_mul_u32_u24 %s, 224, %s' % (v(t3), v(hi))); A('v_lshl_add_u32 %s, %s, 1, %s' % (v(t3), v(t0), v(t3))); A('v_add_u32 %s, %d, %s' % (v(t3), L_MISC, v(t3)))
        A('v_cndmask_b32_e64 %s, %s, %s, vcc' % (v(vT2 + 12), v(t3), v(t2)))
        A('v_cndmask_b32_e64 %s, %s, 63, vcc' % (v(vT2 + 11), v(t0)))
        A('v_cmp_lt_u32_e64 s[%d:%d], 31, %s' % (sHI, sHI + 1, v(vL)))
        A('v_cmp_eq_u32_e64 s[%d:%d], 28, %s' % (sE28, sE28 + 1, v(m)))
        A('v_cndmask_b32_e64 %s, %s, %s, s[%d:%d]' % (v(vT2 + 13), v(vT2 + 12), v(t2), sHI, sHI + 1))
        return L

    def help(self):
        c = self.cfg; L = []; A = L.append
        t0, t1, t2 = vT2 + 8, vT2 + 9, vT2 + 10
        nh = 10 if c.help_plain else 16
        if c.help_plain:
            A('s_bfm_b32 %s, %s, 0' % (s(sC_), s(sH))); A('s_and_b32 %s, %s, 0xd5ab' % (s(sC_), s(sC_))); A('s_bcnt1_i32_b32 %s, %s' % (s(sC_), s(sC_)))
        else: A('s_mov_b32 %s, %s' % (s(sC_), s(sH)))
        A('s_mul_i32 %s, %s, %d' % (s(sA), s(sRB), nh)); A('s_add_u32 %s, %s, %s' % (s(sA), s(sA), s(sC_))); A('s_lshl2_add_u32 %s, %s, %s' % (s(sA), s(sA), s(sW)))
        def index(n, last):
            n = -(-(last + 1) // (32 * nh))
            A('s_mul_i32 %s, %s, %d' % (s(sB_), s(sA), n)); A('v_min_u32 %s, %d, %s' % (v(t0), n - 1, v(vL))); A('v_add_u32 %s, %s, %s' % (v(t0), s(sB_), v(t0)))
            A('v_min_u32 %s, %d, %s' % (v(t0), last, v(t0)))
        if 'x' in c.help:
            index(14, 7167)
            A('v_mul_u32_u24 %s, 9363, %s' % (v(t1), v(t0))); A('v_lshrrev_b32 %s, 21, %s' % (v(t1), v(t1))); A('v_add_u32 %s, 1, %s' % (v(t1), v(t1)))
            A('v_mul_u32_u24 %s, 28672, %s' % (v(t1), v(t1))); A('v_lshl_add_u32 %s, %s, 7, %s' % (v(t1), v(t0), v(t1)))
            A('global_load_dword %s, %s, s[%d:%d]' % (v(vDUM), v(t1), sBX, sBX + 1))
        if 'w' in c.help:
            index(13, 6271)
            A('v_mul_u32_u24 %s, 9363, %s' % (v(t1), v(t0))); A('v_lshrrev_b32 %s, 16, %s' % (v(t1), v(t1))); A('v_add_u32 %s, 1, %s' % (v(t1), v(t1))); A('v_lshrrev_b32 %s, 1, %s' % (v(t1), v(t1)))
            A('v_mul_u32_u24 %s, 896, %s' % (v(t1), v(t1))); A('v_lshl_add_u32 %s, %s, 7, %s' % (v(t1), v(t0), v(t1)))
            A('global_load_dword %s, %s, s[%d:%d]' % (v(vDUM), v(t1), sBW, sBW + 1))
        A('s_and_b32 %s, %s, 1' % (s(sB_), s(sRB))); A('s_mul_i32 %s, %s, %d' % (s(sB_), s(sB_), nh)); A('s_add_u32 %s, %s, %s' % (s(sC_), s(sC_), s(sB_))); A('s_lshl2_add_u32 %s, %s, %s' % (s(sC_), s(sC_), s(sW)))
        def index2(n, last):
            n = -(-(last + 1) // (8 * nh))
            A('s_mul_i32 %s, %s, %d' % (s(sB_), s(sC_), n)); A('v_min_u32 %s, %d, %s' % (v(t0), n - 1, v(vL))); A('v_add_u32 %s, %s, %s' % (v(t0), s(sB_), v(t0)))
            A('v_min_u32 %s, %d, %s' % (v(t0), last, v(t0)))
        if 'X' in c.help:
            index2(14, 1791)
            A('s_and_b32 %s, s2, 3' % s(sB_)); A('s_mul_i32 %s, %s, 1792' % (s(sB_), s(sB_))); A('v_add_u32 %s, %s, %s' % (v(t0), s(sB_), v(t0)))
            A('v_mul_u32_u24 %s, 9363, %s' % (v(t1), v(t0))); A('v_lshrrev_b32 %s, 21, %s' % (v(t1), v(t1))); A('v_add_u32 %s, 1, %s' % (v(t1), v(t1)))
            A('v_mul_u32_u24 %s, 28672, %s' % (v(t1), v(t1))); A('v_lshl_add_u32 %s, %s, 7, %s' % (v(t1), v(t0), v(t1)))
            A('global_load_dword %s, %s, s[%d:%d]' % (v(vDUM), v(t1), sAX, sAX + 1))
        if 'W' in c.help:
            index(13, 6271)
            A('v_mul_u32_u24 %s, 9363, %s' % (v(t1), v(t0))); A('v_lshrrev_b32 %s, 16, %s' % (v(t1), v(t1))); A('v_add_u32 %s, 1, %s' % (v(t1), v(t1))); A('v_lshrrev_b32 %s, 1, %s' % (v(t1), v(t1)))
            A('v_mul_u32_u24 %s, 896, %s' % (v(t1), v(t1))); A('v_lshl_add_u32 %s, %s, 7, %s' % (v(t1), v(t0), v(t1)))
            A('global_load_dword %s, %s, s[%d:%d]' % (v(vDUM), v(t1), sAW, sAW + 1))
        if 'p' in c.help:
            index(32, 16383)
            A('v_lshlrev_b32 %s, 7, %s' % (v(t1), v(t0))); A('v_add_u32 %s, %d, %s' % (v(t1), WS_O + (2 << 20), v(t1)))
            A('global_load_dword %s, %s, s[%d:%d]' % (v(vDUM), v(t1), sWSP, sWSP + 1))
        if 'O' in c.help:
            index(7, 3135)
            A('v_lshlrev_b32 %s, 7, %s' % (v(t1), v(t0)))
            A('global_load_dword %s, %s, s[%d:%d]' % (v(vDUM), v(t1), sAWO, sAWO + 1))
        if 'o' in c.help:
            index(7, 3135)
            A('v_lshlrev_b32 %s, 7, %s' % (v(t1), v(t0)))
            A('global_load_dword %s, %s, s[%d:%d]' % (v(vDUM), v(t1), sBWO, sBWO + 1))
        return L
    def mknonce(self):
        L = ['L_mknonce:', '@assume_idle']; A = L.append
        A('s_load_dwordx2 s[%d:%d], s[%d:%d], 0' % (sT0, sT1, sWSP, sWSP + 1))
        A('@waitlgkm_all')
        A('s_add_u32 %s, %s, 0x9e3679b8' % (s(sT0), s(sT0))); A('s_add_u32 %s, %s, 0x85eaca6a' % (s(sT1), s(sT1)))
        for r in (sT0, sT1):
            A('s_or_b32 %s, %s, 0x00010001' % (s(r), s(r))); A('s_and_b32 %s, %s, 0xbfffbfff' % (s(r), s(r)))
        A('v_mov_b32 %s, %s' % (v(vN), s(sT0))); A('v_mov_b32 %s, %s' % (v(vN + 1), s(sT1)))
        A('s_mov_b64 exec, 1')
        A('global_store_dwordx2 %s, %s, s[%d:%d] sc1' % (v(vZ), v(vN, 2), sDBG, sDBG + 1))
        A('global_store_dwordx2 %s, %s, s[%d:%d] sc1' % (v(vZ), v(vN, 2), sWSP, sWSP + 1))
        A('s_mov_b64 exec, -1'); A('s_branch L_nononce')
        return L

    def setup2(self, br):
        m, hi, fp, ofs, ofs2 = vT2 + 3, vT2 + 4, vT2 + 11, vT2 + 12, vT2 + 13
        P0 = []
        for t in range(2):
            for j in range(8):
                d = 16 * t + 8 * (j >> 2) + (j & 3)
                P0.append('ds_read_u16 %s, %s offset:%d' % (v(vP + 8 * t + j), v(ofs2 if (t == 1 and j >= 4) else ofs), d * 56))
        def selector(dst, tgt):
            R = []
            x, y, z = vT2 + 8, vT2 + 9, vT2 + 10
            R.append('v_lshrrev_b32 %s, 3, %s' % (v(x), v(tgt))); R.append('v_bfe_u32 %s, %s, 1, 1' % (v(y), v(tgt)))
            R.append('v_lshl_add_u32 %s, %s, 1, %s' % (v(x), v(x), v(y)))
            R.append('v_and_b32 %s, 1, %s' % (v(y), v(tgt))); R.append('v_lshlrev_b32 %s, 4, %s' % (v(y), v(y)))
            R.append('v_mov_b32 %s, 0x3f80' % v(z)); R.append('v_lshlrev_b32 %s, %s, %s' % (v(z), v(y), v(z)))
            R.append('v_bfe_u32 %s, %s, 2, 1' % (v(y), v(tgt))); R.append('v_cmp_eq_u32 vcc, %s, %s' % (v(y), v(hi)))
            R.append('v_cndmask_b32_e64 %s, 15, %s, vcc' % (v(x), v(x)))
            mk = [sN0, sHI + 0, sPB - 1, sN0]
            for i in range(8):
                r = (sN0, sT0)[i & 1]
                R.append('v_cmp_eq_u32_e64 s[%d:%d], %d, %s' % (r, r + 1, i, v(x)))
                R.append('v_cndmask_b32_e64 %s, 0, %s, s[%d:%d]' % (v(dst + i), v(z), r, r + 1))
            return R
        P1 = selector(vID, m) if br == 'B' else selector(vPH, fp)
        P2 = []
        P2 += ['v_mov_b32 %s, 0x3fb8aa3b' % v(vC),
               'v_bfe_u32 %s, %s, 3, 2' % (v(vT2 + 8), v(vL)), 'v_and_b32 %s, 7, %s' % (v(vPRE), v(vL)), 'v_lshlrev_b32 %s, 7, %s' % (v(vPRE), v(vPRE)), 'v_lshl_add_u32 %s, %s, 14, %s' % (v(vPRE), v(vT2 + 8), v(vPRE)),
               's_lshl_b32 %s, %s, 3' % (s(sGID), s(sBR)), 's_add_u32 %s, %s, %s' % (s(sGID), s(sGID), s(sRB)),
               's_and_b32 %s, %s, 3' % (s(sCB), s(sH)), 's_lshr_b32 %s, %s, 2' % (s(sRQ), s(sH)),
               's_lshl_b32 %s, %s, 4' % (s(sT3), s(sGID)), 's_add_u32 %s, %s, %s' % (s(sPB), s(sT3), s(sH)),
               's_lshl2_add_u32 %s, %s, %s' % (s(sT3), s(sGID), s(sW)), 's_lshl_b32 %s, %s, 6' % (s(sT3), s(sT3)), 's_add_u32 %s, %s, %s' % (s(sT3), s(sT3), s(sH)), 's_lshl_b32 %s, %s, 10' % (s(sOBX), s(sT3)),
               's_add_u32 %s, %s, %d' % (s(sOBX), s(sOBX), WS_O),
               's_and_b32 %s, %s, %d' % (s(sOB1), s(sH), self.cfg.tswap), 's_lshl_b32 %s, %s, 15' % (s(sOB1), s(sOB1)), 's_add_u32 %s, %s, %s' % (s(sOB1), s(sOB1), s(sOBX)),
               's_lshl_b32 %s, %s, 9' % (s(sT3), s(sGID)), 's_add_u32 %s, %s, %d' % (s(sT3), s(sT3), WS_FLAG),
               's_lshl_b32 %s, %s, 7' % (s(sFLW), s(sW)), 's_add_u32 %s, %s, %s' % (s(sFLW), s(sFLW), s(sT3)),
               's_lshl_b32 %s, %s, 7' % (s(sFLG), s(sRQ)), 's_add_u32 %s, %s, %s' % (s(sFLG), s(sFLG), s(sT3))]
        A = P2.append; t0, t1, t2 = vT2 + 8, vT2 + 9, vT2 + 10
        A('v_lshrrev_b32 %s, 4, %s' % (v(t0), v(vL))); A('v_bfe_u32 %s, %s, 2, 2' % (v(t1), v(vL))); A('v_xor_b32 %s, %s, %s' % (v(t1), v(t1), v(t0)))
        A('v_mul_u32_u24 %s, 896, %s' % (v(t0), v(t0))); A('v_lshl_add_u32 %s, %s, 6, %s' % (v(t0), v(t1), v(t0)))
        A('v_and_b32 %s, 3, %s' % (v(t2), v(vL))); A('v_lshl_add_u32 %s, %s, 4, %s' % (v(t0), v(t2), v(t0)))
        A('s_cmp_eq_u32 %s, 3' % s(sCB)); A('s_cselect_b32 %s, 1, 3' % s(sT3))
        A('v_cmp_lt_u32 vcc, %s, %s' % (s(sT3), v(t1))); A('v_mov_b32 %s, 0x%x' % (v(t2), OOB))
        A('v_cndmask_b32_e64 %s, %s, %s, vcc' % (v(vWOD), v(t0), v(t2)))
        A('s_lshl_b32 %s, %s, 3' % (s(sRECA), s(sPB))); A('s_add_u32 %s, %s, %d' % (s(sRECA), s(sRECA), WS_XCC))
        A('v_cmp_eq_u32 vcc, 0, %s' % v(vL)); A('v_and_b32 %s, 1, %s' % (v(t0), v(vL))); A('v_and_b32 %s, 2, %s' % (v(t1), v(vL)))
        A('v_cndmask_b32_e64 %s, %s, 0, vcc' % (v(vT), v(t2)))
        A('v_cmp_ne_u32_e64 s[%d:%d], 0, %s' % (sM1, sM1 + 1, v(t0))); A('v_cmp_ne_u32_e64 s[%d:%d], 0, %s' % (sM2, sM2 + 1, v(t1)))
        A('s_lshl1_add_u32 %s, %s, 1' % (s(sSET), s(sBR))); A('s_and_b32 %s, %s, %s' % (s(sSET), s(sSET), s(sW)))
        A('s_lshl_b32 %s, %s, 4' % (s(sT3), s(sBR))); A('s_add_u32 %s, %s, %s' % (s(sT3), s(sT3), s(sH))); A('s_lshl2_add_u32 %s, %s, %s' % (s(sT3), s(sT3), s(sSET)))
        A('s_lshl_b32 %s, %s, 13' % (s(sT3), s(sT3))); A('s_add_u32 %s, %s, %d' % (s(sPL0), s(sT3), WS_PART)); A('s_add_u32 %s, %s, 4096' % (s(sPL1), s(sPL0)))
        A('s_lshl_b32 %s, %s, 10' % (s(sT3), s(sRB))); A('s_add_u32 %s, %s, %s' % (s(sPX), s(sPL0), s(sT3))); A('s_lshl_b32 %s, %s, 10' % (s(sSET), s(sSET)))
        A('s_and_b32 %s, %s, 0xffffff80' % (s(sRECL), s(sRECA))); A('s_add_u32 %s, %s, %d' % (s(sSCR), s(sM0X), L_SCR))
        return P0, P1, P2

    def dma_x(self, i):
        L = ['s_add_u32 m0, %s, %d' % (s(sM0X), (i % 6) * 16384)]
        if i >= 7: L.append('s_add_u32 %s, %s, 28672' % (s(sXO + i - 7), s(sXO + i - 7)))
        for j in range(2 if self.cfg.fake_n2 else 4):
            L.append(('buffer_load_dwordx4 %s, s[%d:%d], %s offen offset:%d %s lds' % (v(vXD + j), SX, SX + 3, s(sXO + i % 7), 1024 * j, self.cfg.xfl), 'x%d' % i))
        return L
    def dma_w(self, i, part, base, tag, m0=True):
        L = ['s_add_u32 m0, %s, %d' % (s(sM0K), base + (i & 4) * 1024)] if m0 else []
        if self.cfg.fake_n2: L.append(('buffer_load_dwordx4 %s, s[%d:%d], %s offen offset:%d %s lds' % (v((vKV + 30, vV + 30, vKV + 31)[part]), SW, SW + 3, s(sWO_ + i), 1024 * (i & 3), self.cfg.wfl), tag))
        return L + [('buffer_load_dwordx4 %s, s[%d:%d], %s offen offset:%d %s lds' % (v((vWDq, vWD, vWDv)[part]), SW, SW + 3, s(sWO_ + i), 1024 * (i & 3), self.cfg.wfl), tag)]
    def xfrag(self, i, ks, tile): return aX + ((i * 4 + ks) * 2 + tile) * 4
    def wread(self, slot, basev, off):
        r = aWR + 4 * (slot % 8)
        return ['ds_read_b64_tr_b16 %s, %s offset:%d' % (a(r + 2 * u, 2), v(basev), off + 256 * u) for u in range(2)]

    def xiter(self, i, extra=()):
        R = []; A = R.append
        ch, tile, sl = i % 7, i // 7, i % 6
        wk = ' ' + self.cfg.wkbar[i] if i in self.cfg.wkbar else ''
        A('@waitvm x%d' % i + wk)
        if wk: A('s_barrier')
        if i == 0: R += self.stamp(1)
        for ks in range(4):
            R += self.wread(4 * i + ks, vWRk, ch * 1024 + ks * 7168)
            R.append(('ds_read_b128 %s, %s offset:%d' % (a(self.xfrag(ch, ks, tile), 4), v((vXR2 if sl >= 4 else vXR) + ks), (sl & 3) * 16384), 'xr%d' % i))
        D = self.cfg.depth
        if i + D < 14:
            if i + D >= 6: A('@waitlgkm xr%d' % (i + D - 6))
            R += self.dma_x(i + D)
        R += self.touches(i)
        R += extra
        for ks in range(4):
            R.append((mfma(vK + 16 * tile, a(aWR + 4 * ((4 * i + ks) % 8), 4), a(self.xfrag(ch, ks, tile), 4), None if (ch == 0 and ks == 0) else vK + 16 * tile), 'kk'))
        return R
    def part1(self, br):
        B = br == 'B'
        P = self.setup2(br)
        R = []
        for i in range(2, 7): R += self.offs(i)
        W = lambda i: self.dma_w(i, 1, L_WK, 'wk%d' % i)
        su = self.setup() + P[2]
        R = su + self.touches('a') + R if 'a' in self.cfg.touch else R
        X = lambda i: self.dma_x(i) if i < self.cfg.depth else []
        late = {}
        for tok in self.cfg.order0.split():
            if '@' in tok:
                tok, at = tok.split('@'); late.setdefault(int(at), []).extend(W(int(tok[1])))
            else: R += W(int(tok[1])) if tok[0] == 'w' else X(int(tok[1]))
        R += ([] if 'a' in self.cfg.touch else su) + P[1]
        pk = []
        for u in range(8): pk += ['v_lshl_or_b32 %s, %s, 16, %s' % (v(vPH + u), v(vP + 2 * u + 1), v(vP + 2 * u)), 'v_xor_b32 %s, %s, %s' % (v(vPH + u), s(sSGN), v(vPH + u))]
        c = self.cfg
        for part, n, at, base, tg in ((2, c.wv_early, c.wv_at, L_WV, 'wv'),):
            for k in range(n): late.setdefault(at - c.depth, []).extend(self.dma_w(k, part, base, '%s%d' % (tg, k), k in (0, 4)))
        for i in range(7): R += self.xiter(i, late.get(i, []) + (P[0] + pk if (i == 1 and B) else []))
        return self.sched(R, 'part1')

    def gemm(self, acc, basev, off, transposed, first_slot, hooks=None, tiles=(0, 1), lead=False, ks=range(28)):
        L = []; hooks = hooks or {}
        for k in ks:
            L += hooks.get(k, [])
            w = a(aWR + 4 * ((first_slot + k) % 8), 4)
            L += self.wread(first_slot + k, basev, off + (k >> 2) * 1024 + (k & 3) * 7168)
            for tile in tiles:
                x = a(self.xfrag(k // 4, k % 4, tile), 4)
                L.append((mfma(acc + 16 * tile, w if transposed else x, x if transposed else w, None if k == 0 else acc + 16 * tile), 'lead' if (lead and tile == 0) else None))
        return L

    def pack(self, r, n=8): return ['v_cvt_pk_bf16_f32 %s, %s, %s' % (v(r + u), v(r + 2 * u), v(r + 2 * u + 1)) for u in range(n)]
    def zero_hi_pads(self, r): return ['v_cndmask_b32_e64 %s, %s, 0, s[%d:%d]' % (v(r + u), v(r + u), sHI, sHI + 1) for u in (6, 7)]

    def softmax(self, p, ep, en, tmp, pk, keep=None):
        L = []; A = L.append
        Z, T, S1, S2 = tmp, tmp + 2, tmp + 4, tmp + 6
        VAL = [0, 1, 2, 3, 4, 5, 6, 8, 9, 10, 11, 12, 13, 14]
        if pk:
            for r in (ep + 7, ep + 15, en + 7, en + 15): A('v_mov_b32 %s, 0' % v(r))
        for (d, sg) in ((Z, ''), (T, '-')):
            A('v_max3_f32 %s, %s%s, %s%s, %s%s' % (v(d), sg, v(p), sg, v(p + 1), sg, v(p + 2)))
            A('v_max3_f32 %s, %s%s, %s%s, %s%s' % (v(d + 1), sg, v(p + 8), sg, v(p + 9), sg, v(p + 10)))
            for (x, y) in ((3, 4), (5, 6)): A('v_max3_f32 %s, %s, %s%s, %s%s' % (v(d), v(d), sg, v(p + x), sg, v(p + y)))
            for (x, y) in ((11, 12), (13, 14)): A('v_max3_f32 %s, %s, %s%s, %s%s' % (v(d + 1), v(d + 1), sg, v(p + x), sg, v(p + y)))
            A('v_max_f32 %s, %s, %s' % (v(d), v(d), v(d + 1)))
        A('v_permlane32_swap_b32 %s, %s' % (v(Z), v(T))); A('v_max_f32 %s, %s, %s' % (v(Z), v(Z), v(T)))
        A('v_mul_f32 %s, %s, %s' % (v(Z), v(vC), v(Z))); A('v_mov_b32 %s, %s' % (v(T), v(Z)))
        A('v_permlane32_swap_b32 %s, %s' % (v(Z), v(T)))
        for (e, z, ng) in ((ep, Z, 0), (en, T, 1)):
            for u in VAL:
                if pk and u not in (6, 14):
                    if u & 1 == 0: A('v_pk_fma_f32 %s, %s, %s, %s op_sel_hi:[1,0,0] neg_lo:[%d,0,1] neg_hi:[%d,0,1]' % (v(e + u, 2), v(p + u, 2), v(vC, 2), v(z, 2), ng, ng))
                else: A('v_fma_f32 %s, %s%s, %s, -%s' % (v(e + u), '-' if ng else '', v(p + u), v(vC), v(z)))
                A('v_exp_f32 %s, %s' % (v(e + u), v(e + u)))
        for (e, S, z) in ((ep, S1, Z), (en, S2, T)):
            if pk:
                A('v_pk_add_f32 %s, %s, %s' % (v(S, 2), v(e, 2), v(e + 2, 2)))
                for u in (4, 6, 8, 10, 12, 14): A('v_pk_add_f32 %s, %s, %s' % (v(S, 2), v(S, 2), v(e + u, 2)))
            else:
                A('v_add_f32 %s, %s, %s' % (v(S), v(e), v(e + 1))); A('v_add_f32 %s, %s, %s' % (v(S + 1), v(e + 8), v(e + 9)))
                for u in range(2, 7):
                    A('v_add_f32 %s, %s, %s' % (v(S), v(S), v(e + u))); A('v_add_f32 %s, %s, %s' % (v(S + 1), v(S + 1), v(e + 8 + u)))
            A('v_add_f32 %s, %s, %s' % (v(S), v(S), v(S + 1)))
        A('v_permlane32_swap_b32 %s, %s' % (v(S1), v(S2))); A('v_add_f32 %s, %s, %s' % (v(S1), v(S1), v(S2)))
        if keep is None: A('v_rcp_f32 %s, %s' % (v(S1), v(S1)))
        A('v_mov_b32 %s, %s' % (v(S2), v(S1))); A('v_permlane32_swap_b32 %s, %s' % (v(S1), v(S2)))
        if keep is not None:
            A('v_rcp_f32 %s, %s' % (v(S2), v(S2))); A('v_mul_f32 %s, 0x358637bd, %s' % (v(keep), v(S1))); A('v_mul_f32 %s, %s, %s' % (v(S2), v(S1), v(S2)))
            L += self.pack(ep)
        for (e, z) in ((ep, S1), (en, S2))[keep is not None:]:
            for u in range(8):
                if pk: A('v_pk_mul_f32 %s, %s, %s op_sel_hi:[1,0]' % (v(e + 2 * u, 2), v(e + 2 * u, 2), v(z, 2)))
                else:
                    for k in range(1 if u in (3, 7) else 2): A('v_mul_f32 %s, %s, %s' % (v(e + 2 * u + k), v(e + 2 * u + k), v(z)))
                A('v_cvt_pk_bf16_f32 %s, %s, %s' % (v(e + u), v(e + 2 * u), '0' if (u in (3, 7) and not pk) else v(e + 2 * u + 1)))
        return L

    def elu1(self, p, e, pads, pk):
        L = []; A = L.append
        for u in range(0, 16, 2):
            n = 1 if (pads and u in (6, 14)) else 2
            if pk and n == 2: A('v_pk_mul_f32 %s, %s, %s op_sel_hi:[1,0]' % (v(e + u, 2), v(p + u, 2), v(vC, 2)))
            for k in range(n):
                if not (pk and n == 2): A('v_mul_f32 %s, %s, %s' % (v(e + u + k), v(vC), v(p + u + k)))
                A('v_exp_f32_e64 %s, %s clamp' % (v(e + u + k), v(e + u + k)))
                A('v_max_f32 %s, 0x358637bd, %s' % (v(p + u + k), v(p + u + k)))
                if not (pk and n == 2): A('v_add_f32 %s, %s, %s' % (v(e + u + k), v(e + u + k), v(p + u + k)))
            if pk and n == 2: A('v_pk_add_f32 %s, %s, %s' % (v(e + u, 2), v(e + u, 2), v(p + u, 2)))
            A('v_cvt_pk_bf16_f32 %s, %s, %s' % (v(e + u // 2), v(e + u), v(e + u + 1) if n == 2 else '0'))
        return L

    def nonce_load(self): return [('global_load_dwordx2 %s, %s, s[%d:%d] sc1' % (v(vN, 2), v(vZ), sDBG, sDBG + 1), 'nonce')]
    def use_nonce(self, br):
        L = []; A = L.append
        t0, t1 = vXR2, vXR2 + 1
        A('v_readfirstlane_b32 %s, %s' % (s(sN0), v(vN))); A('v_readfirstlane_b32 %s, %s' % (s(sN1), v(vN + 1)))
        A('v_cndmask_b32_e64 %s, %s, %s, s[%d:%d]' % (v(t0), v(vN), v(vN + 1), sM2, sM2 + 1))
        A('v_lshlrev_b32 %s, 16, %s' % (v(t1), v(t0))); A('v_and_b32 %s, 0xffff0000, %s' % (v(t0), v(t0)))
        A('v_cndmask_b32_e64 %s, %s, %s, s[%d:%d]' % (v(vTAG), v(t1), v(t0), sM1, sM1 + 1))
        if br == 'A': A('v_and_b32 %s, %s, %s' % (v(vTAG), s(sXB), v(vTAG)))
        A('s_and_b32 %s, %s, 0xfffffff0' % (s(sROT), s(sN1))); A('s_or_b32 %s, %s, %s' % (s(sREC), s(sXCC), s(sROT)))
        A('v_mov_b32 %s, %s' % (v(vN + 1), s(sREC)))
        L.append(('buffer_store_dwordx2 %s, %s, s[%d:%d], %s offen sc1' % (v(vN, 2), v(vT), SWS, SWS + 3, s(sRECA)), 'side'))
        return L
    def nonce_chk(self, br):
        return ['L_nonce_chk%s:' % br, 's_min_u32 %s, %s, %s' % (s(sT2), s(sN0), s(sN1)), 's_cmp_eq_u32 %s, 0' % s(sT2), 's_cbranch_scc1 L_nonce_retry%s' % br]
    def nonce_retry(self, br):
        return ['L_nonce_retry%s:' % br, '@assume_idle', 's_sleep 1'] + SPIN + self.nonce_load() + self.use_nonce(br) + ['s_branch L_nonce_chk%s' % br]
    def side_loads(self):
        c = self.cfg
        L = []
        L += self.touches('p2')
        if not any('p' in x for x in c.touch.values()): L.append(('buffer_load_dword %s, %s, s[%d:%d], %s offen %s' % (v(vDUM), v(vPRE), SWS, SWS + 3, s(sOBX), c.prefl), 'pre'))
        L += [('buffer_load_dword %s, %s, s[%d:%d], %s offen %s' % (v(vDUM), v(vZ), SWS, SWS + 3, s(sFLW), c.prefl), 'side')]
        if c.pre_part: L += [('buffer_load_dword %s, %s, s[%d:%d], %s offen sc1' % (v(vDUM), v(vL16), SWS, SWS + 3, s(sPX)), 'touch8')]
        return L

    def middle(self, br):
        c = self.cfg; B = br == 'B'; NT = 2 if B else 1
        L = []; A = L.append
        R = []; A = R.append
        if not B:
            A('s_cmp_ge_u32 %s, 2' % s(sW)); A('s_cselect_b32 %s, 0, -1' % s(sXB))
        tn = lambda tile, sg: (vP if sg == 0 else vK) + 16 * tile
        def featk(tile):
            X = self.pack(vK + 16 * tile) + self.zero_hi_pads(vK + 16 * tile)
            for t in range(2):
                k4 = v(vK + 16 * tile + 4 * t, 4); w4 = v(vPH + 4 * t, 4)
                X.append((mfma(vP + 16 * tile, w4 if B else k4, k4 if B else w4, None if t == 0 else vP + 16 * tile), 'hi'))
            X += self.softmax(vP + 16 * tile, vE + 32 * tile, vE + 32 * tile + 16, vT2 + 8 * tile, c.pk0 and tile == 0) if B else self.elu1(vP + 16 * tile, vE + 32 * tile, False, c.pk0 and tile == 0)
            if B:
                for sg in range(2):
                    for t in range(2):
                        X.append((mfma(tn(tile, sg), v(vE + 32 * tile + 16 * sg + 4 * t, 4), v(vID + 4 * t, 4), None if t == 0 else tn(tile, sg)), 'hi2' if tile else 'hi3'))
                    X += self.pack(tn(tile, sg))
            return X
        wv = []
        for k in range(c.wv_early, 7): wv += self.dma_w(k, 2, L_WV, 'wv%d' % k, k in (c.wv_early, 4))
        R += featk(0)
        for i in range(7, 14):
            R += self.xiter(i, wv if i == max(7, 13 - c.depth) else ())
            if i - 7 < c.wv_early:
                R += self.gemm(vV, vWRk, L_WV - L_WK, False, 4, {0: ['@waitvm wv%d' % (c.wv_early - 1), 's_barrier']}, ks=range(4 * (i - 7), 4 * (i - 6)))
        if c.stamps and not c.lite: R.append(('s_memtime s[%d:%d]' % (SX + 2, SX + 3), 'nowait'))
        R += featk(1)
        wq = self.nonce_load()
        for k in range(c.wq_pre): wq += self.dma_w(k, 0, L_WQ, 'wq%d' % k, k in (0, 4))
        wq += ([] if c.pre_q else self.side_loads()) + self.use_nonce(br)
        hooks = {}; k0 = c.wv_early
        for k1 in c.wv_bar:
            hooks[4 * k0] = (['@waitlgkm xr13'] if k0 == c.wv_early else []) + ['@waitvm wv%d' % (k1 - 1), 's_barrier'] + (wq if k0 == max(c.wq_at, c.wv_early) else []); k0 = k1
        R += self.gemm(vV, vWRk, L_WV - L_WK, False, 0, hooks, lead=True, ks=range(4 * c.wv_early, 28))
        A('v_mov_b32 %s, 0x3f803f80' % v(vXR2 + 3))
        for tile in range(2):
            R += self.pack(vV + 16 * tile)
            for u in range(8): A('v_cndmask_b32_e64 %s, %s, %s, s[%d:%d]' % (v(vV + 16 * tile + u), v(vV + 16 * tile + u), v(vXR2 + 3), sE28, sE28 + 1))
        for tile in range(2):
            for sg in reversed(range(NT)):
                src = tn(tile, sg) if B else vE + 32 * tile
                for t in range(2):
                    A(mfma(vKV + 16 * sg, v(src + 4 * t, 4), v(vV + 16 * tile + 4 * t, 4), None if (tile == 0 and t == 0) else vKV + 16 * sg))
        t0, t1, t2 = vXR, vXR + 1, vXR2 + 2
        A('v_add_u32 %s, %s, %s' % (v(t0), s(sSCR), v(vL16)))
        for q in ((4, 5, 6, 7, 2, 3) if B else range(4)): A('ds_write_b128 %s, %s offset:%d' % (v(t0), v(vKV + 4 * q, 4), 16384 * (q >> 2) + 1024 * (q & 3)))
        for d in range(1, 4): A('v_xor_b32 %s, %d, %s' % (v(t0 + d), 4096 * d, v(t0)))
        if not B:
            A('s_cmp_ge_u32 %s, 2' % s(sW)); A('s_cselect_b32 %s, 0x%x, 0' % (s(sA), OOB)); A('v_add_u32 %s, %s, %s' % (v(t2), s(sA), v(vL16)))
        A('v_mov_b32 %s, 0xffff' % v(vXD))
        if c.thr: L += ['s_lshr_b32 %s, 0x2a54, %s' % (s(sT2), s(sH)), 's_bitcmp0_b32 %s, 0' % s(sT2), 's_cselect_b64 vcc, -1, 0']
        L += self.throttle(self.sched(R, 'phase2' + br, boost={'hi': 9000, 'kk': 12000, 'lead': 5000, 'hi2': c.hi2, 'hi3': c.hi2 + c.t0boost}, tight=c.p2_tight), br)
        if c.stamps and not c.lite: L += ['@waitlgkm_all', 'v_writelane_b32 %s, %s, 2' % (v(vST), s(SX + 2))]
        L += self.stamp(3)
        g0 = len(L)
        L += ['s_getpc_b64 s[%d:%d]' % (sTAB, sTAB + 1), 'L_pc%s:' % br, 's_add_u32 %s, %s, L_tab - L_pc%s' % (s(sTAB), s(sTAB), br), 's_addc_u32 %s, %s, 0' % (s(sTAB + 1), s(sTAB + 1))]
        L += self.nonce_chk(br)
        mg = c.merge_q
        X = []; A = X.append
        A('@waitlgkm_all')
        if mg: A('@waitvm wq%d' % (mg - 1))
        A('s_barrier')
        L += X; self.glue(L[g0:]); X = []; A = X.append
        for d in range(1, 4):
            for hf in range(2): X.append(('ds_read_b128 %s, %s offset:%d' % (v(vV + 8 * d + 4 * hf, 4), v(t0 + d), (16384 * (d >> 1) if B else 0) + 2048 * (d & 1) + 1024 * hf), 'exr'))
        for d in range(1, 4):
            if mg:
                for u in range(7): A('v_add_f32 %s, %s, %s' % (v(vKV + u), v(vKV + u), v(vV + 8 * d + u)))
            else:
                for u in range(0, 8, 2): A('v_pk_add_f32 %s, %s, %s' % (v(vKV + u, 2), v(vKV + u, 2), v(vV + 8 * d + u, 2)))
        X += self.pack(vKV, 4)
        A('v_bfi_b32 %s, %s, %s, %s' % (v(vKV + 3), v(vXD), v(vKV + 3), v(vTAG)))
        X.append(('buffer_store_dwordx4 %s, %s, s[%d:%d], %s offen sc1' % (v(vKV, 4), v(vL16 if B else t2), SWS, SWS + 3, s(sPX)), 'pst'))
        tm = c.q_tm and B
        X2 = ['@waitlgkm exr', '@waitvm wq6', 's_barrier']
        if mg: R = X + self.gemm(vK, vWRq, L_WQ, True, 4, tiles=(0,) if tm else (0, 1), ks=range(4 * mg)) + X2
        else:
            L += self.glue(X + self.stamp(4) + X2); R = []
        A = R.append
        t0, t1, t2 = vXR, vXR + 1, vXR + 2
        A('v_add_u32 %s, 2560, %s' % (v(vXD + 1), v(vWOD))); A('v_xor_b32 %s, 32, %s' % (v(vXD + 3), v(vWOD)))
        A('v_add_u32 %s, 5120, %s' % (v(vXD + 2), v(vXD + 3))); A('v_add_u32 %s, 7680, %s' % (v(vXD + 3), v(vXD + 3)))
        A('s_mul_i32 %s, %s, 14336' % (s(sWOS), s(sW))); A('s_lshl_b32 %s, %s, 8' % (s(sA), s(sCB))); A('s_add_u32 %s, %s, %s' % (s(sWOS), s(sWOS), s(sA)))
        A('v_and_b32 %s, 15, %s' % (v(vXR + 3), v(vL))); A('v_lshlrev_b32 %s, 3, %s' % (v(vXR + 3), v(vXR + 3)))
        A('v_lshrrev_b32 %s, 4, %s' % (v(t1), v(vL))); A('v_lshlrev_b32 %s, 1, %s' % (v(t0), v(vXR + 3))); A('v_lshl_add_u32 %s, %s, 10, %s' % (v(t2), v(t1), v(t0)))
        A('s_add_u32 %s, %s, %d' % (s(sB_), s(sSET if B else sM0W), L_MISC))
        A('v_lshl_add_u32 %s, %s, 3, %s' % (v(vXR2 + 3), v(t1), v(t0))); A('v_add_u32 %s, %s, %s' % (v(t0), s(sB_), v(vXR2 + 3))); A('v_add_u32 %s, %d, %s' % (v(vXR2 + 3), L_MISC + 4096, v(vXR2 + 3)))
        A('v_cndmask_b32_e64 %s, %s, %s, s[%d:%d]' % (v(vXR2 + 3), v(t0), v(vXR2 + 3), sHI, sHI + 1))
        if B: A('v_mov_b32 %s, %s' % (v(t0), v(t2)))
        else: A('v_sub_u32 %s, %s, %s' % (v(t0), v(vXR2 + 2), v(vL16))); A('v_add_u32 %s, %s, %s' % (v(t0), v(t0), v(t2)))
        A('v_and_b32 %s, 1, %s' % (v(t1), v(vL))); A('v_lshlrev_b32 %s, 4, %s' % (v(t1), v(t1))); A('v_mov_b32 %s, 0x3f80' % v(t2)); A('v_lshlrev_b32 %s, %s, %s' % (v(t2), v(t1), v(t2)))
        A('v_and_b32 %s, 15, %s' % (v(t1), v(vL))); A('v_cmp_eq_u32 vcc, 7, %s' % v(t1)); A('v_cndmask_b32_e64 %s, %s, 0, vcc' % (v(t2), v(t2))); A('v_lshrrev_b32 %s, 1, %s' % (v(t1), v(t1)))
        for i in range(4):
            r = (sT0, sFAR)[i & 1]
            A('v_cmp_eq_u32_e64 s[%d:%d], %d, %s' % (r, r + 1, i, v(t1))); A('v_cndmask_b32_e64 %s, 0, %s, s[%d:%d]' % (v(vID + i), v(t2), r, r + 1))
        wo_block = self.wo_block
        if c.pre_q: R += self.side_loads()
        for m in range(c.wo_before): R += wo_block(m)
        itab = len(R)
        npart = len(R); R += self.part_loads(br)
        for m in range(c.wo_before, c.wo_mid): R += wo_block(m)
        tabs = self.table_loads()
        if not tm: R += self.gemm(vK, vWRq, L_WQ, True, 4, ks=range(4 * mg, 28))
        for tile in range(2):
            if tm: R += self.gemm(vK, vWRq, L_WQ, True, 4 + 28 * tile, tiles=(tile,), ks=range(0 if tile else 4 * mg, 28))
            R += self.pack(vK + 16 * tile) + self.zero_hi_pads(vK + 16 * tile)
            for t in range(2):
                R.append((mfma(vP + 16 * tile, v(vPH + 4 * t, 4), v(vK + 16 * tile + 4 * t, 4), None if t == 0 else vP + 16 * tile), 'hi' if tile == 0 else None))
        for tile in range(2):
            pk = not (tm and tile == 0)
            R += self.softmax(vP + 16 * tile, vE + 32 * tile, vE + 32 * tile + 16, vT2 + 8 * tile, pk, vK + 16 * tile + 15 if (c.qfold and pk) else None) if B else self.elu1(vP + 16 * tile, vE + 32 * tile, True, True)
        vIM = [vWD, vWDq, vXR2 + 2, vWRq]
        R += ['s_add_u32 %s, %s, %d' % (s(sB_), s(sSET), L_MISC), 'v_add_u32 %s, %s, %s' % (v(vIM[0]), s(sB_), v(vL16))]
        for q in range(1, 2 * NT): R.append('v_xor_b32 %s, %d, %s' % (v(vIM[q]), 1024 * q, v(vIM[0])))
        if c.tab_acc:
            pl = R[itab:itab + 9]; del R[itab:itab + 9]
            j = max(i for i, x in enumerate(R) if 'a[124:127]' in (x[0] if isinstance(x, tuple) else x)) + 1
            R[j:j] = tabs + pl; npart = j + len(tabs); tabs = []; late0 = []
        elif c.tab_late: late0 = tabs; tabs = []
        else: late0 = []
        L += self.sched(R + tabs, 'q' + br, release={npart: (c.rel_part if B else c.rel_partA) + (330 if mg else 0)}, boost={'hi': 4000, 'pst': 30000, 'exr': 40000}, tight=c.q_tight)
        L += self.stamp(6)
        A = L.append
        A('@waitvm part'); self.glue(L[-1:])
        L += self.stamp(5)
        A('L_part_chk%s:' % br)
        R = []; A = R.append
        G0 = vKV
        for p in range(8): A('v_mfma_f32_16x16x32_bf16 %s, %s, %s, %s' % (v(vV + 4 * (p & 3), 4), v(vID, 4), v(G0 + 4 * p, 4), v(vV + 4 * (p & 3), 4) if p >= 4 else '0'))
        x, z, y = vT2, vT2 + 1, vT2 + 12
        A('v_max3_u32 %s, %s, %s, %s' % (v(x), v(G0 + 3), v(G0 + 7), v(G0 + 11))); A('v_min3_u32 %s, %s, %s, %s' % (v(y), v(G0 + 3), v(G0 + 7), v(G0 + 11)))
        A('v_max3_u32 %s, %s, %s, %s' % (v(x), v(x), v(G0 + 15), v(G0 + 19))); A('v_min3_u32 %s, %s, %s, %s' % (v(y), v(y), v(G0 + 15), v(G0 + 19)))
        A('v_max3_u32 %s, %s, %s, %s' % (v(x), v(x), v(G0 + 23), v(G0 + 27))); A('v_min3_u32 %s, %s, %s, %s' % (v(y), v(y), v(G0 + 23), v(G0 + 27)))
        A('v_max_u32 %s, %s, %s' % (v(x), v(x), v(G0 + 31))); A('v_min_u32 %s, %s, %s' % (v(y), v(y), v(G0 + 31)))
        A('v_xor_b32 %s, %s, %s' % (v(x), v(x), v(vTAG))); A('v_xor_b32 %s, %s, %s' % (v(y), v(y), v(vTAG)))
        A('v_or_b32 %s, %s, %s' % (v(x), v(x), v(y))); A('v_lshrrev_b32 %s, 16, %s' % (v(x), v(x)))
        A('v_xor_b32 %s, %s, %s' % (v(y), s(sN0), v(vN))); A('v_xor_b32 %s, %s, %s' % (v(z), s(sREC), v(vN + 1)))
        A('v_cmp_ne_u32_e64 s[%d:%d], 0, %s' % (sFAR, sFAR + 1, v(z)))
        A('v_lshrrev_b32 %s, 4, %s' % (v(z), v(z))); A('v_or3_b32 %s, %s, %s, %s' % (v(x), v(x), v(y), v(z)))
        A('v_cmp_ne_u32 vcc, 0, %s' % v(x))
        L += self.sched(R, 'sum' + br)
        A = L.append
        A('s_cbranch_vccnz L_part_retry%s' % br)
        late = list(late0)
        for m in range(c.wo_mid, c.wo_imp): late += wo_block(m)
        nl = 0 if c.tab_acc else c.late0
        L += late[:nl]
        for q in range(4): L += self.pack(vV + 4 * q, 2)
        for q in range(4): A('ds_write_b64 %s, %s offset:%d' % (v(vXR2 + 3), v(vV + 4 * q, 2), 256 * q))
        A('@waitlgkm_all'); A('s_barrier')
        self.glue(L[-nl - 15:])
        R = []; A = R.append
        R += late[nl:]
        early = self.wo_reads()[:3 + 8 * c.wo_early]
        for q in range(2 * NT): A('ds_read_b128 %s, %s' % (v(vV + 16 + 4 * q, 4), v(vIM[q])))
        for tile in range(2):
            for q in range(2 * NT):
                A(mfma(vP + 16 * tile, v(vV + 16 + 4 * q, 4), v(vE + 32 * tile + 16 * (q >> 1) + 4 * (q & 1), 4), None if q == 0 else vP + 16 * tile))
        for tile in range(2):
            P = vP + 16 * tile; d = vT2 + 4 + 4 * tile
            A('v_mov_b32 %s, %s' % (v(d), v(P + 12))); A('v_permlane32_swap_b32 %s, %s' % (v(P + 12), v(d)))
            A('v_add_f32 %s, %s, %s' % (v(d), v(vK + 16 * tile + 15) if (B and c.qfold) else '0x358637bd', v(d))); A('v_rcp_f32 %s, %s' % (v(d), v(d)))
            for u in range(8):
                if tile: A('v_pk_mul_f32 %s, %s, %s op_sel_hi:[1,0]' % (v(P + 2 * u, 2), v(P + 2 * u, 2), v(d, 2)))
                else:
                    for k in range(2): A('v_mul_f32 %s, %s, %s' % (v(P + 2 * u + k), v(P + 2 * u + k), v(d)))
                A('v_cvt_pk_bf16_f32 %s, %s, %s' % (v(P + u), v(P + 2 * u), v(P + 2 * u + 1)))
        A('v_mov_b32 %s, %s' % (v(vN), s(sN0))); A('v_mov_b32 %s, %s' % (v(vN + 1), s(sN1)))
        A('s_lshl_b32 %s, %s, 3' % (s(sT2), s(sH))); A('s_add_u32 %s, %s, %s' % (s(sC_), s(sFLW), s(sT2))); A('s_xor_b32 %s, %s, 32768' % (s(sOBX), s(sOB1))); A('s_add_u32 %s, %s, 16384' % (s(sA), s(sOB1))); A('s_add_u32 %s, %s, 16384' % (s(sB_), s(sOBX)))
        L += self.sched(R + early, 'o' + br, lowds={id(x) for x in early}, vmlow=True)
        L += self.stamp(7)
        A = L.append
        if c.force_global: A('s_branch L_far')
        A('s_cmp_lg_u64 s[%d:%d], 0' % (sFAR, sFAR + 1)); A('s_cbranch_scc1 L_far')
        return L
    def publish(self, fl):
        c = self.cfg; L = []
        for tile in range(2):
            for t in range(2):
                L.append(('buffer_store_dwordx4 %s, %s, s[%d:%d], %s offen %s' % (v(vP + 16 * tile + 4 * t, 4), v(vL16), SWS, SWS + 3, s(((sOB1, sA), (sOBX, sB_))[tile][t]), fl), 'ost'))
        for m in range(c.wo_imp, 7 - c.wo_g3): L += self.wo_block(m)
        L += self.p3_setup()
        L = self.sched(L, 'pub')
        L += ['@waitvm ost']
        L.append('buffer_store_dwordx2 %s, %s, s[%d:%d], %s offen %s' % (v(vN, 2), v(vT), SWS, SWS + 3, s(sC_), fl))
        return L
    def wo_block(self, m, tag='wo'):
        X = ['s_add_u32 m0, %s, %d' % (s(sM0X), L_WO + 16384 * m)]
        if m: X.append('s_add_u32 %s, %s, %d' % (s(sWOS), s(sWOS), 57344))
        return X + [('buffer_load_dwordx4 %s, s[%d:%d], %s offen offset:%d %s lds' % (v(vXD + j if j else vWOD), SWO, SWO + 3, s(sWOS), 1024 * j, self.cfg.wofl), tag) for j in range(4)]
    def part_loads(self, br):
        L = [('buffer_load_dwordx2 %s, %s, s[%d:%d], %s offen sc1' % (v(vN, 2), v(vXR + 3), SWS, SWS + 3, s(sRECL)), 'rec')]
        for p in range(8):
            L.append(('buffer_load_dwordx4 %s, %s, s[%d:%d], %s offen offset:%d sc1' % (v(vKV + 4 * p, 4), v(vXR), SWS, SWS + 3, s(sPL1 if p >= 4 else sPL0), 256 * (p & 3)), 'part'))
        return L
    def part_retry(self, br):
        P = self.part_loads(br)
        L = ['L_part_retry%s:' % br, '@assume_idle', '@waitvm_all'] + SPIN + [P[0]]
        for p in range(8):
            L += ['v_xor_b32 %s, %s, %s' % (v(vT2), v(vKV + 4 * p + 3), v(vTAG)), 'v_cmp_lt_u32 vcc, 0xffff, %s' % v(vT2), 's_cbranch_vccz L_got%s%d' % (br, p), (P[1 + p][0], 'untracked'), 'L_got%s%d:' % (br, p)]
        return L + ['@waitvm_all', 's_branch L_part_chk%s' % br]
    def far(self):
        return ['L_far:', '@assume_idle', '@waitvm_all', 's_nop 4'] + self.publish('sc1') + ['s_branch L_join']
    def wo_reads(self):
        b = [vWO0, vWO0 + 1, vXR2, vXR2 + 1]
        L = ['v_xor_b32 %s, 32, %s' % (v(b[1]), v(b[0])), 'v_add_u32 %s, 0x10000, %s' % (v(b[2]), v(b[0])), 'v_add_u32 %s, 0x10000, %s' % (v(b[3]), v(b[1]))]
        for k in range(14):
            for nt in range(2):
                for i in range(2):
                    off = (32 * k + 4 * i) * 256
                    L.append('ds_read_b64_tr_b16 %s, %s offset:%d' % (a(8 * k + 4 * nt + 2 * i, 2), v(b[nt + 2 * (off >> 16)]), off & 0xffff))
        return L

    def p3_setup(self):
        L = []; A = L.append
        A('s_lshl_b32 %s, %s, 2' % (s(sT2), s(sRB))); A('s_add_u32 %s, %s, %s' % (s(sT2), s(sT2), s(sRQ))); A('s_mul_i32 %s, %s, %d' % (s(sD_), s(sT2), 64 * 1792))
        A('s_mul_i32 %s, %s, 896' % (s(sT2), s(sBR))); A('s_add_u32 %s, %s, %s' % (s(sD_), s(sD_), s(sT2)))
        A('s_lshl_b32 %s, %s, 2' % (s(sT2), s(sCB))); A('s_add_u32 %s, %s, %s' % (s(sT2), s(sT2), s(sW)))
        A('s_cmp_ge_u32 %s, 14' % s(sT2)); A('s_cselect_b32 %s, 0x%x, 0' % (s(sA), OOB))
        A('s_lshl_b32 %s, %s, 6' % (s(sT2), s(sT2))); A('s_add_u32 %s, %s, %s' % (s(sXO), s(sD_), s(sT2)))
        for b in range(1, 4): A('s_add_u32 %s, %s, %d' % (s(sXO + b), s(sXO), b * 16 * 1792))
        t0, t1, t2 = vT2 + 10, vT2 + 11, vT2 + 12
        A('s_lshl_b32 %s, %s, 12' % (s(sB_), s(sW))); A('s_add_u32 %s, %s, %d' % (s(sB_), s(sB_), L_OT))
        A('v_and_b32 %s, 15, %s' % (v(t0), v(vL))); A('v_lshlrev_b32 %s, 4, %s' % (v(vS16), v(t0))); A('v_lshl_add_u32 %s, %s, 6, %s' % (v(t0), v(t0), s(sB_)))
        A('v_bfe_u32 %s, %s, 4, 1' % (v(t1), v(vL))); A('v_lshl_add_u32 %s, %s, 3, %s' % (v(t0), v(t1), v(t0)))
        A('v_bfe_u32 %s, %s, 1, 2' % (v(t1), v(vL))); A('v_lshrrev_b32 %s, 5, %s' % (v(t2), v(vL))); A('v_xor_b32 %s, %s, %s' % (v(t1), v(t1), v(t2)))
        A('v_lshl_add_u32 %s, %s, 4, %s' % (v(vOW), v(t1), v(t0))); A('v_xor_b32 %s, 32, %s' % (v(vOW + 1), v(vOW)))
        A('v_bfe_u32 %s, %s, 3, 2' % (v(t1), v(vL))); A('v_xor_b32 %s, %s, %s' % (v(t1), v(t1), v(vL))); A('v_and_b32 %s, 3, %s' % (v(t1), v(t1)))
        A('v_lshrrev_b32 %s, 2, %s' % (v(t0), v(vL))); A('v_lshl_add_u32 %s, %s, 6, %s' % (v(t2), v(t0), s(sB_))); A('v_lshl_add_u32 %s, %s, 4, %s' % (v(vOR), v(t1), v(t2)))
        A('v_mul_u32_u24 %s, 1792, %s' % (v(t0), v(t0))); A('v_and_b32 %s, 3, %s' % (v(t1), v(vL))); A('v_lshl_add_u32 %s, %s, 4, %s' % (v(t0), v(t1), v(t0)))
        A('v_add_u32 %s, %s, %s' % (v(vOG), s(sA), v(t0)))
        A('v_and_b32 %s, 15, %s' % (v(t0), v(vL))); A('v_cmp_eq_u32_e64 s[%d:%d], %s, %s' % (sOWN, sOWN + 1, s(sH), v(t0)))
        for i, r in enumerate(vOF):
            if self.cfg.tab_acc: A('v_accvgpr_read_b32 %s, %s' % (v(r), a(112 + i)))
            A('v_add_u32 %s, %s, %s' % (v(r), v(r), v(vS16)))
        A('s_lshl2_add_u32 %s, %s, %s' % (s(sT2), s(sGID), s(sRQ))); A('s_lshl2_add_u32 %s, %s, %s' % (s(sT2), s(sT2), s(sW)))
        A('s_lshl_b32 %s, %s, 14' % (s(sT2), s(sT2))); A('s_add_u32 %s, %s, %d' % (s(sD_), s(sT2), WS_O))
        A('s_lshl_b32 %s, %s, 14' % (s(sWOM), s(sW))); A('s_mov_b32 m0, %s' % s(sWOM))
        return L
    def table_loads(self):
        L = ['v_and_b32 %s, 0x300, %s' % (v(vWRk), v(vL16)), 'v_lshrrev_b32 %s, 2, %s' % (v(vWRk), v(vWRk))]
        for q in range(4):
            dst = a(112 + 4 * q, 4 if q < 3 else 2) if self.cfg.tab_acc else v(vOF[4 * q], 4 if q < 3 else 2)
            L.append(('global_load_dwordx%d %s, %s, s[%d:%d] offset:%d' % (4 if q < 3 else 2, dst, v(vWRk), sTAB, sTAB + 1, 16 * q), 'tab'))
        return L
    def table(self, pad):
        T = []
        for g in range(4):
            for r in range(16):
                h, u = divmod(8 * (r >> 1) + 2 * g + (r & 1), 7)
                T.append(h * 1024 + (u >> 2) * 16384 + (u & 1) * 512 + ((u >> 1) & 1) * 8)
        return ['.p2align 6', '.type L_tab,@object', 'L_tab:'] + ['.long %d' % x for x in T] + (['.fill L_PAD, 4, 0', '.size L_tab, 256 + 4 * L_PAD'] if pad else ['.size L_tab, 256', '.p2align 7'])

    def tail(self):
        c = self.cfg
        L = ['L_pub:'] + self.publish(''); A = L.append
        A('L_join:')
        L += self.stamp(8)
        g3 = 7 - c.wo_g3
        poll = 'buffer_load_dwordx2 %s, %s, s[%d:%d], %s offen sc1' % (v(vT2, 2), v(vXR + 3), SWS, SWS + 3, s(sFLG))
        assert c.wo_early >= 2
        if c.poll_first:
            A(poll); A('@waitlgkm_all'); A('s_barrier'); L += self.wo_reads()[3 + 8 * c.wo_early:3 + 8 * c.wo_imp]
            wrest = self.wo_reads()[3 + 8 * c.wo_imp:3 + 8 * g3]
        else:
            A('@waitvm wo'); A(poll); A('@waitlgkm_all'); A('s_barrier'); L += self.wo_reads()[3 + 8 * c.wo_early:3 + 8 * g3]
            wrest = []
        def test(r): return ['v_xor_b32 %s, %s, %s' % (v(r), s(sN0), v(r)), 'v_xor_b32 %s, %s, %s' % (v(r + 1), s(sN1), v(r + 1)),
                             'v_or_b32 %s, %s, %s' % (v(r), v(r), v(r + 1)), 'v_cmp_ne_u32 vcc, 0, %s' % v(r), 's_andn2_b64 vcc, vcc, s[%d:%d]' % (sOWN, sOWN + 1)]
        A('L_poll:')
        L += test(vT2); A('s_cbranch_vccnz L_repoll'); A('L_seen:')
        p2 = poll.replace(v(vT2, 2), v(vT2 + 14, 2))
        self.repoll = ['L_repoll:', '@assume_idle', (poll, 'p1')] + SPIN + ['s_nop 15', (p2, 'p2')] + test(vT2) + ['s_cbranch_vccz L_seen2'] + test(vT2 + 14) + ['s_cbranch_vccnz L_repoll',
                       'L_seen2:', '@waitvm_all', 's_branch L_seen']
        L += self.stamp(9)
        od = []
        for h in range(16):
            if h and h % 4 == 0: od += ['s_add_u32 m0, %s, %d' % (s(sWOM), 1024 * h), 's_add_u32 %s, %s, 4096' % (s(sD_), s(sD_))]
            od.append(('buffer_load_dwordx4 %s, s[%d:%d], %s offen offset:%d sc1 lds' % (v(vL16), SWS, SWS + 3, s(sD_), 1024 * (h & 3)), 'o%d' % h))
        assert c.o_first % 4 == 0
        nf = [i for i, x in enumerate(od) if isinstance(x, tuple)][c.o_first - 1] + 1
        L += od[:nf]
        M16 = 'v_mfma_f32_16x16x32_bf16'
        st = {'have': -1}
        def gate(k):
            X = []; h = (8 * k + 7) // 7
            need = min(x for x in c.stages if x >= h)
            wg = k % 2 == 0 and k // 2 >= g3
            if st['have'] < need or wg:
                X = ['@waitvm o%d' % need + (' wog%d' % (k // 2) if wg else ''), 's_barrier']; st['have'] = max(need, st['have'])
            return X
        def rd(k, sg, i): return 'ds_read_b64 %s, %s offset:%d' % (v(vE + 4 * ((4 * k + sg) % 12) + 2 * i, 2), v(vOF[2 * (k % 7) + i]), (k // 7) * 8192 + (sg >> 1) * 32768 + (sg & 1) * 256)
        rds = lambda k: [rd(k, sg, i) for sg in range(4) for i in range(2)]
        later = od[nf:]
        for m in range(g3, 7): later += self.wo_block(m, 'wog%d' % m)
        L += gate(0) + rds(0) + gate(1)
        kt = 14 - c.tailk
        for k in range(kt):
            fill = []
            if k + 2 < 14:
                L += gate(k + 2); fill = (rds(1) if k == 0 else []) + rds(k + 2)
                if k >= c.wrest_at and wrest: fill = interleave(fill, wrest[:c.wrest_n]); del wrest[:c.wrest_n]
                assert not wrest or k + 1 < 2 * c.wo_imp
                if (k + 2) % 2 == 0 and (k + 2) // 2 >= g3: fill = interleave(fill, self.wo_reads()[3 + 4 * (k + 2):3 + 4 * (k + 2) + 8])
            per = -(-len(fill) // 8)
            for j in range(8):
                sg, nt = j >> 1, j & 1
                d = v(vK + 8 * sg + 4 * nt, 4)
                L.append('%s %s, %s, %s, %s' % (M16, d, a(8 * k + 4 * nt, 4), v(vE + 4 * ((4 * k + sg) % 12), 4), d if k else '0'))
                if later and k and j % c.g3_every == 0:
                    while not isinstance(later[0], tuple): L.append(later.pop(0))
                    L.append(later.pop(0))
                L += fill[per * j:per * (j + 1)]
        assert not later
        L += self.stamp(10)
        R = []; A = R.append
        for k in range(kt + 2, 14): assert not gate(k); R += rds(k)
        for sg in range(4):
            for k in range(kt, 14):
                for nt in range(2):
                    d = v(vK + 8 * sg + 4 * nt, 4)
                    R.append(('%s %s, %s, %s, %s' % (M16, d, a(8 * k + 4 * nt, 4), v(vE + 4 * ((4 * k + sg) % 12), 4), d), 'sg%d' % sg))
        for sg in range(4):
            for nt in range(2):
                d = vK + 8 * sg + 4 * nt
                R += self.pack(d, 2)
                A('ds_write_b64 %s, %s offset:%d' % (v(vOW + nt), v(d, 2), 1024 * sg))
            A('ds_read_b128 %s, %s offset:%d' % (v(vP + 4 * sg, 4), v(vOR), 1024 * sg))
            A('buffer_store_dwordx4 %s, %s, s[%d:%d], %s offen %s' % (v(vP + 4 * sg, 4), v(vOG), SOUT, SOUT + 3, s(sXO + sg), c.outfl))
        self.M.t += 3000
        L += self.sched(R, 'out', boost={'sg0': 4000, 'sg1': 3000, 'sg2': 2000})
        A = L.append
        if c.stamps:
            L += self.stamp(11)
            A('s_memrealtime s[%d:%d]' % (sT0, sT1)); A('@waitlgkm_all')
            A('v_writelane_b32 %s, %s, 12' % (v(vST), s(sT0)))
            A('s_lshl_b32 %s, s2, 2' % s(sT2)); A('s_add_u32 %s, %s, %s' % (s(sT2), s(sT2), s(sW))); A('s_lshl_b32 %s, %s, 8' % (s(sT2), s(sT2)))
            A('s_add_u32 %s, %s, %d' % (s(sT2), s(sT2), WS_STAMP))
            A('v_lshlrev_b32 %s, 2, %s' % (v(vT), v(vL)))
            for k in range(0 if not c.prost else 4, 4): A('v_writelane_b32 %s, s%d, %d' % (v(vST), 12 + 2 * k, 32 + k))
            A('buffer_store_dword %s, %s, s[%d:%d], %s offen' % (v(vST), v(vT), SWS, SWS + 3, s(sT2)))
        if c.leak:
            if c.leak == 11: L += self.stamp(11)
            A('s_lshl_b32 s11, s101, 2'); A('s_cmp_eq_u32 %s, %d' % (s(sBR), c.leak_br)); A('s_cselect_b32 s11, s11, 0'); A('s_memrealtime s[100:101]'); A('@waitlgkm_all')
            A('L_leak:'); A('s_memrealtime s[%d:%d]' % (sT0, sT1)); A('@waitlgkm_all'); A('s_sub_u32 %s, %s, s100' % (s(sT0), s(sT0))); A('s_cmp_lt_u32 %s, s11' % s(sT0)); A('s_cbranch_scc1 L_leak')
        if c.tfix:
            A('L_tfix:'); A('s_memrealtime s[%d:%d]' % (sT0, sT1)); A('@waitlgkm_all'); A('s_sub_u32 %s, %s, s100' % (s(sT0), s(sT0))); A('s_cmp_lt_u32 %s, %d' % (s(sT0), c.tfix)); A('s_cbranch_scc1 L_tfix')
        A('L_end:'); A('s_endpgm')
        return L

    def throttle(self, L, br):
        c = self.cfg
        if not c.thr: return L
        out = []; seen = set()
        for x in L:
            if isinstance(x, tuple) and x[1] is not None and x[1] not in seen and x[1] in c.thr_tags:
                if x[1] != 'wq': seen.add(x[1])
                n = self.nthr; self.nthr += 1
                out += ['s_cbranch_vccnz L_thr%d' % n, 'L_thb%d:' % n]
                self.thr_side += ['L_thr%d:' % n, 's_waitcnt vmcnt(%d)' % c.thr, 's_branch L_thb%d' % n]
            out.append(x)
        return out
    def marks(self, L):
        if not self.cfg.marks: return L
        out = []; seen = set()
        for x in L:
            t = x[0] if isinstance(x, tuple) else x
            hit = [k for k, (p, af) in enumerate(self.cfg.marks) if (t == p or t.startswith(p + ' ')) and k not in seen]
            for k in hit:
                if not self.cfg.marks[k][1]: out.append(('s_memtime s[%d:%d]' % (12 + 2 * k, 13 + 2 * k), 'nowait'))
            out.append(x)
            for k in hit:
                if self.cfg.marks[k][1]: out.append(('s_memtime s[%d:%d]' % (12 + 2 * k, 13 + 2 * k), 'nowait'))
                seen.add(k)
        return out
    def build(self):
        import re
        pro = self.prologue() + ['s_cmp_eq_u32 %s, 0' % s(sBR), 's_cbranch_scc1 L_pathA']
        MK = '.set MARK_A, 0'
        out = []; base = self.cfg
        for br in 'BA':
            import emit, sched
            c = copy.copy(base)
            for k, x in getattr(base, br).items(): assert hasattr(c, k), k; setattr(c, k, x)
            self.__init__(c); self.prologue()
            emit.MERGE = c.merge; sched.BURST = c.burst; sched.HOLD = c.hold
            hlp = [(x, 'untracked') if x.startswith('global_load') else x for x in self.help()] if (br == 'A' and self.cfg.help) else []
            body = hlp + self.part1(br) + self.stamp(14) + self.middle(br) + self.tail()
            code = finalize(self.marks(pro + [MK] + body)); k = code.index(MK)
            head, code = code[:k], code[k + 1:]
            side = finalize(self.repoll + self.far() + self.nonce_retry(br) + self.part_retry(br) + (self.mknonce() if br == 'B' else []))
            tab = self.table(br == 'A')
            if br == 'A':
                ren = lambda l: re.sub(r'\b(L_(?:end|pub|join|far|poll|repoll|seen2?|tab|leak|tfix))\b', r'\1A', l)
                code, side, tab = [ren(l) for l in ['L_pathA:'] + code], [ren(l) for l in side], [ren(l) for l in tab]
            else: code = head + code
            out.append((code, side + tab))
        return out

HEADER = open(os.path.join(os.path.dirname(os.path.abspath(__file__)), 'header.txt')).read()

DESC = """;
"""

def generate(cfg):
    import emit
    emit.MERGE = cfg.merge
    import sched
    sched.BURST = cfg.burst; sched.HOLD = cfg.hold
    g = G(cfg)
    (cb, sb), (ca, sa) = g.build()
    if cfg.align:
        from align import align
        hd = '.amdgcn_target "amdgcn-amd-amdhsa--gfx950"\n.text\n.set L_AOFF, 200\n.set L_PAD, 0\n'
        cb, p0, p1 = align(hd, cb, '\n'.join(sb + ca + sa) + '\n', cfg.align)
        ca, p2, p3 = align(hd, ca, '\n'.join(sa + cb + sb) + '\n', cfg.align)
        if cfg.verbose: sys.stderr.write('misalignment penalty %d -> %d, %d -> %d\n' % (p0, p1, p2, p3))
    body = cb + sb + ca + sa
    txt = HEADER
    if cfg.extra_empty:
        txt += '; @launch kernel=%s grid=(256,1,1) block=(256,1,1) lds=163840\n; @launch kernel=empty_kernel grid=(256,1,1) block=(256,1,1) lds=0\n' % KNAME
    else:
        txt += '; @launch grid=(256,1,1) block=(256,1,1) lds=163840\n'
    txt += DESC
    txt += '.amdgcn_target "amdgcn-amd-amdhsa--gfx950"\n.text\n.globl %s\n.p2align 8\n.type %s,@function\n%s:\n' % (KNAME, KNAME, KNAME)
    txt += '\n'.join(('' if l.endswith(':') else '    ') + l for l in body) + '\n'
    if cfg.extra_empty:
        txt += '.globl empty_kernel\n.p2align 8\n.type empty_kernel,@function\nempty_kernel:\n    s_endpgm\n'
        txt += '.section .rodata,"a"\n.p2align 6\n.amdhsa_kernel empty_kernel\n  .amdhsa_next_free_vgpr 8\n  .amdhsa_next_free_sgpr 16\n  .amdhsa_accum_offset 8\n  .amdhsa_group_segment_fixed_size 0\n  .amdhsa_kernarg_size 80\n  .amdhsa_user_sgpr_count 2\n  .amdhsa_user_sgpr_kernarg_segment_ptr 1\n  .amdhsa_system_sgpr_workgroup_id_x 1\n.end_amdhsa_kernel\n'
    txt += '.section .rodata,"a"\n.p2align 6\n.amdhsa_kernel %s\n' % KNAME
    txt += '  .amdhsa_next_free_vgpr 512\n  .amdhsa_next_free_sgpr 102\n  .amdhsa_accum_offset 256\n  .amdhsa_group_segment_fixed_size 0\n'
    txt += '  .amdhsa_kernarg_size 80\n  .amdhsa_user_sgpr_count 2\n  .amdhsa_user_sgpr_kernarg_segment_ptr 1\n  .amdhsa_system_sgpr_workgroup_id_x 1\n.end_amdhsa_kernel\n'
    import subprocess, tempfile, re
    d = tempfile.mkdtemp()
    open(d + '/a.s', 'w').write(txt.replace('L_PAD', '0').replace('L_AOFF', '200'))
    r = subprocess.run(['clang', '-x', 'assembler', '-target', 'amdgcn-amd-amdhsa', '-mcpu=gfx950', '-c', d + '/a.s', '-o', d + '/a.o'], capture_output=True, text=True)
    if r.returncode: raise Exception(r.stderr[:3000])
    r = subprocess.run(['llvm-readelf', '-S', '-s', d + '/a.o'], capture_output=True, text=True).stdout
    size = int(re.search(r'\.text\s+PROGBITS\s+\w+\s+\w+\s+(\w+)', r).group(1), 16)
    offa = int(re.search(r': (\w+)\s+\d+\s+\w+\s+\w+\s+\w+\s+\d+ L_pathA', r).group(1), 16)
    assert offa % 128 == 0 and 64 < offa // 128 and offa < 32768 and size - offa < 32768
    sys.stderr.write('code bytes: B %d A %d\n' % (offa, size - offa))
    return txt.replace('L_PAD', str((offa + 32768 + 256 - size) // 4)).replace('L_AOFF', str(offa // 128))

if __name__ == '__main__':
    cfg = Cfg()
    out = sys.argv[1]
    for kv in sys.argv[2:]:
        k, val = kv.split('=', 1); assert hasattr(cfg, k), k; setattr(cfg, k, eval(val))
    open(out, 'w').write(generate(cfg))
```

```python
import os, sys, copy
from emit import Ins, TRANS, vg

SCC_W = ('s_lshl1_', 's_lshl2_', 's_add_', 's_sub_', 's_cmp', 's_and_', 's_or_', 's_xor_', 's_lshl_', 's_lshr_', 's_bfe_', 's_min_', 's_max_', 's_bitcmp', 's_addc', 's_subb', 's_not', 's_andn2')
SCC_R = ('s_cselect', 's_cbranch_scc', 's_addc', 's_subb')
DSBUSY = {'ds_read_b128': 16, 'ds_read_b64_tr_b16': 8, 'ds_write_b128': 52, 'ds_write_b64': 24, 'ds_read_b64': 8}

BURST = 24
HOLD = 12

def cost(i):
    if i.kind == 'pseudo': return 4
    if i.kind == 'label': return 0
    if i.kind == 'mfma': return 8
    if i.kind == 'vm': return 8
    if i.op == 'ds_write_b128': return 20
    if i.op == 'ds_write_b64': return 12
    if i.kind == 'valu' and (i.op.startswith(TRANS) or i.op.startswith('v_permlane')): return 8
    return 4

def lat(p, c, raw, dslat):
    base = cost(p)
    if p.kind == 'mfma':
        if c.kind == 'mfma' and p.w == c.srcc and not (p.w & c.sab): return 4 * p.passes
        if p.w & (c.r | c.w): return 56 if p.passes == 8 else 40
        return base
    if not raw:
        if p.kind == 'vm' and p.wide: return 12
        return base
    if p.kind == 'ds': return dslat
    if p.kind == 'vm': return base
    if p.kind == 'valu':
        if c.kind == 'mfma' or c.op.startswith('v_permlane') or '_dpp' in c.op: return base + 8
        if any(x[0] == 's' for x in p.w & c.r): return base + (20 if c.kind == 'vm' else 8)
        if p.op.startswith(TRANS) or c.op.startswith(('v_readfirstlane', 'v_readlane')): return base + 4
        if p.op.startswith('v_dot') and c.op != p.op: return base + 12
    if p.kind == 'salu' and c.dma: return base + 4
    return base

class Machine:
    def __init__(self, rate=2.35, cap=256, lat=450, lines=None, miss=None, fifo=3):
        self.t = 0; self.valu_end = -100; self.mf_free = 0; self.mf_done = 0; self.ds_free = 0
        self.rate = rate; self.cap = cap; self.lat = lat
        self.win = []; self.enter = []; self.fifo = fifo
        self.busy = 0; self.last_land = 0; self.land = {}; self.regland = {}
        self.lines = lines or {}; self.miss = miss or {}
    def _look(self, d, tag, dflt):
        tag = tag or ''
        return d.get(tag, d.get(tag.rstrip('0123456789'), dflt))
    def accept_time(self, i):
        if len(self.enter) < self.fifo: return 0
        return self.enter[-self.fifo]
    def issue_vm(self, i, e):
        n = self._look(self.lines, i.tag, 32) / 4.0; m = self._look(self.miss, i.tag, 0)
        for w in range(4):
            t = max(e, self.busy)
            out = sum(l for (ld, l) in self.win); k = 0
            while out + n > self.cap and k < len(self.win):
                t = max(t, self.win[k][0]); out -= self.win[k][1]; k += 1
            self.win = self.win[k:]
            self.busy = t + n * self.rate
            self.last_land = max(self.last_land, self.busy + self.lat + m)
            self.win.append((self.last_land, n))
        self.enter.append(t); self.land[i.tag] = self.last_land
        for x in i.w: self.regland[x] = self.last_land
    def run(self, lines):
        for l in lines:
            i = Ins(*l) if isinstance(l, tuple) else Ins(l)
            e = self.t
            if i.kind == 'mfma': e = max(e, self.mf_free); self.mf_free = e + 4 * i.passes; self.mf_done = self.mf_free + 16
            if i.kind in ('vm', 'ds'): e = max(e, self.valu_end + 8)
            if i.kind == 'valu': self.valu_end = e + cost(i)
            if i.kind == 'vm': e = max(e, self.accept_time(i)); self.issue_vm(i, e)
            if i.op == '@waitvm': e = max([e] + [self.land.get(t, 0) for t in i.text.split()[1:]])
            if i.op in ('@waitvm_all', '@wait_all'): e = max(e, self.last_land)
            if i.op in ('@waitlgkm_all', '@wait_all'): e += 60
            self.t = int(e) + cost(i)
        return lines

def schedule(M, lines, dslat=100, release=None, verbose=False, boost=None, strict=(), lowds=(), tight=False, vmlow=False, noise=0, seed=0, hold=None, soonw=40):
    boost = boost or {}; release = release or {}
    ins = [Ins(*l) if isinstance(l, tuple) else Ins(l) for l in lines]
    n = len(ins); t0 = M.t
    R = []; W = []
    for i in ins:
        assert i.kind != 'label', i.text
        r = set(i.r); w = set(i.w)
        if i.op.startswith(SCC_W): w.add(('s', 'scc'))
        if i.op.startswith(SCC_R): r.add(('s', 'scc'))
        if i.kind in ('valu', 'mfma', 'vm', 'ds'): r.add(('s', 'exec'))
        R.append(r); W.append(w)
    preds = [dict() for _ in range(n)]
    lastw = {}; readers = {}
    last_vm = None; last_dsw = None; ds_since = []; fence = None; mem_since = []
    for k, i in enumerate(ins):
        def dep(p, l):
            if p is not None and p != k: preds[k][p] = max(preds[k].get(p, 0), l)
        for x in R[k]:
            if x in lastw: dep(lastw[x], lat(ins[lastw[x]], i, True, dslat))
        for x in W[k]:
            if x in lastw: dep(lastw[x], lat(ins[lastw[x]], i, False, dslat))
            for p in readers.get(x, []):
                l = cost(ins[p])
                if ins[p].kind == 'mfma' and x in ins[p].srcc and i.kind == 'valu': l = 36
                if ins[p].kind == 'vm' and ins[p].wide and x in ins[p].data: l = 12
                dep(p, l)
        isf = i.kind in ('pseudo', 'ctl') or (i.kind == 'smem' and i.tag != 'nowait')
        if i.tag == 'nowait': dep(k - 1, 8)
        if isf:
            keep = []
            named = i.text.split()[1:]
            for p in mem_since:
                q = ins[p]
                if q.kind == 'vm' and not (i.op == '@waitvm' and q.tag in named) and (q.tag or '').rstrip('0123456789') not in strict and i.op not in ('@waitvm_all', '@wait_all'): keep.append(p)
                elif i.op == '@waitlgkm' and q.kind == 'ds': dep(p, dslat if q.tag in named else 4)
                else: dep(p, cost(q))
            dep(fence, 4)
            if i.op.startswith(('s_cbranch', 's_branch')) or i.kind == 'smem':
                for p in range(k): dep(p, cost(ins[p]))
            fence = k; mem_since = keep
        elif i.kind in ('vm', 'ds'):
            dep(fence, 4); mem_since.append(k)
            if i.kind == 'vm': dep(last_vm, 8); last_vm = k
            else:
                if i.op.startswith('ds_read'): dep(last_dsw, 4); ds_since.append(k)
                else:
                    for p in ds_since: dep(p, 4)
                    dep(last_dsw, DSBUSY.get(i.op, 8)); last_dsw = k; ds_since = []
        for x in R[k]: readers.setdefault(x, []).append(k)
        for x in W[k]: lastw[x] = k; readers[x] = []
    hard = [k for k, i in enumerate(ins) if i.op.startswith(('s_cbranch', 's_branch')) or (i.kind == 'smem' and i.tag != 'nowait')]
    for h in hard:
        for k in range(h + 1, n): preds[k][h] = max(preds[k].get(h, 0), 4)
    succs = [[] for _ in range(n)]
    for k in range(n):
        for p, l in preds[k].items(): succs[p].append((k, l))
    prio = [0] * n
    for k in reversed(range(n)):
        prio[k] = cost(ins[k]) + max([l + prio[s] - cost(ins[k]) for s, l in succs[k]] + [0])
        b = boost.get(ins[k].tag, 0)
        prio[k] = max(prio[k], b)
        if ins[k].tag == 'nowait': prio[k] = 1; NW = k
    if noise:
        import random
        rng = random.Random(seed)
        prio = [p + rng.uniform(0, noise) for p in prio]
    HOLD_ = HOLD if hold is None else hold
    feeds = [i.kind == 'vm' for i in ins]
    for k in reversed(range(n)):
        if ins[k].kind in ('salu', 'valu') and any(feeds[q] and (W[k] & R[q]) - {('s', 'scc')} for q, l in succs[k]) and not ins[k].op.startswith('v_cvt'): feeds[k] = True
    rel = [0] * n
    for key, t in release.items():
        if isinstance(key, int): rel[key] = t0 + t
        else:
            for k, i in enumerate(ins):
                if i.text.startswith(key): rel[k] = t0 + t
    t = t0; done = [None] * n; npred = [len(p) for p in preds]
    ready = [k for k in range(n) if npred[k] == 0]
    order = []; waited = set()
    while ready:
        best = None
        nm = [max([done[p] + l for p, l in preds[q].items()] + [M.mf_free]) - (4 if any(ins[p].kind == 'ds' and p not in waited for p in preds[q]) else 0) for q in ready if ins[q].kind == 'mfma']
        nm = min(nm) if nm else None
        for k in ready:
            i = ins[k]
            e = max([done[p] + l for p, l in preds[k].items()] + [rel[k], t])
            if i.kind == 'mfma': e = max(e, M.mf_free)
            if i.op.startswith('v_pk_'): e = max(e, M.mf_done)
            if i.kind == 'vm': e = max(e, M.accept_time(i))
            if i.kind == 'ds': e = max(e, M.ds_free - BURST)
            if i.op == '@waitvm': e = max([e] + [M.land.get(x, 0) for x in i.text.split()[1:]])
            if i.op in ('@waitvm_all', '@wait_all'): e = max(e, M.last_land)
            for x in (i.r | (i.w if i.kind != 'vm' else set())):
                if x in M.regland: e = max(e, M.regland[x])
            e = int(e)
            st = e - t
            if i.kind in ('vm', 'ds') and e < M.valu_end + 8:
                soon = any(ins[q].kind == 'mfma' and max([done[p] + l for p, l in preds[q].items()] + [M.mf_free]) <= t + soonw for q in ready)
                e = M.valu_end + 8
                if soon or id(lines[k]) in lowds: st = e - t
            elif i.kind == 'ds' and st <= HOLD_ and id(lines[k]) not in lowds: st = 0
            if tight and nm is not None and i.kind != 'mfma' and e + cost(i) > max(nm, t) and nm <= t + 8: st = 1000
            key = (st > 0 and st, -prio[k] - (200000 if prio[k] >= 30000 else 100000 if i.kind == 'mfma' or i.tag == 'nowait' else (40000 if vmlow else 60000) if feeds[k] else 50000 if (i.kind in ('ds', 'pseudo', 'ctl') and id(lines[k]) not in lowds) else 0), k)
            if best is None or key < best[0]: best = (key, k, e)
        _, k, e = best
        i = ins[k]; done[k] = e; t = e + cost(i)
        if i.kind == 'mfma':
            M.mf_free = e + 4 * i.passes; M.mf_done = M.mf_free + 16
            if any(ins[p].kind == 'ds' and p not in waited for p in preds[k]): t += 4; waited.update(preds[k])
        if i.op.startswith('v_pk_'): M.mf_free = max(M.mf_free, t)
        if i.kind == 'valu': M.valu_end = t
        if i.kind == 'vm': M.issue_vm(i, e)
        if i.kind == 'ds': M.ds_free = max(M.ds_free, e) + DSBUSY.get(i.op, 8)
        order.append(k); ready.remove(k)
        for s, l in succs[k]:
            npred[s] -= 1
            if npred[s] == 0: ready.append(s)
    assert len(order) == n
    M.t = t
    if verbose and os.environ.get('DUMP') == verbose:
        pt = t0
        for k in order:
            sys.stderr.write('%5d %s %s\n' % (done[k], '<<stall %d' % (done[k] - pt) if done[k] > pt else '', ins[k].text)); pt = done[k] + cost(ins[k])
    if verbose:
        sys.stderr.write('sched %s: %d instrs, %d -> %d (%d cycles), issue sum %d\n' % (verbose, n, t0, t, t - t0, sum(cost(i) for i in ins)))
    M.times = [done[k] for k in order] + [t]
    return [lines[k] for k in order]


def simulate(M, lines, dslat, release=None):
    import emit
    from emit import hazard
    t = M.t; lgq = []; hist = []; n = 0; when = {}
    for l in lines:
        i = Ins(*l) if isinstance(l, tuple) else Ins(l)
        if i.kind == 'pseudo':
            p = i.text.split()
            if p[0] == '@waitvm': t = max([t] + [M.land.get(x, 0) for x in p[1:]]) + 4
            elif p[0] in ('@waitvm_all', '@wait_all'): t = max(t, M.last_land) + 4
            elif p[0] == '@waitlgkm':
                idx = [k for k, o in enumerate(lgq) if o[0].tag in p[1:]]
                if not idx: continue
                t = max(t, lgq[idx[-1]][1]) + 4; lgq = lgq[idx[-1] + 1:]
            elif p[0] == '@waitlgkm_all': t = max([t] + [o[1] for o in lgq]) + 4; lgq = []
            hist.append((i, 1)); n += 1; t = int(t); continue
        touched = i.r if i.kind == 'ds' else (i.r | i.w)
        idx = [k for k, o in enumerate(lgq) if o[0].w & touched]
        if idx:
            k = idx[-1]
            old = [j for j, o in enumerate(lgq) if n - o[2] >= emit.MERGE] if emit.MERGE else []
            if old: k = max(k, old[-1])
            k = max(k, len(lgq) - 16)
            t = max(t, lgq[k][1]) + 4; lgq = lgq[k + 1:]; hist.append((Ins('s_nop 0'), 1)); n += 1
        for x in (i.r | (i.w if i.kind != 'vm' else set())):
            if x in M.regland and M.regland[x] > t: t = M.regland[x] + 4
        need = 0; d = 0
        for (p, st) in reversed(hist):
            r = hazard(p, i)
            if r > d: need = max(need, r - d)
            d += st
            if d >= 20: break
        if need: t += 4 * need; hist.append((Ins('s_nop 0'), need)); n += 1
        e = t
        if i.kind == 'mfma': e = max(e, M.mf_free)
        if i.op.startswith('v_pk_'): e = max(e, M.mf_done)
        if i.kind in ('vm', 'ds'): e = max(e, M.valu_end + 8)
        if i.kind == 'vm': e = max(e, M.accept_time(i))
        if i.kind == 'ds': e = max(e, M.ds_free - BURST)
        e = int(e); t = e + cost(i)
        if i.op == 's_barrier': t += 8
        if i.kind == 'mfma': M.mf_free = e + 4 * i.passes; M.mf_done = M.mf_free + 16
        if i.kind == 'valu': M.valu_end = t
        if i.kind == 'vm': M.issue_vm(i, e); when.setdefault(i.tag, e)
        if i.kind == 'ds':
            M.ds_free = max(M.ds_free, e) + DSBUSY.get(i.op, 8); lgq.append((i, max(e + dslat, M.ds_free + dslat - 40), n))
        hist.append((i, 1)); n += 1
        if len(hist) > 30: hist.pop(0)
    return t, when
```

```python
import sys, os
from emit import finalize, interleave
from sched import schedule, simulate, Machine
import copy

KNAME = 'concat_heads__linear_attn_block__linear_kernel_hedgehog__prompt_kernel'

class Cfg:
    stamps = False; lite = False; fine = None; frange = (0, 1); marks = None; leak = None; leak_br = 1; tfix = 0; extra_empty = False; force_global = False; verbose = False
    rotmap = None; rottab = None; tswap = 0; pref_slots = 0
    xfl = ''; wfl = ''; wofl = ''; outfl = 'sc1'; prefl = 'sc1'; tfl = ''
    touch = {"p2": "o"}
    wv_bar = (1, 2, 3, 5, 7); hi2 = 0; q_tm = False
    rel_part = 1600; rel_partA = 1900; rel_nonce = 0
    wo_before = 2; wo_mid = 2; wo_imp = 5; wo_g3 = 1; tab_late = True; q_tight = False; p2_tight = False; wo_early = 2; late0 = 6; pre_q = False; ws_base = 0
    stages = (3, 5, 7, 11, 15); g3_every = 2; o_first = 8
    dslat = 130; merge = 24; burst = 24; hold = 4
    miss = {}; lines = {}
    wv_early = 0; wv_at = 7
    wq_pre = 7
    fake_n2 = False
    wq_at = 0
    align = 4
    flip = False
    delay = None
    help_plain = False
    help = 'xwX'
    merge_q = 2
    poll_first = True; wrest_at = 3; wrest_n = 4
    prost = False
    tailk = 3
    pk0 = False
    A = {}; B = {}
    pre_part = False
    tlb = False
    spre = ''
    hperm = None
    qfold = True; tab_acc = False
    hint = False; force_redo = False
    b_hi = 3000; b_kk = 4000; b_lead = 0
    trials = {}; pick = {}; red16 = False
    thr = 0; thr_tags = ['x11', 'x12', 'x13', 'wv0', 'wv1', 'wv2', 'wv3', 'wv4', 'wv5', 'wv6', 'wq']
    depth = 4; order0 = 'w2 w3 x2 w4 x3 w5 w6 x4 x5'; wkbar = {0: 'wk1 phi', 2: 'wk3', 4: 'wk6'}; t0boost = 2000
    rate = 2.2; cap = 256; lat = 400; fifo = 4; wlines = 90; cold = 900; pmiss = 900; smiss = 1000

WS_XCC, WS_FLAG, WS_PART, WS_O, WS_STAMP = 4096, 8192, 65536, 2 << 20, 16 << 20
WS_BYTES = 32 << 20
L_WK, L_WV, L_MISC, L_WQ, L_WO, L_SCR, L_OT = 98304, 126976, 155648, 0, 32768, 32768, 65536
OOB = 0x40000000
sAX, sAW, sAWO, sBX, sBW, sPHI, sBWO, sOUT, sDBG, sWSP = 4, 6, 8, 10, 12, 14, 16, 18, 20, 22
SX, SW, SWO, SPHI, SWS, SOUT = 24, 28, 32, 36, 40, 44
sBR, sRB, sH, sW, sGID, sSLOT, sT0, sT1, sT2, sXCC = 48, 49, 50, 51, 52, 53, 54, 55, 56, 57
sN0, sN1 = 58, 59
sHI, sE28 = 60, 62
sXO, sWO_ = 64, 72
sSPIN, sFAR = 71, 72
sM0X, sM0W, sSH, sCB, sRQ, sPB = 80, 81, 82, 83, 84, 85
sA, sB_, sC_, sD_ = 86, 87, 88, 89
sOB1, sWOM, sDT, sROT, sXB, sWB, sOBX, sFLG, sT3, sREC, sRECA = 90, 91, 92, 93, 94, 95, 96, 97, 98, 99, 79
sOWN = 74
sM0K = 3
sPX, sPL0, sPL1, sSET, sRECL, sSCR = 4, 5, 6, 7, 8, 9
sWOS, sTAB = sXCC, SX
sFLW = sSLOT
sSGN = sSH
sM1, sM2 = SPHI, SPHI + 2
SPIN = ['s_add_u32 s71, s71, 1', 's_cmp_gt_u32 s71, 0x100000', 's_cbranch_scc1 L_end']
vL = 1
vXD, vWD, vWRq, vWRk, vZ = 2, 6, 7, 8, 9
vXR, vXR2 = 10, 14
vDUM, vT = 18, 19
vPH, vID, vC, vST, vN = 20, 28, 36, 37, 38
vK, vV, vP, vE, vKV, vT2 = 40, 72, 104, 136, 200, 232
vTAG, vL16 = 248, 249
vWO0, vWOD = 250, 252
vWDq, vWDv = 253, 251
vTCH, vTCO, vPRE = None, 254, 255
vS16, vOW, vOR, vOG = vT2 + 3, vT2 + 4, vT2 + 8, vT2 + 9
vOF = list(range(20, 28)) + list(range(32, 36)) + [254, 255]
aX, aWR = 0, 224

def v(r, n=1): return 'v%d' % r if n == 1 else 'v[%d:%d]' % (r, r + n - 1)
def a(r, n=1): return 'a%d' % r if n == 1 else 'a[%d:%d]' % (r, r + n - 1)
def s(r, n=1): return 's%d' % r if n == 1 else 's[%d:%d]' % (r, r + n - 1)
MF = 'v_mfma_f32_32x32x16_bf16'
def mfma(d, x, y, c): return '%s %s, %s, %s, %s' % (MF, v(d, 16), x, y, v(c, 16) if c is not None else '0')

def _trial(a):
    M, L, dslat, kw, x, low, name = a
    kw = dict(kw, **x); kw['lowds'] = {id(L[i]) for i in low}
    M1 = copy.deepcopy(M); R = schedule(M1, L, dslat=dslat, **kw)
    t, when = simulate(copy.deepcopy(M), R, dslat)
    if name.startswith('q'): t += 2 * (when['pst'] - M.t) + abs(when['part'] - (M.t + list(kw['release'].values())[0])) // 4
    return t - M.t

class G:
    def __init__(self, cfg):
        self.cfg = c = cfg; self.npc = 0; self.nthr = 0; self.thr_side = []
        self.M = Machine(c.rate, c.cap, c.lat, fifo=c.fifo, lines={'wk': c.wlines, 'wv': c.wlines, 'wq': c.wlines, 'phi': 13, 'touch': 100, 'pre': 128, 'nonce': 4, 'side': 4, 'pref': 4, 'tab': 4, 'rec': 8},
                         miss={'x0': c.cold, 'nonce': 500, 'part': c.pmiss, 'rec': c.pmiss, 'pre': 600, 'touch': 400, 'pst': c.smiss, 'side': 500, 'ost': 250})
        self.M.miss.update(c.miss); self.M.lines.update(c.lines)
    def stamp(self, k):
        if self.cfg.leak == k: return ['@waitlgkm_all', 's_memrealtime s[%d:%d]' % (sT0, sT1), '@waitlgkm_all', 's_sub_u32 s101, %s, s100' % s(sT0)]
        if not self.cfg.stamps or (self.cfg.lite and k not in (11, 13)): return []
        return ['@waitlgkm_all', 's_memtime s[%d:%d]' % (sT0, sT1), 's_memrealtime s[100:101]', '@waitlgkm_all', 'v_writelane_b32 %s, %s, %d' % (v(vST), s(sT0), k),
                'v_writelane_b32 %s, s100, %d' % (v(vST), 16 + k)]
    def sched(self, L, name, **kw):
        c = self.cfg
        if name in c.pick:
            kw = dict(kw, **c.pick[name])
        elif name in c.trials:
            import random
            from multiprocessing import Pool
            rng = random.Random(1)
            cand = [{}] + [dict(noise=rng.choice((30, 100, 300, 800)), seed=k, hold=rng.choice((4, 8, 12)), soonw=rng.choice((24, 40, 60))) for k in range(c.trials[name])]
            with Pool(8) as p: sc = p.map(_trial, [(self.M, L, c.dslat, kw, x, [i for i, y in enumerate(L) if id(y) in kw.get('lowds', ())], name) for x in cand])
            b = min(range(len(cand)), key=lambda k: sc[k])
            sys.stderr.write('search %s: base %d best %d with %r\n' % (name, sc[0], sc[b], cand[b]))
            kw = dict(kw, **cand[b])
        M0 = copy.deepcopy(self.M)
        R = schedule(self.M, L, verbose=name if c.verbose else False, dslat=c.dslat, **kw)
        if c.verbose: sys.stderr.write('   simulated %d\n' % (simulate(M0, R, c.dslat)[0] - M0.t))
        return self.fine(R, name)
    def glue(self, L): return self.M.run(L)
    def fine(self, L, name):
        if not self.cfg.fine or not name.startswith(self.cfg.fine): return L
        out = []; n = len(L); lo, hi = [int(f * n) for f in self.cfg.frange]; pos = {lo + (k * (hi - lo)) // 3: k for k in range(4)}
        for i, x in enumerate(L + [None]):
            if i in pos: out.append(('s_memtime s[%d:%d]' % (12 + 2 * pos[i], 13 + 2 * pos[i]), 'nowait'))
            if x is not None: out.append(x)
        T = [self.M.times[i] for i in sorted(pos)]
        sys.stderr.write('model %s: %s\n' % (name, [b - a for a, b in zip(T[:-1], T[1:])]))
        if self.cfg.verbose:
            for i, k in pos.items(): sys.stderr.write('  fine %s %d at %d: %s\n' % (name, k, i, L[i]))
        return out

    def offs(self, i):
        L = ['s_lshl_b32 %s, %s, 7' % (s(sD_), s(sROT)), 's_add_u32 %s, %s, %s' % (s(sXO + i), s(sXB), s(sD_)),
             's_mul_i32 %s, %s, %d' % (s(sD_), s(sROT), 64 * 2688), 's_add_u32 %s, %s, %s' % (s(sD_), s(sWB), s(sD_)), 's_add_u32 %s, %s, %d' % (s(sWO_ + i), s(sD_), 4096 - 1024 * (i & 3))]
        if i < 6: L += ['s_add_u32 %s, %s, 1' % (s(sROT), s(sROT)), 's_cmp_eq_u32 %s, 7' % s(sROT), 's_cselect_b32 %s, 0, %s' % (s(sROT), s(sROT))]
        return L
    def touches(self, pos):
        L = []
        for w in self.cfg.touch.get(pos, ''):
            if w == 'p': L.append(('buffer_load_dword %s, %s, s[%d:%d], %s offen %s' % (v(vDUM), v(vPRE), SWS, SWS + 3, s(sOBX), self.cfg.prefl), 'pre'))
            else: L += self.touch(w)
        return L
    def touch(self, what):
        c = self.cfg
        if what == 'o': return [('buffer_load_dword %s, %s, s[%d:%d], 0 offen %s' % (v(vDUM), v(vTCO), SWO, SWO + 3, c.tfl), 'touch')]
        return [('buffer_load_dword %s, %s, s[%d:%d], 0 offen offset:%d %s' % (v(vDUM), v(vTCH), SW, SW + 3, {'q': 0, 'v': 1792}[what], c.tfl), 'touch')]

    def prologue(self):
        c = self.cfg; L = []; A = L.append
        A('s_load_dwordx16 s[4:19], s[0:1], 0')
        A('s_load_dwordx4 s[20:23], s[0:1], 64')
        if c.prost: L.append(('s_memtime s[96:97]', 'nowait'))
        if c.stamps or c.tfix or c.leak: A('s_memrealtime s[100:101]')
        A('s_cmpk_ge_u32 s2, 0x100'); A('s_cbranch_scc1 L_end')
        if c.delay:
            A('s_and_b32 s30, s2, 7'); A('s_lshr_b32 s30, %d, s30' % c.delay[0]); A('s_bitcmp0_b32 s30, 0'); A('s_cbranch_scc1 L_nodelay')
            A('L_delay:'); A('s_memrealtime s[30:31]'); A('@waitlgkm_all'); A('s_sub_u32 s30, s30, s100'); A('s_cmp_lt_u32 s30, %d' % c.delay[1]); A('s_cbranch_scc1 L_delay')
            A('L_nodelay:')
        t0, t1, t2 = vT2, vT2 + 1, vT2 + 2
        A('v_readfirstlane_b32 %s, v0' % s(sW)); A('v_and_b32 %s, 63, v0' % v(vL))
        A('s_lshr_b32 %s, s2, 3' % s(sSLOT))
        if c.hperm:
            w = sum(x << (4 * i) for i, x in enumerate(c.hperm))
            A('s_mov_b32 %s, 0x%x' % (s(sN0), w & 0xffffffff)); A('s_mov_b32 %s, 0x%x' % (s(sN1), w >> 32))
            A('s_lshr_b32 %s, s2, 2' % s(sH)); A('s_and_b32 %s, %s, 60' % (s(sH), s(sH))); A('s_lshr_b64 s[%d:%d], s[%d:%d], %s' % (sN0, sN1, sN0, sN1, s(sH)))
            A('s_and_b32 %s, %s, 15' % (s(sH), s(sN0))); A('s_and_b32 %s, %s, 1' % (s(sT2), s(sSLOT)))
        else: A('s_and_b32 %s, %s, 15' % (s(sH), s(sSLOT))); A('s_lshr_b32 %s, %s, 4' % (s(sT2), s(sSLOT)))
        A('s_bitcmp0_b32 s2, 2'); A('s_cselect_b32 %s, L_AOFF, 0' % s(sB_)); A('s_lshl3_add_u32 %s, %s, %s' % (s(sB_), s(sSLOT), s(sB_)))
        A('v_lshrrev_b32 %s, 5, v0' % v(vT)); A('s_getpc_b64 s[%d:%d]' % (sT0, sT1))
        A('v_add_lshl_u32 %s, %s, %s, 7' % (v(vT), v(vT), s(sB_)))
        L.append(('global_load_dword %s, %s, s[%d:%d]' % (v(vDUM), v(vT), sT0, sT1), 'pref'))
        A('s_and_b32 %s, s2, 3' % s(sRB)); A('s_lshl1_add_u32 %s, %s, %s' % (s(sRB), s(sRB), s(sT2))); A('s_lshr_b32 %s, %s, 6' % (s(sW), s(sW)))
        A('s_mul_i32 %s, %s, 3' % (s(sT2), s(sT2))); A('s_add_u32 %s, %s, %s' % (s(sROT), s(sH), s(sT2)))
        A('s_mul_i32 %s, %s, 37' % (s(sB_), s(sROT))); A('s_lshr_b32 %s, %s, 8' % (s(sB_), s(sB_)))
        A('s_mul_i32 %s, %s, 7' % (s(sB_), s(sB_))); A('s_sub_u32 %s, %s, %s' % (s(sROT), s(sROT), s(sB_)))
        A('s_lshl2_add_u32 %s, %s, %s' % (s(sB_), s(sRB), s(sW))); A('s_mul_i32 %s, %s, 57344' % (s(sXB), s(sB_)))
        o0 = self.offs(0); L += o0[:2]
        A('s_lshl_b32 %s, %s, 12' % (s(sM0X), s(sW))); A('s_mov_b32 m0, %s' % s(sM0X))
        A('v_lshrrev_b32 %s, 3, %s' % (v(t0), v(vL))); A('v_mul_u32_u24 %s, 896, %s' % (v(t0), v(t0)))
        A('v_lshrrev_b32 %s, 4, %s' % (v(t1), v(vL))); A('v_and_b32 %s, 7, %s' % (v(t2), v(vL))); A('v_xor_b32 %s, %s, %s' % (v(t2), v(t1), v(t2)))
        A('v_lshl_add_u32 %s, %s, 4, %s' % (v(vXD), v(t2), v(t0))); A('v_xor_b32 %s, 64, %s' % (v(t2), v(vXD)))
        A('v_add_u32 %s, 6144, %s' % (v(vXD + 1), v(t2))); A('v_add_u32 %s, 12288, %s' % (v(vXD + 2), v(vXD))); A('v_add_u32 %s, 18432, %s' % (v(vXD + 3), v(t2)))
        A('s_mov_b32 %s, 1835008' % s(SX + 2)); A('s_mov_b32 %s, 0x20000' % s(SX + 3))
        if c.prost: L.append(('s_memtime s[98:99]', 'nowait'))
        A('s_bitcmp0_b32 s2, 2')
        A('@waitlgkm_all')
        if c.prost: A('v_writelane_b32 %s, s98, 33' % v(vST)); A('v_writelane_b32 %s, s96, 32' % v(vST))
        if c.leak == 13: L += self.stamp(13); A('s_bitcmp0_b32 s2, 2')
        if c.stamps: A('v_writelane_b32 %s, s100, 0' % v(vST)); L += self.stamp(13); A('s_bitcmp0_b32 s2, 2')
        sel = lambda srd, pa, pb: ['s_cselect_b32 %s, %s, %s' % (s(srd + k), s(pa + k), s(pb + k)) for k in range(2)]
        L += sel(SX, sAX, sBX) + self.dma_x(0)[1:]
        if c.prost == 2: L.append(('s_memtime s[98:99]', 'nowait'))
        L += sel(SW, sAW, sBW) + sel(SWO, sAWO, sBWO); A('s_cselect_b32 %s, 0, 25088' % s(SPHI + 2))
        A('s_sub_u32 %s, %s, 4096' % (s(SW), s(SW))); A('s_subb_u32 %s, %s, 0' % (s(SW + 1), s(SW + 1)))
        A('s_mov_b32 %s, %d' % (s(SW + 2), 1204224 + 4096)); A('s_mov_b32 %s, %s' % (s(SW + 3), s(SX + 3)))
        A('v_lshrrev_b32 %s, 2, %s' % (v(t0), v(vL))); A('v_mul_u32_u24 %s, 2688, %s' % (v(t0), v(t0)))
        A('v_and_b32 %s, 3, %s' % (v(t2), v(vL))); A('v_lshl_add_u32 %s, %s, 4, %s' % (v(vWDq), v(t2), v(t0))); A('v_add_u32 %s, 896, %s' % (v(vWD), v(vWDq)))
        A('s_cmp_eq_u32 %s, 15' % s(sH)); A('s_cselect_b32 %s, 8, 0' % s(sSH))
        A('s_mul_i32 %s, %s, 56' % (s(sC_), s(sH))); A('s_sub_u32 %s, %s, %s' % (s(sC_), s(sC_), s(sSH)))
        A('s_mul_i32 %s, %s, %d' % (s(sD_), s(sW), 16 * 2688)); A('s_add_u32 %s, %s, %s' % (s(sWB), s(sC_), s(sD_)))
        A('s_mul_i32 %s, %s, 7168' % (s(sM0K), s(sW)))
        L += o0[2:5] + self.dma_w(0, 1, L_WK, 'wk0')
        if c.prost == 2: L.append(('s_memtime s[4:5]', 'nowait'))
        L += o0[5:] + self.offs(1) + self.dma_w(1, 1, L_WK, 'wk1', False)
        A('s_bfe_u32 %s, s2, 0x10002' % s(sBR)); A('s_lshl_b32 %s, %s, 10' % (s(sM0W), s(sW)))
        for srd, n in ((SWO, 401408), (SWS, WS_BYTES), (SOUT, 3670016)):
            A('s_mov_b32 %s, %d' % (s(srd + 2), n)); A('s_mov_b32 %s, 0x20000' % s(srd + 3))
        A('s_mov_b32 %s, %s' % (s(SPHI), s(sPHI))); A('s_mov_b32 %s, %s' % (s(SPHI + 1), s(sPHI + 1))); A('s_mov_b32 %s, 0x20000' % s(SPHI + 3))
        A('v_lshlrev_b32 %s, 4, %s' % (v(vL16), v(vL)))
        A('s_cmp_ge_u32 %s, 2' % s(sW)); A('s_cselect_b32 %s, 0x%x, %s' % (s(sA), OOB, s(sM0W))); A('v_add_u32 %s, %s, %s' % (v(t0), s(sA), v(vL16)))
        A('s_mul_i32 %s, %s, 1568' % (s(sT2), s(sH))); A('s_add_u32 m0, %s, %d' % (s(sM0W), L_MISC))
        L.append(('buffer_load_dwordx4 %s, s[%d:%d], %s offen lds' % (v(t0), SPHI, SPHI + 3, s(sT2)), 'phi'))
        L += self.dma_x(1)
        if c.prost == 2: L.append(('s_memtime s[6:7]', 'nowait'))
        if c.ws_base: A('s_add_u32 %s, %s, %d' % (s(sWSP), s(sWSP), c.ws_base)); A('s_addc_u32 %s, %s, 0' % (s(sWSP + 1), s(sWSP + 1)))
        for (srd, p) in ((SWS, sWSP), (SOUT, sOUT)):
            A('s_mov_b32 %s, %s' % (s(srd), s(p))); A('s_mov_b32 %s, %s' % (s(srd + 1), s(p + 1)))
        if c.tlb:
            A('s_lshl_b32 %s, %s, 21' % (s(sA), s(sBR))); A('s_add_u32 %s, %s, %d' % (s(sA), s(sA), WS_O)); A('s_mul_i32 %s, %s, %d' % (s(sB_), s(sRB), 256 * 1792))
            for base, off in ((sWSP, '0x2000'), (sWSP, s(sA)), (sOUT, s(sB_)), (SWO, '0'), (sDBG, '0x80')):
                L.append(('s_load_dword s92, s[%d:%d], %s' % (base, base + 1, off), 'nowait'))
        if 'x' in c.spre:
            A('s_lshl2_add_u32 %s, %s, %s' % (s(sA), s(sSLOT), s(sW))); A('s_lshr_b32 %s, %s, 4' % (s(sB_), s(sA))); A('s_and_b32 %s, s2, 3' % s(sC_))
            A('s_lshl3_add_u32 %s, %s, %s' % (s(sB_), s(sC_), s(sB_))); A('s_lshl_b32 %s, %s, 5' % (s(sB_), s(sB_))); A('s_and_b32 %s, %s, 15' % (s(sA), s(sA)))
            A('s_add_u32 %s, %s, %s' % (s(sA), s(sA), s(sB_))); A('s_add_u32 %s, %s, 16' % (s(sA), s(sA))); A('s_mul_i32 %s, %s, 1792' % (s(sA), s(sA)))
            A('s_add_u32 %s, %s, %s' % (s(sN0), s(SX), s(sA))); A('s_addc_u32 %s, %s, 0' % (s(sN1), s(SX + 1)))
            for j in range(14): L.append(('s_load_dword s92, s[%d:%d], 0x%x' % (sN0, sN1, 128 * j), 'nowait'))
        if 'w' in c.spre:
            A('s_lshl_b32 %s, %s, 4' % (s(sA), s(sRB))); A('s_add_u32 %s, %s, %s' % (s(sA), s(sA), s(sH))); A('s_lshl2_add_u32 %s, %s, %s' % (s(sA), s(sA), s(sW)))
            A('s_min_u32 %s, %s, 447' % (s(sA), s(sA))); A('s_mul_i32 %s, %s, 2688' % (s(sA), s(sA)))
            A('s_add_u32 %s, %s, %s' % (s(sHI), s(SW), s(sA))); A('s_addc_u32 %s, %s, 0' % (s(sHI + 1), s(SW + 1)))
            for j in list(range(14, 21)) + list(range(7)): L.append(('s_load_dword s92, s[%d:%d], 0x%x' % (sHI, sHI + 1, 4096 + 128 * j), 'nowait'))
        A('v_mov_b32 %s, 0' % v(vZ))
        A('s_or_b32 %s, s2, %s' % (s(sT2), s(sW))); A('s_cmp_eq_u32 %s, 0' % s(sT2)); A('s_cbranch_scc1 L_mknonce')
        A('L_nononce:')
        if c.prost == 2: L += ['@waitlgkm_all', 'v_writelane_b32 %s, s98, 33' % v(vST), 'v_writelane_b32 %s, s4, 34' % v(vST), 'v_writelane_b32 %s, s6, 35' % v(vST)]
        self.glue(L)
        return L

    def setup(self):
        c = self.cfg; L = []; A = L.append
        t0, t1, t2 = vT2, vT2 + 1, vT2 + 2
        A('v_add_u32 %s, 1792, %s' % (v(vWDv), v(vWDq)))
        A('s_mov_b32 %s, 0' % s(sSPIN))
        A('s_getreg_b32 %s, hwreg(HW_REG_XCC_ID, 0, 4)' % s(sXCC))
        m, hi, t3, t4 = vT2 + 3, vT2 + 4, vT2 + 5, vT2 + 6
        A('s_mul_i32 %s, %s, 98' % (s(sA), s(sSLOT))); A('s_mul_i32 %s, %s, 25' % (s(sB_), s(sW))); A('s_add_u32 %s, %s, %s' % (s(sA), s(sA), s(sB_)))
        A('v_min_u32 %s, 24, %s' % (v(t0), v(vL))); A('v_add_u32 %s, %s, %s' % (v(t0), s(sA), v(t0))); A('v_min_u32 %s, 3135, %s' % (v(t0), v(t0)))
        A('v_lshlrev_b32 %s, 7, %s' % (v(vTCO), v(t0)))
        A('v_and_b32 %s, 31, %s' % (v(m), v(vL))); A('v_lshrrev_b32 %s, 5, %s' % (v(hi), v(vL)))
        A('v_bfe_u32 %s, %s, 1, 3' % (v(t1), v(m))); A('v_xor_b32 %s, %s, %s' % (v(t1), v(t1), v(hi)))
        A('v_lshl_add_u32 %s, %s, 7, %s' % (v(t2), v(m), s(sM0X)))
        for ks in range(4):
            A('v_xor_b32 %s, %d, %s' % (v(t3), 2 * ks, v(t1))); A('v_lshl_add_u32 %s, %s, 4, %s' % (v(vXR + ks), v(t3), v(t2)))
            A('v_add_u32 %s, 0x10000, %s' % (v(vXR2 + ks), v(vXR + ks)))
        A('v_bfe_u32 %s, %s, 2, 2' % (v(t1), v(vL))); A('v_lshlrev_b32 %s, 6, %s' % (v(t2), v(t1)))
        A('v_lshl_add_u32 %s, %s, 9, %s' % (v(t2), v(hi), v(t2)))
        A('v_bfe_u32 %s, %s, 4, 1' % (v(t3), v(vL))); A('v_and_b32 %s, 3, %s' % (v(t4), v(vL)))
        A('v_lshlrev_b32 %s, 3, %s' % (v(t4), v(t4))); A('v_lshl_add_u32 %s, %s, 5, %s' % (v(t4), v(t3), v(t4)))
        A('v_add3_u32 %s, %s, %s, %s' % (v(vWRq), v(t2), v(t4), s(sSH)))
        A('v_add_u32 %s, %d, %s' % (v(vWRk), L_WK, v(vWRq)))
        A('v_xor_b32 %s, %s, %s' % (v(t3), s(sW), v(t1))); A('v_lshl_add_u32 %s, %s, 6, %s' % (v(t4), v(t3), v(t4)))
        A('v_lshl_add_u32 %s, %s, 8, %s' % (v(t4), v(t1), v(t4))); A('v_lshrrev_b32 %s, 4, %s' % (v(t3), v(vL))); A('v_lshl_add_u32 %s, %s, 11, %s' % (v(t4), v(t3), v(t4)))
        A('v_add_u32 %s, %d, %s' % (v(vWO0), L_WO, v(t4)))
        A('s_and_b32 %s, %s, 1' % (s(sA), s(sW))); A('s_lshl_b32 %s, %s, 4' % (s(sA), s(sA))); A('v_xor_b32 %s, %s, %s' % (v(t4), s(sA), v(m)))
        A('s_bitcmp1_b32 %s, 1' % s(sW)); A('s_cselect_b32 %s, 0x80008000, 0' % s(sSGN))
        A('v_lshrrev_b32 %s, 3, %s' % (v(t0), v(t4))); A('v_and_b32 %s, 3, %s' % (v(t1), v(t4)))
        A('v_lshl_add_u32 %s, %s, 2, %s' % (v(t0), v(t0), v(t1)))
        A('v_lshrrev_b32 %s, 4, %s' % (v(t1), v(t4))); A('v_sub_u32 %s, %s, %s' % (v(t0), v(t0), v(t1)))
        A('v_bfe_u32 %s, %s, 2, 1' % (v(t1), v(m))); A('v_mad_u32_u24 %s, %s, 14, %s' % (v(t0), v(t1), v(t0)))
        A('v_and_b32 %s, 11, %s' % (v(t1), v(m))); A('v_cmp_eq_u32 vcc, 11, %s' % v(t1))
        A('v_mov_b32 %s, %d' % (v(t2), L_MISC + 2048))
        A('v_mul_u32_u24 %s, 224, %s' % (v(t3), v(hi))); A('v_lshl_add_u32 %s, %s, 1, %s' % (v(t3), v(t0), v(t3))); A('v_add_u32 %s, %d, %s' % (v(t3), L_MISC, v(t3)))
        A('v_cndmask_b32_e64 %s, %s, %s, vcc' % (v(vT2 + 12), v(t3), v(t2)))
        A('v_cndmask_b32_e64 %s, %s, 63, vcc' % (v(vT2 + 11), v(t0)))
        A('v_cmp_lt_u32_e64 s[%d:%d], 31, %s' % (sHI, sHI + 1, v(vL)))
        A('v_cmp_eq_u32_e64 s[%d:%d], 28, %s' % (sE28, sE28 + 1, v(m)))
        A('v_cndmask_b32_e64 %s, %s, %s, s[%d:%d]' % (v(vT2 + 13), v(vT2 + 12), v(t2), sHI, sHI + 1))
        return L

    def help(self):
        c = self.cfg; L = []; A = L.append
        t0, t1, t2 = vT2 + 8, vT2 + 9, vT2 + 10
        nh = 10 if c.help_plain else 16
        if c.help_plain:
            A('s_bfm_b32 %s, %s, 0' % (s(sC_), s(sH))); A('s_and_b32 %s, %s, 0xd5ab' % (s(sC_), s(sC_))); A('s_bcnt1_i32_b32 %s, %s' % (s(sC_), s(sC_)))
        else: A('s_mov_b32 %s, %s' % (s(sC_), s(sH)))
        A('s_mul_i32 %s, %s, %d' % (s(sA), s(sRB), nh)); A('s_add_u32 %s, %s, %s' % (s(sA), s(sA), s(sC_))); A('s_lshl2_add_u32 %s, %s, %s' % (s(sA), s(sA), s(sW)))
        def index(n, last):
            n = -(-(last + 1) // (32 * nh))
            A('s_mul_i32 %s, %s, %d' % (s(sB_), s(sA), n)); A('v_min_u32 %s, %d, %s' % (v(t0), n - 1, v(vL))); A('v_add_u32 %s, %s, %s' % (v(t0), s(sB_), v(t0)))
            A('v_min_u32 %s, %d, %s' % (v(t0), last, v(t0)))
        if 'x' in c.help:
            index(14, 7167)
            A('v_mul_u32_u24 %s, 9363, %s' % (v(t1), v(t0))); A('v_lshrrev_b32 %s, 21, %s' % (v(t1), v(t1))); A('v_add_u32 %s, 1, %s' % (v(t1), v(t1)))
            A('v_mul_u32_u24 %s, 28672, %s' % (v(t1), v(t1))); A('v_lshl_add_u32 %s, %s, 7, %s' % (v(t1), v(t0), v(t1)))
            A('global_load_dword %s, %s, s[%d:%d]' % (v(vDUM), v(t1), sBX, sBX + 1))
        if 'w' in c.help:
            index(13, 6271)
            A('v_mul_u32_u24 %s, 9363, %s' % (v(t1), v(t0))); A('v_lshrrev_b32 %s, 16, %s' % (v(t1), v(t1))); A('v_add_u32 %s, 1, %s' % (v(t1), v(t1))); A('v_lshrrev_b32 %s, 1, %s' % (v(t1), v(t1)))
            A('v_mul_u32_u24 %s, 896, %s' % (v(t1), v(t1))); A('v_lshl_add_u32 %s, %s, 7, %s' % (v(t1), v(t0), v(t1)))
            A('global_load_dword %s, %s, s[%d:%d]' % (v(vDUM), v(t1), sBW, sBW + 1))
        A('s_and_b32 %s, %s, 1' % (s(sB_), s(sRB))); A('s_mul_i32 %s, %s, %d' % (s(sB_), s(sB_), nh)); A('s_add_u32 %s, %s, %s' % (s(sC_), s(sC_), s(sB_))); A('s_lshl2_add_u32 %s, %s, %s' % (s(sC_), s(sC_), s(sW)))
        def index2(n, last):
            n = -(-(last + 1) // (8 * nh))
            A('s_mul_i32 %s, %s, %d' % (s(sB_), s(sC_), n)); A('v_min_u32 %s, %d, %s' % (v(t0), n - 1, v(vL))); A('v_add_u32 %s, %s, %s' % (v(t0), s(sB_), v(t0)))
            A('v_min_u32 %s, %d, %s' % (v(t0), last, v(t0)))
        if 'X' in c.help:
            index2(14, 1791)
            A('s_and_b32 %s, s2, 3' % s(sB_)); A('s_mul_i32 %s, %s, 1792' % (s(sB_), s(sB_))); A('v_add_u32 %s, %s, %s' % (v(t0), s(sB_), v(t0)))
            A('v_mul_u32_u24 %s, 9363, %s' % (v(t1), v(t0))); A('v_lshrrev_b32 %s, 21, %s' % (v(t1), v(t1))); A('v_add_u32 %s, 1, %s' % (v(t1), v(t1)))
            A('v_mul_u32_u24 %s, 28672, %s' % (v(t1), v(t1))); A('v_lshl_add_u32 %s, %s, 7, %s' % (v(t1), v(t0), v(t1)))
            A('global_load_dword %s, %s, s[%d:%d]' % (v(vDUM), v(t1), sAX, sAX + 1))
        if 'W' in c.help:
            index(13, 6271)
            A('v_mul_u32_u24 %s, 9363, %s' % (v(t1), v(t0))); A('v_lshrrev_b32 %s, 16, %s' % (v(t1), v(t1))); A('v_add_u32 %s, 1, %s' % (v(t1), v(t1))); A('v_lshrrev_b32 %s, 1, %s' % (v(t1), v(t1)))
            A('v_mul_u32_u24 %s, 896, %s' % (v(t1), v(t1))); A('v_lshl_add_u32 %s, %s, 7, %s' % (v(t1), v(t0), v(t1)))
            A('global_load_dword %s, %s, s[%d:%d]' % (v(vDUM), v(t1), sAW, sAW + 1))
        if 'p' in c.help:
            index(32, 16383)
            A('v_lshlrev_b32 %s, 7, %s' % (v(t1), v(t0))); A('v_add_u32 %s, %d, %s' % (v(t1), WS_O + (2 << 20), v(t1)))
            A('global_load_dword %s, %s, s[%d:%d]' % (v(vDUM), v(t1), sWSP, sWSP + 1))
        if 'O' in c.help:
            index(7, 3135)
            A('v_lshlrev_b32 %s, 7, %s' % (v(t1), v(t0)))
            A('global_load_dword %s, %s, s[%d:%d]' % (v(vDUM), v(t1), sAWO, sAWO + 1))
        if 'o' in c.help:
            index(7, 3135)
            A('v_lshlrev_b32 %s, 7, %s' % (v(t1), v(t0)))
            A('global_load_dword %s, %s, s[%d:%d]' % (v(vDUM), v(t1), sBWO, sBWO + 1))
        return L
    def mknonce(self):
        L = ['L_mknonce:', '@assume_idle']; A = L.append
        A('s_load_dwordx2 s[%d:%d], s[%d:%d], 0' % (sT0, sT1, sWSP, sWSP + 1))
        A('@waitlgkm_all')
        A('s_add_u32 %s, %s, 0x9e3679b8' % (s(sT0), s(sT0))); A('s_add_u32 %s, %s, 0x85eaca6a' % (s(sT1), s(sT1)))
        for r in (sT0, sT1):
            A('s_or_b32 %s, %s, 0x00010001' % (s(r), s(r))); A('s_and_b32 %s, %s, 0xbfffbfff' % (s(r), s(r)))
        A('v_mov_b32 %s, %s' % (v(vN), s(sT0))); A('v_mov_b32 %s, %s' % (v(vN + 1), s(sT1)))
        A('s_mov_b64 exec, 1')
        A('global_store_dwordx2 %s, %s, s[%d:%d] sc1' % (v(vZ), v(vN, 2), sDBG, sDBG + 1))
        A('global_store_dwordx2 %s, %s, s[%d:%d] sc1' % (v(vZ), v(vN, 2), sWSP, sWSP + 1))
        A('s_mov_b64 exec, -1'); A('s_branch L_nononce')
        return L

    def setup2(self, br):
        m, hi, fp, ofs, ofs2 = vT2 + 3, vT2 + 4, vT2 + 11, vT2 + 12, vT2 + 13
        P0 = []
        for t in range(2):
            for j in range(8):
                d = 16 * t + 8 * (j >> 2) + (j & 3)
                P0.append('ds_read_u16 %s, %s offset:%d' % (v(vP + 8 * t + j), v(ofs2 if (t == 1 and j >= 4) else ofs), d * 56))
        def selector(dst, tgt):
            R = []
            x, y, z = vT2 + 8, vT2 + 9, vT2 + 10
            R.append('v_lshrrev_b32 %s, 3, %s' % (v(x), v(tgt))); R.append('v_bfe_u32 %s, %s, 1, 1' % (v(y), v(tgt)))
            R.append('v_lshl_add_u32 %s, %s, 1, %s' % (v(x), v(x), v(y)))
            R.append('v_and_b32 %s, 1, %s' % (v(y), v(tgt))); R.append('v_lshlrev_b32 %s, 4, %s' % (v(y), v(y)))
            R.append('v_mov_b32 %s, 0x3f80' % v(z)); R.append('v_lshlrev_b32 %s, %s, %s' % (v(z), v(y), v(z)))
            R.append('v_bfe_u32 %s, %s, 2, 1' % (v(y), v(tgt))); R.append('v_cmp_eq_u32 vcc, %s, %s' % (v(y), v(hi)))
            R.append('v_cndmask_b32_e64 %s, 15, %s, vcc' % (v(x), v(x)))
            mk = [sN0, sHI + 0, sPB - 1, sN0]
            for i in range(8):
                r = (sN0, sT0)[i & 1]
                R.append('v_cmp_eq_u32_e64 s[%d:%d], %d, %s' % (r, r + 1, i, v(x)))
                R.append('v_cndmask_b32_e64 %s, 0, %s, s[%d:%d]' % (v(dst + i), v(z), r, r + 1))
            return R
        P1 = selector(vID, m) if br == 'B' else selector(vPH, fp)
        P2 = []
        P2 += ['v_mov_b32 %s, 0x3fb8aa3b' % v(vC),
               'v_bfe_u32 %s, %s, 3, 2' % (v(vT2 + 8), v(vL)), 'v_and_b32 %s, 7, %s' % (v(vPRE), v(vL)), 'v_lshlrev_b32 %s, 7, %s' % (v(vPRE), v(vPRE)), 'v_lshl_add_u32 %s, %s, 14, %s' % (v(vPRE), v(vT2 + 8), v(vPRE)),
               's_lshl_b32 %s, %s, 3' % (s(sGID), s(sBR)), 's_add_u32 %s, %s, %s' % (s(sGID), s(sGID), s(sRB)),
               's_and_b32 %s, %s, 3' % (s(sCB), s(sH)), 's_lshr_b32 %s, %s, 2' % (s(sRQ), s(sH)),
               's_lshl_b32 %s, %s, 4' % (s(sT3), s(sGID)), 's_add_u32 %s, %s, %s' % (s(sPB), s(sT3), s(sH)),
               's_lshl2_add_u32 %s, %s, %s' % (s(sT3), s(sGID), s(sW)), 's_lshl_b32 %s, %s, 6' % (s(sT3), s(sT3)), 's_add_u32 %s, %s, %s' % (s(sT3), s(sT3), s(sH)), 's_lshl_b32 %s, %s, 10' % (s(sOBX), s(sT3)),
               's_add_u32 %s, %s, %d' % (s(sOBX), s(sOBX), WS_O),
               's_and_b32 %s, %s, %d' % (s(sOB1), s(sH), self.cfg.tswap), 's_lshl_b32 %s, %s, 15' % (s(sOB1), s(sOB1)), 's_add_u32 %s, %s, %s' % (s(sOB1), s(sOB1), s(sOBX)),
               's_lshl_b32 %s, %s, 9' % (s(sT3), s(sGID)), 's_add_u32 %s, %s, %d' % (s(sT3), s(sT3), WS_FLAG),
               's_lshl_b32 %s, %s, 7' % (s(sFLW), s(sW)), 's_add_u32 %s, %s, %s' % (s(sFLW), s(sFLW), s(sT3)),
               's_lshl_b32 %s, %s, 7' % (s(sFLG), s(sRQ)), 's_add_u32 %s, %s, %s' % (s(sFLG), s(sFLG), s(sT3))]
        A = P2.append; t0, t1, t2 = vT2 + 8, vT2 + 9, vT2 + 10
        A('v_lshrrev_b32 %s, 4, %s' % (v(t0), v(vL))); A('v_bfe_u32 %s, %s, 2, 2' % (v(t1), v(vL))); A('v_xor_b32 %s, %s, %s' % (v(t1), v(t1), v(t0)))
        A('v_mul_u32_u24 %s, 896, %s' % (v(t0), v(t0))); A('v_lshl_add_u32 %s, %s, 6, %s' % (v(t0), v(t1), v(t0)))
        A('v_and_b32 %s, 3, %s' % (v(t2), v(vL))); A('v_lshl_add_u32 %s, %s, 4, %s' % (v(t0), v(t2), v(t0)))
        A('s_cmp_eq_u32 %s, 3' % s(sCB)); A('s_cselect_b32 %s, 1, 3' % s(sT3))
        A('v_cmp_lt_u32 vcc, %s, %s' % (s(sT3), v(t1))); A('v_mov_b32 %s, 0x%x' % (v(t2), OOB))
        A('v_cndmask_b32_e64 %s, %s, %s, vcc' % (v(vWOD), v(t0), v(t2)))
        A('s_lshl_b32 %s, %s, 3' % (s(sRECA), s(sPB))); A('s_add_u32 %s, %s, %d' % (s(sRECA), s(sRECA), WS_XCC))
        A('v_cmp_eq_u32 vcc, 0, %s' % v(vL)); A('v_and_b32 %s, 1, %s' % (v(t0), v(vL))); A('v_and_b32 %s, 2, %s' % (v(t1), v(vL)))
        A('v_cndmask_b32_e64 %s, %s, 0, vcc' % (v(vT), v(t2)))
        A('v_cmp_ne_u32_e64 s[%d:%d], 0, %s' % (sM1, sM1 + 1, v(t0))); A('v_cmp_ne_u32_e64 s[%d:%d], 0, %s' % (sM2, sM2 + 1, v(t1)))
        A('s_lshl1_add_u32 %s, %s, 1' % (s(sSET), s(sBR))); A('s_and_b32 %s, %s, %s' % (s(sSET), s(sSET), s(sW)))
        A('s_lshl_b32 %s, %s, 4' % (s(sT3), s(sBR))); A('s_add_u32 %s, %s, %s' % (s(sT3), s(sT3), s(sH))); A('s_lshl2_add_u32 %s, %s, %s' % (s(sT3), s(sT3), s(sSET)))
        A('s_lshl_b32 %s, %s, 13' % (s(sT3), s(sT3))); A('s_add_u32 %s, %s, %d' % (s(sPL0), s(sT3), WS_PART)); A('s_add_u32 %s, %s, 4096' % (s(sPL1), s(sPL0)))
        A('s_lshl_b32 %s, %s, 10' % (s(sT3), s(sRB))); A('s_add_u32 %s, %s, %s' % (s(sPX), s(sPL0), s(sT3))); A('s_lshl_b32 %s, %s, 10' % (s(sSET), s(sSET)))
        A('s_and_b32 %s, %s, 0xffffff80' % (s(sRECL), s(sRECA))); A('s_add_u32 %s, %s, %d' % (s(sSCR), s(sM0X), L_SCR))
        return P0, P1, P2

    def dma_x(self, i):
        L = ['s_add_u32 m0, %s, %d' % (s(sM0X), (i % 6) * 16384)]
        if i >= 7: L.append('s_add_u32 %s, %s, 28672' % (s(sXO + i - 7), s(sXO + i - 7)))
        for j in range(2 if self.cfg.fake_n2 else 4):
            L.append(('buffer_load_dwordx4 %s, s[%d:%d], %s offen offset:%d %s lds' % (v(vXD + j), SX, SX + 3, s(sXO + i % 7), 1024 * j, self.cfg.xfl), 'x%d' % i))
        return L
    def dma_w(self, i, part, base, tag, m0=True):
        L = ['s_add_u32 m0, %s, %d' % (s(sM0K), base + (i & 4) * 1024)] if m0 else []
        if self.cfg.fake_n2: L.append(('buffer_load_dwordx4 %s, s[%d:%d], %s offen offset:%d %s lds' % (v((vKV + 30, vV + 30, vKV + 31)[part]), SW, SW + 3, s(sWO_ + i), 1024 * (i & 3), self.cfg.wfl), tag))
        return L + [('buffer_load_dwordx4 %s, s[%d:%d], %s offen offset:%d %s lds' % (v((vWDq, vWD, vWDv)[part]), SW, SW + 3, s(sWO_ + i), 1024 * (i & 3), self.cfg.wfl), tag)]
    def xfrag(self, i, ks, tile): return aX + ((i * 4 + ks) * 2 + tile) * 4
    def wread(self, slot, basev, off):
        r = aWR + 4 * (slot % 8)
        return ['ds_read_b64_tr_b16 %s, %s offset:%d' % (a(r + 2 * u, 2), v(basev), off + 256 * u) for u in range(2)]

    def xiter(self, i, extra=()):
        R = []; A = R.append
        ch, tile, sl = i % 7, i // 7, i % 6
        wk = ' ' + self.cfg.wkbar[i] if i in self.cfg.wkbar else ''
        A('@waitvm x%d' % i + wk)
        if wk: A('s_barrier')
        if i == 0: R += self.stamp(1)
        for ks in range(4):
            R += self.wread(4 * i + ks, vWRk, ch * 1024 + ks * 7168)
            R.append(('ds_read_b128 %s, %s offset:%d' % (a(self.xfrag(ch, ks, tile), 4), v((vXR2 if sl >= 4 else vXR) + ks), (sl & 3) * 16384), 'xr%d' % i))
        D = self.cfg.depth
        if i + D < 14:
            if i + D >= 6: A('@waitlgkm xr%d' % (i + D - 6))
            R += self.dma_x(i + D)
        R += self.touches(i)
        R += extra
        for ks in range(4):
            R.append((mfma(vK + 16 * tile, a(aWR + 4 * ((4 * i + ks) % 8), 4), a(self.xfrag(ch, ks, tile), 4), None if (ch == 0 and ks == 0) else vK + 16 * tile), 'kk'))
        return R
    def part1(self, br):
        B = br == 'B'
        P = self.setup2(br)
        R = []
        for i in range(2, 7): R += self.offs(i)
        W = lambda i: self.dma_w(i, 1, L_WK, 'wk%d' % i)
        su = self.setup() + P[2]
        R = su + self.touches('a') + R if 'a' in self.cfg.touch else R
        X = lambda i: self.dma_x(i) if i < self.cfg.depth else []
        late = {}
        for tok in self.cfg.order0.split():
            if '@' in tok:
                tok, at = tok.split('@'); late.setdefault(int(at), []).extend(W(int(tok[1])))
            else: R += W(int(tok[1])) if tok[0] == 'w' else X(int(tok[1]))
        R += ([] if 'a' in self.cfg.touch else su) + P[1]
        pk = []
        for u in range(8): pk += ['v_lshl_or_b32 %s, %s, 16, %s' % (v(vPH + u), v(vP + 2 * u + 1), v(vP + 2 * u)), 'v_xor_b32 %s, %s, %s' % (v(vPH + u), s(sSGN), v(vPH + u))]
        c = self.cfg
        for part, n, at, base, tg in ((2, c.wv_early, c.wv_at, L_WV, 'wv'),):
            for k in range(n): late.setdefault(at - c.depth, []).extend(self.dma_w(k, part, base, '%s%d' % (tg, k), k in (0, 4)))
        for i in range(7): R += self.xiter(i, late.get(i, []) + (P[0] + pk if (i == 1 and B) else []))
        return self.sched(R, 'part1')

    def gemm(self, acc, basev, off, transposed, first_slot, hooks=None, tiles=(0, 1), lead=False, ks=range(28)):
        L = []; hooks = hooks or {}
        for k in ks:
            L += hooks.get(k, [])
            w = a(aWR + 4 * ((first_slot + k) % 8), 4)
            L += self.wread(first_slot + k, basev, off + (k >> 2) * 1024 + (k & 3) * 7168)
            for tile in tiles:
                x = a(self.xfrag(k // 4, k % 4, tile), 4)
                L.append((mfma(acc + 16 * tile, w if transposed else x, x if transposed else w, None if k == 0 else acc + 16 * tile), 'lead' if (lead and tile == 0) else None))
        return L

    def pack(self, r, n=8): return ['v_cvt_pk_bf16_f32 %s, %s, %s' % (v(r + u), v(r + 2 * u), v(r + 2 * u + 1)) for u in range(n)]
    def zero_hi_pads(self, r): return ['v_cndmask_b32_e64 %s, %s, 0, s[%d:%d]' % (v(r + u), v(r + u), sHI, sHI + 1) for u in (6, 7)]

    def softmax(self, p, ep, en, tmp, pk, keep=None):
        L = []; A = L.append
        Z, T, S1, S2 = tmp, tmp + 2, tmp + 4, tmp + 6
        VAL = [0, 1, 2, 3, 4, 5, 6, 8, 9, 10, 11, 12, 13, 14]
        if pk:
            for r in (ep + 7, ep + 15, en + 7, en + 15): A('v_mov_b32 %s, 0' % v(r))
        for (d, sg) in ((Z, ''), (T, '-')):
            A('v_max3_f32 %s, %s%s, %s%s, %s%s' % (v(d), sg, v(p), sg, v(p + 1), sg, v(p + 2)))
            A('v_max3_f32 %s, %s%s, %s%s, %s%s' % (v(d + 1), sg, v(p + 8), sg, v(p + 9), sg, v(p + 10)))
            for (x, y) in ((3, 4), (5, 6)): A('v_max3_f32 %s, %s, %s%s, %s%s' % (v(d), v(d), sg, v(p + x), sg, v(p + y)))
            for (x, y) in ((11, 12), (13, 14)): A('v_max3_f32 %s, %s, %s%s, %s%s' % (v(d + 1), v(d + 1), sg, v(p + x), sg, v(p + y)))
            A('v_max_f32 %s, %s, %s' % (v(d), v(d), v(d + 1)))
        A('v_permlane32_swap_b32 %s, %s' % (v(Z), v(T))); A('v_max_f32 %s, %s, %s' % (v(Z), v(Z), v(T)))
        A('v_mul_f32 %s, %s, %s' % (v(Z), v(vC), v(Z))); A('v_mov_b32 %s, %s' % (v(T), v(Z)))
        A('v_permlane32_swap_b32 %s, %s' % (v(Z), v(T)))
        for (e, z, ng) in ((ep, Z, 0), (en, T, 1)):
            for u in VAL:
                if pk and u not in (6, 14):
                    if u & 1 == 0: A('v_pk_fma_f32 %s, %s, %s, %s op_sel_hi:[1,0,0] neg_lo:[%d,0,1] neg_hi:[%d,0,1]' % (v(e + u, 2), v(p + u, 2), v(vC, 2), v(z, 2), ng, ng))
                else: A('v_fma_f32 %s, %s%s, %s, -%s' % (v(e + u), '-' if ng else '', v(p + u), v(vC), v(z)))
                A('v_exp_f32 %s, %s' % (v(e + u), v(e + u)))
        for (e, S, z) in ((ep, S1, Z), (en, S2, T)):
            if pk:
                A('v_pk_add_f32 %s, %s, %s' % (v(S, 2), v(e, 2), v(e + 2, 2)))
                for u in (4, 6, 8, 10, 12, 14): A('v_pk_add_f32 %s, %s, %s' % (v(S, 2), v(S, 2), v(e + u, 2)))
            else:
                A('v_add_f32 %s, %s, %s' % (v(S), v(e), v(e + 1))); A('v_add_f32 %s, %s, %s' % (v(S + 1), v(e + 8), v(e + 9)))
                for u in range(2, 7):
                    A('v_add_f32 %s, %s, %s' % (v(S), v(S), v(e + u))); A('v_add_f32 %s, %s, %s' % (v(S + 1), v(S + 1), v(e + 8 + u)))
            A('v_add_f32 %s, %s, %s' % (v(S), v(S), v(S + 1)))
        A('v_permlane32_swap_b32 %s, %s' % (v(S1), v(S2))); A('v_add_f32 %s, %s, %s' % (v(S1), v(S1), v(S2)))
        if keep is None: A('v_rcp_f32 %s, %s' % (v(S1), v(S1)))
        A('v_mov_b32 %s, %s' % (v(S2), v(S1))); A('v_permlane32_swap_b32 %s, %s' % (v(S1), v(S2)))
        if keep is not None:
            A('v_rcp_f32 %s, %s' % (v(S2), v(S2))); A('v_mul_f32 %s, 0x358637bd, %s' % (v(keep), v(S1))); A('v_mul_f32 %s, %s, %s' % (v(S2), v(S1), v(S2)))
            L += self.pack(ep)
        for (e, z) in ((ep, S1), (en, S2))[keep is not None:]:
            for u in range(8):
                if pk: A('v_pk_mul_f32 %s, %s, %s op_sel_hi:[1,0]' % (v(e + 2 * u, 2), v(e + 2 * u, 2), v(z, 2)))
                else:
                    for k in range(1 if u in (3, 7) else 2): A('v_mul_f32 %s, %s, %s' % (v(e + 2 * u + k), v(e + 2 * u + k), v(z)))
                A('v_cvt_pk_bf16_f32 %s, %s, %s' % (v(e + u), v(e + 2 * u), '0' if (u in (3, 7) and not pk) else v(e + 2 * u + 1)))
        return L

    def elu1(self, p, e, pads, pk):
        L = []; A = L.append
        for u in range(0, 16, 2):
            n = 1 if (pads and u in (6, 14)) else 2
            if pk and n == 2: A('v_pk_mul_f32 %s, %s, %s op_sel_hi:[1,0]' % (v(e + u, 2), v(p + u, 2), v(vC, 2)))
            for k in range(n):
                if not (pk and n == 2): A('v_mul_f32 %s, %s, %s' % (v(e + u + k), v(vC), v(p + u + k)))
                A('v_exp_f32_e64 %s, %s clamp' % (v(e + u + k), v(e + u + k)))
                A('v_max_f32 %s, 0x358637bd, %s' % (v(p + u + k), v(p + u + k)))
                if not (pk and n == 2): A('v_add_f32 %s, %s, %s' % (v(e + u + k), v(e + u + k), v(p + u + k)))
            if pk and n == 2: A('v_pk_add_f32 %s, %s, %s' % (v(e + u, 2), v(e + u, 2), v(p + u, 2)))
            A('v_cvt_pk_bf16_f32 %s, %s, %s' % (v(e + u // 2), v(e + u), v(e + u + 1) if n == 2 else '0'))
        return L

    def nonce_load(self): return [('global_load_dwordx2 %s, %s, s[%d:%d] sc1' % (v(vN, 2), v(vZ), sDBG, sDBG + 1), 'nonce')]
    def use_nonce(self, br):
        L = []; A = L.append
        t0, t1 = vXR2, vXR2 + 1
        A('v_readfirstlane_b32 %s, %s' % (s(sN0), v(vN))); A('v_readfirstlane_b32 %s, %s' % (s(sN1), v(vN + 1)))
        A('v_cndmask_b32_e64 %s, %s, %s, s[%d:%d]' % (v(t0), v(vN), v(vN + 1), sM2, sM2 + 1))
        A('v_lshlrev_b32 %s, 16, %s' % (v(t1), v(t0))); A('v_and_b32 %s, 0xffff0000, %s' % (v(t0), v(t0)))
        A('v_cndmask_b32_e64 %s, %s, %s, s[%d:%d]' % (v(vTAG), v(t1), v(t0), sM1, sM1 + 1))
        if br == 'A': A('v_and_b32 %s, %s, %s' % (v(vTAG), s(sXB), v(vTAG)))
        A('s_and_b32 %s, %s, 0xfffffff0' % (s(sROT), s(sN1))); A('s_or_b32 %s, %s, %s' % (s(sREC), s(sXCC), s(sROT)))
        A('v_mov_b32 %s, %s' % (v(vN + 1), s(sREC)))
        L.append(('buffer_store_dwordx2 %s, %s, s[%d:%d], %s offen sc1' % (v(vN, 2), v(vT), SWS, SWS + 3, s(sRECA)), 'side'))
        return L
    def nonce_chk(self, br):
        return ['L_nonce_chk%s:' % br, 's_min_u32 %s, %s, %s' % (s(sT2), s(sN0), s(sN1)), 's_cmp_eq_u32 %s, 0' % s(sT2), 's_cbranch_scc1 L_nonce_retry%s' % br]
    def nonce_retry(self, br):
        return ['L_nonce_retry%s:' % br, '@assume_idle', 's_sleep 1'] + SPIN + self.nonce_load() + self.use_nonce(br) + ['s_branch L_nonce_chk%s' % br]
    def side_loads(self):
        c = self.cfg
        L = []
        L += self.touches('p2')
        if not any('p' in x for x in c.touch.values()): L.append(('buffer_load_dword %s, %s, s[%d:%d], %s offen %s' % (v(vDUM), v(vPRE), SWS, SWS + 3, s(sOBX), c.prefl), 'pre'))
        L += [('buffer_load_dword %s, %s, s[%d:%d], %s offen %s' % (v(vDUM), v(vZ), SWS, SWS + 3, s(sFLW), c.prefl), 'side')]
        if c.pre_part: L += [('buffer_load_dword %s, %s, s[%d:%d], %s offen sc1' % (v(vDUM), v(vL16), SWS, SWS + 3, s(sPX)), 'touch8')]
        return L

    def middle(self, br):
        c = self.cfg; B = br == 'B'; NT = 2 if B else 1
        L = []; A = L.append
        R = []; A = R.append
        if not B:
            A('s_cmp_ge_u32 %s, 2' % s(sW)); A('s_cselect_b32 %s, 0, -1' % s(sXB))
        tn = lambda tile, sg: (vP if sg == 0 else vK) + 16 * tile
        def featk(tile):
            X = self.pack(vK + 16 * tile) + self.zero_hi_pads(vK + 16 * tile)
            for t in range(2):
                k4 = v(vK + 16 * tile + 4 * t, 4); w4 = v(vPH + 4 * t, 4)
                X.append((mfma(vP + 16 * tile, w4 if B else k4, k4 if B else w4, None if t == 0 else vP + 16 * tile), 'hi'))
            X += self.softmax(vP + 16 * tile, vE + 32 * tile, vE + 32 * tile + 16, vT2 + 8 * tile, c.pk0 and tile == 0) if B else self.elu1(vP + 16 * tile, vE + 32 * tile, False, c.pk0 and tile == 0)
            if B:
                for sg in range(2):
                    for t in range(2):
                        X.append((mfma(tn(tile, sg), v(vE + 32 * tile + 16 * sg + 4 * t, 4), v(vID + 4 * t, 4), None if t == 0 else tn(tile, sg)), 'hi2' if tile else 'hi3'))
                    X += self.pack(tn(tile, sg))
            return X
        wv = []
        for k in range(c.wv_early, 7): wv += self.dma_w(k, 2, L_WV, 'wv%d' % k, k in (c.wv_early, 4))
        R += featk(0)
        for i in range(7, 14):
            R += self.xiter(i, wv if i == max(7, 13 - c.depth) else ())
            if i - 7 < c.wv_early:
                R += self.gemm(vV, vWRk, L_WV - L_WK, False, 4, {0: ['@waitvm wv%d' % (c.wv_early - 1), 's_barrier']}, ks=range(4 * (i - 7), 4 * (i - 6)))
        if c.stamps and not c.lite: R.append(('s_memtime s[%d:%d]' % (SX + 2, SX + 3), 'nowait'))
        R += featk(1)
        wq = self.nonce_load()
        for k in range(c.wq_pre): wq += self.dma_w(k, 0, L_WQ, 'wq%d' % k, k in (0, 4))
        wq += ([] if c.pre_q else self.side_loads()) + self.use_nonce(br)
        hooks = {}; k0 = c.wv_early
        for k1 in c.wv_bar:
            hooks[4 * k0] = (['@waitlgkm xr13'] if k0 == c.wv_early else []) + ['@waitvm wv%d' % (k1 - 1), 's_barrier'] + (wq if k0 == max(c.wq_at, c.wv_early) else []); k0 = k1
        R += self.gemm(vV, vWRk, L_WV - L_WK, False, 0, hooks, lead=True, ks=range(4 * c.wv_early, 28))
        A('v_mov_b32 %s, 0x3f803f80' % v(vXR2 + 3))
        for tile in range(2):
            R += self.pack(vV + 16 * tile)
            for u in range(8): A('v_cndmask_b32_e64 %s, %s, %s, s[%d:%d]' % (v(vV + 16 * tile + u), v(vV + 16 * tile + u), v(vXR2 + 3), sE28, sE28 + 1))
        for tile in range(2):
            for sg in reversed(range(NT)):
                src = tn(tile, sg) if B else vE + 32 * tile
                for t in range(2):
                    A(mfma(vKV + 16 * sg, v(src + 4 * t, 4), v(vV + 16 * tile + 4 * t, 4), None if (tile == 0 and t == 0) else vKV + 16 * sg))
        t0, t1, t2 = vXR, vXR + 1, vXR2 + 2
        A('v_add_u32 %s, %s, %s' % (v(t0), s(sSCR), v(vL16)))
        r16 = B and c.red16
        if r16:
            for d in (2, 3, 1): R += self.pack(vKV + 8 * d, 4) + ['ds_write_b128 %s, %s offset:%d' % (v(t0), v(vKV + 8 * d, 4), 1024 * d)]
        for q in (() if r16 else (4, 5, 6, 7, 2, 3) if B else range(4)): A('ds_write_b128 %s, %s offset:%d' % (v(t0), v(vKV + 4 * q, 4), 16384 * (q >> 2) + 1024 * (q & 3)))
        for d in range(1, 4): A('v_xor_b32 %s, %d, %s' % (v(t0 + d), 4096 * d, v(t0)))
        if not B:
            A('s_cmp_ge_u32 %s, 2' % s(sW)); A('s_cselect_b32 %s, 0x%x, 0' % (s(sA), OOB)); A('v_add_u32 %s, %s, %s' % (v(t2), s(sA), v(vL16)))
        A('v_mov_b32 %s, 0xffff' % v(vXD))
        if c.thr: L += ['s_lshr_b32 %s, 0x2a54, %s' % (s(sT2), s(sH)), 's_bitcmp0_b32 %s, 0' % s(sT2), 's_cselect_b64 vcc, -1, 0']
        L += self.throttle(self.sched(R, 'phase2' + br, boost={'hi': c.b_hi, 'kk': c.b_kk, 'lead': c.b_lead, 'hi2': c.hi2, 'hi3': c.hi2 + c.t0boost}, tight=c.p2_tight), br)
        if c.stamps and not c.lite: L += ['@waitlgkm_all', 'v_writelane_b32 %s, %s, 2' % (v(vST), s(SX + 2))]
        L += self.stamp(3)
        g0 = len(L)
        L += ['s_getpc_b64 s[%d:%d]' % (sTAB, sTAB + 1), 'L_pc%s:' % br, 's_add_u32 %s, %s, L_tab - L_pc%s' % (s(sTAB), s(sTAB), br), 's_addc_u32 %s, %s, 0' % (s(sTAB + 1), s(sTAB + 1))]
        L += self.nonce_chk(br)
        mg = c.merge_q
        X = []; A = X.append
        A('@waitlgkm_all')
        if mg: A('@waitvm wq%d' % (mg - 1))
        A('s_barrier')
        L += X; self.glue(L[g0:]); X = []; A = X.append
        for d in range(1, 4):
            if r16:
                X.append(('ds_read_b128 %s, %s offset:%d' % (v(vV + 8 * d, 4), v(t0 + d), 1024 * d), 'exr'))
                X.append((mfma(vKV, v(vID, 4), v(vV + 8 * d, 4), vKV), 'exm'))
        for d in (() if r16 else range(1, 4)):
            for hf in range(2): X.append(('ds_read_b128 %s, %s offset:%d' % (v(vV + 8 * d + 4 * hf, 4), v(t0 + d), (16384 * (d >> 1) if B else 0) + 2048 * (d & 1) + 1024 * hf), 'exr'))
        for d in (() if r16 else range(1, 4)):
            if mg:
                for u in range(7): A('v_add_f32 %s, %s, %s' % (v(vKV + u), v(vKV + u), v(vV + 8 * d + u)))
            else:
                for u in range(0, 8, 2): A('v_pk_add_f32 %s, %s, %s' % (v(vKV + u, 2), v(vKV + u, 2), v(vV + 8 * d + u, 2)))
        X += self.pack(vKV, 4)
        A('v_bfi_b32 %s, %s, %s, %s' % (v(vKV + 3), v(vXD), v(vKV + 3), v(vTAG)))
        X.append(('buffer_store_dwordx4 %s, %s, s[%d:%d], %s offen sc1' % (v(vKV, 4), v(vL16 if B else t2), SWS, SWS + 3, s(sPX)), 'pst'))
        tm = c.q_tm and B
        X2 = ['@waitlgkm exr', '@waitvm wq6', 's_barrier']
        if mg: R = X + self.gemm(vK, vWRq, L_WQ, True, 4, tiles=(0,) if tm else (0, 1), ks=range(4 * mg)) + X2
        else:
            L += self.glue(X + self.stamp(4) + X2); R = []
        A = R.append
        t0, t1, t2 = vXR, vXR + 1, vXR + 2
        A('v_add_u32 %s, 2560, %s' % (v(vXD + 1), v(vWOD))); A('v_xor_b32 %s, 32, %s' % (v(vXD + 3), v(vWOD)))
        A('v_add_u32 %s, 5120, %s' % (v(vXD + 2), v(vXD + 3))); A('v_add_u32 %s, 7680, %s' % (v(vXD + 3), v(vXD + 3)))
        A('s_mul_i32 %s, %s, 14336' % (s(sWOS), s(sW))); A('s_lshl_b32 %s, %s, 8' % (s(sA), s(sCB))); A('s_add_u32 %s, %s, %s' % (s(sWOS), s(sWOS), s(sA)))
        A('v_and_b32 %s, 15, %s' % (v(vXR + 3), v(vL))); A('v_lshlrev_b32 %s, 3, %s' % (v(vXR + 3), v(vXR + 3)))
        A('v_lshrrev_b32 %s, 4, %s' % (v(t1), v(vL))); A('v_lshlrev_b32 %s, 1, %s' % (v(t0), v(vXR + 3))); A('v_lshl_add_u32 %s, %s, 10, %s' % (v(t2), v(t1), v(t0)))
        A('s_add_u32 %s, %s, %d' % (s(sB_), s(sSET if B else sM0W), L_MISC))
        A('v_lshl_add_u32 %s, %s, 3, %s' % (v(vXR2 + 3), v(t1), v(t0))); A('v_add_u32 %s, %s, %s' % (v(t0), s(sB_), v(vXR2 + 3))); A('v_add_u32 %s, %d, %s' % (v(vXR2 + 3), L_MISC + 4096, v(vXR2 + 3)))
        A('v_cndmask_b32_e64 %s, %s, %s, s[%d:%d]' % (v(vXR2 + 3), v(t0), v(vXR2 + 3), sHI, sHI + 1))
        if B: A('v_mov_b32 %s, %s' % (v(t0), v(t2)))
        else: A('v_sub_u32 %s, %s, %s' % (v(t0), v(vXR2 + 2), v(vL16))); A('v_add_u32 %s, %s, %s' % (v(t0), v(t0), v(t2)))
        A('v_and_b32 %s, 1, %s' % (v(t1), v(vL))); A('v_lshlrev_b32 %s, 4, %s' % (v(t1), v(t1))); A('v_mov_b32 %s, 0x3f80' % v(t2)); A('v_lshlrev_b32 %s, %s, %s' % (v(t2), v(t1), v(t2)))
        A('v_and_b32 %s, 15, %s' % (v(t1), v(vL))); A('v_cmp_eq_u32 vcc, 7, %s' % v(t1)); A('v_cndmask_b32_e64 %s, %s, 0, vcc' % (v(t2), v(t2))); A('v_lshrrev_b32 %s, 1, %s' % (v(t1), v(t1)))
        for i in range(4):
            r = (sT0, sFAR)[i & 1]
            A('v_cmp_eq_u32_e64 s[%d:%d], %d, %s' % (r, r + 1, i, v(t1))); A('v_cndmask_b32_e64 %s, 0, %s, s[%d:%d]' % (v(vID + i), v(t2), r, r + 1))
        wo_block = self.wo_block
        if c.pre_q: R += self.side_loads()
        for m in range(c.wo_before): R += wo_block(m)
        itab = len(R)
        npart = len(R); R += self.part_loads(br)
        for m in range(c.wo_before, c.wo_mid): R += wo_block(m)
        if c.hint:
            for u in (4, 6): A('v_mov_b64 %s, -1' % v(vV + u, 2))
            for j in range(4):
                if j: A('s_add_u32 %s, %s, %d' % (s(sT2), s(sOBX), 16384 * j))
                R.append(('buffer_store_dwordx4 %s, %s, s[%d:%d], %s offen' % (v(vV + 4, 4), v(vL16), SWS, SWS + 3, s(sT2 if j else sOBX)), 'clr'))
        tabs = self.table_loads()
        if not tm: R += self.gemm(vK, vWRq, L_WQ, True, 4, ks=range(4 * mg, 28))
        for tile in range(2):
            if tm: R += self.gemm(vK, vWRq, L_WQ, True, 4 + 28 * tile, tiles=(tile,), ks=range(0 if tile else 4 * mg, 28))
            R += self.pack(vK + 16 * tile) + self.zero_hi_pads(vK + 16 * tile)
            for t in range(2):
                R.append((mfma(vP + 16 * tile, v(vPH + 4 * t, 4), v(vK + 16 * tile + 4 * t, 4), None if t == 0 else vP + 16 * tile), 'hi' if tile == 0 else None))
        for tile in range(2):
            pk = not (tm and tile == 0)
            R += self.softmax(vP + 16 * tile, vE + 32 * tile, vE + 32 * tile + 16, vT2 + 8 * tile, pk, vK + 16 * tile + 15 if (c.qfold and pk) else None) if B else self.elu1(vP + 16 * tile, vE + 32 * tile, True, True)
        vIM = [vWD, vWDq, vXR2 + 2, vWRq]
        R += ['s_add_u32 %s, %s, %d' % (s(sB_), s(sSET), L_MISC), 'v_add_u32 %s, %s, %s' % (v(vIM[0]), s(sB_), v(vL16))]
        for q in range(1, 2 * NT): R.append('v_xor_b32 %s, %d, %s' % (v(vIM[q]), 1024 * q, v(vIM[0])))
        if c.tab_acc:
            pl = R[itab:itab + 9]; del R[itab:itab + 9]
            j = max(i for i, x in enumerate(R) if 'a[124:127]' in (x[0] if isinstance(x, tuple) else x)) + 1
            R[j:j] = tabs + pl; npart = j + len(tabs); tabs = []; late0 = []
        elif c.tab_late: late0 = tabs; tabs = []
        else: late0 = []
        L += self.sched(R + tabs, 'q' + br, release={npart: (c.rel_part if B else c.rel_partA) + (330 if mg else 0)}, boost={'hi': 4000, 'pst': 30000, 'exr': 40000}, tight=c.q_tight)
        L += self.stamp(6)
        A = L.append
        A('@waitvm part'); self.glue(L[-1:])
        L += self.stamp(5)
        A('L_part_chk%s:' % br)
        R = []; A = R.append
        G0 = vKV
        for p in range(8): A('v_mfma_f32_16x16x32_bf16 %s, %s, %s, %s' % (v(vV + 4 * (p & 3), 4), v(vID, 4), v(G0 + 4 * p, 4), v(vV + 4 * (p & 3), 4) if p >= 4 else '0'))
        x, z, y = vT2, vT2 + 1, vT2 + 12
        A('v_max3_u32 %s, %s, %s, %s' % (v(x), v(G0 + 3), v(G0 + 7), v(G0 + 11))); A('v_min3_u32 %s, %s, %s, %s' % (v(y), v(G0 + 3), v(G0 + 7), v(G0 + 11)))
        A('v_max3_u32 %s, %s, %s, %s' % (v(x), v(x), v(G0 + 15), v(G0 + 19))); A('v_min3_u32 %s, %s, %s, %s' % (v(y), v(y), v(G0 + 15), v(G0 + 19)))
        A('v_max3_u32 %s, %s, %s, %s' % (v(x), v(x), v(G0 + 23), v(G0 + 27))); A('v_min3_u32 %s, %s, %s, %s' % (v(y), v(y), v(G0 + 23), v(G0 + 27)))
        A('v_max_u32 %s, %s, %s' % (v(x), v(x), v(G0 + 31))); A('v_min_u32 %s, %s, %s' % (v(y), v(y), v(G0 + 31)))
        A('v_xor_b32 %s, %s, %s' % (v(x), v(x), v(vTAG))); A('v_xor_b32 %s, %s, %s' % (v(y), v(y), v(vTAG)))
        A('v_or_b32 %s, %s, %s' % (v(x), v(x), v(y))); A('v_lshrrev_b32 %s, 16, %s' % (v(x), v(x)))
        A('v_xor_b32 %s, %s, %s' % (v(y), s(sN0), v(vN))); A('v_xor_b32 %s, %s, %s' % (v(z), s(sREC), v(vN + 1)))
        A('v_cmp_ne_u32_e64 s[%d:%d], 0, %s' % (sFAR, sFAR + 1, v(z)))
        A('v_lshrrev_b32 %s, 4, %s' % (v(z), v(z))); A('v_or3_b32 %s, %s, %s, %s' % (v(x), v(x), v(y), v(z)))
        A('v_cmp_ne_u32 vcc, 0, %s' % v(x))
        L += self.sched(R, 'sum' + br)
        A = L.append
        A('s_cbranch_vccnz L_part_retry%s' % br)
        late = list(late0)
        for m in range(c.wo_mid, c.wo_imp): late += wo_block(m)
        nl = 0 if c.tab_acc else c.late0
        L += late[:nl]
        for q in range(4): L += self.pack(vV + 4 * q, 2)
        for q in range(4): A('ds_write_b64 %s, %s offset:%d' % (v(vXR2 + 3), v(vV + 4 * q, 2), 256 * q))
        A('@waitlgkm_all'); A('s_barrier')
        self.glue(L[-nl - 15:])
        R = []; A = R.append
        R += late[nl:]
        early = self.wo_reads()[:3 + 8 * c.wo_early]
        for q in range(2 * NT): A('ds_read_b128 %s, %s' % (v(vV + 16 + 4 * q, 4), v(vIM[q])))
        for tile in range(2):
            for q in range(2 * NT):
                A(mfma(vP + 16 * tile, v(vV + 16 + 4 * q, 4), v(vE + 32 * tile + 16 * (q >> 1) + 4 * (q & 1), 4), None if q == 0 else vP + 16 * tile))
        for tile in range(2):
            P = vP + 16 * tile; d = vT2 + 4 + 4 * tile
            A('v_mov_b32 %s, %s' % (v(d), v(P + 12))); A('v_permlane32_swap_b32 %s, %s' % (v(P + 12), v(d)))
            A('v_add_f32 %s, %s, %s' % (v(d), v(vK + 16 * tile + 15) if (B and c.qfold) else '0x358637bd', v(d))); A('v_rcp_f32 %s, %s' % (v(d), v(d)))
            for u in range(8):
                if tile: A('v_pk_mul_f32 %s, %s, %s op_sel_hi:[1,0]' % (v(P + 2 * u, 2), v(P + 2 * u, 2), v(d, 2)))
                else:
                    for k in range(2): A('v_mul_f32 %s, %s, %s' % (v(P + 2 * u + k), v(P + 2 * u + k), v(d)))
                A('v_cvt_pk_bf16_f32 %s, %s, %s' % (v(P + u), v(P + 2 * u), v(P + 2 * u + 1)))
        A('v_mov_b32 %s, %s' % (v(vN), s(sN0))); A('v_mov_b32 %s, %s' % (v(vN + 1), s(sN1)))
        A('s_lshl_b32 %s, %s, 3' % (s(sT2), s(sH))); A('s_add_u32 %s, %s, %s' % (s(sC_), s(sFLW), s(sT2))); A('s_xor_b32 %s, %s, 32768' % (s(sOBX), s(sOB1))); A('s_add_u32 %s, %s, 16384' % (s(sA), s(sOB1))); A('s_add_u32 %s, %s, 16384' % (s(sB_), s(sOBX)))
        L += self.sched(R + early, 'o' + br, lowds={id(x) for x in early}, vmlow=True)
        L += self.stamp(7)
        A = L.append
        if c.hint: A('@waitvm clr')
        if c.force_global: A('s_branch L_far')
        A('s_cmp_lg_u64 s[%d:%d], 0' % (sFAR, sFAR + 1)); A('s_cbranch_scc1 L_far')
        return L
    def publish(self, fl):
        c = self.cfg; L = []
        for tile in range(2):
            for t in range(2):
                L.append(('buffer_store_dwordx4 %s, %s, s[%d:%d], %s offen %s' % (v(vP + 16 * tile + 4 * t, 4), v(vL16), SWS, SWS + 3, s(((sOB1, sA), (sOBX, sB_))[tile][t]), fl), 'ost'))
        flag = ('buffer_store_dwordx2 %s, %s, s[%d:%d], %s offen %s' % (v(vN, 2), v(vT), SWS, SWS + 3, s(sC_), fl), 'side')
        if c.hint and not fl: L += [flag, (self.poll(), 'poll')]
        for m in range(c.wo_imp, 7 - c.wo_g3): L += self.wo_block(m)
        L += self.p3_setup()
        L = self.sched(L, 'pub')
        if not c.hint: L += ['@waitvm ost', flag]
        elif fl: L += ['@waitvm ost', flag, self.poll(), '@waitvm_all']
        return L
    def poll(self, r=vT2, so=sFLG): return 'buffer_load_dwordx2 %s, %s, s[%d:%d], %s offen sc1' % (v(r, 2), v(vXR + 3), SWS, SWS + 3, s(so))
    def wo_block(self, m, tag='wo'):
        X = ['s_add_u32 m0, %s, %d' % (s(sM0X), L_WO + 16384 * m)]
        if m: X.append('s_add_u32 %s, %s, %d' % (s(sWOS), s(sWOS), 57344))
        return X + [('buffer_load_dwordx4 %s, s[%d:%d], %s offen offset:%d %s lds' % (v(vXD + j if j else vWOD), SWO, SWO + 3, s(sWOS), 1024 * j, self.cfg.wofl), tag) for j in range(4)]
    def part_loads(self, br):
        L = [('buffer_load_dwordx2 %s, %s, s[%d:%d], %s offen sc1' % (v(vN, 2), v(vXR + 3), SWS, SWS + 3, s(sRECL)), 'rec')]
        for p in range(8):
            L.append(('buffer_load_dwordx4 %s, %s, s[%d:%d], %s offen offset:%d sc1' % (v(vKV + 4 * p, 4), v(vXR), SWS, SWS + 3, s(sPL1 if p >= 4 else sPL0), 256 * (p & 3)), 'part'))
        return L
    def part_retry(self, br):
        P = self.part_loads(br)
        L = ['L_part_retry%s:' % br, '@assume_idle', '@waitvm_all'] + SPIN + [P[0]]
        for p in range(8):
            L += ['v_xor_b32 %s, %s, %s' % (v(vT2), v(vKV + 4 * p + 3), v(vTAG)), 'v_cmp_lt_u32 vcc, 0xffff, %s' % v(vT2), 's_cbranch_vccz L_got%s%d' % (br, p), (P[1 + p][0], 'untracked'), 'L_got%s%d:' % (br, p)]
        return L + ['@waitvm_all', 's_branch L_part_chk%s' % br]
    def far(self):
        return ['L_far:', '@assume_idle', '@waitvm_all', 's_nop 4'] + self.publish('sc1') + ['s_branch L_join']
    def wo_reads(self):
        b = [vWO0, vWO0 + 1, vXR2, vXR2 + 1]
        L = ['v_xor_b32 %s, 32, %s' % (v(b[1]), v(b[0])), 'v_add_u32 %s, 0x10000, %s' % (v(b[2]), v(b[0])), 'v_add_u32 %s, 0x10000, %s' % (v(b[3]), v(b[1]))]
        for k in range(14):
            for nt in range(2):
                for i in range(2):
                    off = (32 * k + 4 * i) * 256
                    L.append('ds_read_b64_tr_b16 %s, %s offset:%d' % (a(8 * k + 4 * nt + 2 * i, 2), v(b[nt + 2 * (off >> 16)]), off & 0xffff))
        return L

    def p3_setup(self):
        L = []; A = L.append
        A('s_lshl_b32 %s, %s, 2' % (s(sT2), s(sRB))); A('s_add_u32 %s, %s, %s' % (s(sT2), s(sT2), s(sRQ))); A('s_mul_i32 %s, %s, %d' % (s(sD_), s(sT2), 64 * 1792))
        A('s_mul_i32 %s, %s, 896' % (s(sT2), s(sBR))); A('s_add_u32 %s, %s, %s' % (s(sD_), s(sD_), s(sT2)))
        A('s_lshl_b32 %s, %s, 2' % (s(sT2), s(sCB))); A('s_add_u32 %s, %s, %s' % (s(sT2), s(sT2), s(sW)))
        A('s_cmp_ge_u32 %s, 14' % s(sT2)); A('s_cselect_b32 %s, 0x%x, 0' % (s(sA), OOB))
        A('s_lshl_b32 %s, %s, 6' % (s(sT2), s(sT2))); A('s_add_u32 %s, %s, %s' % (s(sXO), s(sD_), s(sT2)))
        for b in range(1, 4): A('s_add_u32 %s, %s, %d' % (s(sXO + b), s(sXO), b * 16 * 1792))
        t0, t1, t2 = vT2 + 10, vT2 + 11, vT2 + 12
        A('s_lshl_b32 %s, %s, 12' % (s(sB_), s(sW))); A('s_add_u32 %s, %s, %d' % (s(sB_), s(sB_), L_OT))
        A('v_and_b32 %s, 15, %s' % (v(t0), v(vL))); A('v_lshlrev_b32 %s, 4, %s' % (v(vS16), v(t0))); A('v_lshl_add_u32 %s, %s, 6, %s' % (v(t0), v(t0), s(sB_)))
        A('v_bfe_u32 %s, %s, 4, 1' % (v(t1), v(vL))); A('v_lshl_add_u32 %s, %s, 3, %s' % (v(t0), v(t1), v(t0)))
        A('v_bfe_u32 %s, %s, 1, 2' % (v(t1), v(vL))); A('v_lshrrev_b32 %s, 5, %s' % (v(t2), v(vL))); A('v_xor_b32 %s, %s, %s' % (v(t1), v(t1), v(t2)))
        A('v_lshl_add_u32 %s, %s, 4, %s' % (v(vOW), v(t1), v(t0))); A('v_xor_b32 %s, 32, %s' % (v(vOW + 1), v(vOW)))
        A('v_bfe_u32 %s, %s, 3, 2' % (v(t1), v(vL))); A('v_xor_b32 %s, %s, %s' % (v(t1), v(t1), v(vL))); A('v_and_b32 %s, 3, %s' % (v(t1), v(t1)))
        A('v_lshrrev_b32 %s, 2, %s' % (v(t0), v(vL))); A('v_lshl_add_u32 %s, %s, 6, %s' % (v(t2), v(t0), s(sB_))); A('v_lshl_add_u32 %s, %s, 4, %s' % (v(vOR), v(t1), v(t2)))
        A('v_mul_u32_u24 %s, 1792, %s' % (v(t0), v(t0))); A('v_and_b32 %s, 3, %s' % (v(t1), v(vL))); A('v_lshl_add_u32 %s, %s, 4, %s' % (v(t0), v(t1), v(t0)))
        A('v_add_u32 %s, %s, %s' % (v(vOG), s(sA), v(t0)))
        A('v_and_b32 %s, 15, %s' % (v(t0), v(vL))); A('v_cmp_eq_u32_e64 s[%d:%d], %s, %s' % (sOWN, sOWN + 1, s(sH), v(t0)))
        for i, r in enumerate(vOF):
            if self.cfg.tab_acc: A('v_accvgpr_read_b32 %s, %s' % (v(r), a(112 + i)))
            A('v_add_u32 %s, %s, %s' % (v(r), v(r), v(vS16)))
        A('s_lshl2_add_u32 %s, %s, %s' % (s(sT2), s(sGID), s(sRQ))); A('s_lshl2_add_u32 %s, %s, %s' % (s(sT2), s(sT2), s(sW)))
        A('s_lshl_b32 %s, %s, 14' % (s(sT2), s(sT2))); A('s_add_u32 %s, %s, %d' % (s(sD_), s(sT2), WS_O))
        A('s_lshl_b32 %s, %s, 14' % (s(sWOM), s(sW))); A('s_mov_b32 m0, %s' % s(sWOM))
        return L
    def table_loads(self):
        L = ['v_and_b32 %s, 0x300, %s' % (v(vWRk), v(vL16)), 'v_lshrrev_b32 %s, 2, %s' % (v(vWRk), v(vWRk))]
        for q in range(4):
            dst = a(112 + 4 * q, 4 if q < 3 else 2) if self.cfg.tab_acc else v(vOF[4 * q], 4 if q < 3 else 2)
            L.append(('global_load_dwordx%d %s, %s, s[%d:%d] offset:%d' % (4 if q < 3 else 2, dst, v(vWRk), sTAB, sTAB + 1, 16 * q), 'tab'))
        return L
    def table(self, pad):
        T = []
        for g in range(4):
            for r in range(16):
                h, u = divmod(8 * (r >> 1) + 2 * g + (r & 1), 7)
                T.append(h * 1024 + (u >> 2) * 16384 + (u & 1) * 512 + ((u >> 1) & 1) * 8)
        return ['.p2align 6', '.type L_tab,@object', 'L_tab:'] + ['.long %d' % x for x in T] + (['.fill L_PAD, 4, 0', '.size L_tab, 256 + 4 * L_PAD'] if pad else ['.size L_tab, 256', '.p2align 7'])

    def tail(self):
        c = self.cfg
        L = ['L_pub:'] + self.publish(''); A = L.append
        A('L_join:')
        L += self.stamp(8)
        g3 = 7 - c.wo_g3
        poll = 'buffer_load_dwordx2 %s, %s, s[%d:%d], %s offen sc1' % (v(vT2, 2), v(vXR + 3), SWS, SWS + 3, s(sFLG))
        assert c.wo_early >= 2
        if c.hint:
            A('s_add_u32 %s, %s, 8192' % (s(sC_), s(sC_))); A('@waitvm poll'); A('@waitlgkm_all'); A('s_barrier')
            wrest = self.wo_reads()[3 + 8 * c.wo_imp:3 + 8 * g3]
        elif c.poll_first:
            A(poll); A('@waitlgkm_all'); A('s_barrier'); L += self.wo_reads()[3 + 8 * c.wo_early:3 + 8 * c.wo_imp]
            wrest = self.wo_reads()[3 + 8 * c.wo_imp:3 + 8 * g3]
        else:
            A('@waitvm wo'); A(poll); A('@waitlgkm_all'); A('s_barrier'); L += self.wo_reads()[3 + 8 * c.wo_early:3 + 8 * g3]
            wrest = []
        def test(r): return ['v_xor_b32 %s, %s, %s' % (v(r), s(sN0), v(r)), 'v_xor_b32 %s, %s, %s' % (v(r + 1), s(sN1), v(r + 1)),
                             'v_or_b32 %s, %s, %s' % (v(r), v(r), v(r + 1)), 'v_cmp_ne_u32 vcc, 0, %s' % v(r), 's_andn2_b64 vcc, vcc, s[%d:%d]' % (sOWN, sOWN + 1)]
        A('L_poll:')
        L += test(vT2); A('s_cbranch_vccnz L_repoll'); A('L_seen:')
        p2 = poll.replace(v(vT2, 2), v(vT2 + 14, 2))
        self.repoll = ['L_repoll:', '@assume_idle', (poll, 'p1')] + SPIN + ['s_nop 15', (p2, 'p2')] + test(vT2) + ['s_cbranch_vccz L_seen2'] + test(vT2 + 14) + ['s_cbranch_vccnz L_repoll',
                       'L_seen2:', '@waitvm_all', 's_branch L_seen']
        L += self.stamp(9)
        od = []
        for h in range(16):
            if h and h % 4 == 0: od += ['s_add_u32 m0, %s, %d' % (s(sWOM), 1024 * h), 's_add_u32 %s, %s, 4096' % (s(sD_), s(sD_))]
            od.append(('buffer_load_dwordx4 %s, s[%d:%d], %s offen offset:%d sc1 lds' % (v(vL16), SWS, SWS + 3, s(sD_), 1024 * (h & 3)), 'o%d' % h))
        assert c.o_first % 4 == 0
        nf = [i for i, x in enumerate(od) if isinstance(x, tuple)][c.o_first - 1] + 1
        L += od[:nf]
        if c.hint: L += self.wo_reads()[3 + 8 * c.wo_early:3 + 8 * c.wo_imp]
        M16 = 'v_mfma_f32_16x16x32_bf16'
        st = {'have': -1}
        def gate(k):
            X = []; h = (8 * k + 7) // 7
            need = min(x for x in c.stages if x >= h)
            wg = k % 2 == 0 and k // 2 >= g3
            if st['have'] < need or wg:
                X = ['@waitvm o%d' % need + (' wog%d' % (k // 2) if wg else ''), 's_barrier']; st['have'] = max(need, st['have'])
            return X
        def rd(k, sg, i): return 'ds_read_b64 %s, %s offset:%d' % (v(vE + 4 * ((4 * k + sg) % 12) + 2 * i, 2), v(vOF[2 * (k % 7) + i]), (k // 7) * 8192 + (sg >> 1) * 32768 + (sg & 1) * 256)
        rds = lambda k: [rd(k, sg, i) for sg in range(4) for i in range(2)]
        later = od[nf:]
        for m in range(g3, 7): later += self.wo_block(m, 'wog%d' % m)
        if c.hint: later.append(('buffer_store_dwordx2 %s, %s, s[%d:%d], %s offen sc1' % (v(vN, 2), v(vT), SWS, SWS + 3, s(sC_)), 'side'))
        L += gate(0) + rds(0) + gate(1)
        kt = 14 - c.tailk
        for k in range(kt):
            fill = []
            if k + 2 < 14:
                L += gate(k + 2); fill = (rds(1) if k == 0 else []) + rds(k + 2)
                if k >= c.wrest_at and wrest: fill = interleave(fill, wrest[:c.wrest_n]); del wrest[:c.wrest_n]
                assert not wrest or k + 1 < 2 * c.wo_imp
                if (k + 2) % 2 == 0 and (k + 2) // 2 >= g3: fill = interleave(fill, self.wo_reads()[3 + 4 * (k + 2):3 + 4 * (k + 2) + 8])
            per = -(-len(fill) // 8)
            for j in range(8):
                sg, nt = j >> 1, j & 1
                d = v(vK + 8 * sg + 4 * nt, 4)
                L.append('%s %s, %s, %s, %s' % (M16, d, a(8 * k + 4 * nt, 4), v(vE + 4 * ((4 * k + sg) % 12), 4), d if k else '0'))
                if later and k and j % c.g3_every == 0:
                    while not isinstance(later[0], tuple): L.append(later.pop(0))
                    L.append(later.pop(0))
                L += fill[per * j:per * (j + 1)]
        assert not later
        L += self.stamp(10)
        R = []; A = R.append
        for k in range(kt + 2, 14): assert not gate(k); R += rds(k)
        for sg in range(4):
            for k in range(kt, 14):
                for nt in range(2):
                    d = v(vK + 8 * sg + 4 * nt, 4)
                    R.append(('%s %s, %s, %s, %s' % (M16, d, a(8 * k + 4 * nt, 4), v(vE + 4 * ((4 * k + sg) % 12), 4), d), 'sg%d' % sg))
        def stage():
            X = []
            for sg in range(4):
                for nt in range(2):
                    d = vK + 8 * sg + 4 * nt
                    X += self.pack(d, 2) + ['ds_write_b64 %s, %s offset:%d' % (v(vOW + nt), v(d, 2), 1024 * sg)]
                X.append('ds_read_b128 %s, %s offset:%d' % (v(vP + 4 * sg, 4), v(vOR), 1024 * sg))
                X.append('buffer_store_dwordx4 %s, %s, s[%d:%d], %s offen %s' % (v(vP + 4 * sg, 4), v(vOG), SOUT, SOUT + 3, s(sXO + sg), c.outfl))
            return X
        R += stage()
        if c.hint: R += ['v_cmp_u_f32_e64 s[%d:%d], %s, %s' % (sT0, sT1, v(vK + 3), v(vK + 11)), 'v_cmp_u_f32 vcc, %s, %s' % (v(vK + 19), v(vK + 27))]
        self.M.t += 3000
        L += self.sched(R, 'out', boost={'sg0': 4000, 'sg1': 3000, 'sg2': 2000})
        A = L.append
        self.redo = []
        if c.hint:
            A('s_or_b64 vcc, vcc, s[%d:%d]' % (sT0, sT1)); A('s_branch L_redo' if c.force_redo else 's_cbranch_vccnz L_redo'); A('L_done:')
            X = ['L_redo:', '@assume_idle', '@wait_all']
            if c.stamps: X += ['v_mov_b32 %s, 1' % v(vT2), 's_mov_b64 exec, 1', 'global_atomic_add %s, %s, s[%d:%d] offset:32' % (v(vZ), v(vT2), sDBG, sDBG + 1), 's_mov_b64 exec, -1']
            X += ['s_add_u32 %s, %s, 8192' % (s(sFLG), s(sFLG)), 'L_redo_poll:'] + SPIN + [poll] + test(vT2)[:4] + ['s_cbranch_vccnz L_redo_poll']
            X += ['s_lshl_b32 %s, %s, 14' % (s(sT2), s(sW)), 's_sub_u32 %s, %s, %s' % (s(sD_), s(sD_), s(sT2)), 's_sub_u32 %s, %s, 12288' % (s(sA), s(sD_))]
            X += ['s_add_u32 %s, %s, %d' % (s(r), s(sA), o) for r, o in ((sB_, 32768), (sC_, 8192), (sD_, 40960))]
            for k in range(14):
                for sg in range(4):
                    for i in range(2):
                        X.append('buffer_load_dwordx2 %s, %s, s[%d:%d], %s offen offset:%d sc1' % (v(vE + 4 * sg + 2 * i, 2), v(vOF[2 * (k % 7) + i]), SWS, SWS + 3, s(((sA, sB_), (sC_, sD_))[k // 7][sg >> 1]), (sg & 1) * 256))
                for j in range(8):
                    d = v(vK + 4 * j, 4)
                    X.append('%s %s, %s, %s, %s' % (M16, d, a(8 * k + 4 * (j & 1), 4), v(vE + 4 * (j >> 1), 4), d if k else '0'))
            self.redo = X + stage() + ['s_branch L_done']
        if c.stamps:
            L += self.stamp(11)
            A('s_memrealtime s[%d:%d]' % (sT0, sT1)); A('@waitlgkm_all')
            A('v_writelane_b32 %s, %s, 12' % (v(vST), s(sT0)))
            A('s_lshl_b32 %s, s2, 2' % s(sT2)); A('s_add_u32 %s, %s, %s' % (s(sT2), s(sT2), s(sW))); A('s_lshl_b32 %s, %s, 8' % (s(sT2), s(sT2)))
            A('s_add_u32 %s, %s, %d' % (s(sT2), s(sT2), WS_STAMP))
            A('v_lshlrev_b32 %s, 2, %s' % (v(vT), v(vL)))
            for k in range(0 if not c.prost else 4, 4): A('v_writelane_b32 %s, s%d, %d' % (v(vST), 12 + 2 * k, 32 + k))
            A('buffer_store_dword %s, %s, s[%d:%d], %s offen' % (v(vST), v(vT), SWS, SWS + 3, s(sT2)))
        if c.leak:
            if c.leak == 11: L += self.stamp(11)
            A('s_lshl_b32 s11, s101, 2'); A('s_cmp_eq_u32 %s, %d' % (s(sBR), c.leak_br)); A('s_cselect_b32 s11, s11, 0'); A('s_memrealtime s[100:101]'); A('@waitlgkm_all')
            A('L_leak:'); A('s_memrealtime s[%d:%d]' % (sT0, sT1)); A('@waitlgkm_all'); A('s_sub_u32 %s, %s, s100' % (s(sT0), s(sT0))); A('s_cmp_lt_u32 %s, s11' % s(sT0)); A('s_cbranch_scc1 L_leak')
        if c.tfix:
            A('L_tfix:'); A('s_memrealtime s[%d:%d]' % (sT0, sT1)); A('@waitlgkm_all'); A('s_sub_u32 %s, %s, s100' % (s(sT0), s(sT0))); A('s_cmp_lt_u32 %s, %d' % (s(sT0), c.tfix)); A('s_cbranch_scc1 L_tfix')
        A('L_end:'); A('s_endpgm')
        return L

    def throttle(self, L, br):
        c = self.cfg
        if not c.thr: return L
        out = []; seen = set()
        for x in L:
            if isinstance(x, tuple) and x[1] is not None and x[1] not in seen and x[1] in c.thr_tags:
                if x[1] != 'wq': seen.add(x[1])
                n = self.nthr; self.nthr += 1
                out += ['s_cbranch_vccnz L_thr%d' % n, 'L_thb%d:' % n]
                self.thr_side += ['L_thr%d:' % n, 's_waitcnt vmcnt(%d)' % c.thr, 's_branch L_thb%d' % n]
            out.append(x)
        return out
    def marks(self, L):
        if not self.cfg.marks: return L
        out = []; seen = set()
        for x in L:
            t = x[0] if isinstance(x, tuple) else x
            hit = [k for k, (p, af) in enumerate(self.cfg.marks) if (t == p or t.startswith(p + ' ')) and k not in seen]
            for k in hit:
                if not self.cfg.marks[k][1]: out.append(('s_memtime s[%d:%d]' % (12 + 2 * k, 13 + 2 * k), 'nowait'))
            out.append(x)
            for k in hit:
                if self.cfg.marks[k][1]: out.append(('s_memtime s[%d:%d]' % (12 + 2 * k, 13 + 2 * k), 'nowait'))
                seen.add(k)
        return out
    def build(self):
        import re
        pro = self.prologue() + ['s_cmp_eq_u32 %s, 0' % s(sBR), 's_cbranch_scc1 L_pathA']
        MK = '.set MARK_A, 0'
        out = []; base = self.cfg
        for br in 'BA':
            import emit, sched
            c = copy.copy(base)
            for k, x in getattr(base, br).items(): assert hasattr(c, k), k; setattr(c, k, x)
            self.__init__(c); self.prologue()
            emit.MERGE = c.merge; sched.BURST = c.burst; sched.HOLD = c.hold
            hlp = [(x, 'untracked') if x.startswith('global_load') else x for x in self.help()] if (br == 'A' and self.cfg.help) else []
            body = hlp + self.part1(br) + self.stamp(14) + self.middle(br) + self.tail()
            code = finalize(self.marks(pro + [MK] + body)); k = code.index(MK)
            head, code = code[:k], code[k + 1:]
            side = finalize(self.repoll + self.far() + self.nonce_retry(br) + self.part_retry(br) + (self.mknonce() if br == 'B' else []) + self.redo)
            tab = self.table(br == 'A')
            if br == 'A':
                ren = lambda l: re.sub(r'\b(L_(?:end|pub|join|far|poll|repoll|seen2?|tab|leak|tfix|done|redo|redo_poll))\b', r'\1A', l)
                code, side, tab = [ren(l) for l in ['L_pathA:'] + code], [ren(l) for l in side], [ren(l) for l in tab]
            else: code = head + code
            out.append((code, side + tab))
        return out

HEADER = open(os.path.join(os.path.dirname(os.path.abspath(__file__)), 'header.txt')).read()

DESC = """;
"""

def generate(cfg):
    import emit
    emit.MERGE = cfg.merge
    import sched
    sched.BURST = cfg.burst; sched.HOLD = cfg.hold
    g = G(cfg)
    (cb, sb), (ca, sa) = g.build()
    if cfg.align:
        from align import align
        hd = '.amdgcn_target "amdgcn-amd-amdhsa--gfx950"\n.text\n.set L_AOFF, 200\n.set L_PAD, 0\n'
        cb, p0, p1 = align(hd, cb, '\n'.join(sb + ca + sa) + '\n', cfg.align)
        ca, p2, p3 = align(hd, ca, '\n'.join(sa + cb + sb) + '\n', cfg.align)
        if cfg.verbose: sys.stderr.write('misalignment penalty %d -> %d, %d -> %d\n' % (p0, p1, p2, p3))
    body = cb + sb + ca + sa
    txt = HEADER
    if cfg.extra_empty:
        txt += '; @launch kernel=%s grid=(256,1,1) block=(256,1,1) lds=163840\n; @launch kernel=empty_kernel grid=(256,1,1) block=(256,1,1) lds=0\n' % KNAME
    else:
        txt += '; @launch grid=(256,1,1) block=(256,1,1) lds=163840\n'
    txt += DESC
    txt += '.amdgcn_target "amdgcn-amd-amdhsa--gfx950"\n.text\n.globl %s\n.p2align 8\n.type %s,@function\n%s:\n' % (KNAME, KNAME, KNAME)
    txt += '\n'.join(('' if l.endswith(':') else '    ') + l for l in body) + '\n'
    if cfg.extra_empty:
        txt += '.globl empty_kernel\n.p2align 8\n.type empty_kernel,@function\nempty_kernel:\n    s_endpgm\n'
        txt += '.section .rodata,"a"\n.p2align 6\n.amdhsa_kernel empty_kernel\n  .amdhsa_next_free_vgpr 8\n  .amdhsa_next_free_sgpr 16\n  .amdhsa_accum_offset 8\n  .amdhsa_group_segment_fixed_size 0\n  .amdhsa_kernarg_size 80\n  .amdhsa_user_sgpr_count 2\n  .amdhsa_user_sgpr_kernarg_segment_ptr 1\n  .amdhsa_system_sgpr_workgroup_id_x 1\n.end_amdhsa_kernel\n'
    txt += '.section .rodata,"a"\n.p2align 6\n.amdhsa_kernel %s\n' % KNAME
    txt += '  .amdhsa_next_free_vgpr 512\n  .amdhsa_next_free_sgpr 102\n  .amdhsa_accum_offset 256\n  .amdhsa_group_segment_fixed_size 0\n'
    txt += '  .amdhsa_kernarg_size 80\n  .amdhsa_user_sgpr_count 2\n  .amdhsa_user_sgpr_kernarg_segment_ptr 1\n  .amdhsa_system_sgpr_workgroup_id_x 1\n.end_amdhsa_kernel\n'
    import subprocess, tempfile, re
    d = tempfile.mkdtemp()
    open(d + '/a.s', 'w').write(txt.replace('L_PAD', '0').replace('L_AOFF', '200'))
    r = subprocess.run(['clang', '-x', 'assembler', '-target', 'amdgcn-amd-amdhsa', '-mcpu=gfx950', '-c', d + '/a.s', '-o', d + '/a.o'], capture_output=True, text=True)
    if r.returncode: raise Exception(r.stderr[:3000])
    r = subprocess.run(['llvm-readelf', '-S', '-s', d + '/a.o'], capture_output=True, text=True).stdout
    size = int(re.search(r'\.text\s+PROGBITS\s+\w+\s+\w+\s+(\w+)', r).group(1), 16)
    offa = int(re.search(r': (\w+)\s+\d+\s+\w+\s+\w+\s+\w+\s+\d+ L_pathA', r).group(1), 16)
    assert offa % 128 == 0 and 64 < offa // 128 and offa < 32768 and size - offa < 32768
    sys.stderr.write('code bytes: B %d A %d\n' % (offa, size - offa))
    return txt.replace('L_PAD', str((offa + 32768 + 256 - size) // 4)).replace('L_AOFF', str(offa // 128))

if __name__ == '__main__':
    cfg = Cfg()
    out = sys.argv[1]
    for kv in sys.argv[2:]:
        k, val = kv.split('=', 1); assert hasattr(cfg, k), k; setattr(cfg, k, eval(val))
    open(out, 'w').write(generate(cfg))
```

```python
import sys, os
from emit import finalize, interleave
from sched import schedule, simulate, Machine
import copy

KNAME = 'concat_heads__linear_attn_block__linear_kernel_hedgehog__prompt_kernel'

class Cfg:
    stamps = False; lite = False; fine = None; frange = (0, 1); marks = None; leak = None; leak_br = 1; tfix = 0; extra_empty = False; force_global = False; verbose = False
    rotmap = None; rottab = None; tswap = 0; pref_slots = 0
    xfl = ''; wfl = ''; wofl = ''; outfl = 'sc1'; prefl = 'sc1'; tfl = ''
    touch = {"p2": "o"}
    wv_bar = (1, 2, 3, 5, 7); hi2 = 0; q_tm = False
    rel_part = 1600; rel_partA = 1900; rel_nonce = 0
    wo_before = 2; wo_mid = 2; wo_imp = 5; wo_g3 = 1; tab_late = True; q_tight = False; p2_tight = False; wo_early = 2; late0 = 6; pre_q = False; ws_base = 0
    stages = (3, 5, 7, 11, 15); g3_every = 2; o_first = 8
    dslat = 130; merge = 24; burst = 24; hold = 4
    miss = {}; lines = {}
    wv_early = 0; wv_at = 7
    wq_pre = 7
    fake_n2 = False
    wq_at = 0
    align = 4
    flip = False
    delay = None
    help_plain = False
    help = 'xwX'
    merge_q = 2
    poll_first = True; wrest_at = 3; wrest_n = 4
    prost = False
    tailk = 3
    pk0 = False
    A = {}; B = {}
    pre_part = False
    tlb = False
    spre = ''
    hperm = None
    qfold = True; tab_acc = False
    hint = False; force_redo = False
    b_hi = 3000; b_kk = 4000; b_lead = 0
    trials = {}; pick = {}; red16 = False
    late_nonce = True
    own_nonce = True
    thr = 0; thr_tags = ['x11', 'x12', 'x13', 'wv0', 'wv1', 'wv2', 'wv3', 'wv4', 'wv5', 'wv6', 'wq']
    depth = 4; order0 = 'w2 w3 x2 w4 x3 w5 w6 x4 x5'; wkbar = {0: 'wk1 phi', 2: 'wk3', 4: 'wk6'}; t0boost = 2000
    rate = 2.2; cap = 256; lat = 400; fifo = 4; wlines = 90; cold = 900; pmiss = 900; smiss = 1000

WS_XCC, WS_FLAG, WS_PART, WS_O, WS_STAMP = 4096, 8192, 65536, 2 << 20, 16 << 20
WS_BYTES = 32 << 20
L_WK, L_WV, L_MISC, L_WQ, L_WO, L_SCR, L_OT = 98304, 126976, 155648, 0, 32768, 32768, 65536
OOB = 0x40000000
sAX, sAW, sAWO, sBX, sBW, sPHI, sBWO, sOUT, sDBG, sWSP = 4, 6, 8, 10, 12, 14, 16, 18, 20, 22
SX, SW, SWO, SPHI, SWS, SOUT = 24, 28, 32, 36, 40, 44
sBR, sRB, sH, sW, sGID, sSLOT, sT0, sT1, sT2, sXCC = 48, 49, 50, 51, 52, 53, 54, 55, 56, 57
sN0, sN1 = 58, 59
sHI, sE28 = 60, 62
sXO, sWO_ = 64, 72
sSPIN, sFAR = 71, 72
sM0X, sM0W, sSH, sCB, sRQ, sPB = 80, 81, 82, 83, 84, 85
sA, sB_, sC_, sD_ = 86, 87, 88, 89
sOB1, sWOM, sDT, sROT, sXB, sWB, sOBX, sFLG, sT3, sREC, sRECA = 90, 91, 92, 93, 94, 95, 96, 97, 98, 99, 79
sOWN = 74
sM0K = 3
sPX, sPL0, sPL1, sSET, sRECL, sSCR = 4, 5, 6, 7, 8, 9
sWOS, sTAB = sXCC, SX
sFLW = sSLOT
sSGN = sSH
sM1, sM2 = SPHI, SPHI + 2
SPIN = ['s_add_u32 s71, s71, 1', 's_cmp_gt_u32 s71, 0x100000', 's_cbranch_scc1 L_end']
vL = 1
vXD, vWD, vWRq, vWRk, vZ = 2, 6, 7, 8, 9
vXR, vXR2 = 10, 14
vDUM, vT = 18, 19
vPH, vID, vC, vST, vN = 20, 28, 36, 37, 38
vK, vV, vP, vE, vKV, vT2 = 40, 72, 104, 136, 200, 232
vTAG, vL16 = 248, 249
vWO0, vWOD = 250, 252
vWDq, vWDv = 253, 251
vTCH, vTCO, vPRE = None, 254, 255
vS16, vOW, vOR, vOG = vT2 + 3, vT2 + 4, vT2 + 8, vT2 + 9
vOF = list(range(20, 28)) + list(range(32, 36)) + [254, 255]
aX, aWR = 0, 224

def v(r, n=1): return 'v%d' % r if n == 1 else 'v[%d:%d]' % (r, r + n - 1)
def a(r, n=1): return 'a%d' % r if n == 1 else 'a[%d:%d]' % (r, r + n - 1)
def s(r, n=1): return 's%d' % r if n == 1 else 's[%d:%d]' % (r, r + n - 1)
MF = 'v_mfma_f32_32x32x16_bf16'
def mfma(d, x, y, c): return '%s %s, %s, %s, %s' % (MF, v(d, 16), x, y, v(c, 16) if c is not None else '0')

def _trial(a):
    M, L, dslat, kw, x, low, name = a
    kw = dict(kw, **x); kw['lowds'] = {id(L[i]) for i in low}
    M1 = copy.deepcopy(M); R = schedule(M1, L, dslat=dslat, **kw)
    t, when = simulate(copy.deepcopy(M), R, dslat)
    if name.startswith('q'): t += 2 * (when['pst'] - M.t) + abs(when['part'] - (M.t + list(kw['release'].values())[0])) // 4
    return t - M.t

class G:
    def __init__(self, cfg):
        self.cfg = c = cfg; self.npc = 0; self.nthr = 0; self.thr_side = []
        self.M = Machine(c.rate, c.cap, c.lat, fifo=c.fifo, lines={'wk': c.wlines, 'wv': c.wlines, 'wq': c.wlines, 'phi': 13, 'touch': 100, 'pre': 128, 'nonce': 4, 'side': 4, 'pref': 4, 'tab': 4, 'rec': 8},
                         miss={'x0': c.cold, 'nonce': 500, 'part': c.pmiss, 'rec': c.pmiss, 'pre': 600, 'touch': 400, 'pst': c.smiss, 'side': 500, 'ost': 250})
        self.M.miss.update(c.miss); self.M.lines.update(c.lines)
    def stamp(self, k):
        if self.cfg.leak == k: return ['@waitlgkm_all', 's_memrealtime s[%d:%d]' % (sT0, sT1), '@waitlgkm_all', 's_sub_u32 s101, %s, s100' % s(sT0)]
        if not self.cfg.stamps or (self.cfg.lite and k not in (11, 13)): return []
        return ['@waitlgkm_all', 's_memtime s[%d:%d]' % (sT0, sT1), 's_memrealtime s[100:101]', '@waitlgkm_all', 'v_writelane_b32 %s, %s, %d' % (v(vST), s(sT0), k),
                'v_writelane_b32 %s, s100, %d' % (v(vST), 16 + k)]
    def sched(self, L, name, **kw):
        c = self.cfg
        if name in c.pick:
            kw = dict(kw, **c.pick[name])
        elif name in c.trials:
            import random
            from multiprocessing import Pool
            rng = random.Random(1)
            cand = [{}] + [dict(noise=rng.choice((30, 100, 300, 800)), seed=k, hold=rng.choice((4, 8, 12)), soonw=rng.choice((24, 40, 60))) for k in range(c.trials[name])]
            with Pool(8) as p: sc = p.map(_trial, [(self.M, L, c.dslat, kw, x, [i for i, y in enumerate(L) if id(y) in kw.get('lowds', ())], name) for x in cand])
            b = min(range(len(cand)), key=lambda k: sc[k])
            sys.stderr.write('search %s: base %d best %d with %r\n' % (name, sc[0], sc[b], cand[b]))
            kw = dict(kw, **cand[b])
        M0 = copy.deepcopy(self.M)
        R = schedule(self.M, L, verbose=name if c.verbose else False, dslat=c.dslat, **kw)
        if c.verbose: sys.stderr.write('   simulated %d\n' % (simulate(M0, R, c.dslat)[0] - M0.t))
        return self.fine(R, name)
    def glue(self, L): return self.M.run(L)
    def fine(self, L, name):
        if not self.cfg.fine or not name.startswith(self.cfg.fine): return L
        out = []; n = len(L); lo, hi = [int(f * n) for f in self.cfg.frange]; pos = {lo + (k * (hi - lo)) // 3: k for k in range(4)}
        for i, x in enumerate(L + [None]):
            if i in pos: out.append(('s_memtime s[%d:%d]' % (12 + 2 * pos[i], 13 + 2 * pos[i]), 'nowait'))
            if x is not None: out.append(x)
        T = [self.M.times[i] for i in sorted(pos)]
        sys.stderr.write('model %s: %s\n' % (name, [b - a for a, b in zip(T[:-1], T[1:])]))
        if self.cfg.verbose:
            for i, k in pos.items(): sys.stderr.write('  fine %s %d at %d: %s\n' % (name, k, i, L[i]))
        return out

    def offs(self, i):
        L = ['s_lshl_b32 %s, %s, 7' % (s(sD_), s(sROT)), 's_add_u32 %s, %s, %s' % (s(sXO + i), s(sXB), s(sD_)),
             's_mul_i32 %s, %s, %d' % (s(sD_), s(sROT), 64 * 2688), 's_add_u32 %s, %s, %s' % (s(sD_), s(sWB), s(sD_)), 's_add_u32 %s, %s, %d' % (s(sWO_ + i), s(sD_), 4096 - 1024 * (i & 3))]
        if i < 6: L += ['s_add_u32 %s, %s, 1' % (s(sROT), s(sROT)), 's_cmp_eq_u32 %s, 7' % s(sROT), 's_cselect_b32 %s, 0, %s' % (s(sROT), s(sROT))]
        return L
    def touches(self, pos):
        L = []
        for w in self.cfg.touch.get(pos, ''):
            if w == 'p': L.append(('buffer_load_dword %s, %s, s[%d:%d], %s offen %s' % (v(vDUM), v(vPRE), SWS, SWS + 3, s(sOBX), self.cfg.prefl), 'pre'))
            else: L += self.touch(w)
        return L
    def touch(self, what):
        c = self.cfg
        if what == 'o': return [('buffer_load_dword %s, %s, s[%d:%d], 0 offen %s' % (v(vDUM), v(vTCO), SWO, SWO + 3, c.tfl), 'touch')]
        return [('buffer_load_dword %s, %s, s[%d:%d], 0 offen offset:%d %s' % (v(vDUM), v(vTCH), SW, SW + 3, {'q': 0, 'v': 1792}[what], c.tfl), 'touch')]

    def prologue(self):
        c = self.cfg; L = []; A = L.append
        A('s_load_dwordx16 s[4:19], s[0:1], 0')
        A('s_load_dwordx4 s[20:23], s[0:1], 64')
        if c.prost: L.append(('s_memtime s[96:97]', 'nowait'))
        if c.stamps or c.tfix or c.leak: A('s_memrealtime s[100:101]')
        A('s_cmpk_ge_u32 s2, 0x100'); A('s_cbranch_scc1 L_end')
        if c.delay:
            A('s_and_b32 s30, s2, 7'); A('s_lshr_b32 s30, %d, s30' % c.delay[0]); A('s_bitcmp0_b32 s30, 0'); A('s_cbranch_scc1 L_nodelay')
            A('L_delay:'); A('s_memrealtime s[30:31]'); A('@waitlgkm_all'); A('s_sub_u32 s30, s30, s100'); A('s_cmp_lt_u32 s30, %d' % c.delay[1]); A('s_cbranch_scc1 L_delay')
            A('L_nodelay:')
        t0, t1, t2 = vT2, vT2 + 1, vT2 + 2
        A('v_readfirstlane_b32 %s, v0' % s(sW)); A('v_and_b32 %s, 63, v0' % v(vL))
        A('s_lshr_b32 %s, s2, 3' % s(sSLOT))
        if c.hperm:
            w = sum(x << (4 * i) for i, x in enumerate(c.hperm))
            A('s_mov_b32 %s, 0x%x' % (s(sN0), w & 0xffffffff)); A('s_mov_b32 %s, 0x%x' % (s(sN1), w >> 32))
            A('s_lshr_b32 %s, s2, 2' % s(sH)); A('s_and_b32 %s, %s, 60' % (s(sH), s(sH))); A('s_lshr_b64 s[%d:%d], s[%d:%d], %s' % (sN0, sN1, sN0, sN1, s(sH)))
            A('s_and_b32 %s, %s, 15' % (s(sH), s(sN0))); A('s_and_b32 %s, %s, 1' % (s(sT2), s(sSLOT)))
        else: A('s_and_b32 %s, %s, 15' % (s(sH), s(sSLOT))); A('s_lshr_b32 %s, %s, 4' % (s(sT2), s(sSLOT)))
        A('s_bitcmp0_b32 s2, 2'); A('s_cselect_b32 %s, L_AOFF, 0' % s(sB_)); A('s_lshl3_add_u32 %s, %s, %s' % (s(sB_), s(sSLOT), s(sB_)))
        A('v_lshrrev_b32 %s, 5, v0' % v(vT)); A('s_getpc_b64 s[%d:%d]' % (sT0, sT1))
        A('v_add_lshl_u32 %s, %s, %s, 7' % (v(vT), v(vT), s(sB_)))
        L.append(('global_load_dword %s, %s, s[%d:%d]' % (v(vDUM), v(vT), sT0, sT1), 'pref'))
        A('s_and_b32 %s, s2, 3' % s(sRB)); A('s_lshl1_add_u32 %s, %s, %s' % (s(sRB), s(sRB), s(sT2))); A('s_lshr_b32 %s, %s, 6' % (s(sW), s(sW)))
        A('s_mul_i32 %s, %s, 3' % (s(sT2), s(sT2))); A('s_add_u32 %s, %s, %s' % (s(sROT), s(sH), s(sT2)))
        A('s_mul_i32 %s, %s, 37' % (s(sB_), s(sROT))); A('s_lshr_b32 %s, %s, 8' % (s(sB_), s(sB_)))
        A('s_mul_i32 %s, %s, 7' % (s(sB_), s(sB_))); A('s_sub_u32 %s, %s, %s' % (s(sROT), s(sROT), s(sB_)))
        A('s_lshl2_add_u32 %s, %s, %s' % (s(sB_), s(sRB), s(sW))); A('s_mul_i32 %s, %s, 57344' % (s(sXB), s(sB_)))
        o0 = self.offs(0); L += o0[:2]
        A('s_lshl_b32 %s, %s, 12' % (s(sM0X), s(sW))); A('s_mov_b32 m0, %s' % s(sM0X))
        A('v_lshrrev_b32 %s, 3, %s' % (v(t0), v(vL))); A('v_mul_u32_u24 %s, 896, %s' % (v(t0), v(t0)))
        A('v_lshrrev_b32 %s, 4, %s' % (v(t1), v(vL))); A('v_and_b32 %s, 7, %s' % (v(t2), v(vL))); A('v_xor_b32 %s, %s, %s' % (v(t2), v(t1), v(t2)))
        A('v_lshl_add_u32 %s, %s, 4, %s' % (v(vXD), v(t2), v(t0))); A('v_xor_b32 %s, 64, %s' % (v(t2), v(vXD)))
        A('v_add_u32 %s, 6144, %s' % (v(vXD + 1), v(t2))); A('v_add_u32 %s, 12288, %s' % (v(vXD + 2), v(vXD))); A('v_add_u32 %s, 18432, %s' % (v(vXD + 3), v(t2)))
        A('s_mov_b32 %s, 1835008' % s(SX + 2)); A('s_mov_b32 %s, 0x20000' % s(SX + 3))
        if c.prost: L.append(('s_memtime s[98:99]', 'nowait'))
        A('s_bitcmp0_b32 s2, 2')
        A('@waitlgkm_all')
        if c.prost: A('v_writelane_b32 %s, s98, 33' % v(vST)); A('v_writelane_b32 %s, s96, 32' % v(vST))
        if c.leak == 13: L += self.stamp(13); A('s_bitcmp0_b32 s2, 2')
        if c.stamps: A('v_writelane_b32 %s, s100, 0' % v(vST)); L += self.stamp(13); A('s_bitcmp0_b32 s2, 2')
        sel = lambda srd, pa, pb: ['s_cselect_b32 %s, %s, %s' % (s(srd + k), s(pa + k), s(pb + k)) for k in range(2)]
        L += sel(SX, sAX, sBX) + self.dma_x(0)[1:]
        if c.prost == 2: L.append(('s_memtime s[98:99]', 'nowait'))
        L += sel(SW, sAW, sBW) + sel(SWO, sAWO, sBWO); A('s_cselect_b32 %s, 0, 25088' % s(SPHI + 2))
        A('s_sub_u32 %s, %s, 4096' % (s(SW), s(SW))); A('s_subb_u32 %s, %s, 0' % (s(SW + 1), s(SW + 1)))
        A('s_mov_b32 %s, %d' % (s(SW + 2), 1204224 + 4096)); A('s_mov_b32 %s, %s' % (s(SW + 3), s(SX + 3)))
        A('v_lshrrev_b32 %s, 2, %s' % (v(t0), v(vL))); A('v_mul_u32_u24 %s, 2688, %s' % (v(t0), v(t0)))
        A('v_and_b32 %s, 3, %s' % (v(t2), v(vL))); A('v_lshl_add_u32 %s, %s, 4, %s' % (v(vWDq), v(t2), v(t0))); A('v_add_u32 %s, 896, %s' % (v(vWD), v(vWDq)))
        A('s_cmp_eq_u32 %s, 15' % s(sH)); A('s_cselect_b32 %s, 8, 0' % s(sSH))
        A('s_mul_i32 %s, %s, 56' % (s(sC_), s(sH))); A('s_sub_u32 %s, %s, %s' % (s(sC_), s(sC_), s(sSH)))
        A('s_mul_i32 %s, %s, %d' % (s(sD_), s(sW), 16 * 2688)); A('s_add_u32 %s, %s, %s' % (s(sWB), s(sC_), s(sD_)))
        A('s_mul_i32 %s, %s, 7168' % (s(sM0K), s(sW)))
        L += o0[2:5] + self.dma_w(0, 1, L_WK, 'wk0')
        if c.prost == 2: L.append(('s_memtime s[4:5]', 'nowait'))
        L += o0[5:] + self.offs(1) + self.dma_w(1, 1, L_WK, 'wk1', False)
        A('s_bfe_u32 %s, s2, 0x10002' % s(sBR)); A('s_lshl_b32 %s, %s, 10' % (s(sM0W), s(sW)))
        for srd, n in ((SWO, 401408), (SWS, WS_BYTES), (SOUT, 3670016)):
            A('s_mov_b32 %s, %d' % (s(srd + 2), n)); A('s_mov_b32 %s, 0x20000' % s(srd + 3))
        A('s_mov_b32 %s, %s' % (s(SPHI), s(sPHI))); A('s_mov_b32 %s, %s' % (s(SPHI + 1), s(sPHI + 1))); A('s_mov_b32 %s, 0x20000' % s(SPHI + 3))
        A('v_lshlrev_b32 %s, 4, %s' % (v(vL16), v(vL)))
        A('s_cmp_ge_u32 %s, 2' % s(sW)); A('s_cselect_b32 %s, 0x%x, %s' % (s(sA), OOB, s(sM0W))); A('v_add_u32 %s, %s, %s' % (v(t0), s(sA), v(vL16)))
        A('s_mul_i32 %s, %s, 1568' % (s(sT2), s(sH))); A('s_add_u32 m0, %s, %d' % (s(sM0W), L_MISC))
        L.append(('buffer_load_dwordx4 %s, s[%d:%d], %s offen lds' % (v(t0), SPHI, SPHI + 3, s(sT2)), 'phi'))
        L += self.dma_x(1)
        if c.prost == 2: L.append(('s_memtime s[6:7]', 'nowait'))
        if c.ws_base: A('s_add_u32 %s, %s, %d' % (s(sWSP), s(sWSP), c.ws_base)); A('s_addc_u32 %s, %s, 0' % (s(sWSP + 1), s(sWSP + 1)))
        for (srd, p) in ((SWS, sWSP), (SOUT, sOUT)):
            A('s_mov_b32 %s, %s' % (s(srd), s(p))); A('s_mov_b32 %s, %s' % (s(srd + 1), s(p + 1)))
        if c.tlb:
            A('s_lshl_b32 %s, %s, 21' % (s(sA), s(sBR))); A('s_add_u32 %s, %s, %d' % (s(sA), s(sA), WS_O)); A('s_mul_i32 %s, %s, %d' % (s(sB_), s(sRB), 256 * 1792))
            for base, off in ((sWSP, '0x2000'), (sWSP, s(sA)), (sOUT, s(sB_)), (SWO, '0'), (sDBG, '0x80')):
                L.append(('s_load_dword s92, s[%d:%d], %s' % (base, base + 1, off), 'nowait'))
        if 'x' in c.spre:
            A('s_lshl2_add_u32 %s, %s, %s' % (s(sA), s(sSLOT), s(sW))); A('s_lshr_b32 %s, %s, 4' % (s(sB_), s(sA))); A('s_and_b32 %s, s2, 3' % s(sC_))
            A('s_lshl3_add_u32 %s, %s, %s' % (s(sB_), s(sC_), s(sB_))); A('s_lshl_b32 %s, %s, 5' % (s(sB_), s(sB_))); A('s_and_b32 %s, %s, 15' % (s(sA), s(sA)))
            A('s_add_u32 %s, %s, %s' % (s(sA), s(sA), s(sB_))); A('s_add_u32 %s, %s, 16' % (s(sA), s(sA))); A('s_mul_i32 %s, %s, 1792' % (s(sA), s(sA)))
            A('s_add_u32 %s, %s, %s' % (s(sN0), s(SX), s(sA))); A('s_addc_u32 %s, %s, 0' % (s(sN1), s(SX + 1)))
            for j in range(14): L.append(('s_load_dword s92, s[%d:%d], 0x%x' % (sN0, sN1, 128 * j), 'nowait'))
        if 'w' in c.spre:
            A('s_lshl_b32 %s, %s, 4' % (s(sA), s(sRB))); A('s_add_u32 %s, %s, %s' % (s(sA), s(sA), s(sH))); A('s_lshl2_add_u32 %s, %s, %s' % (s(sA), s(sA), s(sW)))
            A('s_min_u32 %s, %s, 447' % (s(sA), s(sA))); A('s_mul_i32 %s, %s, 2688' % (s(sA), s(sA)))
            A('s_add_u32 %s, %s, %s' % (s(sHI), s(SW), s(sA))); A('s_addc_u32 %s, %s, 0' % (s(sHI + 1), s(SW + 1)))
            for j in list(range(14, 21)) + list(range(7)): L.append(('s_load_dword s92, s[%d:%d], 0x%x' % (sHI, sHI + 1, 4096 + 128 * j), 'nowait'))
        A('v_mov_b32 %s, 0' % v(vZ))
        if not c.late_nonce and not c.own_nonce:
            A('s_or_b32 %s, s2, %s' % (s(sT2), s(sW))); A('s_cmp_eq_u32 %s, 0' % s(sT2)); A('s_cbranch_scc1 L_mknonce')
            A('L_nononce:')
        if c.prost == 2: L += ['@waitlgkm_all', 'v_writelane_b32 %s, s98, 33' % v(vST), 'v_writelane_b32 %s, s4, 34' % v(vST), 'v_writelane_b32 %s, s6, 35' % v(vST)]
        self.glue(L)
        return L

    def setup(self):
        c = self.cfg; L = []; A = L.append
        t0, t1, t2 = vT2, vT2 + 1, vT2 + 2
        A('v_add_u32 %s, 1792, %s' % (v(vWDv), v(vWDq)))
        A('s_mov_b32 %s, 0' % s(sSPIN))
        A('s_getreg_b32 %s, hwreg(HW_REG_XCC_ID, 0, 4)' % s(sXCC))
        m, hi, t3, t4 = vT2 + 3, vT2 + 4, vT2 + 5, vT2 + 6
        A('s_mul_i32 %s, %s, 98' % (s(sA), s(sSLOT))); A('s_mul_i32 %s, %s, 25' % (s(sB_), s(sW))); A('s_add_u32 %s, %s, %s' % (s(sA), s(sA), s(sB_)))
        A('v_min_u32 %s, 24, %s' % (v(t0), v(vL))); A('v_add_u32 %s, %s, %s' % (v(t0), s(sA), v(t0))); A('v_min_u32 %s, 3135, %s' % (v(t0), v(t0)))
        A('v_lshlrev_b32 %s, 7, %s' % (v(vTCO), v(t0)))
        A('v_and_b32 %s, 31, %s' % (v(m), v(vL))); A('v_lshrrev_b32 %s, 5, %s' % (v(hi), v(vL)))
        A('v_bfe_u32 %s, %s, 1, 3' % (v(t1), v(m))); A('v_xor_b32 %s, %s, %s' % (v(t1), v(t1), v(hi)))
        A('v_lshl_add_u32 %s, %s, 7, %s' % (v(t2), v(m), s(sM0X)))
        for ks in range(4):
            A('v_xor_b32 %s, %d, %s' % (v(t3), 2 * ks, v(t1))); A('v_lshl_add_u32 %s, %s, 4, %s' % (v(vXR + ks), v(t3), v(t2)))
            A('v_add_u32 %s, 0x10000, %s' % (v(vXR2 + ks), v(vXR + ks)))
        A('v_bfe_u32 %s, %s, 2, 2' % (v(t1), v(vL))); A('v_lshlrev_b32 %s, 6, %s' % (v(t2), v(t1)))
        A('v_lshl_add_u32 %s, %s, 9, %s' % (v(t2), v(hi), v(t2)))
        A('v_bfe_u32 %s, %s, 4, 1' % (v(t3), v(vL))); A('v_and_b32 %s, 3, %s' % (v(t4), v(vL)))
        A('v_lshlrev_b32 %s, 3, %s' % (v(t4), v(t4))); A('v_lshl_add_u32 %s, %s, 5, %s' % (v(t4), v(t3), v(t4)))
        A('v_add3_u32 %s, %s, %s, %s' % (v(vWRq), v(t2), v(t4), s(sSH)))
        A('v_add_u32 %s, %d, %s' % (v(vWRk), L_WK, v(vWRq)))
        A('v_xor_b32 %s, %s, %s' % (v(t3), s(sW), v(t1))); A('v_lshl_add_u32 %s, %s, 6, %s' % (v(t4), v(t3), v(t4)))
        A('v_lshl_add_u32 %s, %s, 8, %s' % (v(t4), v(t1), v(t4))); A('v_lshrrev_b32 %s, 4, %s' % (v(t3), v(vL))); A('v_lshl_add_u32 %s, %s, 11, %s' % (v(t4), v(t3), v(t4)))
        A('v_add_u32 %s, %d, %s' % (v(vWO0), L_WO, v(t4)))
        A('s_and_b32 %s, %s, 1' % (s(sA), s(sW))); A('s_lshl_b32 %s, %s, 4' % (s(sA), s(sA))); A('v_xor_b32 %s, %s, %s' % (v(t4), s(sA), v(m)))
        A('s_bitcmp1_b32 %s, 1' % s(sW)); A('s_cselect_b32 %s, 0x80008000, 0' % s(sSGN))
        A('v_lshrrev_b32 %s, 3, %s' % (v(t0), v(t4))); A('v_and_b32 %s, 3, %s' % (v(t1), v(t4)))
        A('v_lshl_add_u32 %s, %s, 2, %s' % (v(t0), v(t0), v(t1)))
        A('v_lshrrev_b32 %s, 4, %s' % (v(t1), v(t4))); A('v_sub_u32 %s, %s, %s' % (v(t0), v(t0), v(t1)))
        A('v_bfe_u32 %s, %s, 2, 1' % (v(t1), v(m))); A('v_mad_u32_u24 %s, %s, 14, %s' % (v(t0), v(t1), v(t0)))
        A('v_and_b32 %s, 11, %s' % (v(t1), v(m))); A('v_cmp_eq_u32 vcc, 11, %s' % v(t1))
        A('v_mov_b32 %s, %d' % (v(t2), L_MISC + 2048))
        A('v_mul_u32_u24 %s, 224, %s' % (v(t3), v(hi))); A('v_lshl_add_u32 %s, %s, 1, %s' % (v(t3), v(t0), v(t3))); A('v_add_u32 %s, %d, %s' % (v(t3), L_MISC, v(t3)))
        A('v_cndmask_b32_e64 %s, %s, %s, vcc' % (v(vT2 + 12), v(t3), v(t2)))
        A('v_cndmask_b32_e64 %s, %s, 63, vcc' % (v(vT2 + 11), v(t0)))
        A('v_cmp_lt_u32_e64 s[%d:%d], 31, %s' % (sHI, sHI + 1, v(vL)))
        A('v_cmp_eq_u32_e64 s[%d:%d], 28, %s' % (sE28, sE28 + 1, v(m)))
        A('v_cndmask_b32_e64 %s, %s, %s, s[%d:%d]' % (v(vT2 + 13), v(vT2 + 12), v(t2), sHI, sHI + 1))
        return L

    def help(self):
        c = self.cfg; L = []; A = L.append
        t0, t1, t2 = vT2 + 8, vT2 + 9, vT2 + 10
        nh = 10 if c.help_plain else 16
        if c.help_plain: A('s_lshr_b32 %s, 0x2a54, %s' % (s(sA), s(sH))); A('s_bitcmp1_b32 %s, 0' % s(sA)); A('s_cbranch_scc1 L_helped')
        if c.help_plain:
            A('s_bfm_b32 %s, %s, 0' % (s(sC_), s(sH))); A('s_and_b32 %s, %s, 0xd5ab' % (s(sC_), s(sC_))); A('s_bcnt1_i32_b32 %s, %s' % (s(sC_), s(sC_)))
        else: A('s_mov_b32 %s, %s' % (s(sC_), s(sH)))
        A('s_mul_i32 %s, %s, %d' % (s(sA), s(sRB), nh)); A('s_add_u32 %s, %s, %s' % (s(sA), s(sA), s(sC_))); A('s_lshl2_add_u32 %s, %s, %s' % (s(sA), s(sA), s(sW)))
        def index(n, last):
            n = -(-(last + 1) // (32 * nh))
            A('s_mul_i32 %s, %s, %d' % (s(sB_), s(sA), n)); A('v_min_u32 %s, %d, %s' % (v(t0), n - 1, v(vL))); A('v_add_u32 %s, %s, %s' % (v(t0), s(sB_), v(t0)))
            A('v_min_u32 %s, %d, %s' % (v(t0), last, v(t0)))
        if 'x' in c.help:
            index(14, 7167)
            A('v_mul_u32_u24 %s, 9363, %s' % (v(t1), v(t0))); A('v_lshrrev_b32 %s, 21, %s' % (v(t1), v(t1))); A('v_add_u32 %s, 1, %s' % (v(t1), v(t1)))
            A('v_mul_u32_u24 %s, 28672, %s' % (v(t1), v(t1))); A('v_lshl_add_u32 %s, %s, 7, %s' % (v(t1), v(t0), v(t1)))
            A('global_load_dword %s, %s, s[%d:%d]' % (v(vDUM), v(t1), sBX, sBX + 1))
        if 'w' in c.help:
            index(13, 6271)
            A('v_mul_u32_u24 %s, 9363, %s' % (v(t1), v(t0))); A('v_lshrrev_b32 %s, 16, %s' % (v(t1), v(t1))); A('v_add_u32 %s, 1, %s' % (v(t1), v(t1))); A('v_lshrrev_b32 %s, 1, %s' % (v(t1), v(t1)))
            A('v_mul_u32_u24 %s, 896, %s' % (v(t1), v(t1))); A('v_lshl_add_u32 %s, %s, 7, %s' % (v(t1), v(t0), v(t1)))
            A('global_load_dword %s, %s, s[%d:%d]' % (v(vDUM), v(t1), sBW, sBW + 1))
        A('s_and_b32 %s, %s, 1' % (s(sB_), s(sRB))); A('s_mul_i32 %s, %s, %d' % (s(sB_), s(sB_), nh)); A('s_add_u32 %s, %s, %s' % (s(sC_), s(sC_), s(sB_))); A('s_lshl2_add_u32 %s, %s, %s' % (s(sC_), s(sC_), s(sW)))
        def index2(n, last):
            n = -(-(last + 1) // (8 * nh))
            A('s_mul_i32 %s, %s, %d' % (s(sB_), s(sC_), n)); A('v_min_u32 %s, %d, %s' % (v(t0), n - 1, v(vL))); A('v_add_u32 %s, %s, %s' % (v(t0), s(sB_), v(t0)))
            A('v_min_u32 %s, %d, %s' % (v(t0), last, v(t0)))
        if 'X' in c.help:
            index2(14, 1791)
            A('s_and_b32 %s, s2, 3' % s(sB_)); A('s_mul_i32 %s, %s, 1792' % (s(sB_), s(sB_))); A('v_add_u32 %s, %s, %s' % (v(t0), s(sB_), v(t0)))
            A('v_mul_u32_u24 %s, 9363, %s' % (v(t1), v(t0))); A('v_lshrrev_b32 %s, 21, %s' % (v(t1), v(t1))); A('v_add_u32 %s, 1, %s' % (v(t1), v(t1)))
            A('v_mul_u32_u24 %s, 28672, %s' % (v(t1), v(t1))); A('v_lshl_add_u32 %s, %s, 7, %s' % (v(t1), v(t0), v(t1)))
            A('global_load_dword %s, %s, s[%d:%d]' % (v(vDUM), v(t1), sAX, sAX + 1))
        if 'W' in c.help:
            index(13, 6271)
            A('v_mul_u32_u24 %s, 9363, %s' % (v(t1), v(t0))); A('v_lshrrev_b32 %s, 16, %s' % (v(t1), v(t1))); A('v_add_u32 %s, 1, %s' % (v(t1), v(t1))); A('v_lshrrev_b32 %s, 1, %s' % (v(t1), v(t1)))
            A('v_mul_u32_u24 %s, 896, %s' % (v(t1), v(t1))); A('v_lshl_add_u32 %s, %s, 7, %s' % (v(t1), v(t0), v(t1)))
            A('global_load_dword %s, %s, s[%d:%d]' % (v(vDUM), v(t1), sAW, sAW + 1))
        if 'p' in c.help:
            index(32, 16383)
            A('v_lshlrev_b32 %s, 7, %s' % (v(t1), v(t0))); A('v_add_u32 %s, %d, %s' % (v(t1), WS_O + (2 << 20), v(t1)))
            A('global_load_dword %s, %s, s[%d:%d]' % (v(vDUM), v(t1), sWSP, sWSP + 1))
        if 'O' in c.help:
            index(7, 3135)
            A('v_lshlrev_b32 %s, 7, %s' % (v(t1), v(t0)))
            A('global_load_dword %s, %s, s[%d:%d]' % (v(vDUM), v(t1), sAWO, sAWO + 1))
        if 'o' in c.help:
            index(7, 3135)
            A('v_lshlrev_b32 %s, 7, %s' % (v(t1), v(t0)))
            A('global_load_dword %s, %s, s[%d:%d]' % (v(vDUM), v(t1), sBWO, sBWO + 1))
        if c.help_plain: A('L_helped:')
        return L
    def mknonce(self):
        L = ['L_mknonce:', '@assume_idle']; A = L.append
        e0 = 10 if self.cfg.late_nonce else sT0
        if not self.cfg.late_nonce: A('s_load_dwordx2 s[%d:%d], s[%d:%d], 0' % (sT0, sT1, sWSP, sWSP + 1))
        A('@waitlgkm_all')
        A('s_add_u32 %s, %s, 0x9e3679b8' % (s(sT0), s(e0))); A('s_add_u32 %s, %s, 0x85eaca6a' % (s(sT1), s(e0 + 1)))
        for r in (sT0, sT1):
            A('s_or_b32 %s, %s, 0x00010001' % (s(r), s(r))); A('s_and_b32 %s, %s, 0xbfffbfff' % (s(r), s(r)))
        A('v_mov_b32 %s, %s' % (v(vN), s(sT0))); A('v_mov_b32 %s, %s' % (v(vN + 1), s(sT1)))
        A('s_mov_b64 exec, 1')
        A('global_store_dwordx2 %s, %s, s[%d:%d] sc1' % (v(vZ), v(vN, 2), sDBG, sDBG + 1))
        A('global_store_dwordx2 %s, %s, s[%d:%d] sc1' % (v(vZ), v(vN, 2), sWSP, sWSP + 1))
        A('s_mov_b64 exec, -1'); A('s_branch L_nononce')
        return L

    def setup2(self, br):
        m, hi, fp, ofs, ofs2 = vT2 + 3, vT2 + 4, vT2 + 11, vT2 + 12, vT2 + 13
        P0 = []
        for t in range(2):
            for j in range(8):
                d = 16 * t + 8 * (j >> 2) + (j & 3)
                P0.append('ds_read_u16 %s, %s offset:%d' % (v(vP + 8 * t + j), v(ofs2 if (t == 1 and j >= 4) else ofs), d * 56))
        def selector(dst, tgt):
            R = []
            x, y, z = vT2 + 8, vT2 + 9, vT2 + 10
            R.append('v_lshrrev_b32 %s, 3, %s' % (v(x), v(tgt))); R.append('v_bfe_u32 %s, %s, 1, 1' % (v(y), v(tgt)))
            R.append('v_lshl_add_u32 %s, %s, 1, %s' % (v(x), v(x), v(y)))
            R.append('v_and_b32 %s, 1, %s' % (v(y), v(tgt))); R.append('v_lshlrev_b32 %s, 4, %s' % (v(y), v(y)))
            R.append('v_mov_b32 %s, 0x3f80' % v(z)); R.append('v_lshlrev_b32 %s, %s, %s' % (v(z), v(y), v(z)))
            R.append('v_bfe_u32 %s, %s, 2, 1' % (v(y), v(tgt))); R.append('v_cmp_eq_u32 vcc, %s, %s' % (v(y), v(hi)))
            R.append('v_cndmask_b32_e64 %s, 15, %s, vcc' % (v(x), v(x)))
            mk = [sN0, sHI + 0, sPB - 1, sN0]
            for i in range(8):
                r = (sN0, sT0)[i & 1]
                R.append('v_cmp_eq_u32_e64 s[%d:%d], %d, %s' % (r, r + 1, i, v(x)))
                R.append('v_cndmask_b32_e64 %s, 0, %s, s[%d:%d]' % (v(dst + i), v(z), r, r + 1))
            return R
        P1 = selector(vID, m) if br == 'B' else selector(vPH, fp)
        P2 = []
        P2 += ['v_mov_b32 %s, 0x3fb8aa3b' % v(vC),
               'v_bfe_u32 %s, %s, 3, 2' % (v(vT2 + 8), v(vL)), 'v_and_b32 %s, 7, %s' % (v(vPRE), v(vL)), 'v_lshlrev_b32 %s, 7, %s' % (v(vPRE), v(vPRE)), 'v_lshl_add_u32 %s, %s, 14, %s' % (v(vPRE), v(vT2 + 8), v(vPRE)),
               's_lshl_b32 %s, %s, 3' % (s(sGID), s(sBR)), 's_add_u32 %s, %s, %s' % (s(sGID), s(sGID), s(sRB)),
               's_and_b32 %s, %s, 3' % (s(sCB), s(sH)), 's_lshr_b32 %s, %s, 2' % (s(sRQ), s(sH)),
               's_lshl_b32 %s, %s, 4' % (s(sT3), s(sGID)), 's_add_u32 %s, %s, %s' % (s(sPB), s(sT3), s(sH)),
               's_lshl2_add_u32 %s, %s, %s' % (s(sT3), s(sGID), s(sW)), 's_lshl_b32 %s, %s, 6' % (s(sT3), s(sT3)), 's_add_u32 %s, %s, %s' % (s(sT3), s(sT3), s(sH)), 's_lshl_b32 %s, %s, 10' % (s(sOBX), s(sT3)),
               's_add_u32 %s, %s, %d' % (s(sOBX), s(sOBX), WS_O),
               's_and_b32 %s, %s, %d' % (s(sOB1), s(sH), self.cfg.tswap), 's_lshl_b32 %s, %s, 15' % (s(sOB1), s(sOB1)), 's_add_u32 %s, %s, %s' % (s(sOB1), s(sOB1), s(sOBX)),
               's_lshl_b32 %s, %s, 9' % (s(sT3), s(sGID)), 's_add_u32 %s, %s, %d' % (s(sT3), s(sT3), WS_FLAG),
               's_lshl_b32 %s, %s, 7' % (s(sFLW), s(sW)), 's_add_u32 %s, %s, %s' % (s(sFLW), s(sFLW), s(sT3)),
               's_lshl_b32 %s, %s, 7' % (s(sFLG), s(sRQ)), 's_add_u32 %s, %s, %s' % (s(sFLG), s(sFLG), s(sT3))]
        A = P2.append; t0, t1, t2 = vT2 + 8, vT2 + 9, vT2 + 10
        A('v_lshrrev_b32 %s, 4, %s' % (v(t0), v(vL))); A('v_bfe_u32 %s, %s, 2, 2' % (v(t1), v(vL))); A('v_xor_b32 %s, %s, %s' % (v(t1), v(t1), v(t0)))
        A('v_mul_u32_u24 %s, 896, %s' % (v(t0), v(t0))); A('v_lshl_add_u32 %s, %s, 6, %s' % (v(t0), v(t1), v(t0)))
        A('v_and_b32 %s, 3, %s' % (v(t2), v(vL))); A('v_lshl_add_u32 %s, %s, 4, %s' % (v(t0), v(t2), v(t0)))
        A('s_cmp_eq_u32 %s, 3' % s(sCB)); A('s_cselect_b32 %s, 1, 3' % s(sT3))
        A('v_cmp_lt_u32 vcc, %s, %s' % (s(sT3), v(t1))); A('v_mov_b32 %s, 0x%x' % (v(t2), OOB))
        A('v_cndmask_b32_e64 %s, %s, %s, vcc' % (v(vWOD), v(t0), v(t2)))
        A('s_lshl_b32 %s, %s, 3' % (s(sRECA), s(sPB))); A('s_add_u32 %s, %s, %d' % (s(sRECA), s(sRECA), WS_XCC))
        A('v_cmp_eq_u32 vcc, 0, %s' % v(vL)); A('v_and_b32 %s, 1, %s' % (v(t0), v(vL))); A('v_and_b32 %s, 2, %s' % (v(t1), v(vL)))
        A('v_cndmask_b32_e64 %s, %s, 0, vcc' % (v(vT), v(t2)))
        A('v_cmp_ne_u32_e64 s[%d:%d], 0, %s' % (sM1, sM1 + 1, v(t0))); A('v_cmp_ne_u32_e64 s[%d:%d], 0, %s' % (sM2, sM2 + 1, v(t1)))
        A('s_lshl1_add_u32 %s, %s, 1' % (s(sSET), s(sBR))); A('s_and_b32 %s, %s, %s' % (s(sSET), s(sSET), s(sW)))
        A('s_lshl_b32 %s, %s, 4' % (s(sT3), s(sBR))); A('s_add_u32 %s, %s, %s' % (s(sT3), s(sT3), s(sH))); A('s_lshl2_add_u32 %s, %s, %s' % (s(sT3), s(sT3), s(sSET)))
        A('s_lshl_b32 %s, %s, 13' % (s(sT3), s(sT3))); A('s_add_u32 %s, %s, %d' % (s(sPL0), s(sT3), WS_PART)); A('s_add_u32 %s, %s, 4096' % (s(sPL1), s(sPL0)))
        A('s_lshl_b32 %s, %s, 10' % (s(sT3), s(sRB))); A('s_add_u32 %s, %s, %s' % (s(sPX), s(sPL0), s(sT3))); A('s_lshl_b32 %s, %s, 10' % (s(sSET), s(sSET)))
        A('s_and_b32 %s, %s, 0xffffff80' % (s(sRECL), s(sRECA))); A('s_add_u32 %s, %s, %d' % (s(sSCR), s(sM0X), L_SCR))
        return P0, P1, P2

    def dma_x(self, i):
        L = ['s_add_u32 m0, %s, %d' % (s(sM0X), (i % 6) * 16384)]
        if i >= 7: L.append('s_add_u32 %s, %s, 28672' % (s(sXO + i - 7), s(sXO + i - 7)))
        for j in range(2 if self.cfg.fake_n2 else 4):
            L.append(('buffer_load_dwordx4 %s, s[%d:%d], %s offen offset:%d %s lds' % (v(vXD + j), SX, SX + 3, s(sXO + i % 7), 1024 * j, self.cfg.xfl), 'x%d' % i))
        return L
    def dma_w(self, i, part, base, tag, m0=True):
        L = ['s_add_u32 m0, %s, %d' % (s(sM0K), base + (i & 4) * 1024)] if m0 else []
        if self.cfg.fake_n2: L.append(('buffer_load_dwordx4 %s, s[%d:%d], %s offen offset:%d %s lds' % (v((vKV + 30, vV + 30, vKV + 31)[part]), SW, SW + 3, s(sWO_ + i), 1024 * (i & 3), self.cfg.wfl), tag))
        return L + [('buffer_load_dwordx4 %s, s[%d:%d], %s offen offset:%d %s lds' % (v((vWDq, vWD, vWDv)[part]), SW, SW + 3, s(sWO_ + i), 1024 * (i & 3), self.cfg.wfl), tag)]
    def xfrag(self, i, ks, tile): return aX + ((i * 4 + ks) * 2 + tile) * 4
    def wread(self, slot, basev, off):
        r = aWR + 4 * (slot % 8)
        return ['ds_read_b64_tr_b16 %s, %s offset:%d' % (a(r + 2 * u, 2), v(basev), off + 256 * u) for u in range(2)]

    def xiter(self, i, extra=()):
        R = []; A = R.append
        ch, tile, sl = i % 7, i // 7, i % 6
        wk = ' ' + self.cfg.wkbar[i] if i in self.cfg.wkbar else ''
        A('@waitvm x%d' % i + wk)
        if wk: A('s_barrier')
        if i == 0: R += self.stamp(1)
        for ks in range(4):
            R += self.wread(4 * i + ks, vWRk, ch * 1024 + ks * 7168)
            R.append(('ds_read_b128 %s, %s offset:%d' % (a(self.xfrag(ch, ks, tile), 4), v((vXR2 if sl >= 4 else vXR) + ks), (sl & 3) * 16384), 'xr%d' % i))
        D = self.cfg.depth
        if i + D < 14:
            if i + D >= 6: A('@waitlgkm xr%d' % (i + D - 6))
            R += self.dma_x(i + D)
        R += self.touches(i)
        R += extra
        for ks in range(4):
            R.append((mfma(vK + 16 * tile, a(aWR + 4 * ((4 * i + ks) % 8), 4), a(self.xfrag(ch, ks, tile), 4), None if (ch == 0 and ks == 0) else vK + 16 * tile), 'kk'))
        return R
    def part1(self, br):
        B = br == 'B'
        P = self.setup2(br)
        R = []
        for i in range(2, 7): R += self.offs(i)
        W = lambda i: self.dma_w(i, 1, L_WK, 'wk%d' % i)
        su = self.setup() + P[2]
        R = su + self.touches('a') + R if 'a' in self.cfg.touch else R
        X = lambda i: self.dma_x(i) if i < self.cfg.depth else []
        late = {}
        for tok in self.cfg.order0.split():
            if '@' in tok:
                tok, at = tok.split('@'); late.setdefault(int(at), []).extend(W(int(tok[1])))
            else: R += W(int(tok[1])) if tok[0] == 'w' else X(int(tok[1]))
        R += ([] if 'a' in self.cfg.touch else su) + P[1]
        pk = []
        for u in range(8): pk += ['v_lshl_or_b32 %s, %s, 16, %s' % (v(vPH + u), v(vP + 2 * u + 1), v(vP + 2 * u)), 'v_xor_b32 %s, %s, %s' % (v(vPH + u), s(sSGN), v(vPH + u))]
        c = self.cfg
        for part, n, at, base, tg in ((2, c.wv_early, c.wv_at, L_WV, 'wv'),):
            for k in range(n): late.setdefault(at - c.depth, []).extend(self.dma_w(k, part, base, '%s%d' % (tg, k), k in (0, 4)))
        L = []
        for i in range(7):
            if i == 2 and c.own_nonce:
                L = [('s_load_dwordx2 s[10:11], s[%d:%d], %d' % (sWSP, sWSP + 1, 128 * B), 'nowait')] + self.sched(R, 'part1a'); R = []
                L += self.glue(['@waitlgkm_all']); R = self.own_nonce(br)
            elif i == 2 and c.late_nonce and not B:
                L = [('s_load_dwordx2 s[10:11], s[%d:%d], 0' % (sWSP, sWSP + 1), 'nowait')] + self.sched(R, 'part1a'); R = []
                L += self.glue(['s_or_b32 %s, s2, %s' % (s(sT2), s(sW)), 's_cmp_eq_u32 %s, 0' % s(sT2), 's_cbranch_scc1 L_mknonce', 'L_nononce:'])
            R += self.xiter(i, late.get(i, []) + (P[0] + pk if (i == 1 and B) else []))
        return L + self.sched(R, 'part1')

    def gemm(self, acc, basev, off, transposed, first_slot, hooks=None, tiles=(0, 1), lead=False, ks=range(28)):
        L = []; hooks = hooks or {}
        for k in ks:
            L += hooks.get(k, [])
            w = a(aWR + 4 * ((first_slot + k) % 8), 4)
            L += self.wread(first_slot + k, basev, off + (k >> 2) * 1024 + (k & 3) * 7168)
            for tile in tiles:
                x = a(self.xfrag(k // 4, k % 4, tile), 4)
                L.append((mfma(acc + 16 * tile, w if transposed else x, x if transposed else w, None if k == 0 else acc + 16 * tile), 'lead' if (lead and tile == 0) else None))
        return L

    def pack(self, r, n=8): return ['v_cvt_pk_bf16_f32 %s, %s, %s' % (v(r + u), v(r + 2 * u), v(r + 2 * u + 1)) for u in range(n)]
    def zero_hi_pads(self, r): return ['v_cndmask_b32_e64 %s, %s, 0, s[%d:%d]' % (v(r + u), v(r + u), sHI, sHI + 1) for u in (6, 7)]

    def softmax(self, p, ep, en, tmp, pk, keep=None):
        L = []; A = L.append
        Z, T, S1, S2 = tmp, tmp + 2, tmp + 4, tmp + 6
        VAL = [0, 1, 2, 3, 4, 5, 6, 8, 9, 10, 11, 12, 13, 14]
        if pk:
            for r in (ep + 7, ep + 15, en + 7, en + 15): A('v_mov_b32 %s, 0' % v(r))
        for (d, sg) in ((Z, ''), (T, '-')):
            A('v_max3_f32 %s, %s%s, %s%s, %s%s' % (v(d), sg, v(p), sg, v(p + 1), sg, v(p + 2)))
            A('v_max3_f32 %s, %s%s, %s%s, %s%s' % (v(d + 1), sg, v(p + 8), sg, v(p + 9), sg, v(p + 10)))
            for (x, y) in ((3, 4), (5, 6)): A('v_max3_f32 %s, %s, %s%s, %s%s' % (v(d), v(d), sg, v(p + x), sg, v(p + y)))
            for (x, y) in ((11, 12), (13, 14)): A('v_max3_f32 %s, %s, %s%s, %s%s' % (v(d + 1), v(d + 1), sg, v(p + x), sg, v(p + y)))
            A('v_max_f32 %s, %s, %s' % (v(d), v(d), v(d + 1)))
        A('v_permlane32_swap_b32 %s, %s' % (v(Z), v(T))); A('v_max_f32 %s, %s, %s' % (v(Z), v(Z), v(T)))
        A('v_mul_f32 %s, %s, %s' % (v(Z), v(vC), v(Z))); A('v_mov_b32 %s, %s' % (v(T), v(Z)))
        A('v_permlane32_swap_b32 %s, %s' % (v(Z), v(T)))
        for (e, z, ng) in ((ep, Z, 0), (en, T, 1)):
            for u in VAL:
                if pk and u not in (6, 14):
                    if u & 1 == 0: A('v_pk_fma_f32 %s, %s, %s, %s op_sel_hi:[1,0,0] neg_lo:[%d,0,1] neg_hi:[%d,0,1]' % (v(e + u, 2), v(p + u, 2), v(vC, 2), v(z, 2), ng, ng))
                else: A('v_fma_f32 %s, %s%s, %s, -%s' % (v(e + u), '-' if ng else '', v(p + u), v(vC), v(z)))
                A('v_exp_f32 %s, %s' % (v(e + u), v(e + u)))
        for (e, S, z) in ((ep, S1, Z), (en, S2, T)):
            if pk:
                A('v_pk_add_f32 %s, %s, %s' % (v(S, 2), v(e, 2), v(e + 2, 2)))
                for u in (4, 6, 8, 10, 12, 14): A('v_pk_add_f32 %s, %s, %s' % (v(S, 2), v(S, 2), v(e + u, 2)))
            else:
                A('v_add_f32 %s, %s, %s' % (v(S), v(e), v(e + 1))); A('v_add_f32 %s, %s, %s' % (v(S + 1), v(e + 8), v(e + 9)))
                for u in range(2, 7):
                    A('v_add_f32 %s, %s, %s' % (v(S), v(S), v(e + u))); A('v_add_f32 %s, %s, %s' % (v(S + 1), v(S + 1), v(e + 8 + u)))
            A('v_add_f32 %s, %s, %s' % (v(S), v(S), v(S + 1)))
        A('v_permlane32_swap_b32 %s, %s' % (v(S1), v(S2))); A('v_add_f32 %s, %s, %s' % (v(S1), v(S1), v(S2)))
        if keep is None: A('v_rcp_f32 %s, %s' % (v(S1), v(S1)))
        A('v_mov_b32 %s, %s' % (v(S2), v(S1))); A('v_permlane32_swap_b32 %s, %s' % (v(S1), v(S2)))
        if keep is not None:
            A('v_rcp_f32 %s, %s' % (v(S2), v(S2))); A('v_mul_f32 %s, 0x358637bd, %s' % (v(keep), v(S1))); A('v_mul_f32 %s, %s, %s' % (v(S2), v(S1), v(S2)))
            L += self.pack(ep)
        for (e, z) in ((ep, S1), (en, S2))[keep is not None:]:
            for u in range(8):
                if pk: A('v_pk_mul_f32 %s, %s, %s op_sel_hi:[1,0]' % (v(e + 2 * u, 2), v(e + 2 * u, 2), v(z, 2)))
                else:
                    for k in range(1 if u in (3, 7) else 2): A('v_mul_f32 %s, %s, %s' % (v(e + 2 * u + k), v(e + 2 * u + k), v(z)))
                A('v_cvt_pk_bf16_f32 %s, %s, %s' % (v(e + u), v(e + 2 * u), '0' if (u in (3, 7) and not pk) else v(e + 2 * u + 1)))
        return L

    def elu1(self, p, e, pads, pk):
        L = []; A = L.append
        for u in range(0, 16, 2):
            n = 1 if (pads and u in (6, 14)) else 2
            if pk and n == 2: A('v_pk_mul_f32 %s, %s, %s op_sel_hi:[1,0]' % (v(e + u, 2), v(p + u, 2), v(vC, 2)))
            for k in range(n):
                if not (pk and n == 2): A('v_mul_f32 %s, %s, %s' % (v(e + u + k), v(vC), v(p + u + k)))
                A('v_exp_f32_e64 %s, %s clamp' % (v(e + u + k), v(e + u + k)))
                A('v_max_f32 %s, 0x358637bd, %s' % (v(p + u + k), v(p + u + k)))
                if not (pk and n == 2): A('v_add_f32 %s, %s, %s' % (v(e + u + k), v(e + u + k), v(p + u + k)))
            if pk and n == 2: A('v_pk_add_f32 %s, %s, %s' % (v(e + u, 2), v(e + u, 2), v(p + u, 2)))
            A('v_cvt_pk_bf16_f32 %s, %s, %s' % (v(e + u // 2), v(e + u), v(e + u + 1) if n == 2 else '0'))
        return L

    def own_nonce(self, br):
        L = []; A = L.append
        t0, t1 = vT2 + 14, vT2 + 15
        A('s_add_u32 %s, s10, 0x9e3679b8' % s(sN0)); A('s_add_u32 %s, s11, 0x85eaca6a' % s(sN1))
        for r in (sN0, sN1):
            A('s_or_b32 %s, %s, 0x00010001' % (s(r), s(r))); A('s_and_b32 %s, %s, 0xbfffbfff' % (s(r), s(r)))
        A('v_mov_b32 %s, %s' % (v(vN), s(sN0))); A('v_mov_b32 %s, %s' % (v(vN + 1), s(sN1)))
        A('v_cndmask_b32_e64 %s, %s, %s, s[%d:%d]' % (v(t0), v(vN), v(vN + 1), sM2, sM2 + 1))
        A('v_lshlrev_b32 %s, 16, %s' % (v(t1), v(t0))); A('v_and_b32 %s, 0xffff0000, %s' % (v(t0), v(t0)))
        A('v_cndmask_b32_e64 %s, %s, %s, s[%d:%d]' % (v(vTAG), v(t1), v(t0), sM1, sM1 + 1))
        if br == 'A':
            A('s_cmp_ge_u32 %s, 2' % s(sW)); A('s_cselect_b32 s10, 0, -1'); A('v_and_b32 %s, s10, %s' % (v(vTAG), v(vTAG)))
        A('s_and_b32 s11, %s, 0xfffffff0' % s(sN1)); A('s_or_b32 %s, %s, s11' % (s(sREC), s(sXCC)))
        A('v_mov_b32 %s, %s' % (v(vN + 1), s(sREC)))
        return L
    def nonce_load(self): return [('global_load_dwordx2 %s, %s, s[%d:%d] sc1' % (v(vN, 2), v(vZ), sDBG, sDBG + 1), 'nonce')]
    def use_nonce(self, br):
        L = []; A = L.append
        t0, t1 = vXR2, vXR2 + 1
        A('v_readfirstlane_b32 %s, %s' % (s(sN0), v(vN))); A('v_readfirstlane_b32 %s, %s' % (s(sN1), v(vN + 1)))
        A('v_cndmask_b32_e64 %s, %s, %s, s[%d:%d]' % (v(t0), v(vN), v(vN + 1), sM2, sM2 + 1))
        A('v_lshlrev_b32 %s, 16, %s' % (v(t1), v(t0))); A('v_and_b32 %s, 0xffff0000, %s' % (v(t0), v(t0)))
        A('v_cndmask_b32_e64 %s, %s, %s, s[%d:%d]' % (v(vTAG), v(t1), v(t0), sM1, sM1 + 1))
        if br == 'A': A('v_and_b32 %s, %s, %s' % (v(vTAG), s(sXB), v(vTAG)))
        A('s_and_b32 %s, %s, 0xfffffff0' % (s(sROT), s(sN1))); A('s_or_b32 %s, %s, %s' % (s(sREC), s(sXCC), s(sROT)))
        A('v_mov_b32 %s, %s' % (v(vN + 1), s(sREC)))
        L.append(('buffer_store_dwordx2 %s, %s, s[%d:%d], %s offen sc1' % (v(vN, 2), v(vT), SWS, SWS + 3, s(sRECA)), 'side'))
        return L
    def nonce_chk(self, br):
        return ['L_nonce_chk%s:' % br, 's_min_u32 %s, %s, %s' % (s(sT2), s(sN0), s(sN1)), 's_cmp_eq_u32 %s, 0' % s(sT2), 's_cbranch_scc1 L_nonce_retry%s' % br]
    def nonce_retry(self, br):
        return ['L_nonce_retry%s:' % br, '@assume_idle', 's_sleep 1'] + SPIN + self.nonce_load() + self.use_nonce(br) + ['s_branch L_nonce_chk%s' % br]
    def side_loads(self):
        c = self.cfg
        L = []
        L += self.touches('p2')
        if not any('p' in x for x in c.touch.values()): L.append(('buffer_load_dword %s, %s, s[%d:%d], %s offen %s' % (v(vDUM), v(vPRE), SWS, SWS + 3, s(sOBX), c.prefl), 'pre'))
        L += [('buffer_load_dword %s, %s, s[%d:%d], %s offen %s' % (v(vDUM), v(vZ), SWS, SWS + 3, s(sFLW), c.prefl), 'side')]
        if c.pre_part: L += [('buffer_load_dword %s, %s, s[%d:%d], %s offen sc1' % (v(vDUM), v(vL16), SWS, SWS + 3, s(sPX)), 'touch8')]
        return L

    def middle(self, br):
        c = self.cfg; B = br == 'B'; NT = 2 if B else 1
        L = []; A = L.append
        R = []; A = R.append
        if not B:
            if not c.own_nonce: A('s_cmp_ge_u32 %s, 2' % s(sW)); A('s_cselect_b32 %s, 0, -1' % s(sXB))
        tn = lambda tile, sg: (vP if sg == 0 else vK) + 16 * tile
        def featk(tile):
            X = self.pack(vK + 16 * tile) + self.zero_hi_pads(vK + 16 * tile)
            for t in range(2):
                k4 = v(vK + 16 * tile + 4 * t, 4); w4 = v(vPH + 4 * t, 4)
                X.append((mfma(vP + 16 * tile, w4 if B else k4, k4 if B else w4, None if t == 0 else vP + 16 * tile), 'hi'))
            X += self.softmax(vP + 16 * tile, vE + 32 * tile, vE + 32 * tile + 16, vT2 + 8 * tile, c.pk0 and tile == 0) if B else self.elu1(vP + 16 * tile, vE + 32 * tile, False, c.pk0 and tile == 0)
            if B:
                for sg in range(2):
                    for t in range(2):
                        X.append((mfma(tn(tile, sg), v(vE + 32 * tile + 16 * sg + 4 * t, 4), v(vID + 4 * t, 4), None if t == 0 else tn(tile, sg)), 'hi2' if tile else 'hi3'))
                    X += self.pack(tn(tile, sg))
            return X
        wv = []
        for k in range(c.wv_early, 7): wv += self.dma_w(k, 2, L_WV, 'wv%d' % k, k in (c.wv_early, 4))
        R += featk(0)
        for i in range(7, 14):
            R += self.xiter(i, wv if i == max(7, 13 - c.depth) else ())
            if i - 7 < c.wv_early:
                R += self.gemm(vV, vWRk, L_WV - L_WK, False, 4, {0: ['@waitvm wv%d' % (c.wv_early - 1), 's_barrier']}, ks=range(4 * (i - 7), 4 * (i - 6)))
        if c.stamps and not c.lite: R.append(('s_memtime s[%d:%d]' % (SX + 2, SX + 3), 'nowait'))
        R += featk(1)
        wq = [] if c.own_nonce else self.nonce_load()
        for k in range(c.wq_pre): wq += self.dma_w(k, 0, L_WQ, 'wq%d' % k, k in (0, 4))
        wq += ([] if c.pre_q else self.side_loads()) + (self.use_nonce(br)[-1:] if c.own_nonce else self.use_nonce(br))
        hooks = {}; k0 = c.wv_early
        for k1 in c.wv_bar:
            hooks[4 * k0] = (['@waitlgkm xr13'] if k0 == c.wv_early else []) + ['@waitvm wv%d' % (k1 - 1), 's_barrier'] + (wq if k0 == max(c.wq_at, c.wv_early) else []); k0 = k1
        R += self.gemm(vV, vWRk, L_WV - L_WK, False, 0, hooks, lead=True, ks=range(4 * c.wv_early, 28))
        A('v_mov_b32 %s, 0x3f803f80' % v(vXR2 + 3))
        for tile in range(2):
            R += self.pack(vV + 16 * tile)
            for u in range(8): A('v_cndmask_b32_e64 %s, %s, %s, s[%d:%d]' % (v(vV + 16 * tile + u), v(vV + 16 * tile + u), v(vXR2 + 3), sE28, sE28 + 1))
        for tile in range(2):
            for sg in reversed(range(NT)):
                src = tn(tile, sg) if B else vE + 32 * tile
                for t in range(2):
                    A(mfma(vKV + 16 * sg, v(src + 4 * t, 4), v(vV + 16 * tile + 4 * t, 4), None if (tile == 0 and t == 0) else vKV + 16 * sg))
        t0, t1, t2 = vXR, vXR + 1, vXR2 + 2
        A('v_add_u32 %s, %s, %s' % (v(t0), s(sSCR), v(vL16)))
        r16 = B and c.red16
        if r16:
            for d in (2, 3, 1): R += self.pack(vKV + 8 * d, 4) + ['ds_write_b128 %s, %s offset:%d' % (v(t0), v(vKV + 8 * d, 4), 1024 * d)]
        for q in (() if r16 else (4, 5, 6, 7, 2, 3) if B else range(4)): A('ds_write_b128 %s, %s offset:%d' % (v(t0), v(vKV + 4 * q, 4), 16384 * (q >> 2) + 1024 * (q & 3)))
        for d in range(1, 4): A('v_xor_b32 %s, %d, %s' % (v(t0 + d), 4096 * d, v(t0)))
        if not B:
            A('s_cmp_ge_u32 %s, 2' % s(sW)); A('s_cselect_b32 %s, 0x%x, 0' % (s(sA), OOB)); A('v_add_u32 %s, %s, %s' % (v(t2), s(sA), v(vL16)))
        A('v_mov_b32 %s, 0xffff' % v(vXD))
        if c.thr: L += ['s_lshr_b32 %s, 0x2a54, %s' % (s(sT2), s(sH)), 's_bitcmp0_b32 %s, 0' % s(sT2), 's_cselect_b64 vcc, -1, 0']
        L += self.throttle(self.sched(R, 'phase2' + br, boost={'hi': c.b_hi, 'kk': c.b_kk, 'lead': c.b_lead, 'hi2': c.hi2, 'hi3': c.hi2 + c.t0boost}, tight=c.p2_tight), br)
        if c.stamps and not c.lite: L += ['@waitlgkm_all', 'v_writelane_b32 %s, %s, 2' % (v(vST), s(SX + 2))]
        L += self.stamp(3)
        g0 = len(L)
        L += ['s_getpc_b64 s[%d:%d]' % (sTAB, sTAB + 1), 'L_pc%s:' % br, 's_add_u32 %s, %s, L_tab - L_pc%s' % (s(sTAB), s(sTAB), br), 's_addc_u32 %s, %s, 0' % (s(sTAB + 1), s(sTAB + 1))]
        if not c.own_nonce: L += self.nonce_chk(br)
        mg = c.merge_q
        X = []; A = X.append
        A('@waitlgkm_all')
        if mg: A('@waitvm wq%d' % (mg - 1))
        A('s_barrier')
        L += X; self.glue(L[g0:]); X = []; A = X.append
        for d in range(1, 4):
            if r16:
                X.append(('ds_read_b128 %s, %s offset:%d' % (v(vV + 8 * d, 4), v(t0 + d), 1024 * d), 'exr'))
                X.append((mfma(vKV, v(vID, 4), v(vV + 8 * d, 4), vKV), 'exm'))
        for d in (() if r16 else range(1, 4)):
            for hf in range(2): X.append(('ds_read_b128 %s, %s offset:%d' % (v(vV + 8 * d + 4 * hf, 4), v(t0 + d), (16384 * (d >> 1) if B else 0) + 2048 * (d & 1) + 1024 * hf), 'exr'))
        for d in (() if r16 else range(1, 4)):
            if mg:
                for u in range(7): A('v_add_f32 %s, %s, %s' % (v(vKV + u), v(vKV + u), v(vV + 8 * d + u)))
            else:
                for u in range(0, 8, 2): A('v_pk_add_f32 %s, %s, %s' % (v(vKV + u, 2), v(vKV + u, 2), v(vV + 8 * d + u, 2)))
        X += self.pack(vKV, 4)
        A('v_bfi_b32 %s, %s, %s, %s' % (v(vKV + 3), v(vXD), v(vKV + 3), v(vTAG)))
        X.append(('buffer_store_dwordx4 %s, %s, s[%d:%d], %s offen sc1' % (v(vKV, 4), v(vL16 if B else t2), SWS, SWS + 3, s(sPX)), 'pst'))
        tm = c.q_tm and B
        X2 = ['@waitlgkm exr', '@waitvm wq6', 's_barrier']
        if mg: R = X + self.gemm(vK, vWRq, L_WQ, True, 4, tiles=(0,) if tm else (0, 1), ks=range(4 * mg)) + X2
        else:
            L += self.glue(X + self.stamp(4) + X2); R = []
        A = R.append
        t0, t1, t2 = vXR, vXR + 1, vXR + 2
        A('v_add_u32 %s, 2560, %s' % (v(vXD + 1), v(vWOD))); A('v_xor_b32 %s, 32, %s' % (v(vXD + 3), v(vWOD)))
        A('v_add_u32 %s, 5120, %s' % (v(vXD + 2), v(vXD + 3))); A('v_add_u32 %s, 7680, %s' % (v(vXD + 3), v(vXD + 3)))
        A('s_mul_i32 %s, %s, 14336' % (s(sWOS), s(sW))); A('s_lshl_b32 %s, %s, 8' % (s(sA), s(sCB))); A('s_add_u32 %s, %s, %s' % (s(sWOS), s(sWOS), s(sA)))
        A('v_and_b32 %s, 15, %s' % (v(vXR + 3), v(vL))); A('v_lshlrev_b32 %s, 3, %s' % (v(vXR + 3), v(vXR + 3)))
        A('v_lshrrev_b32 %s, 4, %s' % (v(t1), v(vL))); A('v_lshlrev_b32 %s, 1, %s' % (v(t0), v(vXR + 3))); A('v_lshl_add_u32 %s, %s, 10, %s' % (v(t2), v(t1), v(t0)))
        A('s_add_u32 %s, %s, %d' % (s(sB_), s(sSET if B else sM0W), L_MISC))
        A('v_lshl_add_u32 %s, %s, 3, %s' % (v(vXR2 + 3), v(t1), v(t0))); A('v_add_u32 %s, %s, %s' % (v(t0), s(sB_), v(vXR2 + 3))); A('v_add_u32 %s, %d, %s' % (v(vXR2 + 3), L_MISC + 4096, v(vXR2 + 3)))
        A('v_cndmask_b32_e64 %s, %s, %s, s[%d:%d]' % (v(vXR2 + 3), v(t0), v(vXR2 + 3), sHI, sHI + 1))
        if B: A('v_mov_b32 %s, %s' % (v(t0), v(t2)))
        else: A('v_sub_u32 %s, %s, %s' % (v(t0), v(vXR2 + 2), v(vL16))); A('v_add_u32 %s, %s, %s' % (v(t0), v(t0), v(t2)))
        A('v_and_b32 %s, 1, %s' % (v(t1), v(vL))); A('v_lshlrev_b32 %s, 4, %s' % (v(t1), v(t1))); A('v_mov_b32 %s, 0x3f80' % v(t2)); A('v_lshlrev_b32 %s, %s, %s' % (v(t2), v(t1), v(t2)))
        A('v_and_b32 %s, 15, %s' % (v(t1), v(vL))); A('v_cmp_eq_u32 vcc, 7, %s' % v(t1)); A('v_cndmask_b32_e64 %s, %s, 0, vcc' % (v(t2), v(t2))); A('v_lshrrev_b32 %s, 1, %s' % (v(t1), v(t1)))
        for i in range(4):
            r = (sT0, sFAR)[i & 1]
            A('v_cmp_eq_u32_e64 s[%d:%d], %d, %s' % (r, r + 1, i, v(t1))); A('v_cndmask_b32_e64 %s, 0, %s, s[%d:%d]' % (v(vID + i), v(t2), r, r + 1))
        wo_block = self.wo_block
        if c.pre_q: R += self.side_loads()
        for m in range(c.wo_before): R += wo_block(m)
        itab = len(R)
        npart = len(R); R += self.part_loads(br)
        for m in range(c.wo_before, c.wo_mid): R += wo_block(m)
        if c.hint:
            for u in (4, 6): A('v_mov_b64 %s, -1' % v(vV + u, 2))
            for j in range(4):
                if j: A('s_add_u32 %s, %s, %d' % (s(sT2), s(sOBX), 16384 * j))
                R.append(('buffer_store_dwordx4 %s, %s, s[%d:%d], %s offen' % (v(vV + 4, 4), v(vL16), SWS, SWS + 3, s(sT2 if j else sOBX)), 'clr'))
        tabs = self.table_loads()
        if not tm: R += self.gemm(vK, vWRq, L_WQ, True, 4, ks=range(4 * mg, 28))
        for tile in range(2):
            if tm: R += self.gemm(vK, vWRq, L_WQ, True, 4 + 28 * tile, tiles=(tile,), ks=range(0 if tile else 4 * mg, 28))
            R += self.pack(vK + 16 * tile) + self.zero_hi_pads(vK + 16 * tile)
            for t in range(2):
                R.append((mfma(vP + 16 * tile, v(vPH + 4 * t, 4), v(vK + 16 * tile + 4 * t, 4), None if t == 0 else vP + 16 * tile), 'hi' if tile == 0 else None))
        for tile in range(2):
            pk = not (tm and tile == 0)
            R += self.softmax(vP + 16 * tile, vE + 32 * tile, vE + 32 * tile + 16, vT2 + 8 * tile, pk, vK + 16 * tile + 15 if (c.qfold and pk) else None) if B else self.elu1(vP + 16 * tile, vE + 32 * tile, True, True)
        vIM = [vWD, vWDq, vXR2 + 2, vWRq]
        R += ['s_add_u32 %s, %s, %d' % (s(sB_), s(sSET), L_MISC), 'v_add_u32 %s, %s, %s' % (v(vIM[0]), s(sB_), v(vL16))]
        for q in range(1, 2 * NT): R.append('v_xor_b32 %s, %d, %s' % (v(vIM[q]), 1024 * q, v(vIM[0])))
        if c.tab_acc:
            pl = R[itab:itab + 9]; del R[itab:itab + 9]
            j = max(i for i, x in enumerate(R) if 'a[124:127]' in (x[0] if isinstance(x, tuple) else x)) + 1
            R[j:j] = tabs + pl; npart = j + len(tabs); tabs = []; late0 = []
        elif c.tab_late: late0 = tabs; tabs = []
        else: late0 = []
        L += self.sched(R + tabs, 'q' + br, release={npart: (c.rel_part if B else c.rel_partA) + (330 if mg else 0)}, boost={'hi': 4000, 'pst': 30000, 'exr': 40000}, tight=c.q_tight)
        L += self.stamp(6)
        A = L.append
        A('@waitvm part'); self.glue(L[-1:])
        L += self.stamp(5)
        A('L_part_chk%s:' % br)
        R = []; A = R.append
        G0 = vKV
        for p in range(8): A('v_mfma_f32_16x16x32_bf16 %s, %s, %s, %s' % (v(vV + 4 * (p & 3), 4), v(vID, 4), v(G0 + 4 * p, 4), v(vV + 4 * (p & 3), 4) if p >= 4 else '0'))
        x, z, y = vT2, vT2 + 1, vT2 + 12
        A('v_max3_u32 %s, %s, %s, %s' % (v(x), v(G0 + 3), v(G0 + 7), v(G0 + 11))); A('v_min3_u32 %s, %s, %s, %s' % (v(y), v(G0 + 3), v(G0 + 7), v(G0 + 11)))
        A('v_max3_u32 %s, %s, %s, %s' % (v(x), v(x), v(G0 + 15), v(G0 + 19))); A('v_min3_u32 %s, %s, %s, %s' % (v(y), v(y), v(G0 + 15), v(G0 + 19)))
        A('v_max3_u32 %s, %s, %s, %s' % (v(x), v(x), v(G0 + 23), v(G0 + 27))); A('v_min3_u32 %s, %s, %s, %s' % (v(y), v(y), v(G0 + 23), v(G0 + 27)))
        A('v_max_u32 %s, %s, %s' % (v(x), v(x), v(G0 + 31))); A('v_min_u32 %s, %s, %s' % (v(y), v(y), v(G0 + 31)))
        A('v_xor_b32 %s, %s, %s' % (v(x), v(x), v(vTAG))); A('v_xor_b32 %s, %s, %s' % (v(y), v(y), v(vTAG)))
        A('v_or_b32 %s, %s, %s' % (v(x), v(x), v(y))); A('v_lshrrev_b32 %s, 16, %s' % (v(x), v(x)))
        A('v_xor_b32 %s, %s, %s' % (v(y), s(sN0), v(vN))); A('v_xor_b32 %s, %s, %s' % (v(z), s(sREC), v(vN + 1)))
        A('v_cmp_ne_u32_e64 s[%d:%d], 0, %s' % (sFAR, sFAR + 1, v(z)))
        A('v_lshrrev_b32 %s, 4, %s' % (v(z), v(z))); A('v_or3_b32 %s, %s, %s, %s' % (v(x), v(x), v(y), v(z)))
        A('v_cmp_ne_u32 vcc, 0, %s' % v(x))
        L += self.sched(R, 'sum' + br)
        A = L.append
        A('s_cbranch_vccnz L_part_retry%s' % br)
        late = list(late0)
        for m in range(c.wo_mid, c.wo_imp): late += wo_block(m)
        nl = 0 if c.tab_acc else c.late0
        L += late[:nl]
        for q in range(4): L += self.pack(vV + 4 * q, 2)
        for q in range(4): A('ds_write_b64 %s, %s offset:%d' % (v(vXR2 + 3), v(vV + 4 * q, 2), 256 * q))
        A('@waitlgkm_all'); A('s_barrier')
        self.glue(L[-nl - 15:])
        R = []; A = R.append
        R += late[nl:]
        early = self.wo_reads()[:3 + 8 * c.wo_early]
        for q in range(2 * NT): A('ds_read_b128 %s, %s' % (v(vV + 16 + 4 * q, 4), v(vIM[q])))
        for tile in range(2):
            for q in range(2 * NT):
                A(mfma(vP + 16 * tile, v(vV + 16 + 4 * q, 4), v(vE + 32 * tile + 16 * (q >> 1) + 4 * (q & 1), 4), None if q == 0 else vP + 16 * tile))
        for tile in range(2):
            P = vP + 16 * tile; d = vT2 + 4 + 4 * tile
            A('v_mov_b32 %s, %s' % (v(d), v(P + 12))); A('v_permlane32_swap_b32 %s, %s' % (v(P + 12), v(d)))
            A('v_add_f32 %s, %s, %s' % (v(d), v(vK + 16 * tile + 15) if (B and c.qfold) else '0x358637bd', v(d))); A('v_rcp_f32 %s, %s' % (v(d), v(d)))
            for u in range(8):
                if tile: A('v_pk_mul_f32 %s, %s, %s op_sel_hi:[1,0]' % (v(P + 2 * u, 2), v(P + 2 * u, 2), v(d, 2)))
                else:
                    for k in range(2): A('v_mul_f32 %s, %s, %s' % (v(P + 2 * u + k), v(P + 2 * u + k), v(d)))
                A('v_cvt_pk_bf16_f32 %s, %s, %s' % (v(P + u), v(P + 2 * u), v(P + 2 * u + 1)))
        A('v_mov_b32 %s, %s' % (v(vN), s(sN0))); A('v_mov_b32 %s, %s' % (v(vN + 1), s(sN1)))
        A('s_lshl_b32 %s, %s, 3' % (s(sT2), s(sH))); A('s_add_u32 %s, %s, %s' % (s(sC_), s(sFLW), s(sT2))); A('s_xor_b32 %s, %s, 32768' % (s(sOBX), s(sOB1))); A('s_add_u32 %s, %s, 16384' % (s(sA), s(sOB1))); A('s_add_u32 %s, %s, 16384' % (s(sB_), s(sOBX)))
        L += self.sched(R + early, 'o' + br, lowds={id(x) for x in early}, vmlow=True)
        L += self.stamp(7)
        A = L.append
        if c.hint: A('@waitvm clr')
        if c.force_global: A('s_branch L_far')
        A('s_cmp_lg_u64 s[%d:%d], 0' % (sFAR, sFAR + 1)); A('s_cbranch_scc1 L_far')
        return L
    def publish(self, fl):
        c = self.cfg; L = []
        for tile in range(2):
            for t in range(2):
                L.append(('buffer_store_dwordx4 %s, %s, s[%d:%d], %s offen %s' % (v(vP + 16 * tile + 4 * t, 4), v(vL16), SWS, SWS + 3, s(((sOB1, sA), (sOBX, sB_))[tile][t]), fl), 'ost'))
        flag = ('buffer_store_dwordx2 %s, %s, s[%d:%d], %s offen %s' % (v(vN, 2), v(vT), SWS, SWS + 3, s(sC_), fl), 'side')
        if c.hint and not fl: L += [flag, (self.poll(), 'poll')]
        for m in range(c.wo_imp, 7 - c.wo_g3): L += self.wo_block(m)
        L += self.p3_setup()
        L = self.sched(L, 'pub')
        if not c.hint: L += ['@waitvm ost', flag]
        elif fl: L += ['@waitvm ost', flag, self.poll(), '@waitvm_all']
        return L
    def poll(self, r=vT2, so=sFLG): return 'buffer_load_dwordx2 %s, %s, s[%d:%d], %s offen sc1' % (v(r, 2), v(vXR + 3), SWS, SWS + 3, s(so))
    def wo_block(self, m, tag='wo'):
        X = ['s_add_u32 m0, %s, %d' % (s(sM0X), L_WO + 16384 * m)]
        if m: X.append('s_add_u32 %s, %s, %d' % (s(sWOS), s(sWOS), 57344))
        return X + [('buffer_load_dwordx4 %s, s[%d:%d], %s offen offset:%d %s lds' % (v(vXD + j if j else vWOD), SWO, SWO + 3, s(sWOS), 1024 * j, self.cfg.wofl), tag) for j in range(4)]
    def part_loads(self, br):
        L = [('buffer_load_dwordx2 %s, %s, s[%d:%d], %s offen sc1' % (v(vN, 2), v(vXR + 3), SWS, SWS + 3, s(sRECL)), 'rec')]
        for p in range(8):
            L.append(('buffer_load_dwordx4 %s, %s, s[%d:%d], %s offen offset:%d sc1' % (v(vKV + 4 * p, 4), v(vXR), SWS, SWS + 3, s(sPL1 if p >= 4 else sPL0), 256 * (p & 3)), 'part'))
        return L
    def part_retry(self, br):
        P = self.part_loads(br)
        L = ['L_part_retry%s:' % br, '@assume_idle', '@waitvm_all'] + SPIN + [P[0]]
        for p in range(8):
            L += ['v_xor_b32 %s, %s, %s' % (v(vT2), v(vKV + 4 * p + 3), v(vTAG)), 'v_cmp_lt_u32 vcc, 0xffff, %s' % v(vT2), 's_cbranch_vccz L_got%s%d' % (br, p), (P[1 + p][0], 'untracked'), 'L_got%s%d:' % (br, p)]
        return L + ['@waitvm_all', 's_branch L_part_chk%s' % br]
    def far(self):
        return ['L_far:', '@assume_idle', '@waitvm_all', 's_nop 4'] + self.publish('sc1') + ['s_branch L_join']
    def wo_reads(self):
        b = [vWO0, vWO0 + 1, vXR2, vXR2 + 1]
        L = ['v_xor_b32 %s, 32, %s' % (v(b[1]), v(b[0])), 'v_add_u32 %s, 0x10000, %s' % (v(b[2]), v(b[0])), 'v_add_u32 %s, 0x10000, %s' % (v(b[3]), v(b[1]))]
        for k in range(14):
            for nt in range(2):
                for i in range(2):
                    off = (32 * k + 4 * i) * 256
                    L.append('ds_read_b64_tr_b16 %s, %s offset:%d' % (a(8 * k + 4 * nt + 2 * i, 2), v(b[nt + 2 * (off >> 16)]), off & 0xffff))
        return L

    def p3_setup(self):
        L = []; A = L.append
        A('s_lshl_b32 %s, %s, 2' % (s(sT2), s(sRB))); A('s_add_u32 %s, %s, %s' % (s(sT2), s(sT2), s(sRQ))); A('s_mul_i32 %s, %s, %d' % (s(sD_), s(sT2), 64 * 1792))
        A('s_mul_i32 %s, %s, 896' % (s(sT2), s(sBR))); A('s_add_u32 %s, %s, %s' % (s(sD_), s(sD_), s(sT2)))
        A('s_lshl_b32 %s, %s, 2' % (s(sT2), s(sCB))); A('s_add_u32 %s, %s, %s' % (s(sT2), s(sT2), s(sW)))
        A('s_cmp_ge_u32 %s, 14' % s(sT2)); A('s_cselect_b32 %s, 0x%x, 0' % (s(sA), OOB))
        A('s_lshl_b32 %s, %s, 6' % (s(sT2), s(sT2))); A('s_add_u32 %s, %s, %s' % (s(sXO), s(sD_), s(sT2)))
        for b in range(1, 4): A('s_add_u32 %s, %s, %d' % (s(sXO + b), s(sXO), b * 16 * 1792))
        t0, t1, t2 = vT2 + 10, vT2 + 11, vT2 + 12
        A('s_lshl_b32 %s, %s, 12' % (s(sB_), s(sW))); A('s_add_u32 %s, %s, %d' % (s(sB_), s(sB_), L_OT))
        A('v_and_b32 %s, 15, %s' % (v(t0), v(vL))); A('v_lshlrev_b32 %s, 4, %s' % (v(vS16), v(t0))); A('v_lshl_add_u32 %s, %s, 6, %s' % (v(t0), v(t0), s(sB_)))
        A('v_bfe_u32 %s, %s, 4, 1' % (v(t1), v(vL))); A('v_lshl_add_u32 %s, %s, 3, %s' % (v(t0), v(t1), v(t0)))
        A('v_bfe_u32 %s, %s, 1, 2' % (v(t1), v(vL))); A('v_lshrrev_b32 %s, 5, %s' % (v(t2), v(vL))); A('v_xor_b32 %s, %s, %s' % (v(t1), v(t1), v(t2)))
        A('v_lshl_add_u32 %s, %s, 4, %s' % (v(vOW), v(t1), v(t0))); A('v_xor_b32 %s, 32, %s' % (v(vOW + 1), v(vOW)))
        A('v_bfe_u32 %s, %s, 3, 2' % (v(t1), v(vL))); A('v_xor_b32 %s, %s, %s' % (v(t1), v(t1), v(vL))); A('v_and_b32 %s, 3, %s' % (v(t1), v(t1)))
        A('v_lshrrev_b32 %s, 2, %s' % (v(t0), v(vL))); A('v_lshl_add_u32 %s, %s, 6, %s' % (v(t2), v(t0), s(sB_))); A('v_lshl_add_u32 %s, %s, 4, %s' % (v(vOR), v(t1), v(t2)))
        A('v_mul_u32_u24 %s, 1792, %s' % (v(t0), v(t0))); A('v_and_b32 %s, 3, %s' % (v(t1), v(vL))); A('v_lshl_add_u32 %s, %s, 4, %s' % (v(t0), v(t1), v(t0)))
        A('v_add_u32 %s, %s, %s' % (v(vOG), s(sA), v(t0)))
        A('v_and_b32 %s, 15, %s' % (v(t0), v(vL))); A('v_cmp_eq_u32_e64 s[%d:%d], %s, %s' % (sOWN, sOWN + 1, s(sH), v(t0)))
        if self.cfg.own_nonce:
            A('s_and_b32 %s, %s, 127' % (s(sT2), s(sPB))); A('s_or_b32 %s, %s, %s' % (s(sT2), s(sT2), s(sW))); A('s_cmp_eq_u32 %s, 0' % s(sT2))
            A('s_cselect_b32 %s, 0, 0x20000000' % s(sT2)); A('s_lshl_b32 %s, %s, 7' % (s(sA), s(sBR))); A('s_or_b32 %s, %s, %s' % (s(sT2), s(sT2), s(sA)))
            A('v_add_u32 %s, %s, %s' % (v(vT2 + 2), s(sT2), v(vT)))
        for i, r in enumerate(vOF):
            if self.cfg.tab_acc: A('v_accvgpr_read_b32 %s, %s' % (v(r), a(112 + i)))
            A('v_add_u32 %s, %s, %s' % (v(r), v(r), v(vS16)))
        A('s_lshl2_add_u32 %s, %s, %s' % (s(sT2), s(sGID), s(sRQ))); A('s_lshl2_add_u32 %s, %s, %s' % (s(sT2), s(sT2), s(sW)))
        A('s_lshl_b32 %s, %s, 14' % (s(sT2), s(sT2))); A('s_add_u32 %s, %s, %d' % (s(sD_), s(sT2), WS_O))
        A('s_lshl_b32 %s, %s, 14' % (s(sWOM), s(sW))); A('s_mov_b32 m0, %s' % s(sWOM))
        return L
    def table_loads(self):
        L = ['v_and_b32 %s, 0x300, %s' % (v(vWRk), v(vL16)), 'v_lshrrev_b32 %s, 2, %s' % (v(vWRk), v(vWRk))]
        for q in range(4):
            dst = a(112 + 4 * q, 4 if q < 3 else 2) if self.cfg.tab_acc else v(vOF[4 * q], 4 if q < 3 else 2)
            L.append(('global_load_dwordx%d %s, %s, s[%d:%d] offset:%d' % (4 if q < 3 else 2, dst, v(vWRk), sTAB, sTAB + 1, 16 * q), 'tab'))
        return L
    def table(self, pad):
        T = []
        for g in range(4):
            for r in range(16):
                h, u = divmod(8 * (r >> 1) + 2 * g + (r & 1), 7)
                T.append(h * 1024 + (u >> 2) * 16384 + (u & 1) * 512 + ((u >> 1) & 1) * 8)
        return ['.p2align 6', '.type L_tab,@object', 'L_tab:'] + ['.long %d' % x for x in T] + (['.fill L_PAD, 4, 0', '.size L_tab, 256 + 4 * L_PAD'] if pad else ['.size L_tab, 256', '.p2align 7'])

    def tail(self):
        c = self.cfg
        L = ['L_pub:'] + self.publish(''); A = L.append
        A('L_join:')
        L += self.stamp(8)
        g3 = 7 - c.wo_g3
        poll = 'buffer_load_dwordx2 %s, %s, s[%d:%d], %s offen sc1' % (v(vT2, 2), v(vXR + 3), SWS, SWS + 3, s(sFLG))
        assert c.wo_early >= 2
        if c.hint:
            A('s_add_u32 %s, %s, 8192' % (s(sC_), s(sC_))); A('@waitvm poll'); A('@waitlgkm_all'); A('s_barrier')
            wrest = self.wo_reads()[3 + 8 * c.wo_imp:3 + 8 * g3]
        elif c.poll_first:
            A(poll); A('@waitlgkm_all'); A('s_barrier'); L += self.wo_reads()[3 + 8 * c.wo_early:3 + 8 * c.wo_imp]
            wrest = self.wo_reads()[3 + 8 * c.wo_imp:3 + 8 * g3]
        else:
            A('@waitvm wo'); A(poll); A('@waitlgkm_all'); A('s_barrier'); L += self.wo_reads()[3 + 8 * c.wo_early:3 + 8 * g3]
            wrest = []
        def test(r): return ['v_xor_b32 %s, %s, %s' % (v(r), s(sN0), v(r)), 'v_xor_b32 %s, %s, %s' % (v(r + 1), s(sN1), v(r + 1)),
                             'v_or_b32 %s, %s, %s' % (v(r), v(r), v(r + 1)), 'v_cmp_ne_u32 vcc, 0, %s' % v(r), 's_andn2_b64 vcc, vcc, s[%d:%d]' % (sOWN, sOWN + 1)]
        A('L_poll:')
        L += test(vT2); A('s_cbranch_vccnz L_repoll'); A('L_seen:')
        p2 = poll.replace(v(vT2, 2), v(vT2 + 14, 2))
        self.repoll = ['L_repoll:', '@assume_idle', (poll, 'p1')] + SPIN + ['s_nop 15', (p2, 'p2')] + test(vT2) + ['s_cbranch_vccz L_seen2'] + test(vT2 + 14) + ['s_cbranch_vccnz L_repoll',
                       'L_seen2:', '@waitvm_all', 's_branch L_seen']
        L += self.stamp(9)
        od = []
        for h in range(16):
            if h and h % 4 == 0: od += ['s_add_u32 m0, %s, %d' % (s(sWOM), 1024 * h), 's_add_u32 %s, %s, 4096' % (s(sD_), s(sD_))]
            od.append(('buffer_load_dwordx4 %s, s[%d:%d], %s offen offset:%d sc1 lds' % (v(vL16), SWS, SWS + 3, s(sD_), 1024 * (h & 3)), 'o%d' % h))
        assert c.o_first % 4 == 0
        nf = [i for i, x in enumerate(od) if isinstance(x, tuple)][c.o_first - 1] + 1
        L += od[:nf]
        if c.hint: L += self.wo_reads()[3 + 8 * c.wo_early:3 + 8 * c.wo_imp]
        M16 = 'v_mfma_f32_16x16x32_bf16'
        st = {'have': -1}
        def gate(k):
            X = []; h = (8 * k + 7) // 7
            need = min(x for x in c.stages if x >= h)
            wg = k % 2 == 0 and k // 2 >= g3
            if st['have'] < need or wg:
                X = ['@waitvm o%d' % need + (' wog%d' % (k // 2) if wg else ''), 's_barrier']; st['have'] = max(need, st['have'])
            return X
        def rd(k, sg, i): return 'ds_read_b64 %s, %s offset:%d' % (v(vE + 4 * ((4 * k + sg) % 12) + 2 * i, 2), v(vOF[2 * (k % 7) + i]), (k // 7) * 8192 + (sg >> 1) * 32768 + (sg & 1) * 256)
        rds = lambda k: [rd(k, sg, i) for sg in range(4) for i in range(2)]
        later = od[nf:]
        for m in range(g3, 7): later += self.wo_block(m, 'wog%d' % m)
        if c.own_nonce: later.append(('buffer_store_dwordx2 %s, %s, s[%d:%d], 0 offen sc1' % (v(vN, 2), v(vT2 + 2), SWS, SWS + 3), 'side'))
        if c.hint: later.append(('buffer_store_dwordx2 %s, %s, s[%d:%d], %s offen sc1' % (v(vN, 2), v(vT), SWS, SWS + 3, s(sC_)), 'side'))
        L += gate(0) + rds(0) + gate(1)
        kt = 14 - c.tailk
        for k in range(kt):
            fill = []
            if k + 2 < 14:
                L += gate(k + 2); fill = (rds(1) if k == 0 else []) + rds(k + 2)
                if k >= c.wrest_at and wrest: fill = interleave(fill, wrest[:c.wrest_n]); del wrest[:c.wrest_n]
                assert not wrest or k + 1 < 2 * c.wo_imp
                if (k + 2) % 2 == 0 and (k + 2) // 2 >= g3: fill = interleave(fill, self.wo_reads()[3 + 4 * (k + 2):3 + 4 * (k + 2) + 8])
            per = -(-len(fill) // 8)
            for j in range(8):
                sg, nt = j >> 1, j & 1
                d = v(vK + 8 * sg + 4 * nt, 4)
                L.append('%s %s, %s, %s, %s' % (M16, d, a(8 * k + 4 * nt, 4), v(vE + 4 * ((4 * k + sg) % 12), 4), d if k else '0'))
                if later and k and j % c.g3_every == 0:
                    while not isinstance(later[0], tuple): L.append(later.pop(0))
                    L.append(later.pop(0))
                L += fill[per * j:per * (j + 1)]
        assert not later
        L += self.stamp(10)
        R = []; A = R.append
        for k in range(kt + 2, 14): assert not gate(k); R += rds(k)
        for sg in range(4):
            for k in range(kt, 14):
                for nt in range(2):
                    d = v(vK + 8 * sg + 4 * nt, 4)
                    R.append(('%s %s, %s, %s, %s' % (M16, d, a(8 * k + 4 * nt, 4), v(vE + 4 * ((4 * k + sg) % 12), 4), d), 'sg%d' % sg))
        def stage():
            X = []
            for sg in range(4):
                for nt in range(2):
                    d = vK + 8 * sg + 4 * nt
                    X += self.pack(d, 2) + ['ds_write_b64 %s, %s offset:%d' % (v(vOW + nt), v(d, 2), 1024 * sg)]
                X.append('ds_read_b128 %s, %s offset:%d' % (v(vP + 4 * sg, 4), v(vOR), 1024 * sg))
                X.append('buffer_store_dwordx4 %s, %s, s[%d:%d], %s offen %s' % (v(vP + 4 * sg, 4), v(vOG), SOUT, SOUT + 3, s(sXO + sg), c.outfl))
            return X
        R += stage()
        if c.hint: R += ['v_cmp_u_f32_e64 s[%d:%d], %s, %s' % (sT0, sT1, v(vK + 3), v(vK + 11)), 'v_cmp_u_f32 vcc, %s, %s' % (v(vK + 19), v(vK + 27))]
        self.M.t += 3000
        L += self.sched(R, 'out', boost={'sg0': 4000, 'sg1': 3000, 'sg2': 2000})
        A = L.append
        self.redo = []
        if c.hint:
            A('s_or_b64 vcc, vcc, s[%d:%d]' % (sT0, sT1)); A('s_branch L_redo' if c.force_redo else 's_cbranch_vccnz L_redo'); A('L_done:')
            X = ['L_redo:', '@assume_idle', '@wait_all']
            if c.stamps: X += ['v_mov_b32 %s, 1' % v(vT2), 's_mov_b64 exec, 1', 'global_atomic_add %s, %s, s[%d:%d] offset:32' % (v(vZ), v(vT2), sDBG, sDBG + 1), 's_mov_b64 exec, -1']
            X += ['s_add_u32 %s, %s, 8192' % (s(sFLG), s(sFLG)), 'L_redo_poll:'] + SPIN + [poll] + test(vT2)[:4] + ['s_cbranch_vccnz L_redo_poll']
            X += ['s_lshl_b32 %s, %s, 14' % (s(sT2), s(sW)), 's_sub_u32 %s, %s, %s' % (s(sD_), s(sD_), s(sT2)), 's_sub_u32 %s, %s, 12288' % (s(sA), s(sD_))]
            X += ['s_add_u32 %s, %s, %d' % (s(r), s(sA), o) for r, o in ((sB_, 32768), (sC_, 8192), (sD_, 40960))]
            for k in range(14):
                for sg in range(4):
                    for i in range(2):
                        X.append('buffer_load_dwordx2 %s, %s, s[%d:%d], %s offen offset:%d sc1' % (v(vE + 4 * sg + 2 * i, 2), v(vOF[2 * (k % 7) + i]), SWS, SWS + 3, s(((sA, sB_), (sC_, sD_))[k // 7][sg >> 1]), (sg & 1) * 256))
                for j in range(8):
                    d = v(vK + 4 * j, 4)
                    X.append('%s %s, %s, %s, %s' % (M16, d, a(8 * k + 4 * (j & 1), 4), v(vE + 4 * (j >> 1), 4), d if k else '0'))
            self.redo = X + stage() + ['s_branch L_done']
        if c.stamps:
            L += self.stamp(11)
            A('s_memrealtime s[%d:%d]' % (sT0, sT1)); A('@waitlgkm_all')
            A('v_writelane_b32 %s, %s, 12' % (v(vST), s(sT0)))
            A('s_lshl_b32 %s, s2, 2' % s(sT2)); A('s_add_u32 %s, %s, %s' % (s(sT2), s(sT2), s(sW))); A('s_lshl_b32 %s, %s, 8' % (s(sT2), s(sT2)))
            A('s_add_u32 %s, %s, %d' % (s(sT2), s(sT2), WS_STAMP))
            A('v_lshlrev_b32 %s, 2, %s' % (v(vT), v(vL)))
            for k in range(0 if not c.prost else 4, 4): A('v_writelane_b32 %s, s%d, %d' % (v(vST), 12 + 2 * k, 32 + k))
            A('buffer_store_dword %s, %s, s[%d:%d], %s offen' % (v(vST), v(vT), SWS, SWS + 3, s(sT2)))
        if c.leak:
            if c.leak == 11: L += self.stamp(11)
            A('s_lshl_b32 s11, s101, 2'); A('s_cmp_eq_u32 %s, %d' % (s(sBR), c.leak_br)); A('s_cselect_b32 s11, s11, 0'); A('s_memrealtime s[100:101]'); A('@waitlgkm_all')
            A('L_leak:'); A('s_memrealtime s[%d:%d]' % (sT0, sT1)); A('@waitlgkm_all'); A('s_sub_u32 %s, %s, s100' % (s(sT0), s(sT0))); A('s_cmp_lt_u32 %s, s11' % s(sT0)); A('s_cbranch_scc1 L_leak')
        if c.tfix:
            A('L_tfix:'); A('s_memrealtime s[%d:%d]' % (sT0, sT1)); A('@waitlgkm_all'); A('s_sub_u32 %s, %s, s100' % (s(sT0), s(sT0))); A('s_cmp_lt_u32 %s, %d' % (s(sT0), c.tfix)); A('s_cbranch_scc1 L_tfix')
        A('L_end:'); A('s_endpgm')
        return L

    def throttle(self, L, br):
        c = self.cfg
        if not c.thr: return L
        out = []; seen = set()
        for x in L:
            if isinstance(x, tuple) and x[1] is not None and x[1] not in seen and x[1] in c.thr_tags:
                if x[1] != 'wq': seen.add(x[1])
                n = self.nthr; self.nthr += 1
                out += ['s_cbranch_vccnz L_thr%d' % n, 'L_thb%d:' % n]
                self.thr_side += ['L_thr%d:' % n, 's_waitcnt vmcnt(%d)' % c.thr, 's_branch L_thb%d' % n]
            out.append(x)
        return out
    def marks(self, L):
        if not self.cfg.marks: return L
        out = []; seen = set()
        for x in L:
            t = x[0] if isinstance(x, tuple) else x
            hit = [k for k, (p, af) in enumerate(self.cfg.marks) if (t == p or t.startswith(p + ' ')) and k not in seen]
            for k in hit:
                if not self.cfg.marks[k][1]: out.append(('s_memtime s[%d:%d]' % (12 + 2 * k, 13 + 2 * k), 'nowait'))
            out.append(x)
            for k in hit:
                if self.cfg.marks[k][1]: out.append(('s_memtime s[%d:%d]' % (12 + 2 * k, 13 + 2 * k), 'nowait'))
                seen.add(k)
        return out
    def build(self):
        import re
        pro = self.prologue() + ['s_cmp_eq_u32 %s, 0' % s(sBR), 's_cbranch_scc1 L_pathA']
        MK = '.set MARK_A, 0'
        out = []; base = self.cfg
        for br in 'BA':
            import emit, sched
            c = copy.copy(base)
            for k, x in getattr(base, br).items(): assert hasattr(c, k), k; setattr(c, k, x)
            self.__init__(c); self.prologue()
            emit.MERGE = c.merge; sched.BURST = c.burst; sched.HOLD = c.hold
            hlp = [(x, 'untracked') if x.startswith('global_load') else x for x in self.help()] if (br == 'A' and self.cfg.help) else []
            body = hlp + self.part1(br) + self.stamp(14) + self.middle(br) + self.tail()
            code = finalize(self.marks(pro + [MK] + body)); k = code.index(MK)
            head, code = code[:k], code[k + 1:]
            side = finalize(self.repoll + self.far() + ([] if c.own_nonce else self.nonce_retry(br)) + self.part_retry(br) + (self.mknonce() if (br == 'BA'[c.late_nonce] and not c.own_nonce) else []) + self.redo)
            tab = self.table(br == 'A')
            if br == 'A':
                ren = lambda l: re.sub(r'\b(L_(?:end|pub|join|far|poll|repoll|seen2?|tab|leak|tfix|done|redo|redo_poll))\b', r'\1A', l)
                code, side, tab = [ren(l) for l in ['L_pathA:'] + code], [ren(l) for l in side], [ren(l) for l in tab]
            else: code = head + code
            out.append((code, side + tab))
        return out

HEADER = open(os.path.join(os.path.dirname(os.path.abspath(__file__)), 'header.txt')).read()

DESC = """;
"""

def generate(cfg):
    import emit
    emit.MERGE = cfg.merge
    import sched
    sched.BURST = cfg.burst; sched.HOLD = cfg.hold
    g = G(cfg)
    (cb, sb), (ca, sa) = g.build()
    if cfg.align:
        from align import align
        hd = '.amdgcn_target "amdgcn-amd-amdhsa--gfx950"\n.text\n.set L_AOFF, 200\n.set L_PAD, 0\n'
        cb, p0, p1 = align(hd, cb, '\n'.join(sb + ca + sa) + '\n', cfg.align)
        ca, p2, p3 = align(hd, ca, '\n'.join(sa + cb + sb) + '\n', cfg.align)
        if cfg.verbose: sys.stderr.write('misalignment penalty %d -> %d, %d -> %d\n' % (p0, p1, p2, p3))
    body = cb + sb + ca + sa
    txt = HEADER
    if cfg.extra_empty:
        txt += '; @launch kernel=%s grid=(256,1,1) block=(256,1,1) lds=163840\n; @launch kernel=empty_kernel grid=(256,1,1) block=(256,1,1) lds=0\n' % KNAME
    else:
        txt += '; @launch grid=(256,1,1) block=(256,1,1) lds=163840\n'
    txt += DESC
    txt += '.amdgcn_target "amdgcn-amd-amdhsa--gfx950"\n.text\n.globl %s\n.p2align 8\n.type %s,@function\n%s:\n' % (KNAME, KNAME, KNAME)
    txt += '\n'.join(('' if l.endswith(':') else '    ') + l for l in body) + '\n'
    if cfg.extra_empty:
        txt += '.globl empty_kernel\n.p2align 8\n.type empty_kernel,@function\nempty_kernel:\n    s_endpgm\n'
        txt += '.section .rodata,"a"\n.p2align 6\n.amdhsa_kernel empty_kernel\n  .amdhsa_next_free_vgpr 8\n  .amdhsa_next_free_sgpr 16\n  .amdhsa_accum_offset 8\n  .amdhsa_group_segment_fixed_size 0\n  .amdhsa_kernarg_size 80\n  .amdhsa_user_sgpr_count 2\n  .amdhsa_user_sgpr_kernarg_segment_ptr 1\n  .amdhsa_system_sgpr_workgroup_id_x 1\n.end_amdhsa_kernel\n'
    txt += '.section .rodata,"a"\n.p2align 6\n.amdhsa_kernel %s\n' % KNAME
    txt += '  .amdhsa_next_free_vgpr 512\n  .amdhsa_next_free_sgpr 102\n  .amdhsa_accum_offset 256\n  .amdhsa_group_segment_fixed_size 0\n'
    txt += '  .amdhsa_kernarg_size 80\n  .amdhsa_user_sgpr_count 2\n  .amdhsa_user_sgpr_kernarg_segment_ptr 1\n  .amdhsa_system_sgpr_workgroup_id_x 1\n.end_amdhsa_kernel\n'
    import subprocess, tempfile, re
    d = tempfile.mkdtemp()
    open(d + '/a.s', 'w').write(txt.replace('L_PAD', '0').replace('L_AOFF', '200'))
    r = subprocess.run(['clang', '-x', 'assembler', '-target', 'amdgcn-amd-amdhsa', '-mcpu=gfx950', '-c', d + '/a.s', '-o', d + '/a.o'], capture_output=True, text=True)
    if r.returncode: raise Exception(r.stderr[:3000])
    r = subprocess.run(['llvm-readelf', '-S', '-s', d + '/a.o'], capture_output=True, text=True).stdout
    size = int(re.search(r'\.text\s+PROGBITS\s+\w+\s+\w+\s+(\w+)', r).group(1), 16)
    offa = int(re.search(r': (\w+)\s+\d+\s+\w+\s+\w+\s+\w+\s+\d+ L_pathA', r).group(1), 16)
    assert offa % 128 == 0 and 64 < offa // 128 and offa < 32768 and size - offa < 32768
    sys.stderr.write('code bytes: B %d A %d\n' % (offa, size - offa))
    return txt.replace('L_PAD', str((offa + 32768 + 256 - size) // 4)).replace('L_AOFF', str(offa // 128))

if __name__ == '__main__':
    cfg = Cfg()
    out = sys.argv[1]
    for kv in sys.argv[2:]:
        k, val = kv.split('=', 1); assert hasattr(cfg, k), k; setattr(cfg, k, eval(val))
    open(out, 'w').write(generate(cfg))
```
